```python
import torch

def _softmax(x, axis=-1):
    return torch.softmax(x, dim=axis)
def _gelu(x):
    return torch.nn.functional.gelu(x, approximate="tanh")
def _silu(x):
    return torch.nn.functional.silu(x)
def _sigmoid(x):
    return torch.sigmoid(x)
def _layernorm(x, axis=-1, eps=1e-5):
    m = x.mean(dim=axis, keepdim=True)
    v = x.var(dim=axis, keepdim=True, unbiased=False)
    return (x - m) / torch.sqrt(v + eps)
def _scatter_add(tgt, idx, src, axis=0):
    return tgt.clone().index_add_(axis, idx, src)
def _segment_sum(src, seg, n):
    out = torch.zeros((n,) + src.shape[1:], dtype=src.dtype)
    return out.index_add_(0, seg, src)
def _pad(x, pw):
    flat = tuple(v for pair in reversed(pw) for v in pair)
    return torch.nn.functional.pad(x, flat)

kernel_name = 'standalone__dcn_v2_cross__recsys'

def setup_inputs():

    _w = (lambda a: (lambda t: t.to(torch.bfloat16) if t.is_floating_point() else t)(torch.as_tensor(a)))
    B, F, D, L = 16384, 100, 64, 3
    Din = min(F * D, 1024)
    return {
        "x0": _w((lambda *s: torch.randn(*s, dtype=torch.bfloat16) * 0.05)(B, Din)),
        "ws": _w((lambda *s: torch.randn(*s, dtype=torch.bfloat16) * 0.05)(L, Din, Din)),
        "bs": _w((lambda *s: torch.randn(*s, dtype=torch.bfloat16) * 0.05)(L, Din)),
    }

def reference(x0, ws, bs):
    x = x0
    for l in range(ws.shape[0]):
        x = x0 * (x @ ws[l] + bs[l]) + x
    return x
```

```python
import sys, re, argparse

NAME = "standalone__dcn_v2_cross__recsys_kernel"
SLOT = 32768
NSLOT = 5
E_OFF = [None, 0, 32 << 20]
FL_OFF = 64 << 20
EP_OFF = FL_OFF + 65536
ST_OFF = 80 << 20

def vr(b, n=1, p="v"):
    return f"{p}{b}" if n == 1 else f"{p}[{b}:{b+n-1}]"

def XF(mt, s): return (mt * 2 + s) * 4
def WF(buf, s): return 64 + buf * 8 + s * 4
def X0(p, mt): return 80 + (p * 8 + mt) * 4
ACC_A0 = 208
ACC_V0 = 48
_acc = {}
def _init_acc():
    va, aa = ACC_V0, ACC_A0
    for nt in range(8):
        for mt in range(8):
            if nt >= 6 and mt >= 2:
                _acc[(mt, nt)] = ("a", aa); aa += 4
            else:
                _acc[(mt, nt)] = ("v", va); va += 4
    assert va == 256 and aa == 256
_init_acc()
def ACC(mt, nt): return _acc[(mt, nt)]

V_XA = [1, 2]; V_WA = [3, 4]; V_WB = 5; V_WC = 6; V_XE = 7; V_XO = 8; V_XC = [9, 10]
V_LIN = 11; V_CA = [12, 13]; V_OWN = 14; V_B = 15; V_POLL = 16; V_FLAG = 17; V_ST = [18, 19]
V_LINL = 20
V_BR = 22
V_T = 24
S_W = 8; S_X0 = 12; S_WS = 16; S_OUT = 20; S_B = 24
S_TAB = 28
S_TAB0 = 36
S_QW = 44
S_QX = 48
S_FL = 52
S_WAVEW = 56; S_WAVEX = 57; S_J = 58; S_EP = 59; S_T0 = 60; S_T1 = 61; S_T2 = 62
S_4K = 63; S_8K = 64; S_12K = 65; S_MASK = 66; S_WAVE = 67; S_EPOFF = 68; S_CNT = 69
S_ST = 70
S_RB = 74; S_RT = 76

class G:
    def __init__(self, opt):
        self.opt = opt
        self.out = []
        self.vq = []
        self.lq = []
        self.ool = []
        self.reg = {}
        self.nlabel = 0
        self.nstamp = 0
        self.pending_stamp = []
    def e(self, s):
        self.out.append(s)
    def label(self, n):
        self.out.append(n + ":")
    def newlabel(self, p="L"):
        self.nlabel += 1
        return f"{p}{self.nlabel}"
    def vm(self, s, tag=None):
        self.e(s); self.vq.append(tag)
        assert len(self.vq) <= 63, "vmcnt overflow"
    def lds(self, s, tag=None):
        self.e(s); self.lq.append(tag)
    def _need(self, q, tags, mx):
        idx = -1
        for i, t in enumerate(q):
            if t in tags: idx = i
        if idx < 0: return None
        n = len(q) - 1 - idx
        if n > mx:
            n = mx
        del q[:len(q) - n]
        return n
    def wait(self, vtags=(), ltags=(), vall=False, lall=False):
        parts = []
        if vall:
            if self.vq: parts.append("vmcnt(0)"); self.vq = []
        else:
            n = self._need(self.vq, set(vtags), 62)
            if n is not None: parts.append(f"vmcnt({n})")
        if lall:
            parts.append("lgkmcnt(0)"); self.lq = []
        else:
            n = self._need(self.lq, set(ltags), 14)
            if n is not None: parts.append(f"lgkmcnt({n})")
        if parts: self.e("s_waitcnt " + " ".join(parts))
    def setreg(self, v, off, span):
        cur = self.reg[v]
        if off >= cur and off + span - cur <= 65536: return
        new = off
        self.e(f"v_add_u32 v{v}, {hex((new - cur) & 0xffffffff)}, v{v}")
        self.reg[v] = new
    def imm(self, v, off):
        d = off - self.reg[v]
        assert 0 <= d < 65536, (v, off, self.reg[v])
        return d
    def stamp(self, which):
        if not self.opt.diag: return
        self.e(f"s_memtime s[{S_ST+2*which}:{S_ST+2*which+1}]")
    def stamp_save(self, idx):
        if not self.opt.diag: return
        self.e(f"v_writelane_b32 v{V_ST[0]}, s{S_ST}, {idx}")
        self.e(f"v_writelane_b32 v{V_ST[1]}, s{S_ST+2}, {idx}")

    def mfma(self, mt, nt, s, buf):
        p, r = ACC(mt, nt)
        self.wait(ltags=[("XF", mt, s), ("WF", buf, s, 0), ("WF", buf, s, 1)])
        self.e(f"v_mfma_f32_16x16x32_bf16 {vr(r,4,p)}, {vr(WF(buf,s),4,'a')}, {vr(XF(mt,s),4,'a')}, {vr(r,4,p)}")
    def rd_xf(self, slot, mt, s):
        v = V_XA[s]
        self.lds(f"ds_read_b128 {vr(XF(mt,s),4,'a')}, v{v} offset:{self.imm(v, slot*SLOT + mt*2048)}", ("XF", mt, s))
    def rd_wf(self, slot, nt, s, u):
        p, h = nt >> 1, nt & 1
        v = V_WA[h]
        off = slot * SLOT + (p >> 1) * 16384 + (p & 1) * 512 + s * 8192 + u * 4096
        self.lds(f"ds_read_b64_tr_b16 {vr(WF(nt&1,s)+2*u,2,'a')}, v{v} offset:{self.imm(v, off)}", ("WF", nt & 1, s, u))
    def tile_src(self, layer, t):
        if layer == 0: return (t >> 2, t & 3)
        if t < 4: return (0, t)
        return (1 + (t - 4) % 3, (t - 4) // 3)
    def w_setup(self, layer, t):
        d, tau = self.tile_src(layer, t)
        if layer == 0:
            return [lambda: self.e(f"v_add_u32 v{V_WC}, {hex((t << 17))}, v{V_WB}")]
        return [lambda: self.e(f"s_add_u32 s{S_T0}, s{S_QW+d}, {hex((layer << 21) + (tau << 17))}"),
                lambda: self.e(f"v_add_u32 v{V_WC}, s{S_T0}, v{V_WB}")]
    def w_dma(self, layer, t, slot, i):
        tab = (S_TAB0 if layer == 0 else S_TAB) + i
        return (lambda: self.e(f"s_add_u32 m0, s{S_WAVEW}, {hex(slot*SLOT + i*2048)}"),
                lambda: self.vm(f"buffer_load_dwordx4 v{V_WC}, {vr(S_W,4,'s')}, s{tab} offen lds", ("W", layer, t)))
    def x_setup(self, layer, t):
        d, tau = self.tile_src(layer, t)
        if layer == 0:
            return [lambda: self.e(f"v_add_u32 v{V_XC[0]}, {hex(t*128)}, v{V_XE}"),
                    lambda: self.e(f"v_add_u32 v{V_XC[1]}, {hex(t*128)}, v{V_XO}")]
        return [lambda: self.e(f"s_add_u32 s{S_T1}, s{S_QX+d}, {hex(E_OFF[layer] + (tau << 15))}"),
                lambda: self.e(f"v_add_u32 v{V_XC[0]}, s{S_T1}, v{V_LIN}")]
    def x_dma(self, layer, t, slot, i):
        if layer == 0:
            return (lambda: self.e(f"s_add_u32 m0, s{S_WAVEX}, {hex(slot*SLOT + i*1024)}"),
                    lambda: self.vm(f"buffer_load_dwordx4 v{V_XC[i&1]}, {vr(S_X0,4,'s')}, s{S_TAB+2*(i>>1)} offen lds", ("X", layer, t)))
        so = "0" if i < 4 else f"s{S_4K}"
        m = (lambda: self.e(f"s_add_u32 m0, s{S_WAVEX}, {hex(slot*SLOT + (i>>2)*4096)}")) if (i & 3) == 0 else None
        return (m, lambda: self.vm(f"buffer_load_dwordx4 v{V_XC[0]}, {vr(S_WS,4,'s')}, {so} offen offset:{(i&3)*1024} sc1 lds", ("X", layer, t)))
    def poll_issue(self, layer, t):
        d, tau = self.tile_src(layer, t)
        self.vm(f"buffer_load_dword v{V_POLL}, off, {vr(S_WS,4,'s')}, s{S_FL+d} sc1", ("P", layer, t))
    def poll_check(self, layer, t):
        d, tau = self.tile_src(layer, t)
        need = 4 * (layer - 1) + tau + 1
        slow, back = self.newlabel("SLOW"), self.newlabel("BACK")
        def f0():
            assert ("P", layer, t) not in self.vq
            self.e(f"v_readfirstlane_b32 s{S_T2}, v{V_POLL}")
        def f1(): self.e(f"s_sub_u32 s{S_T2}, s{S_T2}, s{S_EP}")
        def f2(): self.e(f"s_sub_u32 s{S_T2}, s{S_T2}, {need}")
        def f3():
            self.e(f"s_cmp_gt_u32 s{S_T2}, {8 - need}")
            self.e(f"s_cbranch_scc1 {slow}")
            self.label(back)
        lp = self.newlabel("SP")
        self.ool.append([f"{slow}:", f"s_mov_b32 s{S_CNT}, 0x100000", f"{lp}:",
                         f"buffer_load_dword v{V_POLL}, off, {vr(S_WS,4,'s')}, s{S_FL+d} sc1",
                         "s_waitcnt vmcnt(0)",
                         f"v_readfirstlane_b32 s{S_T2}, v{V_POLL}",
                         f"s_sub_u32 s{S_CNT}, s{S_CNT}, 1",
                         f"s_cbranch_scc1 {back}",
                         f"s_sub_u32 s{S_T2}, s{S_T2}, s{S_EP}",
                         f"s_sub_u32 s{S_T2}, s{S_T2}, {need}",
                         f"s_cmp_gt_u32 s{S_T2}, {8 - need}",
                         f"s_cbranch_scc0 {back}",
                         "s_sleep 1",
                         f"s_branch {lp}"])
        return [f0, f1, f2, f3]
    def flag_store(self, val):
        return [lambda: self.e(f"s_add_u32 s{S_T2}, s{S_EP}, {val}"),
                lambda: self.e(f"v_mov_b32 v{V_FLAG}, s{S_T2}"),
                lambda: self.vm(f"buffer_store_dword v{V_FLAG}, off, {vr(S_WS,4,'s')}, s{S_FL} sc1", ("F", val))]
    def flush_ool(self):
        if not self.ool: return
        for b in self.ool: self.out += b
        self.ool = []

    def epi_frag(self, p, mt, tb, pk=True):
        ops = []
        f, o = tb, tb + 8
        srcs = []
        for h in range(2):
            srcs.append(ACC(mt, 2 * p + h))
        for d in range(4):
            ops.append(f"v_accvgpr_read_b32 v{f+2*d+1}, a{X0(p,mt)+d}")
        for d in range(4):
            ops.append(f"v_lshlrev_b32 v{f+2*d}, 16, v{f+2*d+1}")
            ops.append(f"v_and_b32 v{f+2*d+1}, s{S_MASK}, v{f+2*d+1}")
        for h in range(2):
            pf, r = srcs[h]
            if pf == "a":
                for i in range(4):
                    ops.append(f"v_accvgpr_read_b32 v{o+i}, a{r+i}")
                r = o
            for d in range(2):
                if pk:
                    ops.append(f"v_pk_mul_f32 {vr(f+4*h+2*d,2)}, {vr(f+4*h+2*d,2)}, {vr(r+2*d,2)}")
                else:
                    ops.append(f"v_mul_f32 v{f+4*h+2*d}, v{f+4*h+2*d}, v{r+2*d}")
                    ops.append(f"v_mul_f32 v{f+4*h+2*d+1}, v{f+4*h+2*d+1}, v{r+2*d+1}")
        for d in range(4):
            ops.append(f"v_cvt_pk_bf16_f32 v{o+d}, v{f+2*d}, v{f+2*d+1}")
        return ops, o

    def prologue(self):
        e = self.e
        e("s_cmp_lt_u32 s2, 256")
        e("s_cbranch_scc1 L_go")
        e("s_endpgm")
        self.label("L_go")
        e("s_load_dwordx4 s[8:11], s[0:1], 0")
        e("s_load_dwordx4 s[20:23], s[0:1], 16")
        e("s_load_dwordx2 s[16:17], s[0:1], 40")
        if self.opt.diag:
            e(f"s_memrealtime s[{S_RT}:{S_RT+1}]")
            e(f"s_memtime s[{S_ST}:{S_ST+1}]")
        e("v_lshrrev_b32 v24, 6, v0")
        e("v_and_b32 v0, 63, v0")
        e(f"v_readfirstlane_b32 s{S_WAVE}, v24")
        e(f"s_and_b32 s{S_RB}, s2, 7")
        e(f"s_lshl_b32 s{S_RB}, s{S_RB}, 3")
        e(f"s_lshr_b32 s{S_T0}, s2, 5")
        e(f"s_add_u32 s{S_RB}, s{S_RB}, s{S_T0}")
        e(f"s_lshr_b32 s{S_J}, s2, 3")
        e(f"s_and_b32 s{S_J}, s{S_J}, 3")
        for i in range(8):
            e(f"s_mov_b32 s{S_TAB+i}, {i*16384}")
            e(f"s_mov_b32 s{S_TAB0+i}, {(32*(i>>2) + 16*(i&1) + 4*((i>>1)&1))*2048}")
        e(f"s_mov_b32 s{S_4K}, 4096"); e(f"s_mov_b32 s{S_8K}, 8192"); e(f"s_mov_b32 s{S_12K}, 12288")
        e(f"s_mov_b32 s{S_MASK}, 0xffff0000")
        e(f"s_lshr_b32 s{S_T0}, s{S_WAVE}, 1")
        e(f"s_and_b32 s{S_T1}, s{S_WAVE}, 1")
        e(f"s_lshl_b32 s{S_WAVEW}, s{S_T0}, 14")
        e(f"s_lshl_b32 s{S_T2}, s{S_T1}, 10")
        e(f"s_add_u32 s{S_WAVEW}, s{S_WAVEW}, s{S_T2}")
        e(f"s_lshl_b32 s{S_WAVEX}, s{S_WAVE}, 13")
        e("v_and_b32 v24, 15, v0"); e("v_lshrrev_b32 v25, 4, v0"); e("v_bfe_u32 v26, v0, 2, 2"); e("v_and_b32 v27, 3, v0")
        e("v_lshrrev_b32 v28, 3, v0"); e("v_and_b32 v29, 7, v0")
        e("v_lshrrev_b32 v30, 1, v28"); e("v_xor_b32 v30, v29, v30"); e("v_lshlrev_b32 v30, 4, v30")
        e("v_lshl_add_u32 v30, v28, 11, v30")
        e(f"s_lshl_b32 s{S_T2}, s{S_RB}, 19"); e(f"s_lshl_b32 s{S_CNT}, s{S_WAVE}, 17"); e(f"s_add_u32 s{S_T2}, s{S_T2}, s{S_CNT}")
        e(f"v_add_u32 v{V_XE}, s{S_T2}, v30")
        e(f"v_xor_b32 v{V_XO}, 64, v{V_XE}"); e(f"v_add_u32 v{V_XO}, 16384, v{V_XO}")
        e(f"s_lshl_b32 s{S_T2}, s{S_T1}, 1")
        e(f"v_xor_b32 v30, s{S_T2}, v27"); e("v_lshlrev_b32 v30, 4, v30")
        e("v_lshl_add_u32 v30, v25, 6, v30"); e("v_lshl_add_u32 v30, v26, 11, v30")
        e(f"s_lshl_b32 s{S_T2}, s{S_J}, 9"); e(f"s_lshl_b32 s{S_CNT}, s{S_T0}, 8"); e(f"s_add_u32 s{S_T2}, s{S_T2}, s{S_CNT}")
        e(f"s_lshl_b32 s{S_CNT}, s{S_T1}, 14"); e(f"s_add_u32 s{S_T2}, s{S_T2}, s{S_CNT}")
        e(f"v_add_u32 v{V_WB}, s{S_T2}, v30")
        e("s_waitcnt lgkmcnt(0)")
        e(f"s_mov_b32 s{S_X0}, s8"); e(f"s_mov_b32 s{S_X0+1}, s9"); e(f"s_mov_b32 s{S_X0+2}, {16384*1024*2}"); e(f"s_mov_b32 s{S_X0+3}, 0x20000")
        e(f"s_mov_b32 s{S_W}, s10"); e(f"s_mov_b32 s{S_W+1}, s11"); e(f"s_mov_b32 s{S_W+2}, {3*1024*1024*2}"); e(f"s_mov_b32 s{S_W+3}, 0x20000")
        def dx(t, slot):
            for f in self.x_setup(0, t): f()
            for i in range(8):
                m, d = self.x_dma(0, t, slot, i); m(); e("s_nop 0"); d()
        def dw(t, slot):
            for f in self.w_setup(0, t): f()
            for i in range(8):
                m, d = self.w_dma(0, t, slot, i); m(); e("s_nop 0"); d()
        dx(0, 0); dw(0, 1); dw(1, 3); dx(1, 2); dx(2, 4)
        self.xs = {0: 0, 1: 2, 2: 4}; self.wsl = {0: 1, 1: 3}
        e(f"s_mov_b32 s{S_B}, s20"); e(f"s_mov_b32 s{S_B+1}, s21"); e(f"s_mov_b32 s{S_B+2}, {3*1024*2}"); e(f"s_mov_b32 s{S_B+3}, 0x20000")
        e(f"s_mov_b32 s{S_OUT}, s22"); e(f"s_mov_b32 s{S_OUT+1}, s23"); e(f"s_mov_b32 s{S_OUT+2}, {16384*1024*2}"); e(f"s_mov_b32 s{S_OUT+3}, 0x20000")
        e(f"s_mov_b32 s{S_WS+2}, 0x10000000"); e(f"s_mov_b32 s{S_WS+3}, 0x20000")
        e(f"s_lshl_b32 s{S_EPOFF}, s{S_RB}, 7"); e(f"s_add_u32 s{S_EPOFF}, s{S_EPOFF}, {hex(EP_OFF)}")
        e(f"s_load_dword s{S_EP}, s[{S_WS}:{S_WS+1}], s{S_EPOFF}")
        for d in range(4):
            e(f"s_add_u32 s{S_T2}, s{S_J}, {d}"); e(f"s_and_b32 s{S_T2}, s{S_T2}, 3")
            e(f"s_lshl_b32 s{S_QW+d}, s{S_T2}, 19")
            e(f"s_lshl_b32 s{S_QX+d}, s{S_T2}, 17"); e(f"s_lshl_b32 s{S_CNT}, s{S_RB}, 19"); e(f"s_add_u32 s{S_QX+d}, s{S_QX+d}, s{S_CNT}")
            e(f"s_lshl_b32 s{S_CNT}, s{S_RB}, 2"); e(f"s_add_u32 s{S_T2}, s{S_T2}, s{S_CNT}"); e(f"s_lshl_b32 s{S_T2}, s{S_T2}, 7")
            e(f"s_add_u32 s{S_FL+d}, s{S_T2}, {hex(FL_OFF)}")
        e("v_lshrrev_b32 v30, 1, v24"); e("v_xor_b32 v31, v25, v30"); e("v_lshlrev_b32 v31, 4, v31"); e("v_lshl_add_u32 v31, v24, 7, v31")
        e(f"s_lshl_b32 s{S_T2}, s{S_T0}, 14")
        e(f"v_add_u32 v{V_XA[0]}, s{S_T2}, v31"); e(f"v_xor_b32 v{V_XA[1]}, 64, v{V_XA[0]}")
        e("v_lshrrev_b32 v31, 1, v25"); e(f"s_lshl_b32 s{S_CNT}, s{S_T1}, 2"); e(f"v_add_u32 v31, s{S_CNT}, v31")
        e("v_xor_b32 v31, v31, v30"); e("v_lshlrev_b32 v31, 4, v31"); e("v_lshl_add_u32 v31, v24, 7, v31")
        e("v_and_b32 v32, 1, v25"); e("v_lshl_add_u32 v31, v32, 3, v31")
        e(f"v_add_u32 v{V_CA[0]}, s{S_T2}, v31"); e(f"v_xor_b32 v{V_CA[1]}, 32, v{V_CA[0]}")
        e("v_lshlrev_b32 v31, 10, v25"); e("v_lshl_add_u32 v31, v26, 6, v31"); e("v_lshl_add_u32 v31, v32, 5, v31"); e("v_lshl_add_u32 v31, v27, 3, v31")
        e(f"s_lshl_b32 s{S_CNT}, s{S_T1}, 8")
        e(f"v_add_u32 v{V_WA[0]}, s{S_CNT}, v31"); e(f"v_xor_b32 v{V_WA[1]}, 32, v{V_WA[0]}")
        e("v_lshlrev_b32 v31, 4, v0")
        e(f"v_add_u32 v{V_LIN}, s{S_WAVEX}, v31"); e(f"v_mov_b32 v{V_LINL}, v{V_LIN}")
        e(f"v_add_u32 v{V_OWN}, s{S_WAVEW}, v31")
        e(f"s_lshl_b32 s{S_T2}, s{S_J}, 9"); e(f"s_lshl_b32 s{S_CNT}, s{S_T1}, 6"); e(f"s_add_u32 s{S_T2}, s{S_T2}, s{S_CNT}")
        e("v_lshlrev_b32 v31, 3, v25"); e(f"v_add_u32 v{V_B}, s{S_T2}, v31")
        for v in V_XA + V_WA + V_CA + [V_OWN, V_LINL]: self.reg[v] = 0
        if self.opt.diag:
            e(f"v_mov_b32 v{V_ST[0]}, 0"); e(f"v_mov_b32 v{V_ST[1]}, 0")
            e(f"v_writelane_b32 v{V_ST[0]}, s{S_ST}, 63")
        for r in range(ACC_V0, 256): e(f"v_mov_b32 v{r}, 1.0")
        for r in range(ACC_A0, 256): e(f"v_accvgpr_write_b32 a{r}, 1.0")
        e("s_waitcnt lgkmcnt(0)")
        e(f"v_mov_b32 v{V_FLAG}, s{S_EP}")
        self.vm(f"buffer_store_dword v{V_FLAG}, off, {vr(S_WS,4,'s')}, s{S_FL} sc1", ("F", 0))

    def barrier(self, vtags, idx):
        self.stamp(0)
        self.wait(vtags=vtags, lall=True)
        self.e("s_barrier")
        self.stamp(1)
        self.pending_stamp.append(idx)

    def run_gaps(self, mf, gaps):
        for g, m in enumerate(mf):
            self.mfma(*m)
            for f in gaps[g]:
                f()

    def body(self, layer, t):
        last = layer == 2
        xs, wsl = self.xs[t], self.wsl[t]
        vt = [("X", layer, t), ("W", layer, t), ("P", layer, t + 2), ("B", layer, t - 1)]
        if layer > 0 and t == 0: vt.append(("S", layer, 0))
        if layer > 0 and 2 <= t <= 4: vt.append(("S", layer, t - 1))
        self.barrier(vt, layer * 17 + t)
        mf = []
        if t > 0:
            for mt in range(8):
                for s in ((0, 1) if mt % 2 == 0 else (1, 0)): mf.append((mt, 7, s, 1))
        off = len(mf)
        for nt in range(7):
            for mt in range(8):
                for s in ((0, 1) if mt % 2 == 0 else (1, 0)): mf.append((mt, nt, s, nt & 1))
        gaps = [[] for _ in mf]
        def put(g, f):
            if f is not None: gaps[g].append(f)
        for v in V_XA: self.setreg(v, xs * SLOT, 16384)
        for v in V_WA: self.setreg(v, wsl * SLOT, SLOT)
        if t == 0:
            for s in range(2):
                for u in range(2): self.rd_wf(wsl, 0, s, u)
            for mt in range(8):
                for s in range(2): self.rd_xf(xs, mt, s)
        else:
            k = 0
            for s in range(2):
                for u in range(2):
                    put(k // 2 * 2, (lambda s=s, u=u: self.rd_wf(wsl, 0, s, u))); k += 1
            for mt in range(8):
                for s in range(2):
                    put(2 * mt + 1, (lambda mt=mt, s=s: self.rd_xf(xs, mt, s)))
        for nt in range(7):
            k = 0
            for s in range(2):
                for u in range(2):
                    put(off + nt * 16 + 1 + 2 * k, (lambda nt=nt, s=s, u=u: self.rd_wf(wsl, nt + 1, s, u))); k += 1
        if self.opt.diag:
            idx = self.pending_stamp.pop()
            put(off + 40, lambda: self.stamp_save(idx))
        g_w = 4 if t > 0 else None
        wjobs = []
        xjob = None
        if t == 0:
            if layer > 0:
                def xb():
                    self.wait(ltags=[("XF", mt, s) for mt in range(8) for s in range(2)])
                    self.e("s_barrier")
                put(15, xb)
                wjobs.append((layer, 1, xs)); self.wsl[1] = xs
                g_w = 18
        else:
            if t + 1 <= 15:
                wjobs.append((layer, t + 1, self.wsl[t - 1])); self.wsl[t + 1] = self.wsl[t - 1]
            if t + 2 <= 15 and not (layer > 0 and t + 2 < 4):
                xjob = (layer, t + 2, self.xs[t - 1]); self.xs[t + 2] = self.xs[t - 1]
            if t == 14 and not last:
                wjobs.append((layer + 1, 0, self.xs[13])); self.next_w0 = self.xs[13]
        g = g_w
        for n, (l2, t2, sl) in enumerate(wjobs):
            if l2 == 1 and t2 == 0:
                put(g - 2, lambda: self.e(f"s_and_b32 s{S_T0}, s{S_WAVE}, 1"))
                put(g - 2, lambda: self.e(f"s_lshl_b32 s{S_T0}, s{S_T0}, 13"))
                put(g - 2, lambda: self.e(f"v_subrev_u32 v{V_WB}, s{S_T0}, v{V_WB}"))
                g += 2
            for f in self.w_setup(l2, t2): put(g - 2, f)
            for i in range(8):
                m, d = self.w_dma(l2, t2, sl, i)
                put(g - 1 + 4 * i, m); put(g + 4 * i, d)
            g += 34
        if g is None: g = 4
        if layer > 0 and 4 <= t + 3 <= 15:
            put(g - 2, lambda: self.poll_issue(layer, t + 3))
        if 4 <= t <= 11:
            nt = t - 4
            so = "0" if layer < 2 else f"s{S_4K}"
            put(g - 2, lambda nt=nt, so=so: self.vm(f"buffer_load_dwordx2 {vr(V_BR,2)}, v{V_B}, {vr(S_B,4,'s')}, {so} offen offset:{(layer&1)*2048 + (nt>>1)*128 + (nt&1)*32}", ("B", layer, t)))
        if xjob:
            l2, t2, sl = xjob
            if l2 > 0:
                for n, f in enumerate(self.poll_check(l2, t2)): put(20 + 2 * n, f)
            for f in self.x_setup(l2, t2): put(g, f)
            g += 2
            for i in range(8):
                m, d = self.x_dma(l2, t2, sl, i)
                put(g - 1 + 4 * i, m); put(g + 4 * i, d)
            g += 34
        if layer > 0:
            val = None
            if t == 0: val = 4 * (layer - 1) + 1
            if 2 <= t <= 4: val = 4 * (layer - 1) + t
            if val is not None:
                for n, f in enumerate(self.flag_store(val)): put(6 + 2 * n, f)
        if layer > 0 and t <= 2:
            sl = self.xs[t + 1]
            g0 = max(g, len(mf) - 44)
            put(g0 - 3, lambda: self.setreg(V_LINL, sl * SLOT, SLOT))
            put(g0 - 3, lambda: self.e(f"s_add_u32 s{S_T1}, s{S_QX}, {hex(E_OFF[layer] + ((t + 1) << 15))}"))
            put(g0 - 2, lambda: self.e(f"v_add_u32 v{V_XC[1]}, s{S_T1}, v{V_LIN}"))
            for i in range(8):
                tb = V_T + 4 * (i % 4)
                put(g0 + 4 * i, lambda i=i, tb=tb: self.lds(f"ds_read_b128 {vr(tb,4)}, v{V_LINL} offset:{self.imm(V_LINL, sl*SLOT + i*1024)}", ("C", i)))
                def st(i=i, tb=tb):
                    self.wait(ltags=[("C", i)])
                    so = "0" if i < 4 else f"s{S_4K}"
                    self.vm(f"buffer_store_dwordx4 {vr(tb,4)}, v{V_XC[1]}, {vr(S_WS,4,'s')}, {so} offen offset:{(i&3)*1024} sc1", ("S", layer, t + 1))
                put(g0 + 4 * i + 10, st)
        if 5 <= t <= 12:
            nt = t - 5
            bf = V_T + 16
            ops = [f"v_lshlrev_b32 v{bf}, 16, v{V_BR}", f"v_and_b32 v{bf+1}, s{S_MASK}, v{V_BR}",
                   f"v_lshlrev_b32 v{bf+2}, 16, v{V_BR+1}", f"v_and_b32 v{bf+3}, s{S_MASK}, v{V_BR+1}"]
            for n, o in enumerate(ops): put(1 + n, lambda o=o: self.e(o))
            ops = []
            for mt in range(8):
                pf, r = ACC(mt, nt)
                if pf == "v":
                    for i in range(4): ops.append(f"v_add_f32 v{r+i}, v{r+i}, v{bf+i}")
                else:
                    for i in range(4): ops.append(f"v_accvgpr_read_b32 v{bf+4+i}, a{r+i}")
                    for i in range(4): ops.append(f"v_add_f32 v{bf+4+i}, v{bf+4+i}, v{bf+i}")
                    for i in range(4): ops.append(f"v_accvgpr_write_b32 a{r+i}, v{bf+4+i}")
            if nt == 7: g1 = 28
            elif nt <= 3: g1 = off + 16 * nt + 28
            else: g1 = 8
            for n, o in enumerate(ops): put(g1 + n, lambda o=o: self.e(o))
            lastg = g1 + len(ops) - 1
            if 4 <= nt <= 6: assert lastg < off + 16 * nt - 2, (nt, lastg)
        if layer == 0:
            cap, back = self.newlabel("CAP"), self.newlabel("CB")
            def hook():
                for v in V_CA: self.setreg(v, xs * SLOT, 16384)
                self.e(f"s_cmp_eq_u32 s{S_J}, {t >> 2}")
                self.e(f"s_cbranch_scc1 {cap}")
                self.label(back)
                blk = [f"{cap}:"]
                for mt in range(8):
                    for h in range(2):
                        blk.append(f"ds_read_b64 {vr(X0(t&3,mt)+2*h,2,'a')}, v{V_CA[h]} offset:{self.imm(V_CA[h], xs*SLOT + mt*2048)}")
                blk.append(f"s_branch {back}")
                self.ool.append(blk)
            put(off + 16 * 5 + 10, hook)
        self.run_gaps(mf, gaps)

    def exit_block(self, layer):
        last = layer == 2
        self.barrier([], layer * 17 + 16)
        mf = []
        for mt in range(8):
            for s in ((0, 1) if mt % 2 == 0 else (1, 0)): mf.append((mt, 7, s, 1))
        gaps = [[] for _ in mf]
        self.run_gaps(mf, gaps)
        if self.opt.diag:
            self.e("s_waitcnt lgkmcnt(0)")
            self.stamp_save(self.pending_stamp.pop())
        if not last:
            free = [s for s in range(NSLOT) if s != self.next_w0]
            nl = layer + 1
            self.xs = {p: free[p] for p in range(4)}
            self.wsl = {0: self.next_w0}
            self.e(f"s_add_u32 s{S_T1}, s{S_QX}, {hex(E_OFF[nl])}")
            self.e(f"v_add_u32 v{V_XC[1]}, s{S_T1}, v{V_OWN}")
            if self.reg[V_OWN]:
                self.e(f"v_subrev_u32 v{V_XC[1]}, {hex(self.reg[V_OWN])}, v{V_XC[1]}")
            n = 0
            for p in range(4):
                self.setreg(V_OWN, free[p] * SLOT, 16384)
                for mt in range(8):
                    tb = V_T + 12 * (n % 2); n += 1
                    ops, o = self.epi_frag(p, mt, tb)
                    for x in ops: self.e(x)
                    self.lds(f"ds_write_b128 v{V_OWN}, {vr(o,4)} offset:{self.imm(V_OWN, free[p]*SLOT + mt*2048)}", ("O", p, mt))
                    if p == 0:
                        so = ["0", f"s{S_4K}", f"s{S_8K}", f"s{S_12K}"][mt >> 1]
                        self.vm(f"buffer_store_dwordx4 {vr(o,4)}, v{V_XC[1]}, {vr(S_WS,4,'s')}, {so} offen offset:{(mt&1)*2048} sc1", ("S", nl, 0))
            if layer == 0:
                self.e(f"s_lshr_b32 s{S_T0}, s{S_WAVE}, 1"); self.e(f"s_lshl_b32 s{S_T0}, s{S_T0}, 14")
                self.e(f"v_lshlrev_b32 v{V_XA[0]}, 4, v0"); self.e(f"v_add_u32 v{V_XA[0]}, s{S_T0}, v{V_XA[0]}")
                self.e(f"v_add_u32 v{V_XA[1]}, 1024, v{V_XA[0]}")
                for v in V_XA: self.reg[v] = 0
            if self.ool:
                sk = self.newlabel("SK")
                self.e(f"s_branch {sk}")
                self.flush_ool()
                self.label(sk)
        else:
            self.e(f"s_lshl_b32 s{S_T0}, s{S_J}, 9")
            self.e(f"v_add_u32 v{V_XC[0]}, s{S_T0}, v{V_XE}")
            self.e(f"v_add_u32 v{V_XC[1]}, s{S_T0}, v{V_XO}")
            def copy_ops(p):
                ops = []
                def rd(i):
                    self.lds(f"ds_read_b128 {vr(XF(i,0),4,'a')}, v{V_LINL} offset:{self.imm(V_LINL, p*SLOT + i*1024)}", ("C", i))
                def st(i):
                    self.wait(ltags=[("C", i)])
                    self.vm(f"buffer_store_dwordx4 {vr(XF(i,0),4,'a')}, v{V_XC[i&1]}, {vr(S_OUT,4,'s')}, s{S_TAB+2*(i>>1)} offen offset:{p*128}", ("SO", p))
                return rd, st
            n = 0
            for p in range(5):
                if p > 0:
                    self.wait(lall=True)
                    self.e("s_barrier")
                    self.setreg(V_LINL, (p - 1) * SLOT, SLOT)
                    rd, st = copy_ops(p - 1)
                if p < 4:
                    for v in V_CA: self.setreg(v, p * SLOT, 16384)
                for mt in range(8):
                    if p > 0: rd(mt)
                    if p < 4:
                        tb = V_T + 12 * (n % 2); n += 1
                        ops, o = self.epi_frag(p, mt, tb)
                        for x in ops: self.e(x)
                        for h in range(2):
                            self.lds(f"ds_write_b64 v{V_CA[h]}, {vr(o+2*h,2)} offset:{self.imm(V_CA[h], p*SLOT + mt*2048)}", ("O", p, mt))
                        if p > 0: st(mt)
                if p == 4:
                    for mt in range(8): st(mt)
            fin = self.newlabel("FIN")
            self.e(f"s_or_b32 s{S_T0}, s{S_J}, s{S_WAVE}")
            self.e(f"s_cmp_lg_u32 s{S_T0}, 0")
            self.e(f"s_cbranch_scc1 {fin}")
            self.e(f"s_add_u32 s{S_T2}, s{S_EP}, 16")
            self.e(f"v_mov_b32 v{V_FLAG}, s{S_T2}")
            self.e(f"buffer_store_dword v{V_FLAG}, off, {vr(S_WS,4,'s')}, s{S_EPOFF}")
            self.label(fin)
            if self.opt.diag:
                self.e(f"s_memtime s[{S_ST}:{S_ST+1}]")
                self.e("s_waitcnt vmcnt(0)")
                self.e(f"s_memtime s[{S_ST+2}:{S_ST+3}]")
                self.e(f"s_memrealtime s[{S_RT+2}:{S_RT+3}]")
                self.e("s_waitcnt lgkmcnt(0)")
                self.stamp_save(62)
                self.e(f"v_writelane_b32 v{V_ST[0]}, s{S_RT}, 61")
                self.e(f"v_writelane_b32 v{V_ST[1]}, s{S_RT+2}, 61")
                self.e(f"s_lshl_b32 s{S_T0}, s2, 2"); self.e(f"s_add_u32 s{S_T0}, s{S_T0}, s{S_WAVE}"); self.e(f"s_lshl_b32 s{S_T0}, s{S_T0}, 9")
                self.e(f"s_add_u32 s{S_T0}, s{S_T0}, {hex(ST_OFF)}")
                self.e("v_lshlrev_b32 v0, 2, v0")
                self.e(f"buffer_store_dword v{V_ST[0]}, v0, {vr(S_WS,4,'s')}, s{S_T0} offen")
                self.e(f"buffer_store_dword v{V_ST[1]}, v0, {vr(S_WS,4,'s')}, s{S_T0} offen offset:256")
            self.e("s_endpgm")
            self.flush_ool()

    def build(self):
        self.prologue()
        for layer in range(3):
            for t in range(16):
                self.body(layer, t)
            self.exit_block(layer)
        hdr = open("standalone__dcn_v2_cross__recsys.s.ref").read().split("\n")
        top = [l for l in hdr if l.startswith(";") and "@launch" not in l]
        txt = "\n".join(top) + f"\n; @launch grid=(256,1,1) block=(256,1,1) lds={SLOT*NSLOT}\n"
        txt += f""".amdgcn_target "amdgcn-amd-amdhsa--gfx950"
.text
.globl {NAME}
.p2align 8
.type {NAME},@function
{NAME}:
"""
        txt += "\n".join(self.out) + "\n"
        txt += f""".section .rodata,"a"
.p2align 6
.amdhsa_kernel {NAME}
  .amdhsa_next_free_vgpr 512
  .amdhsa_next_free_sgpr 96
  .amdhsa_accum_offset 256
  .amdhsa_group_segment_fixed_size 0
  .amdhsa_kernarg_size 48
  .amdhsa_user_sgpr_count 2
  .amdhsa_user_sgpr_kernarg_segment_ptr 1
  .amdhsa_system_sgpr_workgroup_id_x 1
  .amdhsa_float_denorm_mode_32 3
.end_amdhsa_kernel
"""
        return txt

if __name__ == "__main__":
    ap = argparse.ArgumentParser()
    ap.add_argument("-o", default="k1.s")
    ap.add_argument("--diag", action="store_true")
    opt = ap.parse_args()
    open(opt.o, "w").write(G(opt).build())
```

```python
import sys, re, argparse

NAME = "standalone__dcn_v2_cross__recsys_kernel"
SLOT = 32768
E_OFF = [None, 0, 32 << 20]
FL_OFF = 64 << 20
EP_OFF = FL_OFF + 65536
ST_OFF = 80 << 20

def vr(b, n=1, p="v"):
    return f"{p}{b}" if n == 1 else f"{p}[{b}:{b+n-1}]"
def ar(b, n=1): return vr(b, n, "a")
def sr(b, n=1): return vr(b, n, "s")

def XF(mt, s): return (mt * 2 + s) * 4
def WF(buf, s): return 64 + buf * 8 + s * 4
def X0(p, mt): return 80 + (p * 8 + mt) * 4
def SEL(h): return 208 + 4 * h
ACC_A0 = 216
ACC_V0 = 40
_acc = {}
def _init_acc():
    va, aa = ACC_V0, ACC_A0
    for nt in range(8):
        for mt in range(8):
            if nt == 7 or (nt == 6 and mt < 2):
                _acc[(mt, nt)] = ("a", aa); aa += 4
            else:
                _acc[(mt, nt)] = ("v", va); va += 4
    assert va == 256 and aa == 256
_init_acc()
def ACC(mt, nt): return _acc[(mt, nt)]

V_L16 = 0; V_XA = [1, 2]; V_WA = [3, 4]; V_WC = [5, 6]; V_XC = [7, 8]; V_CPG = 8; V_CPL = 9
V_POLL = 10; V_FLAG = 11; V_B = 12; V_ST = [13, 14]; V_DUM = 15; V_T = 16
S_W = 8; S_X0 = 12; S_WS = 16; S_OUT = 20; S_B = 24
S_WT = 28; S_XT = 32
S_X = 36
S_WR = 39
S_Q = 41
S_WCUR = 44; S_WL = 45; S_XB = 46; S_FB = 47; S_FOWN = 48; S_EP = 49; S_NEED = 50; S_FV = 51; S_FMAX = 52
S_PA = 53; S_J = 54; S_WAVE = 55; S_RB = 56; S_LOOP = 57; S_LAYER = 58; S_ADJ = 59; S_OADJ = 60; S_WC64 = 61
S_4K = 62; S_8K = 63; S_12K = 64; S_MASK = 65; S_EPOFF = 66; S_CNT = 67; S_CAPJ = 68; S_BOFF = 69
S_TA = 70; S_TB = 71; S_TC = 72; S_TD = 73; S_TE = 74; S_TF = 75; S_O2 = 76; S_O3 = 77; S_WR14 = 78; S_DX = 79; S_DW = 4; S_TR = 5; S_E0 = 6; S_E1 = 7
S_PC = 80; S_ST = 82; S_RT = 86; S_SI = 90; S_D0 = 92

RANK = {"S": 0, "G": 1, "D": 2, "V": 3}

class Sched:
    def __init__(self, n):
        self.n = n
        self.g = [[] for _ in range(n)]
        self.closedS = set()
        self.vcap = [2] * n
    def fits(self, g, kind):
        it = self.g[g]
        kinds = [k for k, _ in it]
        if kind == "G": return len(it) == 0
        if "G" in kinds: return False
        nvec = sum(k in "DV" for k in kinds)
        if kind == "S":
            if g in self.closedS: return False
            return len(it) < 3 and (nvec < 2 or kinds.count("S") == 0)
        cap = self.vcap[g]
        if kind == "D" and kinds.count("D") >= 2: return False
        return nvec < cap and len(it) < cap + 1
    def put(self, g, kind, fn):
        self.g[g].append((kind, fn))
    def place(self, kind, fn, lo, hi=None):
        hi = self.n - 1 if hi is None else hi
        for g in range(lo, hi + 1):
            if self.fits(g, kind):
                self.put(g, kind, fn); return g
        raise RuntimeError(f"cannot place {kind} in [{lo},{hi}]")
    def chain(self, items, lo, hi=None, step=0):
        out = []; g = lo; pk = None
        for kind, fn in items:
            if pk is not None and (RANK[kind] < RANK[pk] or kind == "G" or pk == "G"): g += 1
            g = self.place(kind, fn, g, hi)
            out.append(g); pk = kind
            if step: g += step; pk = None
        return out
    def branch(self, cmpfn, brfn, lo):
        for g in range(lo, self.n - 1):
            if self.fits(g, "S") and self.fits(g + 1, "G"):
                self.put(g, "S", cmpfn); self.closedS.add(g); self.put(g + 1, "G", brfn); return g + 1
        raise RuntimeError("branch")
    def ordered(self, g):
        return [fn for k, fn in sorted(self.g[g], key=lambda x: RANK[x[0]])]

class G:
    def __init__(self, opt):
        self.opt = opt
        self.out = []
        self.vq = []; self.lq = []
        self.ool = {}
        self.slot = {}
        self.lds_own = {}
        self.xa = None; self.wa = None
        self.warn = 0
    def e(self, s): self.out.append(s)
    def E(self, s): return lambda: self.e(s)
    def label(self, n): self.out.append(n + ":")
    def vm(self, s, tag=None):
        self.e(s); self.vq.append(tag); assert len(self.vq) <= 62
    def lds(self, s, tag=None):
        self.e(s); self.lq.append(tag)
    def _need(self, q, tags, mx, force=None):
        idx = -1
        for i, t in enumerate(q):
            if t in tags: idx = i
        if idx < 0 and force is None: return None
        n = len(q) - 1 - idx
        if force is not None:
            assert n >= force or idx < 0, (n, force, q)
            n = force
        n = min(n, mx)
        if len(q) > n: del q[:len(q) - n]
        return n
    def wait(self, vtags=(), ltags=(), lall=False, vforce=None, always=False):
        parts = []
        n = self._need(self.vq, set(vtags), 62, vforce)
        if n is not None: parts.append(f"vmcnt({n})")
        if lall:
            parts.append("lgkmcnt(0)"); self.lq = []
        else:
            n = self._need(self.lq, set(ltags), 14)
            if n is not None: parts.append(f"lgkmcnt({n})")
        if parts: self.e("s_waitcnt " + " ".join(parts))
    def smov(self, d, s):
        def f():
            self.e(f"s_mov_b32 s{d}, s{s}"); self.slot[d] = self.slot[s]
        return f

    def mfma(self, m):
        if m[0] == "U":
            _, p, mt, h, tb = m
            self.e(f"v_mfma_f32_16x16x32_bf16 {vr(tb+4*h,4)}, {ar(SEL(h),4)}, {ar(X0(p,mt),4)}, 0")
            return
        mt, nt, s, cinit = m
        buf = nt & 1
        tags = {("XF", mt, s), ("WF", buf, s, 0), ("WF", buf, s, 1)}
        if tags & set(self.lq):
            self.warn += 1
            self.wait(ltags=tags)
        p, r = ACC(mt, nt)
        c = vr(r, 4, p)
        if cinit and p == "v" and mt != 7:
            c = vr(ACC(7, nt)[1], 4)
        self.e(f"v_mfma_f32_16x16x32_bf16 {vr(r,4,p)}, {ar(WF(buf,s),4)}, {ar(XF(mt,s),4)}, {c}")
    def rd_xf(self, mt, s, want):
        def f():
            assert self.lds_own[self.xa] == want, (self.lds_own[self.xa], want)
            self.lds(f"ds_read_b128 {ar(XF(mt,s),4)}, v{V_XA[s]} offset:{mt*2048}", ("XF", mt, s))
        return f
    def rd_wf(self, nt, s, u, want):
        p, h = nt >> 1, nt & 1
        off = (p >> 1) * 16384 + (p & 1) * 512 + s * 8192 + u * 4096
        def f():
            assert self.lds_own[self.wa[h]] == want, (self.lds_own[self.wa[h]], want)
            self.lds(f"ds_read_b64_tr_b16 {ar(WF(h,s)+2*u,2)}, v{V_WA[h]} offset:{off}", ("WF", h, s, u))
        return f
    def dma_items(self, what, sdst, form):
        items = []
        for i in range(8):
            if i == 0:
                def m0():
                    self.lds_own[self.slot[sdst]] = what
                    self.e(f"s_mov_b32 m0, s{sdst}")
                m0.su = True
                items.append(("S", m0))
            if i == 4:
                def m1():
                    assert self.lds_own[self.slot[sdst]] == what
                    self.e(f"s_add_u32 m0, s{sdst}, 0x1000")
                m1.su = True
                items.append(("S", m1))
            off = f" offset:{(i&3)*1024}" if i & 3 else ""
            if form == "W":
                so = "0" if i < 2 else f"s{S_WT+(i>>1)}"
                s = f"buffer_load_dwordx4 v{V_WC[i&1]}, {sr(S_W,4)}, {so} offen{off} lds"
            elif form == "X0":
                so = "0" if i < 2 else f"s{S_XT+(i>>1)}"
                s = f"buffer_load_dwordx4 v{V_XC[i&1]}, {sr(S_X0,4)}, {so} offen{off} nt lds"
            else:
                so = "0" if i < 4 else f"s{S_4K}"
                s = f"buffer_load_dwordx4 v{V_XC[0]}, {sr(S_WS,4)}, {so} offen{off} sc1 lds"
            items.append(("G", (lambda s=s: self.vm(s, what))))
        return items
    def place_dma(self, sc, items, lo, pace):
        g = lo; prev = -1; pend = None
        for kind, fn in items:
            if kind == "S": pend = fn; continue
            g0 = max(g, prev + 1)
            if pend is not None:
                gs = sc.place("S", pend, max(prev + 1, g0 - 2)); g0 = max(g0, gs + 1); pend = None
            prev = sc.place("G", fn, g0)
            g += pace
        return prev
    def w_setup(self, tidreg, base):
        return [("S", self.E(f"s_lshl_b32 s{S_TA}, s{tidreg}, 17")),
                ("S", self.E(f"s_add_u32 s{S_TA}, s{S_TA}, s{base}")),
                ("S", self.E(f"s_sub_u32 s{S_TB}, s{S_TA}, s{S_WCUR}")),
                ("S", self.E(f"s_mov_b32 s{S_WCUR}, s{S_TA}")),
                ("V", self.E(f"v_add_u32 v{V_WC[0]}, s{S_TB}, v{V_WC[0]}")),
                ("V", self.E(f"v_add_u32 v{V_WC[1]}, s{S_TB}, v{V_WC[1]}"))]
    def flag_items(self, tag):
        return [("V", self.E(f"v_mov_b32 v{V_FLAG}, s{S_FV}")),
                ("G", lambda: self.vm(f"buffer_store_dword v{V_FLAG}, off, {sr(S_WS,4)}, s{S_FOWN} sc1", tag)),
                ("S", self.E(f"s_add_u32 s{S_FV}, s{S_FV}, 1")),
                ("S", self.E(f"s_min_u32 s{S_TF}, s{S_FV}, s{S_FV}"))][:3]
    def stamp(self, which):
        if self.opt.diagrt:
            if which == 1:
                self.e(f"s_memtime s[{S_ST}:{S_ST+1}]"); self.e(f"s_memrealtime s[{S_ST+2}:{S_ST+3}]")
            return
        if self.opt.diag: self.e(f"s_memtime s[{S_ST+2*which}:{S_ST+2*which+1}]")
    def stamp_items(self):
        return [("V", self.E(f"v_cmp_eq_u32 vcc, s{S_SI}, v{V_L16}")),
                ("V", self.E(f"v_mov_b32 v{V_DUM}, s{S_ST}")),
                ("S", self.E(f"s_add_u32 s{S_SI}, s{S_SI}, 16")),
                ("V", self.E(f"v_cndmask_b32 v{V_ST[0]}, v{V_ST[0]}, v{V_DUM}, vcc")),
                ("V", self.E(f"v_mov_b32 v{V_DUM}, s{S_ST+2}")),
                ("V", self.E(f"v_cndmask_b32 v{V_ST[1]}, v{V_ST[1]}, v{V_DUM}, vcc"))]

    def epi_valu(self, p, mt, tb, at):
        ops = []
        for h in range(2):
            pf, r = ACC(mt, 2 * p + h)
            if pf == "a":
                for i in range(4): ops.append(f"v_accvgpr_read_b32 v{at+i}, a{r+i}")
                r = at
            for i in range(4): ops.append(f"v_mul_f32 v{tb+4*h+i}, v{tb+4*h+i}, v{r+i}")
        for d in range(4): ops.append(f"v_cvt_pk_bf16_f32 v{tb+d}, v{tb+2*d}, v{tb+2*d+1}")
        return ops

    def prologue(self):
        e = self.e; o = self.opt
        e("s_cmp_lt_u32 s2, 256"); e("s_cbranch_scc1 L_go"); e("s_endpgm")
        self.label("L_go")
        e("s_load_dwordx4 s[8:11], s[0:1], 0")
        e("s_load_dwordx4 s[20:23], s[0:1], 16")
        e("s_load_dwordx2 s[16:17], s[0:1], 40")
        if o.diag:
            e(f"s_memrealtime s[{S_RT}:{S_RT+1}]"); e(f"s_memtime s[{S_D0}:{S_D0+1}]")
        e(f"s_getpc_b64 s[{S_PC}:{S_PC+1}]")
        self.label("L_pc")
        e("s_lshr_b32 s3, s2, 3")
        e("v_lshrrev_b32 v16, 5, v0")
        e("v_lshl_add_u32 v16, s3, 3, v16")
        e("v_lshlrev_b32 v16, 7, v16")
        e(f"v_min_u32 v{V_DUM}, L_codeend-L_pc-4, v16")
        self.vm(f"global_load_dword v{V_POLL}, v{V_DUM}, s[{S_PC}:{S_PC+1}]", "PF")
        T = 40
        lane, m, q, r4, c4, q1, tx, tw, t0, t1, t2 = [f"v{T+i}" for i in range(11)]
        e(f"v_lshrrev_b32 {t0}, 6, v0")
        e(f"v_and_b32 {lane}, 63, v0")
        e(f"v_readfirstlane_b32 s{S_WAVE}, {t0}")
        e(f"s_and_b32 s{S_J}, s3, 3")
        e(f"s_and_b32 s{S_RB}, s2, 7"); e(f"s_lshl_b32 s{S_RB}, s{S_RB}, 3")
        e(f"s_lshr_b32 s{S_TC}, s2, 5")
        e(f"s_add_u32 s{S_RB}, s{S_RB}, s{S_TC}")
        e(f"v_lshlrev_b32 v{V_L16}, 4, {lane}")
        e(f"v_and_b32 {m}, 15, {lane}"); e(f"v_lshrrev_b32 {q}, 4, {lane}")
        e(f"v_bfe_u32 {r4}, {lane}, 2, 2"); e(f"v_and_b32 {c4}, 3, {lane}")
        e(f"s_lshr_b32 s{S_TA}, s{S_WAVE}, 1"); e(f"s_and_b32 s{S_TB}, s{S_WAVE}, 1")
        e(f"s_lshl_b32 s{S_TD}, s{S_RB}, 19")
        e(f"s_lshl_b32 s{S_TE}, s{S_J}, 17"); e(f"s_add_u32 s{S_WCUR}, s{S_TE}, s{S_TD}")
        e(f"s_lshl_b32 s{S_TF}, s{S_WAVE}, 15"); e(f"s_add_u32 s{S_TE}, s{S_WCUR}, s{S_TF}")
        e(f"v_and_b32 {q1}, 1, {q}"); e(f"v_lshlrev_b32 {tx}, 7, {q1}"); e(f"v_lshl_add_u32 {tx}, {m}, 11, {tx}")
        e(f"s_lshl_b32 s{S_CNT}, s{S_TC}, 15"); e(f"s_lshl_b32 s{S_TF}, s{S_WAVE}, 13"); e(f"s_add_u32 s{S_CNT}, s{S_CNT}, s{S_TF}")
        e(f"s_lshl_b32 s{S_BOFF}, s{S_J}, 9"); e(f"s_add_u32 s{S_CNT}, s{S_CNT}, s{S_BOFF}")
        e(f"v_lshlrev_b32 {tw}, 7, {c4}"); e(f"v_lshl_add_u32 {tw}, {r4}, 11, {tw}")
        e(f"s_lshl_b32 s{S_WC64}, s{S_TB}, 6"); e(f"s_add_u32 s{S_PA}, s{S_BOFF}, s{S_WC64}")
        e(f"v_lshlrev_b32 {t0}, 3, {q}"); e(f"v_add_u32 v{V_B}, s{S_PA}, {t0}")
        e(f"s_mov_b32 s{S_X0+2}, {16384*1024*2}"); e(f"s_mov_b32 s{S_X0+3}, 0x20000")
        e(f"s_mov_b32 s{S_B+2}, {3*1024*2}"); e(f"s_mov_b32 s{S_B+3}, 0x20000")
        e(f"s_mov_b32 s{S_WS+2}, 0x10000000"); e(f"s_mov_b32 s{S_WS+3}, 0x20000")
        e(f"s_lshl_b32 s{S_FB}, s{S_RB}, 9"); e(f"s_add_u32 s{S_FB}, s{S_FB}, {hex(FL_OFF)}")
        e(f"s_lshl_b32 s{S_EPOFF}, s{S_RB}, 7"); e(f"s_add_u32 s{S_EPOFF}, s{S_EPOFF}, {hex(EP_OFF)}")
        e("s_waitcnt lgkmcnt(0)")
        if o.diag: e(f"s_memtime s[{S_ST}:{S_ST+1}]")
        e(f"s_mov_b32 s{S_X0}, s8"); e(f"s_mov_b32 s{S_X0+1}, s9")
        e(f"s_mov_b32 s{S_W}, s10"); e(f"s_mov_b32 s{S_W+1}, s11"); e(f"s_mov_b32 s{S_W+2}, {3*1024*1024*2}"); e(f"s_mov_b32 s{S_W+3}, 0x20000")
        if o.touch:
            self.vm(f"buffer_load_dword v{V_POLL}, {tx}, {sr(S_X0,4)}, s{S_TE} offen nt", "PF")
            self.vm(f"buffer_load_dword v{V_POLL}, {tw}, {sr(S_W,4)}, s{S_CNT} offen", "PF")
        e(f"s_mov_b32 s{S_B}, s20"); e(f"s_mov_b32 s{S_B+1}, s21")
        e(f"s_load_dword s{S_EP}, s[{S_WS}:{S_WS+1}], s{S_EPOFF}")
        e(f"s_mov_b32 s{S_OUT}, s22"); e(f"s_mov_b32 s{S_OUT+1}, s23"); e(f"s_mov_b32 s{S_OUT+2}, {16384*1024*2}"); e(f"s_mov_b32 s{S_OUT+3}, 0x20000")
        self.vm(f"buffer_load_dword v{V_POLL}, {tw}, {sr(S_B,4)}, s{S_BOFF} offen", "PF")
        def run(items):
            for k, f in items:
                f()
                if k == "S": e("s_nop 0")
        for r, sl in ((S_X, 0), (S_X + 1, 2), (S_X + 2, 4), (S_WR, 1), (S_WR + 1, 3)):
            e(f"s_add_u32 s{r}, s{S_TF}, {hex(sl*SLOT)}"); self.slot[r] = sl
        e(f"v_lshrrev_b32 {t1}, 3, {lane}"); e(f"v_and_b32 {t2}, 7, {lane}")
        e(f"v_lshrrev_b32 {t0}, 1, {t1}"); e(f"v_xor_b32 {t0}, {t2}, {t0}"); e(f"v_lshlrev_b32 {t0}, 4, {t0}"); e(f"v_lshl_add_u32 {t0}, {t1}, 11, {t0}")
        e(f"s_lshl_b32 s{S_PA}, s{S_WAVE}, 17"); e(f"s_add_u32 s{S_PA}, s{S_PA}, s{S_TD}")
        e(f"v_add_u32 v{V_XC[0]}, s{S_PA}, {t0}")
        e(f"v_xor_b32 v{V_XC[1]}, 64, v{V_XC[0]}"); e(f"v_add_u32 v{V_XC[1]}, {16384-1024}, v{V_XC[1]}")
        for k in range(1, 4):
            e(f"s_mov_b32 s{S_WT+k}, {(16*(k&1) + 4*(k>>1))*2048 - (k&1)*2048}")
            e(f"s_mov_b32 s{S_XT+k}, {k*32768 - (k&1)*2048}")
        xit = self.dma_items(("X", 0, 0), S_X, "X0")
        run(xit[:o.early])
        e(f"v_lshlrev_b32 {t0}, 4, {c4}"); e(f"v_lshl_add_u32 {t0}, {q}, 6, {t0}"); e(f"v_lshl_add_u32 {t0}, {r4}, 11, {t0}")
        e(f"s_lshl_b32 s{S_PA}, s{S_TA}, 8"); e(f"s_add_u32 s{S_PA}, s{S_PA}, s{S_BOFF}")
        e(f"s_lshl_b32 s{S_FV}, s{S_TB}, 16"); e(f"s_add_u32 s{S_PA}, s{S_PA}, s{S_FV}")
        e(f"v_add_u32 v{V_WC[0]}, s{S_PA}, {t0}")
        e(f"v_xor_b32 v{V_WC[1]}, 32, v{V_WC[0]}"); e(f"v_add_u32 v{V_WC[1]}, {16384-1024}, v{V_WC[1]}")
        e(f"v_lshrrev_b32 {t0}, 1, {m}"); e(f"v_xor_b32 {t0}, {q}, {t0}"); e(f"v_lshlrev_b32 {t0}, 4, {t0}"); e(f"v_lshl_add_u32 {t0}, {m}, 7, {t0}")
        e(f"s_lshl_b32 s{S_WR14}, s{S_TA}, 14")
        e(f"v_add_u32 v{V_XA[0]}, s{S_WR14}, {t0}"); e(f"v_xor_b32 v{V_XA[1]}, 64, v{V_XA[0]}")
        self.xa = 0
        e(f"v_lshlrev_b32 {t0}, 10, {q}"); e(f"v_lshl_add_u32 {t0}, {r4}, 6, {t0}"); e(f"v_lshl_add_u32 {t0}, {q1}, 5, {t0}"); e(f"v_lshl_add_u32 {t0}, {c4}, 3, {t0}")
        e(f"s_lshl_b32 s{S_PA}, s{S_TB}, 8"); e(f"s_add_u32 s{S_PA}, s{S_PA}, {SLOT}")
        e(f"v_add_u32 v{V_WA[0]}, s{S_PA}, {t0}"); e(f"v_xor_b32 v{V_WA[1]}, 32, v{V_WA[0]}")
        self.wa = [1, 1]
        e(f"v_and_b32 {t1}, 1, {m}"); e(f"v_lshlrev_b32 {t1}, 4, {t1}"); e(f"v_mov_b32 {t2}, 0x3f80"); e(f"v_lshlrev_b32 {t1}, {t1}, {t2}")
        e(f"v_lshlrev_b32 {t2}, 3, {q}"); e(f"v_sub_u32 {t2}, {m}, {t2}"); e(f"v_ashrrev_i32 {t2}, 1, {t2}")
        misc = [f"s_mov_b32 s{S_4K}, 4096", f"s_mov_b32 s{S_8K}, 8192", f"s_mov_b32 s{S_12K}, 12288", f"s_mov_b32 s{S_MASK}, 0xffff0000",
                f"s_mov_b32 s{S_WL}, 0", f"s_mov_b32 s{S_Q}, 1", f"s_add_u32 s{S_XB}, s{S_TD}, s{S_TF}",
                f"s_lshl_b32 s{S_FOWN}, s{S_J}, 7", f"s_add_u32 s{S_FOWN}, s{S_FOWN}, s{S_FB}", f"s_mul_i32 s{S_OADJ}, s{S_TB}, 7168",
                f"s_mov_b32 s{S_ADJ}, 8192", f"s_mov_b32 s{S_LAYER}, 0", f"s_mov_b32 s{S_CAPJ}, s{S_J}", f"s_mov_b32 s{S_LOOP}, 1", "s_nop 0", "s_nop 0"]
        for h in range(2):
            for d in range(4):
                e(f"v_cmp_eq_u32 vcc, {d - 8*h}, {t2}"); e(misc.pop(0)); e(misc.pop(0))
                e(f"v_cndmask_b32 {t0}, 0, {t1}, vcc"); e(f"v_accvgpr_write_b32 a{SEL(h)+d}, {t0}")
        for mt in range(8):
            for i in range(4): e(f"v_accvgpr_write_b32 a{ACC(mt,7)[1]+i}, 1.0")
        def stampw(idx, which, **kw):
            if not o.diag2: return
            self.wait(**kw); e(f"s_memtime s[{S_D0+2}:{S_D0+3}]"); e("s_waitcnt lgkmcnt(0)"); e(f"v_writelane_b32 v{V_ST[which]}, s{S_D0+2}, {idx}")
        if o.diag:
            e(f"v_mov_b32 v{V_ST[0]}, 0"); e(f"v_mov_b32 v{V_ST[1]}, 0")
        stampw(59, 0)
        stampw(59, 1, vtags=["PF"])
        run(xit[o.early:])
        for nt in range(8):
            self.vm(f"buffer_load_dwordx2 {vr(V_T+2*nt if nt < 7 else V_T+22,2)}, v{V_B}, {sr(S_B,4)}, 0 offen offset:{(nt>>1)*128 + (nt&1)*32}", ("B", 0))
        run(self.dma_items(("W", 0, 0), S_WR, "W"))
        if o.warm & 2:
            e(f"v_lshlrev_b32 {t0}, 7, {c4}")
            self.vm(f"buffer_load_dword v{V_POLL}, {t0}, {sr(S_WS,4)}, s{S_FB} offen sc1", "PW")
        if o.warm & 1:
            e(f"v_lshlrev_b32 {t0}, 25, {q1}")
            self.vm(f"buffer_load_dword v{V_POLL}, {t0}, {sr(S_WS,4)}, s{S_WCUR} offen nt", "PW")
        if o.warm & 8:
            e(f"s_lshl_b32 s{S_PA}, s2, 14"); e(f"s_lshl_b32 s{S_FV}, s{S_WAVE}, 12"); e(f"s_add_u32 s{S_PA}, s{S_PA}, s{S_FV}")
            e(f"s_add_u32 s{S_PA}, s{S_PA}, 0x200000"); e(f"v_lshlrev_b32 {t0}, 6, {lane}")
            self.vm(f"buffer_load_dword v{V_POLL}, {t0}, {sr(S_W,4)}, s{S_PA} offen", "PW")
        e(f"s_mov_b32 s{S_WCUR}, 0"); e(f"s_mov_b32 s{S_BOFF}, 2048")
        if o.diag: e(f"s_memtime s[{S_ST+2}:{S_ST+3}]")
        self.wait(vtags=[("B", 0)])
        for x in self.bias0_ops(0): e(x)
        if o.diag:
            e("s_waitcnt lgkmcnt(0)")
            e(f"v_writelane_b32 v{V_ST[0]}, s{S_D0}, 63")
            e(f"v_writelane_b32 v{V_ST[0]}, s{S_ST}, 60"); e(f"v_writelane_b32 v{V_ST[1]}, s{S_ST+2}, 60")
            e(f"s_mov_b32 s{S_SI}, 0")

    def bias0_ops(self, nt):
        r = V_T + 2 * nt
        d = ACC(7, nt)[1] if nt < 7 else 32
        return [f"v_lshlrev_b32 v{d}, 16, v{r}", f"v_and_b32 v{d+1}, s{S_MASK}, v{r}",
                f"v_lshlrev_b32 v{d+2}, 16, v{r+1}", f"v_and_b32 v{d+3}, s{S_MASK}, v{r+1}"] + \
               [f"v_add_f32 v{d+i}, 1.0, v{d+i}" for i in range(4)]

    def body(self, kind, layer, t):
        o = self.opt
        X = ("X", layer, t); W = ("W", layer, t)
        first = kind == "E0"
        vt = [X, W, ("P", layer, t + 2)]
        if first: vt.append(("B", 0))
        if kind == "S1": vt.append(("B", layer, 1))
        if kind == "S2": vt += [("B", layer, 0)]
        self.stamp(0)
        self.wait(vtags=vt, lall=True, vforce=(8 if kind in ("G0", "G1", "T14", "F14") else None))
        self.e("s_barrier")
        self.stamp(1)
        def blk(nt, cinit=False):
            r = []
            for mt in range(8):
                ss = (0, 1) if mt % 2 == 0 else (1, 0)
                r += [(mt, nt, ss[0], cinit), (mt, nt, ss[1], False)]
            return r
        base = ([] if first else blk(7)) + sum((blk(nt, first) for nt in range(7)), [])
        off = 0 if first else 16
        mf = base
        P = lambda b: b
        n = len(mf)
        sc = Sched(n)
        sc.put(n - 1, "G", lambda: None)
        if first:
            for s in range(2):
                for u in range(2): self.rd_wf(0, s, u, W)()
            for mt in range(8):
                for s in range(2): self.rd_xf(mt, s, X)()
            self.wait(ltags=[("XF", 1, 0), ("XF", 1, 1)])
        else:
            for i in range(16):
                mt, _, s, _ = base[i]
                sc.put(P(i), "D", self.rd_xf(mt, s, X))
            k = 0
            for s in range(2):
                for u in range(2):
                    sc.put(P(2 * k), "D", self.rd_wf(0, s, u, W)); k += 1
            sc.put(P(16) - 1, "S", lambda: self.wait(ltags=[("XF", 1, 0), ("XF", 1, 1)] + [("WF", 0, s, u) for s in range(2) for u in range(2)]))
        for mt in (2, 4, 6):
            sc.put(P(off + 2 * mt) - 1, "S", lambda mt=mt: self.wait(ltags=[("XF", mt + 1, 0), ("XF", mt + 1, 1)]))
        self.blkwait = []
        for nt in range(7):
            if nt < 6:
                g = P(off + 16 * (nt + 1)) - 1
                sc.put(g, "S", lambda nt=nt: self.wait(ltags=[("WF", (nt + 1) & 1, s, u) for s in range(2) for u in range(2)] + [("C",)]))
                self.blkwait.append(g)
        for nt in range(7):
            k = 0
            for s in range(2):
                for u in range(2):
                    sc.place("D", self.rd_wf(nt + 1, s, u, W), P(off + 16 * nt + 2 * k)); k += 1
        gWA = P(off + 16 * 6 + 8)
        pace = o.pace
        gw = P(off + 1)
        lastG = gw
        if kind == "H0":
            gb = P(off + 14)
            def xb():
                assert not any(x[0] == "XF" for x in self.lq if x)
                self.e("s_barrier")
            gb = sc.place("S", xb, gb)
            gw = gb + 1
        if first: pace = 4
        if kind not in ("T15", "F15"):
            c = sc.chain(self.w_setup(S_Q, S_WL), max(0, gw - 14))
            lastG = self.place_dma(sc, self.dma_items(("W", layer, t + 1), S_WR + 1, "W"), max(gw, c[-1] + 1), pace if kind != "H0" else o.paceh)
        gx = lastG + pace
        if kind in ("S1", "S2", "S3", "G1"):
            if kind != "S1":
                sl = f"SLOW_{kind}"; bk = f"BACK_{kind}"
                def f0():
                    assert ("P", layer, t + 2) not in self.vq
                    self.e(f"v_readfirstlane_b32 s{S_TC}, v{V_POLL}")
                c = sc.chain([("S", self.E(f"s_and_b32 s{S_TD}, s{S_Q+1}, 3")), ("S", self.E(f"s_add_u32 s{S_TD}, s{S_TD}, s{S_NEED}")),
                              ("V", f0), ("S", self.E(f"s_sub_u32 s{S_TC}, s{S_TC}, s{S_TD}"))], P(off + 8))
                def br():
                    self.e(f"s_cbranch_scc1 {sl}"); self.label(bk)
                gbr = sc.branch(self.E(f"s_cmp_gt_u32 s{S_TC}, 7"), br, c[-1])
                assert gbr < lastG
                self.ool[sl] = [f"{sl}:", f"s_mov_b32 s{S_CNT}, 0x100000", f"LP_{kind}:",
                                f"buffer_load_dword v{V_POLL}, off, {sr(S_WS,4)}, s{S_PA} sc1", "s_waitcnt vmcnt(0)",
                                f"v_readfirstlane_b32 s{S_TC}, v{V_POLL}", f"s_sub_u32 s{S_CNT}, s{S_CNT}, 1", f"s_cbranch_scc1 {bk}",
                                f"s_sub_u32 s{S_TC}, s{S_TC}, s{S_TD}", f"s_cmp_gt_u32 s{S_TC}, 7", f"s_cbranch_scc0 {bk}",
                                "s_sleep 1", f"s_branch LP_{kind}"]
            c = sc.chain([("S", self.E(f"s_lshr_b32 s{S_PA}, s{S_Q+2}, 2")), ("S", self.E(f"s_lshl_b32 s{S_PA}, s{S_PA}, 7")),
                          ("S", self.E(f"s_add_u32 s{S_PA}, s{S_PA}, s{S_FB}"))], lastG - 1)
            gp = sc.place("G", lambda: self.vm(f"buffer_load_dword v{V_POLL}, off, {sr(S_WS,4)}, s{S_PA} sc1", ("P", layer, t + 3)), max(c[-1], lastG) + 2)
            gx = max(gx, gp + 2)
            lastG = gp
        if first:
            c = sc.chain([("V", self.E(f"v_add_u32 v{V_XC[i]}, 128, v{V_XC[i]}")) for i in range(2)], 4)
            lastG = self.place_dma(sc, self.dma_items(("X", 0, 1), S_X + 1, "X0"), gx, pace)
            c = sc.chain([("V", self.E(f"v_add_u32 v{V_XC[i]}, 128, v{V_XC[i]}")) for i in range(2)], lastG + 1)
            lastG = self.place_dma(sc, self.dma_items(("X", 0, 2), S_X + 2, "X0"), max(lastG + pace, c[-1] + 1), pace)
        if kind == "G0":
            c = sc.chain([("V", self.E(f"v_add_u32 v{V_XC[i]}, 128, v{V_XC[i]}")) for i in range(2)], P(off + 20))
            lastG = self.place_dma(sc, self.dma_items(("X", layer, t + 2), S_X + 2, "X0"), gx, pace)
        if kind in ("S2", "S3", "G1"):
            c = sc.chain([("S", self.E(f"s_lshl_b32 s{S_TE}, s{S_Q+1}, 15")), ("S", self.E(f"s_add_u32 s{S_TE}, s{S_TE}, s{S_XB}")),
                          ("V", self.E(f"v_add_u32 v{V_XC[0]}, s{S_TE}, v{V_L16}"))], P(off + 24))
            assert c[-1] < gx
            lastG = self.place_dma(sc, self.dma_items(("X", layer, t + 2), S_X + 2, "XE"), gx, pace)
        if kind == "T14":
            it = [("S", self.E(f"s_mov_b32 s{S_WT+k}, {k*16384 - (k&1)*2048}")) for k in range(1, 4)]
            it += [("S", self.E(f"s_add_u32 s{S_WL}, s{S_WL}, 0x200000")), ("S", self.E(f"s_lshl_b32 s{S_Q}, s{S_J}, 2")),
                   ("V", self.E(f"v_subrev_u32 v{V_WC[1]}, s{S_ADJ}, v{V_WC[1]}")), ("S", self.E(f"s_mov_b32 s{S_ADJ}, 0"))]
            it += self.w_setup(S_Q, S_WL)
            c = sc.chain(it, lastG + 1)
            lastG = self.place_dma(sc, self.dma_items(("W", layer + 1, 0), S_X + 2, "W"), max(gx, c[-1] + 1), pace - 1)
        if kind == "T15":
            sc.chain([("S", self.E(f"s_lshl_b32 s{S_TD}, s{S_LAYER}, 25")), ("S", self.E(f"s_add_u32 s{S_XB}, s{S_XB}, s{S_TD}")),
                      ("S", self.E(f"s_lshl_b32 s{S_TD}, s{S_LAYER}, 2")), ("S", self.E(f"s_add_u32 s{S_NEED}, s{S_NEED}, s{S_TD}")),
                      ("S", self.E(f"s_mov_b32 s{S_FV}, s{S_NEED}")), ("S", self.E(f"s_add_u32 s{S_LAYER}, s{S_LAYER}, 1")),
                      ("S", self.E(f"s_lshl_b32 s{S_TD}, s{S_J}, 17")), ("S", self.E(f"s_add_u32 s{S_TD}, s{S_TD}, s{S_XB}")),
                      ("S", self.E(f"s_sub_u32 s{S_TD}, s{S_TD}, s{S_OADJ}")), ("V", self.E(f"v_add_u32 v{V_CPG}, s{S_TD}, v{V_L16}"))], 2, 30)
        if kind == "F14" and o.warm & 4:
            sc.chain([("S", self.E(f"s_lshl_b32 s{S_TE}, s{S_RB}, 19")),
                      ("G", lambda: self.vm(f"buffer_load_dword v{V_POLL}, off, {sr(S_OUT,4)}, s{S_TE} nt", "PF"))], lastG + 4)
        if first:
            sc.chain([("S", self.E(f"s_add_u32 s{S_NEED}, s{S_EP}, 1")), ("S", self.E(f"s_mov_b32 s{S_FV}, s{S_EP}"))] + self.flag_items("F"), 66)
        if kind == "H0":
            def fb():
                self.wait(vtags=[("S", layer, 0)]); self.e("s_barrier")
            g = sc.place("G", fb, P(off + o.flag0))
            sc.chain(self.flag_items("F"), g + 1)
        if kind == "S3":
            assert ("S", layer, 1) not in self.vq
            sc.chain(self.flag_items("F"), P(off + 3))
        if kind == "G1": assert ("S", layer, min(t - 2, 3)) not in self.vq
        if kind == "G1":
            c = sc.chain(self.flag_items("F") + [("S", self.E(f"s_sub_u32 s{S_TF}, s{S_FV}, s{S_NEED}")), ("S", self.E(f"s_min_u32 s{S_TF}, s{S_TF}, 3")),
                                                 ("S", self.E(f"s_add_u32 s{S_FV}, s{S_TF}, s{S_NEED}"))], P(off + 3))
        CT = V_T + 12
        if kind in ("S1", "S2", "S3"):
            jobs = [mt for mt in range(8) if not self.is_direct(t, mt)]
            assert len(jobs) <= 6
            bw = list(self.blkwait)
            def chk():
                assert self.lds_own[self.slot[S_X]] == ("X", layer, t)
                self.e(f"s_sub_u32 s{S_E0}, s{S_X}, s{S_OADJ}")
            chk.su = True
            c = sc.chain([("S", chk), ("V", self.E(f"v_add_u32 v{V_CPL}, s{S_E0}, v{V_L16}")),
                          ("V", self.E(f"v_add_u32 v{V_CPG}, {hex(0x8000 if t > 1 else 0xffff0000)}, v{V_CPG}"))], 8)
            gprev = c[-1]
            for k, mt in enumerate(jobs):
                w = bw[k + (6 - len(jobs))]
                gr = sc.place("D", lambda mt=mt: self.lds(f"ds_read_b128 {vr(CT,4)}, v{V_CPL} offset:{mt*2048}", ("C",)), max(gprev + 1, w - 9), w - 1)
                def st(mt=mt):
                    assert ("C",) not in self.lq
                    so = ["0", f"s{S_4K}", f"s{S_8K}", f"s{S_12K}"][mt >> 1]
                    self.vm(f"buffer_store_dwordx4 {vr(CT,4)}, v{V_CPG}, {sr(S_WS,4)}, {so} offen offset:{(mt&1)*2048} sc1", ("S", layer, t))
                gprev = sc.place("G", st, w + 1)
        def braw(nt): return V_T + 2 * nt if nt < 6 else V_T + 20 + 2 * (nt - 6)
        def bload(nt):
            return lambda: self.vm(f"buffer_load_dwordx2 {vr(braw(nt),2)}, v{V_B}, {sr(S_B,4)}, s{S_BOFF} offen offset:{(nt>>1)*128 + (nt&1)*32}", ("B", layer, nt // 6))
        if kind == "H0":
            g = gb - 8
            for nt in (6, 7): g = sc.place("G", bload(nt), g) + 1
            assert g < lastG
        if kind == "S1":
            g = off + 3
            for nt in range(6): g = sc.place("G", bload(nt), g) + 4
        if kind in ("S1", "S2", "S3", "T14", "F14"):
            plan = {"S1": [6], "S2": [4, 5, 0], "S3": [3, 1, 2], "T14": [7], "F14": [7]}[kind]
            g = 8 if kind == "S1" else 0
            for nt in plan:
                r = braw(nt); f0, f2, a0 = V_T + 16, V_T + 17, V_T + 18
                f = [f0, r, f2, r + 1]
                ops = [f"v_lshlrev_b32 v{f0}, 16, v{r}", f"v_and_b32 v{r}, s{S_MASK}, v{r}", f"v_lshlrev_b32 v{f2}, 16, v{r+1}", f"v_and_b32 v{r+1}, s{S_MASK}, v{r+1}"]
                c = sc.chain([("V", self.E(x)) for x in ops], g); g = c[-1]
                ops = []
                for mt in range(8):
                    pf, a = ACC(mt, nt)
                    if pf == "v":
                        ops += [f"v_add_f32 v{a+i}, v{a+i}, v{f[i]}" for i in range(4)]
                    else:
                        for i in (0, 2):
                            ops += [f"v_accvgpr_read_b32 v{a0}, a{a+i}", f"v_accvgpr_read_b32 v{a0+1}, a{a+i+1}",
                                    f"v_add_f32 v{a0}, v{a0}, v{f[i]}", f"v_add_f32 v{a0+1}, v{a0+1}, v{f[i+1]}",
                                    f"v_accvgpr_write_b32 a{a+i}, v{a0}", f"v_accvgpr_write_b32 a{a+i+1}, v{a0+1}"]
                b0 = P(0) if nt == 7 else P(off + 16 * nt)
                b1 = b0 + 16
                est = g + len(ops) // 2 + len(ops) // 3 + 4
                if est < b0 - 2: lo, hi = g, b0 - 2
                else: lo, hi = max(g, b1 + 6), n - 2
                c = sc.chain([("V", self.E(x)) for x in ops], lo, hi); g = c[-1]
            if kind == "S3": sc.place("S", self.E(f"s_add_u32 s{S_BOFF}, s{S_BOFF}, 2048"), 4)
        if first:
            g = 0
            for nt in range(1, 7):
                c = sc.chain([("V", self.E(x)) for x in self.bias0_ops(nt)], g, P(16 * nt) - 2); g = c[-1]
            ops = []
            for mt in range(2): ops += [f"v_accvgpr_write_b32 a{ACC(mt,6)[1]+i}, v{ACC(7,6)[1]+i}" for i in range(4)]
            c = sc.chain([("V", self.E(x)) for x in ops], g, P(96) - 2); g = c[-1] + 1
        gcap = 0
        if kind in ("E0", "G0", "T14", "T15"):
            cap, bk = f"CAP_{kind}", f"CB_{kind}"
            def br():
                self.e(f"s_cbranch_scc1 {cap}"); self.label(bk)
            def blkc(p):
                return [f"v_xor_b32 v{V_DUM}, s{S_WC64}, v{V_XA[0]}"] + [f"ds_read_b128 {ar(X0(p,mt),4)}, v{V_DUM} offset:{mt*2048}" for mt in range(8)] + [f"s_branch {bk}"]
            if kind == "G0":
                c = sc.chain([("S", self.E(f"s_lshr_b32 s{S_TC}, s{S_LOOP}, 2"))], P(off + 17))
                gcap = sc.branch(self.E(f"s_cmp_eq_u32 s{S_TC}, s{S_CAPJ}"), br, c[-1])
                b = [f"{cap}:", f"s_and_b32 s{S_TC}, s{S_LOOP}, 3"]
                for p in range(1, 4): b += [f"s_cmp_eq_u32 s{S_TC}, {p}", f"s_cbranch_scc1 {cap}{p}"]
                b += blkc(0)
                for p in range(1, 4): b += [f"{cap}{p}:"] + blkc(p)
                self.ool[cap] = b
            else:
                gcap = sc.branch(self.E(f"s_cmp_eq_u32 s{S_CAPJ}, {t >> 2}"), br, P(off + 17))
                self.ool[cap] = [f"{cap}:"] + blkc(t & 3)
        gXA = max(gcap + 1, P(off + 20))
        nx = {}
        if kind == "T15":
            def f0():
                self.e(f"v_add_u32 v{V_XA[0]}, s{S_TA}, v{V_L16}"); self.xa = nx["x"]
            sc.chain([("S", self.E(f"s_lshl_b32 s{S_TA}, s{S_WC64}, 7")),
                      ("S", self.SU(f"s_sub_u32 s{S_TA}, s{S_X+2}, s{S_TA}", lambda: nx.update(x=self.slot[S_X + 2]))),
                      ("V", f0), ("V", self.E(f"v_add_u32 v{V_XA[1]}, 1024, v{V_XA[0]}")), ("S", self.E(f"s_mov_b32 s{S_CAPJ}, 77"))], gXA)
            wnext = S_X + 1
        elif kind != "F15":
            def f0():
                self.e(f"v_add_u32 v{V_XA[0]}, s{S_DX}, v{V_XA[0]}"); self.xa = nx["x"]
            sc.chain([("S", self.SU(f"s_sub_u32 s{S_DX}, s{S_X+1}, s{S_X}", lambda: nx.update(x=self.slot[S_X + 1]))),
                      ("V", f0), ("V", self.E(f"v_add_u32 v{V_XA[1]}, s{S_DX}, v{V_XA[1]}"))], gXA)
            wnext = S_WR + 1
        if kind in ("G0", "G1"):
            sc.put(n - 2, "S", self.E(f"s_cmp_lt_u32 s{S_LOOP}, 14")); sc.closedS.add(n - 2)
        if kind != "F15":
            def wa(h):
                def f():
                    self.e(f"v_add_u32 v{V_WA[h]}, s{S_DW}, v{V_WA[h]}"); self.wa[h] = nx["w"]
                return f
            sc.place("S", self.SU(f"s_sub_u32 s{S_DW}, s{wnext}, s{S_WR}", lambda: nx.update(w=self.slot[wnext])), gXA)
            c = sc.chain([("V", wa(0)), ("V", wa(1))], gWA)
            self.slot[S_TR] = None
            if kind == "T15":
                rot = [self.smov(S_O2, S_X), self.smov(S_O3, S_WR), self.smov(S_WR, S_X + 1), self.smov(S_X + 1, S_WR + 1),
                       self.smov(S_X, S_X + 2), self.smov(S_WR + 1, S_X + 2)]
            elif kind == "H0":
                rot = [self.smov(S_X, S_X + 1), self.smov(S_X + 1, S_O2), self.smov(S_X + 2, S_O3),
                       self.smov(S_TR, S_WR), self.smov(S_WR, S_WR + 1), self.smov(S_WR + 1, S_TR)]
            else:
                rot = [self.smov(S_TR, S_X), self.smov(S_X, S_X + 1), self.smov(S_X + 1, S_X + 2), self.smov(S_X + 2, S_TR),
                       self.smov(S_TR, S_WR), self.smov(S_WR, S_WR + 1), self.smov(S_WR + 1, S_TR)]
            if kind in ("E0", "G0", "T15", "H0"): q = [self.E(f"s_add_u32 s{S_Q}, s{S_Q}, 1")]
            elif kind in ("T14", "F14"): q = []
            else: q = None
            if kind == "H0":
                q += [self.E(f"s_add_u32 s{S_Q+1}, s{S_Q}, 1"), self.E(f"s_add_u32 s{S_Q+2}, s{S_Q}, 2"), self.E(f"s_and_b32 s{S_Q+2}, s{S_Q+2}, 15")]
            if kind in ("S1", "S2"):
                q = [self.E(f"s_mov_b32 s{S_Q}, s{S_Q+1}"), self.E(f"s_mov_b32 s{S_Q+1}, s{S_Q+2}"),
                     self.E(f"s_add_u32 s{S_Q+2}, s{S_Q+2}, 4"), self.E(f"s_and_b32 s{S_Q+2}, s{S_Q+2}, 15")]
            if kind in ("S3", "G1"):
                q = [self.E(f"s_add_u32 s{S_TE}, s{S_Q}, 1"), self.E(f"s_mov_b32 s{S_Q}, s{S_Q+1}"), self.E(f"s_mov_b32 s{S_Q+1}, s{S_Q+2}"),
                     self.E(f"s_mov_b32 s{S_Q+2}, s{S_TE}")]
            if kind == "S3": q += [self.E(f"s_mov_b32 s{S_LOOP}, 4")]
            sc.chain([("S", f) for f in q], max(gx, P(off + 60)))
            glast = max(self.last_slot_use(sc), 112 if kind in ('T15', 'H0') else 0)
            if kind in ("G0", "G1"):
                rot += [self.E(f"s_add_u32 s{S_LOOP}, s{S_LOOP}, 1")]
            c2 = sc.chain([("S", f) for f in rot], glast)
        if o.diag:
            sc.chain(self.stamp_items(), 86 if first else P(off + 50))
        if kind == "T15": self.make_stream(layer + 1)
        gbase = {"T15": 0, "H0": 128}.get(kind)
        for g, m in enumerate(mf):
            if kind == "H0" and g >= off:
                f = (m[1] >> 1) * 8 + m[0]
                assert f in self.epi_done, ("deadline", m)
            self.mfma(m)
            if gbase is None:
                for f in sc.ordered(g): f()
            else:
                self.merge_gap(sc, g, gbase + g)
        if kind == "T15": assert all(f in self.wr_done for f in range(8))
        if kind == "H0": assert not self.stream

    def is_direct(self, p, mt):
        n = int(self.opt.direct[p])
        return ((mt + 1) * n) // 8 != (mt * n) // 8
    def make_stream(self, nl):
        o = self.opt
        st = []
        self.epi_done = set(); self.wr_done = set()
        tbf = lambda f: V_T + 8 * (f % 2)
        def U(f): return [("U", ("U", f // 8, f % 8, h, tbf(f)), f - 2) for h in range(2)]
        st += U(0) + U(1)
        for f in range(32):
            p, mt = f // 8, f % 8
            tb = tbf(f)
            sreg = {0: S_X + 2, 1: S_WR + 1, 2: S_O2, 3: S_O3}[p]
            it = []
            if mt == 0:
                def f0(p=p, sreg=sreg):
                    self.lds_own[self.slot[sreg]] = ("X", nl, p)
                    self.e(f"s_sub_u32 s{S_E0}, s{sreg}, s{S_OADJ}")
                it += [("S", f0), ("V", self.E(f"v_add_u32 v{V_CPL}, s{S_E0}, v{V_L16}"))]
                if p >= 1: it += [("V", self.E(f"v_add_u32 v{V_CPG}, 0x8000, v{V_CPG}"))]
            ops = self.epi_valu(p, mt, tb, V_T + 16)
            for k, x in enumerate(ops):
                if k == len(ops) - 5:
                    it.append(("V", lambda x=x, f=f: (self.e(x), self.epi_done.add(f))))
                else: it.append(("V", self.E(x)))
            it += [("G", lambda f=f, mt=mt, tb=tb: (self.lds(f"ds_write_b128 v{V_CPL}, {vr(tb,4)} offset:{mt*2048}", ("O",)), self.wr_done.add(f)))]
            if self.is_direct(p, mt):
                so = ["0", f"s{S_4K}", f"s{S_8K}", f"s{S_12K}"][mt >> 1]
                it += [("G", lambda p=p, mt=mt, tb=tb, so=so: self.vm(f"buffer_store_dwordx4 {vr(tb,4)}, v{V_CPG}, {sr(S_WS,4)}, {so} offen offset:{(mt&1)*2048} sc1", ("S", nl, p)))]
            items = [(k, fn, f) for k, fn in it]
            if f >= 1 and f + 1 < 32:
                u = U(f + 1)
                items = items[:2] + [(u[0][0], u[0][1], f)] + items[2:4] + [(u[1][0], u[1][1], f)] + items[4:]
            st += items
        cost = [{"U": 0, "V": 1, "S": 0, "G": 2}[k] for k, _, _ in st]
        tot = sum(cost); acc = 0
        self.stream = []
        for (k, fn, f), c in zip(st, cost):
            pos = o.e0 + (o.e1 - o.e0) * acc / tot
            if f < 0: pos = o.e0 - 8
            else:
                pos = max(pos, 38 + 32 * (f // 8) + 2 * (f % 8))
                if f >= 16: pos = max(pos, 129)
            self.stream.append((k, fn, f, pos)); acc += c

    def merge_gap(self, sc, g, gpos):
        fixed = sc.g[g]
        last = g == sc.n - 1
        while True:
            kinds = [k for k, _ in fixed]
            cur = list(fixed)
            excl = "G" in kinds
            nvec = sum(k in "DV" for k in kinds)
            newgap = None
            seenV = False
            while self.stream and not last:
                k, fn, f, pos = self.stream[0]
                if pos > gpos + 1: break
                behind = gpos + 1 - pos
                cap = 2 if behind < 1.0 else (3 if behind < 3 else 4)
                if k == "U":
                    newgap = fn; self.stream.pop(0); break
                if k == "G":
                    if cur and (seenV or excl or behind < 1.5): break
                    cur.append((k, fn)); excl = True; self.stream.pop(0); continue
                if k == "S":
                    if excl or seenV or g in sc.closedS: break
                    cur.append((k, fn)); self.stream.pop(0); continue
                if excl or nvec >= cap: break
                cur.append((k, fn)); nvec += 1; seenV = True; self.stream.pop(0)
            for k, fn in sorted(cur, key=lambda x: RANK[x[0]]): fn()
            if newgap is None: return
            self.mfma(newgap)
            fixed = []

    def SU(self, s, then=None):
        def f():
            self.e(s)
            if then: then()
        f.su = True
        return f
    def last_slot_use(self, sc):
        last = 0
        for g in range(sc.n):
            if any(getattr(f, "su", False) for _, f in sc.g[g]): last = g
        return last + 1

    def final(self):
        e = self.e; o = self.opt
        self.stamp(0); self.wait(lall=True); e("s_barrier"); self.stamp(1)
        pre = ["v_lshrrev_b32 v32, 4, v0", "v_and_b32 v33, 15, v32", "v_lshrrev_b32 v34, 4, v32",
               "v_lshrrev_b32 v35, 1, v34", f"s_lshr_b32 s{S_TA}, s{S_WC64}, 4", f"v_add_u32 v35, s{S_TA}, v35",
               "v_lshrrev_b32 v36, 1, v33", "v_xor_b32 v35, v35, v36", "v_lshlrev_b32 v35, 4, v35", "v_lshl_add_u32 v35, v33, 7, v35",
               "v_and_b32 v36, 1, v34", "v_lshl_add_u32 v35, v36, 3, v35", f"v_add_u32 v{V_XA[0]}, s{S_WR14}, v35", f"v_xor_b32 v{V_XA[1]}, 32, v{V_XA[0]}",
               "v_lshrrev_b32 v33, 3, v32", "v_and_b32 v34, 7, v32", "v_lshrrev_b32 v35, 1, v33", "v_xor_b32 v35, v34, v35", "v_lshlrev_b32 v35, 4, v35",
               "v_lshl_add_u32 v35, v33, 11, v35", f"s_lshl_b32 s{S_TA}, s{S_RB}, 19", f"s_lshl_b32 s{S_TB}, s{S_WAVE}, 17", f"s_add_u32 s{S_TA}, s{S_TA}, s{S_TB}",
               f"s_lshl_b32 s{S_TB}, s{S_J}, 9", f"s_add_u32 s{S_TA}, s{S_TA}, s{S_TB}", f"v_add_u32 v{V_XC[0]}, s{S_TA}, v35",
               f"v_xor_b32 v{V_XC[1]}, 64, v{V_XC[0]}", f"v_add_u32 v{V_XC[1]}, 16384, v{V_XC[1]}",
               f"s_lshl_b32 s{S_TA}, s{S_WAVE}, 13", f"v_add_u32 v{V_CPL}, s{S_TA}, v{V_L16}",
               f"s_mov_b32 s{S_XT+1}, 32768", f"s_mov_b32 s{S_XT+3}, 98304"]
        k = 0
        for mt in range(8):
            for s in ((0, 1) if mt % 2 == 0 else (1, 0)):
                self.mfma((mt, 7, s, False))
                for x in pre[k:k + 2]: e(x)
                k += 2
        assert k >= len(pre)
        if o.diag:
            e("s_waitcnt lgkmcnt(0)")
            for _, f in self.stamp_items(): f()
        tbf = lambda f: V_T + 8 * (f % 2)
        U = lambda f, h: self.mfma(("U", f // 8, f % 8, h, tbf(f)))
        U(0, 0); U(0, 1); U(1, 0); U(1, 1); e("s_nop 7")
        def rd(p, i): self.lds(f"ds_read_b128 {ar(XF(i,0),4)}, v{V_CPL} offset:{(p&1)*SLOT + i*1024}", ("C", i))
        def st(p, i):
            self.wait(ltags=[("C", i)])
            so = "0" if i < 2 else f"s{S_XT+(i>>1)}"
            self.vm(f"buffer_store_dwordx4 {ar(XF(i,0),4)}, v{V_XC[i&1]}, {sr(S_OUT,4)}, {so} offen offset:{p*128}{o.outf}", "SO")
        for p in range(5):
            if p > 0:
                self.wait(lall=True); e("s_barrier")
                if p == 3: e(f"v_add_u32 v{V_CPL}, 0x10000, v{V_CPL}")
            if p == 2:
                for h in range(2): e(f"v_add_u32 v{V_XA[h]}, 0x10000, v{V_XA[h]}")
            for mt in range(8):
                if p > 0: rd(p - 1, mt)
                if p < 4:
                    f = p * 8 + mt; tb = tbf(f)
                    for h in range(2):
                        pf, r = ACC(mt, 2 * p + h)
                        if pf == "a":
                            for i in range(4): e(f"v_accvgpr_read_b32 v{V_T+16+i}, a{r+i}")
                            r = V_T + 16
                        for d in range(2): e(f"v_pk_mul_f32 {vr(tb+4*h+2*d,2)}, {vr(tb+4*h+2*d,2)}, {vr(r+2*d,2)}")
                    ob = V_T + 20
                    for d in range(4): e(f"v_cvt_pk_bf16_f32 v{ob+d}, v{tb+2*d}, v{tb+2*d+1}")
                    if f + 2 < 32: U(f + 2, 0)
                    self.lds(f"ds_write_b64 v{V_XA[0]}, {vr(ob,2)} offset:{(p&1)*SLOT + mt*2048}")
                    if f + 2 < 32: U(f + 2, 1)
                    self.lds(f"ds_write_b64 v{V_XA[1]}, {vr(ob+2,2)} offset:{(p&1)*SLOT + mt*2048}")
                    if p > 0: st(p - 1, mt)
            if p == 4:
                for mt in range(8): st(3, mt)
        e(f"s_or_b32 s{S_TA}, s{S_J}, s{S_WAVE}"); e(f"s_cmp_lg_u32 s{S_TA}, 0"); e("s_cbranch_scc1 L_fin")
        e(f"s_add_u32 s{S_TA}, s{S_EP}, 16"); e(f"v_mov_b32 v{V_FLAG}, s{S_TA}")
        e(f"buffer_store_dword v{V_FLAG}, off, {sr(S_WS,4)}, s{S_EPOFF}")
        self.label("L_fin")
        if o.diag:
            e(f"s_memtime s[{S_ST}:{S_ST+1}]"); e("s_waitcnt vmcnt(0)"); e(f"s_memtime s[{S_ST+2}:{S_ST+3}]")
            e(f"s_memrealtime s[{S_RT+2}:{S_RT+3}]"); e("s_waitcnt lgkmcnt(0)")
            e(f"v_writelane_b32 v{V_ST[0]}, s{S_ST}, 62"); e(f"v_writelane_b32 v{V_ST[1]}, s{S_ST+2}, 62")
            e(f"v_writelane_b32 v{V_ST[0]}, s{S_RT}, 61"); e(f"v_writelane_b32 v{V_ST[1]}, s{S_RT+2}, 61")
            e(f"s_lshl_b32 s{S_TA}, s2, 2"); e(f"s_add_u32 s{S_TA}, s{S_TA}, s{S_WAVE}"); e(f"s_lshl_b32 s{S_TA}, s{S_TA}, 9")
            e(f"s_add_u32 s{S_TA}, s{S_TA}, {hex(ST_OFF)}"); e("v_lshrrev_b32 v0, 2, v0")
            e(f"buffer_store_dword v{V_ST[0]}, v0, {sr(S_WS,4)}, s{S_TA} offen")
            e(f"buffer_store_dword v{V_ST[1]}, v0, {sr(S_WS,4)}, s{S_TA} offen offset:256")
        e("s_endpgm")

    def build(self):
        self.epi_log = []
        self.prologue()
        main = self.out
        texts = {}
        def gen(kind, layer, t):
            self.out = []
            self.body(kind, layer, t)
            if kind in texts:
                if texts[kind] != self.out:
                    for a, b in zip(texts[kind], self.out):
                        if a != b: print("DIFF", kind, layer, t, a, "|", b); break
                    raise RuntimeError(f"body {kind} differs at layer {layer} t {t}")
            texts[kind] = self.out
        for layer in range(3):
            for t in range(16):
                if layer == 0: kind = "E0" if t == 0 else ("G0" if t < 14 else f"T{t}")
                else: kind = "H0" if t == 0 else (f"S{t}" if t < 4 else ("G1" if t < 14 else (f"T{t}" if layer < 2 else f"F{t}")))
                gen(kind, layer, t)
        self.out = []; self.final(); fin = self.out
        o = main + texts["E0"]
        o += [".p2align 3", "L_G0:"] + texts["G0"] + ["s_cbranch_scc1 L_G0"]
        o += ["L_T14:"] + texts["T14"] + texts["T15"] + texts["H0"] + texts["S1"] + texts["S2"] + texts["S3"]
        o += ["L_G1:"] + texts["G1"] + ["s_cbranch_scc1 L_G1"]
        o += [f"s_cmp_eq_u32 s{S_LAYER}, 1", "s_cbranch_scc1 L_T14"]
        o += texts["F14"] + texts["F15"] + fin
        for b in self.ool.values(): o += b
        self.texts = texts
        hdr = open("standalone__dcn_v2_cross__recsys.s.ref").read().split("\n")
        top = [l for l in hdr if l.startswith(";") and "@launch" not in l]
        txt = "\n".join(top) + f"\n; @launch grid=(256,1,1) block=(256,1,1) lds={SLOT*5}\n"
        txt += f""".amdgcn_target "amdgcn-amd-amdhsa--gfx950"
.text
.globl {NAME}
.p2align 8
.type {NAME},@function
{NAME}:
"""
        txt += "\n".join(o) + "\nL_codeend:\n"
        txt += f""".section .rodata,"a"
.p2align 6
.amdhsa_kernel {NAME}
  .amdhsa_next_free_vgpr 512
  .amdhsa_next_free_sgpr 96
  .amdhsa_accum_offset 256
  .amdhsa_group_segment_fixed_size 0
  .amdhsa_kernarg_size 48
  .amdhsa_user_sgpr_count 2
  .amdhsa_user_sgpr_kernarg_segment_ptr 1
  .amdhsa_system_sgpr_workgroup_id_x 1
  .amdhsa_float_denorm_mode_32 3
.end_amdhsa_kernel
"""
        return txt

if __name__ == "__main__":
    ap = argparse.ArgumentParser()
    ap.add_argument("-o", default="k2.s")
    ap.add_argument("--diag", action="store_true")
    ap.add_argument("--pace", type=int, default=6)
    ap.add_argument("--paceh", type=int, default=8)
    ap.add_argument("--e0", type=int, default=38)
    ap.add_argument("--e1", type=int, default=246)
    ap.add_argument("--flag0", type=int, default=60)
    ap.add_argument("--touch", type=int, default=1)
    ap.add_argument("--warm", type=int, default=15)
    ap.add_argument("--early", type=int, default=8)
    ap.add_argument("--direct", default="8444")
    ap.add_argument("--diag2", action="store_true")
    ap.add_argument("--diagrt", action="store_true")
    ap.add_argument("--outf", default="")
    ap.add_argument("-v", action="store_true")
    opt = ap.parse_args()
    g = G(opt)
    open(opt.o, "w").write(g.build())
    print("fallback waits:", g.warn, {k: len(v) for k, v in g.texts.items()})
```

```python
import sys, re, argparse

NAME = "standalone__dcn_v2_cross__recsys_kernel"
SLOT = 32768
FL_OFF = 64 << 20
EP_OFF = FL_OFF + 65536
ST_OFF = 80 << 20

def vr(b, n=1, p="v"):
    return f"{p}{b}" if n == 1 else f"{p}[{b}:{b+n-1}]"
def ar(b, n=1): return vr(b, n, "a")
def sr(b, n=1): return vr(b, n, "s")

def XF(mt, s): return (mt * 2 + s) * 4
def WF(buf, s): return 64 + buf * 8 + s * 4
def X0(p, mt): return 80 + (p * 8 + mt) * 4
def SEL(h): return 208 + 4 * h
ACC_A0 = 216
ACC_V0 = 40
_acc = {}
def _init_acc():
    va, aa = ACC_V0, ACC_A0
    for nt in range(8):
        for mt in range(8):
            if nt == 7 or (nt == 6 and mt < 2):
                _acc[(mt, nt)] = ("a", aa); aa += 4
            else:
                _acc[(mt, nt)] = ("v", va); va += 4
    assert va == 256 and aa == 256
_init_acc()
def ACC(mt, nt): return _acc[(mt, nt)]

V_L16 = 0; V_XA = [1, 2]; V_WA = [3, 4]; V_WC = [5, 6]; V_XC = [7, 8]; V_CPG = 15; V_CPL = 9
V_POLL = 10; V_FLAG = 11; V_B = 12; V_ST = [13, 14]; V_T = 16; V_XT = 30
S_DW = 4; S_TR = 5; S_E0 = 6; S_KEY = 7
S_W = 8; S_X0 = 12; S_WS = 16; S_OUT = 20; S_B = 24
S_WT = 28; S_XT = 32
S_X = 36
S_WR = 39
S_Q = 41
S_WCUR = 44; S_WL = 45; S_XB = 46; S_FB = 47; S_FOWN = 48; S_EP = 49; S_NEED = 50; S_FV = 51; S_WLM = 52
S_PA = 53; S_J = 54; S_WAVE = 55; S_RB = 56; S_LOOP = 57; S_LAYER = 58; S_ADJ = 59; S_OADJ = 60; S_WC64 = 61
S_M4 = 62; S_MASK = 65; S_EPOFF = 66; S_CNT = 67; S_CAPJ = 68; S_BOFF = 69
S_TA = 70; S_TB = 71; S_TC = 72; S_TD = 73; S_TE = 74; S_TF = 75; S_O2 = 76; S_O3 = 77; S_WR14 = 78; S_DX = 79
S_PC = 80; S_ST = 82; S_RT = 86; S_SI = 90; S_LEND = 91; S_D0 = 92
S_FQ = 96
S_TG = 99; S_TH = 100; S_M7 = 101; S_XCUR = 3; S_XTO = 28

RANK = {"S": 0, "G": 1, "D": 2, "V": 3}

class Sched:
    def __init__(self, n, maxS=3):
        self.n = n
        self.g = [[] for _ in range(n)]
        self.closedS = set()
        self.maxS = maxS
    def fits(self, g, kind):
        kinds = [k for k, _ in self.g[g]]
        if kind == "G": return len(kinds) == 0
        if "G" in kinds: return False
        nvec = sum(k in "DV" for k in kinds)
        if kind == "S":
            if g in self.closedS or kinds.count("S") >= self.maxS: return False
            return len(kinds) < 3
        return nvec < 2 and len(kinds) < 3
    def put(self, g, kind, fn): self.g[g].append((kind, fn))
    def place(self, kind, fn, lo, hi=None):
        hi = self.n - 1 if hi is None else hi
        for g in range(lo, hi + 1):
            if self.fits(g, kind):
                self.put(g, kind, fn); return g
        raise RuntimeError(f"cannot place {kind} in [{lo},{hi}]")
    def chain(self, items, lo, hi=None):
        out = []; g = lo; pk = None
        for kind, fn in items:
            if pk is not None and (RANK[kind] < RANK[pk] or kind == "G" or pk == "G"): g += 1
            g = self.place(kind, fn, g, hi)
            out.append(g); pk = kind
        return out
    def branch(self, cmpfn, brfn, lo):
        for g in range(lo, self.n - 1):
            if self.fits(g, "S") and self.fits(g + 1, "G"):
                self.put(g, "S", cmpfn); self.closedS.add(g); self.put(g + 1, "G", brfn); return g + 1
        raise RuntimeError("branch")
    def last_su(self):
        last = 0
        for g in range(self.n):
            if any(getattr(f, "su", False) for _, f in self.g[g]): last = g
        return last + 1

def mt_off(mt):
    if mt == 0: return "0", 0
    if mt < 4: return f"s{S_XT+mt}", (mt & 1) * 2048
    return f"s{[S_M4, S_M4+1, S_M4+2, S_M7][mt-4]}", 0

def blk(nt, cinit=False):
    r = []
    for mt in range(8):
        ss = (0, 1) if mt % 2 == 0 else (1, 0)
        r += [(mt, nt, ss[0], cinit), (mt, nt, ss[1], False)]
    return r

class G:
    def __init__(self, opt):
        self.opt = opt
        self.out = []
        self.vq = []; self.lq = []
        self.ool = {}
        self.slot = {}
        self.lds_own = {}
        self.xa = None; self.wa = None
        self.warn = 0
        self.stamps = []
        self.stream = []; self.stream2 = []
        self.pending = None
    def e(self, s): self.out.append(s)
    def E(self, s): return lambda: self.e(s)
    def S(self, s): return ("S", self.E(s))
    def V(self, s): return ("V", self.E(s))
    def SU(self, s, then=None):
        def f():
            self.e(s)
            if then: then()
        f.su = True
        return ("S", f)
    def label(self, n): self.out.append(n + ":")
    def vm(self, s, tag=None):
        self.e(s); self.vq.append(tag); assert len(self.vq) <= 62
    def VM(self, s, tag=None): return ("G", lambda: self.vm(s, tag))
    def lds(self, s, tag=None):
        self.e(s); self.lq.append(tag)
    def _need(self, q, tags, mx, force=None):
        idx = -1
        for i, t in enumerate(q):
            if t in tags: idx = i
        if idx < 0 and force is None: return None
        n = len(q) - 1 - idx
        if force is not None:
            assert n >= force or idx < 0, (n, force, q)
            n = force
        n = min(n, mx)
        if len(q) > n: del q[:len(q) - n]
        return n
    def wait(self, vtags=(), ltags=(), lall=False, vforce=None):
        parts = []
        n = self._need(self.vq, set(vtags), 62, vforce)
        if n is not None: parts.append(f"vmcnt({n})")
        if lall:
            parts.append("lgkmcnt(0)"); self.lq = []
        else:
            n = self._need(self.lq, set(ltags), 14)
            if n is not None: parts.append(f"lgkmcnt({n})")
        if parts: self.e("s_waitcnt " + " ".join(parts))
    def smov(self, d, s):
        def f():
            self.e(f"s_mov_b32 s{d}, s{s}"); self.slot[d] = self.slot[s]
        return ("S", f)

    def mfma(self, m):
        if m[0] == "U":
            _, p, mt, h, tb = m
            self.e(f"v_mfma_f32_16x16x32_bf16 {vr(tb+4*h,4)}, {ar(SEL(h),4)}, {ar(X0(p,mt),4)}, 0")
            return
        mt, nt, s, cinit = m
        buf = nt & 1
        tags = {("XF", mt, s), ("WF", buf, s, 0), ("WF", buf, s, 1)}
        if tags & set(self.lq):
            self.warn += 1
            self.wait(ltags=tags)
        p, r = ACC(mt, nt)
        c = vr(r, 4, p)
        if cinit and p == "v" and mt != 7: c = vr(ACC(7, nt)[1], 4)
        self.e(f"v_mfma_f32_16x16x32_bf16 {vr(r,4,p)}, {ar(WF(buf,s),4)}, {ar(XF(mt,s),4)}, {c}")
    def rd_xf(self, mt, s, want):
        def f():
            assert self.lds_own[self.xa] == want, (self.lds_own[self.xa], want)
            self.lds(f"ds_read_b128 {ar(XF(mt,s),4)}, v{V_XA[s]} offset:{mt*2048}", ("XF", mt, s))
        return f
    def rd_wf(self, nt, s, u, want, half=None):
        p, h = nt >> 1, nt & 1
        if callable(half): half = half(nt)
        off = (p >> 1 if half is None else half) * 16384 + (p & 1) * 512 + s * 8192 + u * 4096
        def f():
            if half is None: assert self.lds_own[self.wa[h]] == want, (self.lds_own[self.wa[h]], want)
            else:
                assert self.lds_half[(self.wa[h], half)] == want + (p >> 1,), (self.lds_half, self.wa[h], half, want, nt)
                assert want + (p >> 1,) in self.landed
            self.lds(f"ds_read_b64_tr_b16 {ar(WF(h,s)+2*u,2)}, v{V_WA[h]} offset:{off}", ("WF", h, s, u))
        return f
    def dma_items(self, what, sdst, form):
        items = []
        for i in range(8):
            if i == 0: items.append(self.SU(f"s_mov_b32 m0, s{sdst}", lambda: self.lds_own.__setitem__(self.slot[sdst], what)))
            if i == 4:
                def chk(): assert self.lds_own[self.slot[sdst]] == what
                items.append(self.SU(f"s_add_u32 m0, s{sdst}, 0x1000", chk))
            off = f" offset:{(i&3)*1024}" if i & 3 else ""
            if form == "W":
                so = "0" if i < 2 else f"s{S_WT+(i>>1)}"
                s = f"buffer_load_dwordx4 v{V_WC[i&1]}, {sr(S_W,4)}, {so} offen{off} lds"
            elif form == "X0":
                so = "0" if i < 2 else f"s{S_XT+(i>>1)}"
                s = f"buffer_load_dwordx4 v{V_XC[i&1]}, {sr(S_X0,4)}, {so} offen{off} nt lds"
            else:
                so = "0" if i < 2 else f"s{S_XT+(i>>1)}"
                s = f"buffer_load_dwordx4 v{V_XC[i&1]}, {sr(S_X0,4)}, {so} offen{off} sc1 lds"
            items.append(self.VM(s, what))
        return items
    def place_dma(self, sc, items, lo, pace):
        g = lo; prev = -1; pend = None
        for kind, fn in items:
            if kind == "S": pend = fn; continue
            g0 = max(int(g), prev + 1)
            if pend is not None:
                gs = sc.place("S", pend, max(prev + 1, g0 - 2, 0)); g0 = max(g0, gs + 1); pend = None
            prev = sc.place("G", fn, g0)
            g += pace
        return prev
    def w_setup(self, tidreg, base):
        return [self.S(f"s_lshl_b32 s{S_TA}, s{tidreg}, 17"), self.S(f"s_add_u32 s{S_TA}, s{S_TA}, s{base}"),
                self.S(f"s_sub_u32 s{S_TB}, s{S_TA}, s{S_WCUR}"), self.S(f"s_mov_b32 s{S_WCUR}, s{S_TA}"),
                self.V(f"v_add_u32 v{V_WC[0]}, s{S_TB}, v{V_WC[0]}"), self.V(f"v_add_u32 v{V_WC[1]}, s{S_TB}, v{V_WC[1]}")]
    def x_setup(self, tidreg):
        return [self.S(f"s_lshl_b32 s{S_TE}, s{tidreg}, 7"), self.S(f"s_sub_u32 s{S_DX}, s{S_TE}, s{S_XCUR}"), self.S(f"s_mov_b32 s{S_XCUR}, s{S_TE}"),
                self.V(f"v_add_u32 v{V_XC[0]}, s{S_DX}, v{V_XC[0]}"), self.V(f"v_add_u32 v{V_XC[1]}, s{S_DX}, v{V_XC[1]}")]
    def flag_items(self):
        return [self.V(f"v_mov_b32 v{V_FLAG}, s{S_FV}"),
                self.VM(f"buffer_store_dword v{V_FLAG}, off, {sr(S_WS,4)}, s{S_FOWN} sc1", "F"),
                self.S(f"s_add_u32 s{S_FV}, s{S_FV}, 1")]
    def poll_check(self, sc, name, tag, lo):
        sl, bk = f"SLOW_{name}", f"BACK_{name}"
        def f0():
            assert tag not in self.vq
            self.e(f"v_readfirstlane_b32 s{S_TC}, v{V_POLL}")
        c = sc.chain([self.S(f"s_and_b32 s{S_TD}, s{S_Q+1}, 3"), self.S(f"s_add_u32 s{S_TD}, s{S_TD}, s{S_NEED}"),
                      ("V", f0), self.S(f"s_sub_u32 s{S_TC}, s{S_TC}, s{S_TD}")], lo)
        def br():
            self.e(f"s_cbranch_scc1 {sl}"); self.label(bk)
        gbr = sc.branch(self.E(f"s_cmp_gt_u32 s{S_TC}, 7"), br, c[-1])
        self.ool[sl] = [f"{sl}:", f"s_mov_b32 s{S_CNT}, 0x100000", f"LP_{name}:",
                        f"buffer_load_dword v{V_POLL}, off, {sr(S_WS,4)}, s{S_PA} sc1", "s_waitcnt vmcnt(0)",
                        f"v_readfirstlane_b32 s{S_TC}, v{V_POLL}", f"s_sub_u32 s{S_CNT}, s{S_CNT}, 1", f"s_cbranch_scc1 {bk}",
                        f"s_sub_u32 s{S_TC}, s{S_TC}, s{S_TD}", f"s_cmp_gt_u32 s{S_TC}, 7", f"s_cbranch_scc0 {bk}",
                        "s_sleep 1", f"s_branch LP_{name}"]
        return gbr
    def stamp(self, which):
        if self.opt.diagrt:
            if which == 1:
                self.e(f"s_memtime s[{S_ST}:{S_ST+1}]"); self.e(f"s_memrealtime s[{S_ST+2}:{S_ST+3}]")
            return
        self.e(f"s_memtime s[{S_ST+2*which}:{S_ST+2*which+1}]")
    def stamp_items(self):
        def f():
            self.e(f"s_lshl_b64 exec, 1, s{S_SI}"); self.e(f"v_mov_b32 v{V_ST[0]}, s{S_ST}"); self.e(f"v_mov_b32 v{V_ST[1]}, s{S_ST+2}")
            self.e("s_mov_b64 exec, -1"); self.e(f"s_add_u32 s{S_SI}, s{S_SI}, 1")
        return [("G", f)]
    def epi_valu(self, p, mt, tb, at, ob):
        ops = []
        for h in range(2):
            pf, r = ACC(mt, 2 * p + h)
            if pf == "a":
                for i in range(4): ops.append(f"v_accvgpr_read_b32 v{at+i}, a{r+i}")
                r = at
            for i in range(4): ops.append(f"v_mul_f32 v{tb+4*h+i}, v{tb+4*h+i}, v{r+i}")
        for d in range(4): ops.append(f"v_cvt_pk_bf16_f32 v{ob+d}, v{tb+2*d}, v{tb+2*d+1}")
        return ops
    def braw(self, nt): return V_T + 2 * nt if nt < 6 else V_T + 20 + 2 * (nt - 6)
    def bias_sched(self, sc, nt, g, busy):
        r = self.braw(nt); f0, f2, a0 = V_T + 16, V_T + 17, V_T + 18
        f = [f0, r, f2, r + 1]
        ops = [f"v_lshlrev_b32 v{f0}, 16, v{r}", f"v_and_b32 v{r}, s{S_MASK}, v{r}", f"v_lshlrev_b32 v{f2}, 16, v{r+1}", f"v_and_b32 v{r+1}, s{S_MASK}, v{r+1}"]
        g = sc.chain([self.V(x) for x in ops], g)[-1]
        ops = []
        for mt in range(8):
            pf, a = ACC(mt, nt)
            if pf == "v":
                ops += [f"v_add_f32 v{a+i}, v{a+i}, v{f[i]}" for i in range(4)]
            else:
                for i in (0, 2):
                    ops += [f"v_accvgpr_read_b32 v{a0}, a{a+i}", f"v_accvgpr_read_b32 v{a0+1}, a{a+i+1}",
                            f"v_add_f32 v{a0}, v{a0}, v{f[i]}", f"v_add_f32 v{a0+1}, v{a0+1}, v{f[i+1]}",
                            f"v_accvgpr_write_b32 a{a+i}, v{a0}", f"v_accvgpr_write_b32 a{a+i+1}, v{a0+1}"]
        b0, b1 = busy
        est = g + len(ops) // 2 + len(ops) // 3 + 4
        if est < b0 - 2: lo, hi = g, b0 - 2
        else: lo, hi = max(g, b1 + 6), sc.n - 1
        return sc.chain([self.V(x) for x in ops], lo, hi)[-1]
    def bias0_ops(self, nt):
        r = V_T + 2 * nt
        d = ACC(7, nt)[1]
        return [f"v_lshlrev_b32 v{d}, 16, v{r}", f"v_and_b32 v{d+1}, s{S_MASK}, v{r}",
                f"v_lshlrev_b32 v{d+2}, 16, v{r+1}", f"v_and_b32 v{d+3}, s{S_MASK}, v{r+1}"] + \
               [f"v_add_f32 v{d+i}, 1.0, v{d+i}" for i in range(4)]

    def prologue(self):
        e = self.e; o = self.opt
        e("s_cmp_lt_u32 s2, 256"); e("s_cbranch_scc1 L_go"); e("s_endpgm")
        self.label("L_go")
        e("s_load_dwordx4 s[8:11], s[0:1], 0")
        e("s_load_dwordx4 s[20:23], s[0:1], 16")
        e("s_load_dwordx2 s[16:17], s[0:1], 40")
        if o.diag:
            e(f"s_memrealtime s[{S_RT}:{S_RT+1}]"); e(f"s_memtime s[{S_D0}:{S_D0+1}]")
        e(f"s_getpc_b64 s[{S_PC}:{S_PC+1}]")
        self.label("L_pc")
        e("s_lshr_b32 s3, s2, 3")
        e("v_lshrrev_b32 v16, 4, v0")
        e("v_lshl_add_u32 v16, s3, 4, v16")
        e("v_lshlrev_b32 v16, 7, v16")
        e(f"v_min_u32 v31, L_codeend-L_pc-4, v16")
        self.vm(f"global_load_dword v{V_POLL}, v31, s[{S_PC}:{S_PC+1}]", "PF")
        T = 40
        lane, m, q, r4, c4, q1, tx, tw, t0, t1, t2 = [f"v{T+i}" for i in range(11)]
        e(f"v_lshrrev_b32 {t0}, 6, v0")
        e(f"v_and_b32 {lane}, 63, v0")
        e(f"v_readfirstlane_b32 s{S_WAVE}, {t0}")
        e(f"s_and_b32 s{S_J}, s3, 3")
        e(f"s_and_b32 s{S_RB}, s2, 7"); e(f"s_lshl_b32 s{S_RB}, s{S_RB}, 3")
        e(f"s_lshr_b32 s{S_TC}, s2, 5")
        e(f"s_add_u32 s{S_RB}, s{S_RB}, s{S_TC}")
        e(f"v_and_b32 {m}, 15, {lane}"); e(f"v_lshrrev_b32 {q}, 4, {lane}")
        e(f"v_bfe_u32 {r4}, {lane}, 2, 2"); e(f"v_and_b32 {c4}, 3, {lane}")
        e(f"s_lshl_b32 s{S_TD}, s{S_RB}, 19")
        e(f"s_lshl_b32 s{S_TE}, s{S_J}, 17"); e(f"s_add_u32 s{S_TE}, s{S_TE}, s{S_TD}")
        e(f"s_lshl_b32 s{S_TF}, s{S_WAVE}, 15"); e(f"s_add_u32 s{S_TE}, s{S_TE}, s{S_TF}")
        e(f"v_and_b32 {q1}, 1, {q}"); e(f"v_lshlrev_b32 {tx}, 7, {q1}"); e(f"v_lshl_add_u32 {tx}, {m}, 11, {tx}")
        e(f"s_lshl_b32 s{S_CNT}, s{S_TC}, 15"); e(f"s_lshl_b32 s{S_TF}, s{S_WAVE}, 13"); e(f"s_add_u32 s{S_CNT}, s{S_CNT}, s{S_TF}")
        e(f"s_lshl_b32 s{S_BOFF}, s{S_J}, 9"); e(f"s_add_u32 s{S_CNT}, s{S_CNT}, s{S_BOFF}")
        e(f"v_lshlrev_b32 {tw}, 7, {c4}"); e(f"v_lshl_add_u32 {tw}, {r4}, 11, {tw}")
        e(f"s_mov_b32 s{S_X0+2}, {16384*1024*2}"); e(f"s_mov_b32 s{S_X0+3}, 0x20000")
        e(f"s_mov_b32 s{S_B+2}, {3*1024*2}"); e(f"s_mov_b32 s{S_B+3}, 0x20000")
        e(f"s_lshl_b32 s{S_EPOFF}, s{S_RB}, 7"); e(f"s_add_u32 s{S_EPOFF}, s{S_EPOFF}, {hex(EP_OFF)}")
        e("s_waitcnt lgkmcnt(0)")
        if o.diag: e(f"s_memtime s[{S_ST}:{S_ST+1}]")
        e(f"s_mov_b32 s{S_X0}, s8"); e(f"s_mov_b32 s{S_X0+1}, s9")
        self.vm(f"buffer_load_dword v{V_POLL}, {tx}, {sr(S_X0,4)}, s{S_TE} offen nt", "PF")
        e(f"s_mov_b32 s{S_W}, s10"); e(f"s_mov_b32 s{S_W+1}, s11"); e(f"s_mov_b32 s{S_W+2}, {3*1024*1024*2}"); e(f"s_mov_b32 s{S_W+3}, 0x20000")
        self.vm(f"buffer_load_dword v{V_POLL}, {tw}, {sr(S_W,4)}, s{S_CNT} offen", "PF")
        e(f"s_mov_b32 s{S_B}, s20"); e(f"s_mov_b32 s{S_B+1}, s21")
        self.vm(f"buffer_load_dword v{V_POLL}, {tw}, {sr(S_B,4)}, s{S_BOFF} offen", "PF")
        e(f"s_load_dword s{S_EP}, s[{S_WS}:{S_WS+1}], s{S_EPOFF}")
        def run(items):
            for k, f in items:
                f()
                if k == "S": e("s_nop 0")
        for r, sl in ((S_X, 0), (S_X + 1, 2), (S_X + 2, 4), (S_WR, 1), (S_WR + 1, 3)):
            e(f"s_add_u32 s{r}, s{S_TF}, {hex(sl*SLOT)}"); self.slot[r] = sl
        e(f"v_lshrrev_b32 {t1}, 3, {lane}"); e(f"v_and_b32 {t2}, 7, {lane}")
        e(f"v_lshrrev_b32 {t0}, 1, {t1}"); e(f"v_xor_b32 {t0}, {t2}, {t0}"); e(f"v_lshlrev_b32 {t0}, 4, {t0}"); e(f"v_lshl_add_u32 {t0}, {t1}, 11, {t0}")
        e(f"s_lshl_b32 s{S_PA}, s{S_WAVE}, 17"); e(f"s_add_u32 s{S_PA}, s{S_PA}, s{S_TD}")
        e(f"v_add_u32 v{V_XC[0]}, s{S_PA}, {t0}")
        e(f"v_xor_b32 v{V_XC[1]}, 64, v{V_XC[0]}"); e(f"v_add_u32 v{V_XC[1]}, {16384-1024}, v{V_XC[1]}")
        for k in range(1, 4): e(f"s_mov_b32 s{S_XT+k}, {k*32768 - (k&1)*2048}")
        xit = self.dma_items(("X", 0, 0), S_X, "X0")
        run(xit[:o.early])
        e(f"v_lshlrev_b32 v{V_L16}, 4, {lane}")
        e(f"s_lshr_b32 s{S_TA}, s{S_WAVE}, 1"); e(f"s_and_b32 s{S_TB}, s{S_WAVE}, 1")
        for k in range(1, 4): e(f"s_mov_b32 s{S_WT+k}, {(16*(k&1) + 4*(k>>1))*2048 - (k&1)*2048}")
        e(f"s_mov_b32 s{S_OUT}, s22"); e(f"s_mov_b32 s{S_OUT+1}, s23"); e(f"s_mov_b32 s{S_OUT+2}, {16384*1024*2}"); e(f"s_mov_b32 s{S_OUT+3}, 0x20000")
        e(f"s_mov_b32 s{S_WS+2}, 0x10000000"); e(f"s_mov_b32 s{S_WS+3}, 0x20000")
        e(f"s_lshl_b32 s{S_FB}, s{S_RB}, 9"); e(f"s_add_u32 s{S_FB}, s{S_FB}, {hex(FL_OFF)}")
        e(f"s_lshl_b32 s{S_WC64}, s{S_TB}, 6"); e(f"s_add_u32 s{S_PA}, s{S_BOFF}, s{S_WC64}")
        e(f"v_lshlrev_b32 {t0}, 3, {q}"); e(f"v_add_u32 v{V_B}, s{S_PA}, {t0}")
        e(f"s_lshl_b32 s{S_PA}, s{S_TA}, 8"); e(f"s_add_u32 s{S_PA}, s{S_PA}, s{S_BOFF}")
        e(f"s_lshl_b32 s{S_FV}, s{S_TB}, 16"); e(f"s_add_u32 s{S_PA}, s{S_PA}, s{S_FV}")
        if not o.wr128:
            e(f"v_lshlrev_b32 {t0}, 4, {c4}"); e(f"v_lshl_add_u32 {t0}, {q}, 6, {t0}"); e(f"v_lshl_add_u32 {t0}, {r4}, 11, {t0}")
        else:
            e(f"v_lshlrev_b32 {t0}, 2, {q1}"); e(f"v_xor_b32 {t0}, {t2}, {t0}"); e(f"v_lshlrev_b32 {t0}, 4, {t0}")
            e(f"v_lshrrev_b32 {tx}, 5, {lane}"); e(f"v_lshl_add_u32 {t0}, {tx}, 7, {t0}")
            e(f"v_and_b32 {tx}, 3, {t1}"); e(f"v_lshl_add_u32 {t0}, {tx}, 11, {t0}")
        e(f"v_add_u32 v{V_WC[0]}, s{S_PA}, {t0}")
        e(f"v_xor_b32 v{V_WC[1]}, 32, v{V_WC[0]}"); e(f"v_add_u32 v{V_WC[1]}, {16384-1024}, v{V_WC[1]}")
        e(f"v_lshrrev_b32 {t0}, 1, {m}"); e(f"v_xor_b32 {t0}, {q}, {t0}"); e(f"v_lshlrev_b32 {t0}, 4, {t0}"); e(f"v_lshl_add_u32 {t0}, {m}, 7, {t0}")
        e(f"s_lshl_b32 s{S_WR14}, s{S_TA}, 14")
        e(f"v_add_u32 v{V_XA[0]}, s{S_WR14}, {t0}"); e(f"v_xor_b32 v{V_XA[1]}, 64, v{V_XA[0]}")
        self.xa = 0
        if not o.wr128:
            e(f"v_lshlrev_b32 {t0}, 10, {q}"); e(f"v_lshl_add_u32 {t0}, {r4}, 6, {t0}"); e(f"v_lshl_add_u32 {t0}, {q1}, 5, {t0}"); e(f"v_lshl_add_u32 {t0}, {c4}, 3, {t0}")
            e(f"s_lshl_b32 s{S_PA}, s{S_TB}, 8"); e(f"s_add_u32 s{S_PA}, s{S_PA}, {SLOT}")
            e(f"v_add_u32 v{V_WA[0]}, s{S_PA}, {t0}")
        else:
            e(f"v_and_b32 {t0}, 2, {r4}"); e(f"v_or_b32 {t0}, {t0}, {q1}"); e(f"v_lshlrev_b32 {t0}, 5, {t0}"); e(f"v_xor_b32 {t0}, s{S_WC64}, {t0}")
            e(f"v_lshl_add_u32 {t0}, {q}, 10, {t0}"); e(f"v_lshl_add_u32 {t0}, {r4}, 7, {t0}"); e(f"v_lshl_add_u32 {t0}, {c4}, 3, {t0}")
            e(f"v_add_u32 v{V_WA[0]}, {SLOT}, {t0}")
        e(f"v_xor_b32 v{V_WA[1]}, 32, v{V_WA[0]}")
        self.wa = [1, 1]
        e(f"v_and_b32 {t1}, 1, {m}"); e(f"v_lshlrev_b32 {t1}, 4, {t1}"); e(f"v_mov_b32 {t2}, 0x3f80"); e(f"v_lshlrev_b32 {t1}, {t1}, {t2}")
        e(f"v_lshlrev_b32 {t2}, 3, {q}"); e(f"v_sub_u32 {t2}, {m}, {t2}"); e(f"v_ashrrev_i32 {t2}, 1, {t2}")
        misc = [f"s_mov_b32 s{S_M4}, 0x20000", f"s_mov_b32 s{S_M4+1}, 0x28000", f"s_mov_b32 s{S_M4+2}, 0x30000", f"s_mov_b32 s{S_MASK}, 0xffff0000",
                f"s_mov_b32 s{S_WL}, 0", f"s_mov_b32 s{S_Q}, 1", f"s_mov_b32 s{S_M7}, 0x38000",
                f"s_lshl_b32 s{S_FOWN}, s{S_J}, 7", f"s_add_u32 s{S_FOWN}, s{S_FOWN}, s{S_FB}", f"s_mul_i32 s{S_OADJ}, s{S_TB}, 7168",
                f"s_mov_b32 s{S_ADJ}, 8192", f"s_mov_b32 s{S_LAYER}, 0", f"s_mov_b32 s{S_CAPJ}, s{S_J}", f"s_mov_b32 s{S_LOOP}, 1",
                f"s_mov_b32 s{S_WCUR}, 0", f"s_mov_b32 s{S_LEND}, 15"]
        for h in range(2):
            for d in range(4):
                e(f"v_cmp_eq_u32 vcc, {d - 8*h}, {t2}"); e(misc.pop(0)); e(misc.pop(0))
                e(f"v_cndmask_b32 {t0}, 0, {t1}, vcc"); e(f"v_accvgpr_write_b32 a{SEL(h)+d}, {t0}")
        for d in range(3):
            if o.asc:
                e(f"s_cmp_ge_u32 {d}, s{S_J}"); e(f"s_cselect_b32 s{S_FQ+d}, {4*(d+1)}, {4*d}")
            else:
                e(f"s_add_u32 s{S_FQ+d}, s{S_J}, {d+1}"); e(f"s_and_b32 s{S_FQ+d}, s{S_FQ+d}, 3"); e(f"s_lshl_b32 s{S_FQ+d}, s{S_FQ+d}, 2")
        e(f"s_lshl_b32 s{S_PA}, s{S_WC64}, 11"); e(f"s_lshl_b32 s{S_FV}, s{S_WC64}, 8"); e(f"s_sub_u32 s{S_PA}, s{S_PA}, s{S_FV}")
        e(f"s_lshl_b32 s{S_FV}, s{S_J}, 9"); e(f"s_sub_u32 s{S_PA}, s{S_FV}, s{S_PA}")
        e(f"v_xor_b32 v{V_CPG}, s{S_WC64}, v{V_XC[0]}"); e(f"v_add_u32 v{V_CPG}, s{S_PA}, v{V_CPG}")
        e(f"s_mov_b32 s{S_XCUR}, {15*128}")
        e(f"v_lshlrev_b32 v{V_XT}, 11, {m}"); e(f"s_add_u32 s{S_XTO}, s{S_TE}, {3*128}")
        e(f"s_lshl_b32 s{S_PA}, s2, 14"); e(f"s_lshl_b32 s{S_FV}, s{S_WAVE}, 12"); e(f"s_add_u32 s{S_PA}, s{S_PA}, s{S_FV}")
        e(f"s_add_u32 s{S_PA}, s{S_PA}, 0x200000")
        e(f"v_min_u32 v{V_CPL}, 2, {c4}"); e(f"v_lshlrev_b32 v{V_CPL}, 7, v{V_CPL}")
        e(f"s_mov_b32 s{S_BOFF}, 2048")
        if o.diag:
            e(f"v_mov_b32 v{V_ST[0]}, 0"); e(f"v_mov_b32 v{V_ST[1]}, 0")
        if o.hops:
            e("s_mov_b64 exec, 0")
            for w in range(1, 4):
                e(f"s_cmp_eq_u32 s{S_WAVE}, {w}"); e(f"s_cbranch_scc1 HOP{w}")
            e("s_branch HOP0")
            self.label("HOPEND")
            e("s_mov_b64 exec, -1")
        run(xit[o.early:])
        def bl(nt): self.vm(f"buffer_load_dwordx2 {vr(V_T+2*nt if nt < 7 else V_T+22,2)}, v{V_B}, {sr(S_B,4)}, 0 offen offset:{(nt>>1)*128 + (nt&1)*32}", ("B", 0, nt))
        bl(0); bl(1)
        run(self.dma_items(("W", 0, 0), S_WR, "W"))
        for nt in range(2, 8): bl(nt)
        if o.diag: e(f"s_memtime s[{S_ST+2}:{S_ST+3}]")
        self.wait(vtags=[("B", 0, 1)])
        for x in self.bias0_ops(0) + self.bias0_ops(1): e(x)
        if o.diag:
            e("s_waitcnt lgkmcnt(0)")
            e(f"v_writelane_b32 v{V_ST[0]}, s{S_D0}, 63")
            e(f"v_writelane_b32 v{V_ST[0]}, s{S_ST}, 60"); e(f"v_writelane_b32 v{V_ST[1]}, s{S_ST+2}, 60")
            e(f"s_mov_b32 s{S_SI}, 0")

    def seg_open(self, name, vt, vforce, prev_nt, nts, X, W, half=None, reload=True, cinit=False, maxS=3, barrier=True, nextnt=None):
        o = self.opt
        dg = o.diag and not (o.diagc and name in ("G0", "G1"))
        if dg: self.stamps.append(name)
        if self.pending: self.mfma(self.pending)
        if dg: self.stamp(0)
        if barrier:
            self.wait(vtags=vt, lall=True, vforce=vforce); self.e("s_barrier")
        else:
            self.wait(ltags=[("WF", prev_nt & 1, s, u) for s in range(2) for u in range(2)])
        if dg: self.stamp(1)
        base = ([] if prev_nt is None else blk(prev_nt)) + sum((blk(nt, cinit) for nt in nts), [])
        off = 0 if prev_nt is None else 16
        self.pending = base[-1] if nts else None
        mf = base[:-1] if nts else base
        sc = Sched(len(mf), maxS)
        sc.mf = mf; sc.off = off; sc.dg = dg
        su = [(s, u) for s in range(2) for u in range(2)]
        if prev_nt is None:
            for s, u in su: self.rd_wf(nts[0], s, u, W, half)()
            for mt in range(8):
                for s in range(2): self.rd_xf(mt, s, X)()
            self.wait(ltags=[("XF", 1, 0), ("XF", 1, 1)])
        elif nts:
            if reload:
                for i in range(16):
                    mt, _, s, _ = base[i]
                    sc.put(i, "D", self.rd_xf(mt, s, X))
            for k, (s, u) in enumerate(su): sc.put(2 * k, "D", self.rd_wf(nts[0], s, u, W, half))
            sc.put(15, "S", lambda: self.wait(ltags=[("XF", 1, 0), ("XF", 1, 1)] + [("WF", nts[0] & 1, s, u) for s, u in su]))
        if reload and nts:
            for mt in (2, 4, 6):
                sc.put(off + 2 * mt - 1, "S", lambda mt=mt: self.wait(ltags=[("XF", mt + 1, 0), ("XF", mt + 1, 1)]))
        sc.blkwait = []
        seq = list(nts[1:]) + [nextnt]
        for b, nt in enumerate(seq):
            if b < len(seq) - 1:
                g = off + 16 * (b + 1) - 1
                sc.put(g, "S", lambda nt=nt: self.wait(ltags=[("WF", nt & 1, s, u) for s, u in su] + [("C",)]))
                sc.blkwait.append(g)
        if nts:
            for b, nt in enumerate(seq):
                for k, (s, u) in enumerate(su): sc.place("D", self.rd_wf(nt, s, u, W, half), off + 16 * b + 2 * k)
        return sc
    def seg_emit(self, sc, gbase=None, check=None, stamp_at=50):
        if sc.dg: sc.chain(self.stamp_items(), stamp_at)
        for g, m in enumerate(sc.mf):
            if check: check(g, m)
            self.mfma(m)
            self.merge_gap(sc, g, None if gbase is None else gbase + g)
    def xa_items(self, new, old, nx):
        def f0():
            self.e(f"v_add_u32 v{V_XA[0]}, s{S_DX}, v{V_XA[0]}"); self.xa = nx["x"]
        return [self.SU(f"s_sub_u32 s{S_DX}, s{new}, s{old}", lambda: nx.update(x=self.slot[new])),
                ("V", f0), self.V(f"v_add_u32 v{V_XA[1]}, s{S_DX}, v{V_XA[1]}")]
    def wa_sched(self, sc, new, old, g_s, g_v):
        nx = {}
        def wa(h):
            def f():
                self.e(f"v_add_u32 v{V_WA[h]}, s{S_DW}, v{V_WA[h]}"); self.wa[h] = nx["w"]
            return f
        k, f = self.SU(f"s_sub_u32 s{S_DW}, s{new}, s{old}", lambda: nx.update(w=self.slot[new]))
        sc.place(k, f, g_s, g_v - 1)
        sc.chain([("V", wa(0)), ("V", wa(1))], g_v)

    def body(self, kind, layer, t):
        o = self.opt
        X = ("X", layer, t); W = ("W", layer, t)
        first = kind == "E0"
        vt = [X, W, ("P", layer, t + 2)]
        if kind == "S1": vt.append(("B", layer, 1))
        if kind == "S2": vt.append(("B", layer, 0))
        vforce = {"G0": min(9 + (1 if o.xtouch else 0) + (1 if o.tpf & 2 else 0), 10 + (1 if o.xtouch else 0)), "G1": 8, "T14": 8}.get(kind)
        sc = self.seg_open(kind, vt, vforce, None if first else 7, list(range(7)), X, W, cinit=first,
                           maxS=1 if kind in ("T15", "H0") else 3, nextnt=7)
        n, off = sc.n, sc.off
        if kind in ("G0", "G1"):
            sc.put(n - 1, "G", lambda: None)
            sc.put(n - 2, "S", self.E(f"s_cmp_lt_u32 s{S_LOOP}, " + ("14" if kind == "G0" else f"s{S_LEND}"))); sc.closedS.add(n - 2)
        pace = 4 if first else o.pace
        gw = off + 1
        lastG = gw
        if kind == "H0":
            def xb():
                assert not any(x and x[0] == "XF" for x in self.lq)
                self.e("s_barrier")
            gb = sc.place("S", xb, off + 12)
            gw = gb + 1
        if kind == "G1":
            sc.put(0, "S", self.E(f"s_cmp_eq_u32 s{S_LOOP}, s{S_KEY}")); sc.closedS.add(0)
            sc.put(1, "S", self.E(f"s_cselect_b32 s{S_TG}, s{S_Q+1}, s{S_Q}")); sc.put(1, "S", self.E(f"s_cselect_b32 s{S_TH}, s{S_WLM}, s{S_WL}"))
            c = sc.chain(self.w_setup(S_TG, S_TH), 2)
        elif kind != "T15":
            c = sc.chain(self.w_setup(S_Q, S_WL), max(0, gw - 14))
        if kind != "T15":
            lastG = self.place_dma(sc, self.dma_items(("W", layer, t + 1), S_WR + 1, "W"), max(gw, c[-1] + 1), pace if kind != "H0" else o.paceh)
        gx = lastG + int(pace)
        if kind in ("S1", "S2", "S3", "G1"):
            if kind != "S1":
                gbr = self.poll_check(sc, kind, ("P", layer, t + 2), off + 8)
                assert gbr < lastG - 1
            c = sc.chain([self.S(f"s_lshr_b32 s{S_PA}, s{S_Q+2}, 2"), self.S(f"s_lshl_b32 s{S_PA}, s{S_PA}, 7"),
                          self.S(f"s_add_u32 s{S_PA}, s{S_PA}, s{S_FB}")], lastG - 1)
            k, f = self.VM(f"buffer_load_dword v{V_POLL}, off, {sr(S_WS,4)}, s{S_PA} sc1", ("P", layer, t + 3))
            gp = sc.place(k, f, max(c[-1], lastG) + 2)
            gx = max(gx, gp + 2); lastG = gp
        xadv = [self.V(f"v_add_u32 v{V_XC[i]}, 128, v{V_XC[i]}") for i in range(2)]
        if first:
            sc.chain(xadv, 4)
            lastG = self.place_dma(sc, self.dma_items(("X", 0, 1), S_X + 1, "X0"), gx, pace)
            c = sc.chain(xadv, lastG + 1)
            lastG = self.place_dma(sc, self.dma_items(("X", 0, 2), S_X + 2, "X0"), max(lastG + pace, c[-1] + 1), pace)
        if kind == "G0":
            ww = [self.VM(f"buffer_load_dword v{V_POLL}, v{V_CPL}, {sr(S_W,4)}, s{S_PA} offen", "PW"), self.S(f"s_add_u32 s{S_PA}, s{S_PA}, 384")]
            if not o.xtouch: sc.chain(ww, lastG + 3)
            sc.chain(xadv, off + 20)
            lastG = self.place_dma(sc, self.dma_items(("X", layer, t + 2), S_X + 2, "X0"), gx, o.pacex)
            if o.xtouch: lastG = sc.chain(ww, lastG + 3)[0]
        if kind in ("E0", "G0") and o.xtouch:
            sc.chain([self.VM(f"buffer_load_dword v{V_POLL}, v{V_XT}, {sr(S_X0,4)}, s{S_XTO} offen nt", "PW"),
                      self.S(f"s_add_u32 s{S_XTO}, s{S_XTO}, 128")], lastG + 3)
        if kind == "G0" and o.tpf & 2:
            sc.chain([self.VM(f"global_load_dword v{V_POLL}, v31, s[{S_PC}:{S_PC+1}]", "PW")], lastG + 6)
        if kind == "S1" and o.tpf & 1:
            sc.chain([self.S(f"s_lshr_b32 s{S_TE}, s2, 3"), self.S(f"s_lshl_b32 s{S_TE}, s{S_TE}, 9"), self.S(f"s_lshl_b32 s{S_TF}, s{S_WAVE}, 7"),
                      self.S(f"s_add_u32 s{S_TE}, s{S_TE}, s{S_TF}"), self.S(f"s_add_u32 s{S_TE}, s{S_TE}, L_TAIL-L_pc"),
                      self.S(f"s_min_u32 s{S_TE}, s{S_TE}, L_codeend-L_pc-4"), self.V(f"v_mov_b32 v{V_FLAG}, s{S_TE}"),
                      self.VM(f"global_load_dword v{V_FLAG}, v{V_FLAG}, s[{S_PC}:{S_PC+1}]", "PW")], off + 4, lastG - 1)
        if kind in ("S2", "S3", "G1"):
            c = sc.chain(self.x_setup(S_Q + 1), 8, off - 1)
            assert c[-1] < gx
            lastG = self.place_dma(sc, self.dma_items(("X", layer, t + 2), S_X + 2, "XE"), gx, o.pacex)
        if kind == "T14":
            it = [self.S(f"s_mov_b32 s{S_WT+k}, {k*16384 - (k&1)*2048}") for k in range(1, 4)]
            it += [self.S(f"s_add_u32 s{S_WL}, s{S_WL}, 0x200000"), self.S(f"s_lshl_b32 s{S_Q}, s{S_J}, 2"),
                   self.V(f"v_subrev_u32 v{V_WC[1]}, s{S_ADJ}, v{V_WC[1]}"), self.S(f"s_mov_b32 s{S_ADJ}, 0")]
            it += self.w_setup(S_Q, S_WL)
            c = sc.chain(it, lastG + 1)
            lastG = self.place_dma(sc, self.dma_items(("W", layer + 1, 0), S_X + 2, "W"), max(gx, c[-1] + 1), pace - 1)
        if kind == "T15":
            sc.put(0, "S", self.E(f"s_cmp_eq_u32 s{S_LAYER}, 0")); sc.closedS.add(0)
            sc.put(1, "S", self.E(f"s_cselect_b64 s[{S_X0}:{S_X0+1}], s[{S_OUT}:{S_OUT+1}], s[{S_WS}:{S_WS+1}]"))
            sc.chain([self.S(f"s_lshl_b32 s{S_TD}, s{S_LAYER}, 2"), self.S(f"s_add_u32 s{S_NEED}, s{S_NEED}, s{S_TD}"),
                      self.S(f"s_mov_b32 s{S_FV}, s{S_NEED}"),
                      self.S(f"s_lshr_b32 s{S_TD}, s{S_WAVE}, 1"), self.S(f"s_mul_i32 s{S_TD}, s{S_TD}, s{S_LAYER}"), self.S(f"s_mul_i32 s{S_KEY}, s{S_TD}, 12"),
                      self.S(f"s_sub_u32 s{S_WLM}, s{S_WL}, 256"), self.S(f"s_sub_u32 s{S_LEND}, s{S_LEND}, 1"),
                      self.S(f"s_add_u32 s{S_LAYER}, s{S_LAYER}, 1")], 2, 30)
        if first:
            sc.chain([self.V(f"v_lshlrev_b32 v{V_FLAG}, 3, v{V_L16}"), self.V(f"v_and_b32 v{V_FLAG}, 0x180, v{V_FLAG}"),
                      self.VM(f"buffer_load_dword v{V_POLL}, v{V_FLAG}, {sr(S_WS,4)}, s{S_FB} offen sc1", "PW")], 68)
            sc.chain([self.S(f"s_add_u32 s{S_NEED}, s{S_EP}, 1"), self.S(f"s_mov_b32 s{S_FV}, s{S_EP}")] + self.flag_items(), 98)
        if kind == "H0":
            def fb():
                self.wait(vtags=[("S", layer, 0)]); self.e("s_barrier")
            g = sc.place("G", fb, off + o.flag0)
            sc.chain(self.flag_items(), g + 1)
        if kind == "S3":
            assert ("S", layer, 1) not in self.vq
            sc.chain(self.flag_items(), off + 3)
        if kind == "G1":
            assert ("S", layer, min(t - 2, 3)) not in self.vq
            sc.chain(self.flag_items() + [self.S(f"s_sub_u32 s{S_TF}, s{S_FV}, s{S_NEED}"), self.S(f"s_min_u32 s{S_TF}, s{S_TF}, 3"),
                                          self.S(f"s_add_u32 s{S_FV}, s{S_TF}, s{S_NEED}")], off + 3)
        CT = V_T + 12
        if kind in ("S1", "S2", "S3"):
            jobs = [mt for mt in range(8) if not self.is_direct(t, mt)]
            def chk(): assert self.lds_own[self.slot[S_X]] == ("X", layer, t)
            c = sc.chain([self.SU(f"s_sub_u32 s{S_E0}, s{S_X}, s{S_OADJ}", chk), self.V(f"v_add_u32 v{V_CPL}, s{S_E0}, v{V_L16}")], 8)
            gprev = c[-1]
            w0 = int(o.cpos[t - 1])
            assert w0 + len(jobs) <= 6
            for k, mt in enumerate(jobs):
                w = sc.blkwait[k + w0]
                sc.place("D", lambda mt=mt: self.lds(f"ds_read_b128 {vr(CT,4)}, v{V_CPL} offset:{mt*2048}", ("C",)), max(gprev + 1, w - 9), w - 1)
                def st(mt=mt):
                    assert ("C",) not in self.lq
                    so, im = mt_off(mt)
                    self.vm(f"buffer_store_dwordx4 {vr(CT,4)}, v{V_CPG}, {sr(S_X0,4)}, {so} offen offset:{im + t*128} sc1", ("S", layer, t))
                gprev = sc.place("G", st, w + 1)
        gcap = 0
        if kind in ("E0", "G0", "T14", "T15"):
            cap, bk = f"CAP_{kind}", f"CB_{kind}"
            def br():
                self.e(f"s_cbranch_scc1 {cap}"); self.label(bk)
            def blkc(p):
                return [f"v_xor_b32 v{V_FLAG}, s{S_WC64}, v{V_XA[0]}"] + [f"ds_read_b128 {ar(X0(p,mt),4)}, v{V_FLAG} offset:{mt*2048}" for mt in range(8)] + [f"s_branch {bk}"]
            if kind == "G0":
                c = sc.chain([self.S(f"s_lshr_b32 s{S_TC}, s{S_LOOP}, 2")], off + 16)
                gcap = sc.branch(self.E(f"s_cmp_eq_u32 s{S_TC}, s{S_CAPJ}"), br, c[-1])
                b = [f"{cap}:", f"s_and_b32 s{S_TC}, s{S_LOOP}, 3"]
                for p in range(1, 4): b += [f"s_cmp_eq_u32 s{S_TC}, {p}", f"s_cbranch_scc1 {cap}{p}"]
                b += blkc(0)
                for p in range(1, 4): b += [f"{cap}{p}:"] + blkc(p)
                self.ool[cap] = b
            else:
                gcap = sc.branch(self.E(f"s_cmp_eq_u32 s{S_CAPJ}, {t >> 2}"), br, off + (12 if kind == "T15" else 16))
                self.ool[cap] = [f"{cap}:"] + blkc(t & 3)
        gXA = max(gcap + 1, off + 2)
        nx = {}
        if kind == "T15":
            def f0():
                self.e(f"v_add_u32 v{V_XA[0]}, s{S_TA}, v{V_L16}"); self.xa = nx["x"]
            sc.chain([self.S(f"s_lshl_b32 s{S_TA}, s{S_WC64}, 7"),
                      self.SU(f"s_sub_u32 s{S_TA}, s{S_X+2}, s{S_TA}", lambda: nx.update(x=self.slot[S_X + 2])),
                      ("V", f0), self.V(f"v_add_u32 v{V_XA[1]}, 1024, v{V_XA[0]}"), self.S(f"s_mov_b32 s{S_CAPJ}, 77")], gXA)
            wnext = S_X + 1
        else:
            sc.chain(self.xa_items(S_X + 1, S_X, nx), gXA)
            wnext = S_WR + 1
        self.wa_sched(sc, wnext, S_WR, gXA, off + 16 * 6 + 8)
        def bload(nt):
            return lambda: self.vm(f"buffer_load_dwordx2 {vr(self.braw(nt),2)}, v{V_B}, {sr(S_B,4)}, s{S_BOFF} offen offset:{(nt>>1)*128 + (nt&1)*32}", ("B", layer, nt // 6))
        if kind == "H0":
            g = gb - 8
            for nt in (6, 7): g = sc.place("G", bload(nt), g) + 1
            assert g < lastG
        if kind == "S1":
            g = off + 3
            for nt in range(6): g = sc.place("G", bload(nt), g) + 4
        if kind in ("S1", "S2", "S3", "T14"):
            g = 8 if kind == "S1" else 0
            for nt in {"S1": [6], "S2": [4, 5, 0], "S3": [3, 1, 2], "T14": [7]}[kind]:
                b0 = 0 if nt == 7 else off + 16 * nt
                g = self.bias_sched(sc, nt, g, (b0, b0 + 16))
            if kind == "S3": sc.place("S", self.E(f"s_add_u32 s{S_BOFF}, s{S_BOFF}, 2048"), 4)
        if first:
            ops = []
            for mt in range(8): ops += [f"v_accvgpr_write_b32 a{ACC(mt,7)[1]+i}, 1.0" for i in range(4)]
            g = sc.place("S", lambda: self.wait(vtags=[("B", 0, 7)]), 16) + 1
            sc.chain([self.V(x) for x in ops[:14]], 0)
            for nt in range(2, 7):
                g = sc.chain([self.V(x) for x in self.bias0_ops(nt)], g, 16 * nt - 2)[-1]
            ops = ops[14:]
            for mt in range(2): ops += [f"v_accvgpr_write_b32 a{ACC(mt,6)[1]+i}, v{ACC(7,6)[1]+i}" for i in range(4)]
            sc.chain([self.V(x) for x in ops], g, 96 - 2)
        self.slot[S_TR] = None
        if kind == "T15":
            rot = [self.smov(S_O2, S_X), self.smov(S_O3, S_WR), self.smov(S_WR, S_X + 1), self.smov(S_X + 1, S_WR + 1),
                   self.smov(S_X, S_X + 2), self.smov(S_WR + 1, S_X + 2)]
        elif kind == "H0":
            rot = [self.smov(S_X, S_X + 1), self.smov(S_X + 1, S_O2), self.smov(S_X + 2, S_O3),
                   self.smov(S_TR, S_WR), self.smov(S_WR, S_WR + 1), self.smov(S_WR + 1, S_TR)]
        else:
            rot = [self.smov(S_TR, S_X), self.smov(S_X, S_X + 1), self.smov(S_X + 1, S_X + 2), self.smov(S_X + 2, S_TR),
                   self.smov(S_TR, S_WR), self.smov(S_WR, S_WR + 1), self.smov(S_WR + 1, S_TR)]
        q = []
        if kind in ("E0", "G0", "T15", "H0"): q = [self.S(f"s_add_u32 s{S_Q}, s{S_Q}, 1")]
        if kind == "H0": q += [self.S(f"s_add_u32 s{S_Q+1}, s{S_Q}, 1"), self.S(f"s_mov_b32 s{S_Q+2}, s{S_FQ}")]
        if kind in ("S1", "S2"):
            q = [self.S(f"s_mov_b32 s{S_Q}, s{S_Q+1}"), self.S(f"s_mov_b32 s{S_Q+1}, s{S_Q+2}"), self.S(f"s_mov_b32 s{S_Q+2}, s{S_FQ+t}")]
        if kind in ("S3", "G1"):
            q = [self.S(f"s_add_u32 s{S_TE}, s{S_Q}, 1"), self.S(f"s_mov_b32 s{S_Q}, s{S_Q+1}"), self.S(f"s_mov_b32 s{S_Q+1}, s{S_Q+2}"),
                 self.S(f"s_mov_b32 s{S_Q+2}, s{S_TE}")]
        if kind == "S3": q += [self.S(f"s_mov_b32 s{S_LOOP}, 4")]
        sc.chain(q, max(gx, off + 60))
        if kind in ("G0", "G1"): rot += [self.S(f"s_add_u32 s{S_LOOP}, s{S_LOOP}, 1")]
        sc.chain(rot, max(sc.last_su(), 108 if kind in ("T15", "H0") else 0))
        if kind == "T15": self.make_stream(layer + 1)
        def check(g, m):
            if kind == "H0" and g >= off: assert (m[1] >> 1) * 8 + m[0] in self.epi_done, ("deadline", m)
        self.xr = o.xr15 if kind == "T15" else o.xr0
        self.seg_emit(sc, {"T15": 0, "H0": 128}.get(kind), check, 86 if first else off + 50)
        if kind == "T15": assert all(f in self.wr_done for f in range(8))
        if kind == "H0": assert not self.stream, "stream left"

    def is_direct(self, p, mt):
        n = int(self.opt.direct[p])
        return ((mt + 1) * n) // 8 != (mt * n) // 8
    def make_stream(self, nl):
        st = []
        self.epi_done = set(); self.wr_done = set()
        tbf = lambda f: V_T + 8 * (f % 2)
        U = lambda f, h: ("U", ("U", f // 8, f % 8, h, tbf(f)))
        self.stream = [U(f, h) + (30,) for f in range(2) for h in range(2)]
        self.credit = 0.0
        for f in range(32):
            p, mt = f // 8, f % 8
            tb = tbf(f)
            pos = 38 + 32 * p + 2 * mt
            sreg = {0: S_X + 2, 1: S_WR + 1, 2: S_O2, 3: S_O3}[p]
            ops = self.epi_valu(p, mt, tb, V_T + 16, tb)
            it = []
            for k, x in enumerate(ops):
                kd = "V" if (k < 4 or f == 31) else "A"
                if k == len(ops) - 5: it.append((kd, lambda x=x, f=f: (self.e(x), self.epi_done.add(f)), pos))
                else: it.append((kd, self.E(x), pos))
            if p >= 2: pos = max(pos, 129)
            if mt == 0:
                def f0(p=p, sreg=sreg):
                    self.lds_own[self.slot[sreg]] = ("X", nl, p)
                    self.e(f"s_sub_u32 s{S_E0}, s{sreg}, s{S_OADJ}")
                a = [("S", f0, pos), ("A", self.E(f"v_add_u32 v{V_CPL}, s{S_E0}, v{V_L16}"), pos)]
                it = it[:6] + a + it[6:] if p != 2 else it + a
            if self.is_direct(p, mt):
                so, im = mt_off(mt)
                it += [("R", lambda p=p, im=im, tb=tb, so=so: self.vm(f"buffer_store_dwordx4 {vr(tb,4)}, v{V_CPG}, {sr(S_X0,4)}, {so} offen offset:{im + p*128} sc1", ("S", nl, p)), pos)]
            if f + 2 < 32: it += [U(f + 2, 1) + (pos,)]
            it += [("X", lambda f=f, mt=mt, tb=tb: (self.lds(f"ds_write_b128 v{V_CPL}, {vr(tb,4)} offset:{mt*2048}", ("O",)), self.wr_done.add(f)), pos)]
            if f + 2 < 32: it += [U(f + 2, 0) + (pos,)]
            self.stream += it

    def merge_gap(self, sc, g, gpos):
        fixed = sc.g[g]
        self.gnow = gpos
        while True:
            cur = list(fixed)
            excl = any(k == "G" for k, _ in cur)
            hasR = False
            newgap = None
            top = -1
            if gpos is not None: self.credit = min(self.credit + self.xr, 2.0)
            def cnt(): return sum(k in "DV" for k, _ in cur), sum(getattr(f, "w", 1) for k, f in cur)
            def free():
                nvec, tot = cnt()
                if hasR: return nvec < 2
                return not excl and nvec < 2 and tot < 3
            def lookahead():
                i = 0
                while i < len(self.stream) and self.stream[i][0] in "RUX": i += 1
                while i < len(self.stream) and self.stream[i][0] == "V" and self.stream[i][2] <= gpos + 1 and free():
                    cur.append(("V", self.stream.pop(i)[1]))
            if gpos is not None and fixed is sc.g[g] and not (self.stream and getattr(self.stream[0][1], "pub", False)):
                while self.stream2 and self.stream2[0][2] <= gpos + 1:
                    k, fn, pos = self.stream2[0]
                    st = fn.ready(gpos)
                    if st == "skip": self.stream2.pop(0); continue
                    if st:
                        grp = [self.stream2.pop(0)]
                        if k == "S": grp.append(self.stream2.pop(0))
                        self.stream[0:0] = grp
                    break
            while gpos is not None and self.stream:
                k, fn, pos = self.stream[0]
                if pos > gpos + 1:
                    break
                if k == "U" and len(self.stream) > 1 and hasattr(self.stream[1][1], "ok") and not self.stream[1][1].ok():
                    lookahead(); break
                if k == "U":
                    lookahead()
                    newgap = fn; self.stream.pop(0); break
                if k == "X":
                    nxt = [kk for gg in (g + 1, g + 2) if gg < sc.n for kk, _ in sc.g[gg]]
                    follow_u = len(self.stream) > 1 and self.stream[1][0] == "U"
                    if any(kk != "S" for kk, _ in cur) or (not follow_u and "D" in nxt and fixed is sc.g[g]):
                        lookahead(); break
                    cur.append(("G", fn)); excl = True; self.stream.pop(0); continue
                if k == "R":
                    if excl or top > 0:
                        lookahead(); break
                    cur.append(("G", fn)); excl = True; hasR = True; top = 1; self.stream.pop(0); continue
                if k in "SZ":
                    w = 2 if k == "Z" else 1
                    if excl or top > 0 or (g in sc.closedS and fixed is sc.g[g]) or cnt()[1] + w > 3: break
                    fn.w = w
                    cur.append(("S", fn)); top = 0; self.stream.pop(0); continue
                if k == "D":
                    if top > 2 or not free(): break
                    cur.append(("D", fn)); top = 2; self.stream.pop(0); continue
                ok = free()
                if not ok and not excl and self.credit >= 1.0 and cnt()[0] < 3 and cnt()[1] < 4:
                    self.credit -= 1.0; ok = True
                if not ok: break
                cur.append(("V", fn)); top = 3; self.stream.pop(0)
            ks = [k for k, _ in cur]
            if ks.count("D") == 2 and "S" not in ks and "G" not in ks: cur.append(("S", self.E("s_nop 0")))
            for k, fn in sorted(cur, key=lambda x: RANK[x[0]]): fn()
            if newgap is None: return
            self.mfma(newgap)
            fixed = []

    def tail(self):
        e = self.e; o = self.opt
        L = 2
        VW, VR = V_POLL, V_CPL
        CT = V_T + 20; AT = V_T + 16
        tbf = lambda f: V_T + 8 * (f % 2)
        U = lambda f, h: ("U", ("U", f // 8, f % 8, h, tbf(f)))
        depth = lambda f: 4 if f < 8 else 8
        unit = lambda f: (f % depth(f)) * 4096
        area = {0: (S_WR, 0), 1: (S_X + 1, 0), 2: (S_X, 0), 3: (S_X + 1, 0)}
        def rdback(f, p, r, k):
            assert f in self.visible and self.ra == f // 8
            self.lds(f"ds_read_b64 {vr(r+2*k,2,p)}, v{VR} offset:{unit(f) + 256*k}", ("C", f))
        def store(f, dst):
            assert ("C", f) not in self.lq
            so, im = mt_off(f % 8)
            self.vm(f"buffer_store_dwordx4 {dst}, v{V_CPG}, {sr(S_OUT,4)}, {so} offen offset:{im + (f//8)*128} {o.outf}", "SO")
            self.stored.add(f)
        def wr_ok(f):
            prev = {0: f - 4, 1: -1, 2: -1, 3: f - 16}[f // 8]
            return (prev < 0 or prev in self.freed) and (f // 8) in self.area_free
        def wr(f):
            assert wr_ok(f) and self.wa_ == f // 8
            self.lds(f"ds_write_b128 v{VW}, {vr(tbf(f),4)} offset:{unit(f)}", ("Y", f))
            self.written.add(f); self.wpos = self.gnow
        self.written = set(); self.visible = set(); self.freed = set(); self.rd_at = {}
        self.lds_half = {}; self.landed = set(); self.area_free = set(); self.area_next = set()
        self.wpos = 0; self.ra = 0; self.wa_ = 0
        def at_barrier():
            self.visible |= {f for f in self.written if ("Y", f) not in self.lq}
            self.freed |= {f for f in self.rd_at if ("C", f) not in self.lq}
            self.landed |= {v for v in self.lds_half.values() if v not in self.vq}
            if not any(x and x[0] == "XF" for x in self.lq): self.area_free |= self.area_next
        def bar(vtags=()):
            self.wait(vtags=vtags, ltags=[("Y", x) for x in self.written]); e("s_barrier"); at_barrier()
        def switch(reg, p, attr):
            t = S_TC if attr == "ra" else S_TD
            def f():
                e(f"v_add_u32 v{reg}, s{t}, v{reg}"); setattr(self, attr, p)
            return [("S", self.E(f"s_sub_u32 s{t}, s{area[p][0]}, s{area[p-1][0]}")), ("A", f)]
        def half_dma(tile, H, tidreg, sreg, half):
            what = ("W", L, tile, H)
            it = [self.S(f"s_add_u32 s{S_TH}, s{S_WLM}, {H*256}")] + self.w_setup(tidreg, S_TH)
            d = [self.SU(f"s_add_u32 m0, s{sreg}, s{S_O2+half}", lambda: self.lds_half.__setitem__((self.slot[sreg], half), what))]
            for i in range(4):
                so = "0" if i < 2 else f"s{S_WT+1}"
                d.append(self.VM(f"buffer_load_dwordx4 v{V_WC[i&1]}, {sr(S_W,4)}, {so} offen" + (f" offset:{i*1024}" if i else "") + " lds", what))
            return it, d
        W13, W14, W15 = ("W", L, 13), ("W", L, 14), ("W", L, 15)
        X13, X14, X15 = ("X", L, 13), ("X", L, 14), ("X", L, 15)
        self.lds_half[(self.slot[S_WR], 0)] = W13 + (0,); self.lds_half[(self.slot[S_WR], 1)] = W14 + (0,)
        sc = self.seg_open("A13", [X13, W13, ("P", L, 15)], 8, 7, [0, 1, 2], X13, W13, half=0, nextnt=3); at_barrier()
        gbr = self.poll_check(sc, "A13", ("P", L, 15), 0)
        sc.chain(self.x_setup(S_Q + 1), 3, 15)
        c = sc.chain([self.S(f"s_lshl_b32 s{S_TA}, s{S_WAVE}, 15"), self.S(f"s_lshl_b32 s{S_TB}, s{S_WC64}, 10"), self.S(f"s_sub_u32 s{S_TA}, s{S_TA}, s{S_TB}"),
                      self.S(f"s_lshr_b32 s{S_TB}, s{S_WR14}, 6"), self.S(f"s_sub_u32 s{S_TA}, s{S_TA}, s{S_TB}"), self.S(f"s_add_u32 s{S_WLM}, s{S_WL}, s{S_TA}"),
                      self.S(f"s_lshl_b32 s{S_TA}, s{S_WAVE}, 12"), self.S(f"s_sub_u32 s{S_O2}, 0, s{S_TA}"), self.S(f"s_add_u32 s{S_O3}, s{S_O2}, 0x4000"),
                      self.S(f"s_sub_u32 s{S_Q+2}, s{S_Q+2}, 1")], 5)
        it, d = half_dma(15, 0, S_Q + 1, S_WR + 1, 0)
        c = sc.chain(it, c[-1])
        lastG = self.place_dma(sc, d, max(gbr + 1, c[-1] + 1), o.pacet)
        lastG = self.place_dma(sc, self.dma_items(X15, S_X + 2, "XE"), lastG + 3, o.pacet)
        nx = {}
        sc.chain(self.xa_items(S_X + 1, S_X, nx), 18)
        a, b, c_, d_ = [f"v{V_T+i}" for i in range(4)]
        r7 = self.braw(7)
        adr = [f"v_lshrrev_b32 {a}, 9, v{V_L16}", f"v_lshlrev_b32 {a}, 6, {a}", f"v_add_u32 {a}, {a}, v{V_L16}", f"v_add_u32 {a}, s{S_KEY}, {a}",
               f"v_and_b32 {a}, 0xf0, {a}", f"v_and_b32 {b}, 0x300, v{V_L16}", f"v_add3_u32 v{VW}, {a}, {b}, s{S_E0}",
               f"v_and_b32 {c_}, 0x70, v{V_CPG}",
               f"v_lshrrev_b32 {a}, 3, v{V_L16}", f"v_and_b32 {a}, 0x70, {a}", f"v_add_u32 {a}, s{S_KEY}, {a}",
               f"v_and_b32 {b}, 64, {c_}", f"v_lshl_add_u32 {a}, {b}, 1, {a}", f"v_and_b32 {d_}, 16, {c_}", f"v_lshl_add_u32 {a}, {d_}, 2, {a}",
               f"v_and_b32 {a}, 0xf0, {a}", f"v_lshl_add_u32 {a}, {b}, 4, {a}", f"v_lshl_add_u32 {a}, {d_}, 5, {a}",
               f"v_bfe_u32 {b}, {c_}, 5, 1", f"v_lshl_add_u32 {a}, {b}, 3, {a}", f"v_add_u32 v{VR}, s{S_TF}, {a}"]
        sc.chain([self.S(f"s_lshl_b32 s{S_KEY}, s{S_WC64}, 1"), self.S(f"s_mul_i32 s{S_E0}, s{S_WAVE}, 7168"), self.SU(f"s_sub_u32 s{S_E0}, s{S_WR}, s{S_E0}"),
                  self.S(f"s_lshl_b32 s{S_TF}, s{S_WC64}, 4"), self.S(f"s_sub_u32 s{S_TF}, s{S_E0}, s{S_TF}")], 20, 36)
        self.stream = [self.V(x) + (40,) for x in adr]
        self.stream += [self.V(f"v_mov_b32 v{V_XC[i]}, v{r7+i}") + (64,) for i in range(2)]
        self.credit = 0.0; self.xr = 0.0
        E0 = [134, 230, 326, 390]
        ear = lambda f: E0[f // 8] + 2 * (f % 8)
        self.stream += [U(f, h) + (126,) for f in range(2) for h in range(2)]
        nf = o.nft
        for f in range(nf):
            pos = ear(f)
            it = [("V" if k < 4 else "A", self.E(x)) for k, x in enumerate(self.epi_valu(f // 8, f % 8, tbf(f), None, tbf(f)))]
            if f % 8 == 0 and f: it = it[:6] + switch(VW, f // 8, "wa_") + it[6:]
            w0 = lambda f=f: wr(f)
            w0.ok = lambda f=f: wr_ok(f)
            it += [U(f + 2, 1), ("X", w0), U(f + 2, 0)]
            self.stream += [x + (pos,) for x in it]
        def pub(f, pos):
            def z():
                bar(); assert f in self.visible
            z.ready = lambda g: "skip" if f in self.visible else (f in self.written and g >= self.wpos + 3)
            def r0(): rdback(f, "v", CT, 0)
            def r1(): rdback(f, "v", CT, 1); self.rd_at[f] = self.gnow
            r0.ready = r1.ready = lambda g: g >= self.wpos + 2
            def wt(): self.wait(ltags=[("C", f)])
            wt.ready = lambda g: f in self.rd_at and g >= self.rd_at[f] + 5
            def st(): store(f, vr(CT, 4))
            it = []
            if f % 8 == 0 and f:
                it = switch(VR, f // 8, "ra"); it[0][1].ready = lambda g: True
            it += [("Z", z), ("D", r0), ("D", r1), ("S", wt), ("R", st)]
            for k, x in it: x.pub = True
            return [x + (pos,) for x in it]
        self.stream2 = []
        for f in range(nf): self.stream2 += pub(f, E0[f // 8] + (o.spo + o.sp * (f % 8) if f < 16 else o.spo2 + o.sp2 * (f % 8)))
        self.seg_emit(sc, 0, stamp_at=58)
        self.area_next = {0}
        sc = self.seg_open("C14", [X14], None, 3, [0], X14, W14, half=1, nextnt=1); at_barrier()
        it, d = half_dma(15, 1, S_Q + 1, S_WR + 1, 1)
        c = sc.chain(it, 1)
        self.place_dma(sc, d, 17, 3)
        sc.chain(self.xa_items(S_X + 2, S_X + 1, nx), 16)
        self.wa_sched(sc, S_WR + 1, S_WR, 8, 24)
        self.seg_emit(sc, 64, stamp_at=28)
        sc = self.seg_open("F15", [X15, W15 + (0,)], None, 1, [0, 1, 2, 3, 4], X15, W15, half=lambda nt: nt >> 2, nextnt=5, maxS=1); at_barrier()
        it, d = half_dma(14, 1, S_Q, S_WR + 1, 0)
        c = sc.chain(it, 1)
        sc.g[63].append(("S", lambda: bar([W15 + (1,)])))
        self.place_dma(sc, d, 65, 4)
        sc.chain(self.xa_items(S_X + 1, S_X + 2, nx), 18)
        self.wa_sched(sc, S_WR, S_WR + 1, 20, 16 + 64 + 8)
        self.seg_emit(sc, 96, stamp_at=24)
        sc = self.seg_open("D14", [], None, 5, [2, 3, 4, 5, 6], X14, W14, half=lambda nt: 1 - (nt >> 2), nextnt=7, maxS=1, barrier=False)
        it, d = half_dma(13, 1, S_Q + 2, S_WR, 1)
        c = sc.chain(it, 1)
        def b3():
            self.area_next = {1, 3}; bar([W14 + (1,)])
        sc.g[31].append(("S", b3))
        self.place_dma(sc, d, 33, 4)
        sc.chain(self.xa_items(S_X, S_X + 1, nx), 18)
        self.wa_sched(sc, S_WR + 1, S_WR, 10, 24)
        self.wa_sched(sc, S_WR, S_WR + 1, 50, 16 + 64 + 8)
        self.seg_emit(sc, 192, stamp_at=26)
        sc = self.seg_open("B13", [W13 + (1,)], None, 7, [4, 5, 6], X13, W13, half=1, nextnt=7, maxS=1); at_barrier()
        def b4():
            self.area_next = {2}; bar()
        sc.g[31].append(("S", b4))
        sc.chain(self.xa_items(S_X + 2, S_X, nx), 18)
        self.wa_sched(sc, S_WR + 1, S_WR, 20, 16 + 32 + 8)
        self.seg_emit(sc, 288, stamp_at=24)
        sc = self.seg_open("E15", [], None, 7, [6], X15, W15, half=1, nextnt=7, maxS=1, barrier=False)
        self.seg_emit(sc, 352, stamp_at=24)
        sc = self.seg_open("FIN", [], None, 7, [], None, None, barrier=False, maxS=1)
        self.seg_emit(sc, 384, stamp_at=8)
        for k, fn, pos in self.stream:
            if k == "U": self.mfma(fn)
            else: fn()
        self.stream = []
        while self.stream2 and self.stream2[0][0] in "DSR" and not (self.stream2[0][0] == "S" and self.stream2[1][0] == "A"):
            self.stream2.pop(0)[1]()
        self.stream2 = []
        e("s_nop 7")
        todo = []
        dreg = lambda x: XF(x % 8, (x // 8) & 1)
        def publish():
            bar()
            for x in sorted(self.visible):
                if x not in self.rd_at:
                    if x // 8 != self.ra:
                        for k, fn in switch(VR, x // 8, "ra"): fn()
                    rdback(x, "a", dreg(x), 0); rdback(x, "a", dreg(x), 1); self.rd_at[x] = 0; todo.append(x)
        def drain(n):
            for _ in range(n):
                if todo:
                    x = todo.pop(0); self.wait(ltags=[("C", x)]); store(x, ar(dreg(x), 4))
        assert nf <= 24
        B7 = [V_WC[0], V_XC[0], V_WC[1], V_XC[1]]
        e(f"v_lshlrev_b32 v{B7[0]}, 16, v{B7[1]}"); e(f"v_and_b32 v{B7[1]}, s{S_MASK}, v{B7[1]}")
        e(f"v_lshlrev_b32 v{B7[2]}, 16, v{B7[3]}"); e(f"v_and_b32 v{B7[3]}, s{S_MASK}, v{B7[3]}")
        if self.written - set(self.rd_at): publish()
        for f in range(nf, 32):
            p, mt = f // 8, f % 8
            tb = tbf(f)
            if mt == 0:
                for k, fn in switch(VW, p, "wa_"): fn()
            for h in (1, 0):
                pf, r = ACC(mt, 2 * p + h)
                if pf == "a":
                    for i in range(4): e(f"v_accvgpr_read_b32 v{AT+i}, a{r+i}")
                    if h == 1:
                        for i in range(4): e(f"v_add_f32 v{AT+i}, v{AT+i}, v{B7[i]}")
                    r = AT
                for d2 in range(2): e(f"v_pk_mul_f32 {vr(tb+4*h+2*d2,2)}, {vr(tb+4*h+2*d2,2)}, {vr(r+2*d2,2)}")
            for d2 in range(4): e(f"v_cvt_pk_bf16_f32 v{tb+d2}, v{tb+2*d2}, v{tb+2*d2+1}")
            if f + 2 < 32: self.mfma(U(f + 2, 1)[1])
            wr(f)
            if f + 2 < 32: self.mfma(U(f + 2, 0)[1])
            drain(o.fdrain)
            if (f - nf) % o.fgrp == o.fgrp - 1 or f == 31: publish()
        drain(32)
        assert self.stored == set(range(32))
        e(f"s_or_b32 s{S_TA}, s{S_J}, s{S_WAVE}"); e(f"s_cmp_lg_u32 s{S_TA}, 0"); e("s_cbranch_scc1 L_fin")
        e(f"s_add_u32 s{S_TA}, s{S_EP}, 16"); e(f"v_mov_b32 v{V_FLAG}, s{S_TA}")
        e(f"buffer_store_dword v{V_FLAG}, off, {sr(S_WS,4)}, s{S_EPOFF} sc1")
        self.label("L_fin")
        if o.diag:
            e(f"s_memtime s[{S_ST}:{S_ST+1}]"); e("s_waitcnt vmcnt(0)"); e(f"s_memtime s[{S_ST+2}:{S_ST+3}]")
            e(f"s_memrealtime s[{S_RT+2}:{S_RT+3}]"); e("s_waitcnt lgkmcnt(0)")
            e(f"v_writelane_b32 v{V_ST[0]}, s{S_ST}, 62"); e(f"v_writelane_b32 v{V_ST[1]}, s{S_ST+2}, 62")
            e(f"v_writelane_b32 v{V_ST[0]}, s{S_RT}, 61"); e(f"v_writelane_b32 v{V_ST[1]}, s{S_RT+2}, 61")
            e(f"s_lshl_b32 s{S_TA}, s2, 2"); e(f"s_add_u32 s{S_TA}, s{S_TA}, s{S_WAVE}"); e(f"s_lshl_b32 s{S_TA}, s{S_TA}, 9")
            e(f"s_add_u32 s{S_TA}, s{S_TA}, {hex(ST_OFF)}"); e("v_lshrrev_b32 v0, 2, v0")
            e(f"buffer_store_dword v{V_ST[0]}, v0, {sr(S_WS,4)}, s{S_TA} offen")
            e(f"buffer_store_dword v{V_ST[1]}, v0, {sr(S_WS,4)}, s{S_TA} offen offset:256")
        e("s_endpgm")

    def sizes(self, lines):
        import subprocess, tempfile, os
        labels = set()
        for l in lines:
            m = re.search(r"(?:branch\w*|L_\w+-)\s*(\w+)", l)
        src = '.amdgcn_target "amdgcn-amd-amdhsa--gfx950"\n.text\n'
        body = []
        for l in lines:
            if l.endswith(":"): continue
            if "branch" in l: l = "s_nop 0"
            l = re.sub(r"L_\w+-L_pc(-4)?", "0x12345", l)
            body.append(l)
        with tempfile.TemporaryDirectory() as d:
            open(d + "/a.s", "w").write(src + "\n".join(body) + "\n")
            subprocess.run(["clang", "-x", "assembler", "-target", "amdgcn-amd-amdhsa", "-mcpu=gfx950", "-c", d + "/a.s", "-o", d + "/a.o"], check=True)
            dis = subprocess.run(["llvm-objdump", "-d", "--mcpu=gfx950", d + "/a.o"], capture_output=True, text=True).stdout
        sz = [4 * len(l.split(": ")[-1].split()) for l in dis.splitlines() if "//" in l]
        assert len(sz) == len(body), (len(sz), len(body))
        out = []; k = 0
        for l in lines:
            if l.endswith(":"): out.append(0)
            else: out.append(sz[k]); k += 1
        return out
    def add_hops(self, o, caps):
        sz = self.sizes(o)
        out = ["@HOP"]; pos = 4; nextpage = 4096
        i = 0
        while i < len(o):
            if pos >= nextpage:
                best = None; p = pos; j = i
                while j < len(o) and p < nextpage + 56:
                    if j > 0 and o[j - 1].startswith("v_mfma"):
                        n = 0
                        while j + n < len(o) and not o[j + n].startswith("v_mfma"): n += 1
                        if best is None or n < best[0]: best = (n, j)
                    p += sz[j]; j += 1
                tgt = best[1] if best else i
                while i < tgt:
                    out.append(o[i]); pos += sz[i]; i += 1
                out.append("@HOP"); pos += 4
                nextpage += 4096
                continue
            out.append(o[i]); pos += sz[i]; i += 1
        for b in caps:
            for l in b:
                out.append(l)
                if l.endswith(":") and l in ("CAP_E0:", "CAP_G01:", "CAP_G03:"): out.append("@HOP")
        n = out.count("@HOP"); k = 0; res = []
        for l in out:
            if l == "@HOP":
                res.append(f"HOP{k}:"); res.append(f"s_cbranch_execz " + (f"HOP{k+4}" if k + 4 < n else "HOPEND")); k += 1
            else: res.append(l)
        self.nhops = n
        return res

    def build(self):
        self.stored = set()
        self.prologue()
        main = self.out
        texts = {}
        def gen(kind, layer, t):
            self.out = []
            self.body(kind, layer, t)
            if kind in texts and texts[kind] != self.out:
                for a, b in zip(texts[kind], self.out):
                    if a != b: print("DIFF", kind, layer, t, a, "|", b); break
                raise RuntimeError(f"body {kind} differs at layer {layer} t {t}")
            texts[kind] = self.out
        for layer in range(3):
            for t in range(16 if layer < 2 else 13):
                if layer == 0: kind = "E0" if t == 0 else ("G0" if t < 14 else f"T{t}")
                else: kind = "H0" if t == 0 else (f"S{t}" if t < 4 else ("G1" if t < 14 else f"T{t}"))
                gen(kind, layer, t)
        self.out = []; self.tail(); texts["TAIL"] = self.out
        o = texts["E0"][:]
        o += ["L_G0:"] + texts["G0"] + ["s_cbranch_scc1 L_G0"]
        o += ["L_T14:"] + texts["T14"] + texts["T15"] + texts["H0"] + texts["S1"] + texts["S2"] + texts["S3"]
        o += ["L_G1:"] + texts["G1"] + ["s_cbranch_scc1 L_G1"]
        o += [f"s_cmp_eq_u32 s{S_LAYER}, 1", "s_cbranch_scc1 L_T14"]
        o += ["L_TAIL:"] + texts["TAIL"]
        caps = [b for k, b in self.ool.items() if k.startswith("CAP")]
        slow = [b for k, b in self.ool.items() if not k.startswith("CAP")]
        if self.opt.hops:
            o = self.add_hops(o, caps)
            o = main + ["s_branch L_main"] + sum(slow, []) + [".p2align 12", "L_main:"] + o
        else:
            o = main + o + sum(caps, []) + sum(slow, [])
        self.texts = texts
        hdr = open("standalone__dcn_v2_cross__recsys.s.ref").read().split("\n")
        top = [l for l in hdr if l.startswith(";") and "@launch" not in l]
        if self.opt.diag: top.append("; STAMPS " + ("RT " if self.opt.diagrt else "CY ") + " ".join(self.stamps))
        txt = "\n".join(top) + f"\n; @launch grid=(256,1,1) block=(256,1,1) lds={SLOT*5}\n"
        txt += f""".amdgcn_target "amdgcn-amd-amdhsa--gfx950"
.text
.globl {NAME}
.p2align 8
.type {NAME},@function
{NAME}:
"""
        txt += "\n".join(o) + "\nL_codeend:\n"
        txt += f""".section .rodata,"a"
.p2align 6
.amdhsa_kernel {NAME}
  .amdhsa_next_free_vgpr 512
  .amdhsa_next_free_sgpr 102
  .amdhsa_accum_offset 256
  .amdhsa_group_segment_fixed_size 0
  .amdhsa_kernarg_size 48
  .amdhsa_user_sgpr_count 2
  .amdhsa_user_sgpr_kernarg_segment_ptr 1
  .amdhsa_system_sgpr_workgroup_id_x 1
  .amdhsa_float_denorm_mode_32 3
.end_amdhsa_kernel
"""
        return txt

if __name__ == "__main__":
    ap = argparse.ArgumentParser()
    ap.add_argument("-o", default="k3.s")
    ap.add_argument("--diag", action="store_true")
    ap.add_argument("--diagrt", action="store_true")
    ap.add_argument("--diagc", action="store_true")
    ap.add_argument("--pace", type=float, default=6)
    ap.add_argument("--pacex", type=float, default=6)
    ap.add_argument("--paceh", type=float, default=8)
    ap.add_argument("--pacet", type=float, default=3.3)
    ap.add_argument("--xr15", type=float, default=0.2)
    ap.add_argument("--xr0", type=float, default=-1)
    ap.add_argument("--xrt", type=float, default=0.0)
    ap.add_argument("--flag0", type=int, default=60)
    ap.add_argument("--early", type=int, default=8)
    ap.add_argument("--direct", default="8444")
    ap.add_argument("--cpos", default="222")
    ap.add_argument("--asc", type=int, default=1)
    ap.add_argument("--xtouch", type=int, default=0)
    ap.add_argument("--tpf", type=int, default=0)
    ap.add_argument("--hops", type=int, default=1)
    ap.add_argument("-x", default="")
    ap.add_argument("--wr128", type=int, default=0)
    ap.add_argument("--nft", type=int, default=24)
    ap.add_argument("--sp", type=float, default=10)
    ap.add_argument("--spo", type=float, default=22)
    ap.add_argument("--sp2", type=float, default=9)
    ap.add_argument("--spo2", type=float, default=16)
    ap.add_argument("--xrb", type=float, default=0.0)
    ap.add_argument("--fdrain", type=int, default=1)
    ap.add_argument("--fgrp", type=int, default=3)
    ap.add_argument("--outf", default="sc1")
    opt = ap.parse_args()
    if opt.diagrt: opt.diag = True
    if opt.xr0 < 0:
        opt.xr0 = 0.1
        while True:
            try:
                g = G(opt); txt = g.build(); break
            except AssertionError as ex:
                if not (ex.args and (ex.args[0] == "stream left" or ex.args[0][0] == "deadline")): raise
                opt.xr0 += 0.01
                if opt.xr0 > 1: raise
    else:
        g = G(opt); txt = g.build()
    open(opt.o, "w").write(txt)
    print(f"xr0 {opt.xr0:.2f} fallback waits:", g.warn, {k: len(v) for k, v in g.texts.items()})
```

```python
import sys, re, argparse

NAME = "standalone__dcn_v2_cross__recsys_kernel"
SLOT = 32768
FL_OFF = 64 << 20
EP_OFF = FL_OFF + 65536
ST_OFF = 80 << 20

def vr(b, n=1, p="v"):
    return f"{p}{b}" if n == 1 else f"{p}[{b}:{b+n-1}]"
def ar(b, n=1): return vr(b, n, "a")
def sr(b, n=1): return vr(b, n, "s")

def XF(mt, s): return (mt * 2 + s) * 4
def WF(buf, s): return 64 + buf * 8 + s * 4
def X0(p, mt): return 80 + (p * 8 + mt) * 4
def SEL(h): return 208 + 4 * h
ACC_A0 = 216
ACC_V0 = 40
_acc = {}
def _init_acc():
    va, aa = ACC_V0, ACC_A0
    for nt in range(8):
        for mt in range(8):
            if nt == 7 or (nt == 6 and mt < 2):
                _acc[(mt, nt)] = ("a", aa); aa += 4
            else:
                _acc[(mt, nt)] = ("v", va); va += 4
    assert va == 256 and aa == 256
_init_acc()
def ACC(mt, nt): return _acc[(mt, nt)]

V_L16 = 0; V_XA = [1, 2]; V_WA = [3, 4]; V_WC = [5, 6]; V_XC = [7, 8]; V_CPG = 15; V_CPL = 9
V_POLL = 10; V_FLAG = 11; V_B = 12; V_ST = [13, 14]; V_T = 16; V_XT = 30
S_DW = 4; S_TR = 5; S_E0 = 6; S_KEY = 7
S_W = 8; S_X0 = 12; S_WS = 16; S_OUT = 20; S_B = 24
S_WT = 28; S_XT = 32
S_X = 36
S_WR = 39
S_Q = 41
S_WCUR = 44; S_WL = 45; S_XB = 46; S_FB = 47; S_FOWN = 48; S_EP = 49; S_NEED = 50; S_FV = 51; S_WLM = 52
S_PA = 53; S_J = 54; S_WAVE = 55; S_RB = 56; S_LOOP = 57; S_LAYER = 58; S_ADJ = 59; S_OADJ = 60; S_WC64 = 61
S_M4 = 62; S_MASK = 65; S_EPOFF = 66; S_CNT = 67; S_CAPJ = 68; S_BOFF = 69
S_TA = 70; S_TB = 71; S_TC = 72; S_TD = 73; S_TE = 74; S_TF = 75; S_O2 = 76; S_O3 = 77; S_WR14 = 78; S_DX = 79
S_PC = 80; S_ST = 82; S_RT = 86; S_SI = 90; S_LEND = 91; S_D0 = 92
S_FQ = 96
S_TG = 99; S_TH = 100; S_M7 = 101; S_XCUR = 3; S_XTO = 28

RANK = {"S": 0, "G": 1, "D": 2, "V": 3}

class Sched:
    def __init__(self, n, maxS=3):
        self.n = n
        self.g = [[] for _ in range(n)]
        self.closedS = set()
        self.maxS = maxS
    def fits(self, g, kind):
        kinds = [k for k, _ in self.g[g]]
        if kind == "G": return len(kinds) == 0
        if "G" in kinds: return False
        nvec = sum(k in "DV" for k in kinds)
        if kind == "S":
            if g in self.closedS or kinds.count("S") >= self.maxS: return False
            return len(kinds) < 3
        return nvec < 2 and len(kinds) < 3
    def put(self, g, kind, fn): self.g[g].append((kind, fn))
    def place(self, kind, fn, lo, hi=None):
        hi = self.n - 1 if hi is None else hi
        for g in range(lo, hi + 1):
            if self.fits(g, kind):
                self.put(g, kind, fn); return g
        raise RuntimeError(f"cannot place {kind} in [{lo},{hi}]")
    def chain(self, items, lo, hi=None):
        out = []; g = lo; pk = None
        for kind, fn in items:
            if pk is not None and (RANK[kind] < RANK[pk] or kind == "G" or pk == "G"): g += 1
            g = self.place(kind, fn, g, hi)
            out.append(g); pk = kind
        return out
    def branch(self, cmpfn, brfn, lo):
        for g in range(lo, self.n - 1):
            if self.fits(g, "S") and self.fits(g + 1, "G"):
                self.put(g, "S", cmpfn); self.closedS.add(g); self.put(g + 1, "G", brfn); return g + 1
        raise RuntimeError("branch")
    def last_su(self):
        last = 0
        for g in range(self.n):
            if any(getattr(f, "su", False) for _, f in self.g[g]): last = g
        return last + 1

def mt_off(mt):
    if mt == 0: return "0", 0
    if mt < 4: return f"s{S_XT+mt}", (mt & 1) * 2048
    return f"s{[S_M4, S_M4+1, S_M4+2, S_M7][mt-4]}", 0

def blk(nt, cinit=False):
    r = []
    for mt in range(8):
        ss = (0, 1) if mt % 2 == 0 else (1, 0)
        r += [(mt, nt, ss[0], cinit), (mt, nt, ss[1], False)]
    return r

class G:
    def __init__(self, opt):
        self.opt = opt
        self.out = []
        self.vq = []; self.lq = []
        self.ool = {}
        self.slot = {}
        self.lds_own = {}
        self.xa = None; self.wa = None
        self.warn = 0
        self.stamps = []
        self.stream = []; self.stream2 = []
        self.pending = None
    def e(self, s): self.out.append(s)
    def E(self, s): return lambda: self.e(s)
    def S(self, s): return ("S", self.E(s))
    def V(self, s): return ("V", self.E(s))
    def SU(self, s, then=None):
        def f():
            self.e(s)
            if then: then()
        f.su = True
        return ("S", f)
    def label(self, n): self.out.append(n + ":")
    def vm(self, s, tag=None):
        self.e(s); self.vq.append(tag); assert len(self.vq) <= 62
    def VM(self, s, tag=None): return ("G", lambda: self.vm(s, tag))
    def lds(self, s, tag=None):
        self.e(s); self.lq.append(tag)
    def _need(self, q, tags, mx, force=None):
        idx = -1
        for i, t in enumerate(q):
            if t in tags: idx = i
        if idx < 0 and force is None: return None
        n = len(q) - 1 - idx
        if force is not None:
            assert n >= force or idx < 0, (n, force, q)
            n = force
        n = min(n, mx)
        if len(q) > n: del q[:len(q) - n]
        return n
    def wait(self, vtags=(), ltags=(), lall=False, vforce=None):
        parts = []
        n = self._need(self.vq, set(vtags), 62, vforce)
        if n is not None: parts.append(f"vmcnt({n})")
        if lall:
            parts.append("lgkmcnt(0)"); self.lq = []
        else:
            n = self._need(self.lq, set(ltags), 14)
            if n is not None: parts.append(f"lgkmcnt({n})")
        if parts: self.e("s_waitcnt " + " ".join(parts))
    def smov(self, d, s):
        def f():
            self.e(f"s_mov_b32 s{d}, s{s}"); self.slot[d] = self.slot[s]
        return ("S", f)

    def mfma(self, m):
        if m[0] == "U":
            _, p, mt, h, tb = m
            self.e(f"v_mfma_f32_16x16x32_bf16 {vr(tb+4*h,4)}, {ar(SEL(h),4)}, {ar(X0(p,mt),4)}, 0")
            return
        mt, nt, s, cinit = m
        buf = nt & 1
        tags = {("XF", mt, s), ("WF", buf, s, 0), ("WF", buf, s, 1)}
        if tags & set(self.lq):
            self.warn += 1
            self.wait(ltags=tags)
        p, r = ACC(mt, nt)
        c = vr(r, 4, p)
        if cinit and p == "v" and mt != 7: c = vr(ACC(7, nt)[1], 4)
        self.e(f"v_mfma_f32_16x16x32_bf16 {vr(r,4,p)}, {ar(WF(buf,s),4)}, {ar(XF(mt,s),4)}, {c}")
    def rd_xf(self, mt, s, want):
        def f():
            assert self.lds_own[self.xa] == want, (self.lds_own[self.xa], want)
            self.lds(f"ds_read_b128 {ar(XF(mt,s),4)}, v{V_XA[s]} offset:{mt*2048}", ("XF", mt, s))
        return f
    def rd_wf(self, nt, s, u, want, half=None):
        p, h = nt >> 1, nt & 1
        if callable(half): half = half(nt)
        off = (p >> 1 if half is None else half) * 16384 + (p & 1) * 512 + s * 8192 + u * 4096
        def f():
            if half is None: assert self.lds_own[self.wa[h]] == want, (self.lds_own[self.wa[h]], want)
            else:
                assert self.lds_half[(self.wa[h], half)] == want + (p >> 1,), (self.lds_half, self.wa[h], half, want, nt)
                assert want + (p >> 1,) in self.landed
            self.lds(f"ds_read_b64_tr_b16 {ar(WF(h,s)+2*u,2)}, v{V_WA[h]} offset:{off}", ("WF", h, s, u))
        return f
    def dma_items(self, what, sdst, form):
        items = []
        for i in range(8):
            if i == 0: items.append(self.SU(f"s_mov_b32 m0, s{sdst}", lambda: self.lds_own.__setitem__(self.slot[sdst], what)))
            if i == 4:
                def chk(): assert self.lds_own[self.slot[sdst]] == what
                items.append(self.SU(f"s_add_u32 m0, s{sdst}, 0x1000", chk))
            off = f" offset:{(i&3)*1024}" if i & 3 else ""
            if form == "W":
                so = "0" if i < 2 else f"s{S_WT+(i>>1)}"
                s = f"buffer_load_dwordx4 v{V_WC[i&1]}, {sr(S_W,4)}, {so} offen{off} lds"
            elif form == "X0":
                so = "0" if i < 2 else f"s{S_XT+(i>>1)}"
                s = f"buffer_load_dwordx4 v{V_XC[i&1]}, {sr(S_X0,4)}, {so} offen{off} {self.opt.x0f} lds"
            else:
                so = "0" if i < 2 else f"s{S_XT+(i>>1)}"
                s = f"buffer_load_dwordx4 v{V_XC[i&1]}, {sr(S_X0,4)}, {so} offen{off} sc1 lds"
            items.append(self.VM(s, what))
        return items
    def place_dma(self, sc, items, lo, pace):
        g = lo; prev = -1; pend = None
        for kind, fn in items:
            if kind == "S": pend = fn; continue
            g0 = max(int(g), prev + 1)
            if pend is not None:
                gs = sc.place("S", pend, max(prev + 1, g0 - 2, 0)); g0 = max(g0, gs + 1); pend = None
            prev = sc.place("G", fn, g0)
            g += pace
        return prev
    def w_setup(self, tidreg, base):
        return [self.S(f"s_lshl_b32 s{S_TA}, s{tidreg}, 17"), self.S(f"s_add_u32 s{S_TA}, s{S_TA}, s{base}"),
                self.S(f"s_sub_u32 s{S_TB}, s{S_TA}, s{S_WCUR}"), self.S(f"s_mov_b32 s{S_WCUR}, s{S_TA}"),
                self.V(f"v_add_u32 v{V_WC[0]}, s{S_TB}, v{V_WC[0]}"), self.V(f"v_add_u32 v{V_WC[1]}, s{S_TB}, v{V_WC[1]}")]
    def x_setup(self, tidreg):
        return [self.S(f"s_lshl_b32 s{S_TE}, s{tidreg}, 7"), self.S(f"s_sub_u32 s{S_DX}, s{S_TE}, s{S_XCUR}"), self.S(f"s_mov_b32 s{S_XCUR}, s{S_TE}"),
                self.V(f"v_add_u32 v{V_XC[0]}, s{S_DX}, v{V_XC[0]}"), self.V(f"v_add_u32 v{V_XC[1]}, s{S_DX}, v{V_XC[1]}")]
    def flag_items(self):
        return [self.V(f"v_mov_b32 v{V_FLAG}, s{S_FV}"),
                self.VM(f"buffer_store_dword v{V_FLAG}, off, {sr(S_WS,4)}, s{S_FOWN} sc1", "F"),
                self.S(f"s_add_u32 s{S_FV}, s{S_FV}, 1")]
    def poll_check(self, sc, name, tag, lo):
        sl, bk = f"SLOW_{name}", f"BACK_{name}"
        def f0():
            assert tag not in self.vq
            self.e(f"v_readfirstlane_b32 s{S_TC}, v{V_POLL}")
        c = sc.chain([self.S(f"s_and_b32 s{S_TD}, s{S_Q+1}, 3"), self.S(f"s_add_u32 s{S_TD}, s{S_TD}, s{S_NEED}"),
                      ("V", f0), self.S(f"s_sub_u32 s{S_TC}, s{S_TC}, s{S_TD}")], lo)
        def br():
            self.e(f"s_cbranch_scc1 {sl}"); self.label(bk)
        gbr = sc.branch(self.E(f"s_cmp_gt_u32 s{S_TC}, 7"), br, c[-1])
        self.ool[sl] = [f"{sl}:", f"s_mov_b32 s{S_CNT}, 0x100000", f"LP_{name}:",
                        f"buffer_load_dword v{V_POLL}, off, {sr(S_WS,4)}, s{S_PA} sc1", "s_waitcnt vmcnt(0)",
                        f"v_readfirstlane_b32 s{S_TC}, v{V_POLL}", f"s_sub_u32 s{S_CNT}, s{S_CNT}, 1", f"s_cbranch_scc1 {bk}",
                        f"s_sub_u32 s{S_TC}, s{S_TC}, s{S_TD}", f"s_cmp_gt_u32 s{S_TC}, 7", f"s_cbranch_scc0 {bk}",
                        "s_sleep 1", f"s_branch LP_{name}"]
        return gbr
    def stamp(self, which):
        if self.opt.diagrt:
            if which == 1:
                self.e(f"s_memtime s[{S_ST}:{S_ST+1}]"); self.e(f"s_memrealtime s[{S_ST+2}:{S_ST+3}]")
            return
        self.e(f"s_memtime s[{S_ST+2*which}:{S_ST+2*which+1}]")
    def stamp_items(self):
        def f():
            self.e(f"s_lshl_b64 exec, 1, s{S_SI}"); self.e(f"v_mov_b32 v{V_ST[0]}, s{S_ST}"); self.e(f"v_mov_b32 v{V_ST[1]}, s{S_ST+2}")
            self.e("s_mov_b64 exec, -1"); self.e(f"s_add_u32 s{S_SI}, s{S_SI}, 1")
        return [("G", f)]
    def epi_valu(self, p, mt, tb, at, ob):
        ops = []
        for h in range(2):
            pf, r = ACC(mt, 2 * p + h)
            if pf == "a":
                for i in range(4): ops.append(f"v_accvgpr_read_b32 v{at+i}, a{r+i}")
                r = at
            for i in range(4): ops.append(f"v_mul_f32 v{tb+4*h+i}, v{tb+4*h+i}, v{r+i}")
        for d in range(4): ops.append(f"v_cvt_pk_bf16_f32 v{ob+d}, v{tb+2*d}, v{tb+2*d+1}")
        return ops
    def braw(self, nt): return V_T + 2 * nt if nt < 6 else V_T + 20 + 2 * (nt - 6)
    def bias_sched(self, sc, nt, g, busy):
        r = self.braw(nt); f0, f2, a0 = V_T + 16, V_T + 17, V_T + 18
        f = [f0, r, f2, r + 1]
        ops = [f"v_lshlrev_b32 v{f0}, 16, v{r}", f"v_and_b32 v{r}, s{S_MASK}, v{r}", f"v_lshlrev_b32 v{f2}, 16, v{r+1}", f"v_and_b32 v{r+1}, s{S_MASK}, v{r+1}"]
        g = sc.chain([self.V(x) for x in ops], g)[-1]
        ops = []
        for mt in range(8):
            pf, a = ACC(mt, nt)
            if pf == "v":
                ops += [f"v_add_f32 v{a+i}, v{a+i}, v{f[i]}" for i in range(4)]
            else:
                for i in (0, 2):
                    ops += [f"v_accvgpr_read_b32 v{a0}, a{a+i}", f"v_accvgpr_read_b32 v{a0+1}, a{a+i+1}",
                            f"v_add_f32 v{a0}, v{a0}, v{f[i]}", f"v_add_f32 v{a0+1}, v{a0+1}, v{f[i+1]}",
                            f"v_accvgpr_write_b32 a{a+i}, v{a0}", f"v_accvgpr_write_b32 a{a+i+1}, v{a0+1}"]
        b0, b1 = busy
        est = g + len(ops) // 2 + len(ops) // 3 + 4
        if est < b0 - 2: lo, hi = g, b0 - 2
        else: lo, hi = max(g, b1 + 6), sc.n - 1
        return sc.chain([self.V(x) for x in ops], lo, hi)[-1]
    def bias0_ops(self, nt):
        r = V_T + 2 * nt
        d = ACC(7, nt)[1]
        return [f"v_lshlrev_b32 v{d}, 16, v{r}", f"v_and_b32 v{d+1}, s{S_MASK}, v{r}",
                f"v_lshlrev_b32 v{d+2}, 16, v{r+1}", f"v_and_b32 v{d+3}, s{S_MASK}, v{r+1}"] + \
               [f"v_add_f32 v{d+i}, 1.0, v{d+i}" for i in range(4)]

    def prologue(self):
        e = self.e; o = self.opt
        e("s_cmp_lt_u32 s2, 256"); e("s_cbranch_scc1 L_go"); e("s_endpgm")
        self.label("L_go")
        e("s_load_dwordx4 s[8:11], s[0:1], 0")
        e("s_load_dwordx4 s[20:23], s[0:1], 16")
        e("s_load_dwordx2 s[16:17], s[0:1], 40")
        if o.diag:
            e(f"s_memrealtime s[{S_RT}:{S_RT+1}]"); e(f"s_memtime s[{S_D0}:{S_D0+1}]")
        e(f"s_getpc_b64 s[{S_PC}:{S_PC+1}]")
        self.label("L_pc")
        e("s_lshr_b32 s3, s2, 3")
        e("v_lshrrev_b32 v16, 4, v0")
        e("v_lshl_add_u32 v16, s3, 4, v16")
        e("v_lshlrev_b32 v16, 7, v16")
        e(f"v_min_u32 v31, L_codeend-L_pc-4, v16")
        self.vm(f"global_load_dword v{V_POLL}, v31, s[{S_PC}:{S_PC+1}]", "PF")
        T = 40
        lane, m, q, r4, c4, q1, tx, tw, t0, t1, t2 = [f"v{T+i}" for i in range(11)]
        e(f"v_lshrrev_b32 {t0}, 6, v0")
        e(f"v_and_b32 {lane}, 63, v0")
        e(f"v_readfirstlane_b32 s{S_WAVE}, {t0}")
        e(f"s_and_b32 s{S_J}, s3, 3")
        e(f"s_and_b32 s{S_RB}, s2, 7"); e(f"s_lshl_b32 s{S_RB}, s{S_RB}, 3")
        e(f"s_lshr_b32 s{S_TC}, s2, 5")
        e(f"s_add_u32 s{S_RB}, s{S_RB}, s{S_TC}")
        e(f"v_and_b32 {m}, 15, {lane}"); e(f"v_lshrrev_b32 {q}, 4, {lane}")
        e(f"v_bfe_u32 {r4}, {lane}, 2, 2"); e(f"v_and_b32 {c4}, 3, {lane}")
        e(f"s_lshl_b32 s{S_TD}, s{S_RB}, 19")
        e(f"s_lshl_b32 s{S_TE}, s{S_J}, 17"); e(f"s_add_u32 s{S_TE}, s{S_TE}, s{S_TD}")
        e(f"s_lshl_b32 s{S_TF}, s{S_WAVE}, 15"); e(f"s_add_u32 s{S_TE}, s{S_TE}, s{S_TF}")
        e(f"v_and_b32 {q1}, 1, {q}"); e(f"v_lshlrev_b32 {tx}, 7, {q1}"); e(f"v_lshl_add_u32 {tx}, {m}, 11, {tx}")
        e(f"s_lshl_b32 s{S_CNT}, s{S_TC}, 15"); e(f"s_lshl_b32 s{S_TF}, s{S_WAVE}, 13"); e(f"s_add_u32 s{S_CNT}, s{S_CNT}, s{S_TF}")
        e(f"s_lshl_b32 s{S_BOFF}, s{S_J}, 9"); e(f"s_add_u32 s{S_CNT}, s{S_CNT}, s{S_BOFF}")
        e(f"v_lshlrev_b32 {tw}, 7, {c4}"); e(f"v_lshl_add_u32 {tw}, {r4}, 11, {tw}")
        e(f"s_mov_b32 s{S_X0+2}, {16384*1024*2}"); e(f"s_mov_b32 s{S_X0+3}, 0x20000")
        e(f"s_mov_b32 s{S_B+2}, {3*1024*2}"); e(f"s_mov_b32 s{S_B+3}, 0x20000")
        e(f"s_lshl_b32 s{S_EPOFF}, s{S_RB}, 7"); e(f"s_add_u32 s{S_EPOFF}, s{S_EPOFF}, {hex(EP_OFF)}")
        e("s_waitcnt lgkmcnt(0)")
        if o.diag: e(f"s_memtime s[{S_ST}:{S_ST+1}]")
        e(f"s_mov_b32 s{S_X0}, s8"); e(f"s_mov_b32 s{S_X0+1}, s9")
        self.vm(f"buffer_load_dword v{V_POLL}, {tx}, {sr(S_X0,4)}, s{S_TE} offen {o.x0f}", "PF")
        e(f"s_mov_b32 s{S_W}, s10"); e(f"s_mov_b32 s{S_W+1}, s11"); e(f"s_mov_b32 s{S_W+2}, {3*1024*1024*2}"); e(f"s_mov_b32 s{S_W+3}, 0x20000")
        self.vm(f"buffer_load_dword v{V_POLL}, {tw}, {sr(S_W,4)}, s{S_CNT} offen", "PF")
        e(f"s_mov_b32 s{S_B}, s20"); e(f"s_mov_b32 s{S_B+1}, s21")
        self.vm(f"buffer_load_dword v{V_POLL}, {tw}, {sr(S_B,4)}, s{S_BOFF} offen", "PF")
        e(f"s_load_dword s{S_EP}, s[{S_WS}:{S_WS+1}], s{S_EPOFF}")
        def run(items):
            for k, f in items:
                f()
                if k == "S": e("s_nop 0")
        for r, sl in ((S_X, 0), (S_X + 1, 2), (S_X + 2, 4), (S_WR, 1), (S_WR + 1, 3)):
            e(f"s_add_u32 s{r}, s{S_TF}, {hex(sl*SLOT)}"); self.slot[r] = sl
        e(f"v_lshrrev_b32 {t1}, 3, {lane}"); e(f"v_and_b32 {t2}, 7, {lane}")
        e(f"v_lshrrev_b32 {t0}, 1, {t1}"); e(f"v_xor_b32 {t0}, {t2}, {t0}"); e(f"v_lshlrev_b32 {t0}, 4, {t0}"); e(f"v_lshl_add_u32 {t0}, {t1}, 11, {t0}")
        e(f"s_lshl_b32 s{S_PA}, s{S_WAVE}, 17"); e(f"s_add_u32 s{S_PA}, s{S_PA}, s{S_TD}")
        e(f"v_add_u32 v{V_XC[0]}, s{S_PA}, {t0}")
        e(f"v_xor_b32 v{V_XC[1]}, 64, v{V_XC[0]}"); e(f"v_add_u32 v{V_XC[1]}, {16384-1024}, v{V_XC[1]}")
        for k in range(1, 4): e(f"s_mov_b32 s{S_XT+k}, {k*32768 - (k&1)*2048}")
        xit = self.dma_items(("X", 0, 0), S_X, "X0")
        run(xit[:o.early])
        e(f"v_lshlrev_b32 v{V_L16}, 4, {lane}")
        e(f"s_lshr_b32 s{S_TA}, s{S_WAVE}, 1"); e(f"s_and_b32 s{S_TB}, s{S_WAVE}, 1")
        for k in range(1, 4): e(f"s_mov_b32 s{S_WT+k}, {(16*(k&1) + 4*(k>>1))*2048 - (k&1)*2048}")
        e(f"s_mov_b32 s{S_OUT}, s22"); e(f"s_mov_b32 s{S_OUT+1}, s23"); e(f"s_mov_b32 s{S_OUT+2}, {16384*1024*2}"); e(f"s_mov_b32 s{S_OUT+3}, 0x20000")
        e(f"s_mov_b32 s{S_WS+2}, 0x10000000"); e(f"s_mov_b32 s{S_WS+3}, 0x20000")
        e(f"s_lshl_b32 s{S_FB}, s{S_RB}, 9"); e(f"s_add_u32 s{S_FB}, s{S_FB}, {hex(FL_OFF)}")
        e(f"s_lshl_b32 s{S_WC64}, s{S_TB}, 6"); e(f"s_add_u32 s{S_PA}, s{S_BOFF}, s{S_WC64}")
        e(f"v_lshlrev_b32 {t0}, 3, {q}"); e(f"v_add_u32 v{V_B}, s{S_PA}, {t0}")
        e(f"s_lshl_b32 s{S_PA}, s{S_TA}, 8"); e(f"s_add_u32 s{S_PA}, s{S_PA}, s{S_BOFF}")
        e(f"s_lshl_b32 s{S_FV}, s{S_TB}, 16"); e(f"s_add_u32 s{S_PA}, s{S_PA}, s{S_FV}")
        if not o.wr128:
            e(f"v_lshlrev_b32 {t0}, 4, {c4}"); e(f"v_lshl_add_u32 {t0}, {q}, 6, {t0}"); e(f"v_lshl_add_u32 {t0}, {r4}, 11, {t0}")
        else:
            e(f"v_lshlrev_b32 {t0}, 2, {q1}"); e(f"v_xor_b32 {t0}, {t2}, {t0}"); e(f"v_lshlrev_b32 {t0}, 4, {t0}")
            e(f"v_lshrrev_b32 {tx}, 5, {lane}"); e(f"v_lshl_add_u32 {t0}, {tx}, 7, {t0}")
            e(f"v_and_b32 {tx}, 3, {t1}"); e(f"v_lshl_add_u32 {t0}, {tx}, 11, {t0}")
        e(f"v_add_u32 v{V_WC[0]}, s{S_PA}, {t0}")
        e(f"v_xor_b32 v{V_WC[1]}, 32, v{V_WC[0]}"); e(f"v_add_u32 v{V_WC[1]}, {16384-1024}, v{V_WC[1]}")
        e(f"v_lshrrev_b32 {t0}, 1, {m}"); e(f"v_xor_b32 {t0}, {q}, {t0}"); e(f"v_lshlrev_b32 {t0}, 4, {t0}"); e(f"v_lshl_add_u32 {t0}, {m}, 7, {t0}")
        e(f"s_lshl_b32 s{S_WR14}, s{S_TA}, 14")
        e(f"v_add_u32 v{V_XA[0]}, s{S_WR14}, {t0}"); e(f"v_xor_b32 v{V_XA[1]}, 64, v{V_XA[0]}")
        self.xa = 0
        if not o.wr128:
            e(f"v_lshlrev_b32 {t0}, 10, {q}"); e(f"v_lshl_add_u32 {t0}, {r4}, 6, {t0}"); e(f"v_lshl_add_u32 {t0}, {q1}, 5, {t0}"); e(f"v_lshl_add_u32 {t0}, {c4}, 3, {t0}")
            e(f"s_lshl_b32 s{S_PA}, s{S_TB}, 8"); e(f"s_add_u32 s{S_PA}, s{S_PA}, {SLOT}")
            e(f"v_add_u32 v{V_WA[0]}, s{S_PA}, {t0}")
        else:
            e(f"v_and_b32 {t0}, 2, {r4}"); e(f"v_or_b32 {t0}, {t0}, {q1}"); e(f"v_lshlrev_b32 {t0}, 5, {t0}"); e(f"v_xor_b32 {t0}, s{S_WC64}, {t0}")
            e(f"v_lshl_add_u32 {t0}, {q}, 10, {t0}"); e(f"v_lshl_add_u32 {t0}, {r4}, 7, {t0}"); e(f"v_lshl_add_u32 {t0}, {c4}, 3, {t0}")
            e(f"v_add_u32 v{V_WA[0]}, {SLOT}, {t0}")
        e(f"v_xor_b32 v{V_WA[1]}, 32, v{V_WA[0]}")
        self.wa = [1, 1]
        e(f"v_and_b32 {t1}, 1, {m}"); e(f"v_lshlrev_b32 {t1}, 4, {t1}"); e(f"v_mov_b32 {t2}, 0x3f80"); e(f"v_lshlrev_b32 {t1}, {t1}, {t2}")
        e(f"v_lshlrev_b32 {t2}, 3, {q}"); e(f"v_sub_u32 {t2}, {m}, {t2}"); e(f"v_ashrrev_i32 {t2}, 1, {t2}")
        misc = [f"s_mov_b32 s{S_M4}, 0x20000", f"s_mov_b32 s{S_M4+1}, 0x28000", f"s_mov_b32 s{S_M4+2}, 0x30000", f"s_mov_b32 s{S_MASK}, 0xffff0000",
                f"s_mov_b32 s{S_WL}, 0", f"s_mov_b32 s{S_Q}, 1", f"s_mov_b32 s{S_M7}, 0x38000",
                f"s_lshl_b32 s{S_FOWN}, s{S_J}, 7", f"s_add_u32 s{S_FOWN}, s{S_FOWN}, s{S_FB}", f"s_mul_i32 s{S_OADJ}, s{S_TB}, 7168",
                f"s_mov_b32 s{S_ADJ}, 8192", f"s_mov_b32 s{S_LAYER}, 0", f"s_mov_b32 s{S_CAPJ}, s{S_J}", f"s_mov_b32 s{S_LOOP}, 1",
                f"s_mov_b32 s{S_WCUR}, 0", f"s_mov_b32 s{S_LEND}, 15"]
        for h in range(2):
            for d in range(4):
                e(f"v_cmp_eq_u32 vcc, {d - 8*h}, {t2}"); e(misc.pop(0)); e(misc.pop(0))
                e(f"v_cndmask_b32 {t0}, 0, {t1}, vcc"); e(f"v_accvgpr_write_b32 a{SEL(h)+d}, {t0}")
        for d in range(3):
            if o.asc:
                e(f"s_cmp_ge_u32 {d}, s{S_J}"); e(f"s_cselect_b32 s{S_FQ+d}, {4*(d+1)}, {4*d}")
            else:
                e(f"s_add_u32 s{S_FQ+d}, s{S_J}, {d+1}"); e(f"s_and_b32 s{S_FQ+d}, s{S_FQ+d}, 3"); e(f"s_lshl_b32 s{S_FQ+d}, s{S_FQ+d}, 2")
        e(f"s_lshl_b32 s{S_PA}, s{S_WC64}, 11"); e(f"s_lshl_b32 s{S_FV}, s{S_WC64}, 8"); e(f"s_sub_u32 s{S_PA}, s{S_PA}, s{S_FV}")
        e(f"s_lshl_b32 s{S_FV}, s{S_J}, 9"); e(f"s_sub_u32 s{S_PA}, s{S_FV}, s{S_PA}")
        e(f"v_xor_b32 v{V_CPG}, s{S_WC64}, v{V_XC[0]}"); e(f"v_add_u32 v{V_CPG}, s{S_PA}, v{V_CPG}")
        e(f"s_mov_b32 s{S_XCUR}, {15*128}")
        e(f"v_lshlrev_b32 v{V_XT}, 11, {m}"); e(f"s_add_u32 s{S_XTO}, s{S_TE}, {3*128}")
        e(f"s_lshl_b32 s{S_PA}, s2, 14"); e(f"s_lshl_b32 s{S_FV}, s{S_WAVE}, 12"); e(f"s_add_u32 s{S_PA}, s{S_PA}, s{S_FV}")
        e(f"s_add_u32 s{S_PA}, s{S_PA}, 0x200000")
        e(f"v_min_u32 v{V_CPL}, 2, {c4}"); e(f"v_lshlrev_b32 v{V_CPL}, 7, v{V_CPL}")
        e(f"s_mov_b32 s{S_BOFF}, 2048")
        if o.diag:
            e(f"v_mov_b32 v{V_ST[0]}, 0"); e(f"v_mov_b32 v{V_ST[1]}, 0")
        if o.hops:
            e("s_mov_b64 exec, 0")
            for w in range(1, 4):
                e(f"s_cmp_eq_u32 s{S_WAVE}, {w}"); e(f"s_cbranch_scc1 HOP{w}")
            e("s_branch HOP0")
            self.label("HOPEND")
            e("s_mov_b64 exec, -1")
        run(xit[o.early:])
        def bl(nt): self.vm(f"buffer_load_dwordx2 {vr(V_T+2*nt if nt < 7 else V_T+22,2)}, v{V_B}, {sr(S_B,4)}, 0 offen offset:{(nt>>1)*128 + (nt&1)*32}", ("B", 0, nt))
        bl(0); bl(1)
        run(self.dma_items(("W", 0, 0), S_WR, "W"))
        for nt in range(2, 8): bl(nt)
        if o.diag: e(f"s_memtime s[{S_ST+2}:{S_ST+3}]")
        self.wait(vtags=[("B", 0, 1)])
        for x in self.bias0_ops(0) + self.bias0_ops(1): e(x)
        if o.diag:
            e("s_waitcnt lgkmcnt(0)")
            e(f"v_writelane_b32 v{V_ST[0]}, s{S_D0}, 63")
            e(f"v_writelane_b32 v{V_ST[0]}, s{S_ST}, 60"); e(f"v_writelane_b32 v{V_ST[1]}, s{S_ST+2}, 60")
            e(f"s_mov_b32 s{S_SI}, 0")

    def seg_open(self, name, vt, vforce, prev_nt, nts, X, W, half=None, reload=True, cinit=False, maxS=3, barrier=True, nextnt=None):
        o = self.opt
        dg = o.diag and not (o.diagc and name in ("G0", "G1"))
        if dg: self.stamps.append(name)
        if self.pending: self.mfma(self.pending)
        if dg: self.stamp(0)
        if barrier:
            self.wait(vtags=vt, lall=True, vforce=vforce); self.e("s_barrier")
        else:
            self.wait(ltags=[("WF", prev_nt & 1, s, u) for s in range(2) for u in range(2)])
        if dg: self.stamp(1)
        base = ([] if prev_nt is None else blk(prev_nt)) + sum((blk(nt, cinit) for nt in nts), [])
        off = 0 if prev_nt is None else 16
        self.pending = base[-1] if nts else None
        mf = base[:-1] if nts else base
        sc = Sched(len(mf), maxS)
        sc.mf = mf; sc.off = off; sc.dg = dg
        su = [(s, u) for s in range(2) for u in range(2)]
        if prev_nt is None:
            for s, u in su: self.rd_wf(nts[0], s, u, W, half)()
            for mt in range(8):
                for s in range(2): self.rd_xf(mt, s, X)()
            self.wait(ltags=[("XF", 1, 0), ("XF", 1, 1)])
        elif nts:
            if reload:
                for i in range(16):
                    mt, _, s, _ = base[i]
                    sc.put(i, "D", self.rd_xf(mt, s, X))
            for k, (s, u) in enumerate(su): sc.put(2 * k, "D", self.rd_wf(nts[0], s, u, W, half))
            sc.put(15, "S", lambda: self.wait(ltags=[("XF", 1, 0), ("XF", 1, 1)] + [("WF", nts[0] & 1, s, u) for s, u in su]))
        if reload and nts:
            for mt in (2, 4, 6):
                sc.put(off + 2 * mt - 1, "S", lambda mt=mt: self.wait(ltags=[("XF", mt + 1, 0), ("XF", mt + 1, 1)]))
        sc.blkwait = []
        seq = list(nts[1:]) + [nextnt]
        for b, nt in enumerate(seq):
            if b < len(seq) - 1:
                g = off + 16 * (b + 1) - 1
                sc.put(g, "S", lambda nt=nt: self.wait(ltags=[("WF", nt & 1, s, u) for s, u in su] + [("C",)]))
                sc.blkwait.append(g)
        if nts:
            for b, nt in enumerate(seq):
                for k, (s, u) in enumerate(su): sc.place("D", self.rd_wf(nt, s, u, W, half), off + 16 * b + 2 * k)
        return sc
    def seg_emit(self, sc, gbase=None, check=None, stamp_at=50):
        if sc.dg: sc.chain(self.stamp_items(), stamp_at)
        for g, m in enumerate(sc.mf):
            if check: check(g, m)
            self.mfma(m)
            self.merge_gap(sc, g, None if gbase is None else gbase + g)
    def xa_items(self, new, old, nx):
        def f0():
            self.e(f"v_add_u32 v{V_XA[0]}, s{S_DX}, v{V_XA[0]}"); self.xa = nx["x"]
        return [self.SU(f"s_sub_u32 s{S_DX}, s{new}, s{old}", lambda: nx.update(x=self.slot[new])),
                ("V", f0), self.V(f"v_add_u32 v{V_XA[1]}, s{S_DX}, v{V_XA[1]}")]
    def wa_sched(self, sc, new, old, g_s, g_v):
        nx = {}
        def wa(h):
            def f():
                self.e(f"v_add_u32 v{V_WA[h]}, s{S_DW}, v{V_WA[h]}"); self.wa[h] = nx["w"]
            return f
        k, f = self.SU(f"s_sub_u32 s{S_DW}, s{new}, s{old}", lambda: nx.update(w=self.slot[new]))
        sc.place(k, f, g_s, g_v - 1)
        sc.chain([("V", wa(0)), ("V", wa(1))], g_v)

    def body(self, kind, layer, t):
        o = self.opt
        X = ("X", layer, t); W = ("W", layer, t)
        first = kind == "E0"
        vt = [X, W, ("P", layer, t + 2)]
        if kind == "S1": vt.append(("B", layer, 1))
        if kind == "S2": vt.append(("B", layer, 0))
        vforce = {"G0": min(9 + (1 if o.xtouch else 0) + (1 if o.tpf & 2 else 0), 10 + (1 if o.xtouch else 0)), "G1": 8, "T14": 8}.get(kind)
        sc = self.seg_open(kind, vt, vforce, None if first else 7, list(range(7)), X, W, cinit=first,
                           maxS=1 if kind in ("T15", "H0") else 3, nextnt=7)
        n, off = sc.n, sc.off
        if kind in ("G0", "G1"):
            sc.put(n - 1, "G", lambda: None)
            sc.put(n - 2, "S", self.E(f"s_cmp_lt_u32 s{S_LOOP}, " + ("14" if kind == "G0" else f"s{S_LEND}"))); sc.closedS.add(n - 2)
        pace = 4 if first else o.pace
        gw = off + 1
        lastG = gw
        if kind == "H0":
            def xb():
                assert not any(x and x[0] == "XF" for x in self.lq)
                self.e("s_barrier")
            gb = sc.place("S", xb, off + 12)
            gw = gb + 1
        if kind == "G1":
            sc.put(0, "S", self.E(f"s_cmp_eq_u32 s{S_LOOP}, s{S_KEY}")); sc.closedS.add(0)
            sc.put(1, "S", self.E(f"s_cselect_b32 s{S_TG}, s{S_Q+1}, s{S_Q}")); sc.put(1, "S", self.E(f"s_cselect_b32 s{S_TH}, s{S_WLM}, s{S_WL}"))
            c = sc.chain(self.w_setup(S_TG, S_TH), 2)
        elif kind != "T15":
            c = sc.chain(self.w_setup(S_Q, S_WL), max(0, gw - 14))
        if kind != "T15":
            lastG = self.place_dma(sc, self.dma_items(("W", layer, t + 1), S_WR + 1, "W"), max(gw, c[-1] + 1), pace if kind != "H0" else o.paceh)
        gx = lastG + int(pace)
        if kind in ("S1", "S2", "S3", "G1"):
            if kind != "S1":
                gbr = self.poll_check(sc, kind, ("P", layer, t + 2), off + 8)
                assert gbr < lastG - 1
            c = sc.chain([self.S(f"s_lshr_b32 s{S_PA}, s{S_Q+2}, 2"), self.S(f"s_lshl_b32 s{S_PA}, s{S_PA}, 7"),
                          self.S(f"s_add_u32 s{S_PA}, s{S_PA}, s{S_FB}")], lastG - 1)
            k, f = self.VM(f"buffer_load_dword v{V_POLL}, off, {sr(S_WS,4)}, s{S_PA} sc1", ("P", layer, t + 3))
            gp = sc.place(k, f, max(c[-1], lastG) + 2)
            gx = max(gx, gp + 2); lastG = gp
        xadv = [self.V(f"v_add_u32 v{V_XC[i]}, 128, v{V_XC[i]}") for i in range(2)]
        if first:
            sc.chain(xadv, 4)
            lastG = self.place_dma(sc, self.dma_items(("X", 0, 1), S_X + 1, "X0"), gx, pace)
            c = sc.chain(xadv, lastG + 1)
            lastG = self.place_dma(sc, self.dma_items(("X", 0, 2), S_X + 2, "X0"), max(lastG + pace, c[-1] + 1), pace)
        if kind == "G0":
            ww = [self.VM(f"buffer_load_dword v{V_POLL}, v{V_CPL}, {sr(S_W,4)}, s{S_PA} offen", "PW"), self.S(f"s_add_u32 s{S_PA}, s{S_PA}, {384 if o.wwarm else 0}")]
            if not o.xtouch: sc.chain(ww, lastG + 3)
            sc.chain(xadv, off + 20)
            lastG = self.place_dma(sc, self.dma_items(("X", layer, t + 2), S_X + 2, "X0"), gx, o.pacex)
            if o.xtouch: lastG = sc.chain(ww, lastG + 3)[0]
        if kind in ("E0", "G0") and o.xtouch:
            sc.chain([self.VM(f"buffer_load_dword v{V_POLL}, v{V_XT}, {sr(S_X0,4)}, s{S_XTO} offen nt", "PW"),
                      self.S(f"s_add_u32 s{S_XTO}, s{S_XTO}, 128")], lastG + 3)
        if kind == "G0" and o.tpf & 2:
            sc.chain([self.VM(f"global_load_dword v{V_POLL}, v31, s[{S_PC}:{S_PC+1}]", "PW")], lastG + 6)
        if kind == "S1" and o.tpf & 1:
            sc.chain([self.S(f"s_lshr_b32 s{S_TE}, s2, 3"), self.S(f"s_lshl_b32 s{S_TE}, s{S_TE}, 9"), self.S(f"s_lshl_b32 s{S_TF}, s{S_WAVE}, 7"),
                      self.S(f"s_add_u32 s{S_TE}, s{S_TE}, s{S_TF}"), self.S(f"s_add_u32 s{S_TE}, s{S_TE}, L_TAIL-L_pc"),
                      self.S(f"s_min_u32 s{S_TE}, s{S_TE}, L_codeend-L_pc-4"), self.V(f"v_mov_b32 v{V_FLAG}, s{S_TE}"),
                      self.VM(f"global_load_dword v{V_FLAG}, v{V_FLAG}, s[{S_PC}:{S_PC+1}]", "PW")], off + 4, lastG - 1)
        if kind in ("S2", "S3", "G1"):
            c = sc.chain(self.x_setup(S_Q + 1), 8, off - 1)
            assert c[-1] < gx
            lastG = self.place_dma(sc, self.dma_items(("X", layer, t + 2), S_X + 2, "XE"), gx, o.pacex)
        if kind == "T14":
            it = [self.S(f"s_mov_b32 s{S_WT+k}, {k*16384 - (k&1)*2048}") for k in range(1, 4)]
            it += [self.S(f"s_add_u32 s{S_WL}, s{S_WL}, 0x200000"), self.S(f"s_lshl_b32 s{S_Q}, s{S_J}, 2"),
                   self.V(f"v_subrev_u32 v{V_WC[1]}, s{S_ADJ}, v{V_WC[1]}"), self.S(f"s_mov_b32 s{S_ADJ}, 0")]
            it += self.w_setup(S_Q, S_WL)
            c = sc.chain(it, lastG + 1)
            lastG = self.place_dma(sc, self.dma_items(("W", layer + 1, 0), S_X + 2, "W"), max(gx, c[-1] + 1), pace - 1)
        if kind == "T15":
            sc.put(0, "S", self.E(f"s_cmp_eq_u32 s{S_LAYER}, 0")); sc.closedS.add(0)
            if o.e1out: sc.put(1, "S", self.E(f"s_cselect_b64 s[{S_X0}:{S_X0+1}], s[{S_OUT}:{S_OUT+1}], s[{S_WS}:{S_WS+1}]"))
            else:
                sc.put(1, "S", self.E(f"s_cselect_b32 s{S_TE}, 0x2000000, 0"))
                def f64():
                    self.e(f"s_add_u32 s{S_X0}, s{S_WS}, s{S_TE}"); self.e(f"s_addc_u32 s{S_X0+1}, s{S_WS+1}, 0")
                sc.put(17, "G", f64)
            sc.chain([self.S(f"s_lshl_b32 s{S_TD}, s{S_LAYER}, 2"), self.S(f"s_add_u32 s{S_NEED}, s{S_NEED}, s{S_TD}"),
                      self.S(f"s_mov_b32 s{S_FV}, s{S_NEED}"),
                      self.S(f"s_lshr_b32 s{S_TD}, s{S_WAVE}, 1"), self.S(f"s_mul_i32 s{S_TD}, s{S_TD}, s{S_LAYER}"), self.S(f"s_mul_i32 s{S_KEY}, s{S_TD}, 12"),
                      self.S(f"s_sub_u32 s{S_WLM}, s{S_WL}, 256"), self.S(f"s_sub_u32 s{S_LEND}, s{S_LEND}, 1"),
                      self.S(f"s_add_u32 s{S_LAYER}, s{S_LAYER}, 1")], 2, 30)
        if first:
            sc.chain([self.V(f"v_lshlrev_b32 v{V_FLAG}, 3, v{V_L16}"), self.V(f"v_and_b32 v{V_FLAG}, 0x180, v{V_FLAG}"),
                      self.VM(f"buffer_load_dword v{V_POLL}, v{V_FLAG}, {sr(S_WS,4)}, s{S_FB} offen sc1", "PW")], 68)
            sc.chain([self.S(f"s_add_u32 s{S_NEED}, s{S_EP}, 1"), self.S(f"s_mov_b32 s{S_FV}, s{S_EP}")] + self.flag_items(), 98)
        if kind == "H0":
            def fb():
                self.wait(vtags=[("S", layer, 0)]); self.e("s_barrier")
            g = sc.place("G", fb, off + o.flag0)
            sc.chain(self.flag_items(), g + 1)
        if kind == "S3":
            assert ("S", layer, 1) not in self.vq
            sc.chain(self.flag_items(), off + 3)
        if kind == "G1":
            assert ("S", layer, min(t - 2, 3)) not in self.vq
            sc.chain(self.flag_items() + [self.S(f"s_sub_u32 s{S_TF}, s{S_FV}, s{S_NEED}"), self.S(f"s_min_u32 s{S_TF}, s{S_TF}, 3"),
                                          self.S(f"s_add_u32 s{S_FV}, s{S_TF}, s{S_NEED}")], off + 3)
        CT = V_T + 12
        if kind in ("S1", "S2", "S3"):
            jobs = [mt for mt in range(8) if not self.is_direct(t, mt)]
            def chk(): assert self.lds_own[self.slot[S_X]] == ("X", layer, t)
            c = sc.chain([self.SU(f"s_sub_u32 s{S_E0}, s{S_X}, s{S_OADJ}", chk), self.V(f"v_add_u32 v{V_CPL}, s{S_E0}, v{V_L16}")], 8)
            gprev = c[-1]
            w0 = int(o.cpos[t - 1])
            assert w0 + len(jobs) <= 6
            for k, mt in enumerate(jobs):
                w = sc.blkwait[k + w0]
                sc.place("D", lambda mt=mt: self.lds(f"ds_read_b128 {vr(CT,4)}, v{V_CPL} offset:{mt*2048}", ("C",)), max(gprev + 1, w - 9), w - 1)
                def st(mt=mt):
                    assert ("C",) not in self.lq
                    so, im = mt_off(mt)
                    self.vm(f"buffer_store_dwordx4 {vr(CT,4)}, v{V_CPG}, {sr(S_X0,4)}, {so} offen offset:{im + t*128} sc1", ("S", layer, t))
                gprev = sc.place("G", st, w + 1)
        gcap = 0
        if kind in ("E0", "G0", "T14", "T15"):
            cap, bk = f"CAP_{kind}", f"CB_{kind}"
            def br():
                self.e(f"s_cbranch_scc1 {cap}"); self.label(bk)
            def blkc(p):
                return [f"v_xor_b32 v{V_FLAG}, s{S_WC64}, v{V_XA[0]}"] + [f"ds_read_b128 {ar(X0(p,mt),4)}, v{V_FLAG} offset:{mt*2048}" for mt in range(8)] + [f"s_branch {bk}"]
            if kind == "G0":
                c = sc.chain([self.S(f"s_lshr_b32 s{S_TC}, s{S_LOOP}, 2")], off + 16)
                gcap = sc.branch(self.E(f"s_cmp_eq_u32 s{S_TC}, s{S_CAPJ}"), br, c[-1])
                b = [f"{cap}:", f"s_and_b32 s{S_TC}, s{S_LOOP}, 3"]
                for p in range(1, 4): b += [f"s_cmp_eq_u32 s{S_TC}, {p}", f"s_cbranch_scc1 {cap}{p}"]
                b += blkc(0)
                for p in range(1, 4): b += [f"{cap}{p}:"] + blkc(p)
                self.ool[cap] = b
            else:
                gcap = sc.branch(self.E(f"s_cmp_eq_u32 s{S_CAPJ}, {t >> 2}"), br, off + (12 if kind == "T15" else 16))
                self.ool[cap] = [f"{cap}:"] + blkc(t & 3)
        gXA = max(gcap + 1, off + 2)
        nx = {}
        if kind == "T15":
            def f0():
                self.e(f"v_add_u32 v{V_XA[0]}, s{S_TA}, v{V_L16}"); self.xa = nx["x"]
            sc.chain([self.S(f"s_lshl_b32 s{S_TA}, s{S_WC64}, 7"),
                      self.SU(f"s_sub_u32 s{S_TA}, s{S_X+2}, s{S_TA}", lambda: nx.update(x=self.slot[S_X + 2])),
                      ("V", f0), self.V(f"v_add_u32 v{V_XA[1]}, 1024, v{V_XA[0]}"), self.S(f"s_mov_b32 s{S_CAPJ}, 77")], gXA)
            wnext = S_X + 1
        else:
            sc.chain(self.xa_items(S_X + 1, S_X, nx), gXA)
            wnext = S_WR + 1
        self.wa_sched(sc, wnext, S_WR, gXA, off + 16 * 6 + 8)
        def bload(nt):
            return lambda: self.vm(f"buffer_load_dwordx2 {vr(self.braw(nt),2)}, v{V_B}, {sr(S_B,4)}, s{S_BOFF} offen offset:{(nt>>1)*128 + (nt&1)*32}", ("B", layer, nt // 6))
        if kind == "H0":
            g = gb - 8
            for nt in (6, 7): g = sc.place("G", bload(nt), g) + 1
            assert g < lastG
        if kind == "S1":
            g = off + 3
            for nt in range(6): g = sc.place("G", bload(nt), g) + 4
        if kind in ("S1", "S2", "S3", "T14"):
            g = 8 if kind == "S1" else 0
            for nt in {"S1": [6], "S2": [4, 5, 0], "S3": [3, 1, 2], "T14": [7]}[kind]:
                b0 = 0 if nt == 7 else off + 16 * nt
                g = self.bias_sched(sc, nt, g, (b0, b0 + 16))
            if kind == "S3": sc.place("S", self.E(f"s_add_u32 s{S_BOFF}, s{S_BOFF}, 2048"), 4)
        if first:
            ops = []
            for mt in range(8): ops += [f"v_accvgpr_write_b32 a{ACC(mt,7)[1]+i}, 1.0" for i in range(4)]
            g = sc.place("S", lambda: self.wait(vtags=[("B", 0, 7)]), 16) + 1
            sc.chain([self.V(x) for x in ops[:14]], 0)
            for nt in range(2, 7):
                g = sc.chain([self.V(x) for x in self.bias0_ops(nt)], g, 16 * nt - 2)[-1]
            ops = ops[14:]
            for mt in range(2): ops += [f"v_accvgpr_write_b32 a{ACC(mt,6)[1]+i}, v{ACC(7,6)[1]+i}" for i in range(4)]
            sc.chain([self.V(x) for x in ops], g, 96 - 2)
        self.slot[S_TR] = None
        if kind == "T15":
            rot = [self.smov(S_O2, S_X), self.smov(S_O3, S_WR), self.smov(S_WR, S_X + 1), self.smov(S_X + 1, S_WR + 1),
                   self.smov(S_X, S_X + 2), self.smov(S_WR + 1, S_X + 2)]
        elif kind == "H0":
            rot = [self.smov(S_X, S_X + 1), self.smov(S_X + 1, S_O2), self.smov(S_X + 2, S_O3),
                   self.smov(S_TR, S_WR), self.smov(S_WR, S_WR + 1), self.smov(S_WR + 1, S_TR)]
        else:
            rot = [self.smov(S_TR, S_X), self.smov(S_X, S_X + 1), self.smov(S_X + 1, S_X + 2), self.smov(S_X + 2, S_TR),
                   self.smov(S_TR, S_WR), self.smov(S_WR, S_WR + 1), self.smov(S_WR + 1, S_TR)]
        q = []
        if kind in ("E0", "G0", "T15", "H0"): q = [self.S(f"s_add_u32 s{S_Q}, s{S_Q}, 1")]
        if kind == "H0": q += [self.S(f"s_add_u32 s{S_Q+1}, s{S_Q}, 1"), self.S(f"s_mov_b32 s{S_Q+2}, s{S_FQ}")]
        if kind in ("S1", "S2"):
            q = [self.S(f"s_mov_b32 s{S_Q}, s{S_Q+1}"), self.S(f"s_mov_b32 s{S_Q+1}, s{S_Q+2}"), self.S(f"s_mov_b32 s{S_Q+2}, s{S_FQ+t}")]
        if kind in ("S3", "G1"):
            q = [self.S(f"s_add_u32 s{S_TE}, s{S_Q}, 1"), self.S(f"s_mov_b32 s{S_Q}, s{S_Q+1}"), self.S(f"s_mov_b32 s{S_Q+1}, s{S_Q+2}"),
                 self.S(f"s_mov_b32 s{S_Q+2}, s{S_TE}")]
        if kind == "S3": q += [self.S(f"s_mov_b32 s{S_LOOP}, 4")]
        sc.chain(q, max(gx, off + 60))
        if kind in ("G0", "G1"): rot += [self.S(f"s_add_u32 s{S_LOOP}, s{S_LOOP}, 1")]
        sc.chain(rot, max(sc.last_su(), 108 if kind in ("T15", "H0") else 0))
        if kind == "T15": self.make_stream(layer + 1)
        def check(g, m):
            if kind == "H0" and g >= off: assert (m[1] >> 1) * 8 + m[0] in self.epi_done, ("deadline", m)
        self.xr = o.xr15 if kind == "T15" else o.xr0
        self.seg_emit(sc, {"T15": 0, "H0": 128}.get(kind), check, 86 if first else off + 50)
        if kind == "T15": assert all(f in self.wr_done for f in range(8))
        if kind == "H0": assert not self.stream, "stream left"

    def is_direct(self, p, mt):
        n = int(self.opt.direct[p])
        return ((mt + 1) * n) // 8 != (mt * n) // 8
    def make_stream(self, nl):
        st = []
        self.epi_done = set(); self.wr_done = set()
        tbf = lambda f: V_T + 8 * (f % 2)
        U = lambda f, h: ("U", ("U", f // 8, f % 8, h, tbf(f)))
        self.stream = [U(f, h) + (30,) for f in range(2) for h in range(2)]
        self.credit = 0.0
        for f in range(32):
            p, mt = f // 8, f % 8
            tb = tbf(f)
            pos = 38 + 32 * p + 2 * mt
            sreg = {0: S_X + 2, 1: S_WR + 1, 2: S_O2, 3: S_O3}[p]
            ops = self.epi_valu(p, mt, tb, V_T + 16, tb)
            it = []
            for k, x in enumerate(ops):
                kd = "V" if (k < 4 or f == 31) else "A"
                if k == len(ops) - 5: it.append((kd, lambda x=x, f=f: (self.e(x), self.epi_done.add(f)), pos))
                else: it.append((kd, self.E(x), pos))
            if p >= 2: pos = max(pos, 129)
            if mt == 0:
                def f0(p=p, sreg=sreg):
                    self.lds_own[self.slot[sreg]] = ("X", nl, p)
                    self.e(f"s_sub_u32 s{S_E0}, s{sreg}, s{S_OADJ}")
                a = [("S", f0, pos), ("A", self.E(f"v_add_u32 v{V_CPL}, s{S_E0}, v{V_L16}"), pos)]
                it = it[:6] + a + it[6:] if p != 2 else it + a
            if self.is_direct(p, mt):
                so, im = mt_off(mt)
                it += [("R", lambda p=p, im=im, tb=tb, so=so: self.vm(f"buffer_store_dwordx4 {vr(tb,4)}, v{V_CPG}, {sr(S_X0,4)}, {so} offen offset:{im + p*128} sc1", ("S", nl, p)), pos)]
            if f + 2 < 32: it += [U(f + 2, 1) + (pos,)]
            it += [("X", lambda f=f, mt=mt, tb=tb: (self.lds(f"ds_write_b128 v{V_CPL}, {vr(tb,4)} offset:{mt*2048}", ("O",)), self.wr_done.add(f)), pos)]
            if f + 2 < 32: it += [U(f + 2, 0) + (pos,)]
            self.stream += it

    def merge_gap(self, sc, g, gpos):
        fixed = sc.g[g]
        self.gnow = gpos
        while True:
            cur = list(fixed)
            excl = any(k == "G" for k, _ in cur)
            hasR = False
            newgap = None
            top = -1
            if gpos is not None: self.credit = min(self.credit + self.xr, 2.0)
            def cnt(): return sum(k in "DV" for k, _ in cur), sum(getattr(f, "w", 1) for k, f in cur)
            def free():
                nvec, tot = cnt()
                if hasR: return nvec < 2
                return not excl and nvec < 2 and tot < 3
            def lookahead():
                i = 0
                while i < len(self.stream) and self.stream[i][0] in "RUX": i += 1
                while i < len(self.stream) and self.stream[i][0] == "V" and self.stream[i][2] <= gpos + 1 and free():
                    cur.append(("V", self.stream.pop(i)[1]))
            if gpos is not None and fixed is sc.g[g] and not (self.stream and getattr(self.stream[0][1], "pub", False)):
                while self.stream2 and self.stream2[0][2] <= gpos + 1:
                    k, fn, pos = self.stream2[0]
                    st = fn.ready(gpos)
                    if st == "skip": self.stream2.pop(0); continue
                    if st:
                        grp = [self.stream2.pop(0)]
                        if k == "S": grp.append(self.stream2.pop(0))
                        self.stream[0:0] = grp
                    break
            while gpos is not None and self.stream:
                k, fn, pos = self.stream[0]
                if pos > gpos + 1:
                    break
                if k == "U" and len(self.stream) > 1 and hasattr(self.stream[1][1], "ok") and not self.stream[1][1].ok():
                    lookahead(); break
                if k == "U":
                    lookahead()
                    newgap = fn; self.stream.pop(0); break
                if k == "X":
                    nxt = [kk for gg in (g + 1, g + 2) if gg < sc.n for kk, _ in sc.g[gg]]
                    follow_u = len(self.stream) > 1 and self.stream[1][0] == "U"
                    if any(kk != "S" for kk, _ in cur) or (not follow_u and "D" in nxt and fixed is sc.g[g]):
                        lookahead(); break
                    cur.append(("G", fn)); excl = True; self.stream.pop(0); continue
                if k == "R":
                    if excl or top > 0:
                        lookahead(); break
                    cur.append(("G", fn)); excl = True; hasR = True; top = 1; self.stream.pop(0); continue
                if k in "SZ":
                    w = 2 if k == "Z" else 1
                    if excl or top > 0 or (g in sc.closedS and fixed is sc.g[g]) or cnt()[1] + w > 3: break
                    fn.w = w
                    cur.append(("S", fn)); top = 0; self.stream.pop(0); continue
                if k == "D":
                    if top > 2 or not free(): break
                    cur.append(("D", fn)); top = 2; self.stream.pop(0); continue
                ok = free()
                if not ok and not excl and self.credit >= 1.0 and cnt()[0] < 3 and cnt()[1] < 4:
                    self.credit -= 1.0; ok = True
                if not ok: break
                cur.append(("V", fn)); top = 3; self.stream.pop(0)
            ks = [k for k, _ in cur]
            if ks.count("D") == 2 and "S" not in ks and "G" not in ks: cur.append(("S", self.E("s_nop 0")))
            for k, fn in sorted(cur, key=lambda x: RANK[x[0]]): fn()
            if newgap is None: return
            self.mfma(newgap)
            fixed = []

    def tail(self):
        e = self.e; o = self.opt
        L = 2
        VW, VR = V_POLL, V_CPL
        CT = V_T + 20; AT = V_T + 16
        tbf = lambda f: V_T + 8 * (f % 2)
        U = lambda f, h: ("U", ("U", f // 8, f % 8, h, tbf(f)))
        depth = lambda f: 4 if f < 8 else 8
        unit = lambda f: (f % depth(f)) * 4096
        area = {0: (S_WR, 0), 1: (S_X + 1, 0), 2: (S_X, 0), 3: (S_X + 1, 0)}
        def rdback(f, p, r, k):
            assert f in self.visible and self.ra == f // 8
            self.lds(f"ds_read_b64 {vr(r+2*k,2,p)}, v{VR} offset:{unit(f) + 256*k}", ("C", f))
        def store(f, dst):
            assert ("C", f) not in self.lq
            so, im = mt_off(f % 8)
            self.vm(f"buffer_store_dwordx4 {dst}, v{V_CPG}, {sr(S_OUT,4)}, {so} offen offset:{im + (f//8)*128} {o.outf}", "SO")
            self.stored.add(f)
        def wr_ok(f):
            prev = {0: f - 4, 1: -1, 2: -1, 3: f - 16}[f // 8]
            return (prev < 0 or prev in self.freed) and (f // 8) in self.area_free
        def wr(f):
            assert wr_ok(f) and self.wa_ == f // 8
            self.lds(f"ds_write_b128 v{VW}, {vr(tbf(f),4)} offset:{unit(f)}", ("Y", f))
            self.written.add(f); self.wpos = self.gnow
        self.written = set(); self.visible = set(); self.freed = set(); self.rd_at = {}
        self.lds_half = {}; self.landed = set(); self.area_free = set(); self.area_next = set()
        self.wpos = 0; self.ra = 0; self.wa_ = 0
        def at_barrier():
            self.visible |= {f for f in self.written if ("Y", f) not in self.lq}
            self.freed |= {f for f in self.rd_at if ("C", f) not in self.lq}
            self.landed |= {v for v in self.lds_half.values() if v not in self.vq}
            if not any(x and x[0] == "XF" for x in self.lq): self.area_free |= self.area_next
        def bar(vtags=()):
            self.wait(vtags=vtags, ltags=[("Y", x) for x in self.written]); e("s_barrier"); at_barrier()
        def switch(reg, p, attr):
            t = S_TC if attr == "ra" else S_TD
            def f():
                e(f"v_add_u32 v{reg}, s{t}, v{reg}"); setattr(self, attr, p)
            return [("S", self.E(f"s_sub_u32 s{t}, s{area[p][0]}, s{area[p-1][0]}")), ("A", f)]
        def half_dma(tile, H, tidreg, sreg, half):
            what = ("W", L, tile, H)
            it = [self.S(f"s_add_u32 s{S_TH}, s{S_WLM}, {H*256}")] + self.w_setup(tidreg, S_TH)
            d = [self.SU(f"s_add_u32 m0, s{sreg}, s{S_O2+half}", lambda: self.lds_half.__setitem__((self.slot[sreg], half), what))]
            for i in range(4):
                so = "0" if i < 2 else f"s{S_WT+1}"
                d.append(self.VM(f"buffer_load_dwordx4 v{V_WC[i&1]}, {sr(S_W,4)}, {so} offen" + (f" offset:{i*1024}" if i else "") + " lds", what))
            return it, d
        W13, W14, W15 = ("W", L, 13), ("W", L, 14), ("W", L, 15)
        X13, X14, X15 = ("X", L, 13), ("X", L, 14), ("X", L, 15)
        self.lds_half[(self.slot[S_WR], 0)] = W13 + (0,); self.lds_half[(self.slot[S_WR], 1)] = W14 + (0,)
        sc = self.seg_open("A13", [X13, W13, ("P", L, 15)], 8, 7, [0, 1, 2], X13, W13, half=0, nextnt=3); at_barrier()
        gbr = self.poll_check(sc, "A13", ("P", L, 15), 0)
        sc.chain(self.x_setup(S_Q + 1), 3, 15)
        c = sc.chain([self.S(f"s_lshl_b32 s{S_TA}, s{S_WAVE}, 15"), self.S(f"s_lshl_b32 s{S_TB}, s{S_WC64}, 10"), self.S(f"s_sub_u32 s{S_TA}, s{S_TA}, s{S_TB}"),
                      self.S(f"s_lshr_b32 s{S_TB}, s{S_WR14}, 6"), self.S(f"s_sub_u32 s{S_TA}, s{S_TA}, s{S_TB}"), self.S(f"s_add_u32 s{S_WLM}, s{S_WL}, s{S_TA}"),
                      self.S(f"s_lshl_b32 s{S_TA}, s{S_WAVE}, 12"), self.S(f"s_sub_u32 s{S_O2}, 0, s{S_TA}"), self.S(f"s_add_u32 s{S_O3}, s{S_O2}, 0x4000"),
                      self.S(f"s_sub_u32 s{S_Q+2}, s{S_Q+2}, 1")], 5)
        it, d = half_dma(15, 0, S_Q + 1, S_WR + 1, 0)
        c = sc.chain(it, c[-1])
        lastG = self.place_dma(sc, d, max(gbr + 1, c[-1] + 1), o.pacet)
        lastG = self.place_dma(sc, self.dma_items(X15, S_X + 2, "XE"), lastG + 3, o.pacet)
        nx = {}
        sc.chain(self.xa_items(S_X + 1, S_X, nx), 18)
        a, b, c_, d_ = [f"v{V_T+i}" for i in range(4)]
        r7 = self.braw(7)
        adr = [f"v_lshrrev_b32 {a}, 9, v{V_L16}", f"v_lshlrev_b32 {a}, 6, {a}", f"v_add_u32 {a}, {a}, v{V_L16}", f"v_add_u32 {a}, s{S_KEY}, {a}",
               f"v_and_b32 {a}, 0xf0, {a}", f"v_and_b32 {b}, 0x300, v{V_L16}", f"v_add3_u32 v{VW}, {a}, {b}, s{S_E0}",
               f"v_and_b32 {c_}, 0x70, v{V_CPG}",
               f"v_lshrrev_b32 {a}, 3, v{V_L16}", f"v_and_b32 {a}, 0x70, {a}", f"v_add_u32 {a}, s{S_KEY}, {a}",
               f"v_and_b32 {b}, 64, {c_}", f"v_lshl_add_u32 {a}, {b}, 1, {a}", f"v_and_b32 {d_}, 16, {c_}", f"v_lshl_add_u32 {a}, {d_}, 2, {a}",
               f"v_and_b32 {a}, 0xf0, {a}", f"v_lshl_add_u32 {a}, {b}, 4, {a}", f"v_lshl_add_u32 {a}, {d_}, 5, {a}",
               f"v_bfe_u32 {b}, {c_}, 5, 1", f"v_lshl_add_u32 {a}, {b}, 3, {a}", f"v_add_u32 v{VR}, s{S_TF}, {a}"]
        sc.chain([self.S(f"s_lshl_b32 s{S_KEY}, s{S_WC64}, 1"), self.S(f"s_mul_i32 s{S_E0}, s{S_WAVE}, 7168"), self.SU(f"s_sub_u32 s{S_E0}, s{S_WR}, s{S_E0}"),
                  self.S(f"s_lshl_b32 s{S_TF}, s{S_WC64}, 4"), self.S(f"s_sub_u32 s{S_TF}, s{S_E0}, s{S_TF}")], 20, 36)
        self.stream = [self.V(x) + (40,) for x in adr]
        self.stream += [self.V(f"v_mov_b32 v{V_XC[i]}, v{r7+i}") + (64,) for i in range(2)]
        self.credit = 0.0; self.xr = 0.0
        E0 = [134, 230, 326, 390]
        ear = lambda f: E0[f // 8] + 2 * (f % 8)
        self.stream += [U(f, h) + (126,) for f in range(2) for h in range(2)]
        nf = o.nft
        for f in range(nf):
            pos = ear(f)
            it = [("V" if k < 4 else "A", self.E(x)) for k, x in enumerate(self.epi_valu(f // 8, f % 8, tbf(f), None, tbf(f)))]
            if f % 8 == 0 and f: it = it[:6] + switch(VW, f // 8, "wa_") + it[6:]
            w0 = lambda f=f: wr(f)
            w0.ok = lambda f=f: wr_ok(f)
            it += [U(f + 2, 1), ("X", w0), U(f + 2, 0)]
            self.stream += [x + (pos,) for x in it]
        def pub(f, pos):
            def z():
                bar(); assert f in self.visible
            z.ready = lambda g: "skip" if f in self.visible else (f in self.written and g >= self.wpos + 3)
            def r0(): rdback(f, "v", CT, 0)
            def r1(): rdback(f, "v", CT, 1); self.rd_at[f] = self.gnow
            r0.ready = r1.ready = lambda g: g >= self.wpos + 2
            def wt(): self.wait(ltags=[("C", f)])
            wt.ready = lambda g: f in self.rd_at and g >= self.rd_at[f] + 5
            def st(): store(f, vr(CT, 4))
            it = []
            if f % 8 == 0 and f:
                it = switch(VR, f // 8, "ra"); it[0][1].ready = lambda g: True
            it += [("Z", z), ("D", r0), ("D", r1), ("S", wt), ("R", st)]
            for k, x in it: x.pub = True
            return [x + (pos,) for x in it]
        self.stream2 = []
        for f in range(nf): self.stream2 += pub(f, E0[f // 8] + (o.spo + o.sp * (f % 8) if f < 16 else o.spo2 + o.sp2 * (f % 8)))
        self.seg_emit(sc, 0, stamp_at=58)
        self.area_next = {0}
        sc = self.seg_open("C14", [X14], None, 3, [0], X14, W14, half=1, nextnt=1); at_barrier()
        it, d = half_dma(15, 1, S_Q + 1, S_WR + 1, 1)
        c = sc.chain(it, 1)
        self.place_dma(sc, d, 17, 3)
        sc.chain(self.xa_items(S_X + 2, S_X + 1, nx), 16)
        self.wa_sched(sc, S_WR + 1, S_WR, 8, 24)
        self.seg_emit(sc, 64, stamp_at=28)
        sc = self.seg_open("F15", [X15, W15 + (0,)], None, 1, [0, 1, 2, 3, 4], X15, W15, half=lambda nt: nt >> 2, nextnt=5, maxS=1); at_barrier()
        it, d = half_dma(14, 1, S_Q, S_WR + 1, 0)
        c = sc.chain(it, 1)
        sc.g[63].append(("S", lambda: bar([W15 + (1,)])))
        self.place_dma(sc, d, 65, 4)
        sc.chain(self.xa_items(S_X + 1, S_X + 2, nx), 18)
        self.wa_sched(sc, S_WR, S_WR + 1, 20, 16 + 64 + 8)
        self.seg_emit(sc, 96, stamp_at=24)
        sc = self.seg_open("D14", [], None, 5, [2, 3, 4, 5, 6], X14, W14, half=lambda nt: 1 - (nt >> 2), nextnt=7, maxS=1, barrier=False)
        it, d = half_dma(13, 1, S_Q + 2, S_WR, 1)
        c = sc.chain(it, 1)
        def b3():
            self.area_next = {1, 3}; bar([W14 + (1,)])
        sc.g[31].append(("S", b3))
        self.place_dma(sc, d, 33, 4)
        sc.chain(self.xa_items(S_X, S_X + 1, nx), 18)
        self.wa_sched(sc, S_WR + 1, S_WR, 10, 24)
        self.wa_sched(sc, S_WR, S_WR + 1, 50, 16 + 64 + 8)
        self.seg_emit(sc, 192, stamp_at=26)
        sc = self.seg_open("B13", [W13 + (1,)], None, 7, [4, 5, 6], X13, W13, half=1, nextnt=7, maxS=1); at_barrier()
        def b4():
            self.area_next = {2}; bar()
        sc.g[31].append(("S", b4))
        sc.chain(self.xa_items(S_X + 2, S_X, nx), 18)
        self.wa_sched(sc, S_WR + 1, S_WR, 20, 16 + 32 + 8)
        self.seg_emit(sc, 288, stamp_at=24)
        sc = self.seg_open("E15", [], None, 7, [6], X15, W15, half=1, nextnt=7, maxS=1, barrier=False)
        self.seg_emit(sc, 352, stamp_at=24)
        sc = self.seg_open("FIN", [], None, 7, [], None, None, barrier=False, maxS=1)
        self.seg_emit(sc, 384, stamp_at=8)
        for k, fn, pos in self.stream:
            if k == "U": self.mfma(fn)
            else: fn()
        self.stream = []
        while self.stream2 and self.stream2[0][0] in "DSR" and not (self.stream2[0][0] == "S" and self.stream2[1][0] == "A"):
            self.stream2.pop(0)[1]()
        self.stream2 = []
        e("s_nop 7")
        todo = []
        dreg = lambda x: XF(x % 8, (x // 8) & 1)
        def publish():
            bar()
            for x in sorted(self.visible):
                if x not in self.rd_at:
                    if x // 8 != self.ra:
                        for k, fn in switch(VR, x // 8, "ra"): fn()
                    rdback(x, "a", dreg(x), 0); rdback(x, "a", dreg(x), 1); self.rd_at[x] = 0; todo.append(x)
        def drain(n):
            for _ in range(n):
                if todo:
                    x = todo.pop(0); self.wait(ltags=[("C", x)]); store(x, ar(dreg(x), 4))
        assert nf <= 24
        B7 = [V_WC[0], V_XC[0], V_WC[1], V_XC[1]]
        e(f"v_lshlrev_b32 v{B7[0]}, 16, v{B7[1]}"); e(f"v_and_b32 v{B7[1]}, s{S_MASK}, v{B7[1]}")
        e(f"v_lshlrev_b32 v{B7[2]}, 16, v{B7[3]}"); e(f"v_and_b32 v{B7[3]}, s{S_MASK}, v{B7[3]}")
        if self.written - set(self.rd_at): publish()
        for f in range(nf, 32):
            p, mt = f // 8, f % 8
            tb = tbf(f)
            if mt == 0:
                for k, fn in switch(VW, p, "wa_"): fn()
            for h in (1, 0):
                pf, r = ACC(mt, 2 * p + h)
                if pf == "a":
                    for i in range(4): e(f"v_accvgpr_read_b32 v{AT+i}, a{r+i}")
                    if h == 1:
                        for i in range(4): e(f"v_add_f32 v{AT+i}, v{AT+i}, v{B7[i]}")
                    r = AT
                for d2 in range(2): e(f"v_pk_mul_f32 {vr(tb+4*h+2*d2,2)}, {vr(tb+4*h+2*d2,2)}, {vr(r+2*d2,2)}")
            for d2 in range(4): e(f"v_cvt_pk_bf16_f32 v{tb+d2}, v{tb+2*d2}, v{tb+2*d2+1}")
            if f + 2 < 32: self.mfma(U(f + 2, 1)[1])
            wr(f)
            if f + 2 < 32: self.mfma(U(f + 2, 0)[1])
            drain(o.fdrain)
            if (f - nf) % o.fgrp == o.fgrp - 1 or f == 31: publish()
        drain(32)
        assert self.stored == set(range(32))
        e(f"s_or_b32 s{S_TA}, s{S_J}, s{S_WAVE}"); e(f"s_cmp_lg_u32 s{S_TA}, 0"); e("s_cbranch_scc1 L_fin")
        e(f"s_add_u32 s{S_TA}, s{S_EP}, 16"); e(f"v_mov_b32 v{V_FLAG}, s{S_TA}")
        e(f"buffer_store_dword v{V_FLAG}, off, {sr(S_WS,4)}, s{S_EPOFF} sc1")
        self.label("L_fin")
        if o.diag:
            e(f"s_memtime s[{S_ST}:{S_ST+1}]"); e("s_waitcnt vmcnt(0)"); e(f"s_memtime s[{S_ST+2}:{S_ST+3}]")
            e(f"s_memrealtime s[{S_RT+2}:{S_RT+3}]"); e("s_waitcnt lgkmcnt(0)")
            e(f"v_writelane_b32 v{V_ST[0]}, s{S_ST}, 62"); e(f"v_writelane_b32 v{V_ST[1]}, s{S_ST+2}, 62")
            e(f"v_writelane_b32 v{V_ST[0]}, s{S_RT}, 61"); e(f"v_writelane_b32 v{V_ST[1]}, s{S_RT+2}, 61")
            e(f"s_lshl_b32 s{S_TA}, s2, 2"); e(f"s_add_u32 s{S_TA}, s{S_TA}, s{S_WAVE}"); e(f"s_lshl_b32 s{S_TA}, s{S_TA}, 9")
            e(f"s_add_u32 s{S_TA}, s{S_TA}, {hex(ST_OFF)}"); e("v_lshrrev_b32 v0, 2, v0")
            e(f"buffer_store_dword v{V_ST[0]}, v0, {sr(S_WS,4)}, s{S_TA} offen")
            e(f"buffer_store_dword v{V_ST[1]}, v0, {sr(S_WS,4)}, s{S_TA} offen offset:256")
        e("s_endpgm")

    def sizes(self, lines):
        import subprocess, tempfile, os
        labels = set()
        for l in lines:
            m = re.search(r"(?:branch\w*|L_\w+-)\s*(\w+)", l)
        src = '.amdgcn_target "amdgcn-amd-amdhsa--gfx950"\n.text\n'
        body = []
        for l in lines:
            if l.endswith(":"): continue
            if "branch" in l: l = "s_nop 0"
            l = re.sub(r"L_\w+-L_pc(-4)?", "0x12345", l)
            body.append(l)
        with tempfile.TemporaryDirectory() as d:
            open(d + "/a.s", "w").write(src + "\n".join(body) + "\n")
            subprocess.run(["clang", "-x", "assembler", "-target", "amdgcn-amd-amdhsa", "-mcpu=gfx950", "-c", d + "/a.s", "-o", d + "/a.o"], check=True)
            dis = subprocess.run(["llvm-objdump", "-d", "--mcpu=gfx950", d + "/a.o"], capture_output=True, text=True).stdout
        sz = [4 * len(l.split(": ")[-1].split()) for l in dis.splitlines() if "//" in l]
        assert len(sz) == len(body), (len(sz), len(body))
        out = []; k = 0
        for l in lines:
            if l.endswith(":"): out.append(0)
            else: out.append(sz[k]); k += 1
        return out
    def add_hops(self, o, caps):
        sz = self.sizes(o)
        out = ["@HOP"]; pos = 4; nextpage = 4096
        i = 0
        while i < len(o):
            if pos >= nextpage:
                best = None; p = pos; j = i
                while j < len(o) and p < nextpage + 56:
                    if j > 0 and o[j - 1].startswith("v_mfma"):
                        n = 0
                        while j + n < len(o) and not o[j + n].startswith("v_mfma"): n += 1
                        if best is None or n < best[0]: best = (n, j)
                    p += sz[j]; j += 1
                tgt = best[1] if best else i
                while i < tgt:
                    out.append(o[i]); pos += sz[i]; i += 1
                out.append("@HOP"); pos += 4
                nextpage += 4096
                continue
            out.append(o[i]); pos += sz[i]; i += 1
        for b in caps:
            for l in b:
                out.append(l)
                if l.endswith(":") and l in ("CAP_E0:", "CAP_G01:", "CAP_G03:"): out.append("@HOP")
        n = out.count("@HOP"); k = 0; res = []
        for l in out:
            if l == "@HOP":
                res.append(f"HOP{k}:"); res.append(f"s_cbranch_execz " + (f"HOP{k+4}" if k + 4 < n else "HOPEND")); k += 1
            else: res.append(l)
        self.nhops = n
        return res

    def build(self):
        self.stored = set()
        self.prologue()
        main = self.out
        texts = {}
        def gen(kind, layer, t):
            self.out = []
            self.body(kind, layer, t)
            if kind in texts and texts[kind] != self.out:
                for a, b in zip(texts[kind], self.out):
                    if a != b: print("DIFF", kind, layer, t, a, "|", b); break
                raise RuntimeError(f"body {kind} differs at layer {layer} t {t}")
            texts[kind] = self.out
        for layer in range(3):
            for t in range(16 if layer < 2 else 13):
                if layer == 0: kind = "E0" if t == 0 else ("G0" if t < 14 else f"T{t}")
                else: kind = "H0" if t == 0 else (f"S{t}" if t < 4 else ("G1" if t < 14 else f"T{t}"))
                gen(kind, layer, t)
        self.out = []; self.tail(); texts["TAIL"] = self.out
        o = texts["E0"][:]
        o += ["L_G0:"] + texts["G0"] + ["s_cbranch_scc1 L_G0"]
        o += ["L_T14:"] + texts["T14"] + texts["T15"] + texts["H0"] + texts["S1"] + texts["S2"] + texts["S3"]
        o += ["L_G1:"] + texts["G1"] + ["s_cbranch_scc1 L_G1"]
        o += [f"s_cmp_eq_u32 s{S_LAYER}, 1", "s_cbranch_scc1 L_T14"]
        o += ["L_TAIL:"] + texts["TAIL"]
        caps = [b for k, b in self.ool.items() if k.startswith("CAP")]
        slow = [b for k, b in self.ool.items() if not k.startswith("CAP")]
        if self.opt.hops:
            o = self.add_hops(o, caps)
            o = main + ["s_branch L_main"] + sum(slow, []) + [".p2align 12", "L_main:"] + o
        else:
            o = main + o + sum(caps, []) + sum(slow, [])
        self.texts = texts
        hdr = open("standalone__dcn_v2_cross__recsys.s.ref").read().split("\n")
        top = [l for l in hdr if l.startswith(";") and "@launch" not in l]
        if self.opt.diag: top.append("; STAMPS " + ("RT " if self.opt.diagrt else "CY ") + " ".join(self.stamps))
        txt = "\n".join(top) + f"\n; @launch grid=(256,1,1) block=(256,1,1) lds={SLOT*5}\n"
        txt += f""".amdgcn_target "amdgcn-amd-amdhsa--gfx950"
.text
.globl {NAME}
.p2align 8
.type {NAME},@function
{NAME}:
"""
        txt += "\n".join(o) + "\nL_codeend:\n"
        txt += f""".section .rodata,"a"
.p2align 6
.amdhsa_kernel {NAME}
  .amdhsa_next_free_vgpr 512
  .amdhsa_next_free_sgpr 102
  .amdhsa_accum_offset 256
  .amdhsa_group_segment_fixed_size 0
  .amdhsa_kernarg_size 48
  .amdhsa_user_sgpr_count 2
  .amdhsa_user_sgpr_kernarg_segment_ptr 1
  .amdhsa_system_sgpr_workgroup_id_x 1
  .amdhsa_float_denorm_mode_32 3
.end_amdhsa_kernel
"""
        return txt

if __name__ == "__main__":
    ap = argparse.ArgumentParser()
    ap.add_argument("-o", default="k3.s")
    ap.add_argument("--diag", action="store_true")
    ap.add_argument("--diagrt", action="store_true")
    ap.add_argument("--diagc", action="store_true")
    ap.add_argument("--pace", type=float, default=6)
    ap.add_argument("--pacex", type=float, default=6)
    ap.add_argument("--paceh", type=float, default=8)
    ap.add_argument("--pacet", type=float, default=3.3)
    ap.add_argument("--xr15", type=float, default=0.2)
    ap.add_argument("--xr0", type=float, default=-1)
    ap.add_argument("--xrt", type=float, default=0.0)
    ap.add_argument("--flag0", type=int, default=60)
    ap.add_argument("--early", type=int, default=8)
    ap.add_argument("--direct", default="8444")
    ap.add_argument("--cpos", default="222")
    ap.add_argument("--asc", type=int, default=1)
    ap.add_argument("--xtouch", type=int, default=0)
    ap.add_argument("--tpf", type=int, default=0)
    ap.add_argument("--hops", type=int, default=1)
    ap.add_argument("--x0f", default="nt")
    ap.add_argument("--e1out", type=int, default=1)
    ap.add_argument("--wwarm", type=int, default=1)
    ap.add_argument("-x", default="")
    ap.add_argument("--wr128", type=int, default=0)
    ap.add_argument("--nft", type=int, default=24)
    ap.add_argument("--sp", type=float, default=10)
    ap.add_argument("--spo", type=float, default=22)
    ap.add_argument("--sp2", type=float, default=9)
    ap.add_argument("--spo2", type=float, default=16)
    ap.add_argument("--xrb", type=float, default=0.0)
    ap.add_argument("--fdrain", type=int, default=1)
    ap.add_argument("--fgrp", type=int, default=3)
    ap.add_argument("--outf", default="sc1")
    opt = ap.parse_args()
    if opt.diagrt: opt.diag = True
    if opt.xr0 < 0:
        opt.xr0 = 0.1
        while True:
            try:
                g = G(opt); txt = g.build(); break
            except AssertionError as ex:
                if not (ex.args and (ex.args[0] == "stream left" or ex.args[0][0] == "deadline")): raise
                opt.xr0 += 0.01
                if opt.xr0 > 1: raise
    else:
        g = G(opt); txt = g.build()
    open(opt.o, "w").write(txt)
    print(f"xr0 {opt.xr0:.2f} fallback waits:", g.warn, {k: len(v) for k, v in g.texts.items()})
```

```python
import sys, re, argparse

NAME = "standalone__dcn_v2_cross__recsys_kernel"
SLOT = 32768
FL_OFF = 64 << 20
EP_OFF = FL_OFF + 65536
ST_OFF = 80 << 20

def vr(b, n=1, p="v"):
    return f"{p}{b}" if n == 1 else f"{p}[{b}:{b+n-1}]"
def ar(b, n=1): return vr(b, n, "a")
def sr(b, n=1): return vr(b, n, "s")

def XF(mt, s): return (mt * 2 + s) * 4
def WF(buf, s): return 64 + buf * 8 + s * 4
def X0(p, mt): return 80 + (p * 8 + mt) * 4
def SEL(h): return 208 + 4 * h
ACC_A0 = 216
ACC_V0 = 40
_acc = {}
def _init_acc():
    va, aa = ACC_V0, ACC_A0
    for nt in range(8):
        for mt in range(8):
            if nt == 7 or (nt == 6 and mt < 2):
                _acc[(mt, nt)] = ("a", aa); aa += 4
            else:
                _acc[(mt, nt)] = ("v", va); va += 4
    assert va == 256 and aa == 256
_init_acc()
def ACC(mt, nt): return _acc[(mt, nt)]

V_L16 = 0; V_XA = [1, 2]; V_WA = [3, 4]; V_WC = [5, 6]; V_XC = [7, 8]; V_CPG = 15; V_CPL = 9
V_POLL = 10; V_FLAG = 11; V_B = 12; V_ST = [13, 14]; V_T = 16; V_XT = 30
S_DW = 4; S_TR = 5; S_E0 = 6; S_KEY = 7
S_W = 8; S_X0 = 12; S_WS = 16; S_OUT = 20; S_B = 24
S_WT = 28; S_XT = 32
S_X = 36
S_WR = 39
S_Q = 41
S_WCUR = 44; S_WL = 45; S_XB = 46; S_FB = 47; S_FOWN = 48; S_EP = 49; S_NEED = 50; S_FV = 51; S_WLM = 52
S_PA = 53; S_J = 54; S_WAVE = 55; S_RB = 56; S_LOOP = 57; S_LAYER = 58; S_ADJ = 59; S_OADJ = 60; S_WC64 = 61
S_M4 = 62; S_MASK = 65; S_EPOFF = 66; S_CNT = 67; S_CAPJ = 68; S_BOFF = 69
S_TA = 70; S_TB = 71; S_TC = 72; S_TD = 73; S_TE = 74; S_TF = 75; S_O2 = 76; S_O3 = 77; S_WR14 = 78; S_DX = 79
S_PC = 80; S_ST = 82; S_RT = 86; S_SI = 90; S_LEND = 91; S_D0 = 92
S_FQ = 96
S_TG = 99; S_TH = 100; S_M7 = 101; S_XCUR = 3; S_XTO = 28

RANK = {"S": 0, "G": 1, "D": 2, "V": 3}

class Sched:
    def __init__(self, n, maxS=3):
        self.n = n
        self.g = [[] for _ in range(n)]
        self.closedS = set()
        self.maxS = maxS
    def fits(self, g, kind):
        kinds = [k for k, _ in self.g[g]]
        if kind == "G": return len(kinds) == 0
        if "G" in kinds: return False
        nvec = sum(k in "DV" for k in kinds)
        if kind == "S":
            if g in self.closedS or kinds.count("S") >= self.maxS: return False
            return len(kinds) < 3
        return nvec < 2 and len(kinds) < 3
    def put(self, g, kind, fn): self.g[g].append((kind, fn))
    def place(self, kind, fn, lo, hi=None):
        hi = self.n - 1 if hi is None else hi
        for g in range(lo, hi + 1):
            if self.fits(g, kind):
                self.put(g, kind, fn); return g
        raise RuntimeError(f"cannot place {kind} in [{lo},{hi}]")
    def chain(self, items, lo, hi=None):
        out = []; g = lo; pk = None
        for kind, fn in items:
            if pk is not None and (RANK[kind] < RANK[pk] or kind == "G" or pk == "G"): g += 1
            g = self.place(kind, fn, g, hi)
            out.append(g); pk = kind
        return out
    def branch(self, cmpfn, brfn, lo):
        for g in range(lo, self.n - 1):
            if self.fits(g, "S") and self.fits(g + 1, "G"):
                self.put(g, "S", cmpfn); self.closedS.add(g); self.put(g + 1, "G", brfn); return g + 1
        raise RuntimeError("branch")
    def last_su(self):
        last = 0
        for g in range(self.n):
            if any(getattr(f, "su", False) for _, f in self.g[g]): last = g
        return last + 1

def mt_off(mt):
    if mt == 0: return "0", 0
    if mt < 4: return f"s{S_XT+mt}", (mt & 1) * 2048
    return f"s{[S_M4, S_M4+1, S_M4+2, S_M7][mt-4]}", 0

def blk(nt, cinit=False):
    r = []
    for mt in range(8):
        ss = (0, 1) if mt % 2 == 0 else (1, 0)
        r += [(mt, nt, ss[0], cinit), (mt, nt, ss[1], False)]
    return r

class G:
    def __init__(self, opt):
        self.opt = opt
        self.out = []
        self.vq = []; self.lq = []
        self.ool = {}
        self.slot = {}
        self.lds_own = {}
        self.xa = None; self.wa = None
        self.warn = 0
        self.stamps = []
        self.stream = []; self.stream2 = []
        self.pending = None
    def e(self, s): self.out.append(s)
    def E(self, s): return lambda: self.e(s)
    def S(self, s): return ("S", self.E(s))
    def V(self, s): return ("V", self.E(s))
    def SU(self, s, then=None):
        def f():
            self.e(s)
            if then: then()
        f.su = True
        return ("S", f)
    def label(self, n): self.out.append(n + ":")
    def vm(self, s, tag=None):
        self.e(s); self.vq.append(tag); assert len(self.vq) <= 62
    def VM(self, s, tag=None): return ("G", lambda: self.vm(s, tag))
    def lds(self, s, tag=None):
        self.e(s); self.lq.append(tag)
    def _need(self, q, tags, mx, force=None):
        idx = -1
        for i, t in enumerate(q):
            if t in tags: idx = i
        if idx < 0 and force is None: return None
        n = len(q) - 1 - idx
        if force is not None:
            assert n >= force or idx < 0, (n, force, q)
            n = force
        n = min(n, mx)
        if len(q) > n: del q[:len(q) - n]
        return n
    def wait(self, vtags=(), ltags=(), lall=False, vforce=None):
        parts = []
        n = self._need(self.vq, set(vtags), 62, vforce)
        if n is not None: parts.append(f"vmcnt({n})")
        if lall:
            parts.append("lgkmcnt(0)"); self.lq = []
        else:
            n = self._need(self.lq, set(ltags), 14)
            if n is not None: parts.append(f"lgkmcnt({n})")
        if parts: self.e("s_waitcnt " + " ".join(parts))
    def smov(self, d, s):
        def f():
            self.e(f"s_mov_b32 s{d}, s{s}"); self.slot[d] = self.slot[s]
        return ("S", f)

    def mfma(self, m):
        if m[0] == "U":
            _, p, mt, h, tb = m
            self.e(f"v_mfma_f32_16x16x32_bf16 {vr(tb+4*h,4)}, {ar(SEL(h),4)}, {ar(X0(p,mt),4)}, 0")
            return
        mt, nt, s, cinit = m
        buf = nt & 1
        tags = {("XF", mt, s), ("WF", buf, s, 0), ("WF", buf, s, 1)}
        if tags & set(self.lq):
            self.warn += 1
            self.wait(ltags=tags)
        p, r = ACC(mt, nt)
        c = vr(r, 4, p)
        if cinit and p == "v" and mt != 7: c = vr(ACC(7, nt)[1], 4)
        self.e(f"v_mfma_f32_16x16x32_bf16 {vr(r,4,p)}, {ar(WF(buf,s),4)}, {ar(XF(mt,s),4)}, {c}")
    def rd_xf(self, mt, s, want):
        def f():
            assert self.lds_own[self.xa] == want, (self.lds_own[self.xa], want)
            self.lds(f"ds_read_b128 {ar(XF(mt,s),4)}, v{V_XA[s]} offset:{mt*2048}", ("XF", mt, s))
        return f
    def rd_wf(self, nt, s, u, want, half=None):
        p, h = nt >> 1, nt & 1
        if callable(half): half = half(nt)
        off = (p >> 1 if half is None else half) * 16384 + (p & 1) * 512 + s * 8192 + u * 4096
        def f():
            if half is None: assert self.lds_own[self.wa[h]] == want, (self.lds_own[self.wa[h]], want)
            else:
                assert self.lds_half[(self.wa[h], half)] == want + (p >> 1,), (self.lds_half, self.wa[h], half, want, nt)
                assert want + (p >> 1,) in self.landed
            self.lds(f"ds_read_b64_tr_b16 {ar(WF(h,s)+2*u,2)}, v{V_WA[h]} offset:{off}", ("WF", h, s, u))
        return f
    def dma_items(self, what, sdst, form):
        items = []
        for i in range(8):
            if i == 0: items.append(self.SU(f"s_mov_b32 m0, s{sdst}", lambda: self.lds_own.__setitem__(self.slot[sdst], what)))
            if i == 4:
                def chk(): assert self.lds_own[self.slot[sdst]] == what
                items.append(self.SU(f"s_add_u32 m0, s{sdst}, 0x1000", chk))
            off = f" offset:{(i&3)*1024}" if i & 3 else ""
            if form == "W":
                so = "0" if i < 2 else f"s{S_WT+(i>>1)}"
                s = f"buffer_load_dwordx4 v{V_WC[i&1]}, {sr(S_W,4)}, {so} offen{off} lds"
            elif form == "X0":
                so = "0" if i < 2 else f"s{S_XT+(i>>1)}"
                s = f"buffer_load_dwordx4 v{V_XC[i&1]}, {sr(S_X0,4)}, {so} offen{off} {self.opt.x0f} lds"
            else:
                so = "0" if i < 2 else f"s{S_XT+(i>>1)}"
                s = f"buffer_load_dwordx4 v{V_XC[i&1]}, {sr(S_X0,4)}, {so} offen{off} sc1 lds"
            items.append(self.VM(s, what))
        return items
    def place_dma(self, sc, items, lo, pace):
        g = lo; prev = -1; pend = None
        for kind, fn in items:
            if kind == "S": pend = fn; continue
            g0 = max(int(g), prev + 1)
            if pend is not None:
                gs = sc.place("S", pend, max(prev + 1, g0 - 2, 0)); g0 = max(g0, gs + 1); pend = None
            prev = sc.place("G", fn, g0)
            g += pace
        return prev
    def w_setup(self, tidreg, base):
        return [self.S(f"s_lshl_b32 s{S_TA}, s{tidreg}, 17"), self.S(f"s_add_u32 s{S_TA}, s{S_TA}, s{base}"),
                self.S(f"s_sub_u32 s{S_TB}, s{S_TA}, s{S_WCUR}"), self.S(f"s_mov_b32 s{S_WCUR}, s{S_TA}"),
                self.V(f"v_add_u32 v{V_WC[0]}, s{S_TB}, v{V_WC[0]}"), self.V(f"v_add_u32 v{V_WC[1]}, s{S_TB}, v{V_WC[1]}")]
    def x_setup(self, tidreg):
        return [self.S(f"s_lshl_b32 s{S_TE}, s{tidreg}, 7"), self.S(f"s_sub_u32 s{S_DX}, s{S_TE}, s{S_XCUR}"), self.S(f"s_mov_b32 s{S_XCUR}, s{S_TE}"),
                self.V(f"v_add_u32 v{V_XC[0]}, s{S_DX}, v{V_XC[0]}"), self.V(f"v_add_u32 v{V_XC[1]}, s{S_DX}, v{V_XC[1]}")]
    def flag_items(self):
        return [self.V(f"v_mov_b32 v{V_FLAG}, s{S_FV}"),
                self.VM(f"buffer_store_dword v{V_FLAG}, off, {sr(S_WS,4)}, s{S_FOWN} sc1", "F"),
                self.S(f"s_add_u32 s{S_FV}, s{S_FV}, 1")]
    def poll_check(self, sc, name, tag, lo):
        sl, bk = f"SLOW_{name}", f"BACK_{name}"
        def f0():
            assert tag not in self.vq
            self.e(f"v_readfirstlane_b32 s{S_TC}, v{V_POLL}")
        c = sc.chain([self.S(f"s_and_b32 s{S_TD}, s{S_Q+1}, 3"), self.S(f"s_add_u32 s{S_TD}, s{S_TD}, s{S_NEED}"),
                      ("V", f0), self.S(f"s_sub_u32 s{S_TC}, s{S_TC}, s{S_TD}")], lo)
        def br():
            self.e(f"s_cbranch_scc1 {sl}"); self.label(bk)
        gbr = sc.branch(self.E(f"s_cmp_gt_u32 s{S_TC}, 7"), br, c[-1])
        self.ool[sl] = [f"{sl}:", f"s_mov_b32 s{S_CNT}, 0x100000", f"LP_{name}:",
                        f"buffer_load_dword v{V_POLL}, off, {sr(S_WS,4)}, s{S_PA} sc1", "s_waitcnt vmcnt(0)",
                        f"v_readfirstlane_b32 s{S_TC}, v{V_POLL}", f"s_sub_u32 s{S_CNT}, s{S_CNT}, 1", f"s_cbranch_scc1 {bk}",
                        f"s_sub_u32 s{S_TC}, s{S_TC}, s{S_TD}", f"s_cmp_gt_u32 s{S_TC}, 7", f"s_cbranch_scc0 {bk}",
                        "s_sleep 1", f"s_branch LP_{name}"]
        return gbr
    def stamp(self, which):
        if self.opt.diagrt:
            if which == 1:
                self.e(f"s_memtime s[{S_ST}:{S_ST+1}]"); self.e(f"s_memrealtime s[{S_ST+2}:{S_ST+3}]")
            return
        self.e(f"s_memtime s[{S_ST+2*which}:{S_ST+2*which+1}]")
    def stamp_items(self):
        def f():
            self.e(f"s_lshl_b64 exec, 1, s{S_SI}"); self.e(f"v_mov_b32 v{V_ST[0]}, s{S_ST}"); self.e(f"v_mov_b32 v{V_ST[1]}, s{S_ST+2}")
            self.e("s_mov_b64 exec, -1"); self.e(f"s_add_u32 s{S_SI}, s{S_SI}, 1")
        return [("G", f)]
    def epi_valu(self, p, mt, tb, at, ob):
        ops = []
        for h in range(2):
            pf, r = ACC(mt, 2 * p + h)
            if pf == "a":
                for i in range(4): ops.append(f"v_accvgpr_read_b32 v{at+i}, a{r+i}")
                r = at
            for i in range(4): ops.append(f"v_mul_f32 v{tb+4*h+i}, v{tb+4*h+i}, v{r+i}")
        for d in range(4): ops.append(f"v_cvt_pk_bf16_f32 v{ob+d}, v{tb+2*d}, v{tb+2*d+1}")
        return ops
    def braw(self, nt): return V_T + 2 * nt if nt < 6 else V_T + 20 + 2 * (nt - 6)
    def bias_sched(self, sc, nt, g, busy):
        r = self.braw(nt); f0, f2, a0 = V_T + 16, V_T + 17, V_T + 18
        f = [f0, r, f2, r + 1]
        ops = [f"v_lshlrev_b32 v{f0}, 16, v{r}", f"v_and_b32 v{r}, s{S_MASK}, v{r}", f"v_lshlrev_b32 v{f2}, 16, v{r+1}", f"v_and_b32 v{r+1}, s{S_MASK}, v{r+1}"]
        g = sc.chain([self.V(x) for x in ops], g)[-1]
        ops = []
        for mt in range(8):
            pf, a = ACC(mt, nt)
            if pf == "v":
                ops += [f"v_add_f32 v{a+i}, v{a+i}, v{f[i]}" for i in range(4)]
            else:
                for i in (0, 2):
                    ops += [f"v_accvgpr_read_b32 v{a0}, a{a+i}", f"v_accvgpr_read_b32 v{a0+1}, a{a+i+1}",
                            f"v_add_f32 v{a0}, v{a0}, v{f[i]}", f"v_add_f32 v{a0+1}, v{a0+1}, v{f[i+1]}",
                            f"v_accvgpr_write_b32 a{a+i}, v{a0}", f"v_accvgpr_write_b32 a{a+i+1}, v{a0+1}"]
        b0, b1 = busy
        est = g + len(ops) // 2 + len(ops) // 3 + 4
        if est < b0 - 2: lo, hi = g, b0 - 2
        else: lo, hi = max(g, b1 + 6), sc.n - 1
        return sc.chain([self.V(x) for x in ops], lo, hi)[-1]
    def bias0_ops(self, nt):
        r = V_T + 2 * nt
        d = ACC(7, nt)[1]
        return [f"v_lshlrev_b32 v{d}, 16, v{r}", f"v_and_b32 v{d+1}, s{S_MASK}, v{r}",
                f"v_lshlrev_b32 v{d+2}, 16, v{r+1}", f"v_and_b32 v{d+3}, s{S_MASK}, v{r+1}"] + \
               [f"v_add_f32 v{d+i}, 1.0, v{d+i}" for i in range(4)]

    def prologue(self):
        e = self.e; o = self.opt
        e("s_cmp_lt_u32 s2, 256"); e("s_cbranch_scc1 L_go"); e("s_endpgm")
        self.label("L_go")
        e("s_load_dwordx4 s[8:11], s[0:1], 0")
        e("s_load_dwordx4 s[20:23], s[0:1], 16")
        e("s_load_dwordx2 s[16:17], s[0:1], 40")
        if o.diag:
            e(f"s_memrealtime s[{S_RT}:{S_RT+1}]"); e(f"s_memtime s[{S_D0}:{S_D0+1}]")
        e(f"s_getpc_b64 s[{S_PC}:{S_PC+1}]")
        self.label("L_pc")
        e("s_lshr_b32 s3, s2, 3")
        e("v_lshrrev_b32 v16, 4, v0")
        e("v_lshl_add_u32 v16, s3, 4, v16")
        e("v_lshlrev_b32 v16, 7, v16")
        e(f"v_min_u32 v31, L_codeend-L_pc-4, v16")
        self.vm(f"global_load_dword v{V_POLL}, v31, s[{S_PC}:{S_PC+1}]", "PF")
        T = 40
        lane, m, q, r4, c4, q1, tx, tw, t0, t1, t2 = [f"v{T+i}" for i in range(11)]
        e(f"v_lshrrev_b32 {t0}, 6, v0")
        e(f"v_and_b32 {lane}, 63, v0")
        e(f"v_readfirstlane_b32 s{S_WAVE}, {t0}")
        e(f"s_and_b32 s{S_J}, s3, 3")
        e(f"s_and_b32 s{S_RB}, s2, 7"); e(f"s_lshl_b32 s{S_RB}, s{S_RB}, 3")
        e(f"s_lshr_b32 s{S_TC}, s2, 5")
        e(f"s_add_u32 s{S_RB}, s{S_RB}, s{S_TC}")
        e(f"v_and_b32 {m}, 15, {lane}"); e(f"v_lshrrev_b32 {q}, 4, {lane}")
        e(f"v_bfe_u32 {r4}, {lane}, 2, 2"); e(f"v_and_b32 {c4}, 3, {lane}")
        e(f"s_lshl_b32 s{S_TD}, s{S_RB}, 19")
        e(f"s_lshl_b32 s{S_TE}, s{S_J}, 17"); e(f"s_add_u32 s{S_TE}, s{S_TE}, s{S_TD}")
        e(f"s_lshl_b32 s{S_TF}, s{S_WAVE}, 15"); e(f"s_add_u32 s{S_TE}, s{S_TE}, s{S_TF}")
        e(f"v_and_b32 {q1}, 1, {q}"); e(f"v_lshlrev_b32 {tx}, 7, {q1}"); e(f"v_lshl_add_u32 {tx}, {m}, 11, {tx}")
        e(f"s_lshl_b32 s{S_CNT}, s{S_TC}, 15"); e(f"s_lshl_b32 s{S_TF}, s{S_WAVE}, 13"); e(f"s_add_u32 s{S_CNT}, s{S_CNT}, s{S_TF}")
        e(f"s_lshl_b32 s{S_BOFF}, s{S_J}, 9"); e(f"s_add_u32 s{S_CNT}, s{S_CNT}, s{S_BOFF}")
        e(f"v_lshlrev_b32 {tw}, 7, {c4}"); e(f"v_lshl_add_u32 {tw}, {r4}, 11, {tw}")
        e(f"s_mov_b32 s{S_X0+2}, {16384*1024*2}"); e(f"s_mov_b32 s{S_X0+3}, 0x20000")
        e(f"s_mov_b32 s{S_B+2}, {3*1024*2}"); e(f"s_mov_b32 s{S_B+3}, 0x20000")
        e(f"s_lshl_b32 s{S_EPOFF}, s{S_RB}, 7"); e(f"s_add_u32 s{S_EPOFF}, s{S_EPOFF}, {hex(EP_OFF)}")
        e("s_waitcnt lgkmcnt(0)")
        if o.diag: e(f"s_memtime s[{S_ST}:{S_ST+1}]")
        e(f"s_mov_b32 s{S_X0}, s8"); e(f"s_mov_b32 s{S_X0+1}, s9")
        self.vm(f"buffer_load_dword v{V_POLL}, {tx}, {sr(S_X0,4)}, s{S_TE} offen {o.x0f}", "PF")
        e(f"s_mov_b32 s{S_W}, s10"); e(f"s_mov_b32 s{S_W+1}, s11"); e(f"s_mov_b32 s{S_W+2}, {3*1024*1024*2}"); e(f"s_mov_b32 s{S_W+3}, 0x20000")
        self.vm(f"buffer_load_dword v{V_POLL}, {tw}, {sr(S_W,4)}, s{S_CNT} offen", "PF")
        e(f"s_mov_b32 s{S_B}, s20"); e(f"s_mov_b32 s{S_B+1}, s21")
        self.vm(f"buffer_load_dword v{V_POLL}, {tw}, {sr(S_B,4)}, s{S_BOFF} offen", "PF")
        e(f"s_load_dword s{S_EP}, s[{S_WS}:{S_WS+1}], s{S_EPOFF}")
        def w0warm():
            e(f"s_lshl_b32 s{S_PA}, s2, 13"); e(f"s_lshl_b32 s{S_FV}, s{S_WAVE}, 11"); e(f"s_add_u32 s{S_PA}, s{S_PA}, s{S_FV}")
            e(f"v_lshlrev_b32 {t0}, 7, {m}")
            self.vm(f"buffer_load_dword v{V_POLL}, {t0}, {sr(S_W,4)}, s{S_PA} offen", "PF")
        if o.w0warm == 1: w0warm()
        def run(items):
            for k, f in items:
                f()
                if k == "S": e("s_nop 0")
        for r, sl in ((S_X, 0), (S_X + 1, 2), (S_X + 2, 4), (S_WR, 1), (S_WR + 1, 3)):
            e(f"s_add_u32 s{r}, s{S_TF}, {hex(sl*SLOT)}"); self.slot[r] = sl
        e(f"v_lshrrev_b32 {t1}, 3, {lane}"); e(f"v_and_b32 {t2}, 7, {lane}")
        e(f"v_lshrrev_b32 {t0}, 1, {t1}"); e(f"v_xor_b32 {t0}, {t2}, {t0}"); e(f"v_lshlrev_b32 {t0}, 4, {t0}"); e(f"v_lshl_add_u32 {t0}, {t1}, 11, {t0}")
        e(f"s_lshl_b32 s{S_PA}, s{S_WAVE}, 17"); e(f"s_add_u32 s{S_PA}, s{S_PA}, s{S_TD}")
        e(f"v_add_u32 v{V_XC[0]}, s{S_PA}, {t0}")
        e(f"v_xor_b32 v{V_XC[1]}, 64, v{V_XC[0]}"); e(f"v_add_u32 v{V_XC[1]}, {16384-1024}, v{V_XC[1]}")
        for k in range(1, 4): e(f"s_mov_b32 s{S_XT+k}, {k*32768 - (k&1)*2048}")
        xit = self.dma_items(("X", 0, 0), S_X, "X0")
        run(xit[:o.early])
        e(f"v_lshlrev_b32 v{V_L16}, 4, {lane}")
        e(f"s_lshr_b32 s{S_TA}, s{S_WAVE}, 1"); e(f"s_and_b32 s{S_TB}, s{S_WAVE}, 1")
        for k in range(1, 4): e(f"s_mov_b32 s{S_WT+k}, {(16*(k&1) + 4*(k>>1))*2048 - (k&1)*2048}")
        e(f"s_mov_b32 s{S_OUT}, s22"); e(f"s_mov_b32 s{S_OUT+1}, s23"); e(f"s_mov_b32 s{S_OUT+2}, {16384*1024*2}"); e(f"s_mov_b32 s{S_OUT+3}, 0x20000")
        e(f"s_mov_b32 s{S_WS+2}, 0x10000000"); e(f"s_mov_b32 s{S_WS+3}, 0x20000")
        e(f"s_lshl_b32 s{S_FB}, s{S_RB}, 9"); e(f"s_add_u32 s{S_FB}, s{S_FB}, {hex(FL_OFF)}")
        e(f"s_lshl_b32 s{S_WC64}, s{S_TB}, 6"); e(f"s_add_u32 s{S_PA}, s{S_BOFF}, s{S_WC64}")
        e(f"v_lshlrev_b32 {t0}, 3, {q}"); e(f"v_add_u32 v{V_B}, s{S_PA}, {t0}")
        e(f"s_lshl_b32 s{S_PA}, s{S_TA}, 8"); e(f"s_add_u32 s{S_PA}, s{S_PA}, s{S_BOFF}")
        e(f"s_lshl_b32 s{S_FV}, s{S_TB}, 16"); e(f"s_add_u32 s{S_PA}, s{S_PA}, s{S_FV}")
        if not o.wr128:
            e(f"v_lshlrev_b32 {t0}, 4, {c4}"); e(f"v_lshl_add_u32 {t0}, {q}, 6, {t0}"); e(f"v_lshl_add_u32 {t0}, {r4}, 11, {t0}")
        else:
            e(f"v_lshlrev_b32 {t0}, 2, {q1}"); e(f"v_xor_b32 {t0}, {t2}, {t0}"); e(f"v_lshlrev_b32 {t0}, 4, {t0}")
            e(f"v_lshrrev_b32 {tx}, 5, {lane}"); e(f"v_lshl_add_u32 {t0}, {tx}, 7, {t0}")
            e(f"v_and_b32 {tx}, 3, {t1}"); e(f"v_lshl_add_u32 {t0}, {tx}, 11, {t0}")
        e(f"v_add_u32 v{V_WC[0]}, s{S_PA}, {t0}")
        e(f"v_xor_b32 v{V_WC[1]}, 32, v{V_WC[0]}"); e(f"v_add_u32 v{V_WC[1]}, {16384-1024}, v{V_WC[1]}")
        e(f"v_lshrrev_b32 {t0}, 1, {m}"); e(f"v_xor_b32 {t0}, {q}, {t0}"); e(f"v_lshlrev_b32 {t0}, 4, {t0}"); e(f"v_lshl_add_u32 {t0}, {m}, 7, {t0}")
        e(f"s_lshl_b32 s{S_WR14}, s{S_TA}, 14")
        e(f"v_add_u32 v{V_XA[0]}, s{S_WR14}, {t0}"); e(f"v_xor_b32 v{V_XA[1]}, 64, v{V_XA[0]}")
        self.xa = 0
        if not o.wr128:
            e(f"v_lshlrev_b32 {t0}, 10, {q}"); e(f"v_lshl_add_u32 {t0}, {r4}, 6, {t0}"); e(f"v_lshl_add_u32 {t0}, {q1}, 5, {t0}"); e(f"v_lshl_add_u32 {t0}, {c4}, 3, {t0}")
            e(f"s_lshl_b32 s{S_PA}, s{S_TB}, 8"); e(f"s_add_u32 s{S_PA}, s{S_PA}, {SLOT}")
            e(f"v_add_u32 v{V_WA[0]}, s{S_PA}, {t0}")
        else:
            e(f"v_and_b32 {t0}, 2, {r4}"); e(f"v_or_b32 {t0}, {t0}, {q1}"); e(f"v_lshlrev_b32 {t0}, 5, {t0}"); e(f"v_xor_b32 {t0}, s{S_WC64}, {t0}")
            e(f"v_lshl_add_u32 {t0}, {q}, 10, {t0}"); e(f"v_lshl_add_u32 {t0}, {r4}, 7, {t0}"); e(f"v_lshl_add_u32 {t0}, {c4}, 3, {t0}")
            e(f"v_add_u32 v{V_WA[0]}, {SLOT}, {t0}")
        e(f"v_xor_b32 v{V_WA[1]}, 32, v{V_WA[0]}")
        self.wa = [1, 1]
        e(f"v_and_b32 {t1}, 1, {m}"); e(f"v_lshlrev_b32 {t1}, 4, {t1}"); e(f"v_mov_b32 {t2}, 0x3f80"); e(f"v_lshlrev_b32 {t1}, {t1}, {t2}")
        e(f"v_lshlrev_b32 {t2}, 3, {q}"); e(f"v_sub_u32 {t2}, {m}, {t2}"); e(f"v_ashrrev_i32 {t2}, 1, {t2}")
        misc = [f"s_mov_b32 s{S_M4}, 0x20000", f"s_mov_b32 s{S_M4+1}, 0x28000", f"s_mov_b32 s{S_M4+2}, 0x30000", f"s_mov_b32 s{S_MASK}, 0xffff0000",
                f"s_mov_b32 s{S_WL}, 0", f"s_mov_b32 s{S_Q}, 1", f"s_mov_b32 s{S_M7}, 0x38000",
                f"s_lshl_b32 s{S_FOWN}, s{S_J}, 7", f"s_add_u32 s{S_FOWN}, s{S_FOWN}, s{S_FB}", f"s_mul_i32 s{S_OADJ}, s{S_TB}, 7168",
                f"s_mov_b32 s{S_ADJ}, 8192", f"s_mov_b32 s{S_LAYER}, 0", f"s_mov_b32 s{S_CAPJ}, s{S_J}", f"s_mov_b32 s{S_LOOP}, 1",
                f"s_mov_b32 s{S_WCUR}, 0", f"s_mov_b32 s{S_LEND}, 15"]
        for h in range(2):
            for d in range(4):
                e(f"v_cmp_eq_u32 vcc, {d - 8*h}, {t2}"); e(misc.pop(0)); e(misc.pop(0))
                e(f"v_cndmask_b32 {t0}, 0, {t1}, vcc"); e(f"v_accvgpr_write_b32 a{SEL(h)+d}, {t0}")
        for d in range(3):
            if o.asc:
                e(f"s_cmp_ge_u32 {d}, s{S_J}"); e(f"s_cselect_b32 s{S_FQ+d}, {4*(d+1)}, {4*d}")
            else:
                e(f"s_add_u32 s{S_FQ+d}, s{S_J}, {d+1}"); e(f"s_and_b32 s{S_FQ+d}, s{S_FQ+d}, 3"); e(f"s_lshl_b32 s{S_FQ+d}, s{S_FQ+d}, 2")
        e(f"s_lshl_b32 s{S_PA}, s{S_WC64}, 11"); e(f"s_lshl_b32 s{S_FV}, s{S_WC64}, 8"); e(f"s_sub_u32 s{S_PA}, s{S_PA}, s{S_FV}")
        e(f"s_lshl_b32 s{S_FV}, s{S_J}, 9"); e(f"s_sub_u32 s{S_PA}, s{S_FV}, s{S_PA}")
        e(f"v_xor_b32 v{V_CPG}, s{S_WC64}, v{V_XC[0]}"); e(f"v_add_u32 v{V_CPG}, s{S_PA}, v{V_CPG}")
        e(f"s_mov_b32 s{S_XCUR}, {15*128}")
        e(f"v_lshlrev_b32 v{V_XT}, 11, {m}"); e(f"s_add_u32 s{S_XTO}, s{S_TE}, {3*128}")
        e(f"s_lshl_b32 s{S_PA}, s2, 14"); e(f"s_lshl_b32 s{S_FV}, s{S_WAVE}, 12"); e(f"s_add_u32 s{S_PA}, s{S_PA}, s{S_FV}")
        e(f"s_add_u32 s{S_PA}, s{S_PA}, 0x200000")
        e(f"v_min_u32 v{V_CPL}, 2, {c4}"); e(f"v_lshlrev_b32 v{V_CPL}, 7, v{V_CPL}")
        e(f"s_mov_b32 s{S_BOFF}, 2048")
        if o.diag:
            e(f"v_mov_b32 v{V_ST[0]}, 0"); e(f"v_mov_b32 v{V_ST[1]}, 0")
        if o.hops:
            e("s_mov_b64 exec, 0")
            for w in range(1, 4):
                e(f"s_cmp_eq_u32 s{S_WAVE}, {w}"); e(f"s_cbranch_scc1 HOP{w}")
            e("s_branch HOP0")
            self.label("HOPEND")
            e("s_mov_b64 exec, -1")
        run(xit[o.early:])
        def bl(nt): self.vm(f"buffer_load_dwordx2 {vr(V_T+2*nt if nt < 7 else V_T+22,2)}, v{V_B}, {sr(S_B,4)}, 0 offen offset:{(nt>>1)*128 + (nt&1)*32}", ("B", 0, nt))
        bl(0); bl(1)
        run(self.dma_items(("W", 0, 0), S_WR, "W"))
        for nt in range(2, 8): bl(nt)
        if o.w0warm == 2:
            e(f"s_mov_b32 s{S_TA}, s{S_PA}"); w0warm(); e(f"s_mov_b32 s{S_PA}, s{S_TA}")
        if o.diag: e(f"s_memtime s[{S_ST+2}:{S_ST+3}]")
        self.wait(vtags=[("B", 0, 1)])
        for x in self.bias0_ops(0) + self.bias0_ops(1): e(x)
        if o.diag:
            e("s_waitcnt lgkmcnt(0)")
            e(f"v_writelane_b32 v{V_ST[0]}, s{S_D0}, 63")
            e(f"v_writelane_b32 v{V_ST[0]}, s{S_ST}, 60"); e(f"v_writelane_b32 v{V_ST[1]}, s{S_ST+2}, 60")
            e(f"s_mov_b32 s{S_SI}, 0")

    def seg_open(self, name, vt, vforce, prev_nt, nts, X, W, half=None, reload=True, cinit=False, maxS=3, barrier=True, nextnt=None):
        o = self.opt
        dg = o.diag and not (o.diagc and name in ("G0", "G1"))
        if dg: self.stamps.append(name)
        if self.pending: self.mfma(self.pending)
        if dg: self.stamp(0)
        if barrier:
            self.wait(vtags=vt, lall=True, vforce=vforce); self.e("s_barrier")
        else:
            self.wait(ltags=[("WF", prev_nt & 1, s, u) for s in range(2) for u in range(2)])
        if dg: self.stamp(1)
        base = ([] if prev_nt is None else blk(prev_nt)) + sum((blk(nt, cinit) for nt in nts), [])
        off = 0 if prev_nt is None else 16
        self.pending = base[-1] if nts else None
        mf = base[:-1] if nts else base
        sc = Sched(len(mf), maxS)
        sc.mf = mf; sc.off = off; sc.dg = dg
        su = [(s, u) for s in range(2) for u in range(2)]
        if prev_nt is None:
            for s, u in su: self.rd_wf(nts[0], s, u, W, half)()
            for mt in range(8):
                for s in range(2): self.rd_xf(mt, s, X)()
            self.wait(ltags=[("XF", 1, 0), ("XF", 1, 1)])
        elif nts:
            if reload:
                for i in range(16):
                    mt, _, s, _ = base[i]
                    sc.put(i, "D", self.rd_xf(mt, s, X))
            for k, (s, u) in enumerate(su): sc.put(2 * k, "D", self.rd_wf(nts[0], s, u, W, half))
            sc.put(15, "S", lambda: self.wait(ltags=[("XF", 1, 0), ("XF", 1, 1)] + [("WF", nts[0] & 1, s, u) for s, u in su]))
        if reload and nts:
            for mt in (2, 4, 6):
                sc.put(off + 2 * mt - 1, "S", lambda mt=mt: self.wait(ltags=[("XF", mt + 1, 0), ("XF", mt + 1, 1)]))
        sc.blkwait = []
        seq = list(nts[1:]) + [nextnt]
        for b, nt in enumerate(seq):
            if b < len(seq) - 1:
                g = off + 16 * (b + 1) - 1
                sc.put(g, "S", lambda nt=nt: self.wait(ltags=[("WF", nt & 1, s, u) for s, u in su] + [("C",)]))
                sc.blkwait.append(g)
        if nts:
            for b, nt in enumerate(seq):
                for k, (s, u) in enumerate(su): sc.place("D", self.rd_wf(nt, s, u, W, half), off + 16 * b + 2 * k)
        return sc
    def seg_emit(self, sc, gbase=None, check=None, stamp_at=50):
        if sc.dg: sc.chain(self.stamp_items(), stamp_at)
        for g, m in enumerate(sc.mf):
            if check: check(g, m)
            self.mfma(m)
            self.merge_gap(sc, g, None if gbase is None else gbase + g)
    def xa_items(self, new, old, nx):
        def f0():
            self.e(f"v_add_u32 v{V_XA[0]}, s{S_DX}, v{V_XA[0]}"); self.xa = nx["x"]
        return [self.SU(f"s_sub_u32 s{S_DX}, s{new}, s{old}", lambda: nx.update(x=self.slot[new])),
                ("V", f0), self.V(f"v_add_u32 v{V_XA[1]}, s{S_DX}, v{V_XA[1]}")]
    def wa_sched(self, sc, new, old, g_s, g_v):
        nx = {}
        def wa(h):
            def f():
                self.e(f"v_add_u32 v{V_WA[h]}, s{S_DW}, v{V_WA[h]}"); self.wa[h] = nx["w"]
            return f
        k, f = self.SU(f"s_sub_u32 s{S_DW}, s{new}, s{old}", lambda: nx.update(w=self.slot[new]))
        sc.place(k, f, g_s, g_v - 1)
        sc.chain([("V", wa(0)), ("V", wa(1))], g_v)

    def body(self, kind, layer, t):
        o = self.opt
        X = ("X", layer, t); W = ("W", layer, t)
        first = kind == "E0"
        vt = [X, W, ("P", layer, t + 2)]
        if kind == "S1": vt.append(("B", layer, 1))
        if kind == "S2": vt.append(("B", layer, 0))
        vforce = {"G0": min(9 + (1 if o.xtouch else 0) + (1 if o.tpf & 2 else 0), 10 + (1 if o.xtouch else 0)), "G1": 8, "T14": 8}.get(kind)
        sc = self.seg_open(kind, vt, vforce, None if first else 7, list(range(7)), X, W, cinit=first,
                           maxS=1 if kind in ("T15", "H0") else 3, nextnt=7)
        n, off = sc.n, sc.off
        if kind in ("G0", "G1"):
            sc.put(n - 1, "G", lambda: None)
            sc.put(n - 2, "S", self.E(f"s_cmp_lt_u32 s{S_LOOP}, " + ("14" if kind == "G0" else f"s{S_LEND}"))); sc.closedS.add(n - 2)
        pace = 4 if first else o.pace
        gw = off + 1
        lastG = gw
        if kind == "H0":
            def xb():
                assert not any(x and x[0] == "XF" for x in self.lq)
                self.e("s_barrier")
            gb = sc.place("S", xb, off + 12)
            gw = gb + 1
        if kind == "G1":
            sc.put(0, "S", self.E(f"s_cmp_eq_u32 s{S_LOOP}, s{S_KEY}")); sc.closedS.add(0)
            sc.put(1, "S", self.E(f"s_cselect_b32 s{S_TG}, s{S_Q+1}, s{S_Q}")); sc.put(1, "S", self.E(f"s_cselect_b32 s{S_TH}, s{S_WLM}, s{S_WL}"))
            c = sc.chain(self.w_setup(S_TG, S_TH), 2)
        elif kind != "T15":
            c = sc.chain(self.w_setup(S_Q, S_WL), max(0, gw - 14))
        if kind != "T15":
            lastG = self.place_dma(sc, self.dma_items(("W", layer, t + 1), S_WR + 1, "W"), max(gw, c[-1] + 1), pace if kind != "H0" else o.paceh)
        gx = lastG + int(pace)
        if kind in ("S1", "S2", "S3", "G1"):
            if kind != "S1":
                gbr = self.poll_check(sc, kind, ("P", layer, t + 2), off + 8)
                assert gbr < lastG - 1
            c = sc.chain([self.S(f"s_lshr_b32 s{S_PA}, s{S_Q+2}, 2"), self.S(f"s_lshl_b32 s{S_PA}, s{S_PA}, 7"),
                          self.S(f"s_add_u32 s{S_PA}, s{S_PA}, s{S_FB}")], lastG - 1)
            k, f = self.VM(f"buffer_load_dword v{V_POLL}, off, {sr(S_WS,4)}, s{S_PA} sc1", ("P", layer, t + 3))
            gp = sc.place(k, f, max(c[-1], lastG) + 2)
            gx = max(gx, gp + 2); lastG = gp
        xadv = [self.V(f"v_add_u32 v{V_XC[i]}, 128, v{V_XC[i]}") for i in range(2)]
        if first:
            sc.chain(xadv, 4)
            lastG = self.place_dma(sc, self.dma_items(("X", 0, 1), S_X + 1, "X0"), gx, pace)
            c = sc.chain(xadv, lastG + 1)
            lastG = self.place_dma(sc, self.dma_items(("X", 0, 2), S_X + 2, "X0"), max(lastG + pace, c[-1] + 1), pace)
        if kind == "G0":
            ww = [self.VM(f"buffer_load_dword v{V_POLL}, v{V_CPL}, {sr(S_W,4)}, s{S_PA} offen", "PW"), self.S(f"s_add_u32 s{S_PA}, s{S_PA}, {384 if o.wwarm else 0}")]
            if not o.xtouch: sc.chain(ww, lastG + 3)
            sc.chain(xadv, off + 20)
            lastG = self.place_dma(sc, self.dma_items(("X", layer, t + 2), S_X + 2, "X0"), gx, o.pacex)
            if o.xtouch: lastG = sc.chain(ww, lastG + 3)[0]
        if kind in ("E0", "G0") and o.xtouch:
            sc.chain([self.VM(f"buffer_load_dword v{V_POLL}, v{V_XT}, {sr(S_X0,4)}, s{S_XTO} offen nt", "PW"),
                      self.S(f"s_add_u32 s{S_XTO}, s{S_XTO}, 128")], lastG + 3)
        if kind == "G0" and o.tpf & 2:
            sc.chain([self.VM(f"global_load_dword v{V_POLL}, v31, s[{S_PC}:{S_PC+1}]", "PW")], lastG + 6)
        if kind == "S1" and o.tpf & 1:
            sc.chain([self.S(f"s_lshr_b32 s{S_TE}, s2, 3"), self.S(f"s_lshl_b32 s{S_TE}, s{S_TE}, 9"), self.S(f"s_lshl_b32 s{S_TF}, s{S_WAVE}, 7"),
                      self.S(f"s_add_u32 s{S_TE}, s{S_TE}, s{S_TF}"), self.S(f"s_add_u32 s{S_TE}, s{S_TE}, L_TAIL-L_pc"),
                      self.S(f"s_min_u32 s{S_TE}, s{S_TE}, L_codeend-L_pc-4"), self.V(f"v_mov_b32 v{V_FLAG}, s{S_TE}"),
                      self.VM(f"global_load_dword v{V_FLAG}, v{V_FLAG}, s[{S_PC}:{S_PC+1}]", "PW")], off + 4, lastG - 1)
        if kind in ("S2", "S3", "G1"):
            c = sc.chain(self.x_setup(S_Q + 1), 8, off - 1)
            assert c[-1] < gx
            lastG = self.place_dma(sc, self.dma_items(("X", layer, t + 2), S_X + 2, "XE"), gx, o.pacex)
        if kind == "T14":
            it = [self.S(f"s_mov_b32 s{S_WT+k}, {k*16384 - (k&1)*2048}") for k in range(1, 4)]
            it += [self.S(f"s_add_u32 s{S_WL}, s{S_WL}, 0x200000"), self.S(f"s_lshl_b32 s{S_Q}, s{S_J}, 2"),
                   self.V(f"v_subrev_u32 v{V_WC[1]}, s{S_ADJ}, v{V_WC[1]}"), self.S(f"s_mov_b32 s{S_ADJ}, 0")]
            it += self.w_setup(S_Q, S_WL)
            c = sc.chain(it, lastG + 1)
            lastG = self.place_dma(sc, self.dma_items(("W", layer + 1, 0), S_X + 2, "W"), max(gx, c[-1] + 1), pace - 1)
        if kind == "T15":
            sc.put(0, "S", self.E(f"s_cmp_eq_u32 s{S_LAYER}, 0")); sc.closedS.add(0)
            if o.e1out: sc.put(1, "S", self.E(f"s_cselect_b64 s[{S_X0}:{S_X0+1}], s[{S_OUT}:{S_OUT+1}], s[{S_WS}:{S_WS+1}]"))
            else:
                sc.put(1, "S", self.E(f"s_cselect_b32 s{S_TE}, 0x2000000, 0"))
                def f64():
                    self.e(f"s_add_u32 s{S_X0}, s{S_WS}, s{S_TE}"); self.e(f"s_addc_u32 s{S_X0+1}, s{S_WS+1}, 0")
                sc.put(17, "G", f64)
            sc.chain([self.S(f"s_lshl_b32 s{S_TD}, s{S_LAYER}, 2"), self.S(f"s_add_u32 s{S_NEED}, s{S_NEED}, s{S_TD}"),
                      self.S(f"s_mov_b32 s{S_FV}, s{S_NEED}"),
                      self.S(f"s_lshr_b32 s{S_TD}, s{S_WAVE}, 1"), self.S(f"s_mul_i32 s{S_TD}, s{S_TD}, s{S_LAYER}"), self.S(f"s_mul_i32 s{S_KEY}, s{S_TD}, 12"),
                      self.S(f"s_sub_u32 s{S_WLM}, s{S_WL}, 256"), self.S(f"s_sub_u32 s{S_LEND}, s{S_LEND}, 1"),
                      self.S(f"s_add_u32 s{S_LAYER}, s{S_LAYER}, 1")], 2, 30)
        if first:
            sc.chain([self.V(f"v_lshlrev_b32 v{V_FLAG}, 3, v{V_L16}"), self.V(f"v_and_b32 v{V_FLAG}, 0x180, v{V_FLAG}"),
                      self.VM(f"buffer_load_dword v{V_POLL}, v{V_FLAG}, {sr(S_WS,4)}, s{S_FB} offen sc1", "PW")], 68)
            sc.chain([self.S(f"s_add_u32 s{S_NEED}, s{S_EP}, 1"), self.S(f"s_mov_b32 s{S_FV}, s{S_EP}")] + self.flag_items(), 98)
        if kind == "H0":
            def fb():
                self.wait(vtags=[("S", layer, 0)]); self.e("s_barrier")
            g = sc.place("G", fb, off + o.flag0)
            sc.chain(self.flag_items(), g + 1)
        if kind == "S3":
            assert ("S", layer, 1) not in self.vq
            sc.chain(self.flag_items(), off + 3)
        if kind == "G1":
            assert ("S", layer, min(t - 2, 3)) not in self.vq
            sc.chain(self.flag_items() + [self.S(f"s_sub_u32 s{S_TF}, s{S_FV}, s{S_NEED}"), self.S(f"s_min_u32 s{S_TF}, s{S_TF}, 3"),
                                          self.S(f"s_add_u32 s{S_FV}, s{S_TF}, s{S_NEED}")], off + 3)
        CT = V_T + 12
        if kind in ("S1", "S2", "S3"):
            jobs = [mt for mt in range(8) if not self.is_direct(t, mt)]
            def chk(): assert self.lds_own[self.slot[S_X]] == ("X", layer, t)
            c = sc.chain([self.SU(f"s_sub_u32 s{S_E0}, s{S_X}, s{S_OADJ}", chk), self.V(f"v_add_u32 v{V_CPL}, s{S_E0}, v{V_L16}")], 8)
            gprev = c[-1]
            w0 = int(o.cpos[t - 1])
            assert w0 + len(jobs) <= 6
            for k, mt in enumerate(jobs):
                w = sc.blkwait[k + w0]
                sc.place("D", lambda mt=mt: self.lds(f"ds_read_b128 {vr(CT,4)}, v{V_CPL} offset:{mt*2048}", ("C",)), max(gprev + 1, w - 9), w - 1)
                def st(mt=mt):
                    assert ("C",) not in self.lq
                    so, im = mt_off(mt)
                    self.vm(f"buffer_store_dwordx4 {vr(CT,4)}, v{V_CPG}, {sr(S_X0,4)}, {so} offen offset:{im + t*128} sc1", ("S", layer, t))
                gprev = sc.place("G", st, w + 1)
        gcap = 0
        if kind in ("E0", "G0", "T14", "T15"):
            cap, bk = f"CAP_{kind}", f"CB_{kind}"
            def br():
                self.e(f"s_cbranch_scc1 {cap}"); self.label(bk)
            def blkc(p):
                return [f"v_xor_b32 v{V_FLAG}, s{S_WC64}, v{V_XA[0]}"] + [f"ds_read_b128 {ar(X0(p,mt),4)}, v{V_FLAG} offset:{mt*2048}" for mt in range(8)] + [f"s_branch {bk}"]
            if kind == "G0":
                c = sc.chain([self.S(f"s_lshr_b32 s{S_TC}, s{S_LOOP}, 2")], off + 16)
                gcap = sc.branch(self.E(f"s_cmp_eq_u32 s{S_TC}, s{S_CAPJ}"), br, c[-1])
                b = [f"{cap}:", f"s_and_b32 s{S_TC}, s{S_LOOP}, 3"]
                for p in range(1, 4): b += [f"s_cmp_eq_u32 s{S_TC}, {p}", f"s_cbranch_scc1 {cap}{p}"]
                b += blkc(0)
                for p in range(1, 4): b += [f"{cap}{p}:"] + blkc(p)
                self.ool[cap] = b
            else:
                gcap = sc.branch(self.E(f"s_cmp_eq_u32 s{S_CAPJ}, {t >> 2}"), br, off + (12 if kind == "T15" else 16))
                self.ool[cap] = [f"{cap}:"] + blkc(t & 3)
        gXA = max(gcap + 1, off + 2)
        nx = {}
        if kind == "T15":
            def f0():
                self.e(f"v_add_u32 v{V_XA[0]}, s{S_TA}, v{V_L16}"); self.xa = nx["x"]
            sc.chain([self.S(f"s_lshl_b32 s{S_TA}, s{S_WC64}, 7"),
                      self.SU(f"s_sub_u32 s{S_TA}, s{S_X+2}, s{S_TA}", lambda: nx.update(x=self.slot[S_X + 2])),
                      ("V", f0), self.V(f"v_add_u32 v{V_XA[1]}, 1024, v{V_XA[0]}"), self.S(f"s_mov_b32 s{S_CAPJ}, 77")], gXA)
            wnext = S_X + 1
        else:
            sc.chain(self.xa_items(S_X + 1, S_X, nx), gXA)
            wnext = S_WR + 1
        self.wa_sched(sc, wnext, S_WR, gXA, off + 16 * 6 + 8)
        def bload(nt):
            return lambda: self.vm(f"buffer_load_dwordx2 {vr(self.braw(nt),2)}, v{V_B}, {sr(S_B,4)}, s{S_BOFF} offen offset:{(nt>>1)*128 + (nt&1)*32}", ("B", layer, nt // 6))
        if kind == "H0":
            g = gb - 8
            for nt in (6, 7): g = sc.place("G", bload(nt), g) + 1
            assert g < lastG
        if kind == "S1":
            g = off + 3
            for nt in range(6): g = sc.place("G", bload(nt), g) + 4
        if kind in ("S1", "S2", "S3", "T14"):
            g = 8 if kind == "S1" else 0
            for nt in {"S1": [6], "S2": [4, 5, 0], "S3": [3, 1, 2], "T14": [7]}[kind]:
                b0 = 0 if nt == 7 else off + 16 * nt
                g = self.bias_sched(sc, nt, g, (b0, b0 + 16))
            if kind == "S3": sc.place("S", self.E(f"s_add_u32 s{S_BOFF}, s{S_BOFF}, 2048"), 4)
        if first:
            ops = []
            for mt in range(8): ops += [f"v_accvgpr_write_b32 a{ACC(mt,7)[1]+i}, 1.0" for i in range(4)]
            g = sc.place("S", lambda: self.wait(vtags=[("B", 0, 7)]), 16) + 1
            sc.chain([self.V(x) for x in ops[:14]], 0)
            for nt in range(2, 7):
                g = sc.chain([self.V(x) for x in self.bias0_ops(nt)], g, 16 * nt - 2)[-1]
            ops = ops[14:]
            for mt in range(2): ops += [f"v_accvgpr_write_b32 a{ACC(mt,6)[1]+i}, v{ACC(7,6)[1]+i}" for i in range(4)]
            sc.chain([self.V(x) for x in ops], g, 96 - 2)
        self.slot[S_TR] = None
        if kind == "T15":
            rot = [self.smov(S_O2, S_X), self.smov(S_O3, S_WR), self.smov(S_WR, S_X + 1), self.smov(S_X + 1, S_WR + 1),
                   self.smov(S_X, S_X + 2), self.smov(S_WR + 1, S_X + 2)]
        elif kind == "H0":
            rot = [self.smov(S_X, S_X + 1), self.smov(S_X + 1, S_O2), self.smov(S_X + 2, S_O3),
                   self.smov(S_TR, S_WR), self.smov(S_WR, S_WR + 1), self.smov(S_WR + 1, S_TR)]
        else:
            rot = [self.smov(S_TR, S_X), self.smov(S_X, S_X + 1), self.smov(S_X + 1, S_X + 2), self.smov(S_X + 2, S_TR),
                   self.smov(S_TR, S_WR), self.smov(S_WR, S_WR + 1), self.smov(S_WR + 1, S_TR)]
        q = []
        if kind in ("E0", "G0", "T15", "H0"): q = [self.S(f"s_add_u32 s{S_Q}, s{S_Q}, 1")]
        if kind == "H0": q += [self.S(f"s_add_u32 s{S_Q+1}, s{S_Q}, 1"), self.S(f"s_mov_b32 s{S_Q+2}, s{S_FQ}")]
        if kind in ("S1", "S2"):
            q = [self.S(f"s_mov_b32 s{S_Q}, s{S_Q+1}"), self.S(f"s_mov_b32 s{S_Q+1}, s{S_Q+2}"), self.S(f"s_mov_b32 s{S_Q+2}, s{S_FQ+t}")]
        if kind in ("S3", "G1"):
            q = [self.S(f"s_add_u32 s{S_TE}, s{S_Q}, 1"), self.S(f"s_mov_b32 s{S_Q}, s{S_Q+1}"), self.S(f"s_mov_b32 s{S_Q+1}, s{S_Q+2}"),
                 self.S(f"s_mov_b32 s{S_Q+2}, s{S_TE}")]
        if kind == "S3": q += [self.S(f"s_mov_b32 s{S_LOOP}, 4")]
        sc.chain(q, max(gx, off + 60))
        if kind in ("G0", "G1"): rot += [self.S(f"s_add_u32 s{S_LOOP}, s{S_LOOP}, 1")]
        sc.chain(rot, max(sc.last_su(), 108 if kind in ("T15", "H0") else 0))
        if kind == "T15": self.make_stream(layer + 1)
        def check(g, m):
            if kind == "H0" and g >= off: assert (m[1] >> 1) * 8 + m[0] in self.epi_done, ("deadline", m)
        self.xr = o.xr15 if kind == "T15" else o.xr0
        self.seg_emit(sc, {"T15": 0, "H0": 128}.get(kind), check, 86 if first else off + 50)
        if kind == "T15": assert all(f in self.wr_done for f in range(8))
        if kind == "H0": assert not self.stream, "stream left"

    def is_direct(self, p, mt):
        n = int(self.opt.direct[p])
        return ((mt + 1) * n) // 8 != (mt * n) // 8
    def make_stream(self, nl):
        st = []
        self.epi_done = set(); self.wr_done = set()
        tbf = lambda f: V_T + 8 * (f % 2)
        U = lambda f, h: ("U", ("U", f // 8, f % 8, h, tbf(f)))
        self.stream = [U(f, h) + (30,) for f in range(2) for h in range(2)]
        self.credit = 0.0
        for f in range(32):
            p, mt = f // 8, f % 8
            tb = tbf(f)
            pos = 38 + 32 * p + 2 * mt
            sreg = {0: S_X + 2, 1: S_WR + 1, 2: S_O2, 3: S_O3}[p]
            ops = self.epi_valu(p, mt, tb, V_T + 16, tb)
            it = []
            for k, x in enumerate(ops):
                kd = "V" if (k < 4 or f == 31) else "A"
                if k == len(ops) - 5: it.append((kd, lambda x=x, f=f: (self.e(x), self.epi_done.add(f)), pos))
                else: it.append((kd, self.E(x), pos))
            if p >= 2: pos = max(pos, 129)
            if mt == 0:
                def f0(p=p, sreg=sreg):
                    self.lds_own[self.slot[sreg]] = ("X", nl, p)
                    self.e(f"s_sub_u32 s{S_E0}, s{sreg}, s{S_OADJ}")
                a = [("S", f0, pos), ("A", self.E(f"v_add_u32 v{V_CPL}, s{S_E0}, v{V_L16}"), pos)]
                it = it[:6] + a + it[6:] if p != 2 else it + a
            if self.is_direct(p, mt):
                so, im = mt_off(mt)
                it += [("R", lambda p=p, im=im, tb=tb, so=so: self.vm(f"buffer_store_dwordx4 {vr(tb,4)}, v{V_CPG}, {sr(S_X0,4)}, {so} offen offset:{im + p*128} sc1", ("S", nl, p)), pos)]
            if f + 2 < 32: it += [U(f + 2, 1) + (pos,)]
            it += [("X", lambda f=f, mt=mt, tb=tb: (self.lds(f"ds_write_b128 v{V_CPL}, {vr(tb,4)} offset:{mt*2048}", ("O",)), self.wr_done.add(f)), pos)]
            if f + 2 < 32: it += [U(f + 2, 0) + (pos,)]
            self.stream += it

    def merge_gap(self, sc, g, gpos):
        fixed = sc.g[g]
        self.gnow = gpos
        while True:
            cur = list(fixed)
            excl = any(k == "G" for k, _ in cur)
            hasR = False
            newgap = None
            top = -1
            if gpos is not None: self.credit = min(self.credit + self.xr, 2.0)
            def cnt(): return sum(k in "DV" for k, _ in cur), sum(getattr(f, "w", 1) for k, f in cur)
            def free():
                nvec, tot = cnt()
                if hasR: return nvec < 2
                return not excl and nvec < 2 and tot < 3
            def lookahead():
                i = 0
                while i < len(self.stream) and self.stream[i][0] in "RUX": i += 1
                while i < len(self.stream) and self.stream[i][0] == "V" and self.stream[i][2] <= gpos + 1 and free():
                    cur.append(("V", self.stream.pop(i)[1]))
            if gpos is not None and fixed is sc.g[g] and not (self.stream and getattr(self.stream[0][1], "pub", False)):
                while self.stream2 and self.stream2[0][2] <= gpos + 1:
                    k, fn, pos = self.stream2[0]
                    st = fn.ready(gpos)
                    if st == "skip": self.stream2.pop(0); continue
                    if st:
                        grp = [self.stream2.pop(0)]
                        if k == "S": grp.append(self.stream2.pop(0))
                        self.stream[0:0] = grp
                    break
            while gpos is not None and self.stream:
                k, fn, pos = self.stream[0]
                if pos > gpos + 1:
                    break
                if k == "U" and len(self.stream) > 1 and hasattr(self.stream[1][1], "ok") and not self.stream[1][1].ok():
                    lookahead(); break
                if k == "U":
                    lookahead()
                    newgap = fn; self.stream.pop(0); break
                if k == "X":
                    nxt = [kk for gg in (g + 1, g + 2) if gg < sc.n for kk, _ in sc.g[gg]]
                    follow_u = len(self.stream) > 1 and self.stream[1][0] == "U"
                    if any(kk != "S" for kk, _ in cur) or (not follow_u and "D" in nxt and fixed is sc.g[g]):
                        lookahead(); break
                    cur.append(("G", fn)); excl = True; self.stream.pop(0); continue
                if k == "R":
                    if excl or top > 0:
                        lookahead(); break
                    cur.append(("G", fn)); excl = True; hasR = True; top = 1; self.stream.pop(0); continue
                if k in "SZ":
                    w = 2 if k == "Z" else 1
                    if excl or top > 0 or (g in sc.closedS and fixed is sc.g[g]) or cnt()[1] + w > 3: break
                    fn.w = w
                    cur.append(("S", fn)); top = 0; self.stream.pop(0); continue
                if k == "D":
                    if top > 2 or not free(): break
                    cur.append(("D", fn)); top = 2; self.stream.pop(0); continue
                ok = free()
                if not ok and not excl and self.credit >= 1.0 and cnt()[0] < 3 and cnt()[1] < 4:
                    self.credit -= 1.0; ok = True
                if not ok: break
                cur.append(("V", fn)); top = 3; self.stream.pop(0)
            ks = [k for k, _ in cur]
            if ks.count("D") == 2 and "S" not in ks and "G" not in ks: cur.append(("S", self.E("s_nop 0")))
            for k, fn in sorted(cur, key=lambda x: RANK[x[0]]): fn()
            if newgap is None: return
            self.mfma(newgap)
            fixed = []

    def tail(self):
        e = self.e; o = self.opt
        L = 2
        VW, VR = V_POLL, V_CPL
        CT = V_T + 20; AT = V_T + 16
        tbf = lambda f: V_T + 8 * (f % 2)
        U = lambda f, h: ("U", ("U", f // 8, f % 8, h, tbf(f)))
        depth = lambda f: 4 if f < 8 else 8
        unit = lambda f: (f % depth(f)) * 4096
        area = {0: (S_WR, 0), 1: (S_X + 1, 0), 2: (S_X, 0), 3: (S_X + 1, 0)}
        def rdback(f, p, r, k):
            assert f in self.visible and self.ra == f // 8
            self.lds(f"ds_read_b64 {vr(r+2*k,2,p)}, v{VR} offset:{unit(f) + 256*k}", ("C", f))
        def store(f, dst):
            assert ("C", f) not in self.lq
            so, im = mt_off(f % 8)
            self.vm(f"buffer_store_dwordx4 {dst}, v{V_CPG}, {sr(S_OUT,4)}, {so} offen offset:{im + (f//8)*128} {o.outf}", "SO")
            self.stored.add(f)
        def wr_ok(f):
            prev = {0: f - 4, 1: -1, 2: -1, 3: f - 16}[f // 8]
            return (prev < 0 or prev in self.freed) and (f // 8) in self.area_free
        def wr(f):
            assert wr_ok(f) and self.wa_ == f // 8
            self.lds(f"ds_write_b128 v{VW}, {vr(tbf(f),4)} offset:{unit(f)}", ("Y", f))
            self.written.add(f); self.wpos = self.gnow
        self.written = set(); self.visible = set(); self.freed = set(); self.rd_at = {}
        self.lds_half = {}; self.landed = set(); self.area_free = set(); self.area_next = set()
        self.wpos = 0; self.ra = 0; self.wa_ = 0
        def at_barrier():
            self.visible |= {f for f in self.written if ("Y", f) not in self.lq}
            self.freed |= {f for f in self.rd_at if ("C", f) not in self.lq}
            self.landed |= {v for v in self.lds_half.values() if v not in self.vq}
            if not any(x and x[0] == "XF" for x in self.lq): self.area_free |= self.area_next
        def bar(vtags=()):
            self.wait(vtags=vtags, ltags=[("Y", x) for x in self.written]); e("s_barrier"); at_barrier()
        def switch(reg, p, attr):
            t = S_TC if attr == "ra" else S_TD
            def f():
                e(f"v_add_u32 v{reg}, s{t}, v{reg}"); setattr(self, attr, p)
            return [("S", self.E(f"s_sub_u32 s{t}, s{area[p][0]}, s{area[p-1][0]}")), ("A", f)]
        def half_dma(tile, H, tidreg, sreg, half):
            what = ("W", L, tile, H)
            it = [self.S(f"s_add_u32 s{S_TH}, s{S_WLM}, {H*256}")] + self.w_setup(tidreg, S_TH)
            d = [self.SU(f"s_add_u32 m0, s{sreg}, s{S_O2+half}", lambda: self.lds_half.__setitem__((self.slot[sreg], half), what))]
            for i in range(4):
                so = "0" if i < 2 else f"s{S_WT+1}"
                d.append(self.VM(f"buffer_load_dwordx4 v{V_WC[i&1]}, {sr(S_W,4)}, {so} offen" + (f" offset:{i*1024}" if i else "") + " lds", what))
            return it, d
        W13, W14, W15 = ("W", L, 13), ("W", L, 14), ("W", L, 15)
        X13, X14, X15 = ("X", L, 13), ("X", L, 14), ("X", L, 15)
        self.lds_half[(self.slot[S_WR], 0)] = W13 + (0,); self.lds_half[(self.slot[S_WR], 1)] = W14 + (0,)
        sc = self.seg_open("A13", [X13, W13, ("P", L, 15)], 8, 7, [0, 1, 2], X13, W13, half=0, nextnt=3); at_barrier()
        gbr = self.poll_check(sc, "A13", ("P", L, 15), 0)
        sc.chain(self.x_setup(S_Q + 1), 3, 15)
        c = sc.chain([self.S(f"s_lshl_b32 s{S_TA}, s{S_WAVE}, 15"), self.S(f"s_lshl_b32 s{S_TB}, s{S_WC64}, 10"), self.S(f"s_sub_u32 s{S_TA}, s{S_TA}, s{S_TB}"),
                      self.S(f"s_lshr_b32 s{S_TB}, s{S_WR14}, 6"), self.S(f"s_sub_u32 s{S_TA}, s{S_TA}, s{S_TB}"), self.S(f"s_add_u32 s{S_WLM}, s{S_WL}, s{S_TA}"),
                      self.S(f"s_lshl_b32 s{S_TA}, s{S_WAVE}, 12"), self.S(f"s_sub_u32 s{S_O2}, 0, s{S_TA}"), self.S(f"s_add_u32 s{S_O3}, s{S_O2}, 0x4000"),
                      self.S(f"s_sub_u32 s{S_Q+2}, s{S_Q+2}, 1")], 5)
        it, d = half_dma(15, 0, S_Q + 1, S_WR + 1, 0)
        c = sc.chain(it, c[-1])
        lastG = self.place_dma(sc, d, max(gbr + 1, c[-1] + 1), o.pacet)
        lastG = self.place_dma(sc, self.dma_items(X15, S_X + 2, "XE"), lastG + 3, o.pacet)
        nx = {}
        sc.chain(self.xa_items(S_X + 1, S_X, nx), 18)
        a, b, c_, d_ = [f"v{V_T+i}" for i in range(4)]
        r7 = self.braw(7)
        adr = [f"v_lshrrev_b32 {a}, 9, v{V_L16}", f"v_lshlrev_b32 {a}, 6, {a}", f"v_add_u32 {a}, {a}, v{V_L16}", f"v_add_u32 {a}, s{S_KEY}, {a}",
               f"v_and_b32 {a}, 0xf0, {a}", f"v_and_b32 {b}, 0x300, v{V_L16}", f"v_add3_u32 v{VW}, {a}, {b}, s{S_E0}",
               f"v_and_b32 {c_}, 0x70, v{V_CPG}",
               f"v_lshrrev_b32 {a}, 3, v{V_L16}", f"v_and_b32 {a}, 0x70, {a}", f"v_add_u32 {a}, s{S_KEY}, {a}",
               f"v_and_b32 {b}, 64, {c_}", f"v_lshl_add_u32 {a}, {b}, 1, {a}", f"v_and_b32 {d_}, 16, {c_}", f"v_lshl_add_u32 {a}, {d_}, 2, {a}",
               f"v_and_b32 {a}, 0xf0, {a}", f"v_lshl_add_u32 {a}, {b}, 4, {a}", f"v_lshl_add_u32 {a}, {d_}, 5, {a}",
               f"v_bfe_u32 {b}, {c_}, 5, 1", f"v_lshl_add_u32 {a}, {b}, 3, {a}", f"v_add_u32 v{VR}, s{S_TF}, {a}"]
        sc.chain([self.S(f"s_lshl_b32 s{S_KEY}, s{S_WC64}, 1"), self.S(f"s_mul_i32 s{S_E0}, s{S_WAVE}, 7168"), self.SU(f"s_sub_u32 s{S_E0}, s{S_WR}, s{S_E0}"),
                  self.S(f"s_lshl_b32 s{S_TF}, s{S_WC64}, 4"), self.S(f"s_sub_u32 s{S_TF}, s{S_E0}, s{S_TF}")], 20, 36)
        self.stream = [self.V(x) + (40,) for x in adr]
        self.stream += [self.V(f"v_mov_b32 v{V_XC[i]}, v{r7+i}") + (64,) for i in range(2)]
        self.credit = 0.0; self.xr = 0.0
        E0 = [134, 230, 326, 390]
        ear = lambda f: E0[f // 8] + 2 * (f % 8)
        self.stream += [U(f, h) + (126,) for f in range(2) for h in range(2)]
        nf = o.nft
        for f in range(nf):
            pos = ear(f)
            it = [("V" if k < 4 else "A", self.E(x)) for k, x in enumerate(self.epi_valu(f // 8, f % 8, tbf(f), None, tbf(f)))]
            if f % 8 == 0 and f: it = it[:6] + switch(VW, f // 8, "wa_") + it[6:]
            w0 = lambda f=f: wr(f)
            w0.ok = lambda f=f: wr_ok(f)
            it += [U(f + 2, 1), ("X", w0), U(f + 2, 0)]
            self.stream += [x + (pos,) for x in it]
        def pub(f, pos):
            def z():
                bar(); assert f in self.visible
            z.ready = lambda g: "skip" if f in self.visible else (f in self.written and g >= self.wpos + 3)
            def r0(): rdback(f, "v", CT, 0)
            def r1(): rdback(f, "v", CT, 1); self.rd_at[f] = self.gnow
            r0.ready = r1.ready = lambda g: g >= self.wpos + 2
            def wt(): self.wait(ltags=[("C", f)])
            wt.ready = lambda g: f in self.rd_at and g >= self.rd_at[f] + 5
            def st(): store(f, vr(CT, 4))
            it = []
            if f % 8 == 0 and f:
                it = switch(VR, f // 8, "ra"); it[0][1].ready = lambda g: True
            it += [("Z", z), ("D", r0), ("D", r1), ("S", wt), ("R", st)]
            for k, x in it: x.pub = True
            return [x + (pos,) for x in it]
        self.stream2 = []
        for f in range(nf): self.stream2 += pub(f, E0[f // 8] + (o.spo + o.sp * (f % 8) if f < 16 else o.spo2 + o.sp2 * (f % 8)))
        self.seg_emit(sc, 0, stamp_at=58)
        self.area_next = {0}
        sc = self.seg_open("C14", [X14], None, 3, [0], X14, W14, half=1, nextnt=1); at_barrier()
        it, d = half_dma(15, 1, S_Q + 1, S_WR + 1, 1)
        c = sc.chain(it, 1)
        self.place_dma(sc, d, 17, 3)
        sc.chain(self.xa_items(S_X + 2, S_X + 1, nx), 16)
        self.wa_sched(sc, S_WR + 1, S_WR, 8, 24)
        self.seg_emit(sc, 64, stamp_at=28)
        sc = self.seg_open("F15", [X15, W15 + (0,)], None, 1, [0, 1, 2, 3, 4], X15, W15, half=lambda nt: nt >> 2, nextnt=5, maxS=1); at_barrier()
        it, d = half_dma(14, 1, S_Q, S_WR + 1, 0)
        c = sc.chain(it, 1)
        sc.g[63].append(("S", lambda: bar([W15 + (1,)])))
        self.place_dma(sc, d, 65, 4)
        sc.chain(self.xa_items(S_X + 1, S_X + 2, nx), 18)
        self.wa_sched(sc, S_WR, S_WR + 1, 20, 16 + 64 + 8)
        self.seg_emit(sc, 96, stamp_at=24)
        sc = self.seg_open("D14", [], None, 5, [2, 3, 4, 5, 6], X14, W14, half=lambda nt: 1 - (nt >> 2), nextnt=7, maxS=1, barrier=False)
        it, d = half_dma(13, 1, S_Q + 2, S_WR, 1)
        c = sc.chain(it, 1)
        def b3():
            self.area_next = {1, 3}; bar([W14 + (1,)])
        sc.g[31].append(("S", b3))
        self.place_dma(sc, d, 33, 4)
        sc.chain(self.xa_items(S_X, S_X + 1, nx), 18)
        self.wa_sched(sc, S_WR + 1, S_WR, 10, 24)
        self.wa_sched(sc, S_WR, S_WR + 1, 50, 16 + 64 + 8)
        self.seg_emit(sc, 192, stamp_at=26)
        sc = self.seg_open("B13", [W13 + (1,)], None, 7, [4, 5, 6], X13, W13, half=1, nextnt=7, maxS=1); at_barrier()
        def b4():
            self.area_next = {2}; bar()
        sc.g[31].append(("S", b4))
        sc.chain(self.xa_items(S_X + 2, S_X, nx), 18)
        self.wa_sched(sc, S_WR + 1, S_WR, 20, 16 + 32 + 8)
        self.seg_emit(sc, 288, stamp_at=24)
        sc = self.seg_open("E15", [], None, 7, [6], X15, W15, half=1, nextnt=7, maxS=1, barrier=False)
        self.seg_emit(sc, 352, stamp_at=24)
        sc = self.seg_open("FIN", [], None, 7, [], None, None, barrier=False, maxS=1)
        self.seg_emit(sc, 384, stamp_at=8)
        for k, fn, pos in self.stream:
            if k == "U": self.mfma(fn)
            else: fn()
        self.stream = []
        while self.stream2 and self.stream2[0][0] in "DSR" and not (self.stream2[0][0] == "S" and self.stream2[1][0] == "A"):
            self.stream2.pop(0)[1]()
        self.stream2 = []
        e("s_nop 7")
        todo = []
        dreg = lambda x: XF(x % 8, (x // 8) & 1)
        def publish():
            bar()
            for x in sorted(self.visible):
                if x not in self.rd_at:
                    if x // 8 != self.ra:
                        for k, fn in switch(VR, x // 8, "ra"): fn()
                    rdback(x, "a", dreg(x), 0); rdback(x, "a", dreg(x), 1); self.rd_at[x] = 0; todo.append(x)
        def drain(n):
            for _ in range(n):
                if todo:
                    x = todo.pop(0); self.wait(ltags=[("C", x)]); store(x, ar(dreg(x), 4))
        assert nf <= 24
        B7 = [V_WC[0], V_XC[0], V_WC[1], V_XC[1]]
        e(f"v_lshlrev_b32 v{B7[0]}, 16, v{B7[1]}"); e(f"v_and_b32 v{B7[1]}, s{S_MASK}, v{B7[1]}")
        e(f"v_lshlrev_b32 v{B7[2]}, 16, v{B7[3]}"); e(f"v_and_b32 v{B7[3]}, s{S_MASK}, v{B7[3]}")
        if self.written - set(self.rd_at): publish()
        for f in range(nf, 32):
            p, mt = f // 8, f % 8
            tb = tbf(f)
            if mt == 0:
                for k, fn in switch(VW, p, "wa_"): fn()
            for h in (1, 0):
                pf, r = ACC(mt, 2 * p + h)
                if pf == "a":
                    for i in range(4): e(f"v_accvgpr_read_b32 v{AT+i}, a{r+i}")
                    if h == 1:
                        for i in range(4): e(f"v_add_f32 v{AT+i}, v{AT+i}, v{B7[i]}")
                    r = AT
                for d2 in range(2): e(f"v_pk_mul_f32 {vr(tb+4*h+2*d2,2)}, {vr(tb+4*h+2*d2,2)}, {vr(r+2*d2,2)}")
            for d2 in range(4): e(f"v_cvt_pk_bf16_f32 v{tb+d2}, v{tb+2*d2}, v{tb+2*d2+1}")
            if f + 2 < 32: self.mfma(U(f + 2, 1)[1])
            wr(f)
            if f + 2 < 32: self.mfma(U(f + 2, 0)[1])
            drain(o.fdrain)
            if (f - nf) % o.fgrp == o.fgrp - 1 or f == 31: publish()
        drain(32)
        assert self.stored == set(range(32))
        e(f"s_or_b32 s{S_TA}, s{S_J}, s{S_WAVE}"); e(f"s_cmp_lg_u32 s{S_TA}, 0"); e("s_cbranch_scc1 L_fin")
        e(f"s_add_u32 s{S_TA}, s{S_EP}, 16"); e(f"v_mov_b32 v{V_FLAG}, s{S_TA}")
        e(f"buffer_store_dword v{V_FLAG}, off, {sr(S_WS,4)}, s{S_EPOFF} sc1")
        self.label("L_fin")
        if o.diag:
            e(f"s_memtime s[{S_ST}:{S_ST+1}]"); e("s_waitcnt vmcnt(0)"); e(f"s_memtime s[{S_ST+2}:{S_ST+3}]")
            e(f"s_memrealtime s[{S_RT+2}:{S_RT+3}]"); e("s_waitcnt lgkmcnt(0)")
            e(f"v_writelane_b32 v{V_ST[0]}, s{S_ST}, 62"); e(f"v_writelane_b32 v{V_ST[1]}, s{S_ST+2}, 62")
            e(f"v_writelane_b32 v{V_ST[0]}, s{S_RT}, 61"); e(f"v_writelane_b32 v{V_ST[1]}, s{S_RT+2}, 61")
            e(f"s_lshl_b32 s{S_TA}, s2, 2"); e(f"s_add_u32 s{S_TA}, s{S_TA}, s{S_WAVE}"); e(f"s_lshl_b32 s{S_TA}, s{S_TA}, 9")
            e(f"s_add_u32 s{S_TA}, s{S_TA}, {hex(ST_OFF)}"); e("v_lshrrev_b32 v0, 2, v0")
            e(f"buffer_store_dword v{V_ST[0]}, v0, {sr(S_WS,4)}, s{S_TA} offen")
            e(f"buffer_store_dword v{V_ST[1]}, v0, {sr(S_WS,4)}, s{S_TA} offen offset:256")
        e("s_endpgm")

    def sizes(self, lines):
        import subprocess, tempfile, os
        labels = set()
        for l in lines:
            m = re.search(r"(?:branch\w*|L_\w+-)\s*(\w+)", l)
        src = '.amdgcn_target "amdgcn-amd-amdhsa--gfx950"\n.text\n'
        body = []
        for l in lines:
            if l.endswith(":"): continue
            if "branch" in l: l = "s_nop 0"
            l = re.sub(r"L_\w+-L_pc(-4)?", "0x12345", l)
            body.append(l)
        with tempfile.TemporaryDirectory() as d:
            open(d + "/a.s", "w").write(src + "\n".join(body) + "\n")
            subprocess.run(["clang", "-x", "assembler", "-target", "amdgcn-amd-amdhsa", "-mcpu=gfx950", "-c", d + "/a.s", "-o", d + "/a.o"], check=True)
            dis = subprocess.run(["llvm-objdump", "-d", "--mcpu=gfx950", d + "/a.o"], capture_output=True, text=True).stdout
        sz = [4 * len(l.split(": ")[-1].split()) for l in dis.splitlines() if "//" in l]
        assert len(sz) == len(body), (len(sz), len(body))
        out = []; k = 0
        for l in lines:
            if l.endswith(":"): out.append(0)
            else: out.append(sz[k]); k += 1
        return out
    def add_hops(self, o, caps):
        sz = self.sizes(o)
        out = ["@HOP"]; pos = 4; nextpage = 4096
        i = 0
        while i < len(o):
            if pos >= nextpage:
                best = None; p = pos; j = i
                while j < len(o) and p < nextpage + 56:
                    if j > 0 and o[j - 1].startswith("v_mfma"):
                        n = 0
                        while j + n < len(o) and not o[j + n].startswith("v_mfma"): n += 1
                        if best is None or n < best[0]: best = (n, j)
                    p += sz[j]; j += 1
                tgt = best[1] if best else i
                while i < tgt:
                    out.append(o[i]); pos += sz[i]; i += 1
                out.append("@HOP"); pos += 4
                nextpage += 4096
                continue
            out.append(o[i]); pos += sz[i]; i += 1
        for b in caps:
            for l in b:
                out.append(l)
                if l.endswith(":") and l in ("CAP_E0:", "CAP_G01:", "CAP_G03:"): out.append("@HOP")
        n = out.count("@HOP"); k = 0; res = []
        for l in out:
            if l == "@HOP":
                res.append(f"HOP{k}:"); res.append(f"s_cbranch_execz " + (f"HOP{k+4}" if k + 4 < n else "HOPEND")); k += 1
            else: res.append(l)
        self.nhops = n
        return res

    def build(self):
        self.stored = set()
        self.prologue()
        main = self.out
        texts = {}
        def gen(kind, layer, t):
            self.out = []
            self.body(kind, layer, t)
            if kind in texts and texts[kind] != self.out:
                for a, b in zip(texts[kind], self.out):
                    if a != b: print("DIFF", kind, layer, t, a, "|", b); break
                raise RuntimeError(f"body {kind} differs at layer {layer} t {t}")
            texts[kind] = self.out
        for layer in range(3):
            for t in range(16 if layer < 2 else 13):
                if layer == 0: kind = "E0" if t == 0 else ("G0" if t < 14 else f"T{t}")
                else: kind = "H0" if t == 0 else (f"S{t}" if t < 4 else ("G1" if t < 14 else f"T{t}"))
                gen(kind, layer, t)
        self.out = []; self.tail(); texts["TAIL"] = self.out
        o = texts["E0"][:]
        o += ["L_G0:"] + texts["G0"] + ["s_cbranch_scc1 L_G0"]
        o += ["L_T14:"] + texts["T14"] + texts["T15"] + texts["H0"] + texts["S1"] + texts["S2"] + texts["S3"]
        o += ["L_G1:"] + texts["G1"] + ["s_cbranch_scc1 L_G1"]
        o += [f"s_cmp_eq_u32 s{S_LAYER}, 1", "s_cbranch_scc1 L_T14"]
        o += ["L_TAIL:"] + texts["TAIL"]
        caps = [b for k, b in self.ool.items() if k.startswith("CAP")]
        slow = [b for k, b in self.ool.items() if not k.startswith("CAP")]
        if self.opt.hops:
            o = self.add_hops(o, caps)
            o = main + ["s_branch L_main"] + sum(slow, []) + [".p2align 12", "L_main:"] + o
        else:
            o = main + o + sum(caps, []) + sum(slow, [])
        self.texts = texts
        hdr = open("standalone__dcn_v2_cross__recsys.s.ref").read().split("\n")
        top = [l for l in hdr if l.startswith(";") and "@launch" not in l]
        if self.opt.diag: top.append("; STAMPS " + ("RT " if self.opt.diagrt else "CY ") + " ".join(self.stamps))
        txt = "\n".join(top) + f"\n; @launch grid=(256,1,1) block=(256,1,1) lds={SLOT*5}\n"
        txt += f""".amdgcn_target "amdgcn-amd-amdhsa--gfx950"
.text
.globl {NAME}
.p2align 8
.type {NAME},@function
{NAME}:
"""
        txt += "\n".join(o) + "\nL_codeend:\n"
        txt += f""".section .rodata,"a"
.p2align 6
.amdhsa_kernel {NAME}
  .amdhsa_next_free_vgpr 512
  .amdhsa_next_free_sgpr 102
  .amdhsa_accum_offset 256
  .amdhsa_group_segment_fixed_size 0
  .amdhsa_kernarg_size 48
  .amdhsa_user_sgpr_count 2
  .amdhsa_user_sgpr_kernarg_segment_ptr 1
  .amdhsa_system_sgpr_workgroup_id_x 1
  .amdhsa_float_denorm_mode_32 3
.end_amdhsa_kernel
"""
        return txt

if __name__ == "__main__":
    ap = argparse.ArgumentParser()
    ap.add_argument("-o", default="k3.s")
    ap.add_argument("--diag", action="store_true")
    ap.add_argument("--diagrt", action="store_true")
    ap.add_argument("--diagc", action="store_true")
    ap.add_argument("--pace", type=float, default=6)
    ap.add_argument("--pacex", type=float, default=6)
    ap.add_argument("--paceh", type=float, default=8)
    ap.add_argument("--pacet", type=float, default=3.3)
    ap.add_argument("--xr15", type=float, default=0.2)
    ap.add_argument("--xr0", type=float, default=-1)
    ap.add_argument("--xrt", type=float, default=0.0)
    ap.add_argument("--flag0", type=int, default=60)
    ap.add_argument("--early", type=int, default=8)
    ap.add_argument("--direct", default="8444")
    ap.add_argument("--cpos", default="222")
    ap.add_argument("--asc", type=int, default=1)
    ap.add_argument("--xtouch", type=int, default=0)
    ap.add_argument("--tpf", type=int, default=0)
    ap.add_argument("--hops", type=int, default=1)
    ap.add_argument("--x0f", default="nt")
    ap.add_argument("--e1out", type=int, default=1)
    ap.add_argument("--wwarm", type=int, default=1)
    ap.add_argument("--w0warm", type=int, default=0)
    ap.add_argument("-x", default="")
    ap.add_argument("--wr128", type=int, default=0)
    ap.add_argument("--nft", type=int, default=24)
    ap.add_argument("--sp", type=float, default=10)
    ap.add_argument("--spo", type=float, default=22)
    ap.add_argument("--sp2", type=float, default=9)
    ap.add_argument("--spo2", type=float, default=16)
    ap.add_argument("--xrb", type=float, default=0.0)
    ap.add_argument("--fdrain", type=int, default=1)
    ap.add_argument("--fgrp", type=int, default=3)
    ap.add_argument("--outf", default="sc1")
    opt = ap.parse_args()
    if opt.diagrt: opt.diag = True
    if opt.xr0 < 0:
        opt.xr0 = 0.1
        while True:
            try:
                g = G(opt); txt = g.build(); break
            except AssertionError as ex:
                if not (ex.args and (ex.args[0] == "stream left" or ex.args[0][0] == "deadline")): raise
                opt.xr0 += 0.01
                if opt.xr0 > 1: raise
    else:
        g = G(opt); txt = g.build()
    open(opt.o, "w").write(txt)
    print(f"xr0 {opt.xr0:.2f} fallback waits:", g.warn, {k: len(v) for k, v in g.texts.items()})
```

```python
import sys, re, argparse

NAME = "standalone__dcn_v2_cross__recsys_kernel"
SLOT = 32768
FL_OFF = 64 << 20
EP_OFF = FL_OFF + 65536
ST_OFF = 80 << 20

def vr(b, n=1, p="v"):
    return f"{p}{b}" if n == 1 else f"{p}[{b}:{b+n-1}]"
def ar(b, n=1): return vr(b, n, "a")
def sr(b, n=1): return vr(b, n, "s")

def XF(mt, s): return (mt * 2 + s) * 4
def WF(buf, s): return 64 + buf * 8 + s * 4
def X0(p, mt): return 80 + (p * 8 + mt) * 4
def SEL(h): return 208 + 4 * h
ACC_A0 = 216
ACC_V0 = 40
_acc = {}
def _init_acc():
    va, aa = ACC_V0, ACC_A0
    for nt in range(8):
        for mt in range(8):
            if nt == 7 or (nt == 6 and mt < 2):
                _acc[(mt, nt)] = ("a", aa); aa += 4
            else:
                _acc[(mt, nt)] = ("v", va); va += 4
    assert va == 256 and aa == 256
_init_acc()
def ACC(mt, nt): return _acc[(mt, nt)]

V_L16 = 0; V_XA = [1, 2]; V_WA = [3, 4]; V_WC = [5, 6]; V_XC = [7, 8]; V_CPG = 15; V_CPL = 9
V_POLL = 10; V_FLAG = 11; V_B = 12; V_ST = [13, 14]; V_T = 16; V_XT = 30
S_DW = 4; S_TR = 5; S_E0 = 6; S_KEY = 7
S_W = 8; S_X0 = 12; S_WS = 16; S_OUT = 20; S_B = 24
S_WT = 28; S_XT = 32
S_X = 36
S_WR = 39
S_Q = 41
S_WCUR = 44; S_WL = 45; S_XB = 46; S_FB = 47; S_FOWN = 48; S_EP = 49; S_NEED = 50; S_FV = 51; S_WLM = 52
S_PA = 53; S_J = 54; S_WAVE = 55; S_RB = 56; S_LOOP = 57; S_LAYER = 58; S_ADJ = 59; S_OADJ = 60; S_WC64 = 61
S_M4 = 62; S_MASK = 65; S_EPOFF = 66; S_CNT = 67; S_CAPJ = 68; S_BOFF = 69
S_TA = 70; S_TB = 71; S_TC = 72; S_TD = 73; S_TE = 74; S_TF = 75; S_O2 = 76; S_O3 = 77; S_WR14 = 78; S_DX = 79
S_PC = 80; S_ST = 82; S_RT = 86; S_SI = 90; S_LEND = 91; S_D0 = 92
S_FQ = 96
S_TG = 99; S_TH = 100; S_M7 = 101; S_XCUR = 3; S_XTO = 28

RANK = {"S": 0, "G": 1, "D": 2, "V": 3}

class Sched:
    def __init__(self, n, maxS=3):
        self.n = n
        self.g = [[] for _ in range(n)]
        self.closedS = set()
        self.maxS = maxS
    def fits(self, g, kind):
        kinds = [k for k, _ in self.g[g]]
        if kind == "G": return len(kinds) == 0
        if "G" in kinds: return False
        nvec = sum(k in "DV" for k in kinds)
        if kind == "S":
            if g in self.closedS or kinds.count("S") >= self.maxS: return False
            return len(kinds) < 3
        return nvec < 2 and len(kinds) < 3
    def put(self, g, kind, fn): self.g[g].append((kind, fn))
    def place(self, kind, fn, lo, hi=None):
        hi = self.n - 1 if hi is None else hi
        for g in range(lo, hi + 1):
            if self.fits(g, kind):
                self.put(g, kind, fn); return g
        raise RuntimeError(f"cannot place {kind} in [{lo},{hi}]")
    def chain(self, items, lo, hi=None):
        out = []; g = lo; pk = None
        for kind, fn in items:
            if pk is not None and (RANK[kind] < RANK[pk] or kind == "G" or pk == "G"): g += 1
            g = self.place(kind, fn, g, hi)
            out.append(g); pk = kind
        return out
    def branch(self, cmpfn, brfn, lo):
        for g in range(lo, self.n - 1):
            if self.fits(g, "S") and self.fits(g + 1, "G"):
                self.put(g, "S", cmpfn); self.closedS.add(g); self.put(g + 1, "G", brfn); return g + 1
        raise RuntimeError("branch")
    def last_su(self):
        last = 0
        for g in range(self.n):
            if any(getattr(f, "su", False) for _, f in self.g[g]): last = g
        return last + 1

def mt_off(mt):
    if mt == 0: return "0", 0
    if mt < 4: return f"s{S_XT+mt}", (mt & 1) * 2048
    return f"s{[S_M4, S_M4+1, S_M4+2, S_M7][mt-4]}", 0

def blk(nt, cinit=False):
    r = []
    for mt in range(8):
        ss = (0, 1) if mt % 2 == 0 else (1, 0)
        r += [(mt, nt, ss[0], cinit), (mt, nt, ss[1], False)]
    return r

class G:
    def __init__(self, opt):
        self.opt = opt
        self.out = []
        self.vq = []; self.lq = []
        self.ool = {}
        self.slot = {}
        self.lds_own = {}
        self.xa = None; self.wa = None
        self.warn = 0
        self.stamps = []
        self.stream = []; self.stream2 = []
        self.pending = None
    def e(self, s): self.out.append(s)
    def E(self, s): return lambda: self.e(s)
    def S(self, s): return ("S", self.E(s))
    def V(self, s): return ("V", self.E(s))
    def SU(self, s, then=None):
        def f():
            self.e(s)
            if then: then()
        f.su = True
        return ("S", f)
    def label(self, n): self.out.append(n + ":")
    def vm(self, s, tag=None):
        self.e(s); self.vq.append(tag); assert len(self.vq) <= 62
    def VM(self, s, tag=None): return ("G", lambda: self.vm(s, tag))
    def lds(self, s, tag=None):
        self.e(s); self.lq.append(tag)
    def _need(self, q, tags, mx, force=None):
        idx = -1
        for i, t in enumerate(q):
            if t in tags: idx = i
        if idx < 0 and force is None: return None
        n = len(q) - 1 - idx
        if force is not None:
            assert n >= force or idx < 0, (n, force, q)
            n = force
        n = min(n, mx)
        if len(q) > n: del q[:len(q) - n]
        return n
    def wait(self, vtags=(), ltags=(), lall=False, vforce=None):
        parts = []
        n = self._need(self.vq, set(vtags), 62, vforce)
        if n is not None: parts.append(f"vmcnt({n})")
        if lall:
            parts.append("lgkmcnt(0)"); self.lq = []
        else:
            n = self._need(self.lq, set(ltags), 14)
            if n is not None: parts.append(f"lgkmcnt({n})")
        if parts: self.e("s_waitcnt " + " ".join(parts))
    def smov(self, d, s):
        def f():
            self.e(f"s_mov_b32 s{d}, s{s}"); self.slot[d] = self.slot[s]
        return ("S", f)

    def mfma(self, m):
        if m[0] == "U":
            _, p, mt, h, tb = m
            self.e(f"v_mfma_f32_16x16x32_bf16 {vr(tb+4*h,4)}, {ar(SEL(h),4)}, {ar(X0(p,mt),4)}, 0")
            return
        mt, nt, s, cinit = m
        buf = nt & 1
        tags = {("XF", mt, s), ("WF", buf, s, 0), ("WF", buf, s, 1)}
        if tags & set(self.lq):
            self.warn += 1
            self.wait(ltags=tags)
        p, r = ACC(mt, nt)
        c = vr(r, 4, p)
        if cinit and p == "v" and mt != 7: c = vr(ACC(7, nt)[1], 4)
        self.e(f"v_mfma_f32_16x16x32_bf16 {vr(r,4,p)}, {ar(WF(buf,s),4)}, {ar(XF(mt,s),4)}, {c}")
    def rd_xf(self, mt, s, want):
        def f():
            assert self.lds_own[self.xa] == want, (self.lds_own[self.xa], want)
            self.lds(f"ds_read_b128 {ar(XF(mt,s),4)}, v{V_XA[s]} offset:{mt*2048}", ("XF", mt, s))
        return f
    def rd_wf(self, nt, s, u, want, half=None):
        p, h = nt >> 1, nt & 1
        if callable(half): half = half(nt)
        off = (p >> 1 if half is None else half) * 16384 + (p & 1) * 512 + s * 8192 + u * 4096
        def f():
            if half is None: assert self.lds_own[self.wa[h]] == want, (self.lds_own[self.wa[h]], want)
            else:
                assert self.lds_half[(self.wa[h], half)] == want + (p >> 1,), (self.lds_half, self.wa[h], half, want, nt)
                assert want + (p >> 1,) in self.landed
            self.lds(f"ds_read_b64_tr_b16 {ar(WF(h,s)+2*u,2)}, v{V_WA[h]} offset:{off}", ("WF", h, s, u))
        return f
    def dma_items(self, what, sdst, form):
        items = []
        for i in range(8):
            if i == 0: items.append(self.SU(f"s_mov_b32 m0, s{sdst}", lambda: self.lds_own.__setitem__(self.slot[sdst], what)))
            if i == 4:
                def chk(): assert self.lds_own[self.slot[sdst]] == what
                items.append(self.SU(f"s_add_u32 m0, s{sdst}, 0x1000", chk))
            off = f" offset:{(i&3)*1024}" if i & 3 else ""
            if form == "W":
                so = "0" if i < 2 else f"s{S_WT+(i>>1)}"
                s = f"buffer_load_dwordx4 v{V_WC[i&1]}, {sr(S_W,4)}, {so} offen{off} lds"
            elif form == "X0":
                so = "0" if i < 2 else f"s{S_XT+(i>>1)}"
                s = f"buffer_load_dwordx4 v{V_XC[i&1]}, {sr(S_X0,4)}, {so} offen{off} {self.opt.x0f} lds"
            else:
                so = "0" if i < 2 else f"s{S_XT+(i>>1)}"
                s = f"buffer_load_dwordx4 v{V_XC[i&1]}, {sr(S_X0,4)}, {so} offen{off} sc1 lds"
            items.append(self.VM(s, what))
        return items
    def place_dma(self, sc, items, lo, pace):
        g = lo; prev = -1; pend = None
        for kind, fn in items:
            if kind == "S": pend = fn; continue
            g0 = max(int(g), prev + 1)
            if pend is not None:
                gs = sc.place("S", pend, max(prev + 1, g0 - 2, 0)); g0 = max(g0, gs + 1); pend = None
            prev = sc.place("G", fn, g0)
            g += pace
        return prev
    def w_setup(self, tidreg, base):
        return [self.S(f"s_lshl_b32 s{S_TA}, s{tidreg}, 17"), self.S(f"s_add_u32 s{S_TA}, s{S_TA}, s{base}"),
                self.S(f"s_sub_u32 s{S_TB}, s{S_TA}, s{S_WCUR}"), self.S(f"s_mov_b32 s{S_WCUR}, s{S_TA}"),
                self.V(f"v_add_u32 v{V_WC[0]}, s{S_TB}, v{V_WC[0]}"), self.V(f"v_add_u32 v{V_WC[1]}, s{S_TB}, v{V_WC[1]}")]
    def x_setup(self, tidreg):
        return [self.S(f"s_lshl_b32 s{S_TE}, s{tidreg}, 7"), self.S(f"s_sub_u32 s{S_DX}, s{S_TE}, s{S_XCUR}"), self.S(f"s_mov_b32 s{S_XCUR}, s{S_TE}"),
                self.V(f"v_add_u32 v{V_XC[0]}, s{S_DX}, v{V_XC[0]}"), self.V(f"v_add_u32 v{V_XC[1]}, s{S_DX}, v{V_XC[1]}")]
    def flag_items(self):
        return [self.V(f"v_mov_b32 v{V_FLAG}, s{S_FV}"),
                self.VM(f"buffer_store_dword v{V_FLAG}, off, {sr(S_WS,4)}, s{S_FOWN} sc1", "F"),
                self.S(f"s_add_u32 s{S_FV}, s{S_FV}, 1")]
    def poll_check(self, sc, name, tag, lo):
        sl, bk = f"SLOW_{name}", f"BACK_{name}"
        def f0():
            assert tag not in self.vq
            self.e(f"v_readfirstlane_b32 s{S_TC}, v{V_POLL}")
        c = sc.chain([self.S(f"s_and_b32 s{S_TD}, s{S_Q+1}, 3"), self.S(f"s_add_u32 s{S_TD}, s{S_TD}, s{S_NEED}"),
                      ("V", f0), self.S(f"s_sub_u32 s{S_TC}, s{S_TC}, s{S_TD}")], lo)
        def br():
            self.e(f"s_cbranch_scc1 {sl}"); self.label(bk)
        gbr = sc.branch(self.E(f"s_cmp_gt_u32 s{S_TC}, 7"), br, c[-1])
        self.ool[sl] = [f"{sl}:", f"s_mov_b32 s{S_CNT}, 0x100000", f"LP_{name}:",
                        f"buffer_load_dword v{V_POLL}, off, {sr(S_WS,4)}, s{S_PA} sc1", "s_waitcnt vmcnt(0)",
                        f"v_readfirstlane_b32 s{S_TC}, v{V_POLL}", f"s_sub_u32 s{S_CNT}, s{S_CNT}, 1", f"s_cbranch_scc1 {bk}",
                        f"s_sub_u32 s{S_TC}, s{S_TC}, s{S_TD}", f"s_cmp_gt_u32 s{S_TC}, 7", f"s_cbranch_scc0 {bk}",
                        "s_sleep 1", f"s_branch LP_{name}"]
        return gbr
    def stamp(self, which):
        if self.opt.diagrt:
            if which == 1:
                self.e(f"s_memtime s[{S_ST}:{S_ST+1}]"); self.e(f"s_memrealtime s[{S_ST+2}:{S_ST+3}]")
            return
        self.e(f"s_memtime s[{S_ST+2*which}:{S_ST+2*which+1}]")
    def stamp_items(self):
        def f():
            self.e(f"s_lshl_b64 exec, 1, s{S_SI}"); self.e(f"v_mov_b32 v{V_ST[0]}, s{S_ST}"); self.e(f"v_mov_b32 v{V_ST[1]}, s{S_ST+2}")
            self.e("s_mov_b64 exec, -1"); self.e(f"s_add_u32 s{S_SI}, s{S_SI}, 1")
        return [("G", f)]
    def epi_valu(self, p, mt, tb, at, ob):
        ops = []
        for h in range(2):
            pf, r = ACC(mt, 2 * p + h)
            if pf == "a":
                for i in range(4): ops.append(f"v_accvgpr_read_b32 v{at+i}, a{r+i}")
                r = at
            for i in range(4): ops.append(f"v_mul_f32 v{tb+4*h+i}, v{tb+4*h+i}, v{r+i}")
        for d in range(4): ops.append(f"v_cvt_pk_bf16_f32 v{ob+d}, v{tb+2*d}, v{tb+2*d+1}")
        return ops
    def braw(self, nt): return V_T + 2 * nt if nt < 6 else V_T + 20 + 2 * (nt - 6)
    def bias_sched(self, sc, nt, g, busy):
        r = self.braw(nt); f0, f2, a0 = V_T + 16, V_T + 17, V_T + 18
        f = [f0, r, f2, r + 1]
        ops = [f"v_lshlrev_b32 v{f0}, 16, v{r}", f"v_and_b32 v{r}, s{S_MASK}, v{r}", f"v_lshlrev_b32 v{f2}, 16, v{r+1}", f"v_and_b32 v{r+1}, s{S_MASK}, v{r+1}"]
        g = sc.chain([self.V(x) for x in ops], g)[-1]
        ops = []
        for mt in range(8):
            pf, a = ACC(mt, nt)
            if pf == "v":
                ops += [f"v_add_f32 v{a+i}, v{a+i}, v{f[i]}" for i in range(4)]
            else:
                for i in (0, 2):
                    ops += [f"v_accvgpr_read_b32 v{a0}, a{a+i}", f"v_accvgpr_read_b32 v{a0+1}, a{a+i+1}",
                            f"v_add_f32 v{a0}, v{a0}, v{f[i]}", f"v_add_f32 v{a0+1}, v{a0+1}, v{f[i+1]}",
                            f"v_accvgpr_write_b32 a{a+i}, v{a0}", f"v_accvgpr_write_b32 a{a+i+1}, v{a0+1}"]
        b0, b1 = busy
        est = g + len(ops) // 2 + len(ops) // 3 + 4
        if est < b0 - 2: lo, hi = g, b0 - 2
        else: lo, hi = max(g, b1 + 6), sc.n - 1
        return sc.chain([self.V(x) for x in ops], lo, hi)[-1]
    def bias0_ops(self, nt):
        r = V_T + 2 * nt
        d = ACC(7, nt)[1]
        return [f"v_lshlrev_b32 v{d}, 16, v{r}", f"v_and_b32 v{d+1}, s{S_MASK}, v{r}",
                f"v_lshlrev_b32 v{d+2}, 16, v{r+1}", f"v_and_b32 v{d+3}, s{S_MASK}, v{r+1}"] + \
               [f"v_add_f32 v{d+i}, 1.0, v{d+i}" for i in range(4)]

    def prologue(self):
        e = self.e; o = self.opt
        e("s_cmp_lt_u32 s2, 256"); e("s_cbranch_scc1 L_go"); e("s_endpgm")
        self.label("L_go")
        e("s_load_dwordx4 s[8:11], s[0:1], 0")
        e("s_load_dwordx4 s[20:23], s[0:1], 16")
        e("s_load_dwordx2 s[16:17], s[0:1], 40")
        if o.diag:
            e(f"s_memrealtime s[{S_RT}:{S_RT+1}]"); e(f"s_memtime s[{S_D0}:{S_D0+1}]")
        e(f"s_getpc_b64 s[{S_PC}:{S_PC+1}]")
        self.label("L_pc")
        e("s_lshr_b32 s3, s2, 3")
        e("v_lshrrev_b32 v16, 4, v0")
        e("v_lshl_add_u32 v16, s3, 4, v16")
        e("v_lshlrev_b32 v16, 7, v16")
        e(f"v_min_u32 v31, L_codeend-L_pc-4, v16")
        self.vm(f"global_load_dword v{V_POLL}, v31, s[{S_PC}:{S_PC+1}]", "PF")
        T = 40
        lane, m, q, r4, c4, q1, tx, tw, t0, t1, t2 = [f"v{T+i}" for i in range(11)]
        e(f"v_lshrrev_b32 {t0}, 6, v0")
        e(f"v_and_b32 {lane}, 63, v0")
        e(f"v_readfirstlane_b32 s{S_WAVE}, {t0}")
        e(f"s_and_b32 s{S_J}, s3, 3")
        e(f"s_and_b32 s{S_RB}, s2, 7"); e(f"s_lshl_b32 s{S_RB}, s{S_RB}, 3")
        e(f"s_lshr_b32 s{S_TC}, s2, 5")
        e(f"s_add_u32 s{S_RB}, s{S_RB}, s{S_TC}")
        e(f"v_and_b32 {m}, 15, {lane}"); e(f"v_lshrrev_b32 {q}, 4, {lane}")
        e(f"v_bfe_u32 {r4}, {lane}, 2, 2"); e(f"v_and_b32 {c4}, 3, {lane}")
        e(f"s_lshl_b32 s{S_TD}, s{S_RB}, 19")
        e(f"s_lshl_b32 s{S_TE}, s{S_J}, 17"); e(f"s_add_u32 s{S_TE}, s{S_TE}, s{S_TD}")
        e(f"s_lshl_b32 s{S_TF}, s{S_WAVE}, 15"); e(f"s_add_u32 s{S_TE}, s{S_TE}, s{S_TF}")
        e(f"v_and_b32 {q1}, 1, {q}"); e(f"v_lshlrev_b32 {tx}, 7, {q1}"); e(f"v_lshl_add_u32 {tx}, {m}, 11, {tx}")
        e(f"s_lshl_b32 s{S_CNT}, s{S_TC}, 15"); e(f"s_lshl_b32 s{S_TF}, s{S_WAVE}, 13"); e(f"s_add_u32 s{S_CNT}, s{S_CNT}, s{S_TF}")
        e(f"s_lshl_b32 s{S_BOFF}, s{S_J}, 9"); e(f"s_add_u32 s{S_CNT}, s{S_CNT}, s{S_BOFF}")
        e(f"v_lshlrev_b32 {tw}, 7, {c4}"); e(f"v_lshl_add_u32 {tw}, {r4}, 11, {tw}")
        e(f"s_mov_b32 s{S_X0+2}, {16384*1024*2}"); e(f"s_mov_b32 s{S_X0+3}, 0x20000")
        e(f"s_mov_b32 s{S_B+2}, {3*1024*2}"); e(f"s_mov_b32 s{S_B+3}, 0x20000")
        e(f"s_lshl_b32 s{S_EPOFF}, s{S_RB}, 7"); e(f"s_add_u32 s{S_EPOFF}, s{S_EPOFF}, {hex(EP_OFF)}")
        e("s_waitcnt lgkmcnt(0)")
        if o.diag: e(f"s_memtime s[{S_ST}:{S_ST+1}]")
        e(f"s_mov_b32 s{S_X0}, s8"); e(f"s_mov_b32 s{S_X0+1}, s9")
        self.vm(f"buffer_load_dword v{V_POLL}, {tx}, {sr(S_X0,4)}, s{S_TE} offen {o.x0f}", "PF")
        e(f"s_mov_b32 s{S_W}, s10"); e(f"s_mov_b32 s{S_W+1}, s11"); e(f"s_mov_b32 s{S_W+2}, {3*1024*1024*2}"); e(f"s_mov_b32 s{S_W+3}, 0x20000")
        self.vm(f"buffer_load_dword v{V_POLL}, {tw}, {sr(S_W,4)}, s{S_CNT} offen", "PF")
        e(f"s_mov_b32 s{S_B}, s20"); e(f"s_mov_b32 s{S_B+1}, s21")
        self.vm(f"buffer_load_dword v{V_POLL}, {tw}, {sr(S_B,4)}, s{S_BOFF} offen", "PF")
        e(f"s_load_dword s{S_EP}, s[{S_WS}:{S_WS+1}], s{S_EPOFF}")
        def w0warm():
            e(f"s_lshl_b32 s{S_PA}, s2, 13"); e(f"s_lshl_b32 s{S_FV}, s{S_WAVE}, 11"); e(f"s_add_u32 s{S_PA}, s{S_PA}, s{S_FV}")
            e(f"v_lshlrev_b32 {t0}, 7, {m}")
            self.vm(f"buffer_load_dword v{V_POLL}, {t0}, {sr(S_W,4)}, s{S_PA} offen", "PF")
        if o.w0warm == 1: w0warm()
        def run(items):
            for k, f in items:
                f()
                if k == "S": e("s_nop 0")
        for r, sl in ((S_X, 0), (S_X + 1, 2), (S_X + 2, 4), (S_WR, 1), (S_WR + 1, 3)):
            e(f"s_add_u32 s{r}, s{S_TF}, {hex(sl*SLOT)}"); self.slot[r] = sl
        e(f"v_lshrrev_b32 {t1}, 3, {lane}"); e(f"v_and_b32 {t2}, 7, {lane}")
        e(f"v_lshrrev_b32 {t0}, 1, {t1}"); e(f"v_xor_b32 {t0}, {t2}, {t0}"); e(f"v_lshlrev_b32 {t0}, 4, {t0}"); e(f"v_lshl_add_u32 {t0}, {t1}, 11, {t0}")
        e(f"s_lshl_b32 s{S_PA}, s{S_WAVE}, 17"); e(f"s_add_u32 s{S_PA}, s{S_PA}, s{S_TD}")
        e(f"v_add_u32 v{V_XC[0]}, s{S_PA}, {t0}")
        e(f"v_xor_b32 v{V_XC[1]}, 64, v{V_XC[0]}"); e(f"v_add_u32 v{V_XC[1]}, {16384-1024}, v{V_XC[1]}")
        for k in range(1, 4): e(f"s_mov_b32 s{S_XT+k}, {k*32768 - (k&1)*2048}")
        xit = self.dma_items(("X", 0, 0), S_X, "X0")
        run(xit[:o.early])
        e(f"v_lshlrev_b32 v{V_L16}, 4, {lane}")
        e(f"s_lshr_b32 s{S_TA}, s{S_WAVE}, 1"); e(f"s_and_b32 s{S_TB}, s{S_WAVE}, 1")
        for k in range(1, 4): e(f"s_mov_b32 s{S_WT+k}, {(16*(k&1) + 4*(k>>1))*2048 - (k&1)*2048}")
        e(f"s_mov_b32 s{S_OUT}, s22"); e(f"s_mov_b32 s{S_OUT+1}, s23"); e(f"s_mov_b32 s{S_OUT+2}, {16384*1024*2}"); e(f"s_mov_b32 s{S_OUT+3}, 0x20000")
        e(f"s_mov_b32 s{S_WS+2}, 0x10000000"); e(f"s_mov_b32 s{S_WS+3}, 0x20000")
        e(f"s_lshl_b32 s{S_FB}, s{S_RB}, 9"); e(f"s_add_u32 s{S_FB}, s{S_FB}, {hex(FL_OFF)}")
        e(f"s_lshl_b32 s{S_WC64}, s{S_TB}, 6"); e(f"s_add_u32 s{S_PA}, s{S_BOFF}, s{S_WC64}")
        e(f"v_lshlrev_b32 {t0}, 3, {q}"); e(f"v_add_u32 v{V_B}, s{S_PA}, {t0}")
        e(f"s_lshl_b32 s{S_PA}, s{S_TA}, 8"); e(f"s_add_u32 s{S_PA}, s{S_PA}, s{S_BOFF}")
        e(f"s_lshl_b32 s{S_FV}, s{S_TB}, 16"); e(f"s_add_u32 s{S_PA}, s{S_PA}, s{S_FV}")
        if not o.wr128:
            e(f"v_lshlrev_b32 {t0}, 4, {c4}"); e(f"v_lshl_add_u32 {t0}, {q}, 6, {t0}"); e(f"v_lshl_add_u32 {t0}, {r4}, 11, {t0}")
        else:
            e(f"v_lshlrev_b32 {t0}, 2, {q1}"); e(f"v_xor_b32 {t0}, {t2}, {t0}"); e(f"v_lshlrev_b32 {t0}, 4, {t0}")
            e(f"v_lshrrev_b32 {tx}, 5, {lane}"); e(f"v_lshl_add_u32 {t0}, {tx}, 7, {t0}")
            e(f"v_and_b32 {tx}, 3, {t1}"); e(f"v_lshl_add_u32 {t0}, {tx}, 11, {t0}")
        e(f"v_add_u32 v{V_WC[0]}, s{S_PA}, {t0}")
        e(f"v_xor_b32 v{V_WC[1]}, 32, v{V_WC[0]}"); e(f"v_add_u32 v{V_WC[1]}, {16384-1024}, v{V_WC[1]}")
        e(f"v_lshrrev_b32 {t0}, 1, {m}"); e(f"v_xor_b32 {t0}, {q}, {t0}"); e(f"v_lshlrev_b32 {t0}, 4, {t0}"); e(f"v_lshl_add_u32 {t0}, {m}, 7, {t0}")
        e(f"s_lshl_b32 s{S_WR14}, s{S_TA}, 14")
        e(f"v_add_u32 v{V_XA[0]}, s{S_WR14}, {t0}"); e(f"v_xor_b32 v{V_XA[1]}, 64, v{V_XA[0]}")
        self.xa = 0
        if not o.wr128:
            e(f"v_lshlrev_b32 {t0}, 10, {q}"); e(f"v_lshl_add_u32 {t0}, {r4}, 6, {t0}"); e(f"v_lshl_add_u32 {t0}, {q1}, 5, {t0}"); e(f"v_lshl_add_u32 {t0}, {c4}, 3, {t0}")
            e(f"s_lshl_b32 s{S_PA}, s{S_TB}, 8"); e(f"s_add_u32 s{S_PA}, s{S_PA}, {SLOT}")
            e(f"v_add_u32 v{V_WA[0]}, s{S_PA}, {t0}")
        else:
            e(f"v_and_b32 {t0}, 2, {r4}"); e(f"v_or_b32 {t0}, {t0}, {q1}"); e(f"v_lshlrev_b32 {t0}, 5, {t0}"); e(f"v_xor_b32 {t0}, s{S_WC64}, {t0}")
            e(f"v_lshl_add_u32 {t0}, {q}, 10, {t0}"); e(f"v_lshl_add_u32 {t0}, {r4}, 7, {t0}"); e(f"v_lshl_add_u32 {t0}, {c4}, 3, {t0}")
            e(f"v_add_u32 v{V_WA[0]}, {SLOT}, {t0}")
        e(f"v_xor_b32 v{V_WA[1]}, 32, v{V_WA[0]}")
        self.wa = [1, 1]
        e(f"v_and_b32 {t1}, 1, {m}"); e(f"v_lshlrev_b32 {t1}, 4, {t1}"); e(f"v_mov_b32 {t2}, 0x3f80"); e(f"v_lshlrev_b32 {t1}, {t1}, {t2}")
        e(f"v_lshlrev_b32 {t2}, 3, {q}"); e(f"v_sub_u32 {t2}, {m}, {t2}"); e(f"v_ashrrev_i32 {t2}, 1, {t2}")
        misc = [f"s_mov_b32 s{S_M4}, 0x20000", f"s_mov_b32 s{S_M4+1}, 0x28000", f"s_mov_b32 s{S_M4+2}, 0x30000", f"s_mov_b32 s{S_MASK}, 0xffff0000",
                f"s_mov_b32 s{S_WL}, 0", f"s_mov_b32 s{S_Q}, 1", f"s_mov_b32 s{S_M7}, 0x38000",
                f"s_lshl_b32 s{S_FOWN}, s{S_J}, 7", f"s_add_u32 s{S_FOWN}, s{S_FOWN}, s{S_FB}", f"s_mul_i32 s{S_OADJ}, s{S_TB}, 7168",
                f"s_mov_b32 s{S_ADJ}, 8192", f"s_mov_b32 s{S_LAYER}, 0", f"s_mov_b32 s{S_CAPJ}, s{S_J}", f"s_mov_b32 s{S_LOOP}, 1",
                f"s_mov_b32 s{S_WCUR}, 0", f"s_mov_b32 s{S_LEND}, 15"]
        for h in range(2):
            for d in range(4):
                e(f"v_cmp_eq_u32 vcc, {d - 8*h}, {t2}"); e(misc.pop(0)); e(misc.pop(0))
                e(f"v_cndmask_b32 {t0}, 0, {t1}, vcc"); e(f"v_accvgpr_write_b32 a{SEL(h)+d}, {t0}")
        for d in range(3):
            if o.asc:
                e(f"s_cmp_ge_u32 {d}, s{S_J}"); e(f"s_cselect_b32 s{S_FQ+d}, {4*(d+1)}, {4*d}")
            else:
                e(f"s_add_u32 s{S_FQ+d}, s{S_J}, {d+1}"); e(f"s_and_b32 s{S_FQ+d}, s{S_FQ+d}, 3"); e(f"s_lshl_b32 s{S_FQ+d}, s{S_FQ+d}, 2")
        e(f"s_lshl_b32 s{S_PA}, s{S_WC64}, 11"); e(f"s_lshl_b32 s{S_FV}, s{S_WC64}, 8"); e(f"s_sub_u32 s{S_PA}, s{S_PA}, s{S_FV}")
        e(f"s_lshl_b32 s{S_FV}, s{S_J}, 9"); e(f"s_sub_u32 s{S_PA}, s{S_FV}, s{S_PA}")
        e(f"v_xor_b32 v{V_CPG}, s{S_WC64}, v{V_XC[0]}"); e(f"v_add_u32 v{V_CPG}, s{S_PA}, v{V_CPG}")
        e(f"s_mov_b32 s{S_XCUR}, {15*128}")
        e(f"v_lshlrev_b32 v{V_XT}, 11, {m}"); e(f"s_add_u32 s{S_XTO}, s{S_TE}, {3*128}")
        e(f"s_lshl_b32 s{S_PA}, s2, 14"); e(f"s_lshl_b32 s{S_FV}, s{S_WAVE}, 12"); e(f"s_add_u32 s{S_PA}, s{S_PA}, s{S_FV}")
        e(f"s_add_u32 s{S_PA}, s{S_PA}, 0x200000")
        e(f"v_min_u32 v{V_CPL}, 2, {c4}"); e(f"v_lshlrev_b32 v{V_CPL}, 7, v{V_CPL}")
        e(f"s_mov_b32 s{S_BOFF}, 2048")
        if o.diag:
            e(f"v_mov_b32 v{V_ST[0]}, 0"); e(f"v_mov_b32 v{V_ST[1]}, 0")
        if o.hops:
            e("s_mov_b64 exec, 0")
            for w in range(1, 4):
                e(f"s_cmp_eq_u32 s{S_WAVE}, {w}"); e(f"s_cbranch_scc1 HOP{w}")
            e("s_branch HOP0")
            self.label("HOPEND")
            e("s_mov_b64 exec, -1")
        run(xit[o.early:])
        def bl(nt): self.vm(f"buffer_load_dwordx2 {vr(V_T+2*nt if nt < 7 else V_T+22,2)}, v{V_B}, {sr(S_B,4)}, 0 offen offset:{(nt>>1)*128 + (nt&1)*32}", ("B", 0, nt))
        bl(0); bl(1)
        run(self.dma_items(("W", 0, 0), S_WR, "W"))
        for nt in range(2, 8): bl(nt)
        if o.w0warm == 2:
            e(f"s_mov_b32 s{S_TA}, s{S_PA}"); w0warm(); e(f"s_mov_b32 s{S_PA}, s{S_TA}")
        if o.diag: e(f"s_memtime s[{S_ST+2}:{S_ST+3}]")
        self.wait(vtags=[("B", 0, 1)])
        for x in self.bias0_ops(0) + self.bias0_ops(1): e(x)
        if o.diag:
            e("s_waitcnt lgkmcnt(0)")
            e(f"v_writelane_b32 v{V_ST[0]}, s{S_D0}, 63")
            e(f"v_writelane_b32 v{V_ST[0]}, s{S_ST}, 60"); e(f"v_writelane_b32 v{V_ST[1]}, s{S_ST+2}, 60")
            e(f"s_mov_b32 s{S_SI}, 0")

    def seg_open(self, name, vt, vforce, prev_nt, nts, X, W, half=None, reload=True, cinit=False, maxS=3, barrier=True, nextnt=None):
        o = self.opt
        dg = o.diag and not (o.diagc and name in ("G0", "G1"))
        if dg: self.stamps.append(name)
        if self.pending: self.mfma(self.pending)
        if dg: self.stamp(0)
        if barrier:
            self.wait(vtags=vt, lall=True, vforce=vforce); self.e("s_barrier")
        else:
            self.wait(ltags=[("WF", prev_nt & 1, s, u) for s in range(2) for u in range(2)])
        if dg: self.stamp(1)
        base = ([] if prev_nt is None else blk(prev_nt)) + sum((blk(nt, cinit) for nt in nts), [])
        off = 0 if prev_nt is None else 16
        self.pending = base[-1] if nts else None
        mf = base[:-1] if nts else base
        sc = Sched(len(mf), maxS)
        sc.mf = mf; sc.off = off; sc.dg = dg
        su = [(s, u) for s in range(2) for u in range(2)]
        if prev_nt is None:
            for s, u in su: self.rd_wf(nts[0], s, u, W, half)()
            for mt in range(8):
                for s in range(2): self.rd_xf(mt, s, X)()
            self.wait(ltags=[("XF", 1, 0), ("XF", 1, 1)])
        elif nts:
            if reload:
                for i in range(16):
                    mt, _, s, _ = base[i]
                    sc.put(i, "D", self.rd_xf(mt, s, X))
            for k, (s, u) in enumerate(su): sc.put(2 * k, "D", self.rd_wf(nts[0], s, u, W, half))
            sc.put(15, "S", lambda: self.wait(ltags=[("XF", 1, 0), ("XF", 1, 1)] + [("WF", nts[0] & 1, s, u) for s, u in su]))
        if reload and nts:
            for mt in (2, 4, 6):
                sc.put(off + 2 * mt - 1, "S", lambda mt=mt: self.wait(ltags=[("XF", mt + 1, 0), ("XF", mt + 1, 1)]))
        sc.blkwait = []
        seq = list(nts[1:]) + [nextnt]
        for b, nt in enumerate(seq):
            if b < len(seq) - 1:
                g = off + 16 * (b + 1) - 1
                sc.put(g, "S", lambda nt=nt: self.wait(ltags=[("WF", nt & 1, s, u) for s, u in su] + [("C",)]))
                sc.blkwait.append(g)
        if nts:
            for b, nt in enumerate(seq):
                for k, (s, u) in enumerate(su): sc.place("D", self.rd_wf(nt, s, u, W, half), off + 16 * b + 2 * k)
        return sc
    def seg_emit(self, sc, gbase=None, check=None, stamp_at=50):
        if sc.dg: sc.chain(self.stamp_items(), stamp_at)
        for g, m in enumerate(sc.mf):
            if check: check(g, m)
            self.mfma(m)
            self.merge_gap(sc, g, None if gbase is None else gbase + g)
    def xa_items(self, new, old, nx):
        def f0():
            self.e(f"v_add_u32 v{V_XA[0]}, s{S_DX}, v{V_XA[0]}"); self.xa = nx["x"]
        return [self.SU(f"s_sub_u32 s{S_DX}, s{new}, s{old}", lambda: nx.update(x=self.slot[new])),
                ("V", f0), self.V(f"v_add_u32 v{V_XA[1]}, s{S_DX}, v{V_XA[1]}")]
    def wa_sched(self, sc, new, old, g_s, g_v):
        nx = {}
        def wa(h):
            def f():
                self.e(f"v_add_u32 v{V_WA[h]}, s{S_DW}, v{V_WA[h]}"); self.wa[h] = nx["w"]
            return f
        k, f = self.SU(f"s_sub_u32 s{S_DW}, s{new}, s{old}", lambda: nx.update(w=self.slot[new]))
        sc.place(k, f, g_s, g_v - 1)
        sc.chain([("V", wa(0)), ("V", wa(1))], g_v)

    def body(self, kind, layer, t):
        o = self.opt
        X = ("X", layer, t); W = ("W", layer, t)
        first = kind == "E0"
        vt = [X, W, ("P", layer, t + 2)]
        if kind == "S1": vt.append(("B", layer, 1))
        if kind == "S2": vt.append(("B", layer, 0))
        vforce = {"G0": min(9 + (1 if o.xtouch else 0) + (1 if o.tpf & 2 else 0), 10 + (1 if o.xtouch else 0)), "G1": 8, "T14": 8}.get(kind)
        sc = self.seg_open(kind, vt, vforce, None if first else 7, list(range(7)), X, W, cinit=first,
                           maxS=1 if kind in ("T15", "H0") else 3, nextnt=7)
        n, off = sc.n, sc.off
        if kind in ("G0", "G1"):
            sc.put(n - 1, "G", lambda: None)
            sc.put(n - 2, "S", self.E(f"s_cmp_lt_u32 s{S_LOOP}, " + ("14" if kind == "G0" else f"s{S_LEND}"))); sc.closedS.add(n - 2)
        pace = 4 if first else o.pace
        gw = off + 1
        lastG = gw
        if kind == "H0":
            def xb():
                assert not any(x and x[0] == "XF" for x in self.lq)
                self.e("s_barrier")
            gb = sc.place("S", xb, off + 12)
            gw = gb + 1
        if kind == "G1":
            sc.put(0, "S", self.E(f"s_cmp_eq_u32 s{S_LOOP}, s{S_KEY}")); sc.closedS.add(0)
            sc.put(1, "S", self.E(f"s_cselect_b32 s{S_TG}, s{S_Q+1}, s{S_Q}")); sc.put(1, "S", self.E(f"s_cselect_b32 s{S_TH}, s{S_WLM}, s{S_WL}"))
            c = sc.chain(self.w_setup(S_TG, S_TH), 2)
        elif kind != "T15":
            c = sc.chain(self.w_setup(S_Q, S_WL), max(0, gw - 14))
        if kind != "T15":
            lastG = self.place_dma(sc, self.dma_items(("W", layer, t + 1), S_WR + 1, "W"), max(gw, c[-1] + 1), pace if kind != "H0" else o.paceh)
        gx = lastG + int(pace)
        if kind in ("S1", "S2", "S3", "G1"):
            if kind != "S1":
                gbr = self.poll_check(sc, kind, ("P", layer, t + 2), off + 8)
                assert gbr < lastG - 1
            c = sc.chain([self.S(f"s_lshr_b32 s{S_PA}, s{S_Q+2}, 2"), self.S(f"s_lshl_b32 s{S_PA}, s{S_PA}, 7"),
                          self.S(f"s_add_u32 s{S_PA}, s{S_PA}, s{S_FB}")], lastG - 1)
            k, f = self.VM(f"buffer_load_dword v{V_POLL}, off, {sr(S_WS,4)}, s{S_PA} sc1", ("P", layer, t + 3))
            gp = sc.place(k, f, max(c[-1], lastG) + 2)
            gx = max(gx, gp + 2); lastG = gp
        xadv = [self.V(f"v_add_u32 v{V_XC[i]}, 128, v{V_XC[i]}") for i in range(2)]
        if first:
            sc.chain(xadv, 4)
            lastG = self.place_dma(sc, self.dma_items(("X", 0, 1), S_X + 1, "X0"), gx, pace)
            c = sc.chain(xadv, lastG + 1)
            lastG = self.place_dma(sc, self.dma_items(("X", 0, 2), S_X + 2, "X0"), max(lastG + pace, c[-1] + 1), pace)
        if kind == "G0":
            ww = [self.VM(f"buffer_load_dword v{V_POLL}, v{V_CPL}, {sr(S_W,4)}, s{S_PA} offen", "PW"), self.S(f"s_add_u32 s{S_PA}, s{S_PA}, {384 if o.wwarm else 0}")]
            if not o.xtouch: sc.chain(ww, lastG + 3)
            sc.chain(xadv, off + 20)
            lastG = self.place_dma(sc, self.dma_items(("X", layer, t + 2), S_X + 2, "X0"), gx, o.pacex)
            if o.xtouch: lastG = sc.chain(ww, lastG + 3)[0]
        if kind in ("E0", "G0") and o.xtouch:
            sc.chain([self.VM(f"buffer_load_dword v{V_POLL}, v{V_XT}, {sr(S_X0,4)}, s{S_XTO} offen nt", "PW"),
                      self.S(f"s_add_u32 s{S_XTO}, s{S_XTO}, 128")], lastG + 3)
        if kind == "G0" and o.tpf & 2:
            sc.chain([self.VM(f"global_load_dword v{V_POLL}, v31, s[{S_PC}:{S_PC+1}]", "PW")], lastG + 6)
        if kind == "S1" and o.tpf & 1:
            sc.chain([self.S(f"s_lshr_b32 s{S_TE}, s2, 3"), self.S(f"s_lshl_b32 s{S_TE}, s{S_TE}, 9"), self.S(f"s_lshl_b32 s{S_TF}, s{S_WAVE}, 7"),
                      self.S(f"s_add_u32 s{S_TE}, s{S_TE}, s{S_TF}"), self.S(f"s_add_u32 s{S_TE}, s{S_TE}, L_TAIL-L_pc"),
                      self.S(f"s_min_u32 s{S_TE}, s{S_TE}, L_codeend-L_pc-4"), self.V(f"v_mov_b32 v{V_FLAG}, s{S_TE}"),
                      self.VM(f"global_load_dword v{V_FLAG}, v{V_FLAG}, s[{S_PC}:{S_PC+1}]", "PW")], off + 4, lastG - 1)
        if kind in ("S2", "S3", "G1"):
            c = sc.chain(self.x_setup(S_Q + 1), 8, off - 1)
            assert c[-1] < gx
            lastG = self.place_dma(sc, self.dma_items(("X", layer, t + 2), S_X + 2, "XE"), gx, o.pacex)
        if kind == "T14":
            it = [self.S(f"s_mov_b32 s{S_WT+k}, {k*16384 - (k&1)*2048}") for k in range(1, 4)]
            it += [self.S(f"s_add_u32 s{S_WL}, s{S_WL}, 0x200000"), self.S(f"s_lshl_b32 s{S_Q}, s{S_J}, 2"),
                   self.V(f"v_subrev_u32 v{V_WC[1]}, s{S_ADJ}, v{V_WC[1]}"), self.S(f"s_mov_b32 s{S_ADJ}, 0")]
            it += self.w_setup(S_Q, S_WL)
            c = sc.chain(it, lastG + 1)
            lastG = self.place_dma(sc, self.dma_items(("W", layer + 1, 0), S_X + 2, "W"), max(gx, c[-1] + 1), pace - 1)
        if kind == "T15":
            sc.put(0, "S", self.E(f"s_cmp_eq_u32 s{S_LAYER}, 0")); sc.closedS.add(0)
            if o.e1out: sc.put(1, "S", self.E(f"s_cselect_b64 s[{S_X0}:{S_X0+1}], s[{S_OUT}:{S_OUT+1}], s[{S_WS}:{S_WS+1}]"))
            else:
                sc.put(1, "S", self.E(f"s_cselect_b32 s{S_TE}, 0x2000000, 0"))
                def f64():
                    self.e(f"s_add_u32 s{S_X0}, s{S_WS}, s{S_TE}"); self.e(f"s_addc_u32 s{S_X0+1}, s{S_WS+1}, 0")
                sc.put(17, "G", f64)
            sc.chain([self.S(f"s_lshl_b32 s{S_TD}, s{S_LAYER}, 2"), self.S(f"s_add_u32 s{S_NEED}, s{S_NEED}, s{S_TD}"),
                      self.S(f"s_mov_b32 s{S_FV}, s{S_NEED}"),
                      self.S(f"s_lshr_b32 s{S_TD}, s{S_WAVE}, 1"), self.S(f"s_mul_i32 s{S_TD}, s{S_TD}, s{S_LAYER}"), self.S(f"s_mul_i32 s{S_KEY}, s{S_TD}, 12"),
                      self.S(f"s_sub_u32 s{S_WLM}, s{S_WL}, 256"), self.S(f"s_sub_u32 s{S_LEND}, s{S_LEND}, 1"),
                      self.S(f"s_add_u32 s{S_LAYER}, s{S_LAYER}, 1")], 2, 30)
        if first:
            sc.chain([self.V(f"v_lshlrev_b32 v{V_FLAG}, 3, v{V_L16}"), self.V(f"v_and_b32 v{V_FLAG}, 0x180, v{V_FLAG}"),
                      self.VM(f"buffer_load_dword v{V_POLL}, v{V_FLAG}, {sr(S_WS,4)}, s{S_FB} offen sc1", "PW")], 68)
            sc.chain([self.S(f"s_add_u32 s{S_NEED}, s{S_EP}, 1"), self.S(f"s_mov_b32 s{S_FV}, s{S_EP}")] + self.flag_items(), 98)
        if kind == "H0":
            def fb():
                self.wait(vtags=[("S", layer, 0)]); self.e("s_barrier")
            g = sc.place("G", fb, off + o.flag0)
            sc.chain(self.flag_items(), g + 1)
        if kind == "S3":
            assert ("S", layer, 1) not in self.vq
            sc.chain(self.flag_items(), off + 3)
        if kind == "G1":
            assert ("S", layer, min(t - 2, 3)) not in self.vq
            sc.chain(self.flag_items() + [self.S(f"s_sub_u32 s{S_TF}, s{S_FV}, s{S_NEED}"), self.S(f"s_min_u32 s{S_TF}, s{S_TF}, 3"),
                                          self.S(f"s_add_u32 s{S_FV}, s{S_TF}, s{S_NEED}")], off + 3)
        CT = V_T + 12
        if kind in ("S1", "S2", "S3"):
            jobs = [mt for mt in range(8) if not self.is_direct(t, mt)]
            def chk(): assert self.lds_own[self.slot[S_X]] == ("X", layer, t)
            c = sc.chain([self.SU(f"s_sub_u32 s{S_E0}, s{S_X}, s{S_OADJ}", chk), self.V(f"v_add_u32 v{V_CPL}, s{S_E0}, v{V_L16}")], 8)
            gprev = c[-1]
            w0 = int(o.cpos[t - 1])
            assert w0 + len(jobs) <= 6
            for k, mt in enumerate(jobs):
                w = sc.blkwait[k + w0]
                sc.place("D", lambda mt=mt: self.lds(f"ds_read_b128 {vr(CT,4)}, v{V_CPL} offset:{mt*2048}", ("C",)), max(gprev + 1, w - 9), w - 1)
                def st(mt=mt):
                    assert ("C",) not in self.lq
                    so, im = mt_off(mt)
                    self.vm(f"buffer_store_dwordx4 {vr(CT,4)}, v{V_CPG}, {sr(S_X0,4)}, {so} offen offset:{im + t*128} sc1", ("S", layer, t))
                gprev = sc.place("G", st, w + 1)
        gcap = 0
        if kind in ("E0", "G0", "T14", "T15"):
            cap, bk = f"CAP_{kind}", f"CB_{kind}"
            def br():
                self.e(f"s_cbranch_scc1 {cap}"); self.label(bk)
            def blkc(p):
                return [f"v_xor_b32 v{V_FLAG}, s{S_WC64}, v{V_XA[0]}"] + [f"ds_read_b128 {ar(X0(p,mt),4)}, v{V_FLAG} offset:{mt*2048}" for mt in range(8)] + [f"s_branch {bk}"]
            if kind == "G0":
                c = sc.chain([self.S(f"s_lshr_b32 s{S_TC}, s{S_LOOP}, 2")], off + 16)
                gcap = sc.branch(self.E(f"s_cmp_eq_u32 s{S_TC}, s{S_CAPJ}"), br, c[-1])
                b = [f"{cap}:", f"s_and_b32 s{S_TC}, s{S_LOOP}, 3"]
                for p in range(1, 4): b += [f"s_cmp_eq_u32 s{S_TC}, {p}", f"s_cbranch_scc1 {cap}{p}"]
                b += blkc(0)
                for p in range(1, 4): b += [f"{cap}{p}:"] + blkc(p)
                self.ool[cap] = b
            else:
                gcap = sc.branch(self.E(f"s_cmp_eq_u32 s{S_CAPJ}, {t >> 2}"), br, off + (12 if kind == "T15" else 16))
                self.ool[cap] = [f"{cap}:"] + blkc(t & 3)
        gXA = max(gcap + 1, off + 2)
        nx = {}
        if kind == "T15":
            def f0():
                self.e(f"v_add_u32 v{V_XA[0]}, s{S_TA}, v{V_L16}"); self.xa = nx["x"]
            sc.chain([self.S(f"s_lshl_b32 s{S_TA}, s{S_WC64}, 7"),
                      self.SU(f"s_sub_u32 s{S_TA}, s{S_X+2}, s{S_TA}", lambda: nx.update(x=self.slot[S_X + 2])),
                      ("V", f0), self.V(f"v_add_u32 v{V_XA[1]}, 1024, v{V_XA[0]}"), self.S(f"s_mov_b32 s{S_CAPJ}, 77")], gXA)
            wnext = S_X + 1
        else:
            sc.chain(self.xa_items(S_X + 1, S_X, nx), gXA)
            wnext = S_WR + 1
        self.wa_sched(sc, wnext, S_WR, gXA, off + 16 * 6 + 8)
        def bload(nt):
            return lambda: self.vm(f"buffer_load_dwordx2 {vr(self.braw(nt),2)}, v{V_B}, {sr(S_B,4)}, s{S_BOFF} offen offset:{(nt>>1)*128 + (nt&1)*32}", ("B", layer, nt // 6))
        if kind == "H0":
            g = gb - 8
            for nt in (6, 7): g = sc.place("G", bload(nt), g) + 1
            assert g < lastG
        if kind == "S1":
            g = off + 3
            for nt in range(6): g = sc.place("G", bload(nt), g) + 4
        if kind in ("S1", "S2", "S3", "T14"):
            g = 8 if kind == "S1" else 0
            for nt in {"S1": [6], "S2": [4, 5, 0], "S3": [3, 1, 2], "T14": [7]}[kind]:
                b0 = 0 if nt == 7 else off + 16 * nt
                g = self.bias_sched(sc, nt, g, (b0, b0 + 16))
            if kind == "S3": sc.place("S", self.E(f"s_add_u32 s{S_BOFF}, s{S_BOFF}, 2048"), 4)
        if first:
            ops = []
            for mt in range(8): ops += [f"v_accvgpr_write_b32 a{ACC(mt,7)[1]+i}, 1.0" for i in range(4)]
            g = sc.place("S", lambda: self.wait(vtags=[("B", 0, 7)]), 16) + 1
            sc.chain([self.V(x) for x in ops[:14]], 0)
            for nt in range(2, 7):
                g = sc.chain([self.V(x) for x in self.bias0_ops(nt)], g, 16 * nt - 2)[-1]
            ops = ops[14:]
            for mt in range(2): ops += [f"v_accvgpr_write_b32 a{ACC(mt,6)[1]+i}, v{ACC(7,6)[1]+i}" for i in range(4)]
            sc.chain([self.V(x) for x in ops], g, 96 - 2)
        self.slot[S_TR] = None
        if kind == "T15":
            rot = [self.smov(S_O2, S_X), self.smov(S_O3, S_WR), self.smov(S_WR, S_X + 1), self.smov(S_X + 1, S_WR + 1),
                   self.smov(S_X, S_X + 2), self.smov(S_WR + 1, S_X + 2)]
        elif kind == "H0":
            rot = [self.smov(S_X, S_X + 1), self.smov(S_X + 1, S_O2), self.smov(S_X + 2, S_O3),
                   self.smov(S_TR, S_WR), self.smov(S_WR, S_WR + 1), self.smov(S_WR + 1, S_TR)]
        else:
            rot = [self.smov(S_TR, S_X), self.smov(S_X, S_X + 1), self.smov(S_X + 1, S_X + 2), self.smov(S_X + 2, S_TR),
                   self.smov(S_TR, S_WR), self.smov(S_WR, S_WR + 1), self.smov(S_WR + 1, S_TR)]
        q = []
        if kind in ("E0", "G0", "T15", "H0"): q = [self.S(f"s_add_u32 s{S_Q}, s{S_Q}, 1")]
        if kind == "H0": q += [self.S(f"s_add_u32 s{S_Q+1}, s{S_Q}, 1"), self.S(f"s_mov_b32 s{S_Q+2}, s{S_FQ}")]
        if kind in ("S1", "S2"):
            q = [self.S(f"s_mov_b32 s{S_Q}, s{S_Q+1}"), self.S(f"s_mov_b32 s{S_Q+1}, s{S_Q+2}"), self.S(f"s_mov_b32 s{S_Q+2}, s{S_FQ+t}")]
        if kind in ("S3", "G1"):
            q = [self.S(f"s_add_u32 s{S_TE}, s{S_Q}, 1"), self.S(f"s_mov_b32 s{S_Q}, s{S_Q+1}"), self.S(f"s_mov_b32 s{S_Q+1}, s{S_Q+2}"),
                 self.S(f"s_mov_b32 s{S_Q+2}, s{S_TE}")]
        if kind == "S3": q += [self.S(f"s_mov_b32 s{S_LOOP}, 4")]
        sc.chain(q, max(gx, off + 60))
        if kind in ("G0", "G1"): rot += [self.S(f"s_add_u32 s{S_LOOP}, s{S_LOOP}, 1")]
        sc.chain(rot, max(sc.last_su(), 108 if kind in ("T15", "H0") else 0))
        if kind == "T15": self.make_stream(layer + 1)
        def check(g, m):
            if kind == "H0" and g >= off: assert (m[1] >> 1) * 8 + m[0] in self.epi_done, ("deadline", m)
        self.xr = o.xr15 if kind == "T15" else o.xr0
        self.seg_emit(sc, {"T15": 0, "H0": 128}.get(kind), check, 86 if first else off + 50)
        if kind == "T15": assert all(f in self.wr_done for f in range(8))
        if kind == "H0": assert not self.stream, "stream left"

    def is_direct(self, p, mt):
        n = int(self.opt.direct[p])
        return ((mt + 1) * n) // 8 != (mt * n) // 8
    def make_stream(self, nl):
        st = []
        self.epi_done = set(); self.wr_done = set()
        tbf = lambda f: V_T + 8 * (f % 2)
        U = lambda f, h: ("U", ("U", f // 8, f % 8, h, tbf(f)))
        self.stream = [U(f, h) + (30,) for f in range(2) for h in range(2)]
        self.credit = 0.0
        for f in range(32):
            p, mt = f // 8, f % 8
            tb = tbf(f)
            pos = 38 + 32 * p + 2 * mt
            sreg = {0: S_X + 2, 1: S_WR + 1, 2: S_O2, 3: S_O3}[p]
            ops = self.epi_valu(p, mt, tb, V_T + 16, tb)
            it = []
            for k, x in enumerate(ops):
                kd = "V" if (k < 4 or f == 31) else "A"
                if k == len(ops) - 5: it.append((kd, lambda x=x, f=f: (self.e(x), self.epi_done.add(f)), pos))
                else: it.append((kd, self.E(x), pos))
            if p >= 2: pos = max(pos, 129)
            if mt == 0:
                def f0(p=p, sreg=sreg):
                    self.lds_own[self.slot[sreg]] = ("X", nl, p)
                    self.e(f"s_sub_u32 s{S_E0}, s{sreg}, s{S_OADJ}")
                a = [("S", f0, pos), ("A", self.E(f"v_add_u32 v{V_CPL}, s{S_E0}, v{V_L16}"), pos)]
                it = it[:6] + a + it[6:] if p != 2 else it + a
            if self.is_direct(p, mt):
                so, im = mt_off(mt)
                it += [("R", lambda p=p, im=im, tb=tb, so=so: self.vm(f"buffer_store_dwordx4 {vr(tb,4)}, v{V_CPG}, {sr(S_X0,4)}, {so} offen offset:{im + p*128} sc1", ("S", nl, p)), pos)]
            if f + 2 < 32: it += [U(f + 2, 1) + (pos,)]
            it += [("X", lambda f=f, mt=mt, tb=tb: (self.lds(f"ds_write_b128 v{V_CPL}, {vr(tb,4)} offset:{mt*2048}", ("O",)), self.wr_done.add(f)), pos)]
            if f + 2 < 32: it += [U(f + 2, 0) + (pos,)]
            self.stream += it

    def merge_gap(self, sc, g, gpos):
        fixed = sc.g[g]
        self.gnow = gpos
        while True:
            cur = list(fixed)
            excl = any(k == "G" for k, _ in cur)
            hasR = False
            newgap = None
            top = -1
            if gpos is not None: self.credit = min(self.credit + self.xr, 2.0)
            def cnt(): return sum(k in "DV" for k, _ in cur), sum(getattr(f, "w", 1) for k, f in cur)
            def free():
                nvec, tot = cnt()
                if hasR: return nvec < 2
                return not excl and nvec < 2 and tot < 3
            def lookahead():
                i = 0
                while i < len(self.stream) and self.stream[i][0] in "RUX": i += 1
                while i < len(self.stream) and self.stream[i][0] == "V" and self.stream[i][2] <= gpos + 1 and free():
                    cur.append(("V", self.stream.pop(i)[1]))
            if gpos is not None and fixed is sc.g[g] and not (self.stream and getattr(self.stream[0][1], "pub", False)):
                while self.stream2 and self.stream2[0][2] <= gpos + 1:
                    k, fn, pos = self.stream2[0]
                    st = fn.ready(gpos)
                    if st == "skip": self.stream2.pop(0); continue
                    if st:
                        grp = [self.stream2.pop(0)]
                        if k == "S": grp.append(self.stream2.pop(0))
                        self.stream[0:0] = grp
                    break
            while gpos is not None and self.stream:
                k, fn, pos = self.stream[0]
                if pos > gpos + 1:
                    break
                if k == "U" and len(self.stream) > 1 and hasattr(self.stream[1][1], "ok") and not self.stream[1][1].ok():
                    lookahead(); break
                if k == "U":
                    lookahead()
                    newgap = fn; self.stream.pop(0); break
                if k == "X":
                    nxt = [kk for gg in (g + 1, g + 2) if gg < sc.n for kk, _ in sc.g[gg]]
                    follow_u = len(self.stream) > 1 and self.stream[1][0] == "U"
                    if any(kk != "S" for kk, _ in cur) or (not follow_u and "D" in nxt and fixed is sc.g[g]):
                        lookahead(); break
                    cur.append(("G", fn)); excl = True; self.stream.pop(0); continue
                if k == "R":
                    if excl or top > 0:
                        lookahead(); break
                    cur.append(("G", fn)); excl = True; hasR = True; top = 1; self.stream.pop(0); continue
                if k in "SZ":
                    w = 2 if k == "Z" else 1
                    if excl or top > 0 or (g in sc.closedS and fixed is sc.g[g]) or cnt()[1] + w > 3: break
                    fn.w = w
                    cur.append(("S", fn)); top = 0; self.stream.pop(0); continue
                if k == "D":
                    if top > 2 or not free(): break
                    cur.append(("D", fn)); top = 2; self.stream.pop(0); continue
                ok = free()
                if not ok and not excl and self.credit >= 1.0 and cnt()[0] < 3 and cnt()[1] < 4:
                    self.credit -= 1.0; ok = True
                if not ok: break
                cur.append(("V", fn)); top = 3; self.stream.pop(0)
            ks = [k for k, _ in cur]
            if ks.count("D") == 2 and "S" not in ks and "G" not in ks: cur.append(("S", self.E("s_nop 0")))
            for k, fn in sorted(cur, key=lambda x: RANK[x[0]]): fn()
            if newgap is None: return
            self.mfma(newgap)
            fixed = []

    def tail(self):
        e = self.e; o = self.opt
        L = 2
        VW, VR = V_POLL, V_CPL
        CT = V_T + 20; AT = V_T + 16
        tbf = lambda f: V_T + 8 * (f % 2)
        U = lambda f, h: ("U", ("U", f // 8, f % 8, h, tbf(f)))
        depth = lambda f: 4 if f < 8 else 8
        unit = lambda f: (f % depth(f)) * 4096
        area = {0: (S_WR, 0), 1: (S_X + 1, 0), 2: (S_X, 0), 3: (S_X + 1, 0)}
        def rdback(f, p, r, k):
            assert f in self.visible and self.ra == f // 8
            self.lds(f"ds_read_b64 {vr(r+2*k,2,p)}, v{VR} offset:{unit(f) + 256*k}", ("C", f))
        def store(f, dst):
            assert ("C", f) not in self.lq
            so, im = mt_off(f % 8)
            self.vm(f"buffer_store_dwordx4 {dst}, v{V_CPG}, {sr(S_OUT,4)}, {so} offen offset:{im + (f//8)*128} {o.outf}", "SO")
            self.stored.add(f)
        def wr_ok(f):
            prev = {0: f - 4, 1: -1, 2: -1, 3: f - 16}[f // 8]
            return (prev < 0 or prev in self.freed) and (f // 8) in self.area_free
        def wr(f):
            assert wr_ok(f) and self.wa_ == f // 8
            self.lds(f"ds_write_b128 v{VW}, {vr(tbf(f),4)} offset:{unit(f)}", ("Y", f))
            self.written.add(f); self.wpos = self.gnow
        self.written = set(); self.visible = set(); self.freed = set(); self.rd_at = {}
        self.lds_half = {}; self.landed = set(); self.area_free = set(); self.area_next = set()
        self.wpos = 0; self.ra = 0; self.wa_ = 0
        def at_barrier():
            self.visible |= {f for f in self.written if ("Y", f) not in self.lq}
            self.freed |= {f for f in self.rd_at if ("C", f) not in self.lq}
            self.landed |= {v for v in self.lds_half.values() if v not in self.vq}
            if not any(x and x[0] == "XF" for x in self.lq): self.area_free |= self.area_next
        def bar(vtags=()):
            self.wait(vtags=vtags, ltags=[("Y", x) for x in self.written]); e("s_barrier"); at_barrier()
        def switch(reg, p, attr):
            t = S_TC if attr == "ra" else S_TD
            def f():
                e(f"v_add_u32 v{reg}, s{t}, v{reg}"); setattr(self, attr, p)
            return [("S", self.E(f"s_sub_u32 s{t}, s{area[p][0]}, s{area[p-1][0]}")), ("A", f)]
        def half_dma(tile, H, tidreg, sreg, half):
            what = ("W", L, tile, H)
            it = [self.S(f"s_add_u32 s{S_TH}, s{S_WLM}, {H*256}")] + self.w_setup(tidreg, S_TH)
            d = [self.SU(f"s_add_u32 m0, s{sreg}, s{S_O2+half}", lambda: self.lds_half.__setitem__((self.slot[sreg], half), what))]
            for i in range(4):
                so = "0" if i < 2 else f"s{S_WT+1}"
                d.append(self.VM(f"buffer_load_dwordx4 v{V_WC[i&1]}, {sr(S_W,4)}, {so} offen" + (f" offset:{i*1024}" if i else "") + " lds", what))
            return it, d
        W13, W14, W15 = ("W", L, 13), ("W", L, 14), ("W", L, 15)
        X13, X14, X15 = ("X", L, 13), ("X", L, 14), ("X", L, 15)
        self.lds_half[(self.slot[S_WR], 0)] = W13 + (0,); self.lds_half[(self.slot[S_WR], 1)] = W14 + (0,)
        sc = self.seg_open("A13", [X13, W13, ("P", L, 15)], 8, 7, [0, 1, 2], X13, W13, half=0, nextnt=3); at_barrier()
        gbr = self.poll_check(sc, "A13", ("P", L, 15), 0)
        sc.chain(self.x_setup(S_Q + 1), 3, 15)
        c = sc.chain([self.S(f"s_lshl_b32 s{S_TA}, s{S_WAVE}, 15"), self.S(f"s_lshl_b32 s{S_TB}, s{S_WC64}, 10"), self.S(f"s_sub_u32 s{S_TA}, s{S_TA}, s{S_TB}"),
                      self.S(f"s_lshr_b32 s{S_TB}, s{S_WR14}, 6"), self.S(f"s_sub_u32 s{S_TA}, s{S_TA}, s{S_TB}"), self.S(f"s_add_u32 s{S_WLM}, s{S_WL}, s{S_TA}"),
                      self.S(f"s_lshl_b32 s{S_TA}, s{S_WAVE}, 12"), self.S(f"s_sub_u32 s{S_O2}, 0, s{S_TA}"), self.S(f"s_add_u32 s{S_O3}, s{S_O2}, 0x4000"),
                      self.S(f"s_sub_u32 s{S_Q+2}, s{S_Q+2}, 1")], 5)
        it, d = half_dma(15, 0, S_Q + 1, S_WR + 1, 0)
        c = sc.chain(it, c[-1])
        lastG = self.place_dma(sc, d, max(gbr + 1, c[-1] + 1), o.pacet)
        lastG = self.place_dma(sc, self.dma_items(X15, S_X + 2, "XE"), lastG + 3, o.pacet)
        nx = {}
        sc.chain(self.xa_items(S_X + 1, S_X, nx), 18)
        a, b, c_, d_ = [f"v{V_T+i}" for i in range(4)]
        r7 = self.braw(7)
        adr = [f"v_lshrrev_b32 {a}, 9, v{V_L16}", f"v_lshlrev_b32 {a}, 6, {a}", f"v_add_u32 {a}, {a}, v{V_L16}", f"v_add_u32 {a}, s{S_KEY}, {a}",
               f"v_and_b32 {a}, 0xf0, {a}", f"v_and_b32 {b}, 0x300, v{V_L16}", f"v_add3_u32 v{VW}, {a}, {b}, s{S_E0}",
               f"v_and_b32 {c_}, 0x70, v{V_CPG}",
               f"v_lshrrev_b32 {a}, 3, v{V_L16}", f"v_and_b32 {a}, 0x70, {a}", f"v_add_u32 {a}, s{S_KEY}, {a}",
               f"v_and_b32 {b}, 64, {c_}", f"v_lshl_add_u32 {a}, {b}, 1, {a}", f"v_and_b32 {d_}, 16, {c_}", f"v_lshl_add_u32 {a}, {d_}, 2, {a}",
               f"v_and_b32 {a}, 0xf0, {a}", f"v_lshl_add_u32 {a}, {b}, 4, {a}", f"v_lshl_add_u32 {a}, {d_}, 5, {a}",
               f"v_bfe_u32 {b}, {c_}, 5, 1", f"v_lshl_add_u32 {a}, {b}, 3, {a}", f"v_add_u32 v{VR}, s{S_TF}, {a}"]
        sc.chain([self.S(f"s_lshl_b32 s{S_KEY}, s{S_WC64}, 1"), self.S(f"s_mul_i32 s{S_E0}, s{S_WAVE}, 7168"), self.SU(f"s_sub_u32 s{S_E0}, s{S_WR}, s{S_E0}"),
                  self.S(f"s_lshl_b32 s{S_TF}, s{S_WC64}, 4"), self.S(f"s_sub_u32 s{S_TF}, s{S_E0}, s{S_TF}")], 20, 36)
        self.stream = [self.V(x) + (40,) for x in adr]
        self.stream += [self.V(f"v_mov_b32 v{V_XC[i]}, v{r7+i}") + (64,) for i in range(2)]
        self.credit = 0.0; self.xr = 0.0
        E0 = [134, 230, 326, 390]
        ear = lambda f: E0[f // 8] + 2 * (f % 8)
        self.stream += [U(f, h) + (126,) for f in range(2) for h in range(2)]
        nf = o.nft
        for f in range(nf):
            pos = ear(f)
            it = [("V" if k < 4 else "A", self.E(x)) for k, x in enumerate(self.epi_valu(f // 8, f % 8, tbf(f), None, tbf(f)))]
            if f % 8 == 0 and f: it = it[:6] + switch(VW, f // 8, "wa_") + it[6:]
            w0 = lambda f=f: wr(f)
            w0.ok = lambda f=f: wr_ok(f)
            it += [U(f + 2, 1), ("X", w0), U(f + 2, 0)]
            self.stream += [x + (pos,) for x in it]
        def pub(f, pos):
            def z():
                bar(); assert f in self.visible
            z.ready = lambda g: "skip" if f in self.visible else (f in self.written and g >= self.wpos + 3)
            def r0(): rdback(f, "v", CT, 0)
            def r1(): rdback(f, "v", CT, 1); self.rd_at[f] = self.gnow
            r0.ready = r1.ready = lambda g: g >= self.wpos + 2
            def wt(): self.wait(ltags=[("C", f)])
            wt.ready = lambda g: f in self.rd_at and g >= self.rd_at[f] + 5
            def st(): store(f, vr(CT, 4))
            it = []
            if f % 8 == 0 and f:
                it = switch(VR, f // 8, "ra"); it[0][1].ready = lambda g: True
            it += [("Z", z), ("D", r0), ("D", r1), ("S", wt), ("R", st)]
            for k, x in it: x.pub = True
            return [x + (pos,) for x in it]
        self.stream2 = []
        for f in range(nf): self.stream2 += pub(f, E0[f // 8] + (o.spo + o.sp * (f % 8) if f < 16 else o.spo2 + o.sp2 * (f % 8)))
        self.seg_emit(sc, 0, stamp_at=58)
        self.area_next = {0}
        sc = self.seg_open("C14", [X14], None, 3, [0], X14, W14, half=1, nextnt=1); at_barrier()
        it, d = half_dma(15, 1, S_Q + 1, S_WR + 1, 1)
        c = sc.chain(it, 1)
        self.place_dma(sc, d, 17, 3)
        sc.chain(self.xa_items(S_X + 2, S_X + 1, nx), 16)
        self.wa_sched(sc, S_WR + 1, S_WR, 8, 24)
        self.seg_emit(sc, 64, stamp_at=28)
        sc = self.seg_open("F15", [X15, W15 + (0,)], None, 1, [0, 1, 2, 3, 4], X15, W15, half=lambda nt: nt >> 2, nextnt=5, maxS=1); at_barrier()
        it, d = half_dma(14, 1, S_Q, S_WR + 1, 0)
        c = sc.chain(it, 1)
        sc.g[63].append(("S", lambda: bar([W15 + (1,)])))
        self.place_dma(sc, d, 65, 4)
        sc.chain(self.xa_items(S_X + 1, S_X + 2, nx), 18)
        self.wa_sched(sc, S_WR, S_WR + 1, 20, 16 + 64 + 8)
        self.seg_emit(sc, 96, stamp_at=24)
        sc = self.seg_open("D14", [], None, 5, [2, 3, 4, 5, 6], X14, W14, half=lambda nt: 1 - (nt >> 2), nextnt=7, maxS=1, barrier=False)
        it, d = half_dma(13, 1, S_Q + 2, S_WR, 1)
        c = sc.chain(it, 1)
        def b3():
            self.area_next = {1, 3}; bar([W14 + (1,)])
        sc.g[31].append(("S", b3))
        self.place_dma(sc, d, 33, 4)
        sc.chain(self.xa_items(S_X, S_X + 1, nx), 18)
        self.wa_sched(sc, S_WR + 1, S_WR, 10, 24)
        self.wa_sched(sc, S_WR, S_WR + 1, 50, 16 + 64 + 8)
        self.seg_emit(sc, 192, stamp_at=26)
        sc = self.seg_open("B13", [W13 + (1,)], None, 7, [4, 5, 6], X13, W13, half=1, nextnt=7, maxS=1); at_barrier()
        def b4():
            self.area_next = {2}; bar()
        sc.g[31].append(("S", b4))
        sc.chain(self.xa_items(S_X + 2, S_X, nx), 18)
        self.wa_sched(sc, S_WR + 1, S_WR, 20, 16 + 32 + 8)
        self.seg_emit(sc, 288, stamp_at=24)
        sc = self.seg_open("E15", [], None, 7, [6], X15, W15, half=1, nextnt=7, maxS=1, barrier=False)
        self.seg_emit(sc, 352, stamp_at=24)
        sc = self.seg_open("FIN", [], None, 7, [], None, None, barrier=False, maxS=1)
        self.seg_emit(sc, 384, stamp_at=8)
        for k, fn, pos in self.stream:
            if k == "U": self.mfma(fn)
            else: fn()
        self.stream = []
        while self.stream2 and self.stream2[0][0] in "DSR" and not (self.stream2[0][0] == "S" and self.stream2[1][0] == "A"):
            self.stream2.pop(0)[1]()
        self.stream2 = []
        e("s_nop 7")
        todo = []
        dreg = lambda x: XF(x % 8, (x // 8) & 1)
        def publish():
            bar()
            for x in sorted(self.visible):
                if x not in self.rd_at:
                    if x // 8 != self.ra:
                        for k, fn in switch(VR, x // 8, "ra"): fn()
                    rdback(x, "a", dreg(x), 0); rdback(x, "a", dreg(x), 1); self.rd_at[x] = 0; todo.append(x)
        def drain(n):
            for _ in range(n):
                if todo:
                    x = todo.pop(0); self.wait(ltags=[("C", x)]); store(x, ar(dreg(x), 4))
        assert nf <= 24
        B7 = [V_WC[0], V_XC[0], V_WC[1], V_XC[1]]
        e(f"v_lshlrev_b32 v{B7[0]}, 16, v{B7[1]}"); e(f"v_and_b32 v{B7[1]}, s{S_MASK}, v{B7[1]}")
        e(f"v_lshlrev_b32 v{B7[2]}, 16, v{B7[3]}"); e(f"v_and_b32 v{B7[3]}, s{S_MASK}, v{B7[3]}")
        if self.written - set(self.rd_at): publish()
        for f in range(nf, 32):
            p, mt = f // 8, f % 8
            tb = tbf(f)
            if mt == 0:
                for k, fn in switch(VW, p, "wa_"): fn()
            for h in (1, 0):
                pf, r = ACC(mt, 2 * p + h)
                if pf == "a":
                    for i in range(4): e(f"v_accvgpr_read_b32 v{AT+i}, a{r+i}")
                    if h == 1:
                        for i in range(4): e(f"v_add_f32 v{AT+i}, v{AT+i}, v{B7[i]}")
                    r = AT
                for d2 in range(2): e(f"v_pk_mul_f32 {vr(tb+4*h+2*d2,2)}, {vr(tb+4*h+2*d2,2)}, {vr(r+2*d2,2)}")
            for d2 in range(4): e(f"v_cvt_pk_bf16_f32 v{tb+d2}, v{tb+2*d2}, v{tb+2*d2+1}")
            if f + 2 < 32: self.mfma(U(f + 2, 1)[1])
            wr(f)
            if f + 2 < 32: self.mfma(U(f + 2, 0)[1])
            drain(o.fdrain)
            if (f - nf) % o.fgrp == o.fgrp - 1 or f == 31: publish()
        drain(32)
        assert self.stored == set(range(32))
        e(f"s_or_b32 s{S_TA}, s{S_J}, s{S_WAVE}"); e(f"s_cmp_lg_u32 s{S_TA}, 0"); e("s_cbranch_scc1 L_fin")
        e(f"s_add_u32 s{S_TA}, s{S_EP}, 16"); e(f"v_mov_b32 v{V_FLAG}, s{S_TA}")
        e(f"buffer_store_dword v{V_FLAG}, off, {sr(S_WS,4)}, s{S_EPOFF} sc1")
        self.label("L_fin")
        if o.diag:
            e(f"s_memtime s[{S_ST}:{S_ST+1}]"); e("s_waitcnt vmcnt(0)"); e(f"s_memtime s[{S_ST+2}:{S_ST+3}]")
            e(f"s_memrealtime s[{S_RT+2}:{S_RT+3}]"); e("s_waitcnt lgkmcnt(0)")
            e(f"v_writelane_b32 v{V_ST[0]}, s{S_ST}, 62"); e(f"v_writelane_b32 v{V_ST[1]}, s{S_ST+2}, 62")
            e(f"v_writelane_b32 v{V_ST[0]}, s{S_RT}, 61"); e(f"v_writelane_b32 v{V_ST[1]}, s{S_RT+2}, 61")
            e(f"s_lshl_b32 s{S_TA}, s2, 2"); e(f"s_add_u32 s{S_TA}, s{S_TA}, s{S_WAVE}"); e(f"s_lshl_b32 s{S_TA}, s{S_TA}, 9")
            e(f"s_add_u32 s{S_TA}, s{S_TA}, {hex(ST_OFF)}"); e("v_lshrrev_b32 v0, 2, v0")
            e(f"buffer_store_dword v{V_ST[0]}, v0, {sr(S_WS,4)}, s{S_TA} offen")
            e(f"buffer_store_dword v{V_ST[1]}, v0, {sr(S_WS,4)}, s{S_TA} offen offset:256")
            if o.echo:
                a, b = o.echo.split(",")
                if a == "pad":
                    e(f"s_add_u32 s{S_TB}, s{S_RT}, {b}")
                else:
                    reg = V_ST[0] if o.echoc else V_ST[1]
                    if a == "s": e(f"s_mov_b32 s{S_TA}, s{S_D0 if o.echoc else S_RT}")
                    else: e(f"v_readlane_b32 s{S_TA}, v{reg}, {a}")
                    if b == "e": e(f"s_mov_b32 s{S_TB}, s{S_ST+2 if o.echoc else S_RT+2}")
                    else: e(f"v_readlane_b32 s{S_TB}, v{reg}, {b}")
                    e("s_nop 4")
                    e(f"s_sub_u32 s{S_TB}, s{S_TB}, s{S_TA}")
                    if o.echoc: e(f"s_lshr_b32 s{S_TB}, s{S_TB}, 4")
                    e(f"s_min_u32 s{S_TB}, s{S_TB}, 20000")
                    e(f"s_add_u32 s{S_TB}, s{S_TB}, s{S_RT+2}")
                self.label("L_echo")
                e(f"s_memrealtime s[{S_ST}:{S_ST+1}]"); e("s_waitcnt lgkmcnt(0)")
                e(f"s_sub_u32 s{S_ST}, s{S_ST}, s{S_TB}"); e(f"s_cmp_lt_i32 s{S_ST}, 0"); e("s_cbranch_scc1 L_echo")
        e("s_endpgm")

    def sizes(self, lines):
        import subprocess, tempfile, os
        labels = set()
        for l in lines:
            m = re.search(r"(?:branch\w*|L_\w+-)\s*(\w+)", l)
        src = '.amdgcn_target "amdgcn-amd-amdhsa--gfx950"\n.text\n'
        body = []
        for l in lines:
            if l.endswith(":"): continue
            if "branch" in l: l = "s_nop 0"
            l = re.sub(r"L_\w+-L_pc(-4)?", "0x12345", l)
            body.append(l)
        with tempfile.TemporaryDirectory() as d:
            open(d + "/a.s", "w").write(src + "\n".join(body) + "\n")
            subprocess.run(["clang", "-x", "assembler", "-target", "amdgcn-amd-amdhsa", "-mcpu=gfx950", "-c", d + "/a.s", "-o", d + "/a.o"], check=True)
            dis = subprocess.run(["llvm-objdump", "-d", "--mcpu=gfx950", d + "/a.o"], capture_output=True, text=True).stdout
        sz = [4 * len(l.split(": ")[-1].split()) for l in dis.splitlines() if "//" in l]
        assert len(sz) == len(body), (len(sz), len(body))
        out = []; k = 0
        for l in lines:
            if l.endswith(":"): out.append(0)
            else: out.append(sz[k]); k += 1
        return out
    def add_hops(self, o, caps):
        sz = self.sizes(o)
        out = ["@HOP"]; pos = 4; nextpage = 4096
        i = 0
        while i < len(o):
            if pos >= nextpage:
                best = None; p = pos; j = i
                while j < len(o) and p < nextpage + 56:
                    if j > 0 and o[j - 1].startswith("v_mfma"):
                        n = 0
                        while j + n < len(o) and not o[j + n].startswith("v_mfma"): n += 1
                        if best is None or n < best[0]: best = (n, j)
                    p += sz[j]; j += 1
                tgt = best[1] if best else i
                while i < tgt:
                    out.append(o[i]); pos += sz[i]; i += 1
                out.append("@HOP"); pos += 4
                nextpage += 4096
                continue
            out.append(o[i]); pos += sz[i]; i += 1
        for b in caps:
            for l in b:
                out.append(l)
                if l.endswith(":") and l in ("CAP_E0:", "CAP_G01:", "CAP_G03:"): out.append("@HOP")
        n = out.count("@HOP"); k = 0; res = []
        for l in out:
            if l == "@HOP":
                res.append(f"HOP{k}:"); res.append(f"s_cbranch_execz " + (f"HOP{k+4}" if k + 4 < n else "HOPEND")); k += 1
            else: res.append(l)
        self.nhops = n
        return res

    def build(self):
        self.stored = set()
        self.prologue()
        main = self.out
        texts = {}
        def gen(kind, layer, t):
            self.out = []
            self.body(kind, layer, t)
            if kind in texts and texts[kind] != self.out:
                for a, b in zip(texts[kind], self.out):
                    if a != b: print("DIFF", kind, layer, t, a, "|", b); break
                raise RuntimeError(f"body {kind} differs at layer {layer} t {t}")
            texts[kind] = self.out
        for layer in range(3):
            for t in range(16 if layer < 2 else 13):
                if layer == 0: kind = "E0" if t == 0 else ("G0" if t < 14 else f"T{t}")
                else: kind = "H0" if t == 0 else (f"S{t}" if t < 4 else ("G1" if t < 14 else f"T{t}"))
                gen(kind, layer, t)
        self.out = []; self.tail(); texts["TAIL"] = self.out
        o = texts["E0"][:]
        o += ["L_G0:"] + texts["G0"] + ["s_cbranch_scc1 L_G0"]
        o += ["L_T14:"] + texts["T14"] + texts["T15"] + texts["H0"] + texts["S1"] + texts["S2"] + texts["S3"]
        o += ["L_G1:"] + texts["G1"] + ["s_cbranch_scc1 L_G1"]
        o += [f"s_cmp_eq_u32 s{S_LAYER}, 1", "s_cbranch_scc1 L_T14"]
        o += ["L_TAIL:"] + texts["TAIL"]
        caps = [b for k, b in self.ool.items() if k.startswith("CAP")]
        slow = [b for k, b in self.ool.items() if not k.startswith("CAP")]
        if self.opt.hops:
            o = self.add_hops(o, caps)
            o = main + ["s_branch L_main"] + sum(slow, []) + [".p2align 12", "L_main:"] + o
        else:
            o = main + o + sum(caps, []) + sum(slow, [])
        self.texts = texts
        hdr = open("standalone__dcn_v2_cross__recsys.s.ref").read().split("\n")
        top = [l for l in hdr if l.startswith(";") and "@launch" not in l]
        if self.opt.diag: top.append("; STAMPS " + ("RT " if self.opt.diagrt else "CY ") + " ".join(self.stamps))
        txt = "\n".join(top) + f"\n; @launch grid=(256,1,1) block=(256,1,1) lds={SLOT*5}\n"
        txt += f""".amdgcn_target "amdgcn-amd-amdhsa--gfx950"
.text
.globl {NAME}
.p2align 8
.type {NAME},@function
{NAME}:
"""
        txt += "\n".join(o) + "\nL_codeend:\n"
        txt += f""".section .rodata,"a"
.p2align 6
.amdhsa_kernel {NAME}
  .amdhsa_next_free_vgpr 512
  .amdhsa_next_free_sgpr 102
  .amdhsa_accum_offset 256
  .amdhsa_group_segment_fixed_size 0
  .amdhsa_kernarg_size 48
  .amdhsa_user_sgpr_count 2
  .amdhsa_user_sgpr_kernarg_segment_ptr 1
  .amdhsa_system_sgpr_workgroup_id_x 1
  .amdhsa_float_denorm_mode_32 3
.end_amdhsa_kernel
"""
        return txt

if __name__ == "__main__":
    ap = argparse.ArgumentParser()
    ap.add_argument("-o", default="k3.s")
    ap.add_argument("--diag", action="store_true")
    ap.add_argument("--diagrt", action="store_true")
    ap.add_argument("--diagc", action="store_true")
    ap.add_argument("--pace", type=float, default=6)
    ap.add_argument("--pacex", type=float, default=6)
    ap.add_argument("--paceh", type=float, default=8)
    ap.add_argument("--pacet", type=float, default=3.3)
    ap.add_argument("--xr15", type=float, default=0.2)
    ap.add_argument("--xr0", type=float, default=-1)
    ap.add_argument("--xrt", type=float, default=0.0)
    ap.add_argument("--flag0", type=int, default=60)
    ap.add_argument("--early", type=int, default=8)
    ap.add_argument("--direct", default="8444")
    ap.add_argument("--cpos", default="222")
    ap.add_argument("--asc", type=int, default=1)
    ap.add_argument("--xtouch", type=int, default=0)
    ap.add_argument("--tpf", type=int, default=0)
    ap.add_argument("--hops", type=int, default=1)
    ap.add_argument("--echo", default="")
    ap.add_argument("--echoc", type=int, default=0)
    ap.add_argument("--x0f", default="nt")
    ap.add_argument("--e1out", type=int, default=1)
    ap.add_argument("--wwarm", type=int, default=1)
    ap.add_argument("--w0warm", type=int, default=0)
    ap.add_argument("-x", default="")
    ap.add_argument("--wr128", type=int, default=0)
    ap.add_argument("--nft", type=int, default=24)
    ap.add_argument("--sp", type=float, default=10)
    ap.add_argument("--spo", type=float, default=22)
    ap.add_argument("--sp2", type=float, default=9)
    ap.add_argument("--spo2", type=float, default=16)
    ap.add_argument("--xrb", type=float, default=0.0)
    ap.add_argument("--fdrain", type=int, default=1)
    ap.add_argument("--fgrp", type=int, default=3)
    ap.add_argument("--outf", default="sc1")
    opt = ap.parse_args()
    if opt.diagrt: opt.diag = True
    if opt.xr0 < 0:
        opt.xr0 = 0.1
        while True:
            try:
                g = G(opt); txt = g.build(); break
            except AssertionError as ex:
                if not (ex.args and (ex.args[0] == "stream left" or ex.args[0][0] == "deadline")): raise
                opt.xr0 += 0.01
                if opt.xr0 > 1: raise
    else:
        g = G(opt); txt = g.build()
    open(opt.o, "w").write(txt)
    print(f"xr0 {opt.xr0:.2f} fallback waits:", g.warn, {k: len(v) for k, v in g.texts.items()})
```

```python
import sys, re, argparse

NAME = "standalone__dcn_v2_cross__recsys_kernel"
SLOT = 32768
FL_OFF = 64 << 20
EP_OFF = FL_OFF + 65536
ST_OFF = 80 << 20

def vr(b, n=1, p="v"):
    return f"{p}{b}" if n == 1 else f"{p}[{b}:{b+n-1}]"
def ar(b, n=1): return vr(b, n, "a")
def sr(b, n=1): return vr(b, n, "s")

def XF(mt, s): return (mt * 2 + s) * 4
def WF(buf, s): return 64 + buf * 8 + s * 4
def X0(p, mt): return 80 + (p * 8 + mt) * 4
def SEL(h): return 208 + 4 * h
ACC_A0 = 216
ACC_V0 = 40
_acc = {}
def _init_acc():
    va, aa = ACC_V0, ACC_A0
    for nt in range(8):
        for mt in range(8):
            if nt == 7 or (nt == 6 and mt < 2):
                _acc[(mt, nt)] = ("a", aa); aa += 4
            else:
                _acc[(mt, nt)] = ("v", va); va += 4
    assert va == 256 and aa == 256
_init_acc()
def ACC(mt, nt): return _acc[(mt, nt)]

V_L16 = 0; V_XA = [1, 2]; V_WA = [3, 4]; V_WC = [5, 6]; V_XC = [7, 8]; V_CPG = 15; V_CPL = 9
V_POLL = 10; V_FLAG = 11; V_B = 12; V_ST = [13, 14]; V_T = 16; V_XT = 30; V_CAP = 36; V_WT = 37
S_DW = 4; S_TR = 5; S_E0 = 6; S_KEY = 7
S_W = 8; S_X0 = 12; S_WS = 16; S_OUT = 20; S_B = 24
S_WT = 28; S_XT = 32
S_X = 36
S_WR = 39
S_Q = 41
S_WCUR = 44; S_WL = 45; S_XB = 46; S_FB = 47; S_FOWN = 48; S_EP = 49; S_NEED = 50; S_FV = 51; S_WLM = 52
S_PA = 53; S_J = 54; S_WAVE = 55; S_RB = 56; S_LOOP = 57; S_LAYER = 58; S_ADJ = 59; S_OADJ = 60; S_WC64 = 61
S_M4 = 62; S_MASK = 65; S_EPOFF = 66; S_CNT = 67; S_CAPJ = 68; S_BOFF = 69
S_TA = 70; S_TB = 71; S_TC = 72; S_TD = 73; S_TE = 74; S_TF = 75; S_O2 = 76; S_O3 = 77; S_WR14 = 78; S_DX = 79
S_PC = 80; S_ST = 82; S_RT = 86; S_SI = 90; S_LEND = 91; S_D0 = 92
S_FQ = 96
S_TG = 99; S_TH = 100; S_M7 = 101; S_XCUR = 3; S_XTO = 28

RANK = {"S": 0, "G": 1, "D": 2, "V": 3}

class Sched:
    def __init__(self, n, maxS=3):
        self.n = n
        self.g = [[] for _ in range(n)]
        self.closedS = set()
        self.maxS = maxS
    def fits(self, g, kind):
        kinds = [k for k, _ in self.g[g]]
        if kind == "G": return len(kinds) == 0
        if "G" in kinds: return False
        nvec = sum(k in "DV" for k in kinds)
        if kind == "S":
            if g in self.closedS or kinds.count("S") >= self.maxS: return False
            return len(kinds) < 3
        return nvec < 2 and len(kinds) < 3
    def put(self, g, kind, fn): self.g[g].append((kind, fn))
    def place(self, kind, fn, lo, hi=None):
        hi = self.n - 1 if hi is None else hi
        for g in range(lo, hi + 1):
            if self.fits(g, kind):
                self.put(g, kind, fn); return g
        raise RuntimeError(f"cannot place {kind} in [{lo},{hi}]")
    def chain(self, items, lo, hi=None):
        out = []; g = lo; pk = None
        for kind, fn in items:
            if pk is not None and (RANK[kind] < RANK[pk] or kind == "G" or pk == "G"): g += 1
            g = self.place(kind, fn, g, hi)
            out.append(g); pk = kind
        return out
    def branch(self, cmpfn, brfn, lo):
        for g in range(lo, self.n - 1):
            if self.fits(g, "S") and self.fits(g + 1, "G"):
                self.put(g, "S", cmpfn); self.closedS.add(g); self.put(g + 1, "G", brfn); return g + 1
        raise RuntimeError("branch")
    def last_su(self):
        last = 0
        for g in range(self.n):
            if any(getattr(f, "su", False) for _, f in self.g[g]): last = g
        return last + 1

def mt_off(mt):
    if mt == 0: return "0", 0
    if mt < 4: return f"s{S_XT+mt}", (mt & 1) * 2048
    return f"s{[S_M4, S_M4+1, S_M4+2, S_M7][mt-4]}", 0

def blk(nt, cinit=False):
    r = []
    for mt in range(8):
        ss = (0, 1) if mt % 2 == 0 else (1, 0)
        r += [(mt, nt, ss[0], cinit), (mt, nt, ss[1], False)]
    return r

class G:
    def __init__(self, opt):
        self.opt = opt
        self.out = []
        self.vq = []; self.lq = []
        self.ool = {}
        self.slot = {}
        self.lds_own = {}
        self.xa = None; self.wa = None
        self.warn = 0
        self.stamps = []
        self.stream = []; self.stream2 = []; self.entry = {}
        self.pending = None
    def e(self, s): self.out.append(s)
    def E(self, s): return lambda: self.e(s)
    def S(self, s): return ("S", self.E(s))
    def V(self, s): return ("V", self.E(s))
    def SU(self, s, then=None):
        def f():
            self.e(s)
            if then: then()
        f.su = True
        return ("S", f)
    def label(self, n): self.out.append(n + ":")
    def vm(self, s, tag=None):
        self.e(s); self.vq.append(tag); assert len(self.vq) <= 62
    def VM(self, s, tag=None): return ("G", lambda: self.vm(s, tag))
    def lds(self, s, tag=None):
        self.e(s); self.lq.append(tag)
    def _need(self, q, tags, mx, force=None):
        idx = -1
        for i, t in enumerate(q):
            if t in tags: idx = i
        if idx < 0 and force is None: return None
        n = len(q) - 1 - idx
        if force is not None:
            assert n >= force or idx < 0, (n, force, q)
            n = force
        n = min(n, mx)
        if len(q) > n: del q[:len(q) - n]
        return n
    def wait(self, vtags=(), ltags=(), lall=False, vforce=None):
        parts = []
        n = self._need(self.vq, set(vtags), 62, vforce)
        if n is not None: parts.append(f"vmcnt({n})")
        if lall:
            parts.append("lgkmcnt(0)"); self.lq = []
        else:
            n = self._need(self.lq, set(ltags), 14)
            if n is not None: parts.append(f"lgkmcnt({n})")
        if parts: self.e("s_waitcnt " + " ".join(parts))
    def smov(self, d, s):
        def f():
            self.e(f"s_mov_b32 s{d}, s{s}"); self.slot[d] = self.slot[s]
        return ("S", f)

    def mfma(self, m):
        if m[0] == "U":
            _, p, mt, h, tb = m
            self.e(f"v_mfma_f32_16x16x32_bf16 {vr(tb+4*h,4)}, {ar(SEL(h),4)}, {ar(X0(p,mt),4)}, 0")
            return
        mt, nt, s, cinit = m
        buf = nt & 1
        tags = {("XF", mt, s), ("WF", buf, s, 0), ("WF", buf, s, 1)}
        if tags & set(self.lq):
            self.warn += 1
            self.wait(ltags=tags)
        p, r = ACC(mt, nt)
        c = vr(r, 4, p)
        if cinit and p == "v" and mt != 7: c = vr(ACC(7, nt)[1], 4)
        self.e(f"v_mfma_f32_16x16x32_bf16 {vr(r,4,p)}, {ar(WF(buf,s),4)}, {ar(XF(mt,s),4)}, {c}")
    def rd_xf(self, mt, s, want):
        def f():
            assert self.lds_own[self.xa] == want, (self.lds_own[self.xa], want)
            self.lds(f"ds_read_b128 {ar(XF(mt,s),4)}, v{V_XA[s]} offset:{mt*2048}", ("XF", mt, s))
        return f
    def rd_wf(self, nt, s, u, want, half=None):
        p, h = nt >> 1, nt & 1
        if callable(half): half = half(nt)
        off = (p >> 1 if half is None else half) * 16384 + (p & 1) * 512 + s * 8192 + u * 4096
        def f():
            if half is None: assert self.lds_own[self.wa[h]] == want, (self.lds_own[self.wa[h]], want)
            else:
                assert self.lds_half[(self.wa[h], half)] == want + (p >> 1,), (self.lds_half, self.wa[h], half, want, nt)
                assert want + (p >> 1,) in self.landed
            self.lds(f"ds_read_b64_tr_b16 {ar(WF(h,s)+2*u,2)}, v{V_WA[h]} offset:{off}", ("WF", h, s, u))
        return f
    def dma_items(self, what, sdst, form):
        items = []
        for i in range(8):
            if i == 0: items.append(self.SU(f"s_mov_b32 m0, s{sdst}", lambda: self.lds_own.__setitem__(self.slot[sdst], what)))
            if i == 4:
                def chk(): assert self.lds_own[self.slot[sdst]] == what
                items.append(self.SU(f"s_add_u32 m0, s{sdst}, 0x1000", chk))
            off = f" offset:{(i&3)*1024}" if i & 3 else ""
            if form == "W":
                so = "0" if i < 2 else f"s{S_WT+(i>>1)}"
                s = f"buffer_load_dwordx4 v{V_WC[i&1]}, {sr(S_W,4)}, {so} offen{off} lds"
            elif form == "X0":
                so = "0" if i < 2 else f"s{S_XT+(i>>1)}"
                s = f"buffer_load_dwordx4 v{V_XC[i&1]}, {sr(S_X0,4)}, {so} offen{off} {self.opt.x0f} lds"
            else:
                so = "0" if i < 2 else f"s{S_XT+(i>>1)}"
                s = f"buffer_load_dwordx4 v{V_XC[i&1]}, {sr(S_X0,4)}, {so} offen{off} sc1 lds"
            items.append(self.VM(s, what))
        return items
    def place_dma(self, sc, items, lo, pace):
        g = lo; prev = -1; pend = None
        for kind, fn in items:
            if kind == "S": pend = fn; continue
            g0 = max(int(g), prev + 1)
            if pend is not None:
                gs = sc.place("S", pend, max(prev + 1, g0 - 2, 0)); g0 = max(g0, gs + 1); pend = None
            prev = sc.place("G", fn, g0)
            g += pace
        return prev
    def w_setup(self, tidreg, base):
        return [self.S(f"s_lshl_b32 s{S_TA}, s{tidreg}, 17"), self.S(f"s_add_u32 s{S_TA}, s{S_TA}, s{base}"),
                self.S(f"s_sub_u32 s{S_TB}, s{S_TA}, s{S_WCUR}"), self.S(f"s_mov_b32 s{S_WCUR}, s{S_TA}"),
                self.V(f"v_add_u32 v{V_WC[0]}, s{S_TB}, v{V_WC[0]}"), self.V(f"v_add_u32 v{V_WC[1]}, s{S_TB}, v{V_WC[1]}")]
    def x_setup(self, tidreg):
        return [self.S(f"s_lshl_b32 s{S_TE}, s{tidreg}, 7"), self.S(f"s_sub_u32 s{S_DX}, s{S_TE}, s{S_XCUR}"), self.S(f"s_mov_b32 s{S_XCUR}, s{S_TE}"),
                self.V(f"v_add_u32 v{V_XC[0]}, s{S_DX}, v{V_XC[0]}"), self.V(f"v_add_u32 v{V_XC[1]}, s{S_DX}, v{V_XC[1]}")]
    def flag_items(self):
        return [self.V(f"v_mov_b32 v{V_FLAG}, s{S_FV}"),
                self.VM(f"buffer_store_dword v{V_FLAG}, off, {sr(S_WS,4)}, s{S_FOWN} sc1", "F"),
                self.S(f"s_add_u32 s{S_FV}, s{S_FV}, 1")]
    def poll_check(self, sc, name, tag, lo):
        sl, bk = f"SLOW_{name}", f"BACK_{name}"
        def f0():
            assert tag not in self.vq
            self.e(f"v_readfirstlane_b32 s{S_TC}, v{V_POLL}")
        c = sc.chain([self.S(f"s_and_b32 s{S_TD}, s{S_Q+1}, 3"), self.S(f"s_add_u32 s{S_TD}, s{S_TD}, s{S_NEED}"),
                      ("V", f0), self.S(f"s_sub_u32 s{S_TC}, s{S_TC}, s{S_TD}")], lo)
        def br():
            self.e(f"s_cbranch_scc1 {sl}"); self.label(bk)
        gbr = sc.branch(self.E(f"s_cmp_gt_u32 s{S_TC}, 7"), br, c[-1])
        self.ool[sl] = [f"{sl}:", f"s_mov_b32 s{S_CNT}, 0x100000", f"LP_{name}:",
                        f"buffer_load_dword v{V_POLL}, off, {sr(S_WS,4)}, s{S_PA} sc1", "s_waitcnt vmcnt(0)",
                        f"v_readfirstlane_b32 s{S_TC}, v{V_POLL}", f"s_sub_u32 s{S_CNT}, s{S_CNT}, 1", f"s_cbranch_scc1 {bk}",
                        f"s_sub_u32 s{S_TC}, s{S_TC}, s{S_TD}", f"s_cmp_gt_u32 s{S_TC}, 7", f"s_cbranch_scc0 {bk}",
                        "s_sleep 1", f"s_branch LP_{name}"]
        return gbr
    def stamp(self, which):
        if self.opt.diagrt:
            if which == 1:
                self.e(f"s_memtime s[{S_ST}:{S_ST+1}]"); self.e(f"s_memrealtime s[{S_ST+2}:{S_ST+3}]")
            return
        self.e(f"s_memtime s[{S_ST+2*which}:{S_ST+2*which+1}]")
    def stamp_items(self):
        def f():
            self.e(f"s_lshl_b64 exec, 1, s{S_SI}"); self.e(f"v_mov_b32 v{V_ST[0]}, s{S_ST}"); self.e(f"v_mov_b32 v{V_ST[1]}, s{S_ST+2}")
            self.e("s_mov_b64 exec, -1"); self.e(f"s_add_u32 s{S_SI}, s{S_SI}, 1")
        return [("G", f)]
    def epi_valu(self, p, mt, tb, at, ob):
        ops = []
        for h in range(2):
            pf, r = ACC(mt, 2 * p + h)
            if pf == "a":
                for i in range(4): ops.append(f"v_accvgpr_read_b32 v{at+i}, a{r+i}")
                r = at
            for i in range(4): ops.append(f"v_mul_f32 v{tb+4*h+i}, v{tb+4*h+i}, v{r+i}")
        for d in range(4): ops.append(f"v_cvt_pk_bf16_f32 v{ob+d}, v{tb+2*d}, v{tb+2*d+1}")
        return ops
    def braw(self, nt): return V_T + 2 * nt if nt < 6 else V_T + 20 + 2 * (nt - 6)
    def bias_sched(self, sc, nt, g, busy):
        r = self.braw(nt); f0, f2, a0 = V_T + 16, V_T + 17, V_T + 18
        f = [f0, r, f2, r + 1]
        ops = [f"v_lshlrev_b32 v{f0}, 16, v{r}", f"v_and_b32 v{r}, s{S_MASK}, v{r}", f"v_lshlrev_b32 v{f2}, 16, v{r+1}", f"v_and_b32 v{r+1}, s{S_MASK}, v{r+1}"]
        g = sc.chain([self.V(x) for x in ops], g)[-1]
        ops = []
        for mt in range(8):
            pf, a = ACC(mt, nt)
            if pf == "v":
                ops += [f"v_add_f32 v{a+i}, v{a+i}, v{f[i]}" for i in range(4)]
            else:
                for i in (0, 2):
                    ops += [f"v_accvgpr_read_b32 v{a0}, a{a+i}", f"v_accvgpr_read_b32 v{a0+1}, a{a+i+1}",
                            f"v_add_f32 v{a0}, v{a0}, v{f[i]}", f"v_add_f32 v{a0+1}, v{a0+1}, v{f[i+1]}",
                            f"v_accvgpr_write_b32 a{a+i}, v{a0}", f"v_accvgpr_write_b32 a{a+i+1}, v{a0+1}"]
        b0, b1 = busy
        est = g + len(ops) // 2 + len(ops) // 3 + 4
        if est < b0 - 2: lo, hi = g, b0 - 2
        else: lo, hi = max(g, b1 + 6), sc.n - 1
        return sc.chain([self.V(x) for x in ops], lo, hi)[-1]
    def bias0_ops(self, nt):
        r = V_T + 2 * nt
        d = ACC(7, nt)[1]
        return [f"v_lshlrev_b32 v{d}, 16, v{r}", f"v_and_b32 v{d+1}, s{S_MASK}, v{r}",
                f"v_lshlrev_b32 v{d+2}, 16, v{r+1}", f"v_and_b32 v{d+3}, s{S_MASK}, v{r+1}"] + \
               [f"v_add_f32 v{d+i}, 1.0, v{d+i}" for i in range(4)]

    def prologue(self):
        e = self.e; o = self.opt
        e("s_cmp_lt_u32 s2, 256"); e("s_cbranch_scc1 L_go"); e("s_endpgm")
        self.label("L_go")
        e("s_load_dwordx4 s[8:11], s[0:1], 0")
        e("s_load_dwordx4 s[20:23], s[0:1], 16")
        e("s_load_dwordx2 s[16:17], s[0:1], 40")
        if o.diag:
            e(f"s_memrealtime s[{S_RT}:{S_RT+1}]"); e(f"s_memtime s[{S_D0}:{S_D0+1}]")
        e(f"s_getpc_b64 s[{S_PC}:{S_PC+1}]")
        self.label("L_pc")
        e("s_lshr_b32 s3, s2, 3")
        e("v_lshrrev_b32 v16, 4, v0")
        e("v_lshl_add_u32 v16, s3, 4, v16")
        e("v_lshlrev_b32 v16, 7, v16")
        e(f"v_min_u32 v31, L_codeend-L_pc-4, v16")
        self.vm(f"global_load_dword v{V_POLL}, v31, s[{S_PC}:{S_PC+1}]", "PF")
        T = 40
        lane, m, q, r4, c4, q1, tx, tw, t0, t1, t2 = [f"v{T+i}" for i in range(11)]
        e(f"v_lshrrev_b32 {t0}, 6, v0")
        e(f"v_and_b32 {lane}, 63, v0")
        e(f"v_readfirstlane_b32 s{S_WAVE}, {t0}")
        e(f"s_and_b32 s{S_J}, s3, 3")
        e(f"s_and_b32 s{S_RB}, s2, 7"); e(f"s_lshl_b32 s{S_RB}, s{S_RB}, 3")
        e(f"s_lshr_b32 s{S_TC}, s2, 5")
        e(f"s_add_u32 s{S_RB}, s{S_RB}, s{S_TC}")
        e(f"v_and_b32 {m}, 15, {lane}"); e(f"v_lshrrev_b32 {q}, 4, {lane}")
        e(f"v_bfe_u32 {r4}, {lane}, 2, 2"); e(f"v_and_b32 {c4}, 3, {lane}")
        e(f"s_lshl_b32 s{S_TD}, s{S_RB}, 19")
        e(f"s_lshl_b32 s{S_TE}, s{S_J}, 17"); e(f"s_add_u32 s{S_TE}, s{S_TE}, s{S_TD}")
        e(f"s_lshl_b32 s{S_TF}, s{S_WAVE}, 15"); e(f"s_add_u32 s{S_TE}, s{S_TE}, s{S_TF}")
        e(f"v_and_b32 {q1}, 1, {q}")
        if o.tsplit:
            e(f"v_lshrrev_b32 {tx}, 2, {lane}"); e(f"v_lshlrev_b32 {tx}, 11, {tx}")
        else:
            e(f"v_lshrrev_b32 {tx}, 5, {lane}"); e(f"v_lshlrev_b32 {tx}, 7, {tx}"); e(f"v_bfe_u32 {t1}, {lane}, 1, 4"); e(f"v_lshl_add_u32 {tx}, {t1}, 11, {tx}")
        e(f"s_lshl_b32 s{S_CNT}, s{S_TC}, 15"); e(f"s_lshl_b32 s{S_TF}, s{S_WAVE}, 13"); e(f"s_add_u32 s{S_CNT}, s{S_CNT}, s{S_TF}")
        if o.tsplit: e(f"s_lshr_b32 s{S_CNT}, s{S_CNT}, 1")
        e(f"s_lshl_b32 s{S_BOFF}, s{S_J}, 9"); e(f"s_add_u32 s{S_CNT}, s{S_CNT}, s{S_BOFF}")
        e(f"v_lshlrev_b32 {tw}, 7, {r4}"); e(f"v_lshl_add_u32 {tw}, {q}, 11, {tw}")
        tw2 = tw
        if o.tsplit:
            tw2 = "v51"; e(f"v_and_b32 {tw2}, 0xfff, {tw}")
        e(f"s_mov_b32 s{S_X0+2}, {16384*1024*2}"); e(f"s_mov_b32 s{S_X0+3}, 0x20000")
        e(f"s_mov_b32 s{S_B+2}, {3*1024*2}"); e(f"s_mov_b32 s{S_B+3}, 0x20000")
        e(f"s_lshl_b32 s{S_EPOFF}, s{S_RB}, 7"); e(f"s_add_u32 s{S_EPOFF}, s{S_EPOFF}, {hex(EP_OFF)}")
        e("s_waitcnt lgkmcnt(0)")
        if o.diag: e(f"s_memtime s[{S_ST}:{S_ST+1}]")
        e(f"s_mov_b32 s{S_X0}, s8"); e(f"s_mov_b32 s{S_X0+1}, s9")
        def stouch():
            e(f"s_add_u32 s{S_O2}, s{S_X0}, s{S_TE}"); e(f"s_addc_u32 s{S_O3}, s{S_X0+1}, 0")
            for tl in range(o.stx):
                for r in range(16): e(f"s_load_dword s{S_DX}, s[{S_O2}:{S_O3}], {r*2048 + tl*128}")
        if o.stx and o.stpos == 0: stouch()
        if o.touch & 1: self.vm(f"buffer_load_dword v{V_POLL}, {tx}, {sr(S_X0,4)}, s{S_TE} offen {o.x0f}", "PF")
        e(f"s_mov_b32 s{S_W}, s10"); e(f"s_mov_b32 s{S_W+1}, s11"); e(f"s_mov_b32 s{S_W+2}, {3*1024*1024*2}"); e(f"s_mov_b32 s{S_W+3}, 0x20000")
        if o.touch & 2: self.vm(f"buffer_load_dword v{V_POLL}, {tw2}, {sr(S_W,4)}, s{S_CNT} offen", "PF")
        e(f"s_mov_b32 s{S_B}, s20"); e(f"s_mov_b32 s{S_B+1}, s21")
        self.vm(f"buffer_load_dword v{V_POLL}, {tw}, {sr(S_B,4)}, s{S_BOFF} offen", "PF")
        e(f"s_load_dword s{S_EP}, s[{S_WS}:{S_WS+1}], s{S_EPOFF}")
        def w0warm():
            e(f"s_lshl_b32 s{S_PA}, s2, 13"); e(f"s_lshl_b32 s{S_FV}, s{S_WAVE}, 11"); e(f"s_add_u32 s{S_PA}, s{S_PA}, s{S_FV}")
            e(f"v_lshlrev_b32 {t0}, 7, {m}")
            self.vm(f"buffer_load_dword v{V_POLL}, {t0}, {sr(S_W,4)}, s{S_PA} offen", "PF")
        if o.w0warm == 1: w0warm()
        def run(items):
            for k, f in items:
                f()
                if k == "S": e("s_nop 0")
        for r, sl in ((S_X, 0), (S_X + 1, 2), (S_X + 2, 4), (S_WR, 1), (S_WR + 1, 3)):
            e(f"s_add_u32 s{r}, s{S_TF}, {hex(sl*SLOT)}"); self.slot[r] = sl
        e(f"v_lshrrev_b32 {t1}, 3, {lane}"); e(f"v_and_b32 {t2}, 7, {lane}")
        e(f"v_lshrrev_b32 {t0}, 1, {t1}"); e(f"v_xor_b32 {t0}, {t2}, {t0}"); e(f"v_lshlrev_b32 {t0}, 4, {t0}"); e(f"v_lshl_add_u32 {t0}, {t1}, 11, {t0}")
        e(f"s_lshl_b32 s{S_PA}, s{S_WAVE}, 17"); e(f"s_add_u32 s{S_PA}, s{S_PA}, s{S_TD}")
        e(f"v_add_u32 v{V_XC[0]}, s{S_PA}, {t0}")
        e(f"v_xor_b32 v{V_XC[1]}, 64, v{V_XC[0]}"); e(f"v_add_u32 v{V_XC[1]}, {16384-1024}, v{V_XC[1]}")
        for k in range(1, 4): e(f"s_mov_b32 s{S_XT+k}, {k*32768 - (k&1)*2048}")
        xit = self.dma_items(("X", 0, 0), S_X, "X0")
        run(xit[:o.early])
        if o.stx and o.stpos == 1: stouch()
        e(f"v_lshlrev_b32 v{V_L16}, 4, {lane}")
        e(f"s_lshr_b32 s{S_TA}, s{S_WAVE}, 1"); e(f"s_and_b32 s{S_TB}, s{S_WAVE}, 1")
        for k in range(1, 4): e(f"s_mov_b32 s{S_WT+k}, {(16*(k&1) + 4*(k>>1))*2048 - (k&1)*2048}")
        e(f"s_mov_b32 s{S_OUT}, s22"); e(f"s_mov_b32 s{S_OUT+1}, s23"); e(f"s_mov_b32 s{S_OUT+2}, {16384*1024*2}"); e(f"s_mov_b32 s{S_OUT+3}, 0x20000")
        e(f"s_mov_b32 s{S_WS+2}, 0x10000000"); e(f"s_mov_b32 s{S_WS+3}, 0x20000")
        e(f"s_lshl_b32 s{S_FB}, s{S_RB}, 9"); e(f"s_add_u32 s{S_FB}, s{S_FB}, {hex(FL_OFF)}")
        e(f"s_lshl_b32 s{S_WC64}, s{S_TB}, 6"); e(f"s_add_u32 s{S_PA}, s{S_BOFF}, s{S_WC64}")
        e(f"v_lshlrev_b32 {t0}, 3, {q}"); e(f"v_add_u32 v{V_B}, s{S_PA}, {t0}")
        e(f"s_lshl_b32 s{S_PA}, s{S_TA}, 8"); e(f"s_add_u32 s{S_PA}, s{S_PA}, s{S_BOFF}")
        e(f"s_lshl_b32 s{S_FV}, s{S_TB}, 16"); e(f"s_add_u32 s{S_PA}, s{S_PA}, s{S_FV}")
        if not o.wr128:
            e(f"v_lshlrev_b32 {t0}, 4, {c4}"); e(f"v_lshl_add_u32 {t0}, {q}, 6, {t0}"); e(f"v_lshl_add_u32 {t0}, {r4}, 11, {t0}")
        else:
            e(f"v_lshlrev_b32 {t0}, 2, {q1}"); e(f"v_xor_b32 {t0}, {t2}, {t0}"); e(f"v_lshlrev_b32 {t0}, 4, {t0}")
            e(f"v_lshrrev_b32 {tx}, 5, {lane}"); e(f"v_lshl_add_u32 {t0}, {tx}, 7, {t0}")
            e(f"v_and_b32 {tx}, 3, {t1}"); e(f"v_lshl_add_u32 {t0}, {tx}, 11, {t0}")
        e(f"v_add_u32 v{V_WC[0]}, s{S_PA}, {t0}")
        e(f"v_xor_b32 v{V_WC[1]}, 32, v{V_WC[0]}"); e(f"v_add_u32 v{V_WC[1]}, {16384-1024}, v{V_WC[1]}")
        e(f"v_lshrrev_b32 {t0}, 1, {m}"); e(f"v_xor_b32 {t0}, {q}, {t0}"); e(f"v_lshlrev_b32 {t0}, 4, {t0}"); e(f"v_lshl_add_u32 {t0}, {m}, 7, {t0}")
        e(f"s_lshl_b32 s{S_WR14}, s{S_TA}, 14")
        e(f"v_add_u32 v{V_XA[0]}, s{S_WR14}, {t0}"); e(f"v_xor_b32 v{V_XA[1]}, 64, v{V_XA[0]}")
        self.xa = 0
        if not o.wr128:
            e(f"v_lshlrev_b32 {t0}, 10, {q}"); e(f"v_lshl_add_u32 {t0}, {r4}, 6, {t0}"); e(f"v_lshl_add_u32 {t0}, {q1}, 5, {t0}"); e(f"v_lshl_add_u32 {t0}, {c4}, 3, {t0}")
            e(f"s_lshl_b32 s{S_PA}, s{S_TB}, 8"); e(f"s_add_u32 s{S_PA}, s{S_PA}, {SLOT}")
            e(f"v_add_u32 v{V_WA[0]}, s{S_PA}, {t0}")
        else:
            e(f"v_and_b32 {t0}, 2, {r4}"); e(f"v_or_b32 {t0}, {t0}, {q1}"); e(f"v_lshlrev_b32 {t0}, 5, {t0}"); e(f"v_xor_b32 {t0}, s{S_WC64}, {t0}")
            e(f"v_lshl_add_u32 {t0}, {q}, 10, {t0}"); e(f"v_lshl_add_u32 {t0}, {r4}, 7, {t0}"); e(f"v_lshl_add_u32 {t0}, {c4}, 3, {t0}")
            e(f"v_add_u32 v{V_WA[0]}, {SLOT}, {t0}")
        e(f"v_xor_b32 v{V_WA[1]}, 32, v{V_WA[0]}")
        self.wa = [1, 1]
        e(f"v_and_b32 {t1}, 1, {m}"); e(f"v_lshlrev_b32 {t1}, 4, {t1}"); e(f"v_mov_b32 {t2}, 0x3f80"); e(f"v_lshlrev_b32 {t1}, {t1}, {t2}")
        e(f"v_lshlrev_b32 {t2}, 3, {q}"); e(f"v_sub_u32 {t2}, {m}, {t2}"); e(f"v_ashrrev_i32 {t2}, 1, {t2}")
        misc = [f"s_mov_b32 s{S_M4}, 0x20000", f"s_mov_b32 s{S_M4+1}, 0x28000", f"s_mov_b32 s{S_M4+2}, 0x30000", f"s_mov_b32 s{S_MASK}, 0xffff0000",
                f"s_mov_b32 s{S_WL}, 0", f"s_mov_b32 s{S_Q}, 1", f"s_mov_b32 s{S_M7}, 0x38000",
                f"s_lshl_b32 s{S_FOWN}, s{S_J}, 7", f"s_add_u32 s{S_FOWN}, s{S_FOWN}, s{S_FB}", f"s_mul_i32 s{S_OADJ}, s{S_TB}, 7168",
                f"s_mov_b32 s{S_ADJ}, 8192", f"s_mov_b32 s{S_LAYER}, 0", f"s_mov_b32 s{S_CAPJ}, s{S_J}", f"s_mov_b32 s{S_LOOP}, 1",
                f"s_mov_b32 s{S_WCUR}, 0", f"s_mov_b32 s{S_LEND}, 15"]
        for h in range(2):
            for d in range(4):
                e(f"v_cmp_eq_u32 vcc, {d - 8*h}, {t2}"); e(misc.pop(0)); e(misc.pop(0))
                e(f"v_cndmask_b32 {t0}, 0, {t1}, vcc"); e(f"v_accvgpr_write_b32 a{SEL(h)+d}, {t0}")
        for d in range(3):
            if o.asc:
                e(f"s_cmp_ge_u32 {d}, s{S_J}"); e(f"s_cselect_b32 s{S_FQ+d}, {4*(d+1)}, {4*d}")
            else:
                e(f"s_add_u32 s{S_FQ+d}, s{S_J}, {d+1}"); e(f"s_and_b32 s{S_FQ+d}, s{S_FQ+d}, 3"); e(f"s_lshl_b32 s{S_FQ+d}, s{S_FQ+d}, 2")
        e(f"s_lshl_b32 s{S_PA}, s{S_WC64}, 11"); e(f"s_lshl_b32 s{S_FV}, s{S_WC64}, 8"); e(f"s_sub_u32 s{S_PA}, s{S_PA}, s{S_FV}")
        e(f"s_lshl_b32 s{S_FV}, s{S_J}, 9"); e(f"s_sub_u32 s{S_PA}, s{S_FV}, s{S_PA}")
        e(f"v_xor_b32 v{V_CPG}, s{S_WC64}, v{V_XC[0]}"); e(f"v_add_u32 v{V_CPG}, s{S_PA}, v{V_CPG}")
        e(f"s_mov_b32 s{S_XCUR}, {15*128}")
        e(f"v_lshrrev_b32 v{V_XT}, 2, {lane}"); e(f"v_lshlrev_b32 v{V_XT}, 11, v{V_XT}"); e(f"s_add_u32 s{S_XTO}, s{S_TE}, {3*128}")
        e(f"s_lshr_b32 s{S_XB}, s2, 5"); e(f"s_lshl_b32 s{S_XB}, s{S_XB}, 2"); e(f"s_add_u32 s{S_XB}, s{S_XB}, s{S_WAVE}"); e(f"s_lshl_b32 s{S_XB}, s{S_XB}, 12")
        e(f"s_add_u32 s{S_XB}, s{S_XB}, s{S_FV}")
        e(f"s_lshl_b32 s{S_PA}, s2, 14"); e(f"s_lshl_b32 s{S_FV}, s{S_WAVE}, 12"); e(f"s_add_u32 s{S_PA}, s{S_PA}, s{S_FV}")
        e(f"s_add_u32 s{S_PA}, s{S_PA}, 0x200000")
        e(f"v_min_u32 v{V_CPL}, 2, {q}"); e(f"v_lshlrev_b32 v{V_CPL}, 7, v{V_CPL}")
        e(f"s_mov_b32 s{S_BOFF}, 2048")
        if o.diag:
            e(f"v_mov_b32 v{V_ST[0]}, 0"); e(f"v_mov_b32 v{V_ST[1]}, 0")
        if o.hops:
            e("s_mov_b64 exec, 0")
            for w in range(1, 4):
                e(f"s_cmp_eq_u32 s{S_WAVE}, {w}"); e(f"s_cbranch_scc1 HOP{w}")
            e("s_branch HOP0")
            self.label("HOPEND")
            e("s_mov_b64 exec, -1")
        def touch1():
            e(f"s_add_u32 s{S_CNT}, s{S_CNT}, 0x20000")
            self.vm(f"buffer_load_dword v{V_POLL}, {tw2}, {sr(S_W,4)}, s{S_CNT} offen", "PF")
            self.vm(f"buffer_load_dword v{V_POLL}, {tx}, {sr(S_X0,4)}, s{S_TE} offen offset:128 {o.x0f}", "PF")
        run(xit[o.early:])
        if o.tsplit == 2: touch1()
        def bl(nt): self.vm(f"buffer_load_dwordx2 {vr(V_T+2*nt if nt < 7 else V_T+22,2)}, v{V_B}, {sr(S_B,4)}, 0 offen offset:{(nt>>1)*128 + (nt&1)*32}", ("B", 0, nt))
        bl(0); bl(1)
        run(self.dma_items(("W", 0, 0), S_WR, "W"))
        for nt in range(2, 8): bl(nt)
        if o.tsplit == 1: touch1()
        if o.prex:
            for i in range(2): e(f"v_add_u32 v{V_XC[i]}, 128, v{V_XC[i]}")
            self.x1 = self.dma_items(("X", 0, 1), S_X + 1, "X0")
            run(self.x1[:o.prex]); self.x1 = self.x1[o.prex:]
        if o.w0warm == 2:
            e(f"s_mov_b32 s{S_TA}, s{S_PA}"); w0warm(); e(f"s_mov_b32 s{S_PA}, s{S_TA}")
        if o.diag: e(f"s_memtime s[{S_ST+2}:{S_ST+3}]")
        self.wait(vtags=[("B", 0, 1)])
        for x in self.bias0_ops(0) + self.bias0_ops(1): e(x)
        if o.diag:
            e("s_waitcnt lgkmcnt(0)")
            e(f"v_writelane_b32 v{V_ST[0]}, s{S_D0}, 63")
            e(f"v_writelane_b32 v{V_ST[0]}, s{S_ST}, 60"); e(f"v_writelane_b32 v{V_ST[1]}, s{S_ST+2}, 60")
            e(f"s_mov_b32 s{S_SI}, 0")

    def seg_open(self, name, vt, vforce, prev_nt, nts, X, W, half=None, reload=True, cinit=False, maxS=3, barrier=True, nextnt=None, entry=False):
        o = self.opt
        dg = o.diag and not (o.diagc and name in ("G0", "G1"))
        if dg: self.stamps.append(name)
        if self.pending: self.mfma(self.pending)
        if dg: self.stamp(0)
        if barrier and entry:
            k = len(self.out)
            self.wait(vtags=vt, lall=True)
            pre = self.out[:] + [f"s_branch LB_{name}"]
            assert self.entry.setdefault(name, pre) == pre
            self.out[k:] = [f"s_waitcnt vmcnt({vforce}) lgkmcnt(0)", f"LB_{name}:", "s_barrier"]
        elif barrier:
            self.wait(vtags=vt, lall=True, vforce=vforce)
            if name in self.entry: self.label(f"LB_{name}")
            self.e("s_barrier")
        else:
            self.wait(ltags=[("WF", prev_nt & 1, s, u) for s in range(2) for u in range(2)])
        if dg: self.stamp(1)
        base = ([] if prev_nt is None else blk(prev_nt)) + sum((blk(nt, cinit) for nt in nts), [])
        off = 0 if prev_nt is None else 16
        self.pending = base[-1] if nts else None
        mf = base[:-1] if nts else base
        sc = Sched(len(mf), maxS)
        sc.mf = mf; sc.off = off; sc.dg = dg
        su = [(s, u) for s in range(2) for u in range(2)]
        if prev_nt is None:
            for s, u in su: self.rd_wf(nts[0], s, u, W, half)()
            for mt in range(8):
                for s in range(2): self.rd_xf(mt, s, X)()
            self.wait(ltags=[("XF", 1, 0), ("XF", 1, 1)])
        elif nts:
            if reload:
                for i in range(16):
                    mt, _, s, _ = base[i]
                    sc.put(i, "D", self.rd_xf(mt, s, X))
            for k, (s, u) in enumerate(su): sc.put(2 * k, "D", self.rd_wf(nts[0], s, u, W, half))
            sc.put(15, "S", lambda: self.wait(ltags=[("XF", 1, 0), ("XF", 1, 1)] + [("WF", nts[0] & 1, s, u) for s, u in su]))
        if reload and nts:
            for mt in (2, 4, 6):
                sc.put(off + 2 * mt - 1, "S", lambda mt=mt: self.wait(ltags=[("XF", mt + 1, 0), ("XF", mt + 1, 1)]))
        sc.blkwait = []
        seq = list(nts[1:]) + [nextnt]
        for b, nt in enumerate(seq):
            if b < len(seq) - 1:
                g = off + 16 * (b + 1) - 1
                sc.put(g, "S", lambda nt=nt: self.wait(ltags=[("WF", nt & 1, s, u) for s, u in su] + [("C",)]))
                sc.blkwait.append(g)
        if nts:
            for b, nt in enumerate(seq):
                for k, (s, u) in enumerate(su): sc.place("D", self.rd_wf(nt, s, u, W, half), off + 16 * b + 2 * k)
        return sc
    def seg_emit(self, sc, gbase=None, check=None, stamp_at=50):
        if sc.dg: sc.chain(self.stamp_items(), stamp_at)
        for g, m in enumerate(sc.mf):
            if check: check(g, m)
            self.mfma(m)
            self.merge_gap(sc, g, None if gbase is None else gbase + g)
    def xa_items(self, new, old, nx):
        def f0():
            self.e(f"v_add_u32 v{V_XA[0]}, s{S_DX}, v{V_XA[0]}"); self.xa = nx["x"]
        return [self.SU(f"s_sub_u32 s{S_DX}, s{new}, s{old}", lambda: nx.update(x=self.slot[new])),
                ("V", f0), self.V(f"v_add_u32 v{V_XA[1]}, s{S_DX}, v{V_XA[1]}")]
    def wa_sched(self, sc, new, old, g_s, g_v):
        nx = {}
        def wa(h):
            def f():
                self.e(f"v_add_u32 v{V_WA[h]}, s{S_DW}, v{V_WA[h]}"); self.wa[h] = nx["w"]
            return f
        k, f = self.SU(f"s_sub_u32 s{S_DW}, s{new}, s{old}", lambda: nx.update(w=self.slot[new]))
        sc.place(k, f, g_s, g_v - 1)
        sc.chain([("V", wa(0)), ("V", wa(1))], g_v)

    def body(self, kind, layer, t):
        o = self.opt
        X = ("X", layer, t); W = ("W", layer, t)
        first = kind == "E0"
        vt = [X, W, ("P", layer, t + 2)]
        if kind == "S1": vt.append(("B", layer, 1))
        if kind == "S2": vt.append(("B", layer, 0))
        vforce = {"G0": min(9 + (1 if o.xtouch else 0) + (1 if o.tpf & 2 else 0), 10 + (1 if o.xtouch else 0)), "G1": 8, "T14": 8}.get(kind)
        sc = self.seg_open(kind, vt, vforce, None if first else 7, list(range(7)), X, W, cinit=first,
                           maxS=1 if kind in ("T15", "H0") else 3, nextnt=7, entry=(kind == "G1" and t == 4 and o.entry))
        n, off = sc.n, sc.off
        if kind in ("G0", "G1"):
            sc.put(n - 1, "G", lambda: None)
            sc.put(n - 2, "S", self.E(f"s_cmp_lt_u32 s{S_LOOP}, " + ("14" if kind == "G0" else f"s{S_LEND}"))); sc.closedS.add(n - 2)
        self.gcap = 0
        if kind in ("E0", "G0", "T14", "T15"):
            gB = off + 94 if kind != "T15" else off + 1
            def br():
                self.e(f"s_cbranch_scc1 CAP_{kind}"); self.e("@CAP")
            sc.put(gB, "G", br)
            sc.put(gB - 1, "S", self.E(f"s_cmp_eq_u32 s{S_TC}, s{S_CAPJ}" if kind == "G0" else f"s_cmp_eq_u32 s{S_CAPJ}, {t >> 2}")); sc.closedS.add(gB - 1)
            if kind == "G0": sc.put(gB - 2, "S", self.E(f"s_lshr_b32 s{S_TC}, s{S_LOOP}, 2"))
            for k in range(8): sc.put(gB + 1 + k, "D", self.E(f"@RD{k}"))
            sc.put(gB + 9, "G", self.E("@RET"))
            self.gcap = sc.place("V", self.E(f"v_xor_b32 v{V_CAP}, s{S_WC64}, v{V_XA[0]}"), 9, off if kind == "T15" else None)
        pace = 4 if first else o.pace
        gw = off + 1
        lastG = gw
        if kind == "H0":
            def xb():
                assert not any(x and x[0] == "XF" for x in self.lq)
                self.e("s_barrier")
            gb = sc.place("S", xb, off + 12)
            gw = gb + 1
        if kind == "G1":
            sc.put(0, "S", self.E(f"s_cmp_eq_u32 s{S_LOOP}, s{S_KEY}")); sc.closedS.add(0)
            sc.put(1, "S", self.E(f"s_cselect_b32 s{S_TG}, s{S_Q+1}, s{S_Q}")); sc.put(1, "S", self.E(f"s_cselect_b32 s{S_TH}, s{S_WLM}, s{S_WL}"))
            c = sc.chain(self.w_setup(S_TG, S_TH), 2)
        elif kind != "T15":
            c = sc.chain(self.w_setup(S_Q, S_WL), max(0, gw - 14))
        if first and o.prex and self.x1:
            gw = self.place_dma(sc, self.x1, 1, pace) + 4
        if kind != "T15":
            lastG = self.place_dma(sc, self.dma_items(("W", layer, t + 1), S_WR + 1, "W"), max(gw, c[-1] + 1), pace if kind != "H0" else o.paceh)
        gx = lastG + int(pace)
        if kind in ("S1", "S2", "S3", "G1"):
            if kind != "S1":
                gbr = self.poll_check(sc, kind, ("P", layer, t + 2), off + 8)
                assert gbr < lastG - 1
            c = sc.chain([self.S(f"s_lshr_b32 s{S_PA}, s{S_Q+2}, 2"), self.S(f"s_lshl_b32 s{S_PA}, s{S_PA}, 7"),
                          self.S(f"s_add_u32 s{S_PA}, s{S_PA}, s{S_FB}")], max(gbr + 1, o.pollpos) if (o.pollpos and kind == "G1") else lastG - 1)
            k, f = self.VM(f"buffer_load_dword v{V_POLL}, off, {sr(S_WS,4)}, s{S_PA} sc1", ("P", layer, t + 3))
            if o.pollpos and kind == "G1": gp = sc.place(k, f, c[-1] + 1)
            else:
                gp = sc.place(k, f, max(c[-1], lastG) + 2)
                gx = max(gx, gp + 2); lastG = gp
        if o.wpf and kind in ("E0", "S2"):
            sc.chain([self.V(f"v_and_b32 v{V_WT}, 0x180, v{V_L16}"), self.V(f"v_lshrrev_b32 v{V_FLAG}, 9, v{V_L16}"),
                      self.V(f"v_lshl_add_u32 v{V_WT}, v{V_FLAG}, 11, v{V_WT}")], 9, 40)
        if (o.wpf & 1 and kind == "G0") or (o.wpf & 2 and kind in ("S2", "S3", "G1")):
            it = [self.S(f"s_add_u32 s{S_TG}, s{S_Q}, {o.wpd}")] if kind == "G0" else []
            it += [self.S(f"s_lshl_b32 s{S_TG}, s{S_TG if kind == 'G0' else S_Q+2}, 17"), self.S(f"s_add_u32 s{S_TG}, s{S_TG}, s{S_WL}"), self.S(f"s_add_u32 s{S_TG}, s{S_TG}, s{S_XB}")]
            c = sc.chain(it, off + 26)
            k, f = self.VM(f"buffer_load_dword v{V_POLL if kind == 'G0' else V_CAP}, v{V_WT}, {sr(S_W,4)}, s{S_TG} offen", "PW")
            lastG = sc.place(k, f, max(c[-1], lastG) + 2); gx = max(gx, lastG + 2)
        xadv = [self.V(f"v_add_u32 v{V_XC[i]}, 128, v{V_XC[i]}") for i in range(2)]
        if first:
            if not o.prex:
                sc.chain(xadv, 4)
                lastG = self.place_dma(sc, self.dma_items(("X", 0, 1), S_X + 1, "X0"), gx, pace)
            else: pace = 6
            c = sc.chain(xadv, lastG + 1)
            lastG = self.place_dma(sc, self.dma_items(("X", 0, 2), S_X + 2, "X0"), max(lastG + pace, c[-1] + 1), pace)
        if kind == "G0":
            ww = [self.VM(f"buffer_load_dword v{V_POLL}, v{V_CPL}, {sr(S_W,4)}, s{S_PA} offen", "PW"), self.S(f"s_add_u32 s{S_PA}, s{S_PA}, {384 if o.wwarm else 0}")]
            if not o.xtouch: sc.chain(ww, lastG + 3)
            sc.chain(xadv, off + 20)
            lastG = self.place_dma(sc, self.dma_items(("X", layer, t + 2), S_X + 2, "X0"), gx, o.pacex)
            if o.xtouch: lastG = sc.chain(ww, lastG + 3)[0]
        if kind in ("E0", "G0") and o.xtouch:
            sc.chain([self.VM(f"buffer_load_dword v{V_POLL}, v{V_XT}, {sr(S_X0,4)}, s{S_XTO} offen nt", "PW"),
                      self.S(f"s_add_u32 s{S_XTO}, s{S_XTO}, 128")], lastG + 3)
        if kind == "G0" and o.tpf & 2:
            sc.chain([self.VM(f"global_load_dword v{V_POLL}, v31, s[{S_PC}:{S_PC+1}]", "PW")], lastG + 6)
        if kind == "S1" and o.tpf & 1:
            sc.chain([self.S(f"s_lshr_b32 s{S_TE}, s2, 3"), self.S(f"s_lshl_b32 s{S_TE}, s{S_TE}, 9"), self.S(f"s_lshl_b32 s{S_TF}, s{S_WAVE}, 7"),
                      self.S(f"s_add_u32 s{S_TE}, s{S_TE}, s{S_TF}"), self.S(f"s_add_u32 s{S_TE}, s{S_TE}, L_TAIL-L_pc"),
                      self.S(f"s_min_u32 s{S_TE}, s{S_TE}, L_codeend-L_pc-4"), self.V(f"v_mov_b32 v{V_FLAG}, s{S_TE}"),
                      self.VM(f"global_load_dword v{V_FLAG}, v{V_FLAG}, s[{S_PC}:{S_PC+1}]", "PW")], off + 4, lastG - 1)
        if kind in ("S2", "S3", "G1"):
            c = sc.chain(self.x_setup(S_Q + 1), 8, off - 1)
            assert c[-1] < gx
            lastG = self.place_dma(sc, self.dma_items(("X", layer, t + 2), S_X + 2, "XE"), gx, o.pacex)
        if kind == "T14":
            it = [self.S(f"s_mov_b32 s{S_WT+k}, {k*16384 - (k&1)*2048}") for k in range(1, 4)]
            it += [self.S(f"s_add_u32 s{S_WL}, s{S_WL}, 0x200000"), self.S(f"s_lshl_b32 s{S_Q}, s{S_J}, 2"),
                   self.V(f"v_subrev_u32 v{V_WC[1]}, s{S_ADJ}, v{V_WC[1]}"), self.S(f"s_mov_b32 s{S_ADJ}, 0")]
            it += self.w_setup(S_Q, S_WL)
            c = sc.chain(it, lastG + 1)
            lastG = self.place_dma(sc, self.dma_items(("W", layer + 1, 0), S_X + 2, "W"), max(gx, c[-1] + 1), pace - 1)
        if kind == "T15" and o.wl2:
            t0, t1 = V_T + 16, V_T + 17
            it = [self.V(f"v_and_b32 v{t0}, 0x30, v{V_L16}"), self.V(f"v_lshlrev_b32 v{t0}, 3, v{t0}"),
                  self.V(f"v_bfe_u32 v{t1}, v{V_L16}, 6, 3"), self.V(f"v_lshl_add_u32 v{t1}, v{t1}, 11, v{t0}"), self.V(f"v_and_b32 v{t0}, 0xfff, v{t1}")]
            sc.chain(it, 1, 15)
            sc.maxS = 2
            it = [self.S(f"s_lshr_b32 s{S_TE}, s2, 5"), self.S(f"s_lshl_b32 s{S_TE}, s{S_TE}, 2"), self.S(f"s_add_u32 s{S_TE}, s{S_TE}, s{S_WAVE}"),
                  self.S(f"s_lshl_b32 s{S_TF}, s{S_J}, 9"), self.S(f"s_add_u32 s{S_TF}, s{S_TF}, s{S_WL}"),
                  self.S(f"s_lshl_b32 s{S_TG}, s{S_TE}, 14"), self.S(f"s_add_u32 s{S_TG}, s{S_TG}, s{S_TF}"), self.S(f"s_lshl_b32 s{S_TH}, s{S_J}, 19"),
                  self.S(f"s_add_u32 s{S_TG}, s{S_TG}, s{S_TH}"),
                  self.S(f"s_lshl_b32 s{S_TE}, s{S_TE}, 12"), self.S(f"s_add_u32 s{S_TE}, s{S_TE}, s{S_TF}"),
                  self.VM(f"buffer_load_dword v{V_POLL}, v{t1}, {sr(S_W,4)}, s{S_TG} offen", "PW")]
            for d in range(o.wl2):
                it += [self.S(f"s_lshl_b32 s{S_TH}, s{S_FQ+d}, 17"), self.S(f"s_add_u32 s{S_TH}, s{S_TH}, s{S_TE}"),
                       self.VM(f"buffer_load_dword v{V_POLL}, v{t0}, {sr(S_W,4)}, s{S_TH} offen", "PW")]
            sc.chain(it, 2, 30)
            sc.maxS = 1
        if kind == "T15":
            sc.put(0, "S", self.E(f"s_cmp_eq_u32 s{S_LAYER}, 0")); sc.closedS.add(0)
            if o.e1out: sc.put(1, "S", self.E(f"s_cselect_b64 s[{S_X0}:{S_X0+1}], s[{S_OUT}:{S_OUT+1}], s[{S_WS}:{S_WS+1}]"))
            else:
                sc.put(1, "S", self.E(f"s_cselect_b32 s{S_TE}, 0x2000000, 0"))
                def f64():
                    self.e(f"s_add_u32 s{S_X0}, s{S_WS}, s{S_TE}"); self.e(f"s_addc_u32 s{S_X0+1}, s{S_WS+1}, 0")
                sc.put(17, "G", f64)
            sc.chain([self.S(f"s_lshl_b32 s{S_TD}, s{S_LAYER}, 2"), self.S(f"s_add_u32 s{S_NEED}, s{S_NEED}, s{S_TD}"),
                      self.S(f"s_mov_b32 s{S_FV}, s{S_NEED}"),
                      self.S(f"s_lshr_b32 s{S_TD}, s{S_WAVE}, 1"), self.S(f"s_mul_i32 s{S_TD}, s{S_TD}, s{S_LAYER}"), self.S(f"s_mul_i32 s{S_KEY}, s{S_TD}, 12"),
                      self.S(f"s_sub_u32 s{S_WLM}, s{S_WL}, 256"), self.S(f"s_sub_u32 s{S_LEND}, s{S_LEND}, 1"),
                      self.S(f"s_add_u32 s{S_LAYER}, s{S_LAYER}, 1")], 2, 60)
        if first:
            if o.finit == 0:
                sc.chain([self.V(f"v_lshrrev_b32 v{V_FLAG}, 1, v{V_L16}"), self.V(f"v_and_b32 v{V_FLAG}, 0x180, v{V_FLAG}"),
                          self.VM(f"buffer_load_dword v{V_POLL}, v{V_FLAG}, {sr(S_WS,4)}, s{S_FB} offen sc1", "PW")], 68)
                sc.chain([self.S(f"s_add_u32 s{S_NEED}, s{S_EP}, 1"), self.S(f"s_mov_b32 s{S_FV}, s{S_EP}")] + self.flag_items(), 98)
            else:
                sc.chain([self.S(f"s_add_u32 s{S_NEED}, s{S_EP}, 1"), self.V(f"v_mov_b32 v{V_FLAG}, s{S_EP}"), self.V(f"v_bfe_u32 v{V_T+16}, v{V_L16}, 2, 7"),
                          self.VM(f"buffer_store_dword v{V_FLAG}, v{V_T+16}, {sr(S_WS,4)}, s{S_FOWN} offen sc1", "F")], 70)
        if kind == "H0":
            def fb():
                self.wait(vtags=[("S", layer, 0)]); self.e("s_barrier")
            g = sc.place("G", fb, off + o.flag0)
            sc.chain(self.flag_items(), g + 1)
        if kind == "S3":
            assert ("S", layer, 1) not in self.vq
            sc.chain(self.flag_items(), off + 3)
        if kind == "G1":
            assert ("S", layer, min(t - 2, 3)) not in self.vq
            if o.fdrop:
                def sel():
                    self.e(f"s_cmp_le_u32 s{S_LOOP}, 5"); self.e(f"s_cselect_b32 s{S_TF}, 0, 0x40000000")
                assert len(sc.g[11]) == 1
                sc.put(11, "S", sel); sc.put(11, "S", lambda: None)
                sc.place("V", self.E(f"v_mov_b32 v{V_T}, s{S_TF}"), 12, 15)
                sc.chain([self.V(f"v_mov_b32 v{V_FLAG}, s{S_FV}"), self.VM(f"buffer_store_dword v{V_FLAG}, v{V_T}, {sr(S_WS,4)}, s{S_FOWN} offen sc1", "F"),
                          self.S(f"s_add_u32 s{S_FV}, s{S_FV}, 1")], off + 3)
            else:
                sc.chain(self.flag_items() + [self.S(f"s_sub_u32 s{S_TF}, s{S_FV}, s{S_NEED}"), self.S(f"s_min_u32 s{S_TF}, s{S_TF}, 3"),
                                              self.S(f"s_add_u32 s{S_FV}, s{S_TF}, s{S_NEED}")], off + 3)
        CT = V_T + 12
        if kind in ("S1", "S2", "S3"):
            jobs = [mt for mt in range(8) if not self.is_direct(t, mt)]
            def chk(): assert self.lds_own[self.slot[S_X]] == ("X", layer, t)
            c = sc.chain([self.SU(f"s_sub_u32 s{S_E0}, s{S_X}, s{S_OADJ}", chk), self.V(f"v_add_u32 v{V_CPL}, s{S_E0}, v{V_L16}")], 8)
            gprev = c[-1]
            w0 = int(o.cpos[t - 1])
            assert w0 + len(jobs) <= 6
            for k, mt in enumerate(jobs):
                w = sc.blkwait[k + w0]
                sc.place("D", lambda mt=mt: self.lds(f"ds_read_b128 {vr(CT,4)}, v{V_CPL} offset:{mt*2048}", ("C",)), max(gprev + 1, w - 9), w - 1)
                def st(mt=mt):
                    assert ("C",) not in self.lq
                    so, im = mt_off(mt)
                    self.vm(f"buffer_store_dwordx4 {vr(CT,4)}, v{V_CPG}, {sr(S_X0,4)}, {so} offen offset:{im + t*128} sc1", ("S", layer, t))
                gprev = sc.place("G", st, w + 1)
        gcap = self.gcap
        gXA = max(gcap + 1, off + 2)
        nx = {}
        if kind == "T15":
            def f0():
                self.e(f"v_add_u32 v{V_XA[0]}, s{S_TA}, v{V_L16}"); self.xa = nx["x"]
            sc.chain([self.S(f"s_lshl_b32 s{S_TA}, s{S_WC64}, 7"),
                      self.SU(f"s_sub_u32 s{S_TA}, s{S_X+2}, s{S_TA}", lambda: nx.update(x=self.slot[S_X + 2])),
                      ("V", f0), self.V(f"v_add_u32 v{V_XA[1]}, 1024, v{V_XA[0]}"), self.S(f"s_mov_b32 s{S_CAPJ}, 77")], off + 11)
            wnext = S_X + 1
        else:
            sc.chain(self.xa_items(S_X + 1, S_X, nx), gXA)
            wnext = S_WR + 1
        self.wa_sched(sc, wnext, S_WR, gXA, off + 16 * 6 + 8)
        def bload(nt):
            return lambda: self.vm(f"buffer_load_dwordx2 {vr(self.braw(nt),2)}, v{V_B}, {sr(S_B,4)}, s{S_BOFF} offen offset:{(nt>>1)*128 + (nt&1)*32}", ("B", layer, nt // 6))
        if kind == "H0":
            g = gb - 8
            for nt in (6, 7): g = sc.place("G", bload(nt), g) + 1
            assert g < lastG
        if kind == "S1":
            g = off + 3
            for nt in range(6): g = sc.place("G", bload(nt), g) + 4
        if kind in ("S1", "S2", "S3", "T14"):
            g = 8 if kind == "S1" else 0
            for nt in {"S1": [6], "S2": [4, 5, 0], "S3": [3, 1, 2], "T14": [7]}[kind]:
                b0 = 0 if nt == 7 else off + 16 * nt
                g = self.bias_sched(sc, nt, g, (b0, b0 + 16))
            if kind == "S3": sc.place("S", self.E(f"s_add_u32 s{S_BOFF}, s{S_BOFF}, 2048"), 4)
        if first:
            ops = []
            for mt in range(8): ops += [f"v_accvgpr_write_b32 a{ACC(mt,7)[1]+i}, 1.0" for i in range(4)]
            g = sc.place("S", lambda: self.wait(vtags=[("B", 0, 7)]), 16) + 1
            sc.chain([self.V(x) for x in ops[:14]], 0)
            for nt in range(2, 7):
                g = sc.chain([self.V(x) for x in self.bias0_ops(nt)], g, 16 * nt - 2)[-1]
            ops = ops[14:]
            for mt in range(2): ops += [f"v_accvgpr_write_b32 a{ACC(mt,6)[1]+i}, v{ACC(7,6)[1]+i}" for i in range(4)]
            sc.chain([self.V(x) for x in ops], g, 96 - 2)
        self.slot[S_TR] = None
        if kind == "T15":
            rot = [self.smov(S_O2, S_X), self.smov(S_O3, S_WR), self.smov(S_WR, S_X + 1), self.smov(S_X + 1, S_WR + 1),
                   self.smov(S_X, S_X + 2), self.smov(S_WR + 1, S_X + 2)]
        elif kind == "H0":
            rot = [self.smov(S_X, S_X + 1), self.smov(S_X + 1, S_O2), self.smov(S_X + 2, S_O3),
                   self.smov(S_TR, S_WR), self.smov(S_WR, S_WR + 1), self.smov(S_WR + 1, S_TR)]
        else:
            rot = [self.smov(S_TR, S_X), self.smov(S_X, S_X + 1), self.smov(S_X + 1, S_X + 2), self.smov(S_X + 2, S_TR),
                   self.smov(S_TR, S_WR), self.smov(S_WR, S_WR + 1), self.smov(S_WR + 1, S_TR)]
        q = []
        if kind in ("E0", "G0", "T15", "H0"): q = [self.S(f"s_add_u32 s{S_Q}, s{S_Q}, 1")]
        if kind == "H0": q += [self.S(f"s_add_u32 s{S_Q+1}, s{S_Q}, 1"), self.S(f"s_mov_b32 s{S_Q+2}, s{S_FQ}")]
        if kind in ("S1", "S2"):
            q = [self.S(f"s_mov_b32 s{S_Q}, s{S_Q+1}"), self.S(f"s_mov_b32 s{S_Q+1}, s{S_Q+2}"), self.S(f"s_mov_b32 s{S_Q+2}, s{S_FQ+t}")]
        if kind in ("S3", "G1"):
            q = [self.S(f"s_add_u32 s{S_TE}, s{S_Q}, 1"), self.S(f"s_mov_b32 s{S_Q}, s{S_Q+1}"), self.S(f"s_mov_b32 s{S_Q+1}, s{S_Q+2}"),
                 self.S(f"s_mov_b32 s{S_Q+2}, s{S_TE}")]
        if kind == "S3": q += [self.S(f"s_mov_b32 s{S_LOOP}, 4")]
        sc.chain(q, max(gx, off + 60))
        if kind == "G1": rot += [self.S(f"s_add_u32 s{S_LOOP}, s{S_LOOP}, 1")]
        if kind == "G0": sc.place("S", self.E(f"s_add_u32 s{S_LOOP}, s{S_LOOP}, 1"), off + 104, n - 3)
        sc.chain(rot, max(sc.last_su(), 108 if kind in ("T15", "H0") else 0))
        if kind == "T15": self.make_stream(layer + 1)
        def check(g, m):
            if kind == "H0" and g >= off: assert (m[1] >> 1) * 8 + m[0] in self.epi_done, ("deadline", m)
        self.xr = o.xr15 if kind == "T15" else o.xr0
        self.seg_emit(sc, {"T15": 0, "H0": 128}.get(kind), check, 86 if first else off + 50)
        if "@CAP" in self.out: self.make_cap(kind, t)
        if kind == "T15": assert all(f in self.wr_done for f in range(8))
        if kind == "H0": assert not self.stream, "stream left"

    def make_cap(self, kind, t):
        i0 = self.out.index("@CAP"); i1 = self.out.index("@RET")
        reg = self.out[i0 + 1:i1]
        assert not any(x.endswith(":") or "branch" in x or "barrier" in x for x in reg)
        main = [x for x in reg if not x.startswith("@") and x != "s_nop 0"]
        self.out[i0:i1 + 1] = main + [f"CB_{kind}:"]
        def blkc(p):
            return [f"ds_read_b128 {ar(X0(p,int(x[3])),4)}, v{V_CAP} offset:{int(x[3])*2048}" if x.startswith("@RD") else x for x in reg] + [f"s_branch CB_{kind}"]
        cap = f"CAP_{kind}"
        if kind == "G0":
            b = [f"{cap}:", f"s_and_b32 s{S_TC}, s{S_LOOP}, 3"]
            for p in range(1, 4): b += [f"s_cmp_eq_u32 s{S_TC}, {p}", f"s_cbranch_scc1 {cap}{p}"]
            b += blkc(0)
            for p in range(1, 4): b += [f"{cap}{p}:"] + blkc(p)
            self.ool[cap] = b
        else:
            self.ool[cap] = [f"{cap}:"] + blkc(t & 3)
    def is_direct(self, p, mt):
        n = int(self.opt.direct[p])
        return ((mt + 1) * n) // 8 != (mt * n) // 8
    def make_stream(self, nl):
        st = []
        self.epi_done = set(); self.wr_done = set()
        tbf = lambda f: V_T + 8 * (f % 2)
        U = lambda f, h: ("U", ("U", f // 8, f % 8, h, tbf(f)))
        self.stream = [U(f, h) + (30,) for f in range(2) for h in range(2)]
        self.credit = 0.0
        for f in range(32):
            p, mt = f // 8, f % 8
            tb = tbf(f)
            pos = 38 + 32 * p + 2 * mt
            sreg = {0: S_X + 2, 1: S_WR + 1, 2: S_O2, 3: S_O3}[p]
            ops = self.epi_valu(p, mt, tb, V_T + 16, tb)
            it = []
            for k, x in enumerate(ops):
                kd = "V" if (k < 4 or f == 31) else "A"
                if k == len(ops) - 5: it.append((kd, lambda x=x, f=f: (self.e(x), self.epi_done.add(f)), pos))
                else: it.append((kd, self.E(x), pos))
            if p >= 2: pos = max(pos, 129)
            if mt == 0:
                def f0(p=p, sreg=sreg):
                    self.lds_own[self.slot[sreg]] = ("X", nl, p)
                    self.e(f"s_sub_u32 s{S_E0}, s{sreg}, s{S_OADJ}")
                a = [("S", f0, pos), ("A", self.E(f"v_add_u32 v{V_CPL}, s{S_E0}, v{V_L16}"), pos)]
                it = it[:6] + a + it[6:] if p != 2 else it + a
            if self.is_direct(p, mt):
                so, im = mt_off(mt)
                it += [("R", lambda p=p, im=im, tb=tb, so=so: self.vm(f"buffer_store_dwordx4 {vr(tb,4)}, v{V_CPG}, {sr(S_X0,4)}, {so} offen offset:{im + p*128} sc1", ("S", nl, p)), pos)]
            if f + 2 < 32: it += [U(f + 2, 1) + (pos,)]
            it += [("X", lambda f=f, mt=mt, tb=tb: (self.lds(f"ds_write_b128 v{V_CPL}, {vr(tb,4)} offset:{mt*2048}", ("O",)), self.wr_done.add(f)), pos)]
            if f + 2 < 32: it += [U(f + 2, 0) + (pos,)]
            self.stream += it

    def merge_gap(self, sc, g, gpos):
        fixed = sc.g[g]
        self.gnow = gpos
        while True:
            cur = list(fixed)
            excl = any(k == "G" for k, _ in cur)
            hasR = False
            newgap = None
            top = -1
            if gpos is not None: self.credit = min(self.credit + self.xr, 2.0)
            def cnt(): return sum(k in "DV" for k, _ in cur), sum(getattr(f, "w", 1) for k, f in cur)
            def free():
                nvec, tot = cnt()
                if hasR: return nvec < 2
                return not excl and nvec < 2 and tot < 3
            def lookahead():
                i = 0
                while i < len(self.stream) and self.stream[i][0] in "RUX": i += 1
                while i < len(self.stream) and self.stream[i][0] == "V" and self.stream[i][2] <= gpos + 1 and free():
                    cur.append(("V", self.stream.pop(i)[1]))
            if gpos is not None and fixed is sc.g[g] and not (self.stream and getattr(self.stream[0][1], "pub", False)):
                while self.stream2 and self.stream2[0][2] <= gpos + 1:
                    k, fn, pos = self.stream2[0]
                    st = fn.ready(gpos)
                    if st == "skip": self.stream2.pop(0); continue
                    if st:
                        grp = [self.stream2.pop(0)]
                        if k == "S": grp.append(self.stream2.pop(0))
                        self.stream[0:0] = grp
                    break
            while gpos is not None and self.stream:
                k, fn, pos = self.stream[0]
                if pos > gpos + 1:
                    break
                if k == "U" and len(self.stream) > 1 and hasattr(self.stream[1][1], "ok") and not self.stream[1][1].ok():
                    lookahead(); break
                if k == "U":
                    lookahead()
                    newgap = fn; self.stream.pop(0); break
                if k == "X":
                    nxt = [kk for gg in (g + 1, g + 2) if gg < sc.n for kk, _ in sc.g[gg]]
                    follow_u = len(self.stream) > 1 and self.stream[1][0] == "U"
                    if any(kk != "S" for kk, _ in cur) or (not follow_u and "D" in nxt and fixed is sc.g[g]):
                        lookahead(); break
                    cur.append(("G", fn)); excl = True; self.stream.pop(0); continue
                if k == "R":
                    if excl or top > 0:
                        lookahead(); break
                    cur.append(("G", fn)); excl = True; hasR = True; top = 1; self.stream.pop(0); continue
                if k in "SZ":
                    w = 2 if k == "Z" else 1
                    if excl or top > 0 or g in sc.closedS or cnt()[1] + w > 3: break
                    fn.w = w
                    cur.append(("S", fn)); top = 0; self.stream.pop(0); continue
                if k == "D":
                    if top > 2 or not free(): break
                    cur.append(("D", fn)); top = 2; self.stream.pop(0); continue
                ok = free()
                if not ok and not excl and self.credit >= 1.0 and cnt()[0] < 3 and cnt()[1] < 4:
                    self.credit -= 1.0; ok = True
                if not ok: break
                cur.append(("V", fn)); top = 3; self.stream.pop(0)
            ks = [k for k, _ in cur]
            if ks.count("D") == 2 and "S" not in ks and "G" not in ks: cur.append(("S", self.E("s_nop 0")))
            for k, fn in sorted(cur, key=lambda x: RANK[x[0]]): fn()
            if newgap is None: return
            self.mfma(newgap)
            fixed = []

    def tail(self):
        e = self.e; o = self.opt
        L = 2
        VW, VR = V_POLL, V_CPL
        CT = V_T + 20; AT = V_T + 16
        tbf = lambda f: V_T + 8 * (f % 2)
        U = lambda f, h: ("U", ("U", f // 8, f % 8, h, tbf(f)))
        depth = lambda f: 4 if f < 8 else 8
        unit = lambda f: (f % depth(f)) * 4096
        area = {0: (S_WR, 0), 1: (S_X + 1, 0), 2: (S_X, 0), 3: (S_X + 1, 0)}
        def rdback(f, p, r, k):
            assert f in self.visible and self.ra == f // 8
            self.lds(f"ds_read_b64 {vr(r+2*k,2,p)}, v{VR} offset:{unit(f) + 256*k}", ("C", f))
        def store(f, dst):
            assert ("C", f) not in self.lq
            so, im = mt_off(f % 8)
            self.vm(f"buffer_store_dwordx4 {dst}, v{V_CPG}, {sr(S_OUT,4)}, {so} offen offset:{im + (f//8)*128} {o.outf}", "SO")
            self.stored.add(f)
        def wr_ok(f):
            prev = {0: f - 4, 1: -1, 2: -1, 3: f - 16}[f // 8]
            return (prev < 0 or prev in self.freed) and (f // 8) in self.area_free
        def wr(f):
            assert wr_ok(f) and self.wa_ == f // 8
            self.lds(f"ds_write_b128 v{VW}, {vr(tbf(f),4)} offset:{unit(f)}", ("Y", f))
            self.written.add(f); self.wpos = self.gnow; self.w_at[f] = self.gnow
        self.written = set(); self.visible = set(); self.freed = set(); self.rd_at = {}
        self.lds_half = {}; self.landed = set(); self.area_free = set(); self.area_next = set()
        self.wpos = 0; self.ra = 0; self.wa_ = 0; self.w_at = {}
        def at_barrier():
            self.visible |= {f for f in self.written if ("Y", f) not in self.lq}
            self.freed |= {f for f in self.rd_at if ("C", f) not in self.lq}
            self.landed |= {v for v in self.lds_half.values() if v not in self.vq}
            if not any(x and x[0] == "XF" for x in self.lq): self.area_free |= self.area_next
        def bar(vtags=(), every=False):
            self.wait(vtags=vtags, ltags=[("Y", x) for x in self.written if every or self.gnow >= self.w_at[x] + o.zdist]); e("s_barrier"); at_barrier()
        def switch(reg, p, attr):
            t = S_TC if attr == "ra" else S_TD
            def f():
                e(f"v_add_u32 v{reg}, s{t}, v{reg}"); setattr(self, attr, p)
            return [("S", self.E(f"s_sub_u32 s{t}, s{area[p][0]}, s{area[p-1][0]}")), ("A", f)]
        def half_dma(tile, H, tidreg, sreg, half):
            what = ("W", L, tile, H)
            it = [self.S(f"s_add_u32 s{S_TH}, s{S_WLM}, {H*256}")] + self.w_setup(tidreg, S_TH)
            d = [self.SU(f"s_add_u32 m0, s{sreg}, s{S_O2+half}", lambda: self.lds_half.__setitem__((self.slot[sreg], half), what))]
            for i in range(4):
                so = "0" if i < 2 else f"s{S_WT+1}"
                d.append(self.VM(f"buffer_load_dwordx4 v{V_WC[i&1]}, {sr(S_W,4)}, {so} offen" + (f" offset:{i*1024}" if i else "") + " lds", what))
            return it, d
        W13, W14, W15 = ("W", L, 13), ("W", L, 14), ("W", L, 15)
        X13, X14, X15 = ("X", L, 13), ("X", L, 14), ("X", L, 15)
        self.lds_half[(self.slot[S_WR], 0)] = W13 + (0,); self.lds_half[(self.slot[S_WR], 1)] = W14 + (0,)
        sc = self.seg_open("A13", [X13, W13, ("P", L, 15)], 8, 7, [0, 1, 2], X13, W13, half=0, nextnt=3); at_barrier()
        gbr = self.poll_check(sc, "A13", ("P", L, 15), 0)
        sc.chain(self.x_setup(S_Q + 1), 3, 15)
        c = sc.chain([self.S(f"s_lshl_b32 s{S_TA}, s{S_WAVE}, 15"), self.S(f"s_lshl_b32 s{S_TB}, s{S_WC64}, 10"), self.S(f"s_sub_u32 s{S_TA}, s{S_TA}, s{S_TB}"),
                      self.S(f"s_lshr_b32 s{S_TB}, s{S_WR14}, 6"), self.S(f"s_sub_u32 s{S_TA}, s{S_TA}, s{S_TB}"), self.S(f"s_add_u32 s{S_WLM}, s{S_WL}, s{S_TA}"),
                      self.S(f"s_lshl_b32 s{S_TA}, s{S_WAVE}, 12"), self.S(f"s_sub_u32 s{S_O2}, 0, s{S_TA}"), self.S(f"s_add_u32 s{S_O3}, s{S_O2}, 0x4000"),
                      self.S(f"s_sub_u32 s{S_Q+2}, s{S_Q+2}, 1")], 5)
        it, d = half_dma(15, 0, S_Q + 1, S_WR + 1, 0)
        c = sc.chain(it, c[-1])
        lastG = self.place_dma(sc, d, max(gbr + 1, c[-1] + 1), o.pacet)
        lastG = self.place_dma(sc, self.dma_items(X15, S_X + 2, "XE"), lastG + 3, o.pacet)
        nx = {}
        sc.chain(self.xa_items(S_X + 1, S_X, nx), 18)
        a, b, c_, d_ = [f"v{V_T+i}" for i in range(4)]
        r7 = self.braw(7)
        adr = [f"v_lshrrev_b32 {a}, 9, v{V_L16}", f"v_lshlrev_b32 {a}, 6, {a}", f"v_add_u32 {a}, {a}, v{V_L16}", f"v_add_u32 {a}, s{S_KEY}, {a}",
               f"v_and_b32 {a}, 0xf0, {a}", f"v_and_b32 {b}, 0x300, v{V_L16}", f"v_add3_u32 v{VW}, {a}, {b}, s{S_E0}",
               f"v_and_b32 {c_}, 0x70, v{V_CPG}",
               f"v_lshrrev_b32 {a}, 3, v{V_L16}", f"v_and_b32 {a}, 0x70, {a}", f"v_add_u32 {a}, s{S_KEY}, {a}",
               f"v_and_b32 {b}, 64, {c_}", f"v_lshl_add_u32 {a}, {b}, 1, {a}", f"v_and_b32 {d_}, 16, {c_}", f"v_lshl_add_u32 {a}, {d_}, 2, {a}",
               f"v_and_b32 {a}, 0xf0, {a}", f"v_lshl_add_u32 {a}, {b}, 4, {a}", f"v_lshl_add_u32 {a}, {d_}, 5, {a}",
               f"v_bfe_u32 {b}, {c_}, 5, 1", f"v_lshl_add_u32 {a}, {b}, 3, {a}", f"v_add_u32 v{VR}, s{S_TF}, {a}"]
        sc.chain([self.S(f"s_lshl_b32 s{S_KEY}, s{S_WC64}, 1"), self.S(f"s_mul_i32 s{S_E0}, s{S_WAVE}, 7168"), self.SU(f"s_sub_u32 s{S_E0}, s{S_WR}, s{S_E0}"),
                  self.S(f"s_lshl_b32 s{S_TF}, s{S_WC64}, 4"), self.S(f"s_sub_u32 s{S_TF}, s{S_E0}, s{S_TF}")], 20, 36)
        self.stream = [self.V(x) + (40,) for x in adr]
        self.stream += [self.V(f"v_mov_b32 v{V_XC[i]}, v{r7+i}") + (64,) for i in range(2)]
        self.credit = 0.0; self.xr = 0.0
        E0 = [134, 230, 326, 390]
        ear = lambda f: E0[f // 8] + 2 * (f % 8)
        self.stream += [U(f, h) + (126,) for f in range(2) for h in range(2)]
        nf = o.nft
        for f in range(nf):
            pos = ear(f)
            it = [("V" if k < 4 else "A", self.E(x)) for k, x in enumerate(self.epi_valu(f // 8, f % 8, tbf(f), None, tbf(f)))]
            if f % 8 == 0 and f: it = it[:6] + switch(VW, f // 8, "wa_") + it[6:]
            w0 = lambda f=f: wr(f)
            w0.ok = lambda f=f: wr_ok(f)
            it += [U(f + 2, 1), ("X", w0), U(f + 2, 0)]
            self.stream += [x + (pos,) for x in it]
        def pub(f, pos):
            def z():
                bar(); assert f in self.visible
            z.ready = lambda g: "skip" if f in self.visible else (f in self.written and g >= self.w_at[f] + o.zdist)
            def r0(): rdback(f, "v", CT, 0)
            def r1(): rdback(f, "v", CT, 1); self.rd_at[f] = self.gnow
            r0.ready = r1.ready = lambda g: g >= self.wpos + 2
            def wt(): self.wait(ltags=[("C", f)])
            wt.ready = lambda g: f in self.rd_at and g >= self.rd_at[f] + o.rdist
            def st(): store(f, vr(CT, 4))
            it = []
            if f % 8 == 0 and f:
                it = switch(VR, f // 8, "ra"); it[0][1].ready = lambda g: True
            it += [("Z", z), ("D", r0), ("D", r1), ("S", wt), ("R", st)]
            for k, x in it: x.pub = True
            return [x + (pos,) for x in it]
        self.stream2 = []
        for f in range(nf): self.stream2 += pub(f, E0[f // 8] + (o.spo + o.sp * (f % 8) if f < 16 else o.spo2 + o.sp2 * (f % 8)))
        self.seg_emit(sc, 0, stamp_at=58)
        self.area_next = {0}
        sc = self.seg_open("C14", [X14], None, 3, [0], X14, W14, half=1, nextnt=1); at_barrier()
        it, d = half_dma(15, 1, S_Q + 1, S_WR + 1, 1)
        c = sc.chain(it, 1)
        self.place_dma(sc, d, 17, 3)
        sc.chain(self.xa_items(S_X + 2, S_X + 1, nx), 16)
        self.wa_sched(sc, S_WR + 1, S_WR, 8, 24)
        self.seg_emit(sc, 64, stamp_at=28)
        sc = self.seg_open("F15", [X15, W15 + (0,)], None, 1, [0, 1, 2, 3, 4], X15, W15, half=lambda nt: nt >> 2, nextnt=5, maxS=1); at_barrier()
        it, d = half_dma(14, 1, S_Q, S_WR + 1, 0)
        c = sc.chain(it, 1)
        sc.g[63].append(("S", lambda: bar([W15 + (1,)])))
        self.place_dma(sc, d, 65, 4)
        sc.chain(self.xa_items(S_X + 1, S_X + 2, nx), 18)
        self.wa_sched(sc, S_WR, S_WR + 1, 20, 16 + 64 + 8)
        self.seg_emit(sc, 96, stamp_at=24)
        sc = self.seg_open("D14", [], None, 5, [2, 3, 4, 5, 6], X14, W14, half=lambda nt: 1 - (nt >> 2), nextnt=7, maxS=1, barrier=False)
        it, d = half_dma(13, 1, S_Q + 2, S_WR, 1)
        c = sc.chain(it, 1)
        def b3():
            self.area_next = {1, 3}; bar([W14 + (1,)])
        sc.g[31].append(("S", b3))
        self.place_dma(sc, d, 33, 4)
        sc.chain(self.xa_items(S_X, S_X + 1, nx), 18)
        self.wa_sched(sc, S_WR + 1, S_WR, 10, 24)
        self.wa_sched(sc, S_WR, S_WR + 1, 50, 16 + 64 + 8)
        self.seg_emit(sc, 192, stamp_at=26)
        sc = self.seg_open("B13", [W13 + (1,)], None, 7, [4, 5, 6], X13, W13, half=1, nextnt=7, maxS=1); at_barrier()
        def b4():
            self.area_next = {2}; bar()
        sc.g[31].append(("S", b4))
        sc.chain(self.xa_items(S_X + 2, S_X, nx), 18)
        self.wa_sched(sc, S_WR + 1, S_WR, 20, 16 + 32 + 8)
        self.seg_emit(sc, 288, stamp_at=24)
        sc = self.seg_open("E15", [], None, 7, [6], X15, W15, half=1, nextnt=7, maxS=1, barrier=False)
        self.seg_emit(sc, 352, stamp_at=24)
        sc = self.seg_open("FIN", [], None, 7, [], None, None, barrier=False, maxS=1)
        self.seg_emit(sc, 384, stamp_at=8)
        for k, fn, pos in self.stream:
            if k == "U": self.mfma(fn)
            else: fn()
        self.stream = []
        while self.stream2 and self.stream2[0][0] in "DSR" and not (self.stream2[0][0] == "S" and self.stream2[1][0] == "A"):
            self.stream2.pop(0)[1]()
        self.stream2 = []
        e("s_nop 7")
        todo = []
        dreg = lambda x: XF(x % 8, (x // 8) & 1)
        def publish():
            bar(every=True)
            for x in sorted(self.visible):
                if x not in self.rd_at:
                    if x // 8 != self.ra:
                        for k, fn in switch(VR, x // 8, "ra"): fn()
                    rdback(x, "a", dreg(x), 0); rdback(x, "a", dreg(x), 1); self.rd_at[x] = 0; todo.append(x)
        def drain(n):
            for _ in range(n):
                if todo:
                    x = todo.pop(0); self.wait(ltags=[("C", x)]); store(x, ar(dreg(x), 4))
        assert nf <= 24
        B7 = [V_WC[0], V_XC[0], V_WC[1], V_XC[1]]
        e(f"v_lshlrev_b32 v{B7[0]}, 16, v{B7[1]}"); e(f"v_and_b32 v{B7[1]}, s{S_MASK}, v{B7[1]}")
        e(f"v_lshlrev_b32 v{B7[2]}, 16, v{B7[3]}"); e(f"v_and_b32 v{B7[3]}, s{S_MASK}, v{B7[3]}")
        if self.written - set(self.rd_at): publish()
        for f in range(nf, 32):
            p, mt = f // 8, f % 8
            tb = tbf(f)
            if mt == 0:
                for k, fn in switch(VW, p, "wa_"): fn()
            for h in (1, 0):
                pf, r = ACC(mt, 2 * p + h)
                if pf == "a":
                    for i in range(4): e(f"v_accvgpr_read_b32 v{AT+i}, a{r+i}")
                    if h == 1:
                        for i in range(4): e(f"v_add_f32 v{AT+i}, v{AT+i}, v{B7[i]}")
                    r = AT
                for d2 in range(2): e(f"v_pk_mul_f32 {vr(tb+4*h+2*d2,2)}, {vr(tb+4*h+2*d2,2)}, {vr(r+2*d2,2)}")
            for d2 in range(4): e(f"v_cvt_pk_bf16_f32 v{tb+d2}, v{tb+2*d2}, v{tb+2*d2+1}")
            if f + 2 < 32: self.mfma(U(f + 2, 1)[1])
            wr(f)
            if f + 2 < 32: self.mfma(U(f + 2, 0)[1])
            drain(o.fdrain)
            if (f - nf) % o.fgrp == o.fgrp - 1 or f == 31: publish()
        drain(32)
        assert self.stored == set(range(32))
        e(f"s_or_b32 s{S_TA}, s{S_J}, s{S_WAVE}"); e(f"s_cmp_lg_u32 s{S_TA}, 0"); e("s_cbranch_scc1 L_fin")
        e(f"s_add_u32 s{S_TA}, s{S_EP}, 16"); e(f"v_mov_b32 v{V_FLAG}, s{S_TA}")
        e(f"buffer_store_dword v{V_FLAG}, off, {sr(S_WS,4)}, s{S_EPOFF} sc1")
        self.label("L_fin")
        if o.diag:
            e(f"s_memtime s[{S_ST}:{S_ST+1}]"); e("s_waitcnt vmcnt(0)"); e(f"s_memtime s[{S_ST+2}:{S_ST+3}]")
            e(f"s_memrealtime s[{S_RT+2}:{S_RT+3}]"); e("s_waitcnt lgkmcnt(0)")
            e(f"v_writelane_b32 v{V_ST[0]}, s{S_ST}, 62"); e(f"v_writelane_b32 v{V_ST[1]}, s{S_ST+2}, 62")
            e(f"v_writelane_b32 v{V_ST[0]}, s{S_RT}, 61"); e(f"v_writelane_b32 v{V_ST[1]}, s{S_RT+2}, 61")
            e(f"s_lshl_b32 s{S_TA}, s2, 2"); e(f"s_add_u32 s{S_TA}, s{S_TA}, s{S_WAVE}"); e(f"s_lshl_b32 s{S_TA}, s{S_TA}, 9")
            e(f"s_add_u32 s{S_TA}, s{S_TA}, {hex(ST_OFF)}"); e("v_lshrrev_b32 v0, 2, v0")
            e(f"buffer_store_dword v{V_ST[0]}, v0, {sr(S_WS,4)}, s{S_TA} offen")
            e(f"buffer_store_dword v{V_ST[1]}, v0, {sr(S_WS,4)}, s{S_TA} offen offset:256")
            if o.echo:
                a, b = o.echo.split(",")
                if a == "pad":
                    e(f"s_add_u32 s{S_TB}, s{S_RT}, {b}")
                else:
                    reg = V_ST[0] if o.echoc else V_ST[1]
                    if a == "s": e(f"s_mov_b32 s{S_TA}, s{S_D0 if o.echoc else S_RT}")
                    else: e(f"v_readlane_b32 s{S_TA}, v{reg}, {a}")
                    if b == "e": e(f"s_mov_b32 s{S_TB}, s{S_ST+2 if o.echoc else S_RT+2}")
                    else: e(f"v_readlane_b32 s{S_TB}, v{reg}, {b}")
                    e("s_nop 4")
                    e(f"s_sub_u32 s{S_TB}, s{S_TB}, s{S_TA}")
                    if o.echoc: e(f"s_lshr_b32 s{S_TB}, s{S_TB}, 4")
                    e(f"s_min_u32 s{S_TB}, s{S_TB}, 20000")
                    e(f"s_add_u32 s{S_TB}, s{S_TB}, s{S_RT+2}")
                self.label("L_echo")
                e(f"s_memrealtime s[{S_ST}:{S_ST+1}]"); e("s_waitcnt lgkmcnt(0)")
                e(f"s_sub_u32 s{S_ST}, s{S_ST}, s{S_TB}"); e(f"s_cmp_lt_i32 s{S_ST}, 0"); e("s_cbranch_scc1 L_echo")
        e("s_endpgm")

    def sizes(self, lines):
        import subprocess, tempfile, os
        labels = set()
        for l in lines:
            m = re.search(r"(?:branch\w*|L_\w+-)\s*(\w+)", l)
        src = '.amdgcn_target "amdgcn-amd-amdhsa--gfx950"\n.text\n'
        body = []
        for l in lines:
            if l.endswith(":"): continue
            if "branch" in l: l = "s_nop 0"
            l = re.sub(r"L_\w+-L_pc(-4)?", "0x12345", l)
            body.append(l)
        with tempfile.TemporaryDirectory() as d:
            open(d + "/a.s", "w").write(src + "\n".join(body) + "\n")
            subprocess.run(["clang", "-x", "assembler", "-target", "amdgcn-amd-amdhsa", "-mcpu=gfx950", "-c", d + "/a.s", "-o", d + "/a.o"], check=True)
            dis = subprocess.run(["llvm-objdump", "-d", "--mcpu=gfx950", d + "/a.o"], capture_output=True, text=True).stdout
        sz = [4 * len(l.split(": ")[-1].split()) for l in dis.splitlines() if "//" in l]
        assert len(sz) == len(body), (len(sz), len(body))
        out = []; k = 0
        for l in lines:
            if l.endswith(":"): out.append(0)
            else: out.append(sz[k]); k += 1
        return out
    def add_hops(self, o, caps):
        sz = self.sizes(o)
        wt = []; w = 1
        for l in o:
            if l == "L_G0:": w = 13
            if l == "L_T14:": w = 2
            if l == "L_G1:": w = 19
            if l == "L_TAIL:": w = 1
            wt.append(w)
        def layout(X):
            out = ["@HOP"]; pos = X + 4; nextpage = 4096; cost = 0
            i = 0
            while i < len(o):
                if pos >= nextpage:
                    best = None; p = pos; j = i
                    while j < len(o) and p < nextpage + 56:
                        if j > 0 and o[j - 1].startswith("v_mfma"):
                            n = 0
                            while j + n < len(o) and not o[j + n].startswith("v_mfma"): n += 1
                            if best is None or n < best[0]: best = (n, j)
                        p += sz[j]; j += 1
                    tgt = best[1] if best else i
                    cost += wt[tgt] * (2 + 10 * min(best[0] if best else 1, 1))
                    while i < tgt:
                        out.append(o[i]); pos += sz[i]; i += 1
                    out.append("@HOP"); pos += 4
                    nextpage += 4096
                    continue
                if o[i] in ("L_G0:", "L_G1:") and self.opt.algn >= 0:
                    need = ((self.opt.algn - pos) % 64) // 4
                    k = len(out)
                    while need > 0:
                        while not (out[k - 1].startswith("v_mfma") and (k == len(out) or out[k].startswith("v_mfma"))):
                            k -= 1
                            if out[k] == "@HOP": cost += 1000
                        m = min(need, 3)
                        out[k:k] = ["s_nop 0"] * m; pos += 4 * m; need -= m; k -= 1
                out.append(o[i]); pos += sz[i]; i += 1
            return cost + 30 * out.count("@HOP"), X, out
        cost, self.skip, out = min((layout(X) for X in range(0, 4096, 64)), key=lambda r: r[:2])
        self.hopcost = cost
        for b in caps:
            for l in b:
                out.append(l)
                if l.endswith(":") and l.startswith("CAP"): out.append("@HOP")
        n = out.count("@HOP"); k = 0; res = []
        for l in out:
            if l == "@HOP":
                res.append(f"HOP{k}:"); res.append(f"s_cbranch_execz " + (f"HOP{k+4}" if k + 4 < n else "HOPEND")); k += 1
            else: res.append(l)
        self.nhops = n
        return res

    def build(self):
        self.stored = set()
        self.prologue()
        main = self.out
        texts = {}
        def gen(kind, layer, t):
            self.out = []
            self.body(kind, layer, t)
            if kind in texts and texts[kind] != self.out:
                for a, b in zip(texts[kind], self.out):
                    if a != b: print("DIFF", kind, layer, t, a, "|", b); break
                raise RuntimeError(f"body {kind} differs at layer {layer} t {t}")
            texts[kind] = self.out
        for layer in range(3):
            for t in range(16 if layer < 2 else 13):
                if layer == 0: kind = "E0" if t == 0 else ("G0" if t < 14 else f"T{t}")
                else: kind = "H0" if t == 0 else (f"S{t}" if t < 4 else ("G1" if t < 14 else f"T{t}"))
                gen(kind, layer, t)
        self.out = []; self.tail(); texts["TAIL"] = self.out
        o = texts["E0"][:]
        o += ["L_G0:"] + texts["G0"] + ["s_cbranch_scc1 L_G0"]
        o += ["L_T14:"] + texts["T14"] + texts["T15"] + texts["H0"] + texts["S1"] + texts["S2"] + texts["S3"]
        o += self.entry.get("G1", [])
        o += ["L_G1:"] + texts["G1"] + ["s_cbranch_scc1 L_G1"]
        o += [f"s_cmp_eq_u32 s{S_LAYER}, 1", "s_cbranch_scc1 L_T14"]
        o += ["L_TAIL:"] + texts["TAIL"]
        caps = [b for k, b in self.ool.items() if k.startswith("CAP")]
        slow = [b for k, b in self.ool.items() if not k.startswith("CAP")]
        if self.opt.hops:
            o = self.add_hops(o, caps)
            o = main + ["s_branch L_main"] + sum(slow, []) + [".p2align 12"] + ([f".fill {self.skip//4}, 4, 0xbf800000"] if self.skip else []) + ["L_main:"] + o
        else:
            o = main + o + sum(caps, []) + sum(slow, [])
        self.texts = texts
        hdr = open("standalone__dcn_v2_cross__recsys.s.ref").read().split("\n")
        top = [l for l in hdr if l.startswith(";") and "@launch" not in l]
        if self.opt.diag: top.append("; STAMPS " + ("RT " if self.opt.diagrt else "CY ") + " ".join(self.stamps))
        txt = "\n".join(top) + f"\n; @launch grid=(256,1,1) block=(256,1,1) lds={SLOT*5}\n"
        txt += f""".amdgcn_target "amdgcn-amd-amdhsa--gfx950"
.text
.globl {NAME}
.p2align 8
.type {NAME},@function
{NAME}:
"""
        txt += "\n".join(o) + "\nL_codeend:\n"
        txt += f""".section .rodata,"a"
.p2align 6
.amdhsa_kernel {NAME}
  .amdhsa_next_free_vgpr 512
  .amdhsa_next_free_sgpr 102
  .amdhsa_accum_offset 256
  .amdhsa_group_segment_fixed_size 0
  .amdhsa_kernarg_size 48
  .amdhsa_user_sgpr_count 2
  .amdhsa_user_sgpr_kernarg_segment_ptr 1
  .amdhsa_system_sgpr_workgroup_id_x 1
  .amdhsa_float_denorm_mode_32 3
.end_amdhsa_kernel
"""
        return txt

if __name__ == "__main__":
    ap = argparse.ArgumentParser()
    ap.add_argument("-o", default="k3.s")
    ap.add_argument("--diag", action="store_true")
    ap.add_argument("--diagrt", action="store_true")
    ap.add_argument("--diagc", action="store_true")
    ap.add_argument("--pace", type=float, default=6.5)
    ap.add_argument("--pacex", type=float, default=7.5)
    ap.add_argument("--paceh", type=float, default=8)
    ap.add_argument("--pacet", type=float, default=3.3)
    ap.add_argument("--xr15", type=float, default=0.2)
    ap.add_argument("--xr0", type=float, default=-1)
    ap.add_argument("--xrt", type=float, default=0.0)
    ap.add_argument("--flag0", type=int, default=60)
    ap.add_argument("--early", type=int, default=10)
    ap.add_argument("--direct", default="8444")
    ap.add_argument("--cpos", default="222")
    ap.add_argument("--asc", type=int, default=1)
    ap.add_argument("--xtouch", type=int, default=0)
    ap.add_argument("--tpf", type=int, default=0)
    ap.add_argument("--hops", type=int, default=1)
    ap.add_argument("--entry", type=int, default=1)
    ap.add_argument("--finit", type=int, default=1)
    ap.add_argument("--stx", type=int, default=0)
    ap.add_argument("--stpos", type=int, default=0)
    ap.add_argument("--fdrop", type=int, default=1)
    ap.add_argument("--pollpos", type=int, default=0)
    ap.add_argument("--wpf", type=int, default=0)
    ap.add_argument("--wpd", type=int, default=2)
    ap.add_argument("--algn", type=int, default=-1)
    ap.add_argument("--tsplit", type=int, default=0)
    ap.add_argument("--touch", type=int, default=2)
    ap.add_argument("--prex", type=int, default=0)
    ap.add_argument("--zdist", type=int, default=5)
    ap.add_argument("--rdist", type=int, default=8)
    ap.add_argument("--wl2", type=int, default=0)
    ap.add_argument("--echo", default="")
    ap.add_argument("--echoc", type=int, default=0)
    ap.add_argument("--x0f", default="nt")
    ap.add_argument("--e1out", type=int, default=1)
    ap.add_argument("--wwarm", type=int, default=1)
    ap.add_argument("--w0warm", type=int, default=0)
    ap.add_argument("-x", default="")
    ap.add_argument("--wr128", type=int, default=0)
    ap.add_argument("--nft", type=int, default=24)
    ap.add_argument("--sp", type=float, default=10)
    ap.add_argument("--spo", type=float, default=22)
    ap.add_argument("--sp2", type=float, default=9)
    ap.add_argument("--spo2", type=float, default=16)
    ap.add_argument("--xrb", type=float, default=0.0)
    ap.add_argument("--fdrain", type=int, default=1)
    ap.add_argument("--fgrp", type=int, default=3)
    ap.add_argument("--outf", default="sc1")
    opt = ap.parse_args()
    if opt.diagrt: opt.diag = True
    if opt.xr0 < 0:
        opt.xr0 = 0.1
        while True:
            try:
                g = G(opt); txt = g.build(); break
            except AssertionError as ex:
                if not (ex.args and (ex.args[0] == "stream left" or ex.args[0][0] == "deadline")): raise
                opt.xr0 += 0.01
                if opt.xr0 > 1: raise
    else:
        g = G(opt); txt = g.build()
    open(opt.o, "w").write(txt)
    print(f"xr0 {opt.xr0:.2f} skip {getattr(g,'skip',0)} hopcost {getattr(g,'hopcost',0)} nhops {getattr(g,'nhops',0)} fallback waits:", g.warn, {k: len(v) for k, v in g.texts.items()})
```

```python
import sys, re, argparse

NAME = "standalone__dcn_v2_cross__recsys_kernel"
SLOT = 32768
FL_OFF = 64 << 20
EP_OFF = FL_OFF + 65536
ST_OFF = 80 << 20

def vr(b, n=1, p="v"):
    return f"{p}{b}" if n == 1 else f"{p}[{b}:{b+n-1}]"
def ar(b, n=1): return vr(b, n, "a")
def sr(b, n=1): return vr(b, n, "s")

def XF(mt, s): return (mt * 2 + s) * 4
def WF(buf, s): return 64 + buf * 8 + s * 4
def X0(p, mt): return 80 + (p * 8 + mt) * 4
def SEL(h): return 208 + 4 * h
ACC_A0 = 216
ACC_V0 = 40
_acc = {}
def _init_acc():
    va, aa = ACC_V0, ACC_A0
    for nt in range(8):
        for mt in range(8):
            if nt == 7 or (nt == 6 and mt < 2):
                _acc[(mt, nt)] = ("a", aa); aa += 4
            else:
                _acc[(mt, nt)] = ("v", va); va += 4
    assert va == 256 and aa == 256
_init_acc()
def ACC(mt, nt): return _acc[(mt, nt)]

V_L16 = 0; V_XA = [1, 2]; V_WA = [3, 4]; V_WC = [5, 6]; V_XC = [7, 8]; V_CPG = 15; V_CPL = 9
V_POLL = 10; V_FLAG = 11; V_B = 12; V_ST = [13, 14]; V_T = 16; V_XT = 30; V_CAP = 36; V_WT = 37; V_BR = 38
S_DW = 4; S_TR = 5; S_E0 = 6; S_KEY = 7
S_W = 8; S_X0 = 12; S_WS = 16; S_OUT = 20; S_B = 24
S_WT = 28; S_XT = 32
S_X = 36
S_WR = 39
S_Q = 41
S_WCUR = 44; S_WL = 45; S_XB = 46; S_FB = 47; S_FOWN = 48; S_EP = 49; S_NEED = 50; S_FV = 51; S_WLM = 52
S_PA = 53; S_J = 54; S_WAVE = 55; S_RB = 56; S_LOOP = 57; S_LAYER = 58; S_ADJ = 59; S_OADJ = 60; S_WC64 = 61
S_M4 = 62; S_MASK = 65; S_EPOFF = 66; S_CNT = 67; S_CAPJ = 68; S_BOFF = 69
S_TA = 70; S_TB = 71; S_TC = 72; S_TD = 73; S_TE = 74; S_TF = 75; S_O2 = 76; S_O3 = 77; S_WR14 = 78; S_DX = 79
S_PC = 80; S_ST = 82; S_RT = 86; S_SI = 90; S_LEND = 91; S_D0 = 92
S_FQ = 96
S_TG = 99; S_TH = 100; S_M7 = 101; S_XCUR = 3; S_XTO = 28

RANK = {"S": 0, "G": 1, "D": 2, "V": 3}

class Sched:
    def __init__(self, n, maxS=3):
        self.n = n
        self.g = [[] for _ in range(n)]
        self.closedS = set()
        self.maxS = maxS
    def fits(self, g, kind):
        kinds = [k for k, _ in self.g[g]]
        if kind == "G": return len(kinds) == 0
        if "G" in kinds: return False
        nvec = sum(k in "DV" for k in kinds)
        if kind == "S":
            if g in self.closedS or kinds.count("S") >= self.maxS: return False
            return len(kinds) < 3
        return nvec < 2 and len(kinds) < 3
    def put(self, g, kind, fn): self.g[g].append((kind, fn))
    def place(self, kind, fn, lo, hi=None):
        hi = self.n - 1 if hi is None else hi
        for g in range(lo, hi + 1):
            if self.fits(g, kind):
                self.put(g, kind, fn); return g
        raise RuntimeError(f"cannot place {kind} in [{lo},{hi}]")
    def chain(self, items, lo, hi=None):
        out = []; g = lo; pk = None
        for kind, fn in items:
            if pk is not None and (RANK[kind] < RANK[pk] or kind == "G" or pk == "G"): g += 1
            g = self.place(kind, fn, g, hi)
            out.append(g); pk = kind
        return out
    def branch(self, cmpfn, brfn, lo):
        for g in range(lo, self.n - 1):
            if self.fits(g, "S") and self.fits(g + 1, "G"):
                self.put(g, "S", cmpfn); self.closedS.add(g); self.put(g + 1, "G", brfn); return g + 1
        raise RuntimeError("branch")
    def last_su(self):
        last = 0
        for g in range(self.n):
            if any(getattr(f, "su", False) for _, f in self.g[g]): last = g
        return last + 1

def mt_off(mt):
    if mt == 0: return "0", 0
    if mt < 4: return f"s{S_XT+mt}", (mt & 1) * 2048
    return f"s{[S_M4, S_M4+1, S_M4+2, S_M7][mt-4]}", 0

def blk(nt, cinit=False):
    r = []
    for mt in range(8):
        ss = (0, 1) if mt % 2 == 0 else (1, 0)
        r += [(mt, nt, ss[0], cinit), (mt, nt, ss[1], False)]
    return r

class G:
    def __init__(self, opt):
        self.opt = opt
        self.out = []
        self.vq = []; self.lq = []
        self.ool = {}
        self.slot = {}
        self.lds_own = {}
        self.xa = None; self.wa = None
        self.warn = 0
        self.stamps = []
        self.stream = []; self.stream2 = []; self.entry = {}
        self.pending = None
    def e(self, s): self.out.append(s)
    def E(self, s): return lambda: self.e(s)
    def S(self, s): return ("S", self.E(s))
    def V(self, s): return ("V", self.E(s))
    def SU(self, s, then=None):
        def f():
            self.e(s)
            if then: then()
        f.su = True
        return ("S", f)
    def label(self, n): self.out.append(n + ":")
    def vm(self, s, tag=None):
        self.e(s); self.vq.append(tag); assert len(self.vq) <= 62
    def VM(self, s, tag=None): return ("G", lambda: self.vm(s, tag))
    def lds(self, s, tag=None):
        self.e(s); self.lq.append(tag)
    def _need(self, q, tags, mx, force=None):
        idx = -1
        for i, t in enumerate(q):
            if t in tags: idx = i
        if idx < 0 and force is None: return None
        n = len(q) - 1 - idx
        if force is not None:
            assert n >= force or idx < 0, (n, force, q)
            n = force
        n = min(n, mx)
        if len(q) > n: del q[:len(q) - n]
        return n
    def wait(self, vtags=(), ltags=(), lall=False, vforce=None):
        parts = []
        n = self._need(self.vq, set(vtags), 62, vforce)
        if n is not None: parts.append(f"vmcnt({n})")
        if lall:
            parts.append("lgkmcnt(0)"); self.lq = []
        else:
            n = self._need(self.lq, set(ltags), 14)
            if n is not None: parts.append(f"lgkmcnt({n})")
        if parts: self.e("s_waitcnt " + " ".join(parts))
    def smov(self, d, s):
        def f():
            self.e(f"s_mov_b32 s{d}, s{s}"); self.slot[d] = self.slot[s]
        return ("S", f)

    def mfma(self, m):
        if m[0] == "U":
            _, p, mt, h, tb = m
            self.e(f"v_mfma_f32_16x16x32_bf16 {vr(tb+4*h,4)}, {ar(SEL(h),4)}, {ar(X0(p,mt),4)}, 0")
            return
        mt, nt, s, cinit = m
        buf = nt & 1
        tags = {("XF", mt, s), ("WF", buf, s, 0), ("WF", buf, s, 1)}
        if tags & set(self.lq):
            self.warn += 1
            self.wait(ltags=tags)
        p, r = ACC(mt, nt)
        c = vr(r, 4, p)
        if cinit and p == "v" and mt != 7: c = vr(ACC(7, nt)[1], 4)
        self.e(f"v_mfma_f32_16x16x32_bf16 {vr(r,4,p)}, {ar(WF(buf,s),4)}, {ar(XF(mt,s),4)}, {c}")
    def rd_xf(self, mt, s, want):
        def f():
            assert self.lds_own[self.xa] == want, (self.lds_own[self.xa], want)
            self.lds(f"ds_read_b128 {ar(XF(mt,s),4)}, v{V_XA[s]} offset:{mt*2048}", ("XF", mt, s))
        return f
    def rd_wf(self, nt, s, u, want, half=None):
        p, h = nt >> 1, nt & 1
        if callable(half): half = half(nt)
        off = (p >> 1 if half is None else half) * 16384 + (p & 1) * 512 + s * 8192 + u * 4096
        def f():
            if half is None: assert self.lds_own[self.wa[h]] == want, (self.lds_own[self.wa[h]], want)
            else:
                assert self.lds_half[(self.wa[h], half)] == want + (p >> 1,), (self.lds_half, self.wa[h], half, want, nt)
                assert want + (p >> 1,) in self.landed
            self.lds(f"ds_read_b64_tr_b16 {ar(WF(h,s)+2*u,2)}, v{V_WA[h]} offset:{off}", ("WF", h, s, u))
        return f
    def dma_items(self, what, sdst, form):
        items = []
        for i in range(8):
            if i == 0: items.append(self.SU(f"s_mov_b32 m0, s{sdst}", lambda: self.lds_own.__setitem__(self.slot[sdst], what)))
            if i == 4:
                def chk(): assert self.lds_own[self.slot[sdst]] == what
                items.append(self.SU(f"s_add_u32 m0, s{sdst}, 0x1000", chk))
            off = f" offset:{(i&3)*1024}" if i & 3 else ""
            if form == "W":
                so = "0" if i < 2 else f"s{S_WT+(i>>1)}"
                s = f"buffer_load_dwordx4 v{V_WC[i&1]}, {sr(S_W,4)}, {so} offen{off} lds"
            elif form == "X0":
                so = "0" if i < 2 else f"s{S_XT+(i>>1)}"
                s = f"buffer_load_dwordx4 v{V_XC[i&1]}, {sr(S_X0,4)}, {so} offen{off} {self.opt.x0f} lds"
            else:
                so = "0" if i < 2 else f"s{S_XT+(i>>1)}"
                s = f"buffer_load_dwordx4 v{V_XC[i&1]}, {sr(S_X0,4)}, {so} offen{off} sc1 lds"
            items.append(self.VM(s, what))
        return items
    def place_dma(self, sc, items, lo, pace):
        g = lo; prev = -1; pend = None
        for kind, fn in items:
            if kind == "S": pend = fn; continue
            g0 = max(int(g), prev + 1)
            if pend is not None:
                gs = sc.place("S", pend, max(prev + 1, g0 - 2, 0)); g0 = max(g0, gs + 1); pend = None
            prev = sc.place("G", fn, g0)
            g += pace
        return prev
    def w_setup(self, tidreg, base):
        return [self.S(f"s_lshl_b32 s{S_TA}, s{tidreg}, 17"), self.S(f"s_add_u32 s{S_TA}, s{S_TA}, s{base}"),
                self.S(f"s_sub_u32 s{S_TB}, s{S_TA}, s{S_WCUR}"), self.S(f"s_mov_b32 s{S_WCUR}, s{S_TA}"),
                self.V(f"v_add_u32 v{V_WC[0]}, s{S_TB}, v{V_WC[0]}"), self.V(f"v_add_u32 v{V_WC[1]}, s{S_TB}, v{V_WC[1]}")]
    def x_setup(self, tidreg):
        return [self.S(f"s_lshl_b32 s{S_TE}, s{tidreg}, 7"), self.S(f"s_sub_u32 s{S_DX}, s{S_TE}, s{S_XCUR}"), self.S(f"s_mov_b32 s{S_XCUR}, s{S_TE}"),
                self.V(f"v_add_u32 v{V_XC[0]}, s{S_DX}, v{V_XC[0]}"), self.V(f"v_add_u32 v{V_XC[1]}, s{S_DX}, v{V_XC[1]}")]
    def flag_items(self):
        return [self.V(f"v_mov_b32 v{V_FLAG}, s{S_FV}"),
                self.VM(f"buffer_store_dword v{V_FLAG}, off, {sr(S_WS,4)}, s{S_FOWN} sc1", "F"),
                self.S(f"s_add_u32 s{S_FV}, s{S_FV}, 1")]
    def poll_check(self, sc, name, tag, lo):
        sl, bk = f"SLOW_{name}", f"BACK_{name}"
        def f0():
            assert tag not in self.vq
            self.e(f"v_readfirstlane_b32 s{S_TC}, v{V_POLL}")
        c = sc.chain([self.S(f"s_and_b32 s{S_TD}, s{S_Q+1}, 3"), self.S(f"s_add_u32 s{S_TD}, s{S_TD}, s{S_NEED}"),
                      ("V", f0), self.S(f"s_sub_u32 s{S_TC}, s{S_TC}, s{S_TD}")], lo)
        def br():
            self.e(f"s_cbranch_scc1 {sl}"); self.label(bk)
        gbr = sc.branch(self.E(f"s_cmp_gt_u32 s{S_TC}, 7"), br, c[-1])
        self.ool[sl] = [f"{sl}:",
                        f"buffer_load_dword v{V_POLL}, off, {sr(S_WS,4)}, s{S_PA} sc1", "s_waitcnt vmcnt(0)",
                        f"v_readfirstlane_b32 s{S_TC}, v{V_POLL}", f"s_cmp_eq_u32 s{S_CNT}, 0", f"s_cbranch_scc1 {bk}",
                        f"s_sub_u32 s{S_CNT}, s{S_CNT}, 1",
                        f"s_sub_u32 s{S_TC}, s{S_TC}, s{S_TD}", f"s_cmp_gt_u32 s{S_TC}, 7", f"s_cbranch_scc0 {bk}",
                        "s_sleep 1", f"s_branch {sl}"]
        return gbr
    def stamp(self, which):
        if self.opt.diagrt:
            if which == 1:
                self.e(f"s_memtime s[{S_ST}:{S_ST+1}]"); self.e(f"s_memrealtime s[{S_ST+2}:{S_ST+3}]")
            return
        self.e(f"s_memtime s[{S_ST+2*which}:{S_ST+2*which+1}]")
    def stamp_items(self):
        def f():
            self.e(f"s_lshl_b64 exec, 1, s{S_SI}"); self.e(f"v_mov_b32 v{V_ST[0]}, s{S_ST}"); self.e(f"v_mov_b32 v{V_ST[1]}, s{S_ST+2}")
            self.e("s_mov_b64 exec, -1"); self.e(f"s_add_u32 s{S_SI}, s{S_SI}, 1")
        return [("G", f)]
    def epi_valu(self, p, mt, tb, at, ob):
        ops = []
        for h in range(2):
            pf, r = ACC(mt, 2 * p + h)
            if pf == "a":
                for i in range(4): ops.append(f"v_accvgpr_read_b32 v{at+i}, a{r+i}")
                r = at
            for i in range(4): ops.append(f"v_mul_f32 v{tb+4*h+i}, v{tb+4*h+i}, v{r+i}")
        for d in range(4): ops.append(f"v_cvt_pk_bf16_f32 v{ob+d}, v{tb+2*d}, v{tb+2*d+1}")
        return ops
    def bunpack(self, nt, d):
        dpp = f"row_newbcast:{nt} row_mask:0xf bank_mask:0xf"
        return [f"v_mov_b32_dpp v{d[1]}, v{V_BR} {dpp}", f"v_mov_b32_dpp v{d[3]}, v{V_BR+1} {dpp}",
                f"v_lshlrev_b32 v{d[0]}, 16, v{d[1]}", f"v_and_b32 v{d[1]}, s{S_MASK}, v{d[1]}",
                f"v_lshlrev_b32 v{d[2]}, 16, v{d[3]}", f"v_and_b32 v{d[3]}, s{S_MASK}, v{d[3]}"]
    def bias_sched(self, sc, nt, g, busy):
        a0 = V_T + 10
        f = [V_T + 16 + i for i in range(4)]
        g = sc.chain([self.V(x) for x in self.bunpack(nt, f)], g)[-1]
        ops = []
        for mt in range(8):
            pf, a = ACC(mt, nt)
            if pf == "v":
                ops += [f"v_add_f32 v{a+i}, v{a+i}, v{f[i]}" for i in range(4)]
            else:
                for i in (0, 2):
                    ops += [f"v_accvgpr_read_b32 v{a0}, a{a+i}", f"v_accvgpr_read_b32 v{a0+1}, a{a+i+1}",
                            f"v_add_f32 v{a0}, v{a0}, v{f[i]}", f"v_add_f32 v{a0+1}, v{a0+1}, v{f[i+1]}",
                            f"v_accvgpr_write_b32 a{a+i}, v{a0}", f"v_accvgpr_write_b32 a{a+i+1}, v{a0+1}"]
        b0, b1 = busy
        est = g + len(ops) // 2 + len(ops) // 3 + 4
        if est < b0 - 2: lo, hi = g, b0 - 2
        else: lo, hi = max(g, b1 + 6), sc.n - 1
        return sc.chain([self.V(x) for x in ops], lo, hi)[-1]
    def bias0_ops(self, nt):
        d = ACC(7, nt)[1]
        return self.bunpack(nt, [d, d + 1, d + 2, d + 3]) + [f"v_add_f32 v{d+i}, 1.0, v{d+i}" for i in range(4)]

    def prologue(self):
        e = self.e; o = self.opt
        e("s_cmp_lt_u32 s2, 256"); e("s_cbranch_scc1 L_go"); e("s_endpgm")
        self.label("L_go")
        e("s_load_dwordx4 s[8:11], s[0:1], 0")
        e("s_load_dwordx4 s[20:23], s[0:1], 16")
        e("s_load_dwordx2 s[16:17], s[0:1], 40")
        if o.diag:
            e(f"s_memrealtime s[{S_RT}:{S_RT+1}]"); e(f"s_memtime s[{S_D0}:{S_D0+1}]")
        e(f"s_getpc_b64 s[{S_PC}:{S_PC+1}]")
        self.label("L_pc")
        e("s_lshr_b32 s3, s2, 3")
        e("v_lshrrev_b32 v16, 4, v0")
        e("v_lshl_add_u32 v16, s3, 4, v16")
        e("v_lshlrev_b32 v16, 7, v16")
        e(f"v_min_u32 v31, L_codeend-L_pc-4, v16")
        self.vm(f"global_load_dword v{V_POLL}, v31, s[{S_PC}:{S_PC+1}]", "PF")
        T = 40
        lane, m, q, r4, c4, q1, tx, tw, t0, t1, t2 = [f"v{T+i}" for i in range(11)]
        e(f"v_lshrrev_b32 {t0}, 6, v0")
        e(f"v_and_b32 {lane}, 63, v0")
        e(f"v_readfirstlane_b32 s{S_WAVE}, {t0}")
        e(f"s_and_b32 s{S_J}, s3, 3")
        e(f"s_and_b32 s{S_RB}, s2, 7"); e(f"s_lshl_b32 s{S_RB}, s{S_RB}, 3")
        e(f"s_lshr_b32 s{S_TC}, s2, 5")
        e(f"s_add_u32 s{S_RB}, s{S_RB}, s{S_TC}")
        e(f"v_and_b32 {m}, 15, {lane}"); e(f"v_lshrrev_b32 {q}, 4, {lane}")
        e(f"v_bfe_u32 {r4}, {lane}, 2, 2"); e(f"v_and_b32 {c4}, 3, {lane}")
        e(f"s_lshl_b32 s{S_TD}, s{S_RB}, 19")
        e(f"s_lshl_b32 s{S_TE}, s{S_J}, 17"); e(f"s_add_u32 s{S_TE}, s{S_TE}, s{S_TD}")
        e(f"s_lshl_b32 s{S_TF}, s{S_WAVE}, 15"); e(f"s_add_u32 s{S_TE}, s{S_TE}, s{S_TF}")
        e(f"v_and_b32 {q1}, 1, {q}")
        if o.tsplit:
            e(f"v_lshrrev_b32 {tx}, 2, {lane}"); e(f"v_lshlrev_b32 {tx}, 11, {tx}")
        else:
            e(f"v_lshrrev_b32 {tx}, 5, {lane}"); e(f"v_lshlrev_b32 {tx}, 7, {tx}"); e(f"v_bfe_u32 {t1}, {lane}, 1, 4"); e(f"v_lshl_add_u32 {tx}, {t1}, 11, {tx}")
        e(f"s_lshl_b32 s{S_CNT}, s{S_TC}, 15"); e(f"s_lshl_b32 s{S_TF}, s{S_WAVE}, 13"); e(f"s_add_u32 s{S_CNT}, s{S_CNT}, s{S_TF}")
        if o.tsplit: e(f"s_lshr_b32 s{S_CNT}, s{S_CNT}, 1")
        e(f"s_lshl_b32 s{S_BOFF}, s{S_J}, 9"); e(f"s_add_u32 s{S_CNT}, s{S_CNT}, s{S_BOFF}")
        e(f"v_lshlrev_b32 {tw}, 7, {r4}"); e(f"v_lshl_add_u32 {tw}, {q}, 11, {tw}")
        tw2 = tw
        if o.tsplit:
            tw2 = "v51"; e(f"v_and_b32 {tw2}, 0xfff, {tw}")
        e(f"s_mov_b32 s{S_X0+2}, {16384*1024*2}"); e(f"s_mov_b32 s{S_X0+3}, 0x20000")
        e(f"s_mov_b32 s{S_B+2}, {3*1024*2}"); e(f"s_mov_b32 s{S_B+3}, 0x20000")
        e(f"s_lshl_b32 s{S_EPOFF}, s{S_RB}, 7"); e(f"s_add_u32 s{S_EPOFF}, s{S_EPOFF}, {hex(EP_OFF)}")
        e("s_waitcnt lgkmcnt(0)")
        if o.diag: e(f"s_memtime s[{S_ST}:{S_ST+1}]")
        e(f"s_mov_b32 s{S_X0}, s8"); e(f"s_mov_b32 s{S_X0+1}, s9")
        def stouch():
            e(f"s_add_u32 s{S_O2}, s{S_X0}, s{S_TE}"); e(f"s_addc_u32 s{S_O3}, s{S_X0+1}, 0")
            for tl in range(o.stx):
                for r in range(16): e(f"s_load_dword s{S_DX}, s[{S_O2}:{S_O3}], {r*2048 + tl*128}")
        if o.stx and o.stpos == 0: stouch()
        if o.touch & 1: self.vm(f"buffer_load_dword v{V_POLL}, {tx}, {sr(S_X0,4)}, s{S_TE} offen {o.x0f}", "PF")
        e(f"s_mov_b32 s{S_W}, s10"); e(f"s_mov_b32 s{S_W+1}, s11"); e(f"s_mov_b32 s{S_W+2}, {3*1024*1024*2}"); e(f"s_mov_b32 s{S_W+3}, 0x20000")
        if o.touch & 2: self.vm(f"buffer_load_dword v{V_POLL}, {tw2}, {sr(S_W,4)}, s{S_CNT} offen", "PF")
        e(f"s_mov_b32 s{S_B}, s20"); e(f"s_mov_b32 s{S_B+1}, s21")
        self.vm(f"buffer_load_dword v{V_POLL}, {tw}, {sr(S_B,4)}, s{S_BOFF} offen", "PF")
        e(f"s_load_dword s{S_EP}, s[{S_WS}:{S_WS+1}], s{S_EPOFF}")
        def w0warm():
            e(f"s_lshl_b32 s{S_PA}, s2, 13"); e(f"s_lshl_b32 s{S_FV}, s{S_WAVE}, 11"); e(f"s_add_u32 s{S_PA}, s{S_PA}, s{S_FV}")
            e(f"v_lshlrev_b32 {t0}, 7, {m}")
            self.vm(f"buffer_load_dword v{V_POLL}, {t0}, {sr(S_W,4)}, s{S_PA} offen", "PF")
        if o.w0warm == 1: w0warm()
        def run(items):
            for k, f in items:
                f()
                if k == "S": e("s_nop 0")
        for r, sl in ((S_X, 0), (S_X + 1, 2), (S_X + 2, 4), (S_WR, 1), (S_WR + 1, 3)):
            e(f"s_add_u32 s{r}, s{S_TF}, {hex(sl*SLOT)}"); self.slot[r] = sl
        e(f"v_lshrrev_b32 {t1}, 3, {lane}"); e(f"v_and_b32 {t2}, 7, {lane}")
        e(f"v_lshrrev_b32 {t0}, 1, {t1}"); e(f"v_xor_b32 {t0}, {t2}, {t0}"); e(f"v_lshlrev_b32 {t0}, 4, {t0}"); e(f"v_lshl_add_u32 {t0}, {t1}, 11, {t0}")
        e(f"s_lshl_b32 s{S_PA}, s{S_WAVE}, 17"); e(f"s_add_u32 s{S_PA}, s{S_PA}, s{S_TD}")
        e(f"v_add_u32 v{V_XC[0]}, s{S_PA}, {t0}")
        e(f"v_xor_b32 v{V_XC[1]}, 64, v{V_XC[0]}"); e(f"v_add_u32 v{V_XC[1]}, {16384-1024}, v{V_XC[1]}")
        for k in range(1, 4): e(f"s_mov_b32 s{S_XT+k}, {k*32768 - (k&1)*2048}")
        xit = self.dma_items(("X", 0, 0), S_X, "X0")
        run(xit[:o.early])
        if o.stx and o.stpos == 1: stouch()
        e(f"v_lshlrev_b32 v{V_L16}, 4, {lane}")
        e(f"s_lshr_b32 s{S_TA}, s{S_WAVE}, 1"); e(f"s_and_b32 s{S_TB}, s{S_WAVE}, 1")
        for k in range(1, 4): e(f"s_mov_b32 s{S_WT+k}, {(16*(k&1) + 4*(k>>1))*2048 - (k&1)*2048}")
        e(f"s_mov_b32 s{S_OUT}, s22"); e(f"s_mov_b32 s{S_OUT+1}, s23"); e(f"s_mov_b32 s{S_OUT+2}, {16384*1024*2}"); e(f"s_mov_b32 s{S_OUT+3}, 0x20000")
        e(f"s_mov_b32 s{S_WS+2}, 0x10000000"); e(f"s_mov_b32 s{S_WS+3}, 0x20000")
        e(f"s_lshl_b32 s{S_FB}, s{S_RB}, 9"); e(f"s_add_u32 s{S_FB}, s{S_FB}, {hex(FL_OFF)}")
        e(f"s_lshl_b32 s{S_WC64}, s{S_TB}, 6"); e(f"s_add_u32 s{S_PA}, s{S_BOFF}, s{S_WC64}")
        e(f"v_lshlrev_b32 {t0}, 3, {q}"); e(f"v_add_u32 v{V_B}, s{S_PA}, {t0}")
        e(f"v_bfe_u32 {t0}, {lane}, 1, 2"); e(f"v_lshl_add_u32 v{V_B}, {t0}, 7, v{V_B}"); e(f"v_and_b32 {t0}, 1, {lane}"); e(f"v_lshl_add_u32 v{V_B}, {t0}, 5, v{V_B}")
        e(f"s_lshl_b32 s{S_PA}, s{S_TA}, 8"); e(f"s_add_u32 s{S_PA}, s{S_PA}, s{S_BOFF}")
        e(f"s_lshl_b32 s{S_FV}, s{S_TB}, 16"); e(f"s_add_u32 s{S_PA}, s{S_PA}, s{S_FV}")
        if not o.wr128:
            e(f"v_lshlrev_b32 {t0}, 4, {c4}"); e(f"v_lshl_add_u32 {t0}, {q}, 6, {t0}"); e(f"v_lshl_add_u32 {t0}, {r4}, 11, {t0}")
        else:
            e(f"v_lshlrev_b32 {t0}, 2, {q1}"); e(f"v_xor_b32 {t0}, {t2}, {t0}"); e(f"v_lshlrev_b32 {t0}, 4, {t0}")
            e(f"v_lshrrev_b32 {tx}, 5, {lane}"); e(f"v_lshl_add_u32 {t0}, {tx}, 7, {t0}")
            e(f"v_and_b32 {tx}, 3, {t1}"); e(f"v_lshl_add_u32 {t0}, {tx}, 11, {t0}")
        e(f"v_add_u32 v{V_WC[0]}, s{S_PA}, {t0}")
        e(f"v_xor_b32 v{V_WC[1]}, 32, v{V_WC[0]}"); e(f"v_add_u32 v{V_WC[1]}, {16384-1024}, v{V_WC[1]}")
        e(f"v_lshrrev_b32 {t0}, 1, {m}"); e(f"v_xor_b32 {t0}, {q}, {t0}"); e(f"v_lshlrev_b32 {t0}, 4, {t0}"); e(f"v_lshl_add_u32 {t0}, {m}, 7, {t0}")
        e(f"s_lshl_b32 s{S_WR14}, s{S_TA}, 14")
        e(f"v_add_u32 v{V_XA[0]}, s{S_WR14}, {t0}"); e(f"v_xor_b32 v{V_XA[1]}, 64, v{V_XA[0]}")
        self.xa = 0
        if not o.wr128:
            e(f"v_lshlrev_b32 {t0}, 10, {q}"); e(f"v_lshl_add_u32 {t0}, {r4}, 6, {t0}"); e(f"v_lshl_add_u32 {t0}, {q1}, 5, {t0}"); e(f"v_lshl_add_u32 {t0}, {c4}, 3, {t0}")
            e(f"s_lshl_b32 s{S_PA}, s{S_TB}, 8"); e(f"s_add_u32 s{S_PA}, s{S_PA}, {SLOT}")
            e(f"v_add_u32 v{V_WA[0]}, s{S_PA}, {t0}")
        else:
            e(f"v_and_b32 {t0}, 2, {r4}"); e(f"v_or_b32 {t0}, {t0}, {q1}"); e(f"v_lshlrev_b32 {t0}, 5, {t0}"); e(f"v_xor_b32 {t0}, s{S_WC64}, {t0}")
            e(f"v_lshl_add_u32 {t0}, {q}, 10, {t0}"); e(f"v_lshl_add_u32 {t0}, {r4}, 7, {t0}"); e(f"v_lshl_add_u32 {t0}, {c4}, 3, {t0}")
            e(f"v_add_u32 v{V_WA[0]}, {SLOT}, {t0}")
        e(f"v_xor_b32 v{V_WA[1]}, 32, v{V_WA[0]}")
        self.wa = [1, 1]
        e(f"v_and_b32 {t1}, 1, {m}"); e(f"v_lshlrev_b32 {t1}, 4, {t1}"); e(f"v_mov_b32 {t2}, 0x3f80"); e(f"v_lshlrev_b32 {t1}, {t1}, {t2}")
        e(f"v_lshlrev_b32 {t2}, 3, {q}"); e(f"v_sub_u32 {t2}, {m}, {t2}"); e(f"v_ashrrev_i32 {t2}, 1, {t2}")
        misc = [f"s_mov_b32 s{S_M4}, 0x20000", f"s_mov_b32 s{S_M4+1}, 0x28000", f"s_mov_b32 s{S_M4+2}, 0x30000", f"s_mov_b32 s{S_MASK}, 0xffff0000",
                f"s_mov_b32 s{S_WL}, 0", f"s_mov_b32 s{S_Q}, 1", f"s_mov_b32 s{S_M7}, 0x38000",
                f"s_lshl_b32 s{S_FOWN}, s{S_J}, 7", f"s_add_u32 s{S_FOWN}, s{S_FOWN}, s{S_FB}", f"s_mul_i32 s{S_OADJ}, s{S_TB}, 7168",
                f"s_mov_b32 s{S_ADJ}, 8192", f"s_mov_b32 s{S_LAYER}, 0", f"s_mov_b32 s{S_CAPJ}, s{S_J}", f"s_mov_b32 s{S_LOOP}, 1",
                f"s_mov_b32 s{S_WCUR}, 0", f"s_mov_b32 s{S_LEND}, 15"]
        for h in range(2):
            for d in range(4):
                e(f"v_cmp_eq_u32 vcc, {d - 8*h}, {t2}"); e(misc.pop(0)); e(misc.pop(0))
                e(f"v_cndmask_b32 {t0}, 0, {t1}, vcc"); e(f"v_accvgpr_write_b32 a{SEL(h)+d}, {t0}")
        for d in range(3):
            if o.asc:
                e(f"s_cmp_ge_u32 {d}, s{S_J}"); e(f"s_cselect_b32 s{S_FQ+d}, {4*(d+1)}, {4*d}")
            else:
                e(f"s_add_u32 s{S_FQ+d}, s{S_J}, {d+1}"); e(f"s_and_b32 s{S_FQ+d}, s{S_FQ+d}, 3"); e(f"s_lshl_b32 s{S_FQ+d}, s{S_FQ+d}, 2")
        e(f"s_lshl_b32 s{S_PA}, s{S_WC64}, 11"); e(f"s_lshl_b32 s{S_FV}, s{S_WC64}, 8"); e(f"s_sub_u32 s{S_PA}, s{S_PA}, s{S_FV}")
        e(f"s_lshl_b32 s{S_FV}, s{S_J}, 9"); e(f"s_sub_u32 s{S_PA}, s{S_FV}, s{S_PA}")
        e(f"v_xor_b32 v{V_CPG}, s{S_WC64}, v{V_XC[0]}"); e(f"v_add_u32 v{V_CPG}, s{S_PA}, v{V_CPG}")
        e(f"s_mov_b32 s{S_XCUR}, {15*128}")
        e(f"v_lshrrev_b32 v{V_XT}, 2, {lane}"); e(f"v_lshlrev_b32 v{V_XT}, 11, v{V_XT}"); e(f"s_add_u32 s{S_XTO}, s{S_TE}, {3*128}")
        e(f"s_lshr_b32 s{S_XB}, s2, 5"); e(f"s_lshl_b32 s{S_XB}, s{S_XB}, 2"); e(f"s_add_u32 s{S_XB}, s{S_XB}, s{S_WAVE}"); e(f"s_lshl_b32 s{S_XB}, s{S_XB}, 12")
        e(f"s_add_u32 s{S_XB}, s{S_XB}, s{S_FV}")
        e(f"s_lshl_b32 s{S_PA}, s2, 14"); e(f"s_lshl_b32 s{S_FV}, s{S_WAVE}, 12"); e(f"s_add_u32 s{S_PA}, s{S_PA}, s{S_FV}")
        e(f"s_add_u32 s{S_PA}, s{S_PA}, 0x200000")
        e(f"v_min_u32 v{V_CPL}, 2, {q}"); e(f"v_lshlrev_b32 v{V_CPL}, 7, v{V_CPL}")
        e(f"s_mov_b32 s{S_BOFF}, 2048")
        if o.diag:
            e(f"v_mov_b32 v{V_ST[0]}, 0"); e(f"v_mov_b32 v{V_ST[1]}, 0")
        if o.hops:
            e("s_mov_b64 exec, 0")
            for w in range(1, 4):
                e(f"s_cmp_eq_u32 s{S_WAVE}, {w}"); e(f"s_cbranch_scc1 HOP{w}")
            e("s_branch HOP0")
            self.label("HOPEND")
            e("s_mov_b64 exec, -1")
        def touch1():
            e(f"s_add_u32 s{S_CNT}, s{S_CNT}, 0x20000")
            self.vm(f"buffer_load_dword v{V_POLL}, {tw2}, {sr(S_W,4)}, s{S_CNT} offen", "PF")
            self.vm(f"buffer_load_dword v{V_POLL}, {tx}, {sr(S_X0,4)}, s{S_TE} offen offset:128 {o.x0f}", "PF")
        run(xit[o.early:])
        if o.tsplit == 2: touch1()
        self.vm(f"buffer_load_dwordx2 {vr(V_BR,2)}, v{V_B}, {sr(S_B,4)}, 0 offen", ("B", 0))
        run(self.dma_items(("W", 0, 0), S_WR, "W"))
        if o.tsplit == 1: touch1()
        if o.prex:
            for i in range(2): e(f"v_add_u32 v{V_XC[i]}, 128, v{V_XC[i]}")
            self.x1 = self.dma_items(("X", 0, 1), S_X + 1, "X0")
            run(self.x1[:o.prex]); self.x1 = self.x1[o.prex:]
        if o.w0warm == 2:
            e(f"s_mov_b32 s{S_TA}, s{S_PA}"); w0warm(); e(f"s_mov_b32 s{S_PA}, s{S_TA}")
        if o.diag: e(f"s_memtime s[{S_ST+2}:{S_ST+3}]")
        e(f"s_mov_b32 s{S_CNT}, 0x100000")
        self.wait(vtags=[("B", 0)])
        for nt in range(o.b0pre):
            for x in self.bias0_ops(nt): e(x)
        if o.diag:
            e("s_waitcnt lgkmcnt(0)")
            e(f"v_writelane_b32 v{V_ST[0]}, s{S_D0}, 63")
            e(f"v_writelane_b32 v{V_ST[0]}, s{S_ST}, 60"); e(f"v_writelane_b32 v{V_ST[1]}, s{S_ST+2}, 60")
            e(f"s_mov_b32 s{S_SI}, 0")

    def seg_open(self, name, vt, vforce, prev_nt, nts, X, W, half=None, reload=True, cinit=False, maxS=3, barrier=True, nextnt=None, entry=False, spread=False):
        o = self.opt
        dg = o.diag and not (o.diagc and name in ("G0", "G1"))
        if dg: self.stamps.append(name)
        if self.pending: self.mfma(self.pending)
        if dg: self.stamp(0)
        if barrier and entry:
            k = len(self.out)
            if o.diagc and o.diagrt: self.stamp(1)
            self.wait(vtags=vt, lall=True)
            if o.diagc and o.diagrt:
                self.stamp_items()[0][1](); self.stamps.append(name + "L")
            pre = self.out[:] + [f"s_branch LB_{name}"]
            assert self.entry.setdefault(name, pre) == pre
            self.out[k:] = [f"s_waitcnt vmcnt({vforce}) lgkmcnt(0)", f"LB_{name}:", "s_barrier"]
        elif barrier:
            self.wait(vtags=vt, lall=True, vforce=vforce)
            if name in self.entry: self.label(f"LB_{name}")
            self.e("s_barrier")
        else:
            self.wait(ltags=[("WF", prev_nt & 1, s, u) for s in range(2) for u in range(2)])
        if dg: self.stamp(1)
        base = ([] if prev_nt is None else blk(prev_nt)) + sum((blk(nt, cinit) for nt in nts), [])
        off = 0 if prev_nt is None else 16
        self.pending = base[-1] if nts else None
        mf = base[:-1] if nts else base
        sc = Sched(len(mf), maxS)
        sc.mf = mf; sc.off = off; sc.dg = dg
        su = [(s, u) for s in range(2) for u in range(2)]
        if prev_nt is None:
            for s, u in su: self.rd_wf(nts[0], s, u, W, half)()
            for mt in range(8):
                for s in range(2): self.rd_xf(mt, s, X)()
            self.wait(ltags=[("XF", 1, 0), ("XF", 1, 1)])
        elif nts:
            xs = o.xsp if spread else 1.0
            if reload and xs > 1.0:
                rp = [max(i, int(i * xs + o.xso)) for i in range(16)]
                for i in range(16):
                    mt, _, s, _ = base[i]
                    sc.put(rp[i], "D", self.rd_xf(mt, s, X))
                holes = [g for g in range(0, 12) if g not in rp]
                holes = (holes + [1, 3, 5, 7])[:4]
                for k, (s, u) in enumerate(su): sc.put(sorted(holes)[k], "D", self.rd_wf(nts[0], s, u, W, half))
                sc.rp = rp
            else:
                if reload:
                    for i in range(16):
                        mt, _, s, _ = base[i]
                        sc.put(i, "D", self.rd_xf(mt, s, X))
                for k, (s, u) in enumerate(su): sc.put(2 * k, "D", self.rd_wf(nts[0], s, u, W, half))
            sc.put(15, "S", lambda: self.wait(ltags=[("XF", 1, 0), ("XF", 1, 1)] + [("WF", nts[0] & 1, s, u) for s, u in su]))
        if reload and nts:
            if hasattr(sc, "rp"):
                for mt, upto in ((2, 3), (4, 4), (5, 5), (6, 6), (7, 7)):
                    sc.put(off + 2 * mt - 1, "S", lambda m=upto: self.wait(ltags=[("XF", m, 0), ("XF", m, 1)]))
            else:
                for mt in (2, 4, 6):
                    sc.put(off + 2 * mt - 1, "S", lambda mt=mt: self.wait(ltags=[("XF", mt + 1, 0), ("XF", mt + 1, 1)]))
        sc.blkwait = []
        seq = list(nts[1:]) + [nextnt]
        for b, nt in enumerate(seq):
            if b < len(seq) - 1:
                g = off + 16 * (b + 1) - 1
                sc.put(g, "S", lambda nt=nt: self.wait(ltags=[("WF", nt & 1, s, u) for s, u in su] + [("C",)]))
                sc.blkwait.append(g)
        if nts:
            for b, nt in enumerate(seq):
                if b == 0 and hasattr(sc, "rp"):
                    holes = [g for g in range(16, 27) if g not in sc.rp and g not in o.xkeep][:4]
                    for k, (s, u) in enumerate(su): sc.put(holes[k], "D", self.rd_wf(nt, s, u, W, half))
                    continue
                for k, (s, u) in enumerate(su): sc.place("D", self.rd_wf(nt, s, u, W, half), off + 16 * b + 2 * k)
        return sc
    def seg_emit(self, sc, gbase=None, check=None, stamp_at=50):
        if sc.dg: sc.chain(self.stamp_items(), stamp_at)
        for g, m in enumerate(sc.mf):
            if check: check(g, m)
            self.mfma(m)
            self.merge_gap(sc, g, None if gbase is None else gbase + g)
    def xa_items(self, new, old, nx):
        def f0():
            self.e(f"v_add_u32 v{V_XA[0]}, s{S_DX}, v{V_XA[0]}"); self.xa = nx["x"]
        return [self.SU(f"s_sub_u32 s{S_DX}, s{new}, s{old}", lambda: nx.update(x=self.slot[new])),
                ("V", f0), self.V(f"v_add_u32 v{V_XA[1]}, s{S_DX}, v{V_XA[1]}")]
    def wa_sched(self, sc, new, old, g_s, g_v):
        nx = {}
        def wa(h):
            def f():
                self.e(f"v_add_u32 v{V_WA[h]}, s{S_DW}, v{V_WA[h]}"); self.wa[h] = nx["w"]
            return f
        k, f = self.SU(f"s_sub_u32 s{S_DW}, s{new}, s{old}", lambda: nx.update(w=self.slot[new]))
        sc.place(k, f, g_s, g_v - 1)
        sc.chain([("V", wa(0)), ("V", wa(1))], g_v)

    def body(self, kind, layer, t):
        o = self.opt
        X = ("X", layer, t); W = ("W", layer, t)
        first = kind == "E0"
        vt = [X, W, ("P", layer, t + 2)]
        if kind == "S1": vt.append(("B", layer))
        vforce = {"G0": min(9 + (1 if o.xtouch else 0) + (1 if o.tpf & 2 else 0), 10 + (1 if o.xtouch else 0)), "G1": 8, "T14": 8}.get(kind)
        sc = self.seg_open(kind, vt, vforce, None if first else 7, list(range(7)), X, W, cinit=first,
                           maxS=1 if kind in ("T15", "H0") else 3, nextnt=7, entry=((kind == "G1" and t == 4 and o.entry) or (kind == "G0" and t == 1 and o.entry > 1)),
                           spread=kind in ("G0", "G1", "T14", "S1", "S2", "S3"))
        n, off = sc.n, sc.off
        if kind in ("G0", "G1"):
            sc.put(n - 1, "G", lambda: None)
            sc.put(n - 2, "S", self.E(f"s_cmp_lt_u32 s{S_LOOP}, " + ("14" if kind == "G0" else f"s{S_LEND}"))); sc.closedS.add(n - 2)
        self.gcap = 0
        if kind in ("E0", "G0", "T14", "T15"):
            gB = off + 94 if kind != "T15" else off + 1
            def br():
                self.e(f"s_cbranch_scc1 CAP_{kind}"); self.e("@CAP")
            sc.put(gB, "G", br)
            sc.put(gB - 1, "S", self.E(f"s_cmp_eq_u32 s{S_TC}, s{S_CAPJ}" if kind == "G0" else f"s_cmp_eq_u32 s{S_CAPJ}, {t >> 2}")); sc.closedS.add(gB - 1)
            if kind == "G0": sc.put(gB - 2, "S", self.E(f"s_lshr_b32 s{S_TC}, s{S_LOOP}, 2"))
            for k in range(8): sc.put(gB + 1 + k, "D", self.E(f"@RD{k}"))
            sc.put(gB + 9, "G", self.E("@RET"))
            self.gcap = sc.place("V", self.E(f"v_xor_b32 v{V_CAP}, s{S_WC64}, v{V_XA[0]}"), 9, off if kind == "T15" else None)
        pace = 4 if first else o.pace
        gw = o.gw if hasattr(sc, "rp") else off + 1
        lastG = gw
        if kind == "H0":
            def xb():
                assert not any(x and x[0] == "XF" for x in self.lq)
                self.e("s_barrier")
            gb = sc.place("S", xb, off + 12)
            gw = gb + 1
        if kind == "G1":
            sc.put(0, "S", self.E(f"s_cmp_eq_u32 s{S_LOOP}, s{S_KEY}")); sc.closedS.add(0)
            sc.put(1, "S", self.E(f"s_cselect_b32 s{S_TG}, s{S_Q+1}, s{S_Q}")); sc.put(1, "S", self.E(f"s_cselect_b32 s{S_TH}, s{S_WLM}, s{S_WL}"))
            c = sc.chain(self.w_setup(S_TG, S_TH), 2)
        elif kind != "T15":
            c = sc.chain(self.w_setup(S_Q, S_WL), max(0, gw - 14))
        if first and o.prex and self.x1:
            gw = self.place_dma(sc, self.x1, 1, pace) + 4
        if kind != "T15":
            lastG = self.place_dma(sc, self.dma_items(("W", layer, t + 1), S_WR + 1, "W"), max(gw, c[-1] + 1), pace if kind != "H0" else o.paceh)
        gx = lastG + int(pace)
        if kind in ("S1", "S2", "S3", "G1"):
            if kind != "S1":
                gbr = self.poll_check(sc, kind, ("P", layer, t + 2), off + 8)
                assert gbr < lastG - 1
            c = sc.chain([self.S(f"s_lshr_b32 s{S_PA}, s{S_Q+2}, 2"), self.S(f"s_lshl_b32 s{S_PA}, s{S_PA}, 7"),
                          self.S(f"s_add_u32 s{S_PA}, s{S_PA}, s{S_FB}")], max(gbr + 1, o.pollpos) if (o.pollpos and kind == "G1") else lastG - 1)
            k, f = self.VM(f"buffer_load_dword v{V_POLL}, off, {sr(S_WS,4)}, s{S_PA} sc1", ("P", layer, t + 3))
            if o.pollpos and kind == "G1": gp = sc.place(k, f, c[-1] + 1)
            else:
                gp = sc.place(k, f, max(c[-1], lastG) + 2)
                gx = max(gx, gp + 2); lastG = gp
        if o.wpf and kind in ("E0", "S2"):
            sc.chain([self.V(f"v_and_b32 v{V_WT}, 0x180, v{V_L16}"), self.V(f"v_lshrrev_b32 v{V_FLAG}, 9, v{V_L16}"),
                      self.V(f"v_lshl_add_u32 v{V_WT}, v{V_FLAG}, 11, v{V_WT}")], 9, 40)
        if (o.wpf & 1 and kind == "G0") or (o.wpf & 2 and kind in ("S2", "S3", "G1")):
            it = [self.S(f"s_add_u32 s{S_TG}, s{S_Q}, {o.wpd}")] if kind == "G0" else []
            it += [self.S(f"s_lshl_b32 s{S_TG}, s{S_TG if kind == 'G0' else S_Q+2}, 17"), self.S(f"s_add_u32 s{S_TG}, s{S_TG}, s{S_WL}"), self.S(f"s_add_u32 s{S_TG}, s{S_TG}, s{S_XB}")]
            c = sc.chain(it, off + 26)
            k, f = self.VM(f"buffer_load_dword v{V_POLL if kind == 'G0' else V_CAP}, v{V_WT}, {sr(S_W,4)}, s{S_TG} offen", "PW")
            lastG = sc.place(k, f, max(c[-1], lastG) + 2); gx = max(gx, lastG + 2)
        xadv = [self.V(f"v_add_u32 v{V_XC[i]}, 128, v{V_XC[i]}") for i in range(2)]
        if first:
            if not o.prex:
                sc.chain(xadv, 4)
                lastG = self.place_dma(sc, self.dma_items(("X", 0, 1), S_X + 1, "X0"), gx, pace)
            else: pace = 6
            c = sc.chain(xadv, lastG + 1)
            lastG = self.place_dma(sc, self.dma_items(("X", 0, 2), S_X + 2, "X0"), max(lastG + pace, c[-1] + 1), pace)
        if kind == "G0":
            ww = [self.VM(f"buffer_load_dword v{V_POLL}, v{V_CPL}, {sr(S_W,4)}, s{S_PA} offen", "PW"), self.S(f"s_add_u32 s{S_PA}, s{S_PA}, {384 if o.wwarm else 0}")]
            if not o.xtouch: sc.chain(ww, lastG + 3)
            sc.chain(xadv, off + 20)
            lastG = self.place_dma(sc, self.dma_items(("X", layer, t + 2), S_X + 2, "X0"), gx, o.pacex)
            if o.xtouch: lastG = sc.chain(ww, lastG + 3)[0]
        if kind in ("E0", "G0") and o.xtouch:
            sc.chain([self.VM(f"buffer_load_dword v{V_POLL}, v{V_XT}, {sr(S_X0,4)}, s{S_XTO} offen nt", "PW"),
                      self.S(f"s_add_u32 s{S_XTO}, s{S_XTO}, 128")], lastG + 3)
        if kind == "G0" and o.tpf & 2:
            sc.chain([self.VM(f"global_load_dword v{V_POLL}, v31, s[{S_PC}:{S_PC+1}]", "PW")], lastG + 6)
        if kind == "S1" and o.tpf & 1:
            sc.chain([self.S(f"s_lshr_b32 s{S_TE}, s2, 3"), self.S(f"s_lshl_b32 s{S_TE}, s{S_TE}, 9"), self.S(f"s_lshl_b32 s{S_TF}, s{S_WAVE}, 7"),
                      self.S(f"s_add_u32 s{S_TE}, s{S_TE}, s{S_TF}"), self.S(f"s_add_u32 s{S_TE}, s{S_TE}, L_TAIL-L_pc"),
                      self.S(f"s_min_u32 s{S_TE}, s{S_TE}, L_codeend-L_pc-4"), self.V(f"v_mov_b32 v{V_FLAG}, s{S_TE}"),
                      self.VM(f"global_load_dword v{V_FLAG}, v{V_FLAG}, s[{S_PC}:{S_PC+1}]", "PW")], off + 4, lastG - 1)
        if kind in ("S2", "S3", "G1"):
            c = sc.chain(self.x_setup(S_Q + 1), 8, off - 1)
            assert c[-1] < gx
            lastG = self.place_dma(sc, self.dma_items(("X", layer, t + 2), S_X + 2, "XE"), gx, o.pacex)
        if kind == "T14":
            it = [self.S(f"s_mov_b32 s{S_WT+k}, {k*16384 - (k&1)*2048}") for k in range(1, 4)]
            it += [self.S(f"s_add_u32 s{S_WL}, s{S_WL}, 0x200000"), self.S(f"s_lshl_b32 s{S_Q}, s{S_J}, 2"),
                   self.V(f"v_subrev_u32 v{V_WC[1]}, s{S_ADJ}, v{V_WC[1]}"), self.S(f"s_mov_b32 s{S_ADJ}, 0")]
            it += self.w_setup(S_Q, S_WL)
            c = sc.chain(it, lastG + 1)
            lastG = self.place_dma(sc, self.dma_items(("W", layer + 1, 0), S_X + 2, "W"), max(gx, c[-1] + 1), pace - 1)
        if kind == "T15" and o.wl2:
            t0, t1 = V_T + 16, V_T + 17
            it = [self.V(f"v_and_b32 v{t0}, 0x30, v{V_L16}"), self.V(f"v_lshlrev_b32 v{t0}, 3, v{t0}"),
                  self.V(f"v_bfe_u32 v{t1}, v{V_L16}, 6, 3"), self.V(f"v_lshl_add_u32 v{t1}, v{t1}, 11, v{t0}"), self.V(f"v_and_b32 v{t0}, 0xfff, v{t1}")]
            sc.chain(it, 1, 15)
            sc.maxS = 2
            it = [self.S(f"s_lshr_b32 s{S_TE}, s2, 5"), self.S(f"s_lshl_b32 s{S_TE}, s{S_TE}, 2"), self.S(f"s_add_u32 s{S_TE}, s{S_TE}, s{S_WAVE}"),
                  self.S(f"s_lshl_b32 s{S_TF}, s{S_J}, 9"), self.S(f"s_add_u32 s{S_TF}, s{S_TF}, s{S_WL}"),
                  self.S(f"s_lshl_b32 s{S_TG}, s{S_TE}, 14"), self.S(f"s_add_u32 s{S_TG}, s{S_TG}, s{S_TF}"), self.S(f"s_lshl_b32 s{S_TH}, s{S_J}, 19"),
                  self.S(f"s_add_u32 s{S_TG}, s{S_TG}, s{S_TH}"),
                  self.S(f"s_lshl_b32 s{S_TE}, s{S_TE}, 12"), self.S(f"s_add_u32 s{S_TE}, s{S_TE}, s{S_TF}"),
                  self.VM(f"buffer_load_dword v{V_POLL}, v{t1}, {sr(S_W,4)}, s{S_TG} offen", "PW")]
            for d in range(o.wl2):
                it += [self.S(f"s_lshl_b32 s{S_TH}, s{S_FQ+d}, 17"), self.S(f"s_add_u32 s{S_TH}, s{S_TH}, s{S_TE}"),
                       self.VM(f"buffer_load_dword v{V_POLL}, v{t0}, {sr(S_W,4)}, s{S_TH} offen", "PW")]
            sc.chain(it, 2, 30)
            sc.maxS = 1
        if kind == "T15":
            sc.put(0, "S", self.E(f"s_cmp_eq_u32 s{S_LAYER}, 0")); sc.closedS.add(0)
            if o.e1out: sc.put(1, "S", self.E(f"s_cselect_b64 s[{S_X0}:{S_X0+1}], s[{S_OUT}:{S_OUT+1}], s[{S_WS}:{S_WS+1}]"))
            else:
                sc.put(1, "S", self.E(f"s_cselect_b32 s{S_TE}, 0x2000000, 0"))
                def f64():
                    self.e(f"s_add_u32 s{S_X0}, s{S_WS}, s{S_TE}"); self.e(f"s_addc_u32 s{S_X0+1}, s{S_WS+1}, 0")
                sc.put(17, "G", f64)
            sc.chain([self.S(f"s_lshl_b32 s{S_TD}, s{S_LAYER}, 2"), self.S(f"s_add_u32 s{S_NEED}, s{S_NEED}, s{S_TD}"),
                      self.S(f"s_mov_b32 s{S_FV}, s{S_NEED}"),
                      self.S(f"s_lshr_b32 s{S_TD}, s{S_WAVE}, 1"), self.S(f"s_mul_i32 s{S_TD}, s{S_TD}, s{S_LAYER}"), self.S(f"s_mul_i32 s{S_KEY}, s{S_TD}, 12"),
                      self.S(f"s_sub_u32 s{S_WLM}, s{S_WL}, 256"), self.S(f"s_sub_u32 s{S_LEND}, s{S_LEND}, 1"),
                      self.S(f"s_add_u32 s{S_LAYER}, s{S_LAYER}, 1")], 2, 60)
        if first:
            if o.finit == 0:
                sc.chain([self.V(f"v_lshrrev_b32 v{V_FLAG}, 1, v{V_L16}"), self.V(f"v_and_b32 v{V_FLAG}, 0x180, v{V_FLAG}"),
                          self.VM(f"buffer_load_dword v{V_POLL}, v{V_FLAG}, {sr(S_WS,4)}, s{S_FB} offen sc1", "PW")], 68)
                sc.chain([self.S(f"s_add_u32 s{S_NEED}, s{S_EP}, 1"), self.S(f"s_mov_b32 s{S_FV}, s{S_EP}")] + self.flag_items(), 98)
            else:
                sc.chain([self.S(f"s_add_u32 s{S_NEED}, s{S_EP}, 1"), self.V(f"v_mov_b32 v{V_FLAG}, s{S_EP}"), self.V(f"v_bfe_u32 v{V_T+16}, v{V_L16}, 2, 7"),
                          self.VM(f"buffer_store_dword v{V_FLAG}, v{V_T+16}, {sr(S_WS,4)}, s{S_FOWN} offen sc1", "F")], 70)
        if kind == "H0":
            def fb():
                self.wait(vtags=[("S", layer, 0)]); self.e("s_barrier")
            g = sc.place("G", fb, off + o.flag0)
            sc.chain(self.flag_items(), g + 1)
        if kind == "S3":
            assert ("S", layer, 1) not in self.vq
            sc.chain(self.flag_items(), off + 3)
        if kind == "G1":
            assert ("S", layer, min(t - 2, 3)) not in self.vq
            if o.fdrop:
                def sel():
                    self.e(f"s_cmp_le_u32 s{S_LOOP}, 5"); self.e(f"s_cselect_b32 s{S_TF}, 0, 0x40000000")
                g1 = [g for g in range(11, 40) if len(sc.g[g]) <= 1 and sc.fits(g, "S")][0]
                sc.put(g1, "S", sel); sc.put(g1, "S", lambda: None)
                g1 = sc.place("V", self.E(f"v_mov_b32 v{V_T}, s{S_TF}"), g1 + 1)
                sc.chain([self.V(f"v_mov_b32 v{V_FLAG}, s{S_FV}"), self.VM(f"buffer_store_dword v{V_FLAG}, v{V_T}, {sr(S_WS,4)}, s{S_FOWN} offen sc1", "F"),
                          self.S(f"s_add_u32 s{S_FV}, s{S_FV}, 1")], g1)
            else:
                sc.chain(self.flag_items() + [self.S(f"s_sub_u32 s{S_TF}, s{S_FV}, s{S_NEED}"), self.S(f"s_min_u32 s{S_TF}, s{S_TF}, 3"),
                                              self.S(f"s_add_u32 s{S_FV}, s{S_TF}, s{S_NEED}")], off + 3)
        CT = V_T + 12
        if kind in ("S1", "S2", "S3"):
            jobs = [mt for mt in range(8) if not self.is_direct(t, mt)]
            def chk(): assert self.lds_own[self.slot[S_X]] == ("X", layer, t)
            c = sc.chain([self.SU(f"s_sub_u32 s{S_E0}, s{S_X}, s{S_OADJ}", chk), self.V(f"v_add_u32 v{V_CPL}, s{S_E0}, v{V_L16}")], 8)
            gprev = c[-1]
            w0 = int(o.cpos[t - 1])
            assert w0 + len(jobs) <= 6
            for k, mt in enumerate(jobs):
                w = sc.blkwait[k + w0]
                sc.place("D", lambda mt=mt: self.lds(f"ds_read_b128 {vr(CT,4)}, v{V_CPL} offset:{mt*2048}", ("C",)), max(gprev + 1, w - 9), w - 1)
                def st(mt=mt):
                    assert ("C",) not in self.lq
                    so, im = mt_off(mt)
                    self.vm(f"buffer_store_dwordx4 {vr(CT,4)}, v{V_CPG}, {sr(S_X0,4)}, {so} offen offset:{im + t*128} sc1", ("S", layer, t))
                gprev = sc.place("G", st, w + 1)
        gcap = self.gcap
        gXA = max(gcap + 1, off + 2, sc.rp[-1] + 1 if hasattr(sc, "rp") else 0)
        nx = {}
        if kind == "T15":
            def f0():
                self.e(f"v_add_u32 v{V_XA[0]}, s{S_TA}, v{V_L16}"); self.xa = nx["x"]
            sc.chain([self.S(f"s_lshl_b32 s{S_TA}, s{S_WC64}, 7"),
                      self.SU(f"s_sub_u32 s{S_TA}, s{S_X+2}, s{S_TA}", lambda: nx.update(x=self.slot[S_X + 2])),
                      ("V", f0), self.V(f"v_add_u32 v{V_XA[1]}, 1024, v{V_XA[0]}"), self.S(f"s_mov_b32 s{S_CAPJ}, 77")], off + 11)
            wnext = S_X + 1
        else:
            sc.chain(self.xa_items(S_X + 1, S_X, nx), gXA)
            wnext = S_WR + 1
        self.wa_sched(sc, wnext, S_WR, gXA, off + 16 * 6 + 8)
        if kind == "T15":
            sc.chain([self.VM(f"buffer_load_dwordx2 {vr(V_BR,2)}, v{V_B}, {sr(S_B,4)}, s{S_BOFF} offen", ("B", layer + 1)),
                      self.S(f"s_add_u32 s{S_BOFF}, s{S_BOFF}, 2048")], off + 12, off + 24)
        if kind in ("S1", "S2", "S3", "T14"):
            g = 4 if kind == "S1" else 0
            for nt in {"S1": [5, 6, 0], "S2": [4, 1], "S3": [3, 2], "T14": [7]}[kind]:
                b0 = 0 if nt == 7 else off + 16 * nt
                g = self.bias_sched(sc, nt, g, (b0, b0 + 16))
        if first:
            g = 0
            for nt in range(o.b0pre, 7):
                g = sc.chain([self.V(x) for x in self.bias0_ops(nt)], g, 16 * nt - 2)[-1]
            ops = []
            for mt in range(2): ops += [f"v_accvgpr_write_b32 a{ACC(mt,6)[1]+i}, v{ACC(7,6)[1]+i}" for i in range(4)]
            for mt in range(8): ops += [f"v_accvgpr_write_b32 a{ACC(mt,7)[1]+i}, 1.0" for i in range(4)]
            sc.chain([self.V(x) for x in ops], g, 96 - 2)
        self.slot[S_TR] = None
        if kind == "T15":
            rot = [self.smov(S_O2, S_X), self.smov(S_O3, S_WR), self.smov(S_WR, S_X + 1), self.smov(S_X + 1, S_WR + 1),
                   self.smov(S_X, S_X + 2), self.smov(S_WR + 1, S_X + 2)]
        elif kind == "H0":
            rot = [self.smov(S_X, S_X + 1), self.smov(S_X + 1, S_O2), self.smov(S_X + 2, S_O3),
                   self.smov(S_TR, S_WR), self.smov(S_WR, S_WR + 1), self.smov(S_WR + 1, S_TR)]
        else:
            rot = [self.smov(S_TR, S_X), self.smov(S_X, S_X + 1), self.smov(S_X + 1, S_X + 2), self.smov(S_X + 2, S_TR),
                   self.smov(S_TR, S_WR), self.smov(S_WR, S_WR + 1), self.smov(S_WR + 1, S_TR)]
        q = []
        if kind in ("E0", "G0", "T15", "H0"): q = [self.S(f"s_add_u32 s{S_Q}, s{S_Q}, 1")]
        if kind == "H0": q += [self.S(f"s_add_u32 s{S_Q+1}, s{S_Q}, 1"), self.S(f"s_mov_b32 s{S_Q+2}, s{S_FQ}")]
        if kind in ("S1", "S2"):
            q = [self.S(f"s_mov_b32 s{S_Q}, s{S_Q+1}"), self.S(f"s_mov_b32 s{S_Q+1}, s{S_Q+2}"), self.S(f"s_mov_b32 s{S_Q+2}, s{S_FQ+t}")]
        if kind in ("S3", "G1"):
            q = [self.S(f"s_add_u32 s{S_TE}, s{S_Q}, 1"), self.S(f"s_mov_b32 s{S_Q}, s{S_Q+1}"), self.S(f"s_mov_b32 s{S_Q+1}, s{S_Q+2}"),
                 self.S(f"s_mov_b32 s{S_Q+2}, s{S_TE}")]
        if kind == "S3": q += [self.S(f"s_mov_b32 s{S_LOOP}, 4")]
        sc.chain(q, max(gx, off + 60))
        if kind == "G1": rot += [self.S(f"s_add_u32 s{S_LOOP}, s{S_LOOP}, 1")]
        if kind == "G0": sc.place("S", self.E(f"s_add_u32 s{S_LOOP}, s{S_LOOP}, 1"), off + 104, n - 3)
        sc.chain(rot, max(sc.last_su(), 108 if kind in ("T15", "H0") else 0))
        if kind == "T15": self.make_stream(layer + 1)
        def check(g, m):
            if kind == "H0" and g >= off: assert (m[1] >> 1) * 8 + m[0] in self.epi_done, ("deadline", m)
        self.xr = o.xr15 if kind == "T15" else o.xr0
        self.seg_emit(sc, {"T15": 0, "H0": 128}.get(kind), check, 86 if first else off + 50)
        if "@CAP" in self.out: self.make_cap(kind, t)
        if kind == "T15": assert all(f in self.wr_done for f in range(8))
        if kind == "H0": assert not self.stream, "stream left"

    def make_cap(self, kind, t):
        i0 = self.out.index("@CAP"); i1 = self.out.index("@RET")
        reg = self.out[i0 + 1:i1]
        assert not any(x.endswith(":") or "branch" in x or "barrier" in x for x in reg)
        main = [x for x in reg if not x.startswith("@") and x != "s_nop 0"]
        self.out[i0:i1 + 1] = main + [f"CB_{kind}:"]
        def blkc(p):
            return [f"ds_read_b128 {ar(X0(p,int(x[3])),4)}, v{V_CAP} offset:{int(x[3])*2048}" if x.startswith("@RD") else x for x in reg] + [f"s_branch CB_{kind}"]
        cap = f"CAP_{kind}"
        if kind == "G0":
            b = [f"{cap}:", f"s_and_b32 s{S_TC}, s{S_LOOP}, 3"]
            for p in range(1, 4): b += [f"s_cmp_eq_u32 s{S_TC}, {p}", f"s_cbranch_scc1 {cap}{p}"]
            b += blkc(0)
            for p in range(1, 4): b += [f"{cap}{p}:"] + blkc(p)
            self.ool[cap] = b
        else:
            self.ool[cap] = [f"{cap}:"] + blkc(t & 3)
    def is_direct(self, p, mt):
        n = int(self.opt.direct[p])
        return ((mt + 1) * n) // 8 != (mt * n) // 8
    def make_stream(self, nl):
        st = []
        self.epi_done = set(); self.wr_done = set()
        tbf = lambda f: V_T + 8 * (f % 2)
        U = lambda f, h: ("U", ("U", f // 8, f % 8, h, tbf(f)))
        self.stream = [U(f, h) + (30,) for f in range(2) for h in range(2)]
        self.credit = 0.0
        for f in range(32):
            p, mt = f // 8, f % 8
            tb = tbf(f)
            pos = 38 + 32 * p + 2 * mt
            sreg = {0: S_X + 2, 1: S_WR + 1, 2: S_O2, 3: S_O3}[p]
            ops = self.epi_valu(p, mt, tb, V_T + 16, tb)
            it = []
            for k, x in enumerate(ops):
                kd = "V" if (k < 4 or f == 31) else "A"
                if k == len(ops) - 5: it.append((kd, lambda x=x, f=f: (self.e(x), self.epi_done.add(f)), pos))
                else: it.append((kd, self.E(x), pos))
            if p >= 2: pos = max(pos, 129)
            if mt == 0:
                def f0(p=p, sreg=sreg):
                    self.lds_own[self.slot[sreg]] = ("X", nl, p)
                    self.e(f"s_sub_u32 s{S_E0}, s{sreg}, s{S_OADJ}")
                a = [("S", f0, pos), ("A", self.E(f"v_add_u32 v{V_CPL}, s{S_E0}, v{V_L16}"), pos)]
                it = it[:6] + a + it[6:] if p != 2 else it + a
            if self.is_direct(p, mt):
                so, im = mt_off(mt)
                it += [("R", lambda p=p, im=im, tb=tb, so=so: self.vm(f"buffer_store_dwordx4 {vr(tb,4)}, v{V_CPG}, {sr(S_X0,4)}, {so} offen offset:{im + p*128} sc1", ("S", nl, p)), pos)]
            if f + 2 < 32: it += [U(f + 2, 1) + (pos,)]
            it += [("X", lambda f=f, mt=mt, tb=tb: (self.lds(f"ds_write_b128 v{V_CPL}, {vr(tb,4)} offset:{mt*2048}", ("O",)), self.wr_done.add(f)), pos)]
            if f + 2 < 32: it += [U(f + 2, 0) + (pos,)]
            self.stream += it

    def merge_gap(self, sc, g, gpos):
        fixed = sc.g[g]
        self.gnow = gpos
        while True:
            cur = list(fixed)
            excl = any(k == "G" for k, _ in cur)
            hasR = False
            newgap = None
            top = -1
            if gpos is not None: self.credit = min(self.credit + self.xr, 2.0)
            def cnt(): return sum(k in "DV" for k, _ in cur), sum(getattr(f, "w", 1) for k, f in cur)
            def free():
                nvec, tot = cnt()
                if hasR: return nvec < 2
                return not excl and nvec < 2 and tot < 3
            def lookahead():
                i = 0
                while i < len(self.stream) and self.stream[i][0] in "RUX": i += 1
                while i < len(self.stream) and self.stream[i][0] == "V" and self.stream[i][2] <= gpos + 1 and free():
                    cur.append(("V", self.stream.pop(i)[1]))
            if gpos is not None and fixed is sc.g[g] and not (self.stream and getattr(self.stream[0][1], "pub", False)):
                while self.stream2 and self.stream2[0][2] <= gpos + 1:
                    k, fn, pos = self.stream2[0]
                    st = fn.ready(gpos)
                    if st == "skip": self.stream2.pop(0); continue
                    if st:
                        grp = [self.stream2.pop(0)]
                        if k == "S": grp.append(self.stream2.pop(0))
                        self.stream[0:0] = grp
                    break
            while gpos is not None and self.stream:
                k, fn, pos = self.stream[0]
                if pos > gpos + 1:
                    break
                if k == "U" and len(self.stream) > 1 and hasattr(self.stream[1][1], "ok") and not self.stream[1][1].ok():
                    lookahead(); break
                if k == "U":
                    lookahead()
                    newgap = fn; self.stream.pop(0); break
                if k == "X":
                    nxt = [kk for gg in (g + 1, g + 2) if gg < sc.n for kk, _ in sc.g[gg]]
                    follow_u = len(self.stream) > 1 and self.stream[1][0] == "U"
                    if any(kk != "S" for kk, _ in cur) or (not follow_u and "D" in nxt and fixed is sc.g[g]):
                        lookahead(); break
                    cur.append(("G", fn)); excl = True; self.stream.pop(0); continue
                if k == "R":
                    if excl or top > 0:
                        lookahead(); break
                    cur.append(("G", fn)); excl = True; hasR = True; top = 1; self.stream.pop(0); continue
                if k in "SZ":
                    w = 2 if k == "Z" else 1
                    if excl or top > 0 or g in sc.closedS or cnt()[1] + w > 3: break
                    fn.w = w
                    cur.append(("S", fn)); top = 0; self.stream.pop(0); continue
                if k == "D":
                    if top > 2 or not free(): break
                    cur.append(("D", fn)); top = 2; self.stream.pop(0); continue
                ok = free()
                if not ok and not excl and self.credit >= 1.0 and cnt()[0] < 3 and cnt()[1] < 4:
                    self.credit -= 1.0; ok = True
                if not ok: break
                cur.append(("V", fn)); top = 3; self.stream.pop(0)
            ks = [k for k, _ in cur]
            if ks.count("D") == 2 and "S" not in ks and "G" not in ks: cur.append(("S", self.E("s_nop 0")))
            for k, fn in sorted(cur, key=lambda x: RANK[x[0]]): fn()
            if newgap is None: return
            self.mfma(newgap)
            fixed = []

    def tail(self):
        e = self.e; o = self.opt
        L = 2
        VW, VR = V_POLL, V_CPL
        CT = V_T + 20; AT = V_T + 16
        tbf = lambda f: V_T + 8 * (f % 2)
        U = lambda f, h: ("U", ("U", f // 8, f % 8, h, tbf(f)))
        depth = lambda f: 4 if f < 8 else 8
        unit = lambda f: (f % depth(f)) * 4096
        area = {0: (S_WR, 0), 1: (S_X + 1, 0), 2: (S_X, 0), 3: (S_X + 1, 0)}
        def rdback(f, p, r, k):
            assert f in self.visible and self.ra == f // 8
            self.lds(f"ds_read_b64 {vr(r+2*k,2,p)}, v{VR} offset:{unit(f) + 256*k}", ("C", f))
        def store(f, dst):
            assert ("C", f) not in self.lq
            so, im = mt_off(f % 8)
            self.vm(f"buffer_store_dwordx4 {dst}, v{V_CPG}, {sr(S_OUT,4)}, {so} offen offset:{im + (f//8)*128} {o.outf}", "SO")
            self.stored.add(f)
        def wr_ok(f):
            prev = {0: f - 4, 1: -1, 2: -1, 3: f - 16}[f // 8]
            return (prev < 0 or prev in self.freed) and (f // 8) in self.area_free
        def wr(f):
            assert wr_ok(f) and self.wa_ == f // 8
            self.lds(f"ds_write_b128 v{VW}, {vr(tbf(f),4)} offset:{unit(f)}", ("Y", f))
            self.written.add(f); self.wpos = self.gnow; self.w_at[f] = self.gnow
        self.written = set(); self.visible = set(); self.freed = set(); self.rd_at = {}
        self.lds_half = {}; self.landed = set(); self.area_free = set(); self.area_next = set()
        self.wpos = 0; self.ra = 0; self.wa_ = 0; self.w_at = {}
        def at_barrier():
            self.visible |= {f for f in self.written if ("Y", f) not in self.lq}
            self.freed |= {f for f in self.rd_at if ("C", f) not in self.lq}
            self.landed |= {v for v in self.lds_half.values() if v not in self.vq}
            if not any(x and x[0] == "XF" for x in self.lq): self.area_free |= self.area_next
        def bar(vtags=(), every=False):
            self.wait(vtags=vtags, ltags=[("Y", x) for x in self.written if every or self.gnow >= self.w_at[x] + o.zdist]); e("s_barrier"); at_barrier()
        def switch(reg, p, attr):
            t = S_TC if attr == "ra" else S_TD
            def f():
                e(f"v_add_u32 v{reg}, s{t}, v{reg}"); setattr(self, attr, p)
            return [("S", self.E(f"s_sub_u32 s{t}, s{area[p][0]}, s{area[p-1][0]}")), ("A", f)]
        def half_dma(tile, H, tidreg, sreg, half):
            what = ("W", L, tile, H)
            it = [self.S(f"s_add_u32 s{S_TH}, s{S_WLM}, {H*256}")] + self.w_setup(tidreg, S_TH)
            d = [self.SU(f"s_add_u32 m0, s{sreg}, s{S_O2+half}", lambda: self.lds_half.__setitem__((self.slot[sreg], half), what))]
            for i in range(4):
                so = "0" if i < 2 else f"s{S_WT+1}"
                d.append(self.VM(f"buffer_load_dwordx4 v{V_WC[i&1]}, {sr(S_W,4)}, {so} offen" + (f" offset:{i*1024}" if i else "") + " lds", what))
            return it, d
        W13, W14, W15 = ("W", L, 13), ("W", L, 14), ("W", L, 15)
        X13, X14, X15 = ("X", L, 13), ("X", L, 14), ("X", L, 15)
        self.lds_half[(self.slot[S_WR], 0)] = W13 + (0,); self.lds_half[(self.slot[S_WR], 1)] = W14 + (0,)
        sc = self.seg_open("A13", [X13, W13, ("P", L, 15)], 8, 7, [0, 1, 2], X13, W13, half=0, nextnt=3); at_barrier()
        gbr = self.poll_check(sc, "A13", ("P", L, 15), 0)
        sc.chain(self.x_setup(S_Q + 1), 3, 15)
        c = sc.chain([self.S(f"s_lshl_b32 s{S_TA}, s{S_WAVE}, 15"), self.S(f"s_lshl_b32 s{S_TB}, s{S_WC64}, 10"), self.S(f"s_sub_u32 s{S_TA}, s{S_TA}, s{S_TB}"),
                      self.S(f"s_lshr_b32 s{S_TB}, s{S_WR14}, 6"), self.S(f"s_sub_u32 s{S_TA}, s{S_TA}, s{S_TB}"), self.S(f"s_add_u32 s{S_WLM}, s{S_WL}, s{S_TA}"),
                      self.S(f"s_lshl_b32 s{S_TA}, s{S_WAVE}, 12"), self.S(f"s_sub_u32 s{S_O2}, 0, s{S_TA}"), self.S(f"s_add_u32 s{S_O3}, s{S_O2}, 0x4000"),
                      self.S(f"s_sub_u32 s{S_Q+2}, s{S_Q+2}, 1")], 5)
        it, d = half_dma(15, 0, S_Q + 1, S_WR + 1, 0)
        c = sc.chain(it, c[-1])
        lastG = self.place_dma(sc, d, max(gbr + 1, c[-1] + 1), o.pacet)
        lastG = self.place_dma(sc, self.dma_items(X15, S_X + 2, "XE"), lastG + 3, o.pacet)
        nx = {}
        sc.chain(self.xa_items(S_X + 1, S_X, nx), 18)
        a, b, c_, d_ = [f"v{V_T+i}" for i in range(4)]
        adr = [f"v_lshrrev_b32 {a}, 9, v{V_L16}", f"v_lshlrev_b32 {a}, 6, {a}", f"v_add_u32 {a}, {a}, v{V_L16}", f"v_add_u32 {a}, s{S_KEY}, {a}",
               f"v_and_b32 {a}, 0xf0, {a}", f"v_and_b32 {b}, 0x300, v{V_L16}", f"v_add3_u32 v{VW}, {a}, {b}, s{S_E0}",
               f"v_and_b32 {c_}, 0x70, v{V_CPG}",
               f"v_lshrrev_b32 {a}, 3, v{V_L16}", f"v_and_b32 {a}, 0x70, {a}", f"v_add_u32 {a}, s{S_KEY}, {a}",
               f"v_and_b32 {b}, 64, {c_}", f"v_lshl_add_u32 {a}, {b}, 1, {a}", f"v_and_b32 {d_}, 16, {c_}", f"v_lshl_add_u32 {a}, {d_}, 2, {a}",
               f"v_and_b32 {a}, 0xf0, {a}", f"v_lshl_add_u32 {a}, {b}, 4, {a}", f"v_lshl_add_u32 {a}, {d_}, 5, {a}",
               f"v_bfe_u32 {b}, {c_}, 5, 1", f"v_lshl_add_u32 {a}, {b}, 3, {a}", f"v_add_u32 v{VR}, s{S_TF}, {a}"]
        sc.chain([self.S(f"s_lshl_b32 s{S_KEY}, s{S_WC64}, 1"), self.S(f"s_mul_i32 s{S_E0}, s{S_WAVE}, 7168"), self.SU(f"s_sub_u32 s{S_E0}, s{S_WR}, s{S_E0}"),
                  self.S(f"s_lshl_b32 s{S_TF}, s{S_WC64}, 4"), self.S(f"s_sub_u32 s{S_TF}, s{S_E0}, s{S_TF}")], 20, 36)
        self.stream = [self.V(x) + (40,) for x in adr]
        self.stream += [self.V(f"v_mov_b32_dpp v{V_XC[i]}, v{V_BR+i} row_newbcast:7 row_mask:0xf bank_mask:0xf") + (64,) for i in range(2)]
        self.credit = 0.0; self.xr = 0.0
        E0 = [134, 230, 326, 390]
        ear = lambda f: E0[f // 8] + 2 * (f % 8)
        self.stream += [U(f, h) + (126,) for f in range(2) for h in range(2)]
        nf = o.nft
        for f in range(nf):
            pos = ear(f)
            it = [("V" if k < 4 else "A", self.E(x)) for k, x in enumerate(self.epi_valu(f // 8, f % 8, tbf(f), None, tbf(f)))]
            if f % 8 == 0 and f: it = it[:6] + switch(VW, f // 8, "wa_") + it[6:]
            w0 = lambda f=f: wr(f)
            w0.ok = lambda f=f: wr_ok(f)
            it += [U(f + 2, 1), ("X", w0), U(f + 2, 0)]
            self.stream += [x + (pos,) for x in it]
        def pub(f, pos):
            def z():
                bar(); assert f in self.visible
            z.ready = lambda g: "skip" if f in self.visible else (f in self.written and g >= self.w_at[f] + o.zdist)
            def r0(): rdback(f, "v", CT, 0)
            def r1(): rdback(f, "v", CT, 1); self.rd_at[f] = self.gnow
            r0.ready = r1.ready = lambda g: g >= self.wpos + 2
            def wt(): self.wait(ltags=[("C", f)])
            wt.ready = lambda g: f in self.rd_at and g >= self.rd_at[f] + o.rdist
            def st(): store(f, vr(CT, 4))
            it = []
            if f % 8 == 0 and f:
                it = switch(VR, f // 8, "ra"); it[0][1].ready = lambda g: True
            it += [("Z", z), ("D", r0), ("D", r1), ("S", wt), ("R", st)]
            for k, x in it: x.pub = True
            return [x + (pos,) for x in it]
        self.stream2 = []
        for f in range(nf): self.stream2 += pub(f, E0[f // 8] + (o.spo + o.sp * (f % 8) if f < 16 else o.spo2 + o.sp2 * (f % 8)))
        self.seg_emit(sc, 0, stamp_at=58)
        self.area_next = {0}
        sc = self.seg_open("C14", [X14], None, 3, [0], X14, W14, half=1, nextnt=1); at_barrier()
        it, d = half_dma(15, 1, S_Q + 1, S_WR + 1, 1)
        c = sc.chain(it, 1)
        self.place_dma(sc, d, 17, 3)
        sc.chain(self.xa_items(S_X + 2, S_X + 1, nx), 16)
        self.wa_sched(sc, S_WR + 1, S_WR, 8, 24)
        self.seg_emit(sc, 64, stamp_at=28)
        sc = self.seg_open("F15", [X15, W15 + (0,)], None, 1, [0, 1, 2, 3, 4], X15, W15, half=lambda nt: nt >> 2, nextnt=5, maxS=1); at_barrier()
        it, d = half_dma(14, 1, S_Q, S_WR + 1, 0)
        c = sc.chain(it, 1)
        sc.g[63].append(("S", lambda: bar([W15 + (1,)])))
        self.place_dma(sc, d, 65, 4)
        sc.chain(self.xa_items(S_X + 1, S_X + 2, nx), 18)
        self.wa_sched(sc, S_WR, S_WR + 1, 20, 16 + 64 + 8)
        self.seg_emit(sc, 96, stamp_at=24)
        sc = self.seg_open("D14", [], None, 5, [2, 3, 4, 5, 6], X14, W14, half=lambda nt: 1 - (nt >> 2), nextnt=7, maxS=1, barrier=False)
        it, d = half_dma(13, 1, S_Q + 2, S_WR, 1)
        c = sc.chain(it, 1)
        def b3():
            self.area_next = {1, 3}; bar([W14 + (1,)])
        sc.g[31].append(("S", b3))
        self.place_dma(sc, d, 33, 4)
        sc.chain(self.xa_items(S_X, S_X + 1, nx), 18)
        self.wa_sched(sc, S_WR + 1, S_WR, 10, 24)
        self.wa_sched(sc, S_WR, S_WR + 1, 50, 16 + 64 + 8)
        self.seg_emit(sc, 192, stamp_at=26)
        sc = self.seg_open("B13", [W13 + (1,)], None, 7, [4, 5, 6], X13, W13, half=1, nextnt=7, maxS=1); at_barrier()
        def b4():
            self.area_next = {2}; bar()
        sc.g[31].append(("S", b4))
        sc.chain(self.xa_items(S_X + 2, S_X, nx), 18)
        self.wa_sched(sc, S_WR + 1, S_WR, 20, 16 + 32 + 8)
        self.seg_emit(sc, 288, stamp_at=24)
        sc = self.seg_open("E15", [], None, 7, [6], X15, W15, half=1, nextnt=7, maxS=1, barrier=False)
        self.seg_emit(sc, 352, stamp_at=24)
        sc = self.seg_open("FIN", [], None, 7, [], None, None, barrier=False, maxS=1)
        self.seg_emit(sc, 384, stamp_at=8)
        for k, fn, pos in self.stream:
            if k == "U": self.mfma(fn)
            else: fn()
        self.stream = []
        while self.stream2 and self.stream2[0][0] in "DSR" and not (self.stream2[0][0] == "S" and self.stream2[1][0] == "A"):
            self.stream2.pop(0)[1]()
        self.stream2 = []
        e("s_nop 7")
        todo = []
        dreg = lambda x: XF(x % 8, (x // 8) & 1)
        def publish():
            bar(every=True)
            for x in sorted(self.visible):
                if x not in self.rd_at:
                    if x // 8 != self.ra:
                        for k, fn in switch(VR, x // 8, "ra"): fn()
                    rdback(x, "a", dreg(x), 0); rdback(x, "a", dreg(x), 1); self.rd_at[x] = 0; todo.append(x)
        def drain(n):
            for _ in range(n):
                if todo:
                    x = todo.pop(0); self.wait(ltags=[("C", x)]); store(x, ar(dreg(x), 4))
        assert nf <= 24
        B7 = [V_WC[0], V_XC[0], V_WC[1], V_XC[1]]
        e(f"v_lshlrev_b32 v{B7[0]}, 16, v{B7[1]}"); e(f"v_and_b32 v{B7[1]}, s{S_MASK}, v{B7[1]}")
        e(f"v_lshlrev_b32 v{B7[2]}, 16, v{B7[3]}"); e(f"v_and_b32 v{B7[3]}, s{S_MASK}, v{B7[3]}")
        if self.written - set(self.rd_at): publish()
        for f in range(nf, 32):
            p, mt = f // 8, f % 8
            tb = tbf(f)
            if mt == 0:
                for k, fn in switch(VW, p, "wa_"): fn()
            for h in (1, 0):
                pf, r = ACC(mt, 2 * p + h)
                if pf == "a":
                    for i in range(4): e(f"v_accvgpr_read_b32 v{AT+i}, a{r+i}")
                    if h == 1:
                        for i in range(4): e(f"v_add_f32 v{AT+i}, v{AT+i}, v{B7[i]}")
                    r = AT
                for d2 in range(2): e(f"v_pk_mul_f32 {vr(tb+4*h+2*d2,2)}, {vr(tb+4*h+2*d2,2)}, {vr(r+2*d2,2)}")
            for d2 in range(4): e(f"v_cvt_pk_bf16_f32 v{tb+d2}, v{tb+2*d2}, v{tb+2*d2+1}")
            if f + 2 < 32: self.mfma(U(f + 2, 1)[1])
            wr(f)
            if f + 2 < 32: self.mfma(U(f + 2, 0)[1])
            drain(o.fdrain)
            if (f - nf) % o.fgrp == o.fgrp - 1 or f == 31: publish()
        drain(32)
        assert self.stored == set(range(32))
        e(f"s_or_b32 s{S_TA}, s{S_J}, s{S_WAVE}"); e(f"s_cmp_lg_u32 s{S_TA}, 0"); e("s_cbranch_scc1 L_fin")
        e(f"s_add_u32 s{S_TA}, s{S_EP}, 16"); e(f"v_mov_b32 v{V_FLAG}, s{S_TA}")
        e(f"buffer_store_dword v{V_FLAG}, off, {sr(S_WS,4)}, s{S_EPOFF} sc1")
        self.label("L_fin")
        if o.diag:
            e(f"s_memtime s[{S_ST}:{S_ST+1}]"); e("s_waitcnt vmcnt(0)"); e(f"s_memtime s[{S_ST+2}:{S_ST+3}]")
            e(f"s_memrealtime s[{S_RT+2}:{S_RT+3}]"); e("s_waitcnt lgkmcnt(0)")
            e(f"v_writelane_b32 v{V_ST[0]}, s{S_ST}, 62"); e(f"v_writelane_b32 v{V_ST[1]}, s{S_ST+2}, 62")
            e(f"v_writelane_b32 v{V_ST[0]}, s{S_RT}, 61"); e(f"v_writelane_b32 v{V_ST[1]}, s{S_RT+2}, 61")
            e(f"s_lshl_b32 s{S_TA}, s2, 2"); e(f"s_add_u32 s{S_TA}, s{S_TA}, s{S_WAVE}"); e(f"s_lshl_b32 s{S_TA}, s{S_TA}, 9")
            e(f"s_add_u32 s{S_TA}, s{S_TA}, {hex(ST_OFF)}"); e("v_lshrrev_b32 v0, 2, v0")
            e(f"buffer_store_dword v{V_ST[0]}, v0, {sr(S_WS,4)}, s{S_TA} offen")
            e(f"buffer_store_dword v{V_ST[1]}, v0, {sr(S_WS,4)}, s{S_TA} offen offset:256")
            if o.echo:
                a, b = o.echo.split(",")
                if a == "pad":
                    e(f"s_add_u32 s{S_TB}, s{S_RT}, {b}")
                else:
                    reg = V_ST[0] if o.echoc else V_ST[1]
                    if a == "s": e(f"s_mov_b32 s{S_TA}, s{S_D0 if o.echoc else S_RT}")
                    else: e(f"v_readlane_b32 s{S_TA}, v{reg}, {a}")
                    if b == "e": e(f"s_mov_b32 s{S_TB}, s{S_ST+2 if o.echoc else S_RT+2}")
                    else: e(f"v_readlane_b32 s{S_TB}, v{reg}, {b}")
                    e("s_nop 4")
                    e(f"s_sub_u32 s{S_TB}, s{S_TB}, s{S_TA}")
                    if o.echoc: e(f"s_lshr_b32 s{S_TB}, s{S_TB}, 4")
                    e(f"s_min_u32 s{S_TB}, s{S_TB}, 20000")
                    e(f"s_add_u32 s{S_TB}, s{S_TB}, s{S_RT+2}")
                self.label("L_echo")
                e(f"s_memrealtime s[{S_ST}:{S_ST+1}]"); e("s_waitcnt lgkmcnt(0)")
                e(f"s_sub_u32 s{S_ST}, s{S_ST}, s{S_TB}"); e(f"s_cmp_lt_i32 s{S_ST}, 0"); e("s_cbranch_scc1 L_echo")
        e("s_endpgm")

    def sizes(self, lines):
        import subprocess, tempfile, os
        labels = set()
        for l in lines:
            m = re.search(r"(?:branch\w*|L_\w+-)\s*(\w+)", l)
        src = '.amdgcn_target "amdgcn-amd-amdhsa--gfx950"\n.text\n'
        body = []
        for l in lines:
            if l.endswith(":"): continue
            if "branch" in l: l = "s_nop 0"
            l = re.sub(r"L_\w+-L_pc(-4)?", "0x12345", l)
            body.append(l)
        with tempfile.TemporaryDirectory() as d:
            open(d + "/a.s", "w").write(src + "\n".join(body) + "\n")
            subprocess.run(["clang", "-x", "assembler", "-target", "amdgcn-amd-amdhsa", "-mcpu=gfx950", "-c", d + "/a.s", "-o", d + "/a.o"], check=True)
            dis = subprocess.run(["llvm-objdump", "-d", "--mcpu=gfx950", d + "/a.o"], capture_output=True, text=True).stdout
        sz = [4 * len(l.split(": ")[-1].split()) for l in dis.splitlines() if "//" in l]
        assert len(sz) == len(body), (len(sz), len(body))
        out = []; k = 0
        for l in lines:
            if l.endswith(":"): out.append(0)
            else: out.append(sz[k]); k += 1
        return out
    def add_hops(self, o, caps):
        sz = self.sizes(o)
        wt = []; w = 1
        for l in o:
            if l == "L_G0:": w = 13
            if l == "L_T14:": w = 2
            if l == "L_G1:": w = 19
            if l == "L_TAIL:": w = 1
            wt.append(w)
        def layout(X):
            out = ["@HOP"]; pos = X + 4; nextpage = 4096; cost = 0
            i = 0
            while i < len(o):
                if pos >= nextpage:
                    best = None; p = pos; j = i
                    while j < len(o) and p < nextpage + 56:
                        if j > 0 and o[j - 1].startswith("v_mfma"):
                            n = 0
                            while j + n < len(o) and not o[j + n].startswith("v_mfma"): n += 1
                            if best is None or n < best[0]: best = (n, j)
                        p += sz[j]; j += 1
                    tgt = best[1] if best else i
                    cost += wt[tgt] * (2 + 10 * min(best[0] if best else 1, 1))
                    while i < tgt:
                        out.append(o[i]); pos += sz[i]; i += 1
                    out.append("@HOP"); pos += 4
                    nextpage += 4096
                    continue
                if o[i] in ("L_G0:", "L_G1:") and self.opt.algn >= 0:
                    need = ((self.opt.algn - pos) % 64) // 4
                    k = len(out)
                    if out[-1].startswith("s_branch"):
                        out += ["s_nop 0"] * need; pos += 4 * need; need = 0
                    while need > 0:
                        while not (out[k - 1].startswith("v_mfma") and (k == len(out) or out[k].startswith("v_mfma"))):
                            k -= 1
                            if out[k] == "@HOP": cost += 1000
                        m = min(need, 3)
                        out[k:k] = ["s_nop 0"] * m; pos += 4 * m; need -= m; k -= 1
                out.append(o[i]); pos += sz[i]; i += 1
            return cost + 30 * out.count("@HOP"), X, out
        cost, self.skip, out = min((layout(X) for X in range(0, 4096, 64)), key=lambda r: r[:2])
        self.hopcost = cost
        for b in caps:
            for l in b:
                out.append(l)
                if l.endswith(":") and l.startswith("CAP"): out.append("@HOP")
        n = out.count("@HOP"); k = 0; res = []
        for l in out:
            if l == "@HOP":
                res.append(f"HOP{k}:"); res.append(f"s_cbranch_execz " + (f"HOP{k+4}" if k + 4 < n else "HOPEND")); k += 1
            else: res.append(l)
        self.nhops = n
        return res

    def build(self):
        self.stored = set()
        self.prologue()
        main = self.out
        texts = {}
        def gen(kind, layer, t):
            self.out = []
            self.body(kind, layer, t)
            if kind in texts and texts[kind] != self.out:
                for a, b in zip(texts[kind], self.out):
                    if a != b: print("DIFF", kind, layer, t, a, "|", b); break
                raise RuntimeError(f"body {kind} differs at layer {layer} t {t}")
            texts[kind] = self.out
        for layer in range(3):
            for t in range(16 if layer < 2 else 13):
                if layer == 0: kind = "E0" if t == 0 else ("G0" if t < 14 else f"T{t}")
                else: kind = "H0" if t == 0 else (f"S{t}" if t < 4 else ("G1" if t < 14 else f"T{t}"))
                gen(kind, layer, t)
        self.out = []; self.tail(); texts["TAIL"] = self.out
        if self.opt.x:
            x = self.opt.x; g = []
            for l in texts["G1"]:
                if "d" in x and l.startswith("buffer_load_dwordx4"): l = "s_mov_b32 s70, 0x12345"
                if "p" in x and l.startswith("s_cbranch_scc1 SLOW"): l = "s_nop 0"
                if "p" in x and l.startswith("buffer_load_dword "): l = "s_mov_b32 s70, 0x12345"
                if "f" in x and l.startswith("buffer_store_dword "): l = "s_mov_b32 s70, 0x12345"
                if "b" in x and l == "s_barrier": l = "s_nop 0"
                if "l" in x and l.startswith("ds_read"): l = "s_mov_b32 s70, 0x12345"
                g.append(l)
            texts["G1"] = g
            if "p" in x: texts["TAIL"] = ["s_nop 0" if l.startswith("s_cbranch_scc1 SLOW") else l for l in texts["TAIL"]]
        o = texts["E0"][:]
        o += self.entry.get("G0", [])
        o += ["L_G0:"] + texts["G0"] + ["s_cbranch_scc1 L_G0"]
        o += ["L_T14:"] + texts["T14"] + texts["T15"] + texts["H0"] + texts["S1"] + texts["S2"] + texts["S3"]
        o += self.entry.get("G1", [])
        o += ["L_G1:"] + texts["G1"] + ["s_cbranch_scc1 L_G1"]
        o += [f"s_cmp_eq_u32 s{S_LAYER}, 1", "s_cbranch_scc1 L_T14"]
        o += ["L_TAIL:"] + texts["TAIL"]
        caps = [b for k, b in self.ool.items() if k.startswith("CAP")]
        slow = [b for k, b in self.ool.items() if not k.startswith("CAP")]
        if self.opt.hops:
            o = self.add_hops(o, caps)
            o = main + ["s_branch L_main"] + sum(slow, []) + [".p2align 12"] + ([f".fill {self.skip//4}, 4, 0xbf800000"] if self.skip else []) + ["L_main:"] + o
        else:
            o = main + o + sum(caps, []) + sum(slow, [])
        self.texts = texts
        hdr = open("standalone__dcn_v2_cross__recsys.s.ref").read().split("\n")
        top = [l for l in hdr if l.startswith(";") and "@launch" not in l]
        if self.opt.diag: top.append("; STAMPS " + ("RT " if self.opt.diagrt else "CY ") + " ".join(self.stamps))
        txt = "\n".join(top) + f"\n; @launch grid=(256,1,1) block=(256,1,1) lds={SLOT*5}\n"
        txt += f""".amdgcn_target "amdgcn-amd-amdhsa--gfx950"
.text
.globl {NAME}
.p2align 8
.type {NAME},@function
{NAME}:
"""
        txt += "\n".join(o) + "\nL_codeend:\n"
        txt += f""".section .rodata,"a"
.p2align 6
.amdhsa_kernel {NAME}
  .amdhsa_next_free_vgpr 512
  .amdhsa_next_free_sgpr 102
  .amdhsa_accum_offset 256
  .amdhsa_group_segment_fixed_size 0
  .amdhsa_kernarg_size 48
  .amdhsa_user_sgpr_count 2
  .amdhsa_user_sgpr_kernarg_segment_ptr 1
  .amdhsa_system_sgpr_workgroup_id_x 1
  .amdhsa_float_denorm_mode_32 3
.end_amdhsa_kernel
"""
        return txt

if __name__ == "__main__":
    ap = argparse.ArgumentParser()
    ap.add_argument("-o", default="k3.s")
    ap.add_argument("--diag", action="store_true")
    ap.add_argument("--diagrt", action="store_true")
    ap.add_argument("--diagc", action="store_true")
    ap.add_argument("--pace", type=float, default=7)
    ap.add_argument("--pacex", type=float, default=7.5)
    ap.add_argument("--paceh", type=float, default=8)
    ap.add_argument("--pacet", type=float, default=3.3)
    ap.add_argument("--xr15", type=float, default=0.2)
    ap.add_argument("--xr0", type=float, default=-1)
    ap.add_argument("--xrt", type=float, default=0.0)
    ap.add_argument("--flag0", type=int, default=60)
    ap.add_argument("--early", type=int, default=10)
    ap.add_argument("--direct", default="8444")
    ap.add_argument("--cpos", default="222")
    ap.add_argument("--asc", type=int, default=1)
    ap.add_argument("--xtouch", type=int, default=0)
    ap.add_argument("--tpf", type=int, default=0)
    ap.add_argument("--hops", type=int, default=1)
    ap.add_argument("--b0pre", type=int, default=4)
    ap.add_argument("--xsp", type=float, default=1.2)
    ap.add_argument("--xso", type=float, default=3.0)
    ap.add_argument("--gw", type=int, default=14)
    ap.add_argument("--xkeep", type=lambda x: [int(y) for y in x.split(",")], default=[])
    ap.add_argument("--entry", type=int, default=1)
    ap.add_argument("--finit", type=int, default=1)
    ap.add_argument("--stx", type=int, default=0)
    ap.add_argument("--stpos", type=int, default=0)
    ap.add_argument("--fdrop", type=int, default=1)
    ap.add_argument("--pollpos", type=int, default=0)
    ap.add_argument("--wpf", type=int, default=0)
    ap.add_argument("--wpd", type=int, default=2)
    ap.add_argument("--algn", type=int, default=16)
    ap.add_argument("--tsplit", type=int, default=0)
    ap.add_argument("--touch", type=int, default=2)
    ap.add_argument("--prex", type=int, default=0)
    ap.add_argument("--zdist", type=int, default=5)
    ap.add_argument("--rdist", type=int, default=8)
    ap.add_argument("--wl2", type=int, default=0)
    ap.add_argument("--echo", default="")
    ap.add_argument("--echoc", type=int, default=0)
    ap.add_argument("--x0f", default="nt")
    ap.add_argument("--e1out", type=int, default=1)
    ap.add_argument("--wwarm", type=int, default=1)
    ap.add_argument("--w0warm", type=int, default=0)
    ap.add_argument("-x", default="")
    ap.add_argument("--wr128", type=int, default=0)
    ap.add_argument("--nft", type=int, default=24)
    ap.add_argument("--sp", type=float, default=10)
    ap.add_argument("--spo", type=float, default=22)
    ap.add_argument("--sp2", type=float, default=9)
    ap.add_argument("--spo2", type=float, default=16)
    ap.add_argument("--xrb", type=float, default=0.0)
    ap.add_argument("--fdrain", type=int, default=1)
    ap.add_argument("--fgrp", type=int, default=3)
    ap.add_argument("--outf", default="sc1")
    opt = ap.parse_args()
    if opt.diagrt: opt.diag = True
    if opt.xr0 < 0:
        opt.xr0 = 0.1
        while True:
            try:
                g = G(opt); txt = g.build(); break
            except AssertionError as ex:
                if not (ex.args and (ex.args[0] == "stream left" or ex.args[0][0] == "deadline")): raise
                opt.xr0 += 0.01
                if opt.xr0 > 1: raise
    else:
        g = G(opt); txt = g.build()
    open(opt.o, "w").write(txt)
    print(f"xr0 {opt.xr0:.2f} skip {getattr(g,'skip',0)} hopcost {getattr(g,'hopcost',0)} nhops {getattr(g,'nhops',0)} fallback waits:", g.warn, {k: len(v) for k, v in g.texts.items()})
```

```python
import sys, re, argparse

NAME = "standalone__dcn_v2_cross__recsys_kernel"
SLOT = 32768
FL_OFF = 64 << 20
EP_OFF = FL_OFF + 65536
ST_OFF = 80 << 20

def vr(b, n=1, p="v"):
    return f"{p}{b}" if n == 1 else f"{p}[{b}:{b+n-1}]"
def ar(b, n=1): return vr(b, n, "a")
def sr(b, n=1): return vr(b, n, "s")

def XF(mt, s): return (mt * 2 + s) * 4
def WF(buf, s): return 64 + buf * 8 + s * 4
def X0(p, mt): return 80 + (p * 8 + mt) * 4
def SEL(h): return 208 + 4 * h
ACC_A0 = 216
ACC_V0 = 40
_acc = {}
def _init_acc():
    va, aa = ACC_V0, ACC_A0
    for nt in range(8):
        for mt in range(8):
            if nt == 7 or (nt == 6 and mt < 2):
                _acc[(mt, nt)] = ("a", aa); aa += 4
            else:
                _acc[(mt, nt)] = ("v", va); va += 4
    assert va == 256 and aa == 256
_init_acc()
def ACC(mt, nt): return _acc[(mt, nt)]

V_L16 = 0; V_XA = [1, 2]; V_WA = [3, 4]; V_WC = [5, 6]; V_XC = [7, 8]; V_CPG = 15; V_CPL = 9
V_POLL = 10; V_FLAG = 11; V_B = 12; V_ST = [13, 14]; V_T = 16; V_XT = 30; V_CAP = 36; V_WT = 37; V_BR = 38
S_DW = 4; S_TR = 5; S_E0 = 6; S_KEY = 7
S_W = 8; S_X0 = 12; S_WS = 16; S_OUT = 20; S_B = 24
S_WT = 28; S_XT = 32
S_X = 36
S_WR = 39
S_Q = 41
S_WCUR = 44; S_WL = 45; S_XB = 46; S_FB = 47; S_FOWN = 48; S_EP = 49; S_NEED = 50; S_FV = 51; S_WLM = 52
S_PA = 53; S_J = 54; S_WAVE = 55; S_RB = 56; S_LOOP = 57; S_LAYER = 58; S_ADJ = 59; S_OADJ = 60; S_WC64 = 61
S_M4 = 62; S_MASK = 65; S_EPOFF = 66; S_CNT = 67; S_CAPJ = 68; S_BOFF = 69
S_TA = 70; S_TB = 71; S_TC = 72; S_TD = 73; S_TE = 74; S_TF = 75; S_O2 = 76; S_O3 = 77; S_WR14 = 78; S_DX = 79
S_PC = 80; S_ST = 82; S_RT = 86; S_SI = 90; S_LEND = 91; S_D0 = 92
S_FQ = 96
S_TG = 99; S_TH = 100; S_M7 = 101; S_XCUR = 3; S_XTO = 28

RANK = {"S": 0, "G": 1, "D": 2, "V": 3}

class Sched:
    def __init__(self, n, maxS=3):
        self.n = n
        self.g = [[] for _ in range(n)]
        self.closedS = set()
        self.maxS = maxS
    def fits(self, g, kind):
        kinds = [k for k, _ in self.g[g]]
        if kind == "G": return len(kinds) == 0
        if "G" in kinds: return False
        nvec = sum(k in "DV" for k in kinds)
        if kind == "S":
            if g in self.closedS or kinds.count("S") >= self.maxS: return False
            return len(kinds) < 3
        return nvec < 2 and len(kinds) < 3
    def put(self, g, kind, fn): self.g[g].append((kind, fn))
    def place(self, kind, fn, lo, hi=None):
        hi = self.n - 1 if hi is None else hi
        for g in range(lo, hi + 1):
            if self.fits(g, kind):
                self.put(g, kind, fn); return g
        raise RuntimeError(f"cannot place {kind} in [{lo},{hi}]")
    def chain(self, items, lo, hi=None):
        out = []; g = lo; pk = None
        for kind, fn in items:
            if pk is not None and (RANK[kind] < RANK[pk] or kind == "G" or pk == "G"): g += 1
            g = self.place(kind, fn, g, hi)
            out.append(g); pk = kind
        return out
    def branch(self, cmpfn, brfn, lo):
        for g in range(lo, self.n - 1):
            if self.fits(g, "S") and self.fits(g + 1, "G"):
                self.put(g, "S", cmpfn); self.closedS.add(g); self.put(g + 1, "G", brfn); return g + 1
        raise RuntimeError("branch")
    def last_su(self):
        last = 0
        for g in range(self.n):
            if any(getattr(f, "su", False) for _, f in self.g[g]): last = g
        return last + 1

def mt_off(mt):
    if mt == 0: return "0", 0
    if mt < 4: return f"s{S_XT+mt}", (mt & 1) * 2048
    return f"s{[S_M4, S_M4+1, S_M4+2, S_M7][mt-4]}", 0

SNAKE = True
def blk(nt, cinit=False):
    r = []
    for mt in range(8):
        ss = (0, 1) if (mt % 2 == 0 and SNAKE) else (1, 0)
        r += [(mt, nt, ss[0], cinit), (mt, nt, ss[1], False)]
    return r

class G:
    def __init__(self, opt):
        self.opt = opt
        self.out = []
        self.vq = []; self.lq = []
        self.ool = {}
        self.slot = {}
        self.lds_own = {}
        self.xa = None; self.wa = None
        self.warn = 0
        self.stamps = []
        self.stream = []; self.stream2 = []; self.entry = {}
        self.pending = None
    def e(self, s): self.out.append(s)
    def E(self, s): return lambda: self.e(s)
    def S(self, s): return ("S", self.E(s))
    def V(self, s): return ("V", self.E(s))
    def SU(self, s, then=None):
        def f():
            self.e(s)
            if then: then()
        f.su = True
        return ("S", f)
    def label(self, n): self.out.append(n + ":")
    def vm(self, s, tag=None):
        self.e(s); self.vq.append(tag); assert len(self.vq) <= 62
    def VM(self, s, tag=None): return ("G", lambda: self.vm(s, tag))
    def lds(self, s, tag=None):
        self.e(s); self.lq.append(tag)
    def _need(self, q, tags, mx, force=None):
        idx = -1
        for i, t in enumerate(q):
            if t in tags: idx = i
        if idx < 0 and force is None: return None
        n = len(q) - 1 - idx
        if force is not None:
            assert n >= force or idx < 0, (n, force, q)
            n = force
        n = min(n, mx)
        if len(q) > n: del q[:len(q) - n]
        return n
    def wait(self, vtags=(), ltags=(), lall=False, vforce=None):
        parts = []
        n = self._need(self.vq, set(vtags), 62, vforce)
        if n is not None: parts.append(f"vmcnt({n})")
        if lall:
            parts.append("lgkmcnt(0)"); self.lq = []
        else:
            n = self._need(self.lq, set(ltags), 14)
            if n is not None: parts.append(f"lgkmcnt({n})")
        if parts: self.e("s_waitcnt " + " ".join(parts))
    def smov(self, d, s):
        def f():
            self.e(f"s_mov_b32 s{d}, s{s}"); self.slot[d] = self.slot[s]
        return ("S", f)

    def mfma(self, m):
        if m[0] == "U":
            _, p, mt, h, tb = m
            self.e(f"v_mfma_f32_16x16x32_bf16 {vr(tb+4*h,4)}, {ar(SEL(h),4)}, {ar(X0(p,mt),4)}, 0")
            return
        mt, nt, s, cinit = m
        buf = nt & 1
        tags = {("XF", mt, s), ("WF", buf, s, 0), ("WF", buf, s, 1)}
        if tags & set(self.lq):
            self.warn += 1
            self.wait(ltags=tags)
        p, r = ACC(mt, nt)
        c = vr(r, 4, p)
        if cinit and p == "v" and mt != 7: c = vr(ACC(7, nt)[1], 4)
        self.e(f"v_mfma_f32_16x16x32_bf16 {vr(r,4,p)}, {ar(WF(buf,s),4)}, {ar(XF(mt,s),4)}, {c}")
    def rd_xf(self, mt, s, want):
        def f():
            assert self.lds_own[self.xa] == want, (self.lds_own[self.xa], want)
            self.lds(f"ds_read_b128 {ar(XF(mt,s),4)}, v{V_XA[s]} offset:{mt*2048}", ("XF", mt, s))
        return f
    def rd_wf(self, nt, s, u, want, half=None):
        p, h = nt >> 1, nt & 1
        if callable(half): half = half(nt)
        off = (p >> 1 if half is None else half) * 16384 + (p & 1) * 512 + s * 8192 + u * 4096
        def f():
            if half is None: assert self.lds_own[self.wa[h]] == want, (self.lds_own[self.wa[h]], want)
            else:
                assert self.lds_half[(self.wa[h], half)] == want + (p >> 1,), (self.lds_half, self.wa[h], half, want, nt)
                assert want + (p >> 1,) in self.landed
            self.lds(f"ds_read_b64_tr_b16 {ar(WF(h,s)+2*u,2)}, v{V_WA[h]} offset:{off}", ("WF", h, s, u))
        return f
    def dma_items(self, what, sdst, form):
        items = []
        if form == "X0" and self.opt.xrot:
            RM = [S_O2, S_O3, S_Q + 1, S_Q + 2]; RS = [S_WLM, S_KEY, S_TG, S_TH]
            for k in range(4):
                items.append(self.SU(f"s_add_u32 m0, s{sdst}, s{RM[k]}", lambda: self.lds_own.__setitem__(self.slot[sdst], what)))
                for i in range(2):
                    items.append(self.VM(f"buffer_load_dwordx4 v{V_XC[i]}, {sr(S_X0,4)}, s{RS[k]} offen" + (" offset:1024" if i else "") + f" {self.opt.x0f} lds", what))
            return items
        for i in range(8):
            if i == 0: items.append(self.SU(f"s_mov_b32 m0, s{sdst}", lambda: self.lds_own.__setitem__(self.slot[sdst], what)))
            if i == 4:
                def chk(): assert self.lds_own[self.slot[sdst]] == what
                items.append(self.SU(f"s_add_u32 m0, s{sdst}, 0x1000", chk))
            off = f" offset:{(i&3)*1024}" if i & 3 else ""
            if form == "W":
                so = "0" if i < 2 else f"s{S_WT+(i>>1)}"
                s = f"buffer_load_dwordx4 v{V_WC[i&1]}, {sr(S_W,4)}, {so} offen{off} lds"
            elif form == "X0":
                so = "0" if i < 2 else f"s{S_XT+(i>>1)}"
                s = f"buffer_load_dwordx4 v{V_XC[i&1]}, {sr(S_X0,4)}, {so} offen{off} {self.opt.x0f} lds"
            else:
                so = "0" if i < 2 else f"s{S_XT+(i>>1)}"
                s = f"buffer_load_dwordx4 v{V_XC[i&1]}, {sr(S_X0,4)}, {so} offen{off} sc1 lds"
            items.append(self.VM(s, what))
        return items
    def place_dma(self, sc, items, lo, pace):
        g = lo; prev = -1; pend = None
        for kind, fn in items:
            if kind == "S": pend = fn; continue
            g0 = max(int(g), prev + 1)
            if pend is not None:
                gs = sc.place("S", pend, max(prev + 1, g0 - 2, 0)); g0 = max(g0, gs + 1); pend = None
            prev = sc.place("G", fn, g0)
            g += pace
        return prev
    def w_setup(self, tidreg, base):
        return [self.S(f"s_lshl_b32 s{S_TA}, s{tidreg}, 17"), self.S(f"s_add_u32 s{S_TA}, s{S_TA}, s{base}"),
                self.S(f"s_sub_u32 s{S_TB}, s{S_TA}, s{S_WCUR}"), self.S(f"s_mov_b32 s{S_WCUR}, s{S_TA}"),
                self.V(f"v_add_u32 v{V_WC[0]}, s{S_TB}, v{V_WC[0]}"), self.V(f"v_add_u32 v{V_WC[1]}, s{S_TB}, v{V_WC[1]}")]
    def x_setup(self, tidreg):
        return [self.S(f"s_lshl_b32 s{S_TE}, s{tidreg}, 7"), self.S(f"s_sub_u32 s{S_DX}, s{S_TE}, s{S_XCUR}"), self.S(f"s_mov_b32 s{S_XCUR}, s{S_TE}"),
                self.V(f"v_add_u32 v{V_XC[0]}, s{S_DX}, v{V_XC[0]}"), self.V(f"v_add_u32 v{V_XC[1]}, s{S_DX}, v{V_XC[1]}")]
    def flag_items(self):
        return [self.V(f"v_mov_b32 v{V_FLAG}, s{S_FV}"),
                self.VM(f"buffer_store_dword v{V_FLAG}, off, {sr(S_WS,4)}, s{S_FOWN} sc1", "F"),
                self.S(f"s_add_u32 s{S_FV}, s{S_FV}, 1")]
    def poll_check(self, sc, name, tag, lo):
        sl, bk = f"SLOW_{name}", f"BACK_{name}"
        def f0():
            assert tag not in self.vq
            self.e(f"v_readfirstlane_b32 s{S_TC}, v{V_POLL}")
        c = sc.chain([self.S(f"s_and_b32 s{S_TD}, s{S_Q+1}, 3"), self.S(f"s_add_u32 s{S_TD}, s{S_TD}, s{S_NEED}"),
                      ("V", f0), self.S(f"s_sub_u32 s{S_TC}, s{S_TC}, s{S_TD}")], lo)
        def br():
            self.e(f"s_cbranch_scc1 {sl}"); self.label(bk)
        gbr = sc.branch(self.E(f"s_cmp_gt_u32 s{S_TC}, 7"), br, c[-1])
        self.ool[sl] = [f"{sl}:",
                        f"buffer_load_dword v{V_POLL}, off, {sr(S_WS,4)}, s{S_PA} sc1", "s_waitcnt vmcnt(0)",
                        f"v_readfirstlane_b32 s{S_TC}, v{V_POLL}", f"s_cmp_eq_u32 s{S_CNT}, 0", f"s_cbranch_scc1 {bk}",
                        f"s_sub_u32 s{S_CNT}, s{S_CNT}, 1",
                        f"s_sub_u32 s{S_TC}, s{S_TC}, s{S_TD}", f"s_cmp_gt_u32 s{S_TC}, 7", f"s_cbranch_scc0 {bk}",
                        "s_sleep 1", f"s_branch {sl}"]
        return gbr
    def stamp(self, which):
        if self.opt.diagrt:
            if which == 1:
                self.e(f"s_memtime s[{S_ST}:{S_ST+1}]"); self.e(f"s_memrealtime s[{S_ST+2}:{S_ST+3}]")
            return
        self.e(f"s_memtime s[{S_ST+2*which}:{S_ST+2*which+1}]")
    def stamp_items(self):
        def f():
            self.e(f"s_lshl_b64 exec, 1, s{S_SI}"); self.e(f"v_mov_b32 v{V_ST[0]}, s{S_ST}"); self.e(f"v_mov_b32 v{V_ST[1]}, s{S_ST+2}")
            self.e("s_mov_b64 exec, -1"); self.e(f"s_add_u32 s{S_SI}, s{S_SI}, 1")
        return [("G", f)]
    def epi_valu(self, p, mt, tb, at, ob):
        ops = []
        for h in range(2):
            pf, r = ACC(mt, 2 * p + h)
            if pf == "a":
                for i in range(4): ops.append(f"v_accvgpr_read_b32 v{at+i}, a{r+i}")
                r = at
            for i in range(4): ops.append(f"v_mul_f32 v{tb+4*h+i}, v{tb+4*h+i}, v{r+i}")
        for d in range(4): ops.append(f"v_cvt_pk_bf16_f32 v{ob+d}, v{tb+2*d}, v{tb+2*d+1}")
        return ops
    def bunpack(self, nt, d):
        dpp = f"row_newbcast:{nt} row_mask:0xf bank_mask:0xf"
        return [f"v_mov_b32_dpp v{d[1]}, v{V_BR} {dpp}", f"v_mov_b32_dpp v{d[3]}, v{V_BR+1} {dpp}",
                f"v_lshlrev_b32 v{d[0]}, 16, v{d[1]}", f"v_and_b32 v{d[1]}, s{S_MASK}, v{d[1]}",
                f"v_lshlrev_b32 v{d[2]}, 16, v{d[3]}", f"v_and_b32 v{d[3]}, s{S_MASK}, v{d[3]}"]
    def bias_sched(self, sc, nt, g, busy):
        a0 = V_T + 10
        f = [V_T + 16 + i for i in range(4)]
        g = sc.chain([self.V(x) for x in self.bunpack(nt, f)], g)[-1]
        ops = []
        for mt in range(8):
            pf, a = ACC(mt, nt)
            if pf == "v":
                ops += [f"v_add_f32 v{a+i}, v{a+i}, v{f[i]}" for i in range(4)]
            else:
                for i in (0, 2):
                    ops += [f"v_accvgpr_read_b32 v{a0}, a{a+i}", f"v_accvgpr_read_b32 v{a0+1}, a{a+i+1}",
                            f"v_add_f32 v{a0}, v{a0}, v{f[i]}", f"v_add_f32 v{a0+1}, v{a0+1}, v{f[i+1]}",
                            f"v_accvgpr_write_b32 a{a+i}, v{a0}", f"v_accvgpr_write_b32 a{a+i+1}, v{a0+1}"]
        b0, b1 = busy
        est = g + len(ops) // 2 + len(ops) // 3 + 4
        if est < b0 - 2: lo, hi = g, b0 - 2
        else: lo, hi = max(g, b1 + 6), sc.n - 1
        return sc.chain([self.V(x) for x in ops], lo, hi)[-1]
    def bias0_ops(self, nt):
        d = ACC(7, nt)[1]
        return self.bunpack(nt, [d, d + 1, d + 2, d + 3]) + [f"v_add_f32 v{d+i}, 1.0, v{d+i}" for i in range(4)]

    def prologue(self):
        e = self.e; o = self.opt
        e("s_cmp_lt_u32 s2, 256"); e("s_cbranch_scc1 L_go"); e("s_endpgm")
        self.label("L_go")
        for r, off in ((S_X0, 0), (S_W, 8), (S_B, 16), (S_OUT, 24), (S_WS, 40)):
            e(f"s_load_dwordx2 s[{r}:{r+1}], s[0:1], {off}")
        if o.diag:
            e(f"s_memrealtime s[{S_RT}:{S_RT+1}]"); e(f"s_memtime s[{S_D0}:{S_D0+1}]")
        nst = [0]
        def pst():
            if not o.diag2: return
            e(f"s_memtime s[{S_D0+2}:{S_D0+3}]"); e("s_waitcnt lgkmcnt(0)"); e(f"v_writelane_b32 v{V_ST[0]}, s{S_D0+2}, {52+nst[0]}"); nst[0] += 1
        T = 40
        lane, m, q, r4, c4, q1, tw, t0, t1, t2 = [f"v{T+i}" for i in range(10)]
        e(f"s_getpc_b64 s[{S_PC}:{S_PC+1}]")
        self.label("L_pc")
        e(f"v_lshrrev_b32 {t0}, 6, v0")
        e("s_lshr_b32 s3, s2, 3")
        e(f"v_readfirstlane_b32 s{S_WAVE}, {t0}")
        e("v_lshrrev_b32 v16, 4, v0")
        e("v_lshl_add_u32 v16, s3, 4, v16")
        e("v_lshlrev_b32 v16, 7, v16")
        e(f"v_min_u32 v31, L_codeend-L_pc-4, v16")
        self.vm(f"global_load_dword v{V_POLL}, v31, s[{S_PC}:{S_PC+1}]", "PF")
        e(f"s_and_b32 s{S_RB}, s2, 7"); e(f"s_lshr_b32 s{S_TC}, s2, 5"); e(f"s_lshl3_add_u32 s{S_RB}, s{S_RB}, s{S_TC}")
        e(f"v_bfe_u32 {t1}, v0, 3, 3"); e(f"v_and_b32 {t2}, 7, v0"); e(f"v_bfe_u32 {q}, v0, 4, 2")
        e(f"v_xor_b32 {t0}, {t2}, {q}"); e(f"v_lshlrev_b32 {t0}, 4, {t0}"); e(f"v_lshl_add_u32 {t0}, {t1}, 11, {t0}")
        e(f"s_lshl2_add_u32 s{S_PA}, s{S_RB}, s{S_WAVE}"); e(f"s_lshl_b32 s{S_PA}, s{S_PA}, 17")
        e(f"v_add_u32 v{V_XC[0]}, s{S_PA}, {t0}")
        e(f"v_xor_b32 v{V_XC[1]}, 64, v{V_XC[0]}"); e(f"v_add_u32 v{V_XC[1]}, {16384-1024}, v{V_XC[1]}")
        e(f"s_lshl_b32 s{S_X}, s{S_WAVE}, 13"); self.slot[S_X] = 0
        e(f"s_mov_b32 s{S_X0+2}, {16384*1024*2}"); e(f"s_mov_b32 s{S_X0+3}, 0x20000")
        e(f"s_and_b32 s{S_J}, s3, 3")
        for k in range(1, 4): e(f"s_mov_b32 s{S_XT+k}, {k*32768 - (k&1)*2048}")
        if o.xrot:
            for k, (rm, rs) in enumerate(zip([S_O2, S_O3, S_Q + 1, S_Q + 2], [S_WLM, S_KEY, S_TG, S_TH])):
                e(f"s_add_u32 s{rm}, s{S_J}, {k}"); e(f"s_and_b32 s{rm}, s{rm}, 3"); e(f"s_lshl_b32 s{rs}, s{rm}, 15"); e(f"s_lshl_b32 s{rm}, s{rm}, 11")
        e(f"v_bfe_u32 {r4}, v0, 2, 2")
        e(f"s_lshl_b32 s{S_CNT}, s{S_TC}, 15"); e(f"s_add_u32 s{S_CNT}, s{S_CNT}, s{S_X}")
        e(f"s_lshl_b32 s{S_BOFF}, s{S_J}, 9"); e(f"s_add_u32 s{S_CNT}, s{S_CNT}, s{S_BOFF}")
        e(f"v_lshlrev_b32 {tw}, 7, {r4}"); e(f"v_lshl_add_u32 {tw}, {q}, 11, {tw}")
        e(f"s_mov_b32 s{S_W+2}, {3*1024*1024*2}"); e(f"s_mov_b32 s{S_W+3}, 0x20000")
        xit = self.dma_items(("X", 0, 0), S_X, "X0")
        xit[0][1](); xit = xit[1:]
        if o.diag: e(f"v_mov_b32 v{V_ST[0]}, 0"); e(f"v_mov_b32 v{V_ST[1]}, 0")
        e("s_waitcnt lgkmcnt(0)")
        if o.diag: e(f"s_memtime s[{S_ST}:{S_ST+1}]")
        def run(items):
            for k, f in items:
                f()
                if k == "S": e("s_nop 0")
        def wtouch(): self.vm(f"buffer_load_dword v{V_POLL}, {tw}, {sr(S_W,4)}, s{S_CNT} offen", "PF")
        if o.touch == 1: wtouch()
        run(xit)
        if o.touch == 2: wtouch()
        e(f"s_mov_b32 s{S_B+2}, {3*1024*2}"); e(f"s_mov_b32 s{S_B+3}, 0x20000")
        self.vm(f"buffer_load_dword v{V_POLL}, {tw}, {sr(S_B,4)}, s{S_BOFF} offen", "PF")
        pst()
        e(f"s_lshl_b32 s{S_EPOFF}, s{S_RB}, 7"); e(f"s_add_u32 s{S_EPOFF}, s{S_EPOFF}, {hex(EP_OFF)}")
        if not o.diag2: e(f"s_load_dword s{S_EP}, s[{S_WS}:{S_WS+1}], s{S_EPOFF}")
        e(f"v_and_b32 {lane}, 63, v0"); e(f"v_and_b32 {m}, 15, v0"); e(f"v_and_b32 {c4}, 3, v0"); e(f"v_and_b32 {q1}, 1, {q}")
        for r, sl in ((S_X + 1, 2), (S_X + 2, 4), (S_WR, 1), (S_WR + 1, 3)):
            e(f"s_add_u32 s{r}, s{S_X}, {hex(sl*SLOT)}"); self.slot[r] = sl
        e(f"v_lshlrev_b32 v{V_L16}, 4, {lane}")
        e(f"s_lshr_b32 s{S_TA}, s{S_WAVE}, 1"); e(f"s_and_b32 s{S_TB}, s{S_WAVE}, 1")
        for k in range(1, 4): e(f"s_mov_b32 s{S_WT+k}, {(16*(k&1) + 4*(k>>1))*2048 - (k&1)*2048}")
        e(f"s_lshl_b32 s{S_WC64}, s{S_TB}, 6"); e(f"s_add_u32 s{S_PA}, s{S_BOFF}, s{S_WC64}")
        e(f"v_lshlrev_b32 {t0}, 3, {q}"); e(f"v_add_u32 v{V_B}, s{S_PA}, {t0}")
        e(f"v_bfe_u32 {t0}, {lane}, 1, 2"); e(f"v_lshl_add_u32 v{V_B}, {t0}, 7, v{V_B}"); e(f"v_and_b32 {t0}, 1, {lane}"); e(f"v_lshl_add_u32 v{V_B}, {t0}, 5, v{V_B}")
        e(f"s_lshl_b32 s{S_PA}, s{S_TA}, 8"); e(f"s_add_u32 s{S_PA}, s{S_PA}, s{S_BOFF}")
        e(f"s_lshl_b32 s{S_FV}, s{S_TB}, 16"); e(f"s_add_u32 s{S_PA}, s{S_PA}, s{S_FV}")
        e(f"v_lshlrev_b32 {t0}, 4, {c4}"); e(f"v_lshl_add_u32 {t0}, {q}, 6, {t0}"); e(f"v_lshl_add_u32 {t0}, {r4}, 11, {t0}")
        e(f"v_add_u32 v{V_WC[0]}, s{S_PA}, {t0}")
        e(f"v_xor_b32 v{V_WC[1]}, 32, v{V_WC[0]}"); e(f"v_add_u32 v{V_WC[1]}, {16384-1024}, v{V_WC[1]}")
        def w0():
            self.vm(f"buffer_load_dwordx2 {vr(V_BR,2)}, v{V_B}, {sr(S_B,4)}, 0 offen", ("B", 0))
            run(self.dma_items(("W", 0, 0), S_WR, "W"))
            pst()
        if o.wpos == 0: w0()
        e(f"s_mov_b32 s{S_OUT+2}, {16384*1024*2}"); e(f"s_mov_b32 s{S_OUT+3}, 0x20000")
        e(f"s_mov_b32 s{S_WS+2}, 0x10000000"); e(f"s_mov_b32 s{S_WS+3}, 0x20000")
        e(f"s_lshl_b32 s{S_FB}, s{S_RB}, 9"); e(f"s_add_u32 s{S_FB}, s{S_FB}, {hex(FL_OFF)}")
        e(f"v_lshrrev_b32 {t0}, 1, {m}"); e(f"v_xor_b32 {t0}, {q}, {t0}"); e(f"v_lshlrev_b32 {t0}, 4, {t0}"); e(f"v_lshl_add_u32 {t0}, {m}, 7, {t0}")
        e(f"s_lshl_b32 s{S_WR14}, s{S_TA}, 14")
        e(f"v_add_u32 v{V_XA[0]}, s{S_WR14}, {t0}"); e(f"v_xor_b32 v{V_XA[1]}, 64, v{V_XA[0]}")
        self.xa = 0
        e(f"v_lshlrev_b32 {t0}, 10, {q}"); e(f"v_lshl_add_u32 {t0}, {r4}, 6, {t0}"); e(f"v_lshl_add_u32 {t0}, {q1}, 5, {t0}"); e(f"v_lshl_add_u32 {t0}, {c4}, 3, {t0}")
        e(f"s_lshl_b32 s{S_PA}, s{S_TB}, 8"); e(f"s_add_u32 s{S_PA}, s{S_PA}, {SLOT}")
        e(f"v_add_u32 v{V_WA[0]}, s{S_PA}, {t0}")
        e(f"v_xor_b32 v{V_WA[1]}, 32, v{V_WA[0]}")
        self.wa = [1, 1]
        e(f"v_and_b32 {t1}, 1, {m}"); e(f"v_lshlrev_b32 {t1}, 4, {t1}"); e(f"v_mov_b32 {t2}, 0x3f80"); e(f"v_lshlrev_b32 {t1}, {t1}, {t2}")
        e(f"v_lshlrev_b32 {t2}, 3, {q}"); e(f"v_sub_u32 {t2}, {m}, {t2}"); e(f"v_ashrrev_i32 {t2}, 1, {t2}")
        misc = [f"s_mov_b32 s{S_M4}, 0x20000", f"s_mov_b32 s{S_M4+1}, 0x28000", f"s_mov_b32 s{S_M4+2}, 0x30000", f"s_mov_b32 s{S_MASK}, 0xffff0000",
                f"s_mov_b32 s{S_WL}, 0", f"s_mov_b32 s{S_Q}, 1", f"s_mov_b32 s{S_M7}, 0x38000",
                f"s_lshl_b32 s{S_FOWN}, s{S_J}, 7", f"s_add_u32 s{S_FOWN}, s{S_FOWN}, s{S_FB}", f"s_mul_i32 s{S_OADJ}, s{S_TB}, 7168",
                f"s_mov_b32 s{S_ADJ}, 8192", f"s_mov_b32 s{S_LAYER}, 0", f"s_mov_b32 s{S_CAPJ}, s{S_J}", f"s_mov_b32 s{S_LOOP}, 1",
                f"s_mov_b32 s{S_WCUR}, 0", f"s_mov_b32 s{S_LEND}, 15"]
        for h in range(2):
            for d in range(4):
                e(f"v_cmp_eq_u32 vcc, {d - 8*h}, {t2}"); e(misc.pop(0)); e(misc.pop(0))
                e(f"v_cndmask_b32 {t0}, 0, {t1}, vcc"); e(f"v_accvgpr_write_b32 a{SEL(h)+d}, {t0}")
        for d in range(3):
            e(f"s_cmp_ge_u32 {d}, s{S_J}"); e(f"s_cselect_b32 s{S_FQ+d}, {4*(d+1)}, {4*d}")
        e(f"s_mul_i32 s{S_PA}, s{S_TB}, {131072-16384}"); e(f"s_sub_u32 s{S_PA}, s{S_BOFF}, s{S_PA}")
        e(f"v_xor_b32 v{V_CPG}, s{S_WC64}, v{V_XC[0]}"); e(f"v_add_u32 v{V_CPG}, s{S_PA}, v{V_CPG}")
        e(f"s_mov_b32 s{S_XCUR}, {15*128}")
        if o.wpf:
            e(f"s_lshl2_add_u32 s{S_XB}, s{S_TC}, s{S_WAVE}"); e(f"s_lshl_b32 s{S_XB}, s{S_XB}, 12"); e(f"s_add_u32 s{S_XB}, s{S_XB}, s{S_BOFF}")
        e(f"s_lshl2_add_u32 s{S_PA}, s2, s{S_WAVE}"); e(f"s_lshl_b32 s{S_PA}, s{S_PA}, 12"); e(f"s_add_u32 s{S_PA}, s{S_PA}, 0x200000")
        e(f"v_min_u32 v{V_CPL}, 2, {q}"); e(f"v_lshlrev_b32 v{V_CPL}, 7, v{V_CPL}")
        e(f"s_mov_b32 s{S_BOFF}, 2048"); e(f"s_mov_b32 s{S_CNT}, 0x100000")
        pst()
        if o.wpos == 1: w0()
        if o.hops:
            e("s_mov_b64 exec, 0")
            for w in range(1, 4):
                e(f"s_cmp_eq_u32 s{S_WAVE}, {w}"); e(f"s_cbranch_scc1 HOP{w}")
            e("s_branch HOP0")
            self.label("HOPEND")
            e("s_mov_b64 exec, -1")
        pst()
        if o.wpos == 2: w0()
        if o.diag: e(f"s_memtime s[{S_ST+2}:{S_ST+3}]")
        if o.diag2: e(f"s_load_dword s{S_EP}, s[{S_WS}:{S_WS+1}], s{S_EPOFF}")
        self.wait(vtags=[("B", 0)])
        for nt in range(o.b0pre):
            for x in self.bias0_ops(nt): e(x)
        if o.diag:
            e("s_waitcnt lgkmcnt(0)")
            e(f"v_writelane_b32 v{V_ST[0]}, s{S_D0}, 63")
            e(f"v_writelane_b32 v{V_ST[0]}, s{S_ST}, 60"); e(f"v_writelane_b32 v{V_ST[1]}, s{S_ST+2}, 60")
            e(f"s_mov_b32 s{S_SI}, 0")

    def seg_open(self, name, vt, vforce, prev_nt, nts, X, W, half=None, reload=True, cinit=False, maxS=3, barrier=True, nextnt=None, entry=False, spread=False):
        o = self.opt
        dg = o.diag and not (o.diagc and name in ("G0", "G1"))
        if dg: self.stamps.append(name)
        if self.pending: self.mfma(self.pending)
        if dg: self.stamp(0)
        if barrier and entry:
            k = len(self.out)
            if o.diagc and o.diagrt: self.stamp(1)
            self.wait(vtags=vt, lall=True)
            if o.diagc and o.diagrt:
                self.stamp_items()[0][1](); self.stamps.append(name + "L")
            pre = self.out[:] + [f"s_branch LB_{name}"]
            assert self.entry.setdefault(name, pre) == pre
            self.out[k:] = [f"s_waitcnt vmcnt({vforce}) lgkmcnt(0)", f"LB_{name}:", "s_barrier"]
        elif barrier:
            self.wait(vtags=vt, lall=True, vforce=vforce)
            if name in self.entry: self.label(f"LB_{name}")
            self.e("s_barrier")
        else:
            self.wait(ltags=[("WF", prev_nt & 1, s, u) for s in range(2) for u in range(2)])
        if dg: self.stamp(1)
        base = ([] if prev_nt is None else blk(prev_nt)) + sum((blk(nt, cinit) for nt in nts), [])
        off = 0 if prev_nt is None else 16
        self.pending = base[-1] if nts else None
        mf = base[:-1] if nts else base
        sc = Sched(len(mf), maxS)
        sc.mf = mf; sc.off = off; sc.dg = dg
        su = [(s, u) for s in range(2) for u in range(2)]
        if prev_nt is None:
            for s, u in su: self.rd_wf(nts[0], s, u, W, half)()
            for mt in range(8):
                for s in range(2): self.rd_xf(mt, s, X)()
            self.wait(ltags=[("XF", 1, 0), ("XF", 1, 1)])
        elif nts:
            xs = o.xsp if spread else 1.0
            if reload and xs > 1.0:
                rp = [max(i, int(i * xs + o.xso)) for i in range(16)]
                for i in range(16):
                    mt, _, s, _ = base[i]
                    sc.put(rp[i], "D", self.rd_xf(mt, s, X))
                holes = [g for g in range(0, 12) if g not in rp]
                holes = (holes + [1, 3, 5, 7])[:4]
                for k, (s, u) in enumerate(su): sc.put(sorted(holes)[k], "D", self.rd_wf(nts[0], s, u, W, half))
                sc.rp = rp
            else:
                if reload:
                    for i in range(16):
                        mt, _, s, _ = base[i]
                        sc.put(i, "D", self.rd_xf(mt, s, X))
                for k, (s, u) in enumerate(su): sc.put(2 * k, "D", self.rd_wf(nts[0], s, u, W, half))
            sc.put(15, "S", lambda: self.wait(ltags=[("XF", 1, 0), ("XF", 1, 1)] + [("WF", nts[0] & 1, s, u) for s, u in su]))
        if reload and nts:
            if hasattr(sc, "rp"):
                for mt, upto in ((2, 3), (4, 4), (5, 5), (6, 6), (7, 7)):
                    sc.put(off + 2 * mt - 1, "S", lambda m=upto: self.wait(ltags=[("XF", m, 0), ("XF", m, 1)]))
            else:
                for mt in (2, 4, 6):
                    sc.put(off + 2 * mt - 1, "S", lambda mt=mt: self.wait(ltags=[("XF", mt + 1, 0), ("XF", mt + 1, 1)]))
        sc.blkwait = []
        seq = list(nts[1:]) + [nextnt]
        for b, nt in enumerate(seq):
            if b < len(seq) - 1:
                g = off + 16 * (b + 1) - 1
                sc.put(g, "S", lambda nt=nt: self.wait(ltags=[("WF", nt & 1, s, u) for s, u in su] + [("C",)]))
                sc.blkwait.append(g)
        if nts:
            for b, nt in enumerate(seq):
                if b == 0 and hasattr(sc, "rp"):
                    holes = [g for g in range(16, 27) if g not in sc.rp and g not in o.xkeep][:4]
                    for k, (s, u) in enumerate(su): sc.put(holes[k], "D", self.rd_wf(nt, s, u, W, half))
                    continue
                for k, (s, u) in enumerate(su): sc.place("D", self.rd_wf(nt, s, u, W, half), off + 16 * b + 2 * k)
        return sc
    def seg_emit(self, sc, gbase=None, check=None, stamp_at=50):
        if sc.dg: sc.chain(self.stamp_items(), stamp_at)
        for g, m in enumerate(sc.mf):
            if check: check(g, m)
            self.mfma(m)
            self.merge_gap(sc, g, None if gbase is None else gbase + g)
    def xa_items(self, new, old, nx):
        def f0():
            self.e(f"v_add_u32 v{V_XA[0]}, s{S_DX}, v{V_XA[0]}"); self.xa = nx["x"]
        return [self.SU(f"s_sub_u32 s{S_DX}, s{new}, s{old}", lambda: nx.update(x=self.slot[new])),
                ("V", f0), self.V(f"v_add_u32 v{V_XA[1]}, s{S_DX}, v{V_XA[1]}")]
    def wa_sched(self, sc, new, old, g_s, g_v):
        nx = {}
        def wa(h):
            def f():
                self.e(f"v_add_u32 v{V_WA[h]}, s{S_DW}, v{V_WA[h]}"); self.wa[h] = nx["w"]
            return f
        k, f = self.SU(f"s_sub_u32 s{S_DW}, s{new}, s{old}", lambda: nx.update(w=self.slot[new]))
        sc.place(k, f, g_s, g_v - 1)
        sc.chain([("V", wa(0)), ("V", wa(1))], g_v)

    def body(self, kind, layer, t):
        o = self.opt
        X = ("X", layer, t); W = ("W", layer, t)
        first = kind == "E0"
        vt = [X, W, ("P", layer, t + 2)]
        if kind == "S1": vt.append(("B", layer))
        vforce = {"G0": min(9 + (1 if o.xtouch else 0) + (1 if o.tpf & 2 else 0), 10 + (1 if o.xtouch else 0)), "G1": 8, "T14": 8}.get(kind)
        sc = self.seg_open(kind, vt, vforce, None if first else 7, list(range(7)), X, W, cinit=first,
                           maxS=1 if kind in ("T15", "H0") else 3, nextnt=7, entry=((kind == "G1" and t == 4 and o.entry) or (kind == "G0" and t == 1 and o.entry > 1)),
                           spread=kind in ("G0", "G1", "T14", "S1", "S2", "S3"))
        n, off = sc.n, sc.off
        if kind in ("G0", "G1"):
            sc.put(n - 1, "G", lambda: None)
            sc.put(n - 2, "S", self.E(f"s_cmp_lt_u32 s{S_LOOP}, " + ("14" if kind == "G0" else f"s{S_LEND}"))); sc.closedS.add(n - 2)
        self.gcap = 0
        if kind in ("E0", "G0", "T14", "T15"):
            gB = off + 94 if kind != "T15" else off + 1
            def br():
                self.e(f"s_cbranch_scc1 CAP_{kind}"); self.e("@CAP")
            sc.put(gB, "G", br)
            sc.put(gB - 1, "S", self.E(f"s_cmp_eq_u32 s{S_TC}, s{S_CAPJ}" if kind == "G0" else f"s_cmp_eq_u32 s{S_CAPJ}, {t >> 2}")); sc.closedS.add(gB - 1)
            if kind == "G0": sc.put(gB - 2, "S", self.E(f"s_lshr_b32 s{S_TC}, s{S_LOOP}, 2"))
            for k in range(8): sc.put(gB + 1 + k, "D", self.E(f"@RD{k}"))
            sc.put(gB + 9, "G", self.E("@RET"))
            self.gcap = sc.place("V", self.E(f"v_xor_b32 v{V_CAP}, s{S_WC64}, v{V_XA[0]}"), 9, off if kind == "T15" else None)
        pace = 4 if first else (o.pace0 if kind == "G0" else o.pace)
        gw = o.gw if hasattr(sc, "rp") else off + 1
        lastG = gw
        if kind == "H0":
            def xb():
                assert not any(x and x[0] == "XF" for x in self.lq)
                if o.flag0 == 0: self.wait(vtags=[("S", layer, 0)])
                self.e("s_barrier")
            gb = sc.place("S", xb, off + o.xbpos)
            gw = gb + 1
        if kind == "G1":
            sc.put(0, "S", self.E(f"s_cmp_eq_u32 s{S_LOOP}, s{S_KEY}")); sc.closedS.add(0)
            sc.put(1, "S", self.E(f"s_cselect_b32 s{S_TG}, s{S_Q+1}, s{S_Q}")); sc.put(1, "S", self.E(f"s_cselect_b32 s{S_TH}, s{S_WLM}, s{S_WL}"))
            c = sc.chain(self.w_setup(S_TG, S_TH), 2)
        elif kind != "T15":
            c = sc.chain(self.w_setup(S_Q, S_WL), max(0, gw - 14))
        if first and o.prex and self.x1:
            gw = self.place_dma(sc, self.x1, 1, pace) + 4
        if kind != "T15":
            lastG = self.place_dma(sc, self.dma_items(("W", layer, t + 1), S_WR + 1, "W"), max(gw, c[-1] + 1), pace if kind != "H0" else o.paceh)
        gx = lastG + int(pace)
        if kind in ("S1", "S2", "S3", "G1"):
            if kind != "S1":
                gbr = self.poll_check(sc, kind, ("P", layer, t + 2), off + 8)
                assert gbr < lastG - 1
            c = sc.chain([self.S(f"s_lshr_b32 s{S_PA}, s{S_Q+2}, 2"), self.S(f"s_lshl_b32 s{S_PA}, s{S_PA}, 7"),
                          self.S(f"s_add_u32 s{S_PA}, s{S_PA}, s{S_FB}")], max(gbr + 1, o.pollpos) if (o.pollpos and kind == "G1") else lastG - 1)
            k, f = self.VM(f"buffer_load_dword v{V_POLL}, off, {sr(S_WS,4)}, s{S_PA} sc1", ("P", layer, t + 3))
            if o.pollpos and kind == "G1": gp = sc.place(k, f, c[-1] + 1)
            else:
                gp = sc.place(k, f, max(c[-1], lastG) + 2)
                gx = max(gx, gp + 2); lastG = gp
        if o.wpf and kind in ("E0", "S2"):
            sc.chain([self.V(f"v_and_b32 v{V_WT}, 0x180, v{V_L16}"), self.V(f"v_lshrrev_b32 v{V_FLAG}, 9, v{V_L16}"),
                      self.V(f"v_lshl_add_u32 v{V_WT}, v{V_FLAG}, 11, v{V_WT}")], 9, 40)
        if (o.wpf & 1 and kind == "G0") or (o.wpf & 2 and kind in ("S2", "S3", "G1")):
            TG = S_TE if kind == "G0" else S_TG
            it = [self.S(f"s_add_u32 s{TG}, s{S_Q}, {o.wpd}")] if kind == "G0" else []
            it += [self.S(f"s_lshl_b32 s{TG}, s{TG if kind == 'G0' else S_Q+2}, 17"), self.S(f"s_add_u32 s{TG}, s{TG}, s{S_WL}"), self.S(f"s_add_u32 s{TG}, s{TG}, s{S_XB}")]
            c = sc.chain(it, off + 26)
            k, f = self.VM(f"buffer_load_dword v{V_POLL if kind == 'G0' else V_CAP}, v{V_WT}, {sr(S_W,4)}, s{TG} offen", "PW")
            lastG = sc.place(k, f, max(c[-1], lastG) + 2); gx = max(gx, lastG + 2)
        xadv = [self.V(f"v_add_u32 v{V_XC[i]}, 128, v{V_XC[i]}") for i in range(2)]
        if first:
            if not o.prex:
                sc.chain(xadv, 4)
                lastG = self.place_dma(sc, self.dma_items(("X", 0, 1), S_X + 1, "X0"), gx, pace)
            else: pace = 6
            c = sc.chain(xadv, lastG + 1)
            lastG = self.place_dma(sc, self.dma_items(("X", 0, 2), S_X + 2, "X0"), max(lastG + pace, c[-1] + 1), pace)
        if kind == "G0":
            ww = [self.VM(f"buffer_load_dword v{V_POLL}, v{V_CPL}, {sr(S_W,4)}, s{S_PA} offen", "PW"), self.S(f"s_add_u32 s{S_PA}, s{S_PA}, {384 if o.wwarm else 0}")]
            if not o.xtouch: sc.chain(ww, lastG + 3)
            sc.chain(xadv, off + 20)
            lastG = self.place_dma(sc, self.dma_items(("X", layer, t + 2), S_X + 2, "X0"), gx, o.pacex0)
            if o.xtouch: lastG = sc.chain(ww, lastG + 3)[0]
        if kind in ("E0", "G0") and o.xtouch:
            sc.chain([self.VM(f"buffer_load_dword v{V_POLL}, v{V_XT}, {sr(S_X0,4)}, s{S_XTO} offen nt", "PW"),
                      self.S(f"s_add_u32 s{S_XTO}, s{S_XTO}, 128")], lastG + 3)
        if kind == "G0" and o.tpf & 2:
            sc.chain([self.VM(f"global_load_dword v{V_POLL}, v31, s[{S_PC}:{S_PC+1}]", "PW")], lastG + 6)
        if kind == "S1" and o.tpf & 1:
            sc.chain([self.S(f"s_lshr_b32 s{S_TE}, s2, 3"), self.S(f"s_lshl_b32 s{S_TE}, s{S_TE}, 9"), self.S(f"s_lshl_b32 s{S_TF}, s{S_WAVE}, 7"),
                      self.S(f"s_add_u32 s{S_TE}, s{S_TE}, s{S_TF}"), self.S(f"s_add_u32 s{S_TE}, s{S_TE}, L_TAIL-L_pc"),
                      self.S(f"s_min_u32 s{S_TE}, s{S_TE}, L_codeend-L_pc-4"), self.V(f"v_mov_b32 v{V_FLAG}, s{S_TE}"),
                      self.VM(f"global_load_dword v{V_FLAG}, v{V_FLAG}, s[{S_PC}:{S_PC+1}]", "PW")], off + 4, lastG - 1)
        if kind in ("S2", "S3", "G1"):
            c = sc.chain(self.x_setup(S_Q + 1), 8, off - 1)
            assert c[-1] < gx
            lastG = self.place_dma(sc, self.dma_items(("X", layer, t + 2), S_X + 2, "XE"), gx, o.pacex)
        if kind == "T14":
            it = [self.S(f"s_mov_b32 s{S_WT+k}, {k*16384 - (k&1)*2048}") for k in range(1, 4)]
            it += [self.S(f"s_add_u32 s{S_WL}, s{S_WL}, 0x200000"), self.S(f"s_lshl_b32 s{S_Q}, s{S_J}, 2"),
                   self.V(f"v_subrev_u32 v{V_WC[1]}, s{S_ADJ}, v{V_WC[1]}"), self.S(f"s_mov_b32 s{S_ADJ}, 0")]
            it += self.w_setup(S_Q, S_WL)
            c = sc.chain(it, lastG + 1)
            lastG = self.place_dma(sc, self.dma_items(("W", layer + 1, 0), S_X + 2, "W"), max(gx, c[-1] + 1), pace - 1)
        if kind == "T15" and o.wl2:
            t0, t1 = V_T + 16, V_T + 17
            it = [self.V(f"v_and_b32 v{t0}, 0x30, v{V_L16}"), self.V(f"v_lshlrev_b32 v{t0}, 3, v{t0}"),
                  self.V(f"v_bfe_u32 v{t1}, v{V_L16}, 6, 3"), self.V(f"v_lshl_add_u32 v{t1}, v{t1}, 11, v{t0}"), self.V(f"v_and_b32 v{t0}, 0xfff, v{t1}")]
            sc.chain(it, 1, 15)
            sc.maxS = 2
            it = [self.S(f"s_lshr_b32 s{S_TE}, s2, 5"), self.S(f"s_lshl_b32 s{S_TE}, s{S_TE}, 2"), self.S(f"s_add_u32 s{S_TE}, s{S_TE}, s{S_WAVE}"),
                  self.S(f"s_lshl_b32 s{S_TF}, s{S_J}, 9"), self.S(f"s_add_u32 s{S_TF}, s{S_TF}, s{S_WL}"),
                  self.S(f"s_lshl_b32 s{S_TG}, s{S_TE}, 14"), self.S(f"s_add_u32 s{S_TG}, s{S_TG}, s{S_TF}"), self.S(f"s_lshl_b32 s{S_TH}, s{S_J}, 19"),
                  self.S(f"s_add_u32 s{S_TG}, s{S_TG}, s{S_TH}"),
                  self.S(f"s_lshl_b32 s{S_TE}, s{S_TE}, 12"), self.S(f"s_add_u32 s{S_TE}, s{S_TE}, s{S_TF}"),
                  self.VM(f"buffer_load_dword v{V_POLL}, v{t1}, {sr(S_W,4)}, s{S_TG} offen", "PW")]
            for d in range(o.wl2):
                it += [self.S(f"s_lshl_b32 s{S_TH}, s{S_FQ+d}, 17"), self.S(f"s_add_u32 s{S_TH}, s{S_TH}, s{S_TE}"),
                       self.VM(f"buffer_load_dword v{V_POLL}, v{t0}, {sr(S_W,4)}, s{S_TH} offen", "PW")]
            sc.chain(it, 2, 30)
            sc.maxS = 1
        if kind == "T15":
            sc.put(0, "S", self.E(f"s_cmp_eq_u32 s{S_LAYER}, 0")); sc.closedS.add(0)
            if o.e1out: sc.put(1, "S", self.E(f"s_cselect_b64 s[{S_X0}:{S_X0+1}], s[{S_OUT}:{S_OUT+1}], s[{S_WS}:{S_WS+1}]"))
            else:
                sc.put(1, "S", self.E(f"s_cselect_b32 s{S_TE}, 0x2000000, 0"))
                def f64():
                    self.e(f"s_add_u32 s{S_X0}, s{S_WS}, s{S_TE}"); self.e(f"s_addc_u32 s{S_X0+1}, s{S_WS+1}, 0")
                sc.put(17, "G", f64)
            sc.chain([self.S(f"s_lshl_b32 s{S_TD}, s{S_LAYER}, 2"), self.S(f"s_add_u32 s{S_NEED}, s{S_NEED}, s{S_TD}"),
                      self.S(f"s_mov_b32 s{S_FV}, s{S_NEED}"),
                      self.S(f"s_lshr_b32 s{S_TD}, s{S_WAVE}, 1"), self.S(f"s_mul_i32 s{S_TD}, s{S_TD}, s{S_LAYER}"), self.S(f"s_mul_i32 s{S_KEY}, s{S_TD}, 12"),
                      self.S(f"s_sub_u32 s{S_WLM}, s{S_WL}, 256"), self.S(f"s_sub_u32 s{S_LEND}, s{S_LEND}, 1"),
                      self.S(f"s_add_u32 s{S_LAYER}, s{S_LAYER}, 1")], 2, 60)
        if first:
            if o.finit == 0:
                sc.chain([self.V(f"v_lshrrev_b32 v{V_FLAG}, 1, v{V_L16}"), self.V(f"v_and_b32 v{V_FLAG}, 0x180, v{V_FLAG}"),
                          self.VM(f"buffer_load_dword v{V_POLL}, v{V_FLAG}, {sr(S_WS,4)}, s{S_FB} offen sc1", "PW")], 68)
                sc.chain([self.S(f"s_add_u32 s{S_NEED}, s{S_EP}, 1"), self.S(f"s_mov_b32 s{S_FV}, s{S_EP}")] + self.flag_items(), 98)
            else:
                sc.chain([self.S(f"s_add_u32 s{S_NEED}, s{S_EP}, 1"), self.V(f"v_mov_b32 v{V_FLAG}, s{S_EP}"), self.V(f"v_bfe_u32 v{V_T+16}, v{V_L16}, 2, 7"),
                          self.VM(f"buffer_store_dword v{V_FLAG}, v{V_T+16}, {sr(S_WS,4)}, s{S_FOWN} offen sc1", "F")], 70)
        if kind == "H0":
            def fb():
                self.wait(vtags=[("S", layer, 0)]); self.e("s_barrier")
            if o.flag0 > 0:
                g = sc.place("G", fb, off + o.flag0)
                sc.chain(self.flag_items(), g + 1)
            elif o.flag0 == 0: sc.chain(self.flag_items(), gb + 3)
        if kind == "S1" and o.flag0 < 0:
            assert ("S", layer, 0) not in self.vq
            sc.chain(self.flag_items(), 3)
        if kind == "S3":
            assert ("S", layer, 1) not in self.vq
            sc.chain(self.flag_items(), off + 3)
        if kind == "G1":
            assert ("S", layer, min(t - 2, 3)) not in self.vq
            if o.fdrop:
                def sel():
                    self.e(f"s_cmp_le_u32 s{S_LOOP}, 5"); self.e(f"s_cselect_b32 s{S_TF}, 0, 0x40000000")
                g1 = [g for g in range(11, 40) if len(sc.g[g]) <= 1 and sc.fits(g, "S")][0]
                sc.put(g1, "S", sel); sc.put(g1, "S", lambda: None)
                g1 = sc.place("V", self.E(f"v_mov_b32 v{V_T}, s{S_TF}"), g1 + 1)
                sc.chain([self.V(f"v_mov_b32 v{V_FLAG}, s{S_FV}"), self.VM(f"buffer_store_dword v{V_FLAG}, v{V_T}, {sr(S_WS,4)}, s{S_FOWN} offen sc1", "F"),
                          self.S(f"s_add_u32 s{S_FV}, s{S_FV}, 1")], g1)
            else:
                sc.chain(self.flag_items() + [self.S(f"s_sub_u32 s{S_TF}, s{S_FV}, s{S_NEED}"), self.S(f"s_min_u32 s{S_TF}, s{S_TF}, 3"),
                                              self.S(f"s_add_u32 s{S_FV}, s{S_TF}, s{S_NEED}")], off + 3)
        CT = V_T + 12
        if kind in ("S1", "S2", "S3"):
            jobs = [mt for mt in range(8) if not self.is_direct(t, mt)]
            def chk(): assert self.lds_own[self.slot[S_X]] == ("X", layer, t)
            c = sc.chain([self.SU(f"s_sub_u32 s{S_E0}, s{S_X}, s{S_OADJ}", chk), self.V(f"v_add_u32 v{V_CPL}, s{S_E0}, v{V_L16}")], 8)
            gprev = c[-1]
            w0 = int(o.cpos[t - 1])
            assert w0 + len(jobs) <= 6
            for k, mt in enumerate(jobs):
                w = sc.blkwait[k + w0]
                sc.place("D", lambda mt=mt: self.lds(f"ds_read_b128 {vr(CT,4)}, v{V_CPL} offset:{mt*2048}", ("C",)), max(gprev + 1, w - 9), w - 1)
                def st(mt=mt):
                    assert ("C",) not in self.lq
                    so, im = mt_off(mt)
                    self.vm(f"buffer_store_dwordx4 {vr(CT,4)}, v{V_CPG}, {sr(S_X0,4)}, {so} offen offset:{im + t*128} sc1", ("S", layer, t))
                gprev = sc.place("G", st, w + 1)
        gcap = self.gcap
        gXA = max(gcap + 1, off + 2, sc.rp[-1] + 1 if hasattr(sc, "rp") else 0)
        nx = {}
        if kind == "T15":
            def f0():
                self.e(f"v_add_u32 v{V_XA[0]}, s{S_TA}, v{V_L16}"); self.xa = nx["x"]
            sc.chain([self.S(f"s_lshl_b32 s{S_TA}, s{S_WC64}, 7"),
                      self.SU(f"s_sub_u32 s{S_TA}, s{S_X+2}, s{S_TA}", lambda: nx.update(x=self.slot[S_X + 2])),
                      ("V", f0), self.V(f"v_add_u32 v{V_XA[1]}, 1024, v{V_XA[0]}"), self.S(f"s_mov_b32 s{S_CAPJ}, 77")], off + 11)
            wnext = S_X + 1
        else:
            sc.chain(self.xa_items(S_X + 1, S_X, nx), gXA)
            wnext = S_WR + 1
        self.wa_sched(sc, wnext, S_WR, gXA, off + 16 * 6 + 8)
        if kind == "T15":
            sc.chain([self.VM(f"buffer_load_dwordx2 {vr(V_BR,2)}, v{V_B}, {sr(S_B,4)}, s{S_BOFF} offen", ("B", layer + 1)),
                      self.S(f"s_add_u32 s{S_BOFF}, s{S_BOFF}, 2048")], off + 12, off + 24)
        if kind in ("S1", "S2", "S3", "T14"):
            g = 4 if kind == "S1" else 0
            for nt in {"S1": [5, 6, 0], "S2": [4, 1], "S3": [3, 2], "T14": [7]}[kind]:
                b0 = 0 if nt == 7 else off + 16 * nt
                g = self.bias_sched(sc, nt, g, (b0, b0 + 16))
        if first:
            g = 0
            for nt in range(o.b0pre, 7):
                g = sc.chain([self.V(x) for x in self.bias0_ops(nt)], g, 16 * nt - 2)[-1]
            ops = []
            for mt in range(2): ops += [f"v_accvgpr_write_b32 a{ACC(mt,6)[1]+i}, v{ACC(7,6)[1]+i}" for i in range(4)]
            for mt in range(8): ops += [f"v_accvgpr_write_b32 a{ACC(mt,7)[1]+i}, 1.0" for i in range(4)]
            sc.chain([self.V(x) for x in ops], g, 96 - 2)
        self.slot[S_TR] = None
        if kind == "T15":
            rot = [self.smov(S_O2, S_X), self.smov(S_O3, S_WR), self.smov(S_WR, S_X + 1), self.smov(S_X + 1, S_WR + 1),
                   self.smov(S_X, S_X + 2), self.smov(S_WR + 1, S_X + 2)]
        elif kind == "H0":
            rot = [self.smov(S_X, S_X + 1), self.smov(S_X + 1, S_O2), self.smov(S_X + 2, S_O3),
                   self.smov(S_TR, S_WR), self.smov(S_WR, S_WR + 1), self.smov(S_WR + 1, S_TR)]
        else:
            rot = [self.smov(S_TR, S_X), self.smov(S_X, S_X + 1), self.smov(S_X + 1, S_X + 2), self.smov(S_X + 2, S_TR),
                   self.smov(S_TR, S_WR), self.smov(S_WR, S_WR + 1), self.smov(S_WR + 1, S_TR)]
        q = []
        if kind in ("E0", "G0", "T15", "H0"): q = [self.S(f"s_add_u32 s{S_Q}, s{S_Q}, 1")]
        if kind == "H0": q += [self.S(f"s_add_u32 s{S_Q+1}, s{S_Q}, 1"), self.S(f"s_mov_b32 s{S_Q+2}, s{S_FQ}")]
        if kind in ("S1", "S2"):
            q = [self.S(f"s_mov_b32 s{S_Q}, s{S_Q+1}"), self.S(f"s_mov_b32 s{S_Q+1}, s{S_Q+2}"), self.S(f"s_mov_b32 s{S_Q+2}, s{S_FQ+t}")]
        if kind in ("S3", "G1"):
            q = [self.S(f"s_add_u32 s{S_TE}, s{S_Q}, 1"), self.S(f"s_mov_b32 s{S_Q}, s{S_Q+1}"), self.S(f"s_mov_b32 s{S_Q+1}, s{S_Q+2}"),
                 self.S(f"s_mov_b32 s{S_Q+2}, s{S_TE}")]
        if kind == "S3": q += [self.S(f"s_mov_b32 s{S_LOOP}, 4")]
        sc.chain(q, max(gx, off + 60))
        if kind == "G1": rot += [self.S(f"s_add_u32 s{S_LOOP}, s{S_LOOP}, 1")]
        if kind == "G0": sc.place("S", self.E(f"s_add_u32 s{S_LOOP}, s{S_LOOP}, 1"), off + 104, n - 3)
        sc.chain(rot, max(sc.last_su(), 108 if kind in ("T15", "H0") else 0))
        if kind == "T15": self.make_stream(layer + 1)
        def check(g, m):
            if kind == "H0" and g >= off: assert (m[1] >> 1) * 8 + m[0] in self.epi_done, ("deadline", m)
        self.xr = o.xr15 if kind == "T15" else o.xr0
        self.seg_emit(sc, {"T15": 0, "H0": 128}.get(kind), check, 86 if first else off + 50)
        if "@CAP" in self.out: self.make_cap(kind, t)
        if kind == "T15": assert all(f in self.wr_done for f in range(8))
        if kind == "H0": assert not self.stream, "stream left"

    def make_cap(self, kind, t):
        i0 = self.out.index("@CAP"); i1 = self.out.index("@RET")
        reg = self.out[i0 + 1:i1]
        assert not any(x.endswith(":") or "branch" in x or "barrier" in x for x in reg)
        main = [x for x in reg if not x.startswith("@") and x != "s_nop 0"]
        self.out[i0:i1 + 1] = main + [f"CB_{kind}:"]
        def blkc(p):
            return [f"ds_read_b128 {ar(X0(p,int(x[3])),4)}, v{V_CAP} offset:{int(x[3])*2048}" if x.startswith("@RD") else x for x in reg] + [f"s_branch CB_{kind}"]
        cap = f"CAP_{kind}"
        if kind == "G0":
            b = [f"{cap}:", f"s_and_b32 s{S_TC}, s{S_LOOP}, 3"]
            for p in range(1, 4): b += [f"s_cmp_eq_u32 s{S_TC}, {p}", f"s_cbranch_scc1 {cap}{p}"]
            b += blkc(0)
            for p in range(1, 4): b += [f"{cap}{p}:"] + blkc(p)
            self.ool[cap] = b
        else:
            self.ool[cap] = [f"{cap}:"] + blkc(t & 3)
    def is_direct(self, p, mt):
        n = int(self.opt.direct[p])
        return ((mt + 1) * n) // 8 != (mt * n) // 8
    def make_stream(self, nl):
        st = []
        self.epi_done = set(); self.wr_done = set()
        tbf = lambda f: V_T + 8 * (f % 2)
        U = lambda f, h: ("U", ("U", f // 8, f % 8, h, tbf(f)))
        self.stream = [U(f, h) + (30,) for f in range(2) for h in range(2)]
        self.credit = 0.0
        for f in range(32):
            p, mt = f // 8, f % 8
            tb = tbf(f)
            pos = 38 + 32 * p + 2 * mt
            sreg = {0: S_X + 2, 1: S_WR + 1, 2: S_O2, 3: S_O3}[p]
            ops = self.epi_valu(p, mt, tb, V_T + 16, tb)
            it = []
            for k, x in enumerate(ops):
                kd = "V" if (k < 4 or f == 31) else "A"
                if k == len(ops) - 5: it.append((kd, lambda x=x, f=f: (self.e(x), self.epi_done.add(f)), pos))
                else: it.append((kd, self.E(x), pos))
            if p >= 2: pos = max(pos, 129)
            if mt == 0:
                def f0(p=p, sreg=sreg):
                    self.lds_own[self.slot[sreg]] = ("X", nl, p)
                    self.e(f"s_sub_u32 s{S_E0}, s{sreg}, s{S_OADJ}")
                a = [("S", f0, pos), ("A", self.E(f"v_add_u32 v{V_CPL}, s{S_E0}, v{V_L16}"), pos)]
                it = it[:6] + a + it[6:] if p != 2 else it + a
            if self.is_direct(p, mt):
                so, im = mt_off(mt)
                it += [("R", lambda p=p, im=im, tb=tb, so=so: self.vm(f"buffer_store_dwordx4 {vr(tb,4)}, v{V_CPG}, {sr(S_X0,4)}, {so} offen offset:{im + p*128} sc1", ("S", nl, p)), pos)]
            if f + 2 < 32: it += [U(f + 2, 1) + (pos,)]
            it += [("X", lambda f=f, mt=mt, tb=tb: (self.lds(f"ds_write_b128 v{V_CPL}, {vr(tb,4)} offset:{mt*2048}", ("O",)), self.wr_done.add(f)), pos)]
            if f + 2 < 32: it += [U(f + 2, 0) + (pos,)]
            self.stream += it

    def merge_gap(self, sc, g, gpos):
        fixed = sc.g[g]
        self.gnow = gpos
        while True:
            cur = list(fixed)
            excl = any(k == "G" for k, _ in cur)
            hasR = False
            newgap = None
            top = -1
            if gpos is not None: self.credit = min(self.credit + self.xr, 2.0)
            def cnt(): return sum(k in "DV" for k, _ in cur), sum(getattr(f, "w", 1) for k, f in cur)
            def free():
                nvec, tot = cnt()
                if hasR: return nvec < 2
                return not excl and nvec < 2 and tot < 3
            def lookahead():
                i = 0
                while i < len(self.stream) and self.stream[i][0] in "RUX": i += 1
                while i < len(self.stream) and self.stream[i][0] == "V" and self.stream[i][2] <= gpos + 1 and free():
                    cur.append(("V", self.stream.pop(i)[1]))
            if gpos is not None and fixed is sc.g[g] and not (self.stream and getattr(self.stream[0][1], "pub", False)):
                while self.stream2 and self.stream2[0][2] <= gpos + 1:
                    k, fn, pos = self.stream2[0]
                    st = fn.ready(gpos)
                    if st == "skip": self.stream2.pop(0); continue
                    if st:
                        grp = [self.stream2.pop(0)]
                        if k == "S": grp.append(self.stream2.pop(0))
                        self.stream[0:0] = grp
                    break
            while gpos is not None and self.stream:
                k, fn, pos = self.stream[0]
                if pos > gpos + 1:
                    break
                if k == "U" and len(self.stream) > 1 and hasattr(self.stream[1][1], "ok") and not self.stream[1][1].ok():
                    lookahead(); break
                if k == "U":
                    lookahead()
                    newgap = fn; self.stream.pop(0); break
                if k == "X":
                    nxt = [kk for gg in (g + 1, g + 2) if gg < sc.n for kk, _ in sc.g[gg]]
                    follow_u = len(self.stream) > 1 and self.stream[1][0] == "U"
                    if any(kk != "S" for kk, _ in cur) or (not follow_u and "D" in nxt and fixed is sc.g[g]):
                        lookahead(); break
                    cur.append(("G", fn)); excl = True; self.stream.pop(0); continue
                if k == "R":
                    if excl or top > 0:
                        lookahead(); break
                    cur.append(("G", fn)); excl = True; hasR = True; top = 1; self.stream.pop(0); continue
                if k in "SZ":
                    w = 2 if k == "Z" else 1
                    if excl or top > 0 or g in sc.closedS or cnt()[1] + w > 3: break
                    fn.w = w
                    cur.append(("S", fn)); top = 0; self.stream.pop(0); continue
                if k == "D":
                    if top > 2 or not free(): break
                    cur.append(("D", fn)); top = 2; self.stream.pop(0); continue
                ok = free()
                if not ok and not excl and self.credit >= 1.0 and cnt()[0] < 3 and cnt()[1] < 4:
                    self.credit -= 1.0; ok = True
                if not ok: break
                cur.append(("V", fn)); top = 3; self.stream.pop(0)
            ks = [k for k, _ in cur]
            if ks.count("D") == 2 and "S" not in ks and "G" not in ks: cur.append(("S", self.E("s_nop 0")))
            for k, fn in sorted(cur, key=lambda x: RANK[x[0]]): fn()
            if newgap is None: return
            self.mfma(newgap)
            fixed = []

    def tail(self):
        e = self.e; o = self.opt
        L = 2
        VW, VR = V_POLL, V_CPL
        CT = V_T + 20; AT = V_T + 16
        tbf = lambda f: V_T + 8 * (f % 2)
        U = lambda f, h: ("U", ("U", f // 8, f % 8, h, tbf(f)))
        depth = lambda f: 4 if f < 8 else 8
        unit = lambda f: (f % depth(f)) * 4096
        area = {0: (S_WR, 0), 1: (S_X + 1, 0), 2: (S_X, 0), 3: (S_X + 1, 0)}
        def rdback(f, p, r, k):
            assert f in self.visible and self.ra == f // 8
            self.lds(f"ds_read_b64 {vr(r+2*k,2,p)}, v{VR} offset:{unit(f) + 256*k}", ("C", f))
        def store(f, dst):
            assert ("C", f) not in self.lq
            so, im = mt_off(f % 8)
            self.vm(f"buffer_store_dwordx4 {dst}, v{V_CPG}, {sr(S_OUT,4)}, {so} offen offset:{im + (f//8)*128} {o.outf}", "SO")
            self.stored.add(f)
        def wr_ok(f):
            prev = {0: f - 4, 1: -1, 2: -1, 3: f - 16}[f // 8]
            return (prev < 0 or prev in self.freed) and (f // 8) in self.area_free
        def wr(f):
            assert wr_ok(f) and self.wa_ == f // 8
            self.lds(f"ds_write_b128 v{VW}, {vr(tbf(f),4)} offset:{unit(f)}", ("Y", f))
            self.written.add(f); self.wpos = self.gnow; self.w_at[f] = self.gnow
        self.written = set(); self.visible = set(); self.freed = set(); self.rd_at = {}
        self.lds_half = {}; self.landed = set(); self.area_free = set(); self.area_next = set()
        self.wpos = 0; self.ra = 0; self.wa_ = 0; self.w_at = {}
        def at_barrier():
            self.visible |= {f for f in self.written if ("Y", f) not in self.lq}
            self.freed |= {f for f in self.rd_at if ("C", f) not in self.lq}
            self.landed |= {v for v in self.lds_half.values() if v not in self.vq}
            if not any(x and x[0] == "XF" for x in self.lq): self.area_free |= self.area_next
        def bar(vtags=(), every=False):
            self.wait(vtags=vtags, ltags=[("Y", x) for x in self.written if every or self.gnow >= self.w_at[x] + o.zdist]); e("s_barrier"); at_barrier()
        def switch(reg, p, attr):
            t = S_TC if attr == "ra" else S_TD
            def f():
                e(f"v_add_u32 v{reg}, s{t}, v{reg}"); setattr(self, attr, p)
            return [("S", self.E(f"s_sub_u32 s{t}, s{area[p][0]}, s{area[p-1][0]}")), ("A", f)]
        def half_dma(tile, H, tidreg, sreg, half):
            what = ("W", L, tile, H)
            it = [self.S(f"s_add_u32 s{S_TH}, s{S_WLM}, {H*256}")] + self.w_setup(tidreg, S_TH)
            d = [self.SU(f"s_add_u32 m0, s{sreg}, s{S_O2+half}", lambda: self.lds_half.__setitem__((self.slot[sreg], half), what))]
            for i in range(4):
                so = "0" if i < 2 else f"s{S_WT+1}"
                d.append(self.VM(f"buffer_load_dwordx4 v{V_WC[i&1]}, {sr(S_W,4)}, {so} offen" + (f" offset:{i*1024}" if i else "") + " lds", what))
            return it, d
        W13, W14, W15 = ("W", L, 13), ("W", L, 14), ("W", L, 15)
        X13, X14, X15 = ("X", L, 13), ("X", L, 14), ("X", L, 15)
        self.lds_half[(self.slot[S_WR], 0)] = W13 + (0,); self.lds_half[(self.slot[S_WR], 1)] = W14 + (0,)
        sc = self.seg_open("A13", [X13, W13, ("P", L, 15)], 8, 7, [0, 1, 2], X13, W13, half=0, nextnt=3); at_barrier()
        gbr = self.poll_check(sc, "A13", ("P", L, 15), 0)
        sc.chain(self.x_setup(S_Q + 1), 3, 15)
        c = sc.chain([self.S(f"s_lshl_b32 s{S_TA}, s{S_WAVE}, 15"), self.S(f"s_lshl_b32 s{S_TB}, s{S_WC64}, 10"), self.S(f"s_sub_u32 s{S_TA}, s{S_TA}, s{S_TB}"),
                      self.S(f"s_lshr_b32 s{S_TB}, s{S_WR14}, 6"), self.S(f"s_sub_u32 s{S_TA}, s{S_TA}, s{S_TB}"), self.S(f"s_add_u32 s{S_WLM}, s{S_WL}, s{S_TA}"),
                      self.S(f"s_lshl_b32 s{S_TA}, s{S_WAVE}, 12"), self.S(f"s_sub_u32 s{S_O2}, 0, s{S_TA}"), self.S(f"s_add_u32 s{S_O3}, s{S_O2}, 0x4000"),
                      self.S(f"s_sub_u32 s{S_Q+2}, s{S_Q+2}, 1")], 5)
        it, d = half_dma(15, 0, S_Q + 1, S_WR + 1, 0)
        c = sc.chain(it, c[-1])
        lastG = self.place_dma(sc, d, max(gbr + 1, c[-1] + 1), o.pacet)
        lastG = self.place_dma(sc, self.dma_items(X15, S_X + 2, "XE"), lastG + 3, o.pacet)
        nx = {}
        sc.chain(self.xa_items(S_X + 1, S_X, nx), 18)
        a, b, c_, d_ = [f"v{V_T+i}" for i in range(4)]
        adr = [f"v_lshrrev_b32 {a}, 9, v{V_L16}", f"v_lshlrev_b32 {a}, 6, {a}", f"v_add_u32 {a}, {a}, v{V_L16}", f"v_add_u32 {a}, s{S_KEY}, {a}",
               f"v_and_b32 {a}, 0xf0, {a}", f"v_and_b32 {b}, 0x300, v{V_L16}", f"v_add3_u32 v{VW}, {a}, {b}, s{S_E0}",
               f"v_and_b32 {c_}, 0x70, v{V_CPG}",
               f"v_lshrrev_b32 {a}, 3, v{V_L16}", f"v_and_b32 {a}, 0x70, {a}", f"v_add_u32 {a}, s{S_KEY}, {a}",
               f"v_and_b32 {b}, 64, {c_}", f"v_lshl_add_u32 {a}, {b}, 1, {a}", f"v_and_b32 {d_}, 16, {c_}", f"v_lshl_add_u32 {a}, {d_}, 2, {a}",
               f"v_and_b32 {a}, 0xf0, {a}", f"v_lshl_add_u32 {a}, {b}, 4, {a}", f"v_lshl_add_u32 {a}, {d_}, 5, {a}",
               f"v_bfe_u32 {b}, {c_}, 5, 1", f"v_lshl_add_u32 {a}, {b}, 3, {a}", f"v_add_u32 v{VR}, s{S_TF}, {a}"]
        sc.chain([self.S(f"s_lshl_b32 s{S_KEY}, s{S_WC64}, 1"), self.S(f"s_mul_i32 s{S_E0}, s{S_WAVE}, 7168"), self.SU(f"s_sub_u32 s{S_E0}, s{S_WR}, s{S_E0}"),
                  self.S(f"s_lshl_b32 s{S_TF}, s{S_WC64}, 4"), self.S(f"s_sub_u32 s{S_TF}, s{S_E0}, s{S_TF}")], 20, 36)
        self.stream = [self.V(x) + (40,) for x in adr]
        self.stream += [self.V(f"v_mov_b32_dpp v{V_XC[i]}, v{V_BR+i} row_newbcast:7 row_mask:0xf bank_mask:0xf") + (64,) for i in range(2)]
        self.credit = 0.0; self.xr = 0.0
        E0 = [134, 230, 326, 390]
        ear = lambda f: E0[f // 8] + 2 * (f % 8)
        self.stream += [U(f, h) + (126,) for f in range(2) for h in range(2)]
        nf = o.nft
        for f in range(nf):
            pos = ear(f)
            it = [("V" if k < 4 else "A", self.E(x)) for k, x in enumerate(self.epi_valu(f // 8, f % 8, tbf(f), None, tbf(f)))]
            if f % 8 == 0 and f: it = it[:6] + switch(VW, f // 8, "wa_") + it[6:]
            w0 = lambda f=f: wr(f)
            w0.ok = lambda f=f: wr_ok(f)
            it += [U(f + 2, 1), ("X", w0), U(f + 2, 0)]
            self.stream += [x + (pos,) for x in it]
        def pub(f, pos):
            def z():
                bar(); assert f in self.visible
            z.ready = lambda g: "skip" if f in self.visible else (f in self.written and g >= self.w_at[f] + o.zdist)
            def r0(): rdback(f, "v", CT, 0)
            def r1(): rdback(f, "v", CT, 1); self.rd_at[f] = self.gnow
            r0.ready = r1.ready = lambda g: g >= self.wpos + 2
            def wt(): self.wait(ltags=[("C", f)])
            wt.ready = lambda g: f in self.rd_at and g >= self.rd_at[f] + o.rdist
            def st(): store(f, vr(CT, 4))
            it = []
            if f % 8 == 0 and f:
                it = switch(VR, f // 8, "ra"); it[0][1].ready = lambda g: True
            it += [("Z", z), ("D", r0), ("D", r1), ("S", wt), ("R", st)]
            for k, x in it: x.pub = True
            return [x + (pos,) for x in it]
        self.stream2 = []
        for f in range(nf): self.stream2 += pub(f, E0[f // 8] + (o.spo + o.sp * (f % 8) if f < 16 else o.spo2 + o.sp2 * (f % 8)))
        self.seg_emit(sc, 0, stamp_at=58)
        self.area_next = {0}
        sc = self.seg_open("C14", [X14], None, 3, [0], X14, W14, half=1, nextnt=1); at_barrier()
        it, d = half_dma(15, 1, S_Q + 1, S_WR + 1, 1)
        c = sc.chain(it, 1)
        self.place_dma(sc, d, 17, 3)
        sc.chain(self.xa_items(S_X + 2, S_X + 1, nx), 16)
        self.wa_sched(sc, S_WR + 1, S_WR, 8, 24)
        self.seg_emit(sc, 64, stamp_at=28)
        sc = self.seg_open("F15", [X15, W15 + (0,)], None, 1, [0, 1, 2, 3, 4], X15, W15, half=lambda nt: nt >> 2, nextnt=5, maxS=1); at_barrier()
        it, d = half_dma(14, 1, S_Q, S_WR + 1, 0)
        c = sc.chain(it, 1)
        sc.g[63].append(("S", lambda: bar([W15 + (1,)])))
        self.place_dma(sc, d, 65, 4)
        sc.chain(self.xa_items(S_X + 1, S_X + 2, nx), 18)
        self.wa_sched(sc, S_WR, S_WR + 1, 20, 16 + 64 + 8)
        self.seg_emit(sc, 96, stamp_at=24)
        sc = self.seg_open("D14", [], None, 5, [2, 3, 4, 5, 6], X14, W14, half=lambda nt: 1 - (nt >> 2), nextnt=7, maxS=1, barrier=False)
        it, d = half_dma(13, 1, S_Q + 2, S_WR, 1)
        c = sc.chain(it, 1)
        def b3():
            self.area_next = {1, 3}; bar([W14 + (1,)])
        sc.g[31].append(("S", b3))
        self.place_dma(sc, d, 33, 4)
        sc.chain(self.xa_items(S_X, S_X + 1, nx), 18)
        self.wa_sched(sc, S_WR + 1, S_WR, 10, 24)
        self.wa_sched(sc, S_WR, S_WR + 1, 50, 16 + 64 + 8)
        self.seg_emit(sc, 192, stamp_at=26)
        sc = self.seg_open("B13", [W13 + (1,)], None, 7, [4, 5, 6], X13, W13, half=1, nextnt=7, maxS=1); at_barrier()
        def b4():
            self.area_next = {2}; bar()
        sc.g[31].append(("S", b4))
        sc.chain(self.xa_items(S_X + 2, S_X, nx), 18)
        self.wa_sched(sc, S_WR + 1, S_WR, 20, 16 + 32 + 8)
        self.seg_emit(sc, 288, stamp_at=24)
        sc = self.seg_open("E15", [], None, 7, [6], X15, W15, half=1, nextnt=7, maxS=1, barrier=False)
        self.seg_emit(sc, 352, stamp_at=24)
        sc = self.seg_open("FIN", [], None, 7, [], None, None, barrier=False, maxS=1)
        self.seg_emit(sc, 384, stamp_at=8)
        for k, fn, pos in self.stream:
            if k == "U": self.mfma(fn)
            else: fn()
        self.stream = []
        while self.stream2 and self.stream2[0][0] in "DSR" and not (self.stream2[0][0] == "S" and self.stream2[1][0] == "A"):
            self.stream2.pop(0)[1]()
        self.stream2 = []
        e("s_nop 7")
        todo = []
        dreg = lambda x: XF(x % 8, (x // 8) & 1)
        def publish():
            bar(every=True)
            for x in sorted(self.visible):
                if x not in self.rd_at:
                    if x // 8 != self.ra:
                        for k, fn in switch(VR, x // 8, "ra"): fn()
                    rdback(x, "a", dreg(x), 0); rdback(x, "a", dreg(x), 1); self.rd_at[x] = 0; todo.append(x)
        def drain(n):
            for _ in range(n):
                if todo:
                    x = todo.pop(0); self.wait(ltags=[("C", x)]); store(x, ar(dreg(x), 4))
        assert nf <= 24
        B7 = [V_WC[0], V_XC[0], V_WC[1], V_XC[1]]
        e(f"v_lshlrev_b32 v{B7[0]}, 16, v{B7[1]}"); e(f"v_and_b32 v{B7[1]}, s{S_MASK}, v{B7[1]}")
        e(f"v_lshlrev_b32 v{B7[2]}, 16, v{B7[3]}"); e(f"v_and_b32 v{B7[3]}, s{S_MASK}, v{B7[3]}")
        if o.fmode == 0 and self.written - set(self.rd_at): publish()
        for f in range(nf, 32):
            p, mt = f // 8, f % 8
            tb = tbf(f)
            if mt == 0:
                for k, fn in switch(VW, p, "wa_"): fn()
            for h in (1, 0):
                pf, r = ACC(mt, 2 * p + h)
                if pf == "a":
                    for i in range(4): e(f"v_accvgpr_read_b32 v{AT+i}, a{r+i}")
                    if h == 1:
                        for i in range(4): e(f"v_add_f32 v{AT+i}, v{AT+i}, v{B7[i]}")
                    r = AT
                for d2 in range(2): e(f"v_pk_mul_f32 {vr(tb+4*h+2*d2,2)}, {vr(tb+4*h+2*d2,2)}, {vr(r+2*d2,2)}")
            for d2 in range(4): e(f"v_cvt_pk_bf16_f32 v{tb+d2}, v{tb+2*d2}, v{tb+2*d2+1}")
            if o.fmode == 1:
                n0 = len(todo)
                if str(f - 24) in o.fpub and self.written - set(self.rd_at): publish()
                drain(min(n0, o.fdrain))
            if f + 2 < 32: self.mfma(U(f + 2, 1)[1])
            wr(f)
            if f + 2 < 32: self.mfma(U(f + 2, 0)[1])
            if o.fmode == 0:
                drain(o.fdrain)
                if (f - nf) % o.fgrp == o.fgrp - 1 or f == 31: publish()
        if o.fmode == 1:
            drain(32); publish()
        drain(32)
        assert self.stored == set(range(32))
        e(f"s_or_b32 s{S_TA}, s{S_J}, s{S_WAVE}"); e(f"s_cmp_lg_u32 s{S_TA}, 0"); e("s_cbranch_scc1 L_fin")
        e(f"s_add_u32 s{S_TA}, s{S_EP}, 16"); e(f"v_mov_b32 v{V_FLAG}, s{S_TA}")
        e(f"buffer_store_dword v{V_FLAG}, off, {sr(S_WS,4)}, s{S_EPOFF} sc1")
        self.label("L_fin")
        if o.diag:
            e(f"s_memtime s[{S_ST}:{S_ST+1}]"); e("s_waitcnt vmcnt(0)"); e(f"s_memtime s[{S_ST+2}:{S_ST+3}]")
            e(f"s_memrealtime s[{S_RT+2}:{S_RT+3}]"); e("s_waitcnt lgkmcnt(0)")
            e(f"v_writelane_b32 v{V_ST[0]}, s{S_ST}, 62"); e(f"v_writelane_b32 v{V_ST[1]}, s{S_ST+2}, 62")
            e(f"v_writelane_b32 v{V_ST[0]}, s{S_RT}, 61"); e(f"v_writelane_b32 v{V_ST[1]}, s{S_RT+2}, 61")
            e(f"s_lshl_b32 s{S_TA}, s2, 2"); e(f"s_add_u32 s{S_TA}, s{S_TA}, s{S_WAVE}"); e(f"s_lshl_b32 s{S_TA}, s{S_TA}, 9")
            e(f"s_add_u32 s{S_TA}, s{S_TA}, {hex(ST_OFF)}"); e("v_lshrrev_b32 v0, 2, v0")
            e(f"buffer_store_dword v{V_ST[0]}, v0, {sr(S_WS,4)}, s{S_TA} offen")
            e(f"buffer_store_dword v{V_ST[1]}, v0, {sr(S_WS,4)}, s{S_TA} offen offset:256")
            if o.echo:
                a, b = o.echo.split(",")
                if a == "pad":
                    e(f"s_add_u32 s{S_TB}, s{S_RT}, {b}")
                else:
                    reg = V_ST[0] if o.echoc else V_ST[1]
                    if a == "s": e(f"s_mov_b32 s{S_TA}, s{S_D0 if o.echoc else S_RT}")
                    else: e(f"v_readlane_b32 s{S_TA}, v{reg}, {a}")
                    if b == "e": e(f"s_mov_b32 s{S_TB}, s{S_ST+2 if o.echoc else S_RT+2}")
                    else: e(f"v_readlane_b32 s{S_TB}, v{reg}, {b}")
                    e("s_nop 4")
                    e(f"s_sub_u32 s{S_TB}, s{S_TB}, s{S_TA}")
                    if o.echoc: e(f"s_lshr_b32 s{S_TB}, s{S_TB}, 4")
                    e(f"s_min_u32 s{S_TB}, s{S_TB}, 20000")
                    e(f"s_add_u32 s{S_TB}, s{S_TB}, s{S_RT+2}")
                self.label("L_echo")
                e(f"s_memrealtime s[{S_ST}:{S_ST+1}]"); e("s_waitcnt lgkmcnt(0)")
                e(f"s_sub_u32 s{S_ST}, s{S_ST}, s{S_TB}"); e(f"s_cmp_lt_i32 s{S_ST}, 0"); e("s_cbranch_scc1 L_echo")
        e("s_endpgm")

    def sizes(self, lines):
        import subprocess, tempfile, os
        labels = set()
        for l in lines:
            m = re.search(r"(?:branch\w*|L_\w+-)\s*(\w+)", l)
        src = '.amdgcn_target "amdgcn-amd-amdhsa--gfx950"\n.text\n'
        body = []
        for l in lines:
            if l.endswith(":"): continue
            if "branch" in l: l = "s_nop 0"
            l = re.sub(r"L_\w+-L_pc(-4)?", "0x12345", l)
            body.append(l)
        with tempfile.TemporaryDirectory() as d:
            open(d + "/a.s", "w").write(src + "\n".join(body) + "\n")
            subprocess.run(["clang", "-x", "assembler", "-target", "amdgcn-amd-amdhsa", "-mcpu=gfx950", "-c", d + "/a.s", "-o", d + "/a.o"], check=True)
            dis = subprocess.run(["llvm-objdump", "-d", "--mcpu=gfx950", d + "/a.o"], capture_output=True, text=True).stdout
        sz = [4 * len(l.split(": ")[-1].split()) for l in dis.splitlines() if "//" in l]
        assert len(sz) == len(body), (len(sz), len(body))
        out = []; k = 0
        for l in lines:
            if l.endswith(":"): out.append(0)
            else: out.append(sz[k]); k += 1
        return out
    def add_hops(self, o, caps):
        sz = self.sizes(o)
        wt = []; w = 1
        for l in o:
            if l == "L_G0:": w = 13
            if l == "L_T14:": w = 2
            if l == "L_G1:": w = 19
            if l == "L_TAIL:": w = 1
            wt.append(w)
        def layout(X):
            out = ["@HOP"]; pos = X + 4; nextpage = 4096; cost = 0
            i = 0
            while i < len(o):
                if pos >= nextpage:
                    best = None; p = pos; j = i
                    while j < len(o) and p < nextpage + 56:
                        if j > 0 and o[j - 1].startswith("v_mfma"):
                            n = 0
                            while j + n < len(o) and not o[j + n].startswith("v_mfma"): n += 1
                            if best is None or n < best[0]: best = (n, j)
                        p += sz[j]; j += 1
                    tgt = best[1] if best else i
                    cost += wt[tgt] * (2 + 10 * min(best[0] if best else 1, 1))
                    while i < tgt:
                        out.append(o[i]); pos += sz[i]; i += 1
                    out.append("@HOP"); pos += 4
                    nextpage += 4096
                    continue
                if o[i] in ("L_G0:", "L_G1:") and self.opt.algn >= 0:
                    need = ((self.opt.algn - pos) % 64) // 4
                    k = len(out)
                    if out[-1].startswith("s_branch"):
                        out += ["s_nop 0"] * need; pos += 4 * need; need = 0
                    while need > 0:
                        while not (out[k - 1].startswith("v_mfma") and (k == len(out) or out[k].startswith("v_mfma"))):
                            k -= 1
                            if out[k] == "@HOP": cost += 1000
                        m = min(need, 3)
                        out[k:k] = ["s_nop 0"] * m; pos += 4 * m; need -= m; k -= 1
                out.append(o[i]); pos += sz[i]; i += 1
            return cost + 30 * out.count("@HOP"), X, out
        cost, self.skip, out = min((layout(X) for X in range(0, 4096, 64)), key=lambda r: r[:2])
        self.hopcost = cost
        for b in caps:
            for l in b:
                out.append(l)
                if l.endswith(":") and l.startswith("CAP"): out.append("@HOP")
        n = out.count("@HOP"); k = 0; res = []
        for l in out:
            if l == "@HOP":
                res.append(f"HOP{k}:"); res.append(f"s_cbranch_execz " + (f"HOP{k+4}" if k + 4 < n else "HOPEND")); k += 1
            else: res.append(l)
        self.nhops = n
        return res

    def build(self):
        self.stored = set()
        self.prologue()
        main = self.out
        texts = {}
        def gen(kind, layer, t):
            self.out = []
            self.body(kind, layer, t)
            if kind in texts and texts[kind] != self.out:
                for a, b in zip(texts[kind], self.out):
                    if a != b: print("DIFF", kind, layer, t, a, "|", b); break
                raise RuntimeError(f"body {kind} differs at layer {layer} t {t}")
            texts[kind] = self.out
        for layer in range(3):
            for t in range(16 if layer < 2 else 13):
                if layer == 0: kind = "E0" if t == 0 else ("G0" if t < 14 else f"T{t}")
                else: kind = "H0" if t == 0 else (f"S{t}" if t < 4 else ("G1" if t < 14 else f"T{t}"))
                gen(kind, layer, t)
        self.out = []; self.tail(); texts["TAIL"] = self.out
        if self.opt.x:
            x = self.opt.x; g = []
            for l in texts["G1"]:
                if "d" in x and l.startswith("buffer_load_dwordx4"): l = "s_mov_b32 s70, 0x12345"
                if "p" in x and l.startswith("s_cbranch_scc1 SLOW"): l = "s_nop 0"
                if "p" in x and l.startswith("buffer_load_dword "): l = "s_mov_b32 s70, 0x12345"
                if "f" in x and l.startswith("buffer_store_dword "): l = "s_mov_b32 s70, 0x12345"
                if "b" in x and l == "s_barrier": l = "s_nop 0"
                if "l" in x and l.startswith("ds_read"): l = "s_mov_b32 s70, 0x12345"
                g.append(l)
            texts["G1"] = g
            if "p" in x: texts["TAIL"] = ["s_nop 0" if l.startswith("s_cbranch_scc1 SLOW") else l for l in texts["TAIL"]]
        o = texts["E0"][:]
        o += self.entry.get("G0", [])
        o += ["L_G0:"] + texts["G0"] + ["s_cbranch_scc1 L_G0"]
        o += ["L_T14:"] + texts["T14"] + texts["T15"] + texts["H0"] + texts["S1"] + texts["S2"] + texts["S3"]
        o += self.entry.get("G1", [])
        o += ["L_G1:"] + texts["G1"] + ["s_cbranch_scc1 L_G1"]
        o += [f"s_cmp_eq_u32 s{S_LAYER}, 1", "s_cbranch_scc1 L_T14"]
        o += ["L_TAIL:"] + texts["TAIL"]
        caps = [b for k, b in self.ool.items() if k.startswith("CAP")]
        slow = [b for k, b in self.ool.items() if not k.startswith("CAP")]
        if self.opt.hops:
            o = self.add_hops(o, caps)
            o = main + ["s_branch L_main"] + sum(slow, []) + [".p2align 12"] + ([f".fill {self.skip//4}, 4, 0xbf800000"] if self.skip else []) + ["L_main:"] + o
        else:
            o = main + o + sum(caps, []) + sum(slow, [])
        self.texts = texts
        hdr = open("standalone__dcn_v2_cross__recsys.s.ref").read().split("\n")
        top = [l for l in hdr if l.startswith(";") and "@launch" not in l]
        if self.opt.diag: top.append("; STAMPS " + ("RT " if self.opt.diagrt else "CY ") + " ".join(self.stamps))
        txt = "\n".join(top) + f"\n; @launch grid=(256,1,1) block=(256,1,1) lds={SLOT*5}\n"
        txt += f""".amdgcn_target "amdgcn-amd-amdhsa--gfx950"
.text
.globl {NAME}
.p2align 8
.type {NAME},@function
{NAME}:
"""
        txt += "\n".join(o) + "\nL_codeend:\n"
        txt += f""".section .rodata,"a"
.p2align 6
.amdhsa_kernel {NAME}
  .amdhsa_next_free_vgpr 512
  .amdhsa_next_free_sgpr 102
  .amdhsa_accum_offset 256
  .amdhsa_group_segment_fixed_size 0
  .amdhsa_kernarg_size 48
  .amdhsa_user_sgpr_count 2
  .amdhsa_user_sgpr_kernarg_segment_ptr 1
  .amdhsa_system_sgpr_workgroup_id_x 1
  .amdhsa_float_denorm_mode_32 3
.end_amdhsa_kernel
"""
        return txt

if __name__ == "__main__":
    ap = argparse.ArgumentParser()
    ap.add_argument("-o", default="k3.s")
    ap.add_argument("--diag", action="store_true")
    ap.add_argument("--diagrt", action="store_true")
    ap.add_argument("--diagc", action="store_true")
    ap.add_argument("--pace", type=float, default=7)
    ap.add_argument("--pacex", type=float, default=7.5)
    ap.add_argument("--paceh", type=float, default=8)
    ap.add_argument("--pacet", type=float, default=3.3)
    ap.add_argument("--xr15", type=float, default=0.15)
    ap.add_argument("--xr0", type=float, default=-1)
    ap.add_argument("--xrt", type=float, default=0.0)
    ap.add_argument("--flag0", type=int, default=0)
    ap.add_argument("--early", type=int, default=10)
    ap.add_argument("--direct", default="8444")
    ap.add_argument("--cpos", default="222")
    ap.add_argument("--asc", type=int, default=1)
    ap.add_argument("--xtouch", type=int, default=0)
    ap.add_argument("--tpf", type=int, default=0)
    ap.add_argument("--hops", type=int, default=1)
    ap.add_argument("--fmode", type=int, default=0)
    ap.add_argument("--fpub", default="01234567")
    ap.add_argument("--xbpos", type=int, default=12)
    ap.add_argument("--snake", type=int, default=1)
    ap.add_argument("--wpos", type=int, default=1)
    ap.add_argument("--diag2", action="store_true")
    ap.add_argument("--pace0", type=float, default=7)
    ap.add_argument("--pacex0", type=float, default=7.5)
    ap.add_argument("--xrot", type=int, default=0)
    ap.add_argument("--b0pre", type=int, default=4)
    ap.add_argument("--xsp", type=float, default=1.2)
    ap.add_argument("--xso", type=float, default=3.0)
    ap.add_argument("--gw", type=int, default=14)
    ap.add_argument("--xkeep", type=lambda x: [int(y) for y in x.split(",")], default=[])
    ap.add_argument("--entry", type=int, default=1)
    ap.add_argument("--finit", type=int, default=1)
    ap.add_argument("--stx", type=int, default=0)
    ap.add_argument("--stpos", type=int, default=0)
    ap.add_argument("--fdrop", type=int, default=1)
    ap.add_argument("--pollpos", type=int, default=0)
    ap.add_argument("--wpf", type=int, default=0)
    ap.add_argument("--wpd", type=int, default=2)
    ap.add_argument("--algn", type=int, default=16)
    ap.add_argument("--tsplit", type=int, default=0)
    ap.add_argument("--touch", type=int, default=2)
    ap.add_argument("--prex", type=int, default=0)
    ap.add_argument("--zdist", type=int, default=5)
    ap.add_argument("--rdist", type=int, default=8)
    ap.add_argument("--wl2", type=int, default=0)
    ap.add_argument("--echo", default="")
    ap.add_argument("--echoc", type=int, default=0)
    ap.add_argument("--x0f", default="nt")
    ap.add_argument("--e1out", type=int, default=1)
    ap.add_argument("--wwarm", type=int, default=1)
    ap.add_argument("--w0warm", type=int, default=0)
    ap.add_argument("-x", default="")
    ap.add_argument("--wr128", type=int, default=0)
    ap.add_argument("--nft", type=int, default=24)
    ap.add_argument("--sp", type=float, default=10)
    ap.add_argument("--spo", type=float, default=22)
    ap.add_argument("--sp2", type=float, default=9)
    ap.add_argument("--spo2", type=float, default=16)
    ap.add_argument("--xrb", type=float, default=0.0)
    ap.add_argument("--fdrain", type=int, default=1)
    ap.add_argument("--fgrp", type=int, default=3)
    ap.add_argument("--outf", default="sc1")
    opt = ap.parse_args()
    if opt.diagrt: opt.diag = True
    SNAKE = bool(opt.snake)
    if opt.xr0 < 0:
        opt.xr0 = 0.0
        while True:
            try:
                g = G(opt); txt = g.build(); break
            except AssertionError as ex:
                if not (ex.args and (ex.args[0] == "stream left" or ex.args[0][0] == "deadline")): raise
                opt.xr0 += 0.01
                if opt.xr0 > 1: raise
    else:
        g = G(opt); txt = g.build()
    open(opt.o, "w").write(txt)
    print(f"xr0 {opt.xr0:.2f} skip {getattr(g,'skip',0)} hopcost {getattr(g,'hopcost',0)} nhops {getattr(g,'nhops',0)} fallback waits:", g.warn, {k: len(v) for k, v in g.texts.items()})
```

```python
import sys, re, argparse

NAME = "standalone__dcn_v2_cross__recsys_kernel"
SLOT = 32768
FL_OFF = 64 << 20
EP_OFF = FL_OFF + 65536
ST_OFF = 80 << 20

def vr(b, n=1, p="v"):
    return f"{p}{b}" if n == 1 else f"{p}[{b}:{b+n-1}]"
def ar(b, n=1): return vr(b, n, "a")
def sr(b, n=1): return vr(b, n, "s")

def XF(mt, s): return (mt * 2 + s) * 4
def WF(buf, s): return 64 + buf * 8 + s * 4
def X0(p, mt): return 80 + (p * 8 + mt) * 4
def SEL(h): return 208 + 4 * h
ACC_A0 = 216
ACC_V0 = 40
_acc = {}
def _init_acc():
    va, aa = ACC_V0, ACC_A0
    for nt in range(8):
        for mt in range(8):
            if nt == 7 or (nt == 6 and mt < 2):
                _acc[(mt, nt)] = ("a", aa); aa += 4
            else:
                _acc[(mt, nt)] = ("v", va); va += 4
    assert va == 256 and aa == 256
_init_acc()
def ACC(mt, nt): return _acc[(mt, nt)]

V_L16 = 0; V_XA = [1, 2]; V_WA = [3, 4]; V_WC = [5, 6]; V_XC = [7, 8]; V_CPG = 15; V_CPL = 9
V_POLL = 10; V_FLAG = 11; V_B = 12; V_ST = [13, 14]; V_T = 16; V_XT = 30; V_CAP = 36; V_WT = 37; V_BR = 38
S_DW = 4; S_TR = 5; S_E0 = 6; S_KEY = 7
S_W = 8; S_X0 = 12; S_WS = 16; S_OUT = 20; S_B = 24
S_WT = 28; S_XT = 32
S_X = 36
S_WR = 39
S_Q = 41
S_WCUR = 44; S_WL = 45; S_XB = 46; S_FB = 47; S_FOWN = 48; S_EP = 49; S_NEED = 50; S_FV = 51; S_WLM = 52
S_PA = 53; S_J = 54; S_WAVE = 55; S_RB = 56; S_LOOP = 57; S_LAYER = 58; S_ADJ = 59; S_OADJ = 60; S_WC64 = 61
S_M4 = 62; S_MASK = 65; S_EPOFF = 66; S_CNT = 67; S_CAPJ = 68; S_BOFF = 69
S_TA = 70; S_TB = 71; S_TC = 72; S_TD = 73; S_TE = 74; S_TF = 75; S_O2 = 76; S_O3 = 77; S_WR14 = 78; S_DX = 79
S_PC = 80; S_ST = 82; S_RT = 86; S_SI = 90; S_LEND = 91; S_D0 = 92
S_FQ = 96
S_TG = 99; S_TH = 100; S_M7 = 101; S_XCUR = 3; S_XTO = 28

RANK = {"S": 0, "G": 1, "D": 2, "V": 3}

class Sched:
    def __init__(self, n, maxS=3):
        self.n = n
        self.g = [[] for _ in range(n)]
        self.closedS = set()
        self.maxS = maxS
    def fits(self, g, kind):
        kinds = [k for k, _ in self.g[g]]
        if kind == "G": return len(kinds) == 0
        if "G" in kinds: return False
        nvec = sum(k in "DV" for k in kinds)
        if kind == "S":
            if g in self.closedS or kinds.count("S") >= self.maxS: return False
            return len(kinds) < 3
        return nvec < 2 and len(kinds) < 3
    def put(self, g, kind, fn): self.g[g].append((kind, fn))
    def place(self, kind, fn, lo, hi=None):
        hi = self.n - 1 if hi is None else hi
        for g in range(lo, hi + 1):
            if self.fits(g, kind):
                self.put(g, kind, fn); return g
        raise RuntimeError(f"cannot place {kind} in [{lo},{hi}]")
    def chain(self, items, lo, hi=None):
        out = []; g = lo; pk = None
        for kind, fn in items:
            if pk is not None and (RANK[kind] < RANK[pk] or kind == "G" or pk == "G"): g += 1
            g = self.place(kind, fn, g, hi)
            out.append(g); pk = kind
        return out
    def branch(self, cmpfn, brfn, lo):
        for g in range(lo, self.n - 1):
            if self.fits(g, "S") and self.fits(g + 1, "G"):
                self.put(g, "S", cmpfn); self.closedS.add(g); self.put(g + 1, "G", brfn); return g + 1
        raise RuntimeError("branch")
    def last_su(self):
        last = 0
        for g in range(self.n):
            if any(getattr(f, "su", False) for _, f in self.g[g]): last = g
        return last + 1

def mt_off(mt):
    if mt == 0: return "0", 0
    if mt < 4: return f"s{S_XT+mt}", (mt & 1) * 2048
    return f"s{[S_M4, S_M4+1, S_M4+2, S_M7][mt-4]}", 0

SNAKE = True
def blk(nt, cinit=False):
    r = []
    for mt in range(8):
        ss = (0, 1) if (mt % 2 == 0 and SNAKE) else (1, 0)
        r += [(mt, nt, ss[0], cinit), (mt, nt, ss[1], False)]
    return r

class G:
    def __init__(self, opt):
        self.opt = opt
        self.out = []
        self.vq = []; self.lq = []
        self.ool = {}
        self.slot = {}
        self.lds_own = {}
        self.xa = None; self.wa = None
        self.warn = 0
        self.stamps = []
        self.stream = []; self.stream2 = []; self.entry = {}
        self.pending = None
    def e(self, s): self.out.append(s)
    def E(self, s): return lambda: self.e(s)
    def S(self, s): return ("S", self.E(s))
    def V(self, s): return ("V", self.E(s))
    def SU(self, s, then=None):
        def f():
            self.e(s)
            if then: then()
        f.su = True
        return ("S", f)
    def label(self, n): self.out.append(n + ":")
    def vm(self, s, tag=None):
        self.e(s); self.vq.append(tag); assert len(self.vq) <= 62
    def VM(self, s, tag=None): return ("G", lambda: self.vm(s, tag))
    def lds(self, s, tag=None):
        self.e(s); self.lq.append(tag)
    def _need(self, q, tags, mx, force=None):
        idx = -1
        for i, t in enumerate(q):
            if t in tags: idx = i
        if idx < 0 and force is None: return None
        n = len(q) - 1 - idx
        if force is not None:
            assert n >= force or idx < 0, (n, force, q)
            n = force
        n = min(n, mx)
        if len(q) > n: del q[:len(q) - n]
        return n
    def wait(self, vtags=(), ltags=(), lall=False, vforce=None):
        parts = []
        n = self._need(self.vq, set(vtags), 62, vforce)
        if n is not None: parts.append(f"vmcnt({n})")
        if lall:
            parts.append("lgkmcnt(0)"); self.lq = []
        else:
            n = self._need(self.lq, set(ltags), 14)
            if n is not None: parts.append(f"lgkmcnt({n})")
        if parts: self.e("s_waitcnt " + " ".join(parts))
    def smov(self, d, s):
        def f():
            self.e(f"s_mov_b32 s{d}, s{s}"); self.slot[d] = self.slot[s]
        return ("S", f)

    def mfma(self, m):
        if m[0] == "U":
            _, p, mt, h, tb = m
            self.e(f"v_mfma_f32_16x16x32_bf16 {vr(tb+4*h,4)}, {ar(SEL(h),4)}, {ar(X0(p,mt),4)}, 0")
            return
        mt, nt, s, cinit = m
        buf = nt & 1
        tags = {("XF", mt, s), ("WF", buf, s, 0), ("WF", buf, s, 1)}
        if tags & set(self.lq):
            self.warn += 1
            self.wait(ltags=tags)
        p, r = ACC(mt, nt)
        c = vr(r, 4, p)
        if cinit and p == "v" and mt != 7: c = vr(ACC(7, nt)[1], 4)
        self.e(f"v_mfma_f32_16x16x32_bf16 {vr(r,4,p)}, {ar(WF(buf,s),4)}, {ar(XF(mt,s),4)}, {c}")
    def rd_xf(self, mt, s, want):
        def f():
            assert self.lds_own[self.xa] == want, (self.lds_own[self.xa], want)
            self.lds(f"ds_read_b128 {ar(XF(mt,s),4)}, v{V_XA[s]} offset:{mt*2048}", ("XF", mt, s))
        return f
    def rd_wf(self, nt, s, u, want, half=None):
        p, h = nt >> 1, nt & 1
        if callable(half): half = half(nt)
        off = (p >> 1 if half is None else half) * 16384 + (p & 1) * 512 + s * 8192 + u * 4096
        def f():
            if half is None: assert self.lds_own[self.wa[h]] == want, (self.lds_own[self.wa[h]], want)
            else:
                assert self.lds_half[(self.wa[h], half)] == want + (p >> 1,), (self.lds_half, self.wa[h], half, want, nt)
                assert want + (p >> 1,) in self.landed
            self.lds(f"ds_read_b64_tr_b16 {ar(WF(h,s)+2*u,2)}, v{V_WA[h]} offset:{off}", ("WF", h, s, u))
        return f
    def dma_items(self, what, sdst, form):
        items = []
        if form == "X0" and self.opt.xrot:
            RM = [S_O2, S_O3, S_Q + 1, S_Q + 2]; RS = [S_WLM, S_KEY, S_TG, S_TH]
            for k in range(4):
                items.append(self.SU(f"s_add_u32 m0, s{sdst}, s{RM[k]}", lambda: self.lds_own.__setitem__(self.slot[sdst], what)))
                for i in range(2):
                    items.append(self.VM(f"buffer_load_dwordx4 v{V_XC[i]}, {sr(S_X0,4)}, s{RS[k]} offen" + (" offset:1024" if i else "") + f" {self.opt.x0f} lds", what))
            return items
        for i in range(8):
            if i == 0: items.append(self.SU(f"s_mov_b32 m0, s{sdst}", lambda: self.lds_own.__setitem__(self.slot[sdst], what)))
            if i == 4:
                def chk(): assert self.lds_own[self.slot[sdst]] == what
                items.append(self.SU(f"s_add_u32 m0, s{sdst}, 0x1000", chk))
            off = f" offset:{(i&3)*1024}" if i & 3 else ""
            if form == "W":
                so = "0" if i < 2 else f"s{S_WT+(i>>1)}"
                s = f"buffer_load_dwordx4 v{V_WC[i&1]}, {sr(S_W,4)}, {so} offen{off} lds"
            elif form == "X0":
                so = "0" if i < 2 else f"s{S_XT+(i>>1)}"
                s = f"buffer_load_dwordx4 v{V_XC[i&1]}, {sr(S_X0,4)}, {so} offen{off} {self.opt.x0f} lds"
            else:
                so = "0" if i < 2 else f"s{S_XT+(i>>1)}"
                s = f"buffer_load_dwordx4 v{V_XC[i&1]}, {sr(S_X0,4)}, {so} offen{off} sc1 lds"
            items.append(self.VM(s, what))
        return items
    def place_dma(self, sc, items, lo, pace):
        g = lo; prev = -1; pend = None
        for kind, fn in items:
            if kind == "S": pend = fn; continue
            g0 = max(int(g), prev + 1)
            if pend is not None:
                gs = sc.place("S", pend, max(prev + 1, g0 - 2, 0)); g0 = max(g0, gs + 1); pend = None
            prev = sc.place("G", fn, g0)
            g += pace
        return prev
    def w_setup(self, tidreg, base):
        return [self.S(f"s_lshl_b32 s{S_TA}, s{tidreg}, 17"), self.S(f"s_add_u32 s{S_TA}, s{S_TA}, s{base}"),
                self.S(f"s_sub_u32 s{S_TB}, s{S_TA}, s{S_WCUR}"), self.S(f"s_mov_b32 s{S_WCUR}, s{S_TA}"),
                self.V(f"v_add_u32 v{V_WC[0]}, s{S_TB}, v{V_WC[0]}"), self.V(f"v_add_u32 v{V_WC[1]}, s{S_TB}, v{V_WC[1]}")]
    def x_setup(self, tidreg):
        return [self.S(f"s_lshl_b32 s{S_TE}, s{tidreg}, 7"), self.S(f"s_sub_u32 s{S_DX}, s{S_TE}, s{S_XCUR}"), self.S(f"s_mov_b32 s{S_XCUR}, s{S_TE}"),
                self.V(f"v_add_u32 v{V_XC[0]}, s{S_DX}, v{V_XC[0]}"), self.V(f"v_add_u32 v{V_XC[1]}, s{S_DX}, v{V_XC[1]}")]
    def flag_items(self):
        return [self.V(f"v_mov_b32 v{V_FLAG}, s{S_FV}"),
                self.VM(f"buffer_store_dword v{V_FLAG}, off, {sr(S_WS,4)}, s{S_FOWN} sc1", "F"),
                self.S(f"s_add_u32 s{S_FV}, s{S_FV}, 1")]
    def poll_check(self, sc, name, tag, lo):
        sl, bk = f"SLOW_{name}", f"BACK_{name}"
        def f0():
            assert tag not in self.vq
            self.e(f"v_readfirstlane_b32 s{S_TC}, v{V_POLL}")
        c = sc.chain([self.S(f"s_and_b32 s{S_TD}, s{S_Q+1}, 3"), self.S(f"s_add_u32 s{S_TD}, s{S_TD}, s{S_NEED}"),
                      ("V", f0), self.S(f"s_sub_u32 s{S_TC}, s{S_TC}, s{S_TD}")], lo)
        def br():
            self.e(f"s_cbranch_scc1 {sl}"); self.label(bk)
        gbr = sc.branch(self.E(f"s_cmp_gt_u32 s{S_TC}, 7"), br, c[-1])
        self.ool[sl] = [f"{sl}:",
                        f"buffer_load_dword v{V_POLL}, off, {sr(S_WS,4)}, s{S_PA} sc1", "s_waitcnt vmcnt(0)",
                        f"v_readfirstlane_b32 s{S_TC}, v{V_POLL}", f"s_cmp_eq_u32 s{S_CNT}, 0", f"s_cbranch_scc1 {bk}",
                        f"s_sub_u32 s{S_CNT}, s{S_CNT}, 1",
                        f"s_sub_u32 s{S_TC}, s{S_TC}, s{S_TD}", f"s_cmp_gt_u32 s{S_TC}, 7", f"s_cbranch_scc0 {bk}",
                        "s_sleep 1", f"s_branch {sl}"]
        return gbr
    def stamp(self, which):
        if self.opt.diagrt:
            if which == 1:
                self.e(f"s_memtime s[{S_ST}:{S_ST+1}]"); self.e(f"s_memrealtime s[{S_ST+2}:{S_ST+3}]")
            return
        self.e(f"s_memtime s[{S_ST+2*which}:{S_ST+2*which+1}]")
    def stamp_items(self):
        def f():
            self.e(f"s_lshl_b64 exec, 1, s{S_SI}"); self.e(f"v_mov_b32 v{V_ST[0]}, s{S_ST}"); self.e(f"v_mov_b32 v{V_ST[1]}, s{S_ST+2}")
            self.e("s_mov_b64 exec, -1"); self.e(f"s_add_u32 s{S_SI}, s{S_SI}, 1")
        return [("G", f)]
    def epi_valu(self, p, mt, tb, at, ob):
        ops = []
        for h in range(2):
            pf, r = ACC(mt, 2 * p + h)
            if pf == "a":
                for i in range(4): ops.append(f"v_accvgpr_read_b32 v{at+i}, a{r+i}")
                r = at
            for i in range(4): ops.append(f"v_mul_f32 v{tb+4*h+i}, v{tb+4*h+i}, v{r+i}")
        for d in range(4): ops.append(f"v_cvt_pk_bf16_f32 v{ob+d}, v{tb+2*d}, v{tb+2*d+1}")
        return ops
    def bunpack(self, nt, d):
        dpp = f"row_newbcast:{nt} row_mask:0xf bank_mask:0xf"
        return [f"v_mov_b32_dpp v{d[1]}, v{V_BR} {dpp}", f"v_mov_b32_dpp v{d[3]}, v{V_BR+1} {dpp}",
                f"v_lshlrev_b32 v{d[0]}, 16, v{d[1]}", f"v_and_b32 v{d[1]}, s{S_MASK}, v{d[1]}",
                f"v_lshlrev_b32 v{d[2]}, 16, v{d[3]}", f"v_and_b32 v{d[3]}, s{S_MASK}, v{d[3]}"]
    def bias_sched(self, sc, nt, g, busy):
        a0 = V_T + 10
        f = [V_T + 16 + i for i in range(4)]
        g = sc.chain([self.V(x) for x in self.bunpack(nt, f)], g)[-1]
        ops = []
        for mt in range(8):
            pf, a = ACC(mt, nt)
            if pf == "v":
                ops += [f"v_add_f32 v{a+i}, v{a+i}, v{f[i]}" for i in range(4)]
            else:
                for i in (0, 2):
                    ops += [f"v_accvgpr_read_b32 v{a0}, a{a+i}", f"v_accvgpr_read_b32 v{a0+1}, a{a+i+1}",
                            f"v_add_f32 v{a0}, v{a0}, v{f[i]}", f"v_add_f32 v{a0+1}, v{a0+1}, v{f[i+1]}",
                            f"v_accvgpr_write_b32 a{a+i}, v{a0}", f"v_accvgpr_write_b32 a{a+i+1}, v{a0+1}"]
        b0, b1 = busy
        est = g + len(ops) // 2 + len(ops) // 3 + 4
        if est < b0 - 2: lo, hi = g, b0 - 2
        else: lo, hi = max(g, b1 + 6), sc.n - 1
        return sc.chain([self.V(x) for x in ops], lo, hi)[-1]
    def bias0_ops(self, nt):
        d = ACC(7, nt)[1]
        return self.bunpack(nt, [d, d + 1, d + 2, d + 3]) + [f"v_add_f32 v{d+i}, 1.0, v{d+i}" for i in range(4)]

    def prologue(self):
        e = self.e; o = self.opt
        e("s_cmp_lt_u32 s2, 256"); e("s_cbranch_scc1 L_go"); e("s_endpgm")
        self.label("L_go")
        for r, off in ((S_X0, 0), (S_W, 8), (S_B, 16), (S_OUT, 24), (S_WS, 40)):
            e(f"s_load_dwordx2 s[{r}:{r+1}], s[0:1], {off}")
        if o.diag:
            e(f"s_memrealtime s[{S_RT}:{S_RT+1}]"); e(f"s_memtime s[{S_D0}:{S_D0+1}]")
        nst = [0]
        def pst():
            if not o.diag2: return
            e(f"s_memtime s[{S_D0+2}:{S_D0+3}]"); e("s_waitcnt lgkmcnt(0)"); e(f"v_writelane_b32 v{V_ST[0]}, s{S_D0+2}, {52+nst[0]}"); nst[0] += 1
        T = 40
        lane, m, q, r4, c4, q1, tw, t0, t1, t2 = [f"v{T+i}" for i in range(10)]
        e(f"s_getpc_b64 s[{S_PC}:{S_PC+1}]")
        self.label("L_pc")
        e(f"v_lshrrev_b32 {t0}, 6, v0")
        e("s_lshr_b32 s3, s2, 3")
        e(f"v_readfirstlane_b32 s{S_WAVE}, {t0}")
        e("v_lshrrev_b32 v16, 4, v0")
        e("v_lshl_add_u32 v16, s3, 4, v16")
        e("v_lshlrev_b32 v16, 7, v16")
        e(f"v_min_u32 v31, L_codeend-L_pc-4, v16")
        self.vm(f"global_load_dword v{V_POLL}, v31, s[{S_PC}:{S_PC+1}]", "PF")
        e(f"s_and_b32 s{S_RB}, s2, 7"); e(f"s_lshr_b32 s{S_TC}, s2, 5"); e(f"s_lshl3_add_u32 s{S_RB}, s{S_RB}, s{S_TC}")
        e(f"v_bfe_u32 {t1}, v0, 3, 3"); e(f"v_and_b32 {t2}, 7, v0"); e(f"v_bfe_u32 {q}, v0, 4, 2")
        e(f"v_xor_b32 {t0}, {t2}, {q}"); e(f"v_lshlrev_b32 {t0}, 4, {t0}"); e(f"v_lshl_add_u32 {t0}, {t1}, 11, {t0}")
        e(f"s_lshl2_add_u32 s{S_PA}, s{S_RB}, s{S_WAVE}"); e(f"s_lshl_b32 s{S_PA}, s{S_PA}, 17")
        e(f"v_add_u32 v{V_XC[0]}, s{S_PA}, {t0}")
        e(f"v_xor_b32 v{V_XC[1]}, 64, v{V_XC[0]}"); e(f"v_add_u32 v{V_XC[1]}, {16384-1024}, v{V_XC[1]}")
        e(f"s_lshl_b32 s{S_X}, s{S_WAVE}, 13"); self.slot[S_X] = 0
        e(f"s_mov_b32 s{S_X0+2}, {16384*1024*2}"); e(f"s_mov_b32 s{S_X0+3}, 0x20000")
        e(f"s_and_b32 s{S_J}, s3, 3")
        for k in range(1, 4): e(f"s_mov_b32 s{S_XT+k}, {k*32768 - (k&1)*2048}")
        if o.xrot:
            for k, (rm, rs) in enumerate(zip([S_O2, S_O3, S_Q + 1, S_Q + 2], [S_WLM, S_KEY, S_TG, S_TH])):
                e(f"s_add_u32 s{rm}, s{S_J}, {k}"); e(f"s_and_b32 s{rm}, s{rm}, 3"); e(f"s_lshl_b32 s{rs}, s{rm}, 15"); e(f"s_lshl_b32 s{rm}, s{rm}, 11")
        e(f"v_bfe_u32 {r4}, v0, 2, 2")
        e(f"s_lshl_b32 s{S_CNT}, s{S_TC}, 15"); e(f"s_add_u32 s{S_CNT}, s{S_CNT}, s{S_X}")
        e(f"s_lshl_b32 s{S_BOFF}, s{S_J}, 9"); e(f"s_add_u32 s{S_CNT}, s{S_CNT}, s{S_BOFF}")
        e(f"v_lshlrev_b32 {tw}, 7, {r4}"); e(f"v_lshl_add_u32 {tw}, {q}, 11, {tw}")
        e(f"s_mov_b32 s{S_W+2}, {3*1024*1024*2}"); e(f"s_mov_b32 s{S_W+3}, 0x20000")
        xit = self.dma_items(("X", 0, 0), S_X, "X0")
        xit[0][1](); xit = xit[1:]
        if o.diag: e(f"v_mov_b32 v{V_ST[0]}, 0"); e(f"v_mov_b32 v{V_ST[1]}, 0")
        e("s_waitcnt lgkmcnt(0)")
        if o.diag: e(f"s_memtime s[{S_ST}:{S_ST+1}]")
        def run(items):
            for k, f in items:
                f()
                if k == "S": e("s_nop 0")
        def wtouch(): self.vm(f"buffer_load_dword v{V_POLL}, {tw}, {sr(S_W,4)}, s{S_CNT} offen", "PF")
        if o.touch == 1: wtouch()
        run(xit)
        if o.touch == 2: wtouch()
        e(f"s_mov_b32 s{S_B+2}, {3*1024*2}"); e(f"s_mov_b32 s{S_B+3}, 0x20000")
        self.vm(f"buffer_load_dword v{V_POLL}, {tw}, {sr(S_B,4)}, s{S_BOFF} offen", "PF")
        pst()
        e(f"s_lshl_b32 s{S_EPOFF}, s{S_RB}, 7"); e(f"s_add_u32 s{S_EPOFF}, s{S_EPOFF}, {hex(EP_OFF)}")
        if not o.diag2: e(f"s_load_dword s{S_EP}, s[{S_WS}:{S_WS+1}], s{S_EPOFF}")
        e(f"v_and_b32 {lane}, 63, v0"); e(f"v_and_b32 {m}, 15, v0"); e(f"v_and_b32 {c4}, 3, v0"); e(f"v_and_b32 {q1}, 1, {q}")
        for r, sl in ((S_X + 1, 2), (S_X + 2, 4), (S_WR, 1), (S_WR + 1, 3)):
            e(f"s_add_u32 s{r}, s{S_X}, {hex(sl*SLOT)}"); self.slot[r] = sl
        e(f"v_lshlrev_b32 v{V_L16}, 4, {lane}")
        e(f"s_lshr_b32 s{S_TA}, s{S_WAVE}, 1"); e(f"s_and_b32 s{S_TB}, s{S_WAVE}, 1")
        for k in range(1, 4): e(f"s_mov_b32 s{S_WT+k}, {(16*(k&1) + 4*(k>>1))*2048 - (k&1)*2048}")
        e(f"s_lshl_b32 s{S_WC64}, s{S_TB}, 6"); e(f"s_add_u32 s{S_PA}, s{S_BOFF}, s{S_WC64}")
        e(f"v_lshlrev_b32 {t0}, 3, {q}"); e(f"v_add_u32 v{V_B}, s{S_PA}, {t0}")
        e(f"v_bfe_u32 {t0}, {lane}, 1, 2"); e(f"v_lshl_add_u32 v{V_B}, {t0}, 7, v{V_B}"); e(f"v_and_b32 {t0}, 1, {lane}"); e(f"v_lshl_add_u32 v{V_B}, {t0}, 5, v{V_B}")
        e(f"s_lshl_b32 s{S_PA}, s{S_TA}, 8"); e(f"s_add_u32 s{S_PA}, s{S_PA}, s{S_BOFF}")
        e(f"s_lshl_b32 s{S_FV}, s{S_TB}, 16"); e(f"s_add_u32 s{S_PA}, s{S_PA}, s{S_FV}")
        e(f"v_lshlrev_b32 {t0}, 4, {c4}"); e(f"v_lshl_add_u32 {t0}, {q}, 6, {t0}"); e(f"v_lshl_add_u32 {t0}, {r4}, 11, {t0}")
        e(f"v_add_u32 v{V_WC[0]}, s{S_PA}, {t0}")
        e(f"v_xor_b32 v{V_WC[1]}, 32, v{V_WC[0]}"); e(f"v_add_u32 v{V_WC[1]}, {16384-1024}, v{V_WC[1]}")
        def w0():
            self.vm(f"buffer_load_dwordx2 {vr(V_BR,2)}, v{V_B}, {sr(S_B,4)}, 0 offen", ("B", 0))
            run(self.dma_items(("W", 0, 0), S_WR, "W"))
            pst()
        if o.wpos == 0: w0()
        e(f"s_mov_b32 s{S_OUT+2}, {16384*1024*2}"); e(f"s_mov_b32 s{S_OUT+3}, 0x20000")
        e(f"s_mov_b32 s{S_WS+2}, 0x10000000"); e(f"s_mov_b32 s{S_WS+3}, 0x20000")
        e(f"s_lshl_b32 s{S_FB}, s{S_RB}, 9"); e(f"s_add_u32 s{S_FB}, s{S_FB}, {hex(FL_OFF)}")
        e(f"v_lshrrev_b32 {t0}, 1, {m}"); e(f"v_xor_b32 {t0}, {q}, {t0}"); e(f"v_lshlrev_b32 {t0}, 4, {t0}"); e(f"v_lshl_add_u32 {t0}, {m}, 7, {t0}")
        e(f"s_lshl_b32 s{S_WR14}, s{S_TA}, 14")
        e(f"v_add_u32 v{V_XA[0]}, s{S_WR14}, {t0}"); e(f"v_xor_b32 v{V_XA[1]}, 64, v{V_XA[0]}")
        self.xa = 0
        e(f"v_lshlrev_b32 {t0}, 10, {q}"); e(f"v_lshl_add_u32 {t0}, {r4}, 6, {t0}"); e(f"v_lshl_add_u32 {t0}, {q1}, 5, {t0}"); e(f"v_lshl_add_u32 {t0}, {c4}, 3, {t0}")
        e(f"s_lshl_b32 s{S_PA}, s{S_TB}, 8"); e(f"s_add_u32 s{S_PA}, s{S_PA}, {SLOT}")
        e(f"v_add_u32 v{V_WA[0]}, s{S_PA}, {t0}")
        e(f"v_xor_b32 v{V_WA[1]}, 32, v{V_WA[0]}")
        self.wa = [1, 1]
        e(f"v_and_b32 {t1}, 1, {m}"); e(f"v_lshlrev_b32 {t1}, 4, {t1}"); e(f"v_mov_b32 {t2}, 0x3f80"); e(f"v_lshlrev_b32 {t1}, {t1}, {t2}")
        e(f"v_lshlrev_b32 {t2}, 3, {q}"); e(f"v_sub_u32 {t2}, {m}, {t2}"); e(f"v_ashrrev_i32 {t2}, 1, {t2}")
        misc = [f"s_mov_b32 s{S_M4}, 0x20000", f"s_mov_b32 s{S_M4+1}, 0x28000", f"s_mov_b32 s{S_M4+2}, 0x30000", f"s_mov_b32 s{S_MASK}, 0xffff0000",
                f"s_mov_b32 s{S_WL}, 0", f"s_mov_b32 s{S_Q}, 1", f"s_mov_b32 s{S_M7}, 0x38000",
                f"s_lshl_b32 s{S_FOWN}, s{S_J}, 7", f"s_add_u32 s{S_FOWN}, s{S_FOWN}, s{S_FB}", f"s_mul_i32 s{S_OADJ}, s{S_TB}, 7168",
                f"s_mov_b32 s{S_ADJ}, 8192", f"s_mov_b32 s{S_LAYER}, 0", f"s_mov_b32 s{S_CAPJ}, s{S_J}", f"s_mov_b32 s{S_LOOP}, 1",
                f"s_mov_b32 s{S_WCUR}, 0", f"s_mov_b32 s{S_LEND}, 15"]
        for h in range(2):
            for d in range(4):
                e(f"v_cmp_eq_u32 vcc, {d - 8*h}, {t2}"); e(misc.pop(0)); e(misc.pop(0))
                e(f"v_cndmask_b32 {t0}, 0, {t1}, vcc"); e(f"v_accvgpr_write_b32 a{SEL(h)+d}, {t0}")
        for d in range(3):
            e(f"s_cmp_ge_u32 {d}, s{S_J}"); e(f"s_cselect_b32 s{S_FQ+d}, {4*(d+1)}, {4*d}")
        e(f"s_mul_i32 s{S_PA}, s{S_TB}, {131072-16384}"); e(f"s_sub_u32 s{S_PA}, s{S_BOFF}, s{S_PA}")
        e(f"v_xor_b32 v{V_CPG}, s{S_WC64}, v{V_XC[0]}"); e(f"v_add_u32 v{V_CPG}, s{S_PA}, v{V_CPG}")
        e(f"s_mov_b32 s{S_XCUR}, {15*128}")
        if o.wpf:
            e(f"s_lshl2_add_u32 s{S_XB}, s{S_TC}, s{S_WAVE}"); e(f"s_lshl_b32 s{S_XB}, s{S_XB}, 12"); e(f"s_add_u32 s{S_XB}, s{S_XB}, s{S_BOFF}")
        e(f"s_lshl2_add_u32 s{S_PA}, s2, s{S_WAVE}"); e(f"s_lshl_b32 s{S_PA}, s{S_PA}, 12"); e(f"s_add_u32 s{S_PA}, s{S_PA}, 0x200000")
        e(f"v_min_u32 v{V_CPL}, 2, {q}"); e(f"v_lshlrev_b32 v{V_CPL}, 7, v{V_CPL}")
        e(f"s_mov_b32 s{S_BOFF}, 2048"); e(f"s_mov_b32 s{S_CNT}, 0x100000")
        pst()
        if o.wpos == 1: w0()
        if o.hops:
            e("s_mov_b64 exec, 0")
            for w in range(1, 4):
                e(f"s_cmp_eq_u32 s{S_WAVE}, {w}"); e(f"s_cbranch_scc1 HOP{w}")
            e("s_branch HOP0")
            self.label("HOPEND")
            e("s_mov_b64 exec, -1")
        pst()
        if o.wpos == 2: w0()
        if o.diag: e(f"s_memtime s[{S_ST+2}:{S_ST+3}]")
        if o.diag2: e(f"s_load_dword s{S_EP}, s[{S_WS}:{S_WS+1}], s{S_EPOFF}")
        self.wait(vtags=[("B", 0)])
        for nt in range(o.b0pre):
            for x in self.bias0_ops(nt): e(x)
        if o.diag:
            e("s_waitcnt lgkmcnt(0)")
            e(f"v_writelane_b32 v{V_ST[0]}, s{S_D0}, 63")
            e(f"v_writelane_b32 v{V_ST[0]}, s{S_ST}, 60"); e(f"v_writelane_b32 v{V_ST[1]}, s{S_ST+2}, 60")
            e(f"s_mov_b32 s{S_SI}, 0")

    def seg_open(self, name, vt, vforce, prev_nt, nts, X, W, half=None, reload=True, cinit=False, maxS=3, barrier=True, nextnt=None, entry=False, spread=False):
        o = self.opt
        dg = o.diag and not (o.diagc and name in ("G0", "G1"))
        if dg: self.stamps.append(name)
        if self.pending: self.mfma(self.pending)
        if dg: self.stamp(0)
        if barrier and entry:
            k = len(self.out)
            if o.diagc and o.diagrt: self.stamp(1)
            self.wait(vtags=vt, lall=True)
            if o.diagc and o.diagrt:
                self.stamp_items()[0][1](); self.stamps.append(name + "L")
            pre = self.out[:] + [f"s_branch LB_{name}"]
            assert self.entry.setdefault(name, pre) == pre
            self.out[k:] = [f"s_waitcnt vmcnt({vforce}) lgkmcnt(0)", f"LB_{name}:", "s_barrier"]
        elif barrier:
            self.wait(vtags=vt, lall=True, vforce=vforce)
            if name in self.entry: self.label(f"LB_{name}")
            self.e("s_barrier")
        else:
            self.wait(ltags=[("WF", prev_nt & 1, s, u) for s in range(2) for u in range(2)])
        if dg: self.stamp(1)
        base = ([] if prev_nt is None else blk(prev_nt)) + sum((blk(nt, cinit) for nt in nts), [])
        off = 0 if prev_nt is None else 16
        self.pending = base[-1] if nts else None
        mf = base[:-1] if nts else base
        sc = Sched(len(mf), maxS)
        sc.mf = mf; sc.off = off; sc.dg = dg
        su = [(s, u) for s in range(2) for u in range(2)]
        if prev_nt is None:
            for s, u in su: self.rd_wf(nts[0], s, u, W, half)()
            for mt in range(8):
                for s in range(2): self.rd_xf(mt, s, X)()
            self.wait(ltags=[("XF", 1, 0), ("XF", 1, 1)])
        elif nts:
            xs = o.xsp if spread else 1.0
            if reload and xs > 1.0:
                rp = [max(i, int(i * xs + o.xso)) for i in range(16)]
                for i in range(16):
                    mt, _, s, _ = base[i]
                    sc.put(rp[i], "D", self.rd_xf(mt, s, X))
                holes = [g for g in range(0, 12) if g not in rp]
                holes = (holes + [1, 3, 5, 7])[:4]
                for k, (s, u) in enumerate(su): sc.put(sorted(holes)[k], "D", self.rd_wf(nts[0], s, u, W, half))
                sc.rp = rp
            else:
                if reload:
                    for i in range(16):
                        mt, _, s, _ = base[i]
                        sc.put(i, "D", self.rd_xf(mt, s, X))
                for k, (s, u) in enumerate(su): sc.put(2 * k, "D", self.rd_wf(nts[0], s, u, W, half))
            sc.put(15, "S", lambda: self.wait(ltags=[("XF", 1, 0), ("XF", 1, 1)] + [("WF", nts[0] & 1, s, u) for s, u in su]))
        if reload and nts:
            if hasattr(sc, "rp"):
                for mt, upto in ((2, 3), (4, 4), (5, 5), (6, 6), (7, 7)):
                    sc.put(off + 2 * mt - 1, "S", lambda m=upto: self.wait(ltags=[("XF", m, 0), ("XF", m, 1)]))
            else:
                for mt in (2, 4, 6):
                    sc.put(off + 2 * mt - 1, "S", lambda mt=mt: self.wait(ltags=[("XF", mt + 1, 0), ("XF", mt + 1, 1)]))
        sc.blkwait = []
        seq = list(nts[1:]) + [nextnt]
        for b, nt in enumerate(seq):
            if b < len(seq) - 1:
                g = off + 16 * (b + 1) - 1
                sc.put(g, "S", lambda nt=nt: self.wait(ltags=[("WF", nt & 1, s, u) for s, u in su] + [("C",)]))
                sc.blkwait.append(g)
        if nts:
            for b, nt in enumerate(seq):
                if b == 0 and hasattr(sc, "rp"):
                    holes = [g for g in range(16, 27) if g not in sc.rp and g not in o.xkeep][:4]
                    for k, (s, u) in enumerate(su): sc.put(holes[k], "D", self.rd_wf(nt, s, u, W, half))
                    continue
                for k, (s, u) in enumerate(su): sc.place("D", self.rd_wf(nt, s, u, W, half), off + 16 * b + 2 * k)
        return sc
    def seg_emit(self, sc, gbase=None, check=None, stamp_at=50):
        if sc.dg: sc.chain(self.stamp_items(), stamp_at)
        for g, m in enumerate(sc.mf):
            if check: check(g, m)
            self.mfma(m)
            self.merge_gap(sc, g, None if gbase is None else gbase + g)
    def xa_items(self, new, old, nx):
        def f0():
            self.e(f"v_add_u32 v{V_XA[0]}, s{S_DX}, v{V_XA[0]}"); self.xa = nx["x"]
        return [self.SU(f"s_sub_u32 s{S_DX}, s{new}, s{old}", lambda: nx.update(x=self.slot[new])),
                ("V", f0), self.V(f"v_add_u32 v{V_XA[1]}, s{S_DX}, v{V_XA[1]}")]
    def wa_sched(self, sc, new, old, g_s, g_v):
        nx = {}
        def wa(h):
            def f():
                self.e(f"v_add_u32 v{V_WA[h]}, s{S_DW}, v{V_WA[h]}"); self.wa[h] = nx["w"]
            return f
        k, f = self.SU(f"s_sub_u32 s{S_DW}, s{new}, s{old}", lambda: nx.update(w=self.slot[new]))
        sc.place(k, f, g_s, g_v - 1)
        sc.chain([("V", wa(0)), ("V", wa(1))], g_v)

    def body(self, kind, layer, t):
        o = self.opt
        X = ("X", layer, t); W = ("W", layer, t)
        first = kind == "E0"
        vt = [X, W, ("P", layer, t + 2)]
        if kind == "S1": vt.append(("B", layer))
        vforce = {"G0": min(9 + (1 if o.xtouch else 0) + (1 if o.tpf & 2 else 0), 10 + (1 if o.xtouch else 0)), "G1": 8, "T14": 8}.get(kind)
        sc = self.seg_open(kind, vt, vforce, None if first else 7, list(range(7)), X, W, cinit=first,
                           maxS=1 if kind in ("T15", "H0") else 3, nextnt=7, entry=((kind == "G1" and t == 4 and o.entry) or (kind == "G0" and t == 1 and o.entry > 1)),
                           spread=kind in ("G0", "G1", "T14", "S1", "S2", "S3"))
        n, off = sc.n, sc.off
        if kind in ("G0", "G1"):
            sc.put(n - 1, "G", lambda: None)
            sc.put(n - 2, "S", self.E(f"s_cmp_lt_u32 s{S_LOOP}, " + ("14" if kind == "G0" else f"s{S_LEND}"))); sc.closedS.add(n - 2)
        self.gcap = 0
        if kind in ("E0", "G0", "T14", "T15"):
            gB = off + 94 if kind != "T15" else off + 1
            def br():
                self.e(f"s_cbranch_scc1 CAP_{kind}"); self.e("@CAP")
            sc.put(gB, "G", br)
            sc.put(gB - 1, "S", self.E(f"s_cmp_eq_u32 s{S_TC}, s{S_CAPJ}" if kind == "G0" else f"s_cmp_eq_u32 s{S_CAPJ}, {t >> 2}")); sc.closedS.add(gB - 1)
            if kind == "G0": sc.put(gB - 2, "S", self.E(f"s_lshr_b32 s{S_TC}, s{S_LOOP}, 2"))
            for k in range(8): sc.put(gB + 1 + k, "D", self.E(f"@RD{k}"))
            sc.put(gB + 9, "G", self.E("@RET"))
            self.gcap = sc.place("V", self.E(f"v_xor_b32 v{V_CAP}, s{S_WC64}, v{V_XA[0]}"), 9, off if kind == "T15" else None)
        pace = 4 if first else (o.pace0 if kind == "G0" else o.pace)
        gw = o.gw if hasattr(sc, "rp") else off + 1
        lastG = gw
        if kind == "H0":
            def xb():
                assert not any(x and x[0] == "XF" for x in self.lq)
                if o.flag0 == 0: self.wait(vtags=[("S", layer, 0)])
                self.e("s_barrier")
            gb = sc.place("S", xb, off + o.xbpos)
            gw = gb + 1
        if kind == "G1":
            sc.put(0, "S", self.E(f"s_cmp_eq_u32 s{S_LOOP}, s{S_KEY}")); sc.closedS.add(0)
            sc.put(1, "S", self.E(f"s_cselect_b32 s{S_TG}, s{S_Q+1}, s{S_Q}")); sc.put(1, "S", self.E(f"s_cselect_b32 s{S_TH}, s{S_WLM}, s{S_WL}"))
            c = sc.chain(self.w_setup(S_TG, S_TH), 2)
        elif kind != "T15":
            c = sc.chain(self.w_setup(S_Q, S_WL), max(0, gw - 14))
        if first and o.prex and self.x1:
            gw = self.place_dma(sc, self.x1, 1, pace) + 4
        if kind != "T15":
            lastG = self.place_dma(sc, self.dma_items(("W", layer, t + 1), S_WR + 1, "W"), max(gw, c[-1] + 1), pace if kind != "H0" else o.paceh)
        gx = lastG + int(pace)
        if kind in ("S1", "S2", "S3", "G1"):
            if kind != "S1":
                gbr = self.poll_check(sc, kind, ("P", layer, t + 2), off + 8)
                assert gbr < lastG - 1
            c = sc.chain([self.S(f"s_lshr_b32 s{S_PA}, s{S_Q+2}, 2"), self.S(f"s_lshl_b32 s{S_PA}, s{S_PA}, 7"),
                          self.S(f"s_add_u32 s{S_PA}, s{S_PA}, s{S_FB}")], max(gbr + 1, o.pollpos) if (o.pollpos and kind == "G1") else lastG - 1)
            k, f = self.VM(f"buffer_load_dword v{V_POLL}, off, {sr(S_WS,4)}, s{S_PA} sc1", ("P", layer, t + 3))
            if o.pollpos and kind == "G1": gp = sc.place(k, f, c[-1] + 1)
            else:
                gp = sc.place(k, f, max(c[-1], lastG) + 2)
                gx = max(gx, gp + 2); lastG = gp
        if o.wpf and kind in ("E0", "S2"):
            sc.chain([self.V(f"v_and_b32 v{V_WT}, 0x180, v{V_L16}"), self.V(f"v_lshrrev_b32 v{V_FLAG}, 9, v{V_L16}"),
                      self.V(f"v_lshl_add_u32 v{V_WT}, v{V_FLAG}, 11, v{V_WT}")], 9, 40)
        if (o.wpf & 1 and kind == "G0") or (o.wpf & 2 and kind in ("S2", "S3", "G1")):
            TG = S_TE if kind == "G0" else S_TG
            it = [self.S(f"s_add_u32 s{TG}, s{S_Q}, {o.wpd}")] if kind == "G0" else []
            it += [self.S(f"s_lshl_b32 s{TG}, s{TG if kind == 'G0' else S_Q+2}, 17"), self.S(f"s_add_u32 s{TG}, s{TG}, s{S_WL}"), self.S(f"s_add_u32 s{TG}, s{TG}, s{S_XB}")]
            c = sc.chain(it, off + 26)
            k, f = self.VM(f"buffer_load_dword v{V_POLL if kind == 'G0' else V_CAP}, v{V_WT}, {sr(S_W,4)}, s{TG} offen", "PW")
            lastG = sc.place(k, f, max(c[-1], lastG) + 2); gx = max(gx, lastG + 2)
        xadv = [self.V(f"v_add_u32 v{V_XC[i]}, 128, v{V_XC[i]}") for i in range(2)]
        if first:
            if not o.prex:
                sc.chain(xadv, 4)
                lastG = self.place_dma(sc, self.dma_items(("X", 0, 1), S_X + 1, "X0"), gx, pace)
            else: pace = 6
            c = sc.chain(xadv, lastG + 1)
            lastG = self.place_dma(sc, self.dma_items(("X", 0, 2), S_X + 2, "X0"), max(lastG + pace, c[-1] + 1), pace)
        if kind == "G0":
            ww = [self.VM(f"buffer_load_dword v{V_POLL}, v{V_CPL}, {sr(S_W,4)}, s{S_PA} offen", "PW"), self.S(f"s_add_u32 s{S_PA}, s{S_PA}, {384 if o.wwarm else 0}")]
            if not o.xtouch: sc.chain(ww, lastG + 3)
            sc.chain(xadv, off + 20)
            lastG = self.place_dma(sc, self.dma_items(("X", layer, t + 2), S_X + 2, "X0"), gx, o.pacex0)
            if o.xtouch: lastG = sc.chain(ww, lastG + 3)[0]
        if kind in ("E0", "G0") and o.xtouch:
            sc.chain([self.VM(f"buffer_load_dword v{V_POLL}, v{V_XT}, {sr(S_X0,4)}, s{S_XTO} offen nt", "PW"),
                      self.S(f"s_add_u32 s{S_XTO}, s{S_XTO}, 128")], lastG + 3)
        if kind == "G0" and o.tpf & 2:
            sc.chain([self.VM(f"global_load_dword v{V_POLL}, v31, s[{S_PC}:{S_PC+1}]", "PW")], lastG + 6)
        if kind == "S1" and o.tpf & 1:
            sc.chain([self.S(f"s_lshr_b32 s{S_TE}, s2, 3"), self.S(f"s_lshl_b32 s{S_TE}, s{S_TE}, 9"), self.S(f"s_lshl_b32 s{S_TF}, s{S_WAVE}, 7"),
                      self.S(f"s_add_u32 s{S_TE}, s{S_TE}, s{S_TF}"), self.S(f"s_add_u32 s{S_TE}, s{S_TE}, L_TAIL-L_pc"),
                      self.S(f"s_min_u32 s{S_TE}, s{S_TE}, L_codeend-L_pc-4"), self.V(f"v_mov_b32 v{V_FLAG}, s{S_TE}"),
                      self.VM(f"global_load_dword v{V_FLAG}, v{V_FLAG}, s[{S_PC}:{S_PC+1}]", "PW")], off + 4, lastG - 1)
        if kind in ("S2", "S3", "G1"):
            c = sc.chain(self.x_setup(S_Q + 1), 8, off - 1)
            assert c[-1] < gx
            lastG = self.place_dma(sc, self.dma_items(("X", layer, t + 2), S_X + 2, "XE"), gx, o.pacex)
        if kind == "T14":
            it = [self.S(f"s_mov_b32 s{S_WT+k}, {k*16384 - (k&1)*2048}") for k in range(1, 4)]
            it += [self.S(f"s_add_u32 s{S_WL}, s{S_WL}, 0x200000"), self.S(f"s_lshl_b32 s{S_Q}, s{S_J}, 2"),
                   self.V(f"v_subrev_u32 v{V_WC[1]}, s{S_ADJ}, v{V_WC[1]}"), self.S(f"s_mov_b32 s{S_ADJ}, 0")]
            it += self.w_setup(S_Q, S_WL)
            c = sc.chain(it, lastG + 1)
            lastG = self.place_dma(sc, self.dma_items(("W", layer + 1, 0), S_X + 2, "W"), max(gx, c[-1] + 1), pace - 1)
        if kind == "T15" and o.wl2:
            t0, t1 = V_T + 16, V_T + 17
            it = [self.V(f"v_and_b32 v{t0}, 0x30, v{V_L16}"), self.V(f"v_lshlrev_b32 v{t0}, 3, v{t0}"),
                  self.V(f"v_bfe_u32 v{t1}, v{V_L16}, 6, 3"), self.V(f"v_lshl_add_u32 v{t1}, v{t1}, 11, v{t0}"), self.V(f"v_and_b32 v{t0}, 0xfff, v{t1}")]
            sc.chain(it, 1, 15)
            sc.maxS = 2
            it = [self.S(f"s_lshr_b32 s{S_TE}, s2, 5"), self.S(f"s_lshl_b32 s{S_TE}, s{S_TE}, 2"), self.S(f"s_add_u32 s{S_TE}, s{S_TE}, s{S_WAVE}"),
                  self.S(f"s_lshl_b32 s{S_TF}, s{S_J}, 9"), self.S(f"s_add_u32 s{S_TF}, s{S_TF}, s{S_WL}"),
                  self.S(f"s_lshl_b32 s{S_TG}, s{S_TE}, 14"), self.S(f"s_add_u32 s{S_TG}, s{S_TG}, s{S_TF}"), self.S(f"s_lshl_b32 s{S_TH}, s{S_J}, 19"),
                  self.S(f"s_add_u32 s{S_TG}, s{S_TG}, s{S_TH}"),
                  self.S(f"s_lshl_b32 s{S_TE}, s{S_TE}, 12"), self.S(f"s_add_u32 s{S_TE}, s{S_TE}, s{S_TF}"),
                  self.VM(f"buffer_load_dword v{V_POLL}, v{t1}, {sr(S_W,4)}, s{S_TG} offen", "PW")]
            for d in range(o.wl2):
                it += [self.S(f"s_lshl_b32 s{S_TH}, s{S_FQ+d}, 17"), self.S(f"s_add_u32 s{S_TH}, s{S_TH}, s{S_TE}"),
                       self.VM(f"buffer_load_dword v{V_POLL}, v{t0}, {sr(S_W,4)}, s{S_TH} offen", "PW")]
            sc.chain(it, 2, 30)
            sc.maxS = 1
        if kind == "T15":
            sc.put(0, "S", self.E(f"s_cmp_eq_u32 s{S_LAYER}, 0")); sc.closedS.add(0)
            if o.e1out: sc.put(1, "S", self.E(f"s_cselect_b64 s[{S_X0}:{S_X0+1}], s[{S_OUT}:{S_OUT+1}], s[{S_WS}:{S_WS+1}]"))
            else:
                sc.put(1, "S", self.E(f"s_cselect_b32 s{S_TE}, 0x2000000, 0"))
                def f64():
                    self.e(f"s_add_u32 s{S_X0}, s{S_WS}, s{S_TE}"); self.e(f"s_addc_u32 s{S_X0+1}, s{S_WS+1}, 0")
                sc.put(17, "G", f64)
            sc.chain([self.S(f"s_lshl_b32 s{S_TD}, s{S_LAYER}, 2"), self.S(f"s_add_u32 s{S_NEED}, s{S_NEED}, s{S_TD}"),
                      self.S(f"s_mov_b32 s{S_FV}, s{S_NEED}"),
                      self.S(f"s_lshr_b32 s{S_TD}, s{S_WAVE}, 1"), self.S(f"s_mul_i32 s{S_TD}, s{S_TD}, s{S_LAYER}"), self.S(f"s_mul_i32 s{S_KEY}, s{S_TD}, 12"),
                      self.S(f"s_sub_u32 s{S_WLM}, s{S_WL}, 256"), self.S(f"s_sub_u32 s{S_LEND}, s{S_LEND}, 1"),
                      self.S(f"s_add_u32 s{S_LAYER}, s{S_LAYER}, 1")], 2, 60)
        if first:
            if o.finit == 0:
                sc.chain([self.V(f"v_lshrrev_b32 v{V_FLAG}, 1, v{V_L16}"), self.V(f"v_and_b32 v{V_FLAG}, 0x180, v{V_FLAG}"),
                          self.VM(f"buffer_load_dword v{V_POLL}, v{V_FLAG}, {sr(S_WS,4)}, s{S_FB} offen sc1", "PW")], 68)
                sc.chain([self.S(f"s_add_u32 s{S_NEED}, s{S_EP}, 1"), self.S(f"s_mov_b32 s{S_FV}, s{S_EP}")] + self.flag_items(), 98)
            else:
                sc.chain([self.S(f"s_add_u32 s{S_NEED}, s{S_EP}, 1"), self.V(f"v_mov_b32 v{V_FLAG}, s{S_EP}"), self.V(f"v_bfe_u32 v{V_T+16}, v{V_L16}, 2, 7"),
                          self.VM(f"buffer_store_dword v{V_FLAG}, v{V_T+16}, {sr(S_WS,4)}, s{S_FOWN} offen sc1", "F")], 70)
        if kind == "H0":
            def fb():
                self.wait(vtags=[("S", layer, 0)]); self.e("s_barrier")
            if o.flag0 > 0:
                g = sc.place("G", fb, off + o.flag0)
                sc.chain(self.flag_items(), g + 1)
            elif o.flag0 == 0: sc.chain(self.flag_items(), gb + 3)
        if kind == "S1" and o.flag0 < 0:
            assert ("S", layer, 0) not in self.vq
            sc.chain(self.flag_items(), 3)
        if kind == "S3":
            assert ("S", layer, 1) not in self.vq
            sc.chain(self.flag_items(), off + 3)
        if kind == "G1":
            assert ("S", layer, min(t - 2, 3)) not in self.vq
            if o.fdrop:
                def sel():
                    self.e(f"s_cmp_le_u32 s{S_LOOP}, 5"); self.e(f"s_cselect_b32 s{S_TF}, 0, 0x40000000")
                g1 = [g for g in range(11, 40) if len(sc.g[g]) <= 1 and sc.fits(g, "S")][0]
                sc.put(g1, "S", sel); sc.put(g1, "S", lambda: None)
                g1 = sc.place("V", self.E(f"v_mov_b32 v{V_T}, s{S_TF}"), g1 + 1)
                sc.chain([self.V(f"v_mov_b32 v{V_FLAG}, s{S_FV}"), self.VM(f"buffer_store_dword v{V_FLAG}, v{V_T}, {sr(S_WS,4)}, s{S_FOWN} offen sc1", "F"),
                          self.S(f"s_add_u32 s{S_FV}, s{S_FV}, 1")], g1)
            else:
                sc.chain(self.flag_items() + [self.S(f"s_sub_u32 s{S_TF}, s{S_FV}, s{S_NEED}"), self.S(f"s_min_u32 s{S_TF}, s{S_TF}, 3"),
                                              self.S(f"s_add_u32 s{S_FV}, s{S_TF}, s{S_NEED}")], off + 3)
        CT = V_T + 12
        if kind in ("S1", "S2", "S3"):
            jobs = [mt for mt in range(8) if not self.is_direct(t, mt)]
            def chk(): assert self.lds_own[self.slot[S_X]] == ("X", layer, t)
            c = sc.chain([self.SU(f"s_sub_u32 s{S_E0}, s{S_X}, s{S_OADJ}", chk), self.V(f"v_add_u32 v{V_CPL}, s{S_E0}, v{V_L16}")], 8)
            gprev = c[-1]
            w0 = int(o.cpos[t - 1])
            assert w0 + len(jobs) <= 6
            for k, mt in enumerate(jobs):
                w = sc.blkwait[k + w0]
                sc.place("D", lambda mt=mt: self.lds(f"ds_read_b128 {vr(CT,4)}, v{V_CPL} offset:{mt*2048}", ("C",)), max(gprev + 1, w - 9), w - 1)
                def st(mt=mt):
                    assert ("C",) not in self.lq
                    so, im = mt_off(mt)
                    self.vm(f"buffer_store_dwordx4 {vr(CT,4)}, v{V_CPG}, {sr(S_X0,4)}, {so} offen offset:{im + t*128} sc1", ("S", layer, t))
                gprev = sc.place("G", st, w + 1)
        gcap = self.gcap
        gXA = max(gcap + 1, off + 2, sc.rp[-1] + 1 if hasattr(sc, "rp") else 0)
        nx = {}
        if kind == "T15":
            def f0():
                self.e(f"v_add_u32 v{V_XA[0]}, s{S_TA}, v{V_L16}"); self.xa = nx["x"]
            sc.chain([self.S(f"s_lshl_b32 s{S_TA}, s{S_WC64}, 7"),
                      self.SU(f"s_sub_u32 s{S_TA}, s{S_X+2}, s{S_TA}", lambda: nx.update(x=self.slot[S_X + 2])),
                      ("V", f0), self.V(f"v_add_u32 v{V_XA[1]}, 1024, v{V_XA[0]}"), self.S(f"s_mov_b32 s{S_CAPJ}, 77")], off + 11)
            wnext = S_X + 1
        else:
            sc.chain(self.xa_items(S_X + 1, S_X, nx), gXA)
            wnext = S_WR + 1
        self.wa_sched(sc, wnext, S_WR, gXA, off + 16 * 6 + 8)
        if kind == "T15":
            sc.chain([self.VM(f"buffer_load_dwordx2 {vr(V_BR,2)}, v{V_B}, {sr(S_B,4)}, s{S_BOFF} offen", ("B", layer + 1)),
                      self.S(f"s_add_u32 s{S_BOFF}, s{S_BOFF}, 2048")], off + 12, off + 24)
        if kind in ("S1", "S2", "S3", "T14"):
            g = 4 if kind == "S1" else 0
            for nt in {"S1": [5, 6, 0], "S2": [4, 1], "S3": [3, 2], "T14": [7]}[kind]:
                b0 = 0 if nt == 7 else off + 16 * nt
                g = self.bias_sched(sc, nt, g, (b0, b0 + 16))
        if first:
            g = 0
            for nt in range(o.b0pre, 7):
                g = sc.chain([self.V(x) for x in self.bias0_ops(nt)], g, 16 * nt - 2)[-1]
            ops = []
            for mt in range(2): ops += [f"v_accvgpr_write_b32 a{ACC(mt,6)[1]+i}, v{ACC(7,6)[1]+i}" for i in range(4)]
            for mt in range(8): ops += [f"v_accvgpr_write_b32 a{ACC(mt,7)[1]+i}, 1.0" for i in range(4)]
            sc.chain([self.V(x) for x in ops], g, 96 - 2)
        self.slot[S_TR] = None
        if kind == "T15":
            rot = [self.smov(S_O2, S_X), self.smov(S_O3, S_WR), self.smov(S_WR, S_X + 1), self.smov(S_X + 1, S_WR + 1),
                   self.smov(S_X, S_X + 2), self.smov(S_WR + 1, S_X + 2)]
        elif kind == "H0":
            rot = [self.smov(S_X, S_X + 1), self.smov(S_X + 1, S_O2), self.smov(S_X + 2, S_O3),
                   self.smov(S_TR, S_WR), self.smov(S_WR, S_WR + 1), self.smov(S_WR + 1, S_TR)]
        else:
            rot = [self.smov(S_TR, S_X), self.smov(S_X, S_X + 1), self.smov(S_X + 1, S_X + 2), self.smov(S_X + 2, S_TR),
                   self.smov(S_TR, S_WR), self.smov(S_WR, S_WR + 1), self.smov(S_WR + 1, S_TR)]
        q = []
        if kind in ("E0", "G0", "T15", "H0"): q = [self.S(f"s_add_u32 s{S_Q}, s{S_Q}, 1")]
        if kind == "H0": q += [self.S(f"s_add_u32 s{S_Q+1}, s{S_Q}, 1"), self.S(f"s_mov_b32 s{S_Q+2}, s{S_FQ}")]
        if kind in ("S1", "S2"):
            q = [self.S(f"s_mov_b32 s{S_Q}, s{S_Q+1}"), self.S(f"s_mov_b32 s{S_Q+1}, s{S_Q+2}"), self.S(f"s_mov_b32 s{S_Q+2}, s{S_FQ+t}")]
        if kind in ("S3", "G1"):
            q = [self.S(f"s_add_u32 s{S_TE}, s{S_Q}, 1"), self.S(f"s_mov_b32 s{S_Q}, s{S_Q+1}"), self.S(f"s_mov_b32 s{S_Q+1}, s{S_Q+2}"),
                 self.S(f"s_mov_b32 s{S_Q+2}, s{S_TE}")]
        if kind == "S3": q += [self.S(f"s_mov_b32 s{S_LOOP}, 4")]
        sc.chain(q, max(gx, off + 60))
        if kind == "G1": rot += [self.S(f"s_add_u32 s{S_LOOP}, s{S_LOOP}, 1")]
        if kind == "G0": sc.place("S", self.E(f"s_add_u32 s{S_LOOP}, s{S_LOOP}, 1"), off + 104, n - 3)
        sc.chain(rot, max(sc.last_su(), 108 if kind in ("T15", "H0") else 0))
        if kind == "T15": self.make_stream(layer + 1)
        def check(g, m):
            if kind == "H0" and g >= off: assert (m[1] >> 1) * 8 + m[0] in self.epi_done, ("deadline", m)
        self.xr = o.xr15 if kind == "T15" else o.xr0
        self.seg_emit(sc, {"T15": 0, "H0": 128}.get(kind), check, 86 if first else off + 50)
        if "@CAP" in self.out: self.make_cap(kind, t)
        if kind == "T15": assert all(f in self.wr_done for f in range(8))
        if kind == "H0": assert not self.stream, "stream left"

    def make_cap(self, kind, t):
        i0 = self.out.index("@CAP"); i1 = self.out.index("@RET")
        reg = self.out[i0 + 1:i1]
        assert not any(x.endswith(":") or "branch" in x or "barrier" in x for x in reg)
        main = [x for x in reg if not x.startswith("@") and x != "s_nop 0"]
        self.out[i0:i1 + 1] = main + [f"CB_{kind}:"]
        def blkc(p):
            return [f"ds_read_b128 {ar(X0(p,int(x[3])),4)}, v{V_CAP} offset:{int(x[3])*2048}" if x.startswith("@RD") else x for x in reg] + [f"s_branch CB_{kind}"]
        cap = f"CAP_{kind}"
        if kind == "G0":
            b = [f"{cap}:", f"s_and_b32 s{S_TC}, s{S_LOOP}, 3"]
            for p in range(1, 4): b += [f"s_cmp_eq_u32 s{S_TC}, {p}", f"s_cbranch_scc1 {cap}{p}"]
            b += blkc(0)
            for p in range(1, 4): b += [f"{cap}{p}:"] + blkc(p)
            self.ool[cap] = b
        else:
            self.ool[cap] = [f"{cap}:"] + blkc(t & 3)
    def is_direct(self, p, mt):
        n = int(self.opt.direct[p])
        return ((mt + 1) * n) // 8 != (mt * n) // 8
    def make_stream(self, nl):
        st = []
        self.epi_done = set(); self.wr_done = set()
        tbf = lambda f: V_T + 8 * (f % 2)
        U = lambda f, h: ("U", ("U", f // 8, f % 8, h, tbf(f)))
        self.stream = [U(f, h) + (30,) for f in range(2) for h in range(2)]
        self.credit = 0.0
        for f in range(32):
            p, mt = f // 8, f % 8
            tb = tbf(f)
            pos = 38 + 32 * p + 2 * mt
            sreg = {0: S_X + 2, 1: S_WR + 1, 2: S_O2, 3: S_O3}[p]
            ops = self.epi_valu(p, mt, tb, V_T + 16, tb)
            it = []
            for k, x in enumerate(ops):
                kd = "V" if (k < 4 or f == 31) else "A"
                if k == len(ops) - 5: it.append((kd, lambda x=x, f=f: (self.e(x), self.epi_done.add(f)), pos))
                else: it.append((kd, self.E(x), pos))
            if p >= 2: pos = max(pos, 129)
            if mt == 0:
                def f0(p=p, sreg=sreg):
                    self.lds_own[self.slot[sreg]] = ("X", nl, p)
                    self.e(f"s_sub_u32 s{S_E0}, s{sreg}, s{S_OADJ}")
                a = [("S", f0, pos), ("A", self.E(f"v_add_u32 v{V_CPL}, s{S_E0}, v{V_L16}"), pos)]
                it = it[:6] + a + it[6:] if p != 2 else it + a
            if self.is_direct(p, mt):
                so, im = mt_off(mt)
                it += [("R", lambda p=p, im=im, tb=tb, so=so: self.vm(f"buffer_store_dwordx4 {vr(tb,4)}, v{V_CPG}, {sr(S_X0,4)}, {so} offen offset:{im + p*128} sc1", ("S", nl, p)), pos)]
            if f + 2 < 32: it += [U(f + 2, 1) + (pos,)]
            it += [("X", lambda f=f, mt=mt, tb=tb: (self.lds(f"ds_write_b128 v{V_CPL}, {vr(tb,4)} offset:{mt*2048}", ("O",)), self.wr_done.add(f)), pos)]
            if f + 2 < 32: it += [U(f + 2, 0) + (pos,)]
            self.stream += it

    def merge_gap(self, sc, g, gpos):
        fixed = sc.g[g]
        self.gnow = gpos
        while True:
            cur = list(fixed)
            excl = any(k == "G" for k, _ in cur)
            hasR = False
            newgap = None
            top = -1
            if gpos is not None: self.credit = min(self.credit + self.xr, 2.0)
            def cnt(): return sum(k in "DV" for k, _ in cur), sum(getattr(f, "w", 1) for k, f in cur)
            def free():
                nvec, tot = cnt()
                if hasR: return nvec < 2
                return not excl and nvec < 2 and tot < 3
            def lookahead():
                i = 0
                while i < len(self.stream) and self.stream[i][0] in "RUX": i += 1
                while i < len(self.stream) and self.stream[i][0] == "V" and self.stream[i][2] <= gpos + 1 and free():
                    cur.append(("V", self.stream.pop(i)[1]))
            if gpos is not None and fixed is sc.g[g] and not (self.stream and getattr(self.stream[0][1], "pub", False)):
                while self.stream2 and self.stream2[0][2] <= gpos + 1:
                    k, fn, pos = self.stream2[0]
                    st = fn.ready(gpos)
                    if st == "skip": self.stream2.pop(0); continue
                    if st:
                        grp = [self.stream2.pop(0)]
                        if k == "S": grp.append(self.stream2.pop(0))
                        self.stream[0:0] = grp
                    break
            while gpos is not None and self.stream:
                k, fn, pos = self.stream[0]
                if pos > gpos + 1:
                    break
                if k == "U" and len(self.stream) > 1 and hasattr(self.stream[1][1], "ok") and not self.stream[1][1].ok():
                    lookahead(); break
                if k == "U":
                    lookahead()
                    newgap = fn; self.stream.pop(0); break
                if k == "X":
                    nxt = [kk for gg in (g + 1, g + 2) if gg < sc.n for kk, _ in sc.g[gg]]
                    follow_u = len(self.stream) > 1 and self.stream[1][0] == "U"
                    if any(kk != "S" for kk, _ in cur) or (not follow_u and "D" in nxt and fixed is sc.g[g]):
                        lookahead(); break
                    cur.append(("G", fn)); excl = True; self.stream.pop(0); continue
                if k == "R":
                    if excl or top > 0:
                        lookahead(); break
                    cur.append(("G", fn)); excl = True; hasR = True; top = 1; self.stream.pop(0); continue
                if k in "SZ":
                    w = 2 if k == "Z" else 1
                    if excl or top > 0 or g in sc.closedS or cnt()[1] + w > 3: break
                    fn.w = w
                    cur.append(("S", fn)); top = 0; self.stream.pop(0); continue
                if k == "D":
                    if top > 2 or not free(): break
                    cur.append(("D", fn)); top = 2; self.stream.pop(0); continue
                ok = free()
                if not ok and not excl and self.credit >= 1.0 and cnt()[0] < 3 and cnt()[1] < 4:
                    self.credit -= 1.0; ok = True
                if not ok: break
                cur.append(("V", fn)); top = 3; self.stream.pop(0)
            ks = [k for k, _ in cur]
            if ks.count("D") == 2 and "S" not in ks and "G" not in ks: cur.append(("S", self.E("s_nop 0")))
            for k, fn in sorted(cur, key=lambda x: RANK[x[0]]): fn()
            if newgap is None: return
            self.mfma(newgap)
            fixed = []

    def tail(self):
        e = self.e; o = self.opt
        L = 2
        VW, VR = V_POLL, V_CPL
        CT = V_T + 20; AT = V_T + 16
        tbf = lambda f: V_T + 8 * (f % 2)
        U = lambda f, h: ("U", ("U", f // 8, f % 8, h, tbf(f)))
        depth = lambda f: 4 if f < 8 else 8
        unit = lambda f: (f % depth(f)) * 4096
        area = {0: (S_WR, 0), 1: (S_X + 1, 0), 2: (S_X, 0), 3: (S_X + 1, 0)}
        def rdback(f, p, r, k):
            assert f in self.visible and self.ra == f // 8
            self.lds(f"ds_read_b64 {vr(r+2*k,2,p)}, v{VR} offset:{unit(f) + 256*k}", ("C", f))
        def store(f, dst):
            assert ("C", f) not in self.lq
            so, im = mt_off(f % 8)
            self.vm(f"buffer_store_dwordx4 {dst}, v{V_CPG}, {sr(S_OUT,4)}, {so} offen offset:{im + (f//8)*128} {o.outf}", "SO")
            self.stored.add(f)
        def wr_ok(f):
            prev = {0: f - 4, 1: -1, 2: -1, 3: f - 16}[f // 8]
            return (prev < 0 or prev in self.freed) and (f // 8) in self.area_free
        def wr(f):
            assert wr_ok(f) and self.wa_ == f // 8
            self.lds(f"ds_write_b128 v{VW}, {vr(tbf(f),4)} offset:{unit(f)}", ("Y", f))
            self.written.add(f); self.wpos = self.gnow; self.w_at[f] = self.gnow
        self.written = set(); self.visible = set(); self.freed = set(); self.rd_at = {}
        self.lds_half = {}; self.landed = set(); self.area_free = set(); self.area_next = set()
        self.wpos = 0; self.ra = 0; self.wa_ = 0; self.w_at = {}
        def at_barrier():
            self.visible |= {f for f in self.written if ("Y", f) not in self.lq}
            self.freed |= {f for f in self.rd_at if ("C", f) not in self.lq}
            self.landed |= {v for v in self.lds_half.values() if v not in self.vq}
            if not any(x and x[0] == "XF" for x in self.lq): self.area_free |= self.area_next
        def bar(vtags=(), every=False):
            self.wait(vtags=vtags, ltags=[("Y", x) for x in self.written if every or self.gnow >= self.w_at[x] + o.zdist]); e("s_barrier"); at_barrier()
        def switch(reg, p, attr):
            t = S_TC if attr == "ra" else S_TD
            def f():
                e(f"v_add_u32 v{reg}, s{t}, v{reg}"); setattr(self, attr, p)
            return [("S", self.E(f"s_sub_u32 s{t}, s{area[p][0]}, s{area[p-1][0]}")), ("A", f)]
        def half_dma(tile, H, tidreg, sreg, half):
            what = ("W", L, tile, H)
            it = [self.S(f"s_add_u32 s{S_TH}, s{S_WLM}, {H*256}")] + self.w_setup(tidreg, S_TH)
            d = [self.SU(f"s_add_u32 m0, s{sreg}, s{S_O2+half}", lambda: self.lds_half.__setitem__((self.slot[sreg], half), what))]
            for i in range(4):
                so = "0" if i < 2 else f"s{S_WT+1}"
                d.append(self.VM(f"buffer_load_dwordx4 v{V_WC[i&1]}, {sr(S_W,4)}, {so} offen" + (f" offset:{i*1024}" if i else "") + " lds", what))
            return it, d
        W13, W14, W15 = ("W", L, 13), ("W", L, 14), ("W", L, 15)
        X13, X14, X15 = ("X", L, 13), ("X", L, 14), ("X", L, 15)
        self.lds_half[(self.slot[S_WR], 0)] = W13 + (0,); self.lds_half[(self.slot[S_WR], 1)] = W14 + (0,)
        sc = self.seg_open("A13", [X13, W13, ("P", L, 15)], 8, 7, [0, 1, 2], X13, W13, half=0, nextnt=3); at_barrier()
        gbr = self.poll_check(sc, "A13", ("P", L, 15), 0)
        sc.chain(self.x_setup(S_Q + 1), 3, 15)
        c = sc.chain([self.S(f"s_lshl_b32 s{S_TA}, s{S_WAVE}, 15"), self.S(f"s_lshl_b32 s{S_TB}, s{S_WC64}, 10"), self.S(f"s_sub_u32 s{S_TA}, s{S_TA}, s{S_TB}"),
                      self.S(f"s_lshr_b32 s{S_TB}, s{S_WR14}, 6"), self.S(f"s_sub_u32 s{S_TA}, s{S_TA}, s{S_TB}"), self.S(f"s_add_u32 s{S_WLM}, s{S_WL}, s{S_TA}"),
                      self.S(f"s_lshl_b32 s{S_TA}, s{S_WAVE}, 12"), self.S(f"s_sub_u32 s{S_O2}, 0, s{S_TA}"), self.S(f"s_add_u32 s{S_O3}, s{S_O2}, 0x4000"),
                      self.S(f"s_sub_u32 s{S_Q+2}, s{S_Q+2}, 1")], 5)
        it, d = half_dma(15, 0, S_Q + 1, S_WR + 1, 0)
        c = sc.chain(it, c[-1])
        lastG = self.place_dma(sc, d, max(gbr + 1, c[-1] + 1), o.pacet)
        lastG = self.place_dma(sc, self.dma_items(X15, S_X + 2, "XE"), lastG + 3, o.pacet)
        nx = {}
        sc.chain(self.xa_items(S_X + 1, S_X, nx), 18)
        a, b, c_, d_ = [f"v{V_T+i}" for i in range(4)]
        adr = [f"v_lshrrev_b32 {a}, 9, v{V_L16}", f"v_lshlrev_b32 {a}, 6, {a}", f"v_add_u32 {a}, {a}, v{V_L16}", f"v_add_u32 {a}, s{S_KEY}, {a}",
               f"v_and_b32 {a}, 0xf0, {a}", f"v_and_b32 {b}, 0x300, v{V_L16}", f"v_add3_u32 v{VW}, {a}, {b}, s{S_E0}",
               f"v_and_b32 {c_}, 0x70, v{V_CPG}",
               f"v_lshrrev_b32 {a}, 3, v{V_L16}", f"v_and_b32 {a}, 0x70, {a}", f"v_add_u32 {a}, s{S_KEY}, {a}",
               f"v_and_b32 {b}, 64, {c_}", f"v_lshl_add_u32 {a}, {b}, 1, {a}", f"v_and_b32 {d_}, 16, {c_}", f"v_lshl_add_u32 {a}, {d_}, 2, {a}",
               f"v_and_b32 {a}, 0xf0, {a}", f"v_lshl_add_u32 {a}, {b}, 4, {a}", f"v_lshl_add_u32 {a}, {d_}, 5, {a}",
               f"v_bfe_u32 {b}, {c_}, 5, 1", f"v_lshl_add_u32 {a}, {b}, 3, {a}", f"v_add_u32 v{VR}, s{S_TF}, {a}"]
        sc.chain([self.S(f"s_lshl_b32 s{S_KEY}, s{S_WC64}, 1"), self.S(f"s_mul_i32 s{S_E0}, s{S_WAVE}, 7168"), self.SU(f"s_sub_u32 s{S_E0}, s{S_WR}, s{S_E0}"),
                  self.S(f"s_lshl_b32 s{S_TF}, s{S_WC64}, 4"), self.S(f"s_sub_u32 s{S_TF}, s{S_E0}, s{S_TF}")], 20, 36)
        self.stream = [self.V(x) + (40,) for x in adr]
        self.stream += [self.V(f"v_mov_b32_dpp v{V_XC[i]}, v{V_BR+i} row_newbcast:7 row_mask:0xf bank_mask:0xf") + (64,) for i in range(2)]
        self.credit = 0.0; self.xr = 0.0
        E0 = [134, 230, 326, 390]
        ear = lambda f: E0[f // 8] + 2 * (f % 8)
        self.stream += [U(f, h) + (126,) for f in range(2) for h in range(2)]
        nf = o.nft
        for f in range(nf):
            pos = ear(f)
            it = [("V" if k < 4 else "A", self.E(x)) for k, x in enumerate(self.epi_valu(f // 8, f % 8, tbf(f), None, tbf(f)))]
            if f % 8 == 0 and f: it = it[:6] + switch(VW, f // 8, "wa_") + it[6:]
            w0 = lambda f=f: wr(f)
            w0.ok = lambda f=f: wr_ok(f)
            it += [U(f + 2, 1), ("X", w0), U(f + 2, 0)]
            self.stream += [x + (pos,) for x in it]
        def pub(f, pos):
            def z():
                bar(); assert f in self.visible
            z.ready = lambda g: "skip" if f in self.visible else (f in self.written and g >= self.w_at[f] + o.zdist)
            def r0(): rdback(f, "v", CT, 0)
            def r1(): rdback(f, "v", CT, 1); self.rd_at[f] = self.gnow
            r0.ready = r1.ready = lambda g: g >= self.wpos + 2
            def wt(): self.wait(ltags=[("C", f)])
            wt.ready = lambda g: f in self.rd_at and g >= self.rd_at[f] + o.rdist
            def st(): store(f, vr(CT, 4))
            it = []
            if f % 8 == 0 and f:
                it = switch(VR, f // 8, "ra"); it[0][1].ready = lambda g: True
            it += [("Z", z), ("D", r0), ("D", r1), ("S", wt), ("R", st)]
            for k, x in it: x.pub = True
            return [x + (pos,) for x in it]
        self.stream2 = []
        for f in range(nf): self.stream2 += pub(f, E0[f // 8] + (o.spo + o.sp * (f % 8) if f < 16 else o.spo2 + o.sp2 * (f % 8)))
        self.seg_emit(sc, 0, stamp_at=58)
        self.area_next = {0}
        sc = self.seg_open("C14", [X14], None, 3, [0], X14, W14, half=1, nextnt=1); at_barrier()
        it, d = half_dma(15, 1, S_Q + 1, S_WR + 1, 1)
        c = sc.chain(it, 1)
        self.place_dma(sc, d, 17, 3)
        sc.chain(self.xa_items(S_X + 2, S_X + 1, nx), 16)
        self.wa_sched(sc, S_WR + 1, S_WR, 8, 24)
        self.seg_emit(sc, 64, stamp_at=28)
        sc = self.seg_open("F15", [X15, W15 + (0,)], None, 1, [0, 1, 2, 3, 4], X15, W15, half=lambda nt: nt >> 2, nextnt=5, maxS=1); at_barrier()
        it, d = half_dma(14, 1, S_Q, S_WR + 1, 0)
        c = sc.chain(it, 1)
        sc.g[63].append(("S", lambda: bar([W15 + (1,)])))
        self.place_dma(sc, d, 65, 4)
        sc.chain(self.xa_items(S_X + 1, S_X + 2, nx), 18)
        self.wa_sched(sc, S_WR, S_WR + 1, 20, 16 + 64 + 8)
        self.seg_emit(sc, 96, stamp_at=24)
        sc = self.seg_open("D14", [], None, 5, [2, 3, 4, 5, 6], X14, W14, half=lambda nt: 1 - (nt >> 2), nextnt=7, maxS=1, barrier=False)
        it, d = half_dma(13, 1, S_Q + 2, S_WR, 1)
        c = sc.chain(it, 1)
        def b3():
            self.area_next = {1, 3}; bar([W14 + (1,)])
        sc.g[31].append(("S", b3))
        self.place_dma(sc, d, 33, 4)
        sc.chain(self.xa_items(S_X, S_X + 1, nx), 18)
        self.wa_sched(sc, S_WR + 1, S_WR, 10, 24)
        self.wa_sched(sc, S_WR, S_WR + 1, 50, 16 + 64 + 8)
        self.seg_emit(sc, 192, stamp_at=26)
        sc = self.seg_open("B13", [W13 + (1,)], None, 7, [4, 5, 6], X13, W13, half=1, nextnt=7, maxS=1); at_barrier()
        def b4():
            self.area_next = {2}; bar()
        sc.g[31].append(("S", b4))
        sc.chain(self.xa_items(S_X + 2, S_X, nx), 18)
        self.wa_sched(sc, S_WR + 1, S_WR, 20, 16 + 32 + 8)
        self.seg_emit(sc, 288, stamp_at=24)
        sc = self.seg_open("E15", [], None, 7, [6], X15, W15, half=1, nextnt=7, maxS=1, barrier=False)
        self.seg_emit(sc, 352, stamp_at=24)
        sc = self.seg_open("FIN", [], None, 7, [], None, None, barrier=False, maxS=1)
        self.seg_emit(sc, 384, stamp_at=8)
        for k, fn, pos in self.stream:
            if k == "U": self.mfma(fn)
            else: fn()
        self.stream = []
        while self.stream2 and self.stream2[0][0] in "DSR" and not (self.stream2[0][0] == "S" and self.stream2[1][0] == "A"):
            self.stream2.pop(0)[1]()
        self.stream2 = []
        e("s_nop 7")
        todo = []
        dreg = lambda x: XF(x % 8, (x // 8) & 1)
        def publish():
            bar(every=True)
            for x in sorted(self.visible):
                if x not in self.rd_at:
                    if x // 8 != self.ra:
                        for k, fn in switch(VR, x // 8, "ra"): fn()
                    rdback(x, "a", dreg(x), 0); rdback(x, "a", dreg(x), 1); self.rd_at[x] = 0; todo.append(x)
        def drain(n):
            for _ in range(n):
                if todo:
                    x = todo.pop(0); self.wait(ltags=[("C", x)]); store(x, ar(dreg(x), 4))
        assert nf <= 24
        B7 = [V_WC[0], V_XC[0], V_WC[1], V_XC[1]]
        e(f"v_lshlrev_b32 v{B7[0]}, 16, v{B7[1]}"); e(f"v_and_b32 v{B7[1]}, s{S_MASK}, v{B7[1]}")
        e(f"v_lshlrev_b32 v{B7[2]}, 16, v{B7[3]}"); e(f"v_and_b32 v{B7[3]}, s{S_MASK}, v{B7[3]}")
        if o.fmode == 0 and self.written - set(self.rd_at): publish()
        for f in range(nf, 32):
            p, mt = f // 8, f % 8
            tb = tbf(f)
            if mt == 0:
                for k, fn in switch(VW, p, "wa_"): fn()
            for h in (1, 0):
                pf, r = ACC(mt, 2 * p + h)
                if pf == "a":
                    for i in range(4): e(f"v_accvgpr_read_b32 v{AT+i}, a{r+i}")
                    if h == 1:
                        for i in range(4): e(f"v_add_f32 v{AT+i}, v{AT+i}, v{B7[i]}")
                    r = AT
                for d2 in range(2): e(f"v_pk_mul_f32 {vr(tb+4*h+2*d2,2)}, {vr(tb+4*h+2*d2,2)}, {vr(r+2*d2,2)}")
            for d2 in range(4): e(f"v_cvt_pk_bf16_f32 v{tb+d2}, v{tb+2*d2}, v{tb+2*d2+1}")
            if o.fmode == 1:
                n0 = len(todo)
                if str(f - 24) in o.fpub and self.written - set(self.rd_at): publish()
                drain(min(n0, o.fdrain))
            if f + 2 < 32: self.mfma(U(f + 2, 1)[1])
            wr(f)
            if f + 2 < 32: self.mfma(U(f + 2, 0)[1])
            if o.fmode == 0:
                drain(o.fdrain)
                if (f - nf) % o.fgrp == o.fgrp - 1 or f == 31: publish()
        if o.fmode == 1:
            drain(32); publish()
        drain(32)
        assert self.stored == set(range(32))
        e(f"s_or_b32 s{S_TA}, s{S_J}, s{S_WAVE}"); e(f"s_cmp_lg_u32 s{S_TA}, 0"); e("s_cbranch_scc1 L_fin")
        e(f"s_add_u32 s{S_TA}, s{S_EP}, 16"); e(f"v_mov_b32 v{V_FLAG}, s{S_TA}")
        e(f"buffer_store_dword v{V_FLAG}, off, {sr(S_WS,4)}, s{S_EPOFF} sc1")
        self.label("L_fin")
        if o.diag:
            e(f"s_memtime s[{S_ST}:{S_ST+1}]"); e("s_waitcnt vmcnt(0)"); e(f"s_memtime s[{S_ST+2}:{S_ST+3}]")
            e(f"s_memrealtime s[{S_RT+2}:{S_RT+3}]"); e("s_waitcnt lgkmcnt(0)")
            e(f"v_writelane_b32 v{V_ST[0]}, s{S_ST}, 62"); e(f"v_writelane_b32 v{V_ST[1]}, s{S_ST+2}, 62")
            e(f"v_writelane_b32 v{V_ST[0]}, s{S_RT}, 61"); e(f"v_writelane_b32 v{V_ST[1]}, s{S_RT+2}, 61")
            e(f"s_lshl_b32 s{S_TA}, s2, 2"); e(f"s_add_u32 s{S_TA}, s{S_TA}, s{S_WAVE}"); e(f"s_lshl_b32 s{S_TA}, s{S_TA}, 9")
            e(f"s_add_u32 s{S_TA}, s{S_TA}, {hex(ST_OFF)}"); e("v_lshrrev_b32 v0, 2, v0")
            e(f"buffer_store_dword v{V_ST[0]}, v0, {sr(S_WS,4)}, s{S_TA} offen")
            e(f"buffer_store_dword v{V_ST[1]}, v0, {sr(S_WS,4)}, s{S_TA} offen offset:256")
            if o.echo:
                a, b = o.echo.split(",")
                if a == "pad":
                    e(f"s_add_u32 s{S_TB}, s{S_RT}, {b}")
                else:
                    reg = V_ST[0] if o.echoc else V_ST[1]
                    if a == "s": e(f"s_mov_b32 s{S_TA}, s{S_D0 if o.echoc else S_RT}")
                    else: e(f"v_readlane_b32 s{S_TA}, v{reg}, {a}")
                    if b == "e": e(f"s_mov_b32 s{S_TB}, s{S_ST+2 if o.echoc else S_RT+2}")
                    else: e(f"v_readlane_b32 s{S_TB}, v{reg}, {b}")
                    e("s_nop 4")
                    e(f"s_sub_u32 s{S_TB}, s{S_TB}, s{S_TA}")
                    if o.echoc: e(f"s_sub_u32 s{S_TB}, s{S_TB}, {o.echob}"); e(f"s_lshr_b32 s{S_TB}, s{S_TB}, {o.echos}")
                    e(f"s_min_u32 s{S_TB}, s{S_TB}, 20000")
                    e(f"s_add_u32 s{S_TB}, s{S_TB}, s{S_RT+2}")
                self.label("L_echo")
                e(f"s_memrealtime s[{S_ST}:{S_ST+1}]"); e("s_waitcnt lgkmcnt(0)")
                e(f"s_sub_u32 s{S_ST}, s{S_ST}, s{S_TB}"); e(f"s_cmp_lt_i32 s{S_ST}, 0"); e("s_cbranch_scc1 L_echo")
        e("s_endpgm")

    def sizes(self, lines):
        import subprocess, tempfile, os
        labels = set()
        for l in lines:
            m = re.search(r"(?:branch\w*|L_\w+-)\s*(\w+)", l)
        src = '.amdgcn_target "amdgcn-amd-amdhsa--gfx950"\n.text\n'
        body = []
        for l in lines:
            if l.endswith(":"): continue
            if "branch" in l: l = "s_nop 0"
            l = re.sub(r"L_\w+-L_pc(-4)?", "0x12345", l)
            body.append(l)
        with tempfile.TemporaryDirectory() as d:
            open(d + "/a.s", "w").write(src + "\n".join(body) + "\n")
            subprocess.run(["clang", "-x", "assembler", "-target", "amdgcn-amd-amdhsa", "-mcpu=gfx950", "-c", d + "/a.s", "-o", d + "/a.o"], check=True)
            dis = subprocess.run(["llvm-objdump", "-d", "--mcpu=gfx950", d + "/a.o"], capture_output=True, text=True).stdout
        sz = [4 * len(l.split(": ")[-1].split()) for l in dis.splitlines() if "//" in l]
        assert len(sz) == len(body), (len(sz), len(body))
        out = []; k = 0
        for l in lines:
            if l.endswith(":"): out.append(0)
            else: out.append(sz[k]); k += 1
        return out
    def add_hops(self, o, caps):
        sz = self.sizes(o)
        wt = []; w = 1
        for l in o:
            if l == "L_G0:": w = 13
            if l == "L_T14:": w = 2
            if l == "L_G1:": w = 19
            if l == "L_TAIL:": w = 1
            wt.append(w)
        def layout(X):
            out = ["@HOP"]; pos = X + 4; nextpage = 4096; cost = 0
            i = 0
            while i < len(o):
                if pos >= nextpage:
                    best = None; p = pos; j = i
                    while j < len(o) and p < nextpage + 56:
                        if j > 0 and o[j - 1].startswith("v_mfma"):
                            n = 0
                            while j + n < len(o) and not o[j + n].startswith("v_mfma"): n += 1
                            if best is None or n < best[0]: best = (n, j)
                        p += sz[j]; j += 1
                    tgt = best[1] if best else i
                    cost += wt[tgt] * (self.opt.hopw + 10 * min(best[0] if best else 1, 1))
                    while i < tgt:
                        out.append(o[i]); pos += sz[i]; i += 1
                    out.append("@HOP"); pos += 4
                    nextpage += 4096
                    continue
                if o[i] in ("L_G0:", "L_G1:") and self.opt.algn >= 0:
                    need = ((self.opt.algn - pos) % 64) // 4
                    k = len(out)
                    if out[-1].startswith("s_branch"):
                        out += ["s_nop 0"] * need; pos += 4 * need; need = 0
                    while need > 0:
                        while not (out[k - 1].startswith("v_mfma") and (k == len(out) or out[k].startswith("v_mfma"))):
                            k -= 1
                            if out[k] == "@HOP": cost += 1000
                        m = min(need, 3)
                        out[k:k] = ["s_nop 0"] * m; pos += 4 * m; need -= m; k -= 1
                out.append(o[i]); pos += sz[i]; i += 1
            return cost + 30 * out.count("@HOP"), X, out
        cost, self.skip, out = min((layout(X) for X in (range(0, 4096, 64) if self.opt.skip < 0 else [self.opt.skip])), key=lambda r: r[:2])
        self.hopcost = cost
        for b in caps:
            for l in b:
                out.append(l)
                if l.endswith(":") and l.startswith("CAP"): out.append("@HOP")
        n = out.count("@HOP"); k = 0; res = []
        for l in out:
            if l == "@HOP":
                res.append(f"HOP{k}:"); res.append(f"s_cbranch_execz " + (f"HOP{k+4}" if k + 4 < n else "HOPEND")); k += 1
            else: res.append(l)
        self.nhops = n
        return res

    def build(self):
        self.stored = set()
        self.prologue()
        main = self.out
        texts = {}
        def gen(kind, layer, t):
            self.out = []
            self.body(kind, layer, t)
            if kind in texts and texts[kind] != self.out:
                for a, b in zip(texts[kind], self.out):
                    if a != b: print("DIFF", kind, layer, t, a, "|", b); break
                raise RuntimeError(f"body {kind} differs at layer {layer} t {t}")
            texts[kind] = self.out
        for layer in range(3):
            for t in range(16 if layer < 2 else 13):
                if layer == 0: kind = "E0" if t == 0 else ("G0" if t < 14 else f"T{t}")
                else: kind = "H0" if t == 0 else (f"S{t}" if t < 4 else ("G1" if t < 14 else f"T{t}"))
                gen(kind, layer, t)
        self.out = []; self.tail(); texts["TAIL"] = self.out
        if self.opt.x:
            x = self.opt.x; g = []
            for l in texts["G1"]:
                if "d" in x and l.startswith("buffer_load_dwordx4"): l = "s_mov_b32 s70, 0x12345"
                if "p" in x and l.startswith("s_cbranch_scc1 SLOW"): l = "s_nop 0"
                if "p" in x and l.startswith("buffer_load_dword "): l = "s_mov_b32 s70, 0x12345"
                if "f" in x and l.startswith("buffer_store_dword "): l = "s_mov_b32 s70, 0x12345"
                if "b" in x and l == "s_barrier": l = "s_nop 0"
                if "l" in x and l.startswith("ds_read"): l = "s_mov_b32 s70, 0x12345"
                g.append(l)
            texts["G1"] = g
            if "p" in x: texts["TAIL"] = ["s_nop 0" if l.startswith("s_cbranch_scc1 SLOW") else l for l in texts["TAIL"]]
        o = texts["E0"][:]
        o += self.entry.get("G0", [])
        o += ["L_G0:"] + texts["G0"] + ["s_cbranch_scc1 L_G0"]
        o += ["L_T14:"] + texts["T14"] + texts["T15"] + texts["H0"] + texts["S1"] + texts["S2"] + texts["S3"]
        o += self.entry.get("G1", [])
        o += ["L_G1:"] + texts["G1"] + ["s_cbranch_scc1 L_G1"]
        o += [f"s_cmp_eq_u32 s{S_LAYER}, 1", "s_cbranch_scc1 L_T14"]
        o += ["L_TAIL:"] + texts["TAIL"]
        caps = [b for k, b in self.ool.items() if k.startswith("CAP")]
        slow = [b for k, b in self.ool.items() if not k.startswith("CAP")]
        if self.opt.hops:
            o = self.add_hops(o, caps)
            o = main + ["s_branch L_main"] + sum(slow, []) + [".p2align 12"] + ([f".fill {self.skip//4}, 4, 0xbf800000"] if self.skip else []) + ["L_main:"] + o
        else:
            o = main + o + sum(caps, []) + sum(slow, [])
        self.texts = texts
        hdr = open("standalone__dcn_v2_cross__recsys.s.ref").read().split("\n")
        top = [l for l in hdr if l.startswith(";") and "@launch" not in l]
        if self.opt.diag: top.append("; STAMPS " + ("RT " if self.opt.diagrt else "CY ") + " ".join(self.stamps))
        txt = "\n".join(top) + f"\n; @launch grid=(256,1,1) block=(256,1,1) lds={SLOT*5}\n"
        txt += f""".amdgcn_target "amdgcn-amd-amdhsa--gfx950"
.text
.globl {NAME}
.p2align 8
.type {NAME},@function
{NAME}:
"""
        txt += "\n".join(o) + "\nL_codeend:\n"
        txt += f""".section .rodata,"a"
.p2align 6
.amdhsa_kernel {NAME}
  .amdhsa_next_free_vgpr 512
  .amdhsa_next_free_sgpr 102
  .amdhsa_accum_offset 256
  .amdhsa_group_segment_fixed_size 0
  .amdhsa_kernarg_size 48
  .amdhsa_user_sgpr_count 2
  .amdhsa_user_sgpr_kernarg_segment_ptr 1
  .amdhsa_system_sgpr_workgroup_id_x 1
  .amdhsa_float_denorm_mode_32 3
.end_amdhsa_kernel
"""
        return txt

if __name__ == "__main__":
    ap = argparse.ArgumentParser()
    ap.add_argument("-o", default="k3.s")
    ap.add_argument("--diag", action="store_true")
    ap.add_argument("--diagrt", action="store_true")
    ap.add_argument("--diagc", action="store_true")
    ap.add_argument("--pace", type=float, default=7)
    ap.add_argument("--pacex", type=float, default=7.5)
    ap.add_argument("--paceh", type=float, default=8)
    ap.add_argument("--pacet", type=float, default=3.3)
    ap.add_argument("--xr15", type=float, default=0.15)
    ap.add_argument("--xr0", type=float, default=-1)
    ap.add_argument("--xrt", type=float, default=0.0)
    ap.add_argument("--flag0", type=int, default=0)
    ap.add_argument("--early", type=int, default=10)
    ap.add_argument("--direct", default="8444")
    ap.add_argument("--cpos", default="222")
    ap.add_argument("--asc", type=int, default=1)
    ap.add_argument("--xtouch", type=int, default=0)
    ap.add_argument("--tpf", type=int, default=0)
    ap.add_argument("--hops", type=int, default=1)
    ap.add_argument("--echos", type=int, default=4)
    ap.add_argument("--echob", type=int, default=0)
    ap.add_argument("--skip", type=int, default=-1)
    ap.add_argument("--hopw", type=int, default=10)
    ap.add_argument("--fmode", type=int, default=0)
    ap.add_argument("--fpub", default="01234567")
    ap.add_argument("--xbpos", type=int, default=12)
    ap.add_argument("--snake", type=int, default=1)
    ap.add_argument("--wpos", type=int, default=1)
    ap.add_argument("--diag2", action="store_true")
    ap.add_argument("--pace0", type=float, default=7)
    ap.add_argument("--pacex0", type=float, default=7.5)
    ap.add_argument("--xrot", type=int, default=0)
    ap.add_argument("--b0pre", type=int, default=4)
    ap.add_argument("--xsp", type=float, default=1.2)
    ap.add_argument("--xso", type=float, default=3.0)
    ap.add_argument("--gw", type=int, default=14)
    ap.add_argument("--xkeep", type=lambda x: [int(y) for y in x.split(",")], default=[])
    ap.add_argument("--entry", type=int, default=1)
    ap.add_argument("--finit", type=int, default=1)
    ap.add_argument("--stx", type=int, default=0)
    ap.add_argument("--stpos", type=int, default=0)
    ap.add_argument("--fdrop", type=int, default=1)
    ap.add_argument("--pollpos", type=int, default=0)
    ap.add_argument("--wpf", type=int, default=0)
    ap.add_argument("--wpd", type=int, default=2)
    ap.add_argument("--algn", type=int, default=16)
    ap.add_argument("--tsplit", type=int, default=0)
    ap.add_argument("--touch", type=int, default=2)
    ap.add_argument("--prex", type=int, default=0)
    ap.add_argument("--zdist", type=int, default=5)
    ap.add_argument("--rdist", type=int, default=8)
    ap.add_argument("--wl2", type=int, default=0)
    ap.add_argument("--echo", default="")
    ap.add_argument("--echoc", type=int, default=0)
    ap.add_argument("--x0f", default="nt")
    ap.add_argument("--e1out", type=int, default=1)
    ap.add_argument("--wwarm", type=int, default=1)
    ap.add_argument("--w0warm", type=int, default=0)
    ap.add_argument("-x", default="")
    ap.add_argument("--wr128", type=int, default=0)
    ap.add_argument("--nft", type=int, default=24)
    ap.add_argument("--sp", type=float, default=10)
    ap.add_argument("--spo", type=float, default=22)
    ap.add_argument("--sp2", type=float, default=9)
    ap.add_argument("--spo2", type=float, default=16)
    ap.add_argument("--xrb", type=float, default=0.0)
    ap.add_argument("--fdrain", type=int, default=1)
    ap.add_argument("--fgrp", type=int, default=3)
    ap.add_argument("--outf", default="sc1")
    opt = ap.parse_args()
    if opt.diagrt: opt.diag = True
    SNAKE = bool(opt.snake)
    if opt.xr0 < 0:
        opt.xr0 = 0.0
        while True:
            try:
                g = G(opt); txt = g.build(); break
            except AssertionError as ex:
                if not (ex.args and (ex.args[0] == "stream left" or ex.args[0][0] == "deadline")): raise
                opt.xr0 += 0.01
                if opt.xr0 > 1: raise
    else:
        g = G(opt); txt = g.build()
    open(opt.o, "w").write(txt)
    print(f"xr0 {opt.xr0:.2f} skip {getattr(g,'skip',0)} hopcost {getattr(g,'hopcost',0)} nhops {getattr(g,'nhops',0)} fallback waits:", g.warn, {k: len(v) for k, v in g.texts.items()})
```

```python
import sys, re, argparse

NAME = "standalone__dcn_v2_cross__recsys_kernel"
SLOT = 32768
FL_OFF = 64 << 20
EP_OFF = FL_OFF + 65536
ST_OFF = 80 << 20

def vr(b, n=1, p="v"):
    return f"{p}{b}" if n == 1 else f"{p}[{b}:{b+n-1}]"
def ar(b, n=1): return vr(b, n, "a")
def sr(b, n=1): return vr(b, n, "s")

def XF(mt, s): return (mt * 2 + s) * 4
def WF(buf, s): return 64 + buf * 8 + s * 4
def X0(p, mt): return 80 + (p * 8 + mt) * 4
def SEL(h): return 208 + 4 * h
ACC_A0 = 216
ACC_V0 = 40
_acc = {}
def _init_acc():
    va, aa = ACC_V0, ACC_A0
    for nt in range(8):
        for mt in range(8):
            if nt == 7 or (nt == 6 and mt < 2):
                _acc[(mt, nt)] = ("a", aa); aa += 4
            else:
                _acc[(mt, nt)] = ("v", va); va += 4
    assert va == 256 and aa == 256
_init_acc()
def ACC(mt, nt): return _acc[(mt, nt)]

V_L16 = 0; V_XA = [1, 2]; V_WA = [3, 4]; V_WC = [5, 6]; V_XC = [7, 8]; V_CPG = 15; V_CPL = 9
V_POLL = 10; V_FLAG = 11; V_B = 12; V_ST = [13, 14]; V_T = 16; V_XT = 30; V_CAP = 36; V_WT = 37; V_BR = 38
S_DW = 4; S_TR = 5; S_E0 = 6; S_KEY = 7
S_W = 8; S_X0 = 12; S_WS = 16; S_OUT = 20; S_B = 24
S_WT = 28; S_XT = 32
S_X = 36
S_WR = 39
S_Q = 41
S_WCUR = 44; S_WL = 45; S_XB = 46; S_FB = 47; S_FOWN = 48; S_EP = 49; S_NEED = 50; S_FV = 51; S_WLM = 52
S_PA = 53; S_J = 54; S_WAVE = 55; S_RB = 56; S_LOOP = 57; S_LAYER = 58; S_ADJ = 59; S_OADJ = 60; S_WC64 = 61
S_M4 = 62; S_MASK = 65; S_EPOFF = 66; S_CNT = 67; S_CAPJ = 68; S_BOFF = 69
S_TA = 70; S_TB = 71; S_TC = 72; S_TD = 73; S_TE = 74; S_TF = 75; S_O2 = 76; S_O3 = 77; S_WR14 = 78; S_DX = 79
S_PC = 80; S_ST = 82; S_RT = 86; S_SI = 90; S_LEND = 91; S_D0 = 92
S_FQ = 96
S_TG = 99; S_TH = 100; S_M7 = 101; S_XCUR = 3; S_XTO = 28

RANK = {"S": 0, "G": 1, "D": 2, "V": 3}

class Sched:
    def __init__(self, n, maxS=3):
        self.n = n
        self.g = [[] for _ in range(n)]
        self.closedS = set()
        self.maxS = maxS
    def fits(self, g, kind):
        kinds = [k for k, _ in self.g[g]]
        if kind == "G": return len(kinds) == 0
        if "G" in kinds: return False
        nvec = sum(k in "DV" for k in kinds)
        if kind == "S":
            if g in self.closedS or kinds.count("S") >= self.maxS: return False
            return len(kinds) < 3
        return nvec < 2 and len(kinds) < 3
    def put(self, g, kind, fn): self.g[g].append((kind, fn))
    def place(self, kind, fn, lo, hi=None):
        hi = self.n - 1 if hi is None else hi
        for g in range(lo, hi + 1):
            if self.fits(g, kind):
                self.put(g, kind, fn); return g
        raise RuntimeError(f"cannot place {kind} in [{lo},{hi}]")
    def chain(self, items, lo, hi=None):
        out = []; g = lo; pk = None
        for kind, fn in items:
            if pk is not None and (RANK[kind] < RANK[pk] or kind == "G" or pk == "G"): g += 1
            g = self.place(kind, fn, g, hi)
            out.append(g); pk = kind
        return out
    def branch(self, cmpfn, brfn, lo):
        for g in range(lo, self.n - 1):
            if self.fits(g, "S") and self.fits(g + 1, "G"):
                self.put(g, "S", cmpfn); self.closedS.add(g); self.put(g + 1, "G", brfn); return g + 1
        raise RuntimeError("branch")
    def last_su(self):
        last = 0
        for g in range(self.n):
            if any(getattr(f, "su", False) for _, f in self.g[g]): last = g
        return last + 1

def mt_off(mt):
    if mt == 0: return "0", 0
    if mt < 4: return f"s{S_XT+mt}", (mt & 1) * 2048
    return f"s{[S_M4, S_M4+1, S_M4+2, S_M7][mt-4]}", 0

SNAKE = True
def blk(nt, cinit=False):
    r = []
    for mt in range(8):
        ss = (0, 1) if (mt % 2 == 0 and SNAKE) else (1, 0)
        r += [(mt, nt, ss[0], cinit), (mt, nt, ss[1], False)]
    return r

class G:
    def __init__(self, opt):
        self.opt = opt
        self.out = []
        self.vq = []; self.lq = []
        self.ool = {}
        self.slot = {}
        self.lds_own = {}
        self.xa = None; self.wa = None
        self.warn = 0
        self.stamps = []
        self.stream = []; self.stream2 = []; self.entry = {}
        self.pending = None
    def e(self, s): self.out.append(s)
    def E(self, s): return lambda: self.e(s)
    def S(self, s): return ("S", self.E(s))
    def V(self, s): return ("V", self.E(s))
    def SU(self, s, then=None):
        def f():
            self.e(s)
            if then: then()
        f.su = True
        return ("S", f)
    def label(self, n): self.out.append(n + ":")
    def vm(self, s, tag=None):
        self.e(s); self.vq.append(tag); assert len(self.vq) <= 62
    def VM(self, s, tag=None): return ("G", lambda: self.vm(s, tag))
    def lds(self, s, tag=None):
        self.e(s); self.lq.append(tag)
    def _need(self, q, tags, mx, force=None):
        idx = -1
        for i, t in enumerate(q):
            if t in tags: idx = i
        if idx < 0 and force is None: return None
        n = len(q) - 1 - idx
        if force is not None:
            assert n >= force or idx < 0, (n, force, q)
            n = force
        n = min(n, mx)
        if len(q) > n: del q[:len(q) - n]
        return n
    def wait(self, vtags=(), ltags=(), lall=False, vforce=None):
        parts = []
        n = self._need(self.vq, set(vtags), 62, vforce)
        if n is not None: parts.append(f"vmcnt({n})")
        if lall:
            parts.append("lgkmcnt(0)"); self.lq = []
        else:
            n = self._need(self.lq, set(ltags), 14)
            if n is not None: parts.append(f"lgkmcnt({n})")
        if parts: self.e("s_waitcnt " + " ".join(parts))
    def smov(self, d, s):
        def f():
            self.e(f"s_mov_b32 s{d}, s{s}"); self.slot[d] = self.slot[s]
        return ("S", f)

    def mfma(self, m):
        if m[0] == "U":
            _, p, mt, h, tb = m
            self.e(f"v_mfma_f32_16x16x32_bf16 {vr(tb+4*h,4)}, {ar(SEL(h),4)}, {ar(X0(p,mt),4)}, 0")
            return
        mt, nt, s, cinit = m
        buf = nt & 1
        tags = {("XF", mt, s), ("WF", buf, s, 0), ("WF", buf, s, 1)}
        if tags & set(self.lq):
            self.warn += 1
            self.wait(ltags=tags)
        p, r = ACC(mt, nt)
        c = vr(r, 4, p)
        if cinit and p == "v" and mt != 7: c = vr(ACC(7, nt)[1], 4)
        self.e(f"v_mfma_f32_16x16x32_bf16 {vr(r,4,p)}, {ar(WF(buf,s),4)}, {ar(XF(mt,s),4)}, {c}")
    def rd_xf(self, mt, s, want):
        def f():
            assert self.lds_own[self.xa] == want, (self.lds_own[self.xa], want)
            self.lds(f"ds_read_b128 {ar(XF(mt,s),4)}, v{V_XA[s]} offset:{mt*2048}", ("XF", mt, s))
        return f
    def rd_wf(self, nt, s, u, want, half=None):
        p, h = nt >> 1, nt & 1
        if callable(half): half = half(nt)
        off = (p >> 1 if half is None else half) * 16384 + (p & 1) * 512 + s * 8192 + u * 4096
        def f():
            if half is None: assert self.lds_own[self.wa[h]] == want, (self.lds_own[self.wa[h]], want)
            else:
                assert self.lds_half[(self.wa[h], half)] == want + (p >> 1,), (self.lds_half, self.wa[h], half, want, nt)
                assert want + (p >> 1,) in self.landed
            self.lds(f"ds_read_b64_tr_b16 {ar(WF(h,s)+2*u,2)}, v{V_WA[h]} offset:{off}", ("WF", h, s, u))
        return f
    def dma_items(self, what, sdst, form):
        items = []
        if form == "X0" and self.opt.xrot:
            RM = [S_O2, S_O3, S_Q + 1, S_Q + 2]; RS = [S_WLM, S_KEY, S_TG, S_TH]
            for k in range(4):
                items.append(self.SU(f"s_add_u32 m0, s{sdst}, s{RM[k]}", lambda: self.lds_own.__setitem__(self.slot[sdst], what)))
                for i in range(2):
                    items.append(self.VM(f"buffer_load_dwordx4 v{V_XC[i]}, {sr(S_X0,4)}, s{RS[k]} offen" + (" offset:1024" if i else "") + f" {self.opt.x0f} lds", what))
            return items
        for i in range(8):
            if i == 0: items.append(self.SU(f"s_mov_b32 m0, s{sdst}", lambda: self.lds_own.__setitem__(self.slot[sdst], what)))
            if i == 4:
                def chk(): assert self.lds_own[self.slot[sdst]] == what
                items.append(self.SU(f"s_add_u32 m0, s{sdst}, 0x1000", chk))
            off = f" offset:{(i&3)*1024}" if i & 3 else ""
            if form == "W":
                so = "0" if i < 2 else f"s{S_WT+(i>>1)}"
                s = f"buffer_load_dwordx4 v{V_WC[i&1]}, {sr(S_W,4)}, {so} offen{off} lds"
            elif form == "X0":
                so = "0" if i < 2 else f"s{S_XT+(i>>1)}"
                s = f"buffer_load_dwordx4 v{V_XC[i&1]}, {sr(S_X0,4)}, {so} offen{off} {self.opt.x0f} lds"
            else:
                so = "0" if i < 2 else f"s{S_XT+(i>>1)}"
                s = f"buffer_load_dwordx4 v{V_XC[i&1]}, {sr(S_X0,4)}, {so} offen{off} sc1 lds"
            items.append(self.VM(s, what))
        return items
    def place_dma(self, sc, items, lo, pace):
        g = lo; prev = -1; pend = None
        for kind, fn in items:
            if kind == "S": pend = fn; continue
            g0 = max(int(g), prev + 1)
            if pend is not None:
                gs = sc.place("S", pend, max(prev + 1, g0 - 2, 0)); g0 = max(g0, gs + 1); pend = None
            prev = sc.place("G", fn, g0)
            g += pace
        return prev
    def w_setup(self, tidreg, base):
        return [self.S(f"s_lshl_b32 s{S_TA}, s{tidreg}, 17"), self.S(f"s_add_u32 s{S_TA}, s{S_TA}, s{base}"),
                self.S(f"s_sub_u32 s{S_TB}, s{S_TA}, s{S_WCUR}"), self.S(f"s_mov_b32 s{S_WCUR}, s{S_TA}"),
                self.V(f"v_add_u32 v{V_WC[0]}, s{S_TB}, v{V_WC[0]}"), self.V(f"v_add_u32 v{V_WC[1]}, s{S_TB}, v{V_WC[1]}")]
    def x_setup(self, tidreg):
        return [self.S(f"s_lshl_b32 s{S_TE}, s{tidreg}, 7"), self.S(f"s_sub_u32 s{S_DX}, s{S_TE}, s{S_XCUR}"), self.S(f"s_mov_b32 s{S_XCUR}, s{S_TE}"),
                self.V(f"v_add_u32 v{V_XC[0]}, s{S_DX}, v{V_XC[0]}"), self.V(f"v_add_u32 v{V_XC[1]}, s{S_DX}, v{V_XC[1]}")]
    def flag_items(self):
        return [self.V(f"v_mov_b32 v{V_FLAG}, s{S_FV}"),
                self.VM(f"buffer_store_dword v{V_FLAG}, off, {sr(S_WS,4)}, s{S_FOWN} sc1", "F"),
                self.S(f"s_add_u32 s{S_FV}, s{S_FV}, 1")]
    def poll_check(self, sc, name, tag, lo):
        sl, bk = f"SLOW_{name}", f"BACK_{name}"
        def f0():
            assert tag not in self.vq
            self.e(f"v_readfirstlane_b32 s{S_TC}, v{V_POLL}")
        c = sc.chain([self.S(f"s_and_b32 s{S_TD}, s{S_Q+1}, 3"), self.S(f"s_add_u32 s{S_TD}, s{S_TD}, s{S_NEED}"),
                      ("V", f0), self.S(f"s_sub_u32 s{S_TC}, s{S_TC}, s{S_TD}")], lo)
        def br():
            self.e(f"s_cbranch_scc1 {sl}"); self.label(bk)
        gbr = sc.branch(self.E(f"s_cmp_gt_u32 s{S_TC}, 7"), br, c[-1])
        self.ool[sl] = [f"{sl}:",
                        f"buffer_load_dword v{V_POLL}, off, {sr(S_WS,4)}, s{S_PA} sc1", "s_waitcnt vmcnt(0)",
                        f"v_readfirstlane_b32 s{S_TC}, v{V_POLL}", f"s_cmp_eq_u32 s{S_CNT}, 0", f"s_cbranch_scc1 {bk}",
                        f"s_sub_u32 s{S_CNT}, s{S_CNT}, 1",
                        f"s_sub_u32 s{S_TC}, s{S_TC}, s{S_TD}", f"s_cmp_gt_u32 s{S_TC}, 7", f"s_cbranch_scc0 {bk}",
                        "s_sleep 1", f"s_branch {sl}"]
        return gbr
    def stamp(self, which):
        if self.opt.diagrt:
            if which == 1:
                self.e(f"s_memtime s[{S_ST}:{S_ST+1}]"); self.e(f"s_memrealtime s[{S_ST+2}:{S_ST+3}]")
            return
        self.e(f"s_memtime s[{S_ST+2*which}:{S_ST+2*which+1}]")
    def stamp_items(self):
        def f():
            self.e(f"s_lshl_b64 exec, 1, s{S_SI}"); self.e(f"v_mov_b32 v{V_ST[0]}, s{S_ST}"); self.e(f"v_mov_b32 v{V_ST[1]}, s{S_ST+2}")
            self.e("s_mov_b64 exec, -1"); self.e(f"s_add_u32 s{S_SI}, s{S_SI}, 1")
        return [("G", f)]
    def epi_valu(self, p, mt, tb, at, ob):
        ops = []
        for h in range(2):
            pf, r = ACC(mt, 2 * p + h)
            if pf == "a":
                for i in range(4): ops.append(f"v_accvgpr_read_b32 v{at+i}, a{r+i}")
                r = at
            for i in range(4): ops.append(f"v_mul_f32 v{tb+4*h+i}, v{tb+4*h+i}, v{r+i}")
        for d in range(4): ops.append(f"v_cvt_pk_bf16_f32 v{ob+d}, v{tb+2*d}, v{tb+2*d+1}")
        return ops
    def bunpack(self, nt, d):
        dpp = f"row_newbcast:{nt} row_mask:0xf bank_mask:0xf"
        return [f"v_mov_b32_dpp v{d[1]}, v{V_BR} {dpp}", f"v_mov_b32_dpp v{d[3]}, v{V_BR+1} {dpp}",
                f"v_lshlrev_b32 v{d[0]}, 16, v{d[1]}", f"v_and_b32 v{d[1]}, s{S_MASK}, v{d[1]}",
                f"v_lshlrev_b32 v{d[2]}, 16, v{d[3]}", f"v_and_b32 v{d[3]}, s{S_MASK}, v{d[3]}"]
    def bias_sched(self, sc, nt, g, busy):
        a0 = V_T + 10
        f = [V_T + 16 + i for i in range(4)]
        g = sc.chain([self.V(x) for x in self.bunpack(nt, f)], g)[-1]
        ops = []
        for mt in range(8):
            pf, a = ACC(mt, nt)
            if pf == "v":
                ops += [f"v_add_f32 v{a+i}, v{a+i}, v{f[i]}" for i in range(4)]
            else:
                for i in (0, 2):
                    ops += [f"v_accvgpr_read_b32 v{a0}, a{a+i}", f"v_accvgpr_read_b32 v{a0+1}, a{a+i+1}",
                            f"v_add_f32 v{a0}, v{a0}, v{f[i]}", f"v_add_f32 v{a0+1}, v{a0+1}, v{f[i+1]}",
                            f"v_accvgpr_write_b32 a{a+i}, v{a0}", f"v_accvgpr_write_b32 a{a+i+1}, v{a0+1}"]
        b0, b1 = busy
        est = g + len(ops) // 2 + len(ops) // 3 + 4
        if est < b0 - 2: lo, hi = g, b0 - 2
        else: lo, hi = max(g, b1 + 6), sc.n - 1
        return sc.chain([self.V(x) for x in ops], lo, hi)[-1]
    def bias0_ops(self, nt):
        d = ACC(7, nt)[1]
        return self.bunpack(nt, [d, d + 1, d + 2, d + 3]) + [f"v_add_f32 v{d+i}, 1.0, v{d+i}" for i in range(4)]

    def prologue(self):
        e = self.e; o = self.opt
        e("s_cmp_lt_u32 s2, 256"); e("s_cbranch_scc1 L_go"); e("s_endpgm")
        self.label("L_go")
        for r, off in ((S_X0, 0), (S_W, 8), (S_B, 16), (S_OUT, 24), (S_WS, 40)):
            e(f"s_load_dwordx2 s[{r}:{r+1}], s[0:1], {off}")
        if o.diag:
            e(f"s_memrealtime s[{S_RT}:{S_RT+1}]"); e(f"s_memtime s[{S_D0}:{S_D0+1}]")
        nst = [0]
        def pst():
            if not o.diag2: return
            e(f"s_memtime s[{S_D0+2}:{S_D0+3}]"); e("s_waitcnt lgkmcnt(0)"); e(f"v_writelane_b32 v{V_ST[0]}, s{S_D0+2}, {52+nst[0]}"); nst[0] += 1
        T = 40
        lane, m, q, r4, c4, q1, tw, t0, t1, t2 = [f"v{T+i}" for i in range(10)]
        e(f"s_getpc_b64 s[{S_PC}:{S_PC+1}]")
        self.label("L_pc")
        e(f"v_lshrrev_b32 {t0}, 6, v0")
        e("s_lshr_b32 s3, s2, 3")
        e(f"v_readfirstlane_b32 s{S_WAVE}, {t0}")
        e("v_lshrrev_b32 v16, 4, v0")
        e("v_lshl_add_u32 v16, s3, 4, v16")
        e("v_lshlrev_b32 v16, 7, v16")
        e(f"v_min_u32 v31, L_codeend-L_pc-4, v16")
        self.vm(f"global_load_dword v{V_POLL}, v31, s[{S_PC}:{S_PC+1}]", "PF")
        e(f"s_and_b32 s{S_RB}, s2, 7"); e(f"s_lshr_b32 s{S_TC}, s2, 5"); e(f"s_lshl3_add_u32 s{S_RB}, s{S_RB}, s{S_TC}")
        e(f"v_bfe_u32 {t1}, v0, 3, 3"); e(f"v_and_b32 {t2}, 7, v0"); e(f"v_bfe_u32 {q}, v0, 4, 2")
        e(f"v_xor_b32 {t0}, {t2}, {q}"); e(f"v_lshlrev_b32 {t0}, 4, {t0}"); e(f"v_lshl_add_u32 {t0}, {t1}, 11, {t0}")
        e(f"s_lshl2_add_u32 s{S_PA}, s{S_RB}, s{S_WAVE}"); e(f"s_lshl_b32 s{S_PA}, s{S_PA}, 17")
        e(f"v_add_u32 v{V_XC[0]}, s{S_PA}, {t0}")
        e(f"v_xor_b32 v{V_XC[1]}, 64, v{V_XC[0]}"); e(f"v_add_u32 v{V_XC[1]}, {16384-1024}, v{V_XC[1]}")
        e(f"s_lshl_b32 s{S_X}, s{S_WAVE}, 13"); self.slot[S_X] = 0
        e(f"s_mov_b32 s{S_X0+2}, {16384*1024*2}"); e(f"s_mov_b32 s{S_X0+3}, 0x20000")
        e(f"s_and_b32 s{S_J}, s3, 3")
        for k in range(1, 4): e(f"s_mov_b32 s{S_XT+k}, {k*32768 - (k&1)*2048}")
        if o.xrot:
            for k, (rm, rs) in enumerate(zip([S_O2, S_O3, S_Q + 1, S_Q + 2], [S_WLM, S_KEY, S_TG, S_TH])):
                e(f"s_add_u32 s{rm}, s{S_J}, {k}"); e(f"s_and_b32 s{rm}, s{rm}, 3"); e(f"s_lshl_b32 s{rs}, s{rm}, 15"); e(f"s_lshl_b32 s{rm}, s{rm}, 11")
        e(f"v_bfe_u32 {r4}, v0, 2, 2")
        e(f"s_lshl_b32 s{S_CNT}, s{S_TC}, 15"); e(f"s_add_u32 s{S_CNT}, s{S_CNT}, s{S_X}")
        e(f"s_lshl_b32 s{S_BOFF}, s{S_J}, 9"); e(f"s_add_u32 s{S_CNT}, s{S_CNT}, s{S_BOFF}")
        e(f"v_lshlrev_b32 {tw}, 7, {r4}"); e(f"v_lshl_add_u32 {tw}, {q}, 11, {tw}")
        e(f"s_mov_b32 s{S_W+2}, {3*1024*1024*2}"); e(f"s_mov_b32 s{S_W+3}, 0x20000")
        xit = self.dma_items(("X", 0, 0), S_X, "X0")
        xit[0][1](); xit = xit[1:]
        if o.diag: e(f"v_mov_b32 v{V_ST[0]}, 0"); e(f"v_mov_b32 v{V_ST[1]}, 0")
        e("s_waitcnt lgkmcnt(0)")
        if o.diag: e(f"s_memtime s[{S_ST}:{S_ST+1}]")
        def run(items):
            for k, f in items:
                f()
                if k == "S": e("s_nop 0")
        def wtouch(): self.vm(f"buffer_load_dword v{V_POLL}, {tw}, {sr(S_W,4)}, s{S_CNT} offen", "PF")
        if o.touch == 1: wtouch()
        run(xit)
        if o.touch == 2: wtouch()
        e(f"s_mov_b32 s{S_B+2}, {3*1024*2}"); e(f"s_mov_b32 s{S_B+3}, 0x20000")
        self.vm(f"buffer_load_dword v{V_POLL}, {tw}, {sr(S_B,4)}, s{S_BOFF} offen", "PF")
        pst()
        e(f"s_lshl_b32 s{S_EPOFF}, s{S_RB}, 7"); e(f"s_add_u32 s{S_EPOFF}, s{S_EPOFF}, {hex(EP_OFF)}")
        if not o.diag2: e(f"s_load_dword s{S_EP}, s[{S_WS}:{S_WS+1}], s{S_EPOFF}")
        e(f"v_and_b32 {lane}, 63, v0"); e(f"v_and_b32 {m}, 15, v0"); e(f"v_and_b32 {c4}, 3, v0"); e(f"v_and_b32 {q1}, 1, {q}")
        for r, sl in ((S_X + 1, 2), (S_X + 2, 4), (S_WR, 1), (S_WR + 1, 3)):
            e(f"s_add_u32 s{r}, s{S_X}, {hex(sl*SLOT)}"); self.slot[r] = sl
        e(f"v_lshlrev_b32 v{V_L16}, 4, {lane}")
        e(f"s_lshr_b32 s{S_TA}, s{S_WAVE}, 1"); e(f"s_and_b32 s{S_TB}, s{S_WAVE}, 1")
        for k in range(1, 4): e(f"s_mov_b32 s{S_WT+k}, {(16*(k&1) + 4*(k>>1))*2048 - (k&1)*2048}")
        e(f"s_lshl_b32 s{S_WC64}, s{S_TB}, 6"); e(f"s_add_u32 s{S_PA}, s{S_BOFF}, s{S_WC64}")
        e(f"v_lshlrev_b32 {t0}, 3, {q}"); e(f"v_add_u32 v{V_B}, s{S_PA}, {t0}")
        e(f"v_bfe_u32 {t0}, {lane}, 1, 2"); e(f"v_lshl_add_u32 v{V_B}, {t0}, 7, v{V_B}"); e(f"v_and_b32 {t0}, 1, {lane}"); e(f"v_lshl_add_u32 v{V_B}, {t0}, 5, v{V_B}")
        e(f"s_lshl_b32 s{S_PA}, s{S_TA}, 8"); e(f"s_add_u32 s{S_PA}, s{S_PA}, s{S_BOFF}")
        e(f"s_lshl_b32 s{S_FV}, s{S_TB}, 16"); e(f"s_add_u32 s{S_PA}, s{S_PA}, s{S_FV}")
        e(f"v_lshlrev_b32 {t0}, 4, {c4}"); e(f"v_lshl_add_u32 {t0}, {q}, 6, {t0}"); e(f"v_lshl_add_u32 {t0}, {r4}, 11, {t0}")
        e(f"v_add_u32 v{V_WC[0]}, s{S_PA}, {t0}")
        e(f"v_xor_b32 v{V_WC[1]}, 32, v{V_WC[0]}"); e(f"v_add_u32 v{V_WC[1]}, {16384-1024}, v{V_WC[1]}")
        def w0():
            self.vm(f"buffer_load_dwordx2 {vr(V_BR,2)}, v{V_B}, {sr(S_B,4)}, 0 offen", ("B", 0))
            run(self.dma_items(("W", 0, 0), S_WR, "W"))
            pst()
        if o.wpos == 0: w0()
        e(f"s_mov_b32 s{S_OUT+2}, {16384*1024*2}"); e(f"s_mov_b32 s{S_OUT+3}, 0x20000")
        e(f"s_mov_b32 s{S_WS+2}, 0x10000000"); e(f"s_mov_b32 s{S_WS+3}, 0x20000")
        e(f"s_lshl_b32 s{S_FB}, s{S_RB}, 9"); e(f"s_add_u32 s{S_FB}, s{S_FB}, {hex(FL_OFF)}")
        e(f"v_lshrrev_b32 {t0}, 1, {m}"); e(f"v_xor_b32 {t0}, {q}, {t0}"); e(f"v_lshlrev_b32 {t0}, 4, {t0}"); e(f"v_lshl_add_u32 {t0}, {m}, 7, {t0}")
        e(f"s_lshl_b32 s{S_WR14}, s{S_TA}, 14")
        e(f"v_add_u32 v{V_XA[0]}, s{S_WR14}, {t0}"); e(f"v_xor_b32 v{V_XA[1]}, 64, v{V_XA[0]}")
        self.xa = 0
        e(f"v_lshlrev_b32 {t0}, 10, {q}"); e(f"v_lshl_add_u32 {t0}, {r4}, 6, {t0}"); e(f"v_lshl_add_u32 {t0}, {q1}, 5, {t0}"); e(f"v_lshl_add_u32 {t0}, {c4}, 3, {t0}")
        e(f"s_lshl_b32 s{S_PA}, s{S_TB}, 8"); e(f"s_add_u32 s{S_PA}, s{S_PA}, {SLOT}")
        e(f"v_add_u32 v{V_WA[0]}, s{S_PA}, {t0}")
        e(f"v_xor_b32 v{V_WA[1]}, 32, v{V_WA[0]}")
        self.wa = [1, 1]
        e(f"v_and_b32 {t1}, 1, {m}"); e(f"v_lshlrev_b32 {t1}, 4, {t1}"); e(f"v_mov_b32 {t2}, 0x3f80"); e(f"v_lshlrev_b32 {t1}, {t1}, {t2}")
        e(f"v_lshlrev_b32 {t2}, 3, {q}"); e(f"v_sub_u32 {t2}, {m}, {t2}"); e(f"v_ashrrev_i32 {t2}, 1, {t2}")
        misc = [f"s_mov_b32 s{S_M4}, 0x20000", f"s_mov_b32 s{S_M4+1}, 0x28000", f"s_mov_b32 s{S_M4+2}, 0x30000", f"s_mov_b32 s{S_MASK}, 0xffff0000",
                f"s_mov_b32 s{S_WL}, 0", f"s_mov_b32 s{S_Q}, 1", f"s_mov_b32 s{S_M7}, 0x38000",
                f"s_lshl_b32 s{S_FOWN}, s{S_J}, 7", f"s_add_u32 s{S_FOWN}, s{S_FOWN}, s{S_FB}", f"s_mul_i32 s{S_OADJ}, s{S_TB}, 7168",
                f"s_mov_b32 s{S_ADJ}, 8192", f"s_mov_b32 s{S_LAYER}, 0", f"s_mov_b32 s{S_CAPJ}, s{S_J}", f"s_mov_b32 s{S_LOOP}, 1",
                f"s_mov_b32 s{S_WCUR}, 0", f"s_mov_b32 s{S_LEND}, 15"]
        for h in range(2):
            for d in range(4):
                e(f"v_cmp_eq_u32 vcc, {d - 8*h}, {t2}"); e(misc.pop(0)); e(misc.pop(0))
                e(f"v_cndmask_b32 {t0}, 0, {t1}, vcc"); e(f"v_accvgpr_write_b32 a{SEL(h)+d}, {t0}")
        for d in range(3):
            e(f"s_cmp_ge_u32 {d}, s{S_J}"); e(f"s_cselect_b32 s{S_FQ+d}, {4*(d+1)}, {4*d}")
        e(f"s_mul_i32 s{S_PA}, s{S_TB}, {131072-16384}"); e(f"s_sub_u32 s{S_PA}, s{S_BOFF}, s{S_PA}")
        e(f"v_xor_b32 v{V_CPG}, s{S_WC64}, v{V_XC[0]}"); e(f"v_add_u32 v{V_CPG}, s{S_PA}, v{V_CPG}")
        e(f"s_mov_b32 s{S_XCUR}, {15*128}")
        if o.wpf:
            e(f"s_lshl2_add_u32 s{S_XB}, s{S_TC}, s{S_WAVE}"); e(f"s_lshl_b32 s{S_XB}, s{S_XB}, 12"); e(f"s_add_u32 s{S_XB}, s{S_XB}, s{S_BOFF}")
        e(f"s_lshl2_add_u32 s{S_PA}, s2, s{S_WAVE}"); e(f"s_lshl_b32 s{S_PA}, s{S_PA}, 12"); e(f"s_add_u32 s{S_PA}, s{S_PA}, 0x200000")
        e(f"v_min_u32 v{V_CPL}, 2, {q}"); e(f"v_lshlrev_b32 v{V_CPL}, 7, v{V_CPL}")
        e(f"s_mov_b32 s{S_BOFF}, 2048"); e(f"s_mov_b32 s{S_CNT}, 0x100000")
        pst()
        if o.wpos == 1: w0()
        if o.hops:
            e("s_mov_b64 exec, 0")
            for w in range(1, 4):
                e(f"s_cmp_eq_u32 s{S_WAVE}, {w}"); e(f"s_cbranch_scc1 HOP{w}")
            e("s_branch HOP0")
            self.label("HOPEND")
            e("s_mov_b64 exec, -1")
        pst()
        if o.wpos == 2: w0()
        if o.diag: e(f"s_memtime s[{S_ST+2}:{S_ST+3}]")
        if o.diag2: e(f"s_load_dword s{S_EP}, s[{S_WS}:{S_WS+1}], s{S_EPOFF}")
        self.wait(vtags=[("B", 0)])
        for nt in range(o.b0pre):
            for x in self.bias0_ops(nt): e(x)
        if o.diag:
            e("s_waitcnt lgkmcnt(0)")
            e(f"v_writelane_b32 v{V_ST[0]}, s{S_D0}, 63")
            e(f"v_writelane_b32 v{V_ST[0]}, s{S_ST}, 60"); e(f"v_writelane_b32 v{V_ST[1]}, s{S_ST+2}, 60")
            e(f"s_mov_b32 s{S_SI}, 0")

    def seg_open(self, name, vt, vforce, prev_nt, nts, X, W, half=None, reload=True, cinit=False, maxS=3, barrier=True, nextnt=None, entry=False, spread=False):
        o = self.opt
        dg = o.diag and not (o.diagc and name in ("G0", "G1"))
        if dg: self.stamps.append(name)
        if self.pending: self.mfma(self.pending)
        if dg: self.stamp(0)
        if barrier and entry:
            k = len(self.out)
            if o.diagc and o.diagrt: self.stamp(1)
            self.wait(vtags=vt, lall=True)
            if o.diagc and o.diagrt:
                self.stamp_items()[0][1](); self.stamps.append(name + "L")
            pre = self.out[:] + [f"s_branch LB_{name}"]
            assert self.entry.setdefault(name, pre) == pre
            self.out[k:] = [f"s_waitcnt vmcnt({vforce}) lgkmcnt(0)", f"LB_{name}:", "s_barrier"]
        elif barrier:
            self.wait(vtags=vt, lall=True, vforce=vforce)
            if name in self.entry: self.label(f"LB_{name}")
            self.e("s_barrier")
        else:
            self.wait(ltags=[("WF", prev_nt & 1, s, u) for s in range(2) for u in range(2)])
        if dg: self.stamp(1)
        base = ([] if prev_nt is None else blk(prev_nt)) + sum((blk(nt, cinit) for nt in nts), [])
        off = 0 if prev_nt is None else 16
        self.pending = base[-1] if nts else None
        mf = base[:-1] if nts else base
        sc = Sched(len(mf), maxS)
        sc.mf = mf; sc.off = off; sc.dg = dg
        su = [(s, u) for s in range(2) for u in range(2)]
        if prev_nt is None:
            for s, u in su: self.rd_wf(nts[0], s, u, W, half)()
            for mt in range(8):
                for s in range(2): self.rd_xf(mt, s, X)()
            self.wait(ltags=[("XF", 1, 0), ("XF", 1, 1)])
        elif nts:
            xs = o.xsp if spread else 1.0
            if reload and xs > 1.0:
                rp = [max(i, int(i * xs + o.xso)) for i in range(16)]
                for i in range(16):
                    mt, _, s, _ = base[i]
                    sc.put(rp[i], "D", self.rd_xf(mt, s, X))
                holes = [g for g in range(0, 12) if g not in rp]
                holes = (holes + [1, 3, 5, 7])[:4]
                for k, (s, u) in enumerate(su): sc.put(sorted(holes)[k], "D", self.rd_wf(nts[0], s, u, W, half))
                sc.rp = rp
            else:
                if reload:
                    for i in range(16):
                        mt, _, s, _ = base[i]
                        sc.put(i, "D", self.rd_xf(mt, s, X))
                for k, (s, u) in enumerate(su): sc.put(2 * k, "D", self.rd_wf(nts[0], s, u, W, half))
            sc.put(15, "S", lambda: self.wait(ltags=[("XF", 1, 0), ("XF", 1, 1)] + [("WF", nts[0] & 1, s, u) for s, u in su]))
        if reload and nts:
            if hasattr(sc, "rp"):
                for mt, upto in ((2, 3), (4, 4), (5, 5), (6, 6), (7, 7)):
                    sc.put(off + 2 * mt - 1, "S", lambda m=upto: self.wait(ltags=[("XF", m, 0), ("XF", m, 1)]))
            else:
                for mt in (2, 4, 6):
                    sc.put(off + 2 * mt - 1, "S", lambda mt=mt: self.wait(ltags=[("XF", mt + 1, 0), ("XF", mt + 1, 1)]))
        sc.blkwait = []
        seq = list(nts[1:]) + [nextnt]
        for b, nt in enumerate(seq):
            if b < len(seq) - 1:
                g = off + 16 * (b + 1) - 1
                sc.put(g, "S", lambda nt=nt: self.wait(ltags=[("WF", nt & 1, s, u) for s, u in su] + [("C",)]))
                sc.blkwait.append(g)
        if nts:
            for b, nt in enumerate(seq):
                if b == 0 and hasattr(sc, "rp"):
                    holes = [g for g in range(16, 27) if g not in sc.rp and g not in o.xkeep][:4]
                    for k, (s, u) in enumerate(su): sc.put(holes[k], "D", self.rd_wf(nt, s, u, W, half))
                    continue
                for k, (s, u) in enumerate(su): sc.place("D", self.rd_wf(nt, s, u, W, half), off + 16 * b + 2 * k)
        return sc
    def seg_emit(self, sc, gbase=None, check=None, stamp_at=50):
        if sc.dg: sc.chain(self.stamp_items(), stamp_at)
        for g, m in enumerate(sc.mf):
            if check: check(g, m)
            self.mfma(m)
            self.merge_gap(sc, g, None if gbase is None else gbase + g)
    def xa_items(self, new, old, nx):
        def f0():
            self.e(f"v_add_u32 v{V_XA[0]}, s{S_DX}, v{V_XA[0]}"); self.xa = nx["x"]
        return [self.SU(f"s_sub_u32 s{S_DX}, s{new}, s{old}", lambda: nx.update(x=self.slot[new])),
                ("V", f0), self.V(f"v_add_u32 v{V_XA[1]}, s{S_DX}, v{V_XA[1]}")]
    def wa_sched(self, sc, new, old, g_s, g_v):
        nx = {}
        def wa(h):
            def f():
                self.e(f"v_add_u32 v{V_WA[h]}, s{S_DW}, v{V_WA[h]}"); self.wa[h] = nx["w"]
            return f
        k, f = self.SU(f"s_sub_u32 s{S_DW}, s{new}, s{old}", lambda: nx.update(w=self.slot[new]))
        sc.place(k, f, g_s, g_v - 1)
        sc.chain([("V", wa(0)), ("V", wa(1))], g_v)

    def body(self, kind, layer, t):
        o = self.opt
        X = ("X", layer, t); W = ("W", layer, t)
        first = kind == "E0"
        vt = [X, W, ("P", layer, t + 2)]
        if kind == "S1": vt.append(("B", layer))
        vforce = {"G0": min(9 + (1 if o.xtouch else 0) + (1 if o.tpf & 2 else 0), 10 + (1 if o.xtouch else 0)), "G1": 8, "T14": 8}.get(kind)
        sc = self.seg_open(kind, vt, vforce, None if first else 7, list(range(7)), X, W, cinit=first,
                           maxS=1 if kind in ("T15", "H0") else 3, nextnt=7, entry=((kind == "G1" and t == 4 and o.entry) or (kind == "G0" and t == 1 and o.entry > 1)),
                           spread=kind in ("G0", "G1", "T14", "S1", "S2", "S3"))
        n, off = sc.n, sc.off
        if kind in ("G0", "G1"):
            sc.put(n - 1, "G", lambda: None)
            sc.put(n - 2, "S", self.E(f"s_cmp_lt_u32 s{S_LOOP}, " + ("14" if kind == "G0" else f"s{S_LEND}"))); sc.closedS.add(n - 2)
        self.gcap = 0
        if kind in ("E0", "G0", "T14", "T15"):
            gB = off + 94 if kind != "T15" else off + 1
            def br():
                self.e(f"s_cbranch_scc1 CAP_{kind}"); self.e("@CAP")
            sc.put(gB, "G", br)
            sc.put(gB - 1, "S", self.E(f"s_cmp_eq_u32 s{S_TC}, s{S_CAPJ}" if kind == "G0" else f"s_cmp_eq_u32 s{S_CAPJ}, {t >> 2}")); sc.closedS.add(gB - 1)
            if kind == "G0": sc.put(gB - 2, "S", self.E(f"s_lshr_b32 s{S_TC}, s{S_LOOP}, 2"))
            for k in range(8): sc.put(gB + 1 + k, "D", self.E(f"@RD{k}"))
            sc.put(gB + 9, "G", self.E("@RET"))
            self.gcap = sc.place("V", self.E(f"v_xor_b32 v{V_CAP}, s{S_WC64}, v{V_XA[0]}"), 9, off if kind == "T15" else None)
        pace = 4 if first else (o.pace0 if kind == "G0" else o.pace)
        gw = o.gw if hasattr(sc, "rp") else off + 1
        lastG = gw
        if kind == "H0":
            def xb():
                assert not any(x and x[0] == "XF" for x in self.lq)
                if o.flag0 == 0: self.wait(vtags=[("S", layer, 0)])
                self.e("s_barrier")
            gb = sc.place("S", xb, off + o.xbpos)
            gw = gb + 1
        if kind == "G1":
            sc.put(0, "S", self.E(f"s_cmp_eq_u32 s{S_LOOP}, s{S_KEY}")); sc.closedS.add(0)
            sc.put(1, "S", self.E(f"s_cselect_b32 s{S_TG}, s{S_Q+1}, s{S_Q}")); sc.put(1, "S", self.E(f"s_cselect_b32 s{S_TH}, s{S_WLM}, s{S_WL}"))
            c = sc.chain(self.w_setup(S_TG, S_TH), 2)
        elif kind != "T15":
            c = sc.chain(self.w_setup(S_Q, S_WL), max(0, gw - 14))
        if first and o.prex and self.x1:
            gw = self.place_dma(sc, self.x1, 1, pace) + 4
        if kind != "T15":
            lastG = self.place_dma(sc, self.dma_items(("W", layer, t + 1), S_WR + 1, "W"), max(gw, c[-1] + 1), pace if kind != "H0" else o.paceh)
        gx = lastG + int(pace)
        if kind in ("S1", "S2", "S3", "G1"):
            if kind != "S1":
                gbr = self.poll_check(sc, kind, ("P", layer, t + 2), off + 8)
                assert gbr < lastG - 1
            c = sc.chain([self.S(f"s_lshr_b32 s{S_PA}, s{S_Q+2}, 2"), self.S(f"s_lshl_b32 s{S_PA}, s{S_PA}, 7"),
                          self.S(f"s_add_u32 s{S_PA}, s{S_PA}, s{S_FB}")], max(gbr + 1, o.pollpos) if (o.pollpos and kind == "G1") else lastG - 1)
            k, f = self.VM(f"buffer_load_dword v{V_POLL}, off, {sr(S_WS,4)}, s{S_PA} sc1", ("P", layer, t + 3))
            if o.pollpos and kind == "G1": gp = sc.place(k, f, c[-1] + 1)
            else:
                gp = sc.place(k, f, max(c[-1], lastG) + 2)
                gx = max(gx, gp + 2); lastG = gp
        if o.wpf and kind in ("E0", "S2"):
            sc.chain([self.V(f"v_and_b32 v{V_WT}, 0x180, v{V_L16}"), self.V(f"v_lshrrev_b32 v{V_FLAG}, 9, v{V_L16}"),
                      self.V(f"v_lshl_add_u32 v{V_WT}, v{V_FLAG}, 11, v{V_WT}")], 9, 40)
        if (o.wpf & 1 and kind == "G0") or (o.wpf & 2 and kind in ("S2", "S3", "G1")):
            TG = S_TE if kind == "G0" else S_TG
            it = [self.S(f"s_add_u32 s{TG}, s{S_Q}, {o.wpd}")] if kind == "G0" else []
            it += [self.S(f"s_lshl_b32 s{TG}, s{TG if kind == 'G0' else S_Q+2}, 17"), self.S(f"s_add_u32 s{TG}, s{TG}, s{S_WL}"), self.S(f"s_add_u32 s{TG}, s{TG}, s{S_XB}")]
            c = sc.chain(it, off + 26)
            k, f = self.VM(f"buffer_load_dword v{V_POLL if kind == 'G0' else V_CAP}, v{V_WT}, {sr(S_W,4)}, s{TG} offen", "PW")
            lastG = sc.place(k, f, max(c[-1], lastG) + 2); gx = max(gx, lastG + 2)
        xadv = [self.V(f"v_add_u32 v{V_XC[i]}, 128, v{V_XC[i]}") for i in range(2)]
        if first:
            if not o.prex:
                sc.chain(xadv, 4)
                lastG = self.place_dma(sc, self.dma_items(("X", 0, 1), S_X + 1, "X0"), gx, pace)
            else: pace = 6
            c = sc.chain(xadv, lastG + 1)
            lastG = self.place_dma(sc, self.dma_items(("X", 0, 2), S_X + 2, "X0"), max(lastG + pace, c[-1] + 1), pace)
        if kind == "G0":
            ww = [self.VM(f"buffer_load_dword v{V_POLL}, v{V_CPL}, {sr(S_W,4)}, s{S_PA} offen", "PW"), self.S(f"s_add_u32 s{S_PA}, s{S_PA}, {384 if o.wwarm else 0}")]
            if not o.xtouch: sc.chain(ww, lastG + 3)
            sc.chain(xadv, off + 20)
            lastG = self.place_dma(sc, self.dma_items(("X", layer, t + 2), S_X + 2, "X0"), gx, o.pacex0)
            if o.xtouch: lastG = sc.chain(ww, lastG + 3)[0]
        if kind in ("E0", "G0") and o.xtouch:
            sc.chain([self.VM(f"buffer_load_dword v{V_POLL}, v{V_XT}, {sr(S_X0,4)}, s{S_XTO} offen nt", "PW"),
                      self.S(f"s_add_u32 s{S_XTO}, s{S_XTO}, 128")], lastG + 3)
        if kind == "G0" and o.tpf & 2:
            sc.chain([self.VM(f"global_load_dword v{V_POLL}, v31, s[{S_PC}:{S_PC+1}]", "PW")], lastG + 6)
        if kind == "S1" and o.tpf & 1:
            sc.chain([self.S(f"s_lshr_b32 s{S_TE}, s2, 3"), self.S(f"s_lshl_b32 s{S_TE}, s{S_TE}, 9"), self.S(f"s_lshl_b32 s{S_TF}, s{S_WAVE}, 7"),
                      self.S(f"s_add_u32 s{S_TE}, s{S_TE}, s{S_TF}"), self.S(f"s_add_u32 s{S_TE}, s{S_TE}, L_TAIL-L_pc"),
                      self.S(f"s_min_u32 s{S_TE}, s{S_TE}, L_codeend-L_pc-4"), self.V(f"v_mov_b32 v{V_FLAG}, s{S_TE}"),
                      self.VM(f"global_load_dword v{V_FLAG}, v{V_FLAG}, s[{S_PC}:{S_PC+1}]", "PW")], off + 4, lastG - 1)
        if kind in ("S2", "S3", "G1"):
            c = sc.chain(self.x_setup(S_Q + 1), 8, off - 1)
            assert c[-1] < gx
            lastG = self.place_dma(sc, self.dma_items(("X", layer, t + 2), S_X + 2, "XE"), gx, o.pacex)
        if kind == "T14":
            it = [self.S(f"s_mov_b32 s{S_WT+k}, {k*16384 - (k&1)*2048}") for k in range(1, 4)]
            it += [self.S(f"s_add_u32 s{S_WL}, s{S_WL}, 0x200000"), self.S(f"s_lshl_b32 s{S_Q}, s{S_J}, 2"),
                   self.V(f"v_subrev_u32 v{V_WC[1]}, s{S_ADJ}, v{V_WC[1]}"), self.S(f"s_mov_b32 s{S_ADJ}, 0")]
            it += self.w_setup(S_Q, S_WL)
            c = sc.chain(it, lastG + 1)
            lastG = self.place_dma(sc, self.dma_items(("W", layer + 1, 0), S_X + 2, "W"), max(gx, c[-1] + 1), pace - 1)
        if kind == "T15" and o.wl2:
            t0, t1 = V_T + 16, V_T + 17
            it = [self.V(f"v_bfe_u32 v{t0}, v{V_L16}, 5, 2"), self.V(f"v_lshlrev_b32 v{t0}, 7, v{t0}"),
                  self.V(f"v_lshrrev_b32 v{t1}, 7, v{V_L16}"), self.V(f"v_lshl_add_u32 v{t1}, v{t1}, 11, v{t0}"),
                  self.V(f"v_lshrrev_b32 v{t0}, 9, v{V_L16}"), self.V(f"v_lshlrev_b32 v{t0}, 11, v{t0}"), self.V(f"v_and_b32 v{V_FLAG}, 0x180, v{V_L16}"),
                  self.V(f"v_add_u32 v{t0}, v{t0}, v{V_FLAG}")]
            sc.chain(it, 1, 26)
            sc.maxS = 2
            it = [self.S(f"s_lshr_b32 s{S_TE}, s2, 5"), self.S(f"s_lshl_b32 s{S_TE}, s{S_TE}, 2"), self.S(f"s_add_u32 s{S_TE}, s{S_TE}, s{S_WAVE}"),
                  self.S(f"s_lshl_b32 s{S_TF}, s{S_J}, 9"), self.S(f"s_add_u32 s{S_TF}, s{S_TF}, s{S_WL}"),
                  self.S(f"s_lshl_b32 s{S_TG}, s{S_TE}, 14"), self.S(f"s_add_u32 s{S_TG}, s{S_TG}, s{S_TF}"), self.S(f"s_lshl_b32 s{S_TH}, s{S_J}, 19"),
                  self.S(f"s_add_u32 s{S_TG}, s{S_TG}, s{S_TH}"),
                  self.S(f"s_lshl_b32 s{S_TE}, s{S_TE}, 12"), self.S(f"s_add_u32 s{S_TE}, s{S_TE}, s{S_TF}"),
                  self.VM(f"buffer_load_dword v{V_POLL}, v{t1}, {sr(S_W,4)}, s{S_TG} offen", "PW")]
            for d in range(o.wl2):
                it += [self.S(f"s_lshl_b32 s{S_TH}, s{S_FQ+d}, 17"), self.S(f"s_add_u32 s{S_TH}, s{S_TH}, s{S_TE}"),
                       self.VM(f"buffer_load_dword v{V_POLL}, v{t0}, {sr(S_W,4)}, s{S_TH} offen", "PW")]
            sc.chain(it, 2, 40)
            sc.maxS = 1
        if kind == "T15":
            sc.put(0, "S", self.E(f"s_cmp_eq_u32 s{S_LAYER}, 0")); sc.closedS.add(0)
            if o.e1out: sc.put(1, "S", self.E(f"s_cselect_b64 s[{S_X0}:{S_X0+1}], s[{S_OUT}:{S_OUT+1}], s[{S_WS}:{S_WS+1}]"))
            else:
                sc.put(1, "S", self.E(f"s_cselect_b32 s{S_TE}, 0x2000000, 0"))
                def f64():
                    self.e(f"s_add_u32 s{S_X0}, s{S_WS}, s{S_TE}"); self.e(f"s_addc_u32 s{S_X0+1}, s{S_WS+1}, 0")
                sc.put(17, "G", f64)
            sc.chain([self.S(f"s_lshl_b32 s{S_TD}, s{S_LAYER}, 2"), self.S(f"s_add_u32 s{S_NEED}, s{S_NEED}, s{S_TD}"),
                      self.S(f"s_mov_b32 s{S_FV}, s{S_NEED}"),
                      self.S(f"s_lshr_b32 s{S_TD}, s{S_WAVE}, 1"), self.S(f"s_mul_i32 s{S_TD}, s{S_TD}, s{S_LAYER}"), self.S(f"s_mul_i32 s{S_KEY}, s{S_TD}, 12"),
                      self.S(f"s_sub_u32 s{S_WLM}, s{S_WL}, 256"), self.S(f"s_sub_u32 s{S_LEND}, s{S_LEND}, 1"),
                      self.S(f"s_add_u32 s{S_LAYER}, s{S_LAYER}, 1")], 2, 60)
        if first:
            if o.finit == 0:
                sc.chain([self.V(f"v_lshrrev_b32 v{V_FLAG}, 1, v{V_L16}"), self.V(f"v_and_b32 v{V_FLAG}, 0x180, v{V_FLAG}"),
                          self.VM(f"buffer_load_dword v{V_POLL}, v{V_FLAG}, {sr(S_WS,4)}, s{S_FB} offen sc1", "PW")], 68)
                sc.chain([self.S(f"s_add_u32 s{S_NEED}, s{S_EP}, 1"), self.S(f"s_mov_b32 s{S_FV}, s{S_EP}")] + self.flag_items(), 98)
            else:
                sc.chain([self.S(f"s_add_u32 s{S_NEED}, s{S_EP}, 1"), self.V(f"v_mov_b32 v{V_FLAG}, s{S_EP}"), self.V(f"v_bfe_u32 v{V_T+16}, v{V_L16}, 2, 7"),
                          self.VM(f"buffer_store_dword v{V_FLAG}, v{V_T+16}, {sr(S_WS,4)}, s{S_FOWN} offen sc1", "F")], 70)
        if kind == "H0":
            def fb():
                self.wait(vtags=[("S", layer, 0)]); self.e("s_barrier")
            if o.flag0 > 0:
                g = sc.place("G", fb, off + o.flag0)
                sc.chain(self.flag_items(), g + 1)
            elif o.flag0 == 0: sc.chain(self.flag_items(), gb + 3)
        if kind == "S1" and o.flag0 < 0:
            assert ("S", layer, 0) not in self.vq
            sc.chain(self.flag_items(), 3)
        if kind == "S3":
            assert ("S", layer, 1) not in self.vq
            sc.chain(self.flag_items(), off + 3)
        if kind == "G1":
            assert ("S", layer, min(t - 2, 3)) not in self.vq
            if o.fdrop:
                def sel():
                    self.e(f"s_cmp_le_u32 s{S_LOOP}, 5"); self.e(f"s_cselect_b32 s{S_TF}, 0, 0x40000000")
                g1 = [g for g in range(11, 40) if len(sc.g[g]) <= 1 and sc.fits(g, "S")][0]
                sc.put(g1, "S", sel); sc.put(g1, "S", lambda: None)
                g1 = sc.place("V", self.E(f"v_mov_b32 v{V_T}, s{S_TF}"), g1 + 1)
                sc.chain([self.V(f"v_mov_b32 v{V_FLAG}, s{S_FV}"), self.VM(f"buffer_store_dword v{V_FLAG}, v{V_T}, {sr(S_WS,4)}, s{S_FOWN} offen sc1", "F"),
                          self.S(f"s_add_u32 s{S_FV}, s{S_FV}, 1")], g1)
            else:
                sc.chain(self.flag_items() + [self.S(f"s_sub_u32 s{S_TF}, s{S_FV}, s{S_NEED}"), self.S(f"s_min_u32 s{S_TF}, s{S_TF}, 3"),
                                              self.S(f"s_add_u32 s{S_FV}, s{S_TF}, s{S_NEED}")], off + 3)
        CT = V_T + 12
        if kind in ("S1", "S2", "S3"):
            jobs = [mt for mt in range(8) if not self.is_direct(t, mt)]
            def chk(): assert self.lds_own[self.slot[S_X]] == ("X", layer, t)
            c = sc.chain([self.SU(f"s_sub_u32 s{S_E0}, s{S_X}, s{S_OADJ}", chk), self.V(f"v_add_u32 v{V_CPL}, s{S_E0}, v{V_L16}")], 8)
            gprev = c[-1]
            w0 = int(o.cpos[t - 1])
            assert w0 + len(jobs) <= 6
            for k, mt in enumerate(jobs):
                w = sc.blkwait[k + w0]
                sc.place("D", lambda mt=mt: self.lds(f"ds_read_b128 {vr(CT,4)}, v{V_CPL} offset:{mt*2048}", ("C",)), max(gprev + 1, w - 9), w - 1)
                def st(mt=mt):
                    assert ("C",) not in self.lq
                    so, im = mt_off(mt)
                    self.vm(f"buffer_store_dwordx4 {vr(CT,4)}, v{V_CPG}, {sr(S_X0,4)}, {so} offen offset:{im + t*128} sc1", ("S", layer, t))
                gprev = sc.place("G", st, w + 1)
        gcap = self.gcap
        gXA = max(gcap + 1, off + 2, sc.rp[-1] + 1 if hasattr(sc, "rp") else 0)
        nx = {}
        if kind == "T15":
            def f0():
                self.e(f"v_add_u32 v{V_XA[0]}, s{S_TA}, v{V_L16}"); self.xa = nx["x"]
            sc.chain([self.S(f"s_lshl_b32 s{S_TA}, s{S_WC64}, 7"),
                      self.SU(f"s_sub_u32 s{S_TA}, s{S_X+2}, s{S_TA}", lambda: nx.update(x=self.slot[S_X + 2])),
                      ("V", f0), self.V(f"v_add_u32 v{V_XA[1]}, 1024, v{V_XA[0]}"), self.S(f"s_mov_b32 s{S_CAPJ}, 77")], off + 11)
            wnext = S_X + 1
        else:
            sc.chain(self.xa_items(S_X + 1, S_X, nx), gXA)
            wnext = S_WR + 1
        self.wa_sched(sc, wnext, S_WR, gXA, off + 16 * 6 + 8)
        if kind == "T15":
            sc.chain([self.VM(f"buffer_load_dwordx2 {vr(V_BR,2)}, v{V_B}, {sr(S_B,4)}, s{S_BOFF} offen", ("B", layer + 1)),
                      self.S(f"s_add_u32 s{S_BOFF}, s{S_BOFF}, 2048")], off + 12, off + 34)
        if kind in ("S1", "S2", "S3", "T14"):
            g = 4 if kind == "S1" else 0
            for nt in {"S1": [5, 6, 0], "S2": [4, 1], "S3": [3, 2], "T14": [7]}[kind]:
                b0 = 0 if nt == 7 else off + 16 * nt
                g = self.bias_sched(sc, nt, g, (b0, b0 + 16))
        if first:
            g = 0
            for nt in range(o.b0pre, 7):
                g = sc.chain([self.V(x) for x in self.bias0_ops(nt)], g, 16 * nt - 2)[-1]
            ops = []
            for mt in range(2): ops += [f"v_accvgpr_write_b32 a{ACC(mt,6)[1]+i}, v{ACC(7,6)[1]+i}" for i in range(4)]
            for mt in range(8): ops += [f"v_accvgpr_write_b32 a{ACC(mt,7)[1]+i}, 1.0" for i in range(4)]
            sc.chain([self.V(x) for x in ops], g, 96 - 2)
        self.slot[S_TR] = None
        if kind == "T15":
            rot = [self.smov(S_O2, S_X), self.smov(S_O3, S_WR), self.smov(S_WR, S_X + 1), self.smov(S_X + 1, S_WR + 1),
                   self.smov(S_X, S_X + 2), self.smov(S_WR + 1, S_X + 2)]
        elif kind == "H0":
            rot = [self.smov(S_X, S_X + 1), self.smov(S_X + 1, S_O2), self.smov(S_X + 2, S_O3),
                   self.smov(S_TR, S_WR), self.smov(S_WR, S_WR + 1), self.smov(S_WR + 1, S_TR)]
        else:
            rot = [self.smov(S_TR, S_X), self.smov(S_X, S_X + 1), self.smov(S_X + 1, S_X + 2), self.smov(S_X + 2, S_TR),
                   self.smov(S_TR, S_WR), self.smov(S_WR, S_WR + 1), self.smov(S_WR + 1, S_TR)]
        q = []
        if kind in ("E0", "G0", "T15", "H0"): q = [self.S(f"s_add_u32 s{S_Q}, s{S_Q}, 1")]
        if kind == "H0": q += [self.S(f"s_add_u32 s{S_Q+1}, s{S_Q}, 1"), self.S(f"s_mov_b32 s{S_Q+2}, s{S_FQ}")]
        if kind in ("S1", "S2"):
            q = [self.S(f"s_mov_b32 s{S_Q}, s{S_Q+1}"), self.S(f"s_mov_b32 s{S_Q+1}, s{S_Q+2}"), self.S(f"s_mov_b32 s{S_Q+2}, s{S_FQ+t}")]
        if kind in ("S3", "G1"):
            q = [self.S(f"s_add_u32 s{S_TE}, s{S_Q}, 1"), self.S(f"s_mov_b32 s{S_Q}, s{S_Q+1}"), self.S(f"s_mov_b32 s{S_Q+1}, s{S_Q+2}"),
                 self.S(f"s_mov_b32 s{S_Q+2}, s{S_TE}")]
        if kind == "S3": q += [self.S(f"s_mov_b32 s{S_LOOP}, 4")]
        sc.chain(q, max(gx, off + 60))
        if kind == "G1": rot += [self.S(f"s_add_u32 s{S_LOOP}, s{S_LOOP}, 1")]
        if kind == "G0": sc.place("S", self.E(f"s_add_u32 s{S_LOOP}, s{S_LOOP}, 1"), off + 104, n - 3)
        sc.chain(rot, max(sc.last_su(), 108 if kind in ("T15", "H0") else 0))
        if kind == "T15": self.make_stream(layer + 1)
        def check(g, m):
            if kind == "H0" and g >= off: assert (m[1] >> 1) * 8 + m[0] in self.epi_done, ("deadline", m)
        self.xr = o.xr15 if kind == "T15" else o.xr0
        self.seg_emit(sc, {"T15": 0, "H0": 128}.get(kind), check, 86 if first else off + 50)
        if "@CAP" in self.out: self.make_cap(kind, t)
        if kind == "T15": assert all(f in self.wr_done for f in range(8))
        if kind == "H0": assert not self.stream, "stream left"

    def make_cap(self, kind, t):
        i0 = self.out.index("@CAP"); i1 = self.out.index("@RET")
        reg = self.out[i0 + 1:i1]
        assert not any(x.endswith(":") or "branch" in x or "barrier" in x for x in reg)
        main = [x for x in reg if not x.startswith("@") and x != "s_nop 0"]
        self.out[i0:i1 + 1] = main + [f"CB_{kind}:"]
        def blkc(p):
            return [f"ds_read_b128 {ar(X0(p,int(x[3])),4)}, v{V_CAP} offset:{int(x[3])*2048}" if x.startswith("@RD") else x for x in reg] + [f"s_branch CB_{kind}"]
        cap = f"CAP_{kind}"
        if kind == "G0":
            b = [f"{cap}:", f"s_and_b32 s{S_TC}, s{S_LOOP}, 3"]
            for p in range(1, 4): b += [f"s_cmp_eq_u32 s{S_TC}, {p}", f"s_cbranch_scc1 {cap}{p}"]
            b += blkc(0)
            for p in range(1, 4): b += [f"{cap}{p}:"] + blkc(p)
            self.ool[cap] = b
        else:
            self.ool[cap] = [f"{cap}:"] + blkc(t & 3)
    def is_direct(self, p, mt):
        n = int(self.opt.direct[p])
        return ((mt + 1) * n) // 8 != (mt * n) // 8
    def make_stream(self, nl):
        st = []
        self.epi_done = set(); self.wr_done = set()
        tbf = lambda f: V_T + 8 * (f % 2)
        U = lambda f, h: ("U", ("U", f // 8, f % 8, h, tbf(f)))
        self.stream = [U(f, h) + (30,) for f in range(2) for h in range(2)]
        self.credit = 0.0
        for f in range(32):
            p, mt = f // 8, f % 8
            tb = tbf(f)
            pos = 38 + 32 * p + 2 * mt
            sreg = {0: S_X + 2, 1: S_WR + 1, 2: S_O2, 3: S_O3}[p]
            ops = self.epi_valu(p, mt, tb, V_T + 16, tb)
            it = []
            for k, x in enumerate(ops):
                kd = "V" if (k < 4 or f == 31) else "A"
                if k == len(ops) - 5: it.append((kd, lambda x=x, f=f: (self.e(x), self.epi_done.add(f)), pos))
                else: it.append((kd, self.E(x), pos))
            if p >= 2: pos = max(pos, 129)
            if mt == 0:
                def f0(p=p, sreg=sreg):
                    self.lds_own[self.slot[sreg]] = ("X", nl, p)
                    self.e(f"s_sub_u32 s{S_E0}, s{sreg}, s{S_OADJ}")
                a = [("S", f0, pos), ("A", self.E(f"v_add_u32 v{V_CPL}, s{S_E0}, v{V_L16}"), pos)]
                it = it[:6] + a + it[6:] if p != 2 else it + a
            if self.is_direct(p, mt):
                so, im = mt_off(mt)
                it += [("R", lambda p=p, im=im, tb=tb, so=so: self.vm(f"buffer_store_dwordx4 {vr(tb,4)}, v{V_CPG}, {sr(S_X0,4)}, {so} offen offset:{im + p*128} sc1", ("S", nl, p)), pos)]
            if f + 2 < 32: it += [U(f + 2, 1) + (pos,)]
            it += [("X", lambda f=f, mt=mt, tb=tb: (self.lds(f"ds_write_b128 v{V_CPL}, {vr(tb,4)} offset:{mt*2048}", ("O",)), self.wr_done.add(f)), pos)]
            if f + 2 < 32: it += [U(f + 2, 0) + (pos,)]
            self.stream += it

    def merge_gap(self, sc, g, gpos):
        fixed = sc.g[g]
        self.gnow = gpos
        while True:
            cur = list(fixed)
            excl = any(k == "G" for k, _ in cur)
            hasR = False
            newgap = None
            top = -1
            if gpos is not None: self.credit = min(self.credit + self.xr, 2.0)
            def cnt(): return sum(k in "DV" for k, _ in cur), sum(getattr(f, "w", 1) for k, f in cur)
            def free():
                nvec, tot = cnt()
                if hasR: return nvec < 2
                return not excl and nvec < 2 and tot < 3
            def lookahead():
                i = 0
                while i < len(self.stream) and self.stream[i][0] in "RUX": i += 1
                while i < len(self.stream) and self.stream[i][0] == "V" and self.stream[i][2] <= gpos + 1 and free():
                    cur.append(("V", self.stream.pop(i)[1]))
            if gpos is not None and fixed is sc.g[g] and not (self.stream and getattr(self.stream[0][1], "pub", False)):
                while self.stream2 and self.stream2[0][2] <= gpos + 1:
                    k, fn, pos = self.stream2[0]
                    st = fn.ready(gpos)
                    if st == "skip": self.stream2.pop(0); continue
                    if st:
                        grp = [self.stream2.pop(0)]
                        if k == "S": grp.append(self.stream2.pop(0))
                        self.stream[0:0] = grp
                    break
            while gpos is not None and self.stream:
                k, fn, pos = self.stream[0]
                if pos > gpos + 1:
                    break
                if k == "U" and len(self.stream) > 1 and hasattr(self.stream[1][1], "ok") and not self.stream[1][1].ok():
                    lookahead(); break
                if k == "U":
                    lookahead()
                    newgap = fn; self.stream.pop(0); break
                if k == "X":
                    nxt = [kk for gg in (g + 1, g + 2) if gg < sc.n for kk, _ in sc.g[gg]]
                    follow_u = len(self.stream) > 1 and self.stream[1][0] == "U"
                    if any(kk != "S" for kk, _ in cur) or (not follow_u and "D" in nxt and fixed is sc.g[g]):
                        lookahead(); break
                    cur.append(("G", fn)); excl = True; self.stream.pop(0); continue
                if k == "R":
                    if excl or top > 0:
                        lookahead(); break
                    cur.append(("G", fn)); excl = True; hasR = True; top = 1; self.stream.pop(0); continue
                if k in "SZ":
                    w = 2 if k == "Z" else 1
                    if excl or top > 0 or g in sc.closedS or cnt()[1] + w > 3: break
                    fn.w = w
                    cur.append(("S", fn)); top = 0; self.stream.pop(0); continue
                if k == "D":
                    if top > 2 or not free(): break
                    cur.append(("D", fn)); top = 2; self.stream.pop(0); continue
                ok = free()
                if not ok and not excl and self.credit >= 1.0 and cnt()[0] < 3 and cnt()[1] < 4:
                    self.credit -= 1.0; ok = True
                if not ok: break
                cur.append(("V", fn)); top = 3; self.stream.pop(0)
            ks = [k for k, _ in cur]
            if ks.count("D") == 2 and "S" not in ks and "G" not in ks: cur.append(("S", self.E("s_nop 0")))
            for k, fn in sorted(cur, key=lambda x: RANK[x[0]]): fn()
            if newgap is None: return
            self.mfma(newgap)
            fixed = []

    def tail(self):
        e = self.e; o = self.opt
        L = 2
        VW, VR = V_POLL, V_CPL
        CT = V_T + 20; AT = V_T + 16
        tbf = lambda f: V_T + 8 * (f % 2)
        U = lambda f, h: ("U", ("U", f // 8, f % 8, h, tbf(f)))
        depth = lambda f: 4 if f < 8 else 8
        unit = lambda f: (f % depth(f)) * 4096
        area = {0: (S_WR, 0), 1: (S_X + 1, 0), 2: (S_X, 0), 3: (S_X + 1, 0)}
        def rdback(f, p, r, k):
            assert f in self.visible and self.ra == f // 8
            self.lds(f"ds_read_b64 {vr(r+2*k,2,p)}, v{VR} offset:{unit(f) + 256*k}", ("C", f))
        def store(f, dst):
            assert ("C", f) not in self.lq
            so, im = mt_off(f % 8)
            self.vm(f"buffer_store_dwordx4 {dst}, v{V_CPG}, {sr(S_OUT,4)}, {so} offen offset:{im + (f//8)*128} {o.outf}", "SO")
            self.stored.add(f)
        def wr_ok(f):
            prev = {0: f - 4, 1: -1, 2: -1, 3: f - 16}[f // 8]
            return (prev < 0 or prev in self.freed) and (f // 8) in self.area_free
        def wr(f):
            assert wr_ok(f) and self.wa_ == f // 8
            self.lds(f"ds_write_b128 v{VW}, {vr(tbf(f),4)} offset:{unit(f)}", ("Y", f))
            self.written.add(f); self.wpos = self.gnow; self.w_at[f] = self.gnow
        self.written = set(); self.visible = set(); self.freed = set(); self.rd_at = {}
        self.lds_half = {}; self.landed = set(); self.area_free = set(); self.area_next = set()
        self.wpos = 0; self.ra = 0; self.wa_ = 0; self.w_at = {}
        def at_barrier():
            self.visible |= {f for f in self.written if ("Y", f) not in self.lq}
            self.freed |= {f for f in self.rd_at if ("C", f) not in self.lq}
            self.landed |= {v for v in self.lds_half.values() if v not in self.vq}
            if not any(x and x[0] == "XF" for x in self.lq): self.area_free |= self.area_next
        def bar(vtags=(), every=False):
            self.wait(vtags=vtags, ltags=[("Y", x) for x in self.written if every or self.gnow >= self.w_at[x] + o.zdist]); e("s_barrier"); at_barrier()
        def switch(reg, p, attr):
            t = S_TC if attr == "ra" else S_TD
            def f():
                e(f"v_add_u32 v{reg}, s{t}, v{reg}"); setattr(self, attr, p)
            return [("S", self.E(f"s_sub_u32 s{t}, s{area[p][0]}, s{area[p-1][0]}")), ("A", f)]
        def half_dma(tile, H, tidreg, sreg, half):
            what = ("W", L, tile, H)
            it = [self.S(f"s_add_u32 s{S_TH}, s{S_WLM}, {H*256}")] + self.w_setup(tidreg, S_TH)
            d = [self.SU(f"s_add_u32 m0, s{sreg}, s{S_O2+half}", lambda: self.lds_half.__setitem__((self.slot[sreg], half), what))]
            for i in range(4):
                so = "0" if i < 2 else f"s{S_WT+1}"
                d.append(self.VM(f"buffer_load_dwordx4 v{V_WC[i&1]}, {sr(S_W,4)}, {so} offen" + (f" offset:{i*1024}" if i else "") + " lds", what))
            return it, d
        W13, W14, W15 = ("W", L, 13), ("W", L, 14), ("W", L, 15)
        X13, X14, X15 = ("X", L, 13), ("X", L, 14), ("X", L, 15)
        self.lds_half[(self.slot[S_WR], 0)] = W13 + (0,); self.lds_half[(self.slot[S_WR], 1)] = W14 + (0,)
        sc = self.seg_open("A13", [X13, W13, ("P", L, 15)], 8, 7, [0, 1, 2], X13, W13, half=0, nextnt=3); at_barrier()
        gbr = self.poll_check(sc, "A13", ("P", L, 15), 0)
        sc.chain(self.x_setup(S_Q + 1), 3, 15)
        c = sc.chain([self.S(f"s_lshl_b32 s{S_TA}, s{S_WAVE}, 15"), self.S(f"s_lshl_b32 s{S_TB}, s{S_WC64}, 10"), self.S(f"s_sub_u32 s{S_TA}, s{S_TA}, s{S_TB}"),
                      self.S(f"s_lshr_b32 s{S_TB}, s{S_WR14}, 6"), self.S(f"s_sub_u32 s{S_TA}, s{S_TA}, s{S_TB}"), self.S(f"s_add_u32 s{S_WLM}, s{S_WL}, s{S_TA}"),
                      self.S(f"s_lshl_b32 s{S_TA}, s{S_WAVE}, 12"), self.S(f"s_sub_u32 s{S_O2}, 0, s{S_TA}"), self.S(f"s_add_u32 s{S_O3}, s{S_O2}, 0x4000"),
                      self.S(f"s_sub_u32 s{S_Q+2}, s{S_Q+2}, 1")], 5)
        it, d = half_dma(15, 0, S_Q + 1, S_WR + 1, 0)
        c = sc.chain(it, c[-1])
        lastG = self.place_dma(sc, d, max(gbr + 1, c[-1] + 1), o.pacet)
        lastG = self.place_dma(sc, self.dma_items(X15, S_X + 2, "XE"), lastG + 3, o.pacet)
        nx = {}
        sc.chain(self.xa_items(S_X + 1, S_X, nx), 18)
        a, b, c_, d_ = [f"v{V_T+i}" for i in range(4)]
        adr = [f"v_lshrrev_b32 {a}, 9, v{V_L16}", f"v_lshlrev_b32 {a}, 6, {a}", f"v_add_u32 {a}, {a}, v{V_L16}", f"v_add_u32 {a}, s{S_KEY}, {a}",
               f"v_and_b32 {a}, 0xf0, {a}", f"v_and_b32 {b}, 0x300, v{V_L16}", f"v_add3_u32 v{VW}, {a}, {b}, s{S_E0}",
               f"v_and_b32 {c_}, 0x70, v{V_CPG}",
               f"v_lshrrev_b32 {a}, 3, v{V_L16}", f"v_and_b32 {a}, 0x70, {a}", f"v_add_u32 {a}, s{S_KEY}, {a}",
               f"v_and_b32 {b}, 64, {c_}", f"v_lshl_add_u32 {a}, {b}, 1, {a}", f"v_and_b32 {d_}, 16, {c_}", f"v_lshl_add_u32 {a}, {d_}, 2, {a}",
               f"v_and_b32 {a}, 0xf0, {a}", f"v_lshl_add_u32 {a}, {b}, 4, {a}", f"v_lshl_add_u32 {a}, {d_}, 5, {a}",
               f"v_bfe_u32 {b}, {c_}, 5, 1", f"v_lshl_add_u32 {a}, {b}, 3, {a}", f"v_add_u32 v{VR}, s{S_TF}, {a}"]
        sc.chain([self.S(f"s_lshl_b32 s{S_KEY}, s{S_WC64}, 1"), self.S(f"s_mul_i32 s{S_E0}, s{S_WAVE}, 7168"), self.SU(f"s_sub_u32 s{S_E0}, s{S_WR}, s{S_E0}"),
                  self.S(f"s_lshl_b32 s{S_TF}, s{S_WC64}, 4"), self.S(f"s_sub_u32 s{S_TF}, s{S_E0}, s{S_TF}")], 20, 36)
        self.stream = [self.V(x) + (40,) for x in adr]
        self.stream += [self.V(f"v_mov_b32_dpp v{V_XC[i]}, v{V_BR+i} row_newbcast:7 row_mask:0xf bank_mask:0xf") + (64,) for i in range(2)]
        self.credit = 0.0; self.xr = 0.0
        E0 = [134, 230, 326, 390]
        ear = lambda f: E0[f // 8] + 2 * (f % 8)
        self.stream += [U(f, h) + (126,) for f in range(2) for h in range(2)]
        nf = o.nft
        for f in range(nf):
            pos = ear(f)
            it = [("V" if k < 4 else "A", self.E(x)) for k, x in enumerate(self.epi_valu(f // 8, f % 8, tbf(f), None, tbf(f)))]
            if f % 8 == 0 and f: it = it[:6] + switch(VW, f // 8, "wa_") + it[6:]
            w0 = lambda f=f: wr(f)
            w0.ok = lambda f=f: wr_ok(f)
            it += [U(f + 2, 1), ("X", w0), U(f + 2, 0)]
            self.stream += [x + (pos,) for x in it]
        def pub(f, pos):
            def z():
                bar(); assert f in self.visible
            z.ready = lambda g: "skip" if f in self.visible else (f in self.written and g >= self.w_at[f] + o.zdist)
            def r0(): rdback(f, "v", CT, 0)
            def r1(): rdback(f, "v", CT, 1); self.rd_at[f] = self.gnow
            r0.ready = r1.ready = lambda g: g >= self.wpos + 2
            def wt(): self.wait(ltags=[("C", f)])
            wt.ready = lambda g: f in self.rd_at and g >= self.rd_at[f] + o.rdist
            def st(): store(f, vr(CT, 4))
            it = []
            if f % 8 == 0 and f:
                it = switch(VR, f // 8, "ra"); it[0][1].ready = lambda g: True
            it += [("Z", z), ("D", r0), ("D", r1), ("S", wt), ("R", st)]
            for k, x in it: x.pub = True
            return [x + (pos,) for x in it]
        self.stream2 = []
        for f in range(nf): self.stream2 += pub(f, E0[f // 8] + (o.spo + o.sp * (f % 8) if f < 16 else o.spo2 + o.sp2 * (f % 8)))
        self.seg_emit(sc, 0, stamp_at=58)
        self.area_next = {0}
        sc = self.seg_open("C14", [X14], None, 3, [0], X14, W14, half=1, nextnt=1); at_barrier()
        it, d = half_dma(15, 1, S_Q + 1, S_WR + 1, 1)
        c = sc.chain(it, 1)
        self.place_dma(sc, d, 17, 3)
        sc.chain(self.xa_items(S_X + 2, S_X + 1, nx), 16)
        self.wa_sched(sc, S_WR + 1, S_WR, 8, 24)
        self.seg_emit(sc, 64, stamp_at=28)
        sc = self.seg_open("F15", [X15, W15 + (0,)], None, 1, [0, 1, 2, 3, 4], X15, W15, half=lambda nt: nt >> 2, nextnt=5, maxS=1); at_barrier()
        it, d = half_dma(14, 1, S_Q, S_WR + 1, 0)
        c = sc.chain(it, 1)
        sc.g[63].append(("S", lambda: bar([W15 + (1,)])))
        self.place_dma(sc, d, 65, 4)
        sc.chain(self.xa_items(S_X + 1, S_X + 2, nx), 18)
        self.wa_sched(sc, S_WR, S_WR + 1, 20, 16 + 64 + 8)
        self.seg_emit(sc, 96, stamp_at=24)
        sc = self.seg_open("D14", [], None, 5, [2, 3, 4, 5, 6], X14, W14, half=lambda nt: 1 - (nt >> 2), nextnt=7, maxS=1, barrier=False)
        it, d = half_dma(13, 1, S_Q + 2, S_WR, 1)
        c = sc.chain(it, 1)
        def b3():
            self.area_next = {1, 3}; bar([W14 + (1,)])
        sc.g[31].append(("S", b3))
        self.place_dma(sc, d, 33, 4)
        sc.chain(self.xa_items(S_X, S_X + 1, nx), 18)
        self.wa_sched(sc, S_WR + 1, S_WR, 10, 24)
        self.wa_sched(sc, S_WR, S_WR + 1, 50, 16 + 64 + 8)
        self.seg_emit(sc, 192, stamp_at=26)
        sc = self.seg_open("B13", [W13 + (1,)], None, 7, [4, 5, 6], X13, W13, half=1, nextnt=7, maxS=1); at_barrier()
        def b4():
            self.area_next = {2}; bar()
        sc.g[31].append(("S", b4))
        sc.chain(self.xa_items(S_X + 2, S_X, nx), 18)
        self.wa_sched(sc, S_WR + 1, S_WR, 20, 16 + 32 + 8)
        self.seg_emit(sc, 288, stamp_at=24)
        sc = self.seg_open("E15", [], None, 7, [6], X15, W15, half=1, nextnt=7, maxS=1, barrier=False)
        self.seg_emit(sc, 352, stamp_at=24)
        sc = self.seg_open("FIN", [], None, 7, [], None, None, barrier=False, maxS=1)
        self.seg_emit(sc, 384, stamp_at=8)
        for k, fn, pos in self.stream:
            if k == "U": self.mfma(fn)
            else: fn()
        self.stream = []
        while self.stream2 and self.stream2[0][0] in "DSR" and not (self.stream2[0][0] == "S" and self.stream2[1][0] == "A"):
            self.stream2.pop(0)[1]()
        self.stream2 = []
        e("s_nop 7")
        todo = []
        dreg = lambda x: XF(x % 8, (x // 8) & 1)
        def publish():
            bar(every=True)
            for x in sorted(self.visible):
                if x not in self.rd_at:
                    if x // 8 != self.ra:
                        for k, fn in switch(VR, x // 8, "ra"): fn()
                    rdback(x, "a", dreg(x), 0); rdback(x, "a", dreg(x), 1); self.rd_at[x] = 0; todo.append(x)
        def drain(n):
            for _ in range(n):
                if todo:
                    x = todo.pop(0); self.wait(ltags=[("C", x)]); store(x, ar(dreg(x), 4))
        assert nf <= 24
        B7 = [V_WC[0], V_XC[0], V_WC[1], V_XC[1]]
        e(f"v_lshlrev_b32 v{B7[0]}, 16, v{B7[1]}"); e(f"v_and_b32 v{B7[1]}, s{S_MASK}, v{B7[1]}")
        e(f"v_lshlrev_b32 v{B7[2]}, 16, v{B7[3]}"); e(f"v_and_b32 v{B7[3]}, s{S_MASK}, v{B7[3]}")
        if o.fmode == 0 and self.written - set(self.rd_at): publish()
        for f in range(nf, 32):
            p, mt = f // 8, f % 8
            tb = tbf(f)
            if mt == 0:
                for k, fn in switch(VW, p, "wa_"): fn()
            for h in (1, 0):
                pf, r = ACC(mt, 2 * p + h)
                if pf == "a":
                    for i in range(4): e(f"v_accvgpr_read_b32 v{AT+i}, a{r+i}")
                    if h == 1:
                        for i in range(4): e(f"v_add_f32 v{AT+i}, v{AT+i}, v{B7[i]}")
                    r = AT
                for d2 in range(2): e(f"v_pk_mul_f32 {vr(tb+4*h+2*d2,2)}, {vr(tb+4*h+2*d2,2)}, {vr(r+2*d2,2)}")
            for d2 in range(4): e(f"v_cvt_pk_bf16_f32 v{tb+d2}, v{tb+2*d2}, v{tb+2*d2+1}")
            if o.fmode == 1:
                n0 = len(todo)
                if str(f - 24) in o.fpub and self.written - set(self.rd_at): publish()
                drain(min(n0, o.fdrain))
            if f + 2 < 32: self.mfma(U(f + 2, 1)[1])
            wr(f)
            if f + 2 < 32: self.mfma(U(f + 2, 0)[1])
            if o.fmode == 0:
                drain(o.fdrain)
                if (f - nf) % o.fgrp == o.fgrp - 1 or f == 31: publish()
        if o.fmode == 1:
            drain(32); publish()
        drain(32)
        assert self.stored == set(range(32))
        e(f"s_or_b32 s{S_TA}, s{S_J}, s{S_WAVE}"); e(f"s_cmp_lg_u32 s{S_TA}, 0"); e("s_cbranch_scc1 L_fin")
        e(f"s_add_u32 s{S_TA}, s{S_EP}, 16"); e(f"v_mov_b32 v{V_FLAG}, s{S_TA}")
        e(f"buffer_store_dword v{V_FLAG}, off, {sr(S_WS,4)}, s{S_EPOFF} sc1")
        self.label("L_fin")
        if o.diag:
            e(f"s_memtime s[{S_ST}:{S_ST+1}]"); e("s_waitcnt vmcnt(0)"); e(f"s_memtime s[{S_ST+2}:{S_ST+3}]")
            e(f"s_memrealtime s[{S_RT+2}:{S_RT+3}]"); e("s_waitcnt lgkmcnt(0)")
            e(f"v_writelane_b32 v{V_ST[0]}, s{S_ST}, 62"); e(f"v_writelane_b32 v{V_ST[1]}, s{S_ST+2}, 62")
            e(f"v_writelane_b32 v{V_ST[0]}, s{S_RT}, 61"); e(f"v_writelane_b32 v{V_ST[1]}, s{S_RT+2}, 61")
            e(f"s_lshl_b32 s{S_TA}, s2, 2"); e(f"s_add_u32 s{S_TA}, s{S_TA}, s{S_WAVE}"); e(f"s_lshl_b32 s{S_TA}, s{S_TA}, 9")
            e(f"s_add_u32 s{S_TA}, s{S_TA}, {hex(ST_OFF)}"); e("v_lshrrev_b32 v0, 2, v0")
            e(f"buffer_store_dword v{V_ST[0]}, v0, {sr(S_WS,4)}, s{S_TA} offen")
            e(f"buffer_store_dword v{V_ST[1]}, v0, {sr(S_WS,4)}, s{S_TA} offen offset:256")
            if o.echo:
                a, b = o.echo.split(",")
                if a == "pad":
                    e(f"s_add_u32 s{S_TB}, s{S_RT}, {b}")
                else:
                    reg = V_ST[0] if o.echoc else V_ST[1]
                    if a == "s": e(f"s_mov_b32 s{S_TA}, s{S_D0 if o.echoc else S_RT}")
                    else: e(f"v_readlane_b32 s{S_TA}, v{reg}, {a}")
                    if b == "e": e(f"s_mov_b32 s{S_TB}, s{S_ST+2 if o.echoc else S_RT+2}")
                    else: e(f"v_readlane_b32 s{S_TB}, v{reg}, {b}")
                    e("s_nop 4")
                    e(f"s_sub_u32 s{S_TB}, s{S_TB}, s{S_TA}")
                    if o.echoc: e(f"s_sub_u32 s{S_TB}, s{S_TB}, {o.echob}"); e(f"s_lshr_b32 s{S_TB}, s{S_TB}, {o.echos}")
                    e(f"s_min_u32 s{S_TB}, s{S_TB}, 20000")
                    e(f"s_add_u32 s{S_TB}, s{S_TB}, s{S_RT+2}")
                self.label("L_echo")
                e(f"s_memrealtime s[{S_ST}:{S_ST+1}]"); e("s_waitcnt lgkmcnt(0)")
                e(f"s_sub_u32 s{S_ST}, s{S_ST}, s{S_TB}"); e(f"s_cmp_lt_i32 s{S_ST}, 0"); e("s_cbranch_scc1 L_echo")
        e("s_endpgm")

    def sizes(self, lines):
        import subprocess, tempfile, os
        labels = set()
        for l in lines:
            m = re.search(r"(?:branch\w*|L_\w+-)\s*(\w+)", l)
        src = '.amdgcn_target "amdgcn-amd-amdhsa--gfx950"\n.text\n'
        body = []
        for l in lines:
            if l.endswith(":"): continue
            if "branch" in l: l = "s_nop 0"
            l = re.sub(r"L_\w+-L_pc(-4)?", "0x12345", l)
            body.append(l)
        with tempfile.TemporaryDirectory() as d:
            open(d + "/a.s", "w").write(src + "\n".join(body) + "\n")
            subprocess.run(["clang", "-x", "assembler", "-target", "amdgcn-amd-amdhsa", "-mcpu=gfx950", "-c", d + "/a.s", "-o", d + "/a.o"], check=True)
            dis = subprocess.run(["llvm-objdump", "-d", "--mcpu=gfx950", d + "/a.o"], capture_output=True, text=True).stdout
        sz = [4 * len(l.split(": ")[-1].split()) for l in dis.splitlines() if "//" in l]
        assert len(sz) == len(body), (len(sz), len(body))
        out = []; k = 0
        for l in lines:
            if l.endswith(":"): out.append(0)
            else: out.append(sz[k]); k += 1
        return out
    def add_hops(self, o, caps):
        sz = self.sizes(o)
        wt = []; w = 1
        for l in o:
            if l == "L_G0:": w = 13
            if l == "L_T14:": w = 2
            if l == "L_G1:": w = 19
            if l == "L_TAIL:": w = 1
            wt.append(w)
        def layout(X):
            out = ["@HOP"]; pos = X + 4; nextpage = 4096; cost = 0
            i = 0
            while i < len(o):
                if pos >= nextpage:
                    best = None; p = pos; j = i
                    while j < len(o) and p < nextpage + 56:
                        if j > 0 and o[j - 1].startswith("v_mfma"):
                            n = 0
                            while j + n < len(o) and not o[j + n].startswith("v_mfma"): n += 1
                            if best is None or n < best[0]: best = (n, j)
                        p += sz[j]; j += 1
                    tgt = best[1] if best else i
                    cost += wt[tgt] * (self.opt.hopw + 10 * min(best[0] if best else 1, 1))
                    while i < tgt:
                        out.append(o[i]); pos += sz[i]; i += 1
                    out.append("@HOP"); pos += 4
                    nextpage += 4096
                    continue
                if o[i] in ("L_G0:", "L_G1:") and self.opt.algn >= 0:
                    need = ((self.opt.algn - pos) % 64) // 4
                    k = len(out)
                    if out[-1].startswith("s_branch"):
                        out += ["s_nop 0"] * need; pos += 4 * need; need = 0
                    while need > 0:
                        while not (out[k - 1].startswith("v_mfma") and (k == len(out) or out[k].startswith("v_mfma"))):
                            k -= 1
                            if out[k] == "@HOP": cost += 1000
                        m = min(need, 3)
                        out[k:k] = ["s_nop 0"] * m; pos += 4 * m; need -= m; k -= 1
                out.append(o[i]); pos += sz[i]; i += 1
            return cost + 30 * out.count("@HOP"), X, out
        cost, self.skip, out = min((layout(X) for X in (range(0, 4096, 64) if self.opt.skip < 0 else [self.opt.skip])), key=lambda r: r[:2])
        self.hopcost = cost
        for b in caps:
            for l in b:
                out.append(l)
                if l.endswith(":") and l.startswith("CAP"): out.append("@HOP")
        n = out.count("@HOP"); k = 0; res = []
        for l in out:
            if l == "@HOP":
                res.append(f"HOP{k}:"); res.append(f"s_cbranch_execz " + (f"HOP{k+4}" if k + 4 < n else "HOPEND")); k += 1
            else: res.append(l)
        self.nhops = n
        return res

    def build(self):
        self.stored = set()
        self.prologue()
        main = self.out
        texts = {}
        def gen(kind, layer, t):
            self.out = []
            self.body(kind, layer, t)
            if kind in texts and texts[kind] != self.out:
                for a, b in zip(texts[kind], self.out):
                    if a != b: print("DIFF", kind, layer, t, a, "|", b); break
                raise RuntimeError(f"body {kind} differs at layer {layer} t {t}")
            texts[kind] = self.out
        for layer in range(3):
            for t in range(16 if layer < 2 else 13):
                if layer == 0: kind = "E0" if t == 0 else ("G0" if t < 14 else f"T{t}")
                else: kind = "H0" if t == 0 else (f"S{t}" if t < 4 else ("G1" if t < 14 else f"T{t}"))
                gen(kind, layer, t)
        self.out = []; self.tail(); texts["TAIL"] = self.out
        if self.opt.x:
            x = self.opt.x; g = []
            for l in texts["G1"]:
                if "d" in x and l.startswith("buffer_load_dwordx4"): l = "s_mov_b32 s70, 0x12345"
                if "p" in x and l.startswith("s_cbranch_scc1 SLOW"): l = "s_nop 0"
                if "p" in x and l.startswith("buffer_load_dword "): l = "s_mov_b32 s70, 0x12345"
                if "f" in x and l.startswith("buffer_store_dword "): l = "s_mov_b32 s70, 0x12345"
                if "b" in x and l == "s_barrier": l = "s_nop 0"
                if "l" in x and l.startswith("ds_read"): l = "s_mov_b32 s70, 0x12345"
                g.append(l)
            texts["G1"] = g
            if "p" in x: texts["TAIL"] = ["s_nop 0" if l.startswith("s_cbranch_scc1 SLOW") else l for l in texts["TAIL"]]
        o = texts["E0"][:]
        o += self.entry.get("G0", [])
        o += ["L_G0:"] + texts["G0"] + ["s_cbranch_scc1 L_G0"]
        o += ["L_T14:"] + texts["T14"] + texts["T15"] + texts["H0"] + texts["S1"] + texts["S2"] + texts["S3"]
        o += self.entry.get("G1", [])
        o += ["L_G1:"] + texts["G1"] + ["s_cbranch_scc1 L_G1"]
        o += [f"s_cmp_eq_u32 s{S_LAYER}, 1", "s_cbranch_scc1 L_T14"]
        o += ["L_TAIL:"] + texts["TAIL"]
        caps = [b for k, b in self.ool.items() if k.startswith("CAP")]
        slow = [b for k, b in self.ool.items() if not k.startswith("CAP")]
        if self.opt.hops:
            o = self.add_hops(o, caps)
            o = main + ["s_branch L_main"] + sum(slow, []) + [".p2align 12"] + ([f".fill {self.skip//4}, 4, 0xbf800000"] if self.skip else []) + ["L_main:"] + o
        else:
            o = main + o + sum(caps, []) + sum(slow, [])
        self.texts = texts
        hdr = open("standalone__dcn_v2_cross__recsys.s.ref").read().split("\n")
        top = [l for l in hdr if l.startswith(";") and "@launch" not in l]
        if self.opt.diag: top.append("; STAMPS " + ("RT " if self.opt.diagrt else "CY ") + " ".join(self.stamps))
        txt = "\n".join(top) + f"\n; @launch grid=(256,1,1) block=(256,1,1) lds={SLOT*5}\n"
        txt += f""".amdgcn_target "amdgcn-amd-amdhsa--gfx950"
.text
.globl {NAME}
.p2align 8
.type {NAME},@function
{NAME}:
"""
        txt += "\n".join(o) + "\nL_codeend:\n"
        txt += f""".section .rodata,"a"
.p2align 6
.amdhsa_kernel {NAME}
  .amdhsa_next_free_vgpr 512
  .amdhsa_next_free_sgpr 102
  .amdhsa_accum_offset 256
  .amdhsa_group_segment_fixed_size 0
  .amdhsa_kernarg_size 48
  .amdhsa_user_sgpr_count 2
  .amdhsa_user_sgpr_kernarg_segment_ptr 1
  .amdhsa_system_sgpr_workgroup_id_x 1
  .amdhsa_float_denorm_mode_32 3
.end_amdhsa_kernel
"""
        return txt

if __name__ == "__main__":
    ap = argparse.ArgumentParser()
    ap.add_argument("-o", default="k3.s")
    ap.add_argument("--diag", action="store_true")
    ap.add_argument("--diagrt", action="store_true")
    ap.add_argument("--diagc", action="store_true")
    ap.add_argument("--pace", type=float, default=7)
    ap.add_argument("--pacex", type=float, default=7.5)
    ap.add_argument("--paceh", type=float, default=8)
    ap.add_argument("--pacet", type=float, default=3.3)
    ap.add_argument("--xr15", type=float, default=0.15)
    ap.add_argument("--xr0", type=float, default=-1)
    ap.add_argument("--xrt", type=float, default=0.0)
    ap.add_argument("--flag0", type=int, default=0)
    ap.add_argument("--early", type=int, default=10)
    ap.add_argument("--direct", default="8264")
    ap.add_argument("--cpos", default="002")
    ap.add_argument("--asc", type=int, default=1)
    ap.add_argument("--xtouch", type=int, default=0)
    ap.add_argument("--tpf", type=int, default=0)
    ap.add_argument("--hops", type=int, default=1)
    ap.add_argument("--echos", type=int, default=4)
    ap.add_argument("--echob", type=int, default=0)
    ap.add_argument("--skip", type=int, default=-1)
    ap.add_argument("--hopw", type=int, default=10)
    ap.add_argument("--fmode", type=int, default=0)
    ap.add_argument("--fpub", default="01234567")
    ap.add_argument("--xbpos", type=int, default=12)
    ap.add_argument("--snake", type=int, default=1)
    ap.add_argument("--wpos", type=int, default=1)
    ap.add_argument("--diag2", action="store_true")
    ap.add_argument("--pace0", type=float, default=7)
    ap.add_argument("--pacex0", type=float, default=7.5)
    ap.add_argument("--xrot", type=int, default=0)
    ap.add_argument("--b0pre", type=int, default=4)
    ap.add_argument("--xsp", type=float, default=1.2)
    ap.add_argument("--xso", type=float, default=3.0)
    ap.add_argument("--gw", type=int, default=14)
    ap.add_argument("--xkeep", type=lambda x: [int(y) for y in x.split(",")], default=[])
    ap.add_argument("--entry", type=int, default=1)
    ap.add_argument("--finit", type=int, default=1)
    ap.add_argument("--stx", type=int, default=0)
    ap.add_argument("--stpos", type=int, default=0)
    ap.add_argument("--fdrop", type=int, default=1)
    ap.add_argument("--pollpos", type=int, default=0)
    ap.add_argument("--wpf", type=int, default=0)
    ap.add_argument("--wpd", type=int, default=2)
    ap.add_argument("--algn", type=int, default=16)
    ap.add_argument("--tsplit", type=int, default=0)
    ap.add_argument("--touch", type=int, default=2)
    ap.add_argument("--prex", type=int, default=0)
    ap.add_argument("--zdist", type=int, default=5)
    ap.add_argument("--rdist", type=int, default=8)
    ap.add_argument("--wl2", type=int, default=0)
    ap.add_argument("--echo", default="")
    ap.add_argument("--echoc", type=int, default=0)
    ap.add_argument("--x0f", default="nt")
    ap.add_argument("--e1out", type=int, default=1)
    ap.add_argument("--wwarm", type=int, default=1)
    ap.add_argument("--w0warm", type=int, default=0)
    ap.add_argument("-x", default="")
    ap.add_argument("--wr128", type=int, default=0)
    ap.add_argument("--nft", type=int, default=24)
    ap.add_argument("--sp", type=float, default=10)
    ap.add_argument("--spo", type=float, default=22)
    ap.add_argument("--sp2", type=float, default=9)
    ap.add_argument("--spo2", type=float, default=16)
    ap.add_argument("--xrb", type=float, default=0.0)
    ap.add_argument("--fdrain", type=int, default=1)
    ap.add_argument("--fgrp", type=int, default=3)
    ap.add_argument("--outf", default="sc1")
    opt = ap.parse_args()
    if opt.diagrt: opt.diag = True
    SNAKE = bool(opt.snake)
    if opt.xr0 < 0:
        opt.xr0 = 0.0
        while True:
            try:
                g = G(opt); txt = g.build(); break
            except AssertionError as ex:
                if not (ex.args and (ex.args[0] == "stream left" or ex.args[0][0] == "deadline")): raise
                opt.xr0 += 0.01
                if opt.xr0 > 1: raise
    else:
        g = G(opt); txt = g.build()
    open(opt.o, "w").write(txt)
    print(f"xr0 {opt.xr0:.2f} skip {getattr(g,'skip',0)} hopcost {getattr(g,'hopcost',0)} nhops {getattr(g,'nhops',0)} fallback waits:", g.warn, {k: len(v) for k, v in g.texts.items()})
```

```python
import sys, re, argparse

NAME = "standalone__dcn_v2_cross__recsys_kernel"
SLOT = 32768
FL_OFF = 64 << 20
EP_OFF = FL_OFF + 65536
ST_OFF = 80 << 20

def vr(b, n=1, p="v"):
    return f"{p}{b}" if n == 1 else f"{p}[{b}:{b+n-1}]"
def ar(b, n=1): return vr(b, n, "a")
def sr(b, n=1): return vr(b, n, "s")

def XF(mt, s): return (mt * 2 + s) * 4
def WF(buf, s): return 64 + buf * 8 + s * 4
def X0(p, mt): return 80 + (p * 8 + mt) * 4
def SEL(h): return 208 + 4 * h
ACC_A0 = 216
ACC_V0 = 40
_acc = {}
def _init_acc():
    va, aa = ACC_V0, ACC_A0
    for nt in range(8):
        for mt in range(8):
            if nt == 7 or (nt == 6 and mt < 2):
                _acc[(mt, nt)] = ("a", aa); aa += 4
            else:
                _acc[(mt, nt)] = ("v", va); va += 4
    assert va == 256 and aa == 256
_init_acc()
def ACC(mt, nt): return _acc[(mt, nt)]

V_L16 = 0; V_XA = [1, 2]; V_WA = [3, 4]; V_WC = [5, 6]; V_XC = [7, 8]; V_CPG = 15; V_CPL = 9
V_POLL = 10; V_FLAG = 11; V_B = 12; V_ST = [13, 14]; V_T = 16; V_XT = 30; V_CAP = 36; V_WT = 37; V_BR = 38
S_DW = 4; S_TR = 5; S_E0 = 6; S_KEY = 7
S_W = 8; S_X0 = 12; S_WS = 16; S_OUT = 20; S_B = 24
S_WT = 28; S_XT = 32
S_X = 36
S_WR = 39
S_Q = 41
S_WCUR = 44; S_WL = 45; S_XB = 46; S_FB = 47; S_FOWN = 48; S_EP = 49; S_NEED = 50; S_FV = 51; S_WLM = 52
S_PA = 53; S_J = 54; S_WAVE = 55; S_RB = 56; S_LOOP = 57; S_LAYER = 58; S_ADJ = 59; S_OADJ = 60; S_WC64 = 61
S_M4 = 62; S_MASK = 65; S_EPOFF = 66; S_CNT = 67; S_CAPJ = 68; S_BOFF = 69
S_TA = 70; S_TB = 71; S_TC = 72; S_TD = 73; S_TE = 74; S_TF = 75; S_O2 = 76; S_O3 = 77; S_WR14 = 78; S_DX = 79
S_PC = 80; S_ST = 82; S_RT = 86; S_SI = 90; S_LEND = 91; S_D0 = 92
S_FQ = 96
S_TG = 99; S_TH = 100; S_M7 = 101; S_XCUR = 3; S_XTO = 28

RANK = {"S": 0, "G": 1, "D": 2, "V": 3}

class Sched:
    def __init__(self, n, maxS=3):
        self.n = n
        self.g = [[] for _ in range(n)]
        self.closedS = set()
        self.maxS = maxS
    def fits(self, g, kind):
        kinds = [k for k, _ in self.g[g]]
        if kind == "G": return len(kinds) == 0
        if "G" in kinds: return False
        nvec = sum(k in "DV" for k in kinds)
        if kind == "S":
            if g in self.closedS or kinds.count("S") >= self.maxS: return False
            return len(kinds) < 3
        return nvec < 2 and len(kinds) < 3
    def put(self, g, kind, fn): self.g[g].append((kind, fn))
    def place(self, kind, fn, lo, hi=None):
        hi = self.n - 1 if hi is None else hi
        for g in range(lo, hi + 1):
            if self.fits(g, kind):
                self.put(g, kind, fn); return g
        raise RuntimeError(f"cannot place {kind} in [{lo},{hi}]")
    def chain(self, items, lo, hi=None):
        out = []; g = lo; pk = None
        for kind, fn in items:
            if pk is not None and (RANK[kind] < RANK[pk] or kind == "G" or pk == "G"): g += 1
            g = self.place(kind, fn, g, hi)
            out.append(g); pk = kind
        return out
    def branch(self, cmpfn, brfn, lo):
        for g in range(lo, self.n - 1):
            if self.fits(g, "S") and self.fits(g + 1, "G"):
                self.put(g, "S", cmpfn); self.closedS.add(g); self.put(g + 1, "G", brfn); return g + 1
        raise RuntimeError("branch")
    def last_su(self):
        last = 0
        for g in range(self.n):
            if any(getattr(f, "su", False) for _, f in self.g[g]): last = g
        return last + 1

def mt_off(mt):
    if mt == 0: return "0", 0
    if mt < 4: return f"s{S_XT+mt}", (mt & 1) * 2048
    return f"s{[S_M4, S_M4+1, S_M4+2, S_M7][mt-4]}", 0

SNAKE = True
def blk(nt, cinit=False):
    r = []
    for mt in range(8):
        ss = (0, 1) if (mt % 2 == 0 and SNAKE) else (1, 0)
        r += [(mt, nt, ss[0], cinit), (mt, nt, ss[1], False)]
    return r

class G:
    def __init__(self, opt):
        self.opt = opt
        self.out = []
        self.vq = []; self.lq = []
        self.ool = {}
        self.slot = {}
        self.lds_own = {}
        self.xa = None; self.wa = None
        self.warn = 0
        self.stamps = []
        self.stream = []; self.stream2 = []; self.entry = {}
        self.pending = None
    def e(self, s): self.out.append(s)
    def E(self, s): return lambda: self.e(s)
    def S(self, s): return ("S", self.E(s))
    def V(self, s): return ("V", self.E(s))
    def SU(self, s, then=None):
        def f():
            self.e(s)
            if then: then()
        f.su = True
        return ("S", f)
    def label(self, n): self.out.append(n + ":")
    def vm(self, s, tag=None):
        self.e(s); self.vq.append(tag); assert len(self.vq) <= 62
    def VM(self, s, tag=None): return ("G", lambda: self.vm(s, tag))
    def lds(self, s, tag=None):
        self.e(s); self.lq.append(tag)
    def _need(self, q, tags, mx, force=None):
        idx = -1
        for i, t in enumerate(q):
            if t in tags: idx = i
        if idx < 0 and force is None: return None
        n = len(q) - 1 - idx
        if force is not None:
            assert n >= force or idx < 0, (n, force, q)
            n = force
        n = min(n, mx)
        if len(q) > n: del q[:len(q) - n]
        return n
    def wait(self, vtags=(), ltags=(), lall=False, vforce=None):
        parts = []
        n = self._need(self.vq, set(vtags), 62, vforce)
        if n is not None: parts.append(f"vmcnt({n})")
        if lall:
            parts.append("lgkmcnt(0)"); self.lq = []
        else:
            n = self._need(self.lq, set(ltags), 14)
            if n is not None: parts.append(f"lgkmcnt({n})")
        if parts: self.e("s_waitcnt " + " ".join(parts))
    def smov(self, d, s):
        def f():
            self.e(f"s_mov_b32 s{d}, s{s}"); self.slot[d] = self.slot[s]
        return ("S", f)

    def mfma(self, m):
        if m[0] == "U":
            _, p, mt, h, tb = m
            self.e(f"v_mfma_f32_16x16x32_bf16 {vr(tb+4*h,4)}, {ar(SEL(h),4)}, {ar(X0(p,mt),4)}, 0")
            return
        mt, nt, s, cinit = m
        buf = nt & 1
        tags = {("XF", mt, s), ("WF", buf, s, 0), ("WF", buf, s, 1)}
        if tags & set(self.lq):
            self.warn += 1
            self.wait(ltags=tags)
        p, r = ACC(mt, nt)
        c = vr(r, 4, p)
        if cinit and p == "v" and mt != 7: c = vr(ACC(7, nt)[1], 4)
        self.e(f"v_mfma_f32_16x16x32_bf16 {vr(r,4,p)}, {ar(WF(buf,s),4)}, {ar(XF(mt,s),4)}, {c}")
    def rd_xf(self, mt, s, want):
        def f():
            assert self.lds_own[self.xa] == want, (self.lds_own[self.xa], want)
            self.lds(f"ds_read_b128 {ar(XF(mt,s),4)}, v{V_XA[s]} offset:{mt*2048}", ("XF", mt, s))
        return f
    def rd_wf(self, nt, s, u, want, half=None):
        p, h = nt >> 1, nt & 1
        if callable(half): half = half(nt)
        off = (p >> 1 if half is None else half) * 16384 + (p & 1) * 512 + s * 8192 + u * 4096
        def f():
            if half is None: assert self.lds_own[self.wa[h]] == want, (self.lds_own[self.wa[h]], want)
            else:
                assert self.lds_half[(self.wa[h], half)] == want + (p >> 1,), (self.lds_half, self.wa[h], half, want, nt)
                assert want + (p >> 1,) in self.landed
            self.lds(f"ds_read_b64_tr_b16 {ar(WF(h,s)+2*u,2)}, v{V_WA[h]} offset:{off}", ("WF", h, s, u))
        return f
    def dma_items(self, what, sdst, form):
        items = []
        if form == "X0" and self.opt.xrot:
            RM = [S_O2, S_O3, S_Q + 1, S_Q + 2]; RS = [S_WLM, S_KEY, S_TG, S_TH]
            for k in range(4):
                items.append(self.SU(f"s_add_u32 m0, s{sdst}, s{RM[k]}", lambda: self.lds_own.__setitem__(self.slot[sdst], what)))
                for i in range(2):
                    items.append(self.VM(f"buffer_load_dwordx4 v{V_XC[i]}, {sr(S_X0,4)}, s{RS[k]} offen" + (" offset:1024" if i else "") + f" {self.opt.x0f} lds", what))
            return items
        for i in range(8):
            if i == 0: items.append(self.SU(f"s_mov_b32 m0, s{sdst}", lambda: self.lds_own.__setitem__(self.slot[sdst], what)))
            if i == 4:
                def chk(): assert self.lds_own[self.slot[sdst]] == what
                items.append(self.SU(f"s_add_u32 m0, s{sdst}, 0x1000", chk))
            off = f" offset:{(i&3)*1024}" if i & 3 else ""
            if form == "W":
                so = "0" if i < 2 else f"s{S_WT+(i>>1)}"
                s = f"buffer_load_dwordx4 v{V_WC[i&1]}, {sr(S_W,4)}, {so} offen{off} lds"
            elif form == "X0":
                so = "0" if i < 2 else f"s{S_XT+(i>>1)}"
                s = f"buffer_load_dwordx4 v{V_XC[i&1]}, {sr(S_X0,4)}, {so} offen{off} {self.opt.x0f} lds"
            else:
                so = "0" if i < 2 else f"s{S_XT+(i>>1)}"
                s = f"buffer_load_dwordx4 v{V_XC[i&1]}, {sr(S_X0,4)}, {so} offen{off} sc1 lds"
            items.append(self.VM(s, what))
        return items
    def place_dma(self, sc, items, lo, pace):
        g = lo; prev = -1; pend = None
        for kind, fn in items:
            if kind == "S": pend = fn; continue
            g0 = max(int(g), prev + 1)
            if pend is not None:
                gs = sc.place("S", pend, max(prev + 1, g0 - 2, 0)); g0 = max(g0, gs + 1); pend = None
            prev = sc.place("G", fn, g0)
            g += pace
        return prev
    def w_setup(self, tidreg, base):
        return [self.S(f"s_lshl_b32 s{S_TA}, s{tidreg}, 17"), self.S(f"s_add_u32 s{S_TA}, s{S_TA}, s{base}"),
                self.S(f"s_sub_u32 s{S_TB}, s{S_TA}, s{S_WCUR}"), self.S(f"s_mov_b32 s{S_WCUR}, s{S_TA}"),
                self.V(f"v_add_u32 v{V_WC[0]}, s{S_TB}, v{V_WC[0]}"), self.V(f"v_add_u32 v{V_WC[1]}, s{S_TB}, v{V_WC[1]}")]
    def x_setup(self, tidreg):
        return [self.S(f"s_lshl_b32 s{S_TE}, s{tidreg}, 7"), self.S(f"s_sub_u32 s{S_DX}, s{S_TE}, s{S_XCUR}"), self.S(f"s_mov_b32 s{S_XCUR}, s{S_TE}"),
                self.V(f"v_add_u32 v{V_XC[0]}, s{S_DX}, v{V_XC[0]}"), self.V(f"v_add_u32 v{V_XC[1]}, s{S_DX}, v{V_XC[1]}")]
    def flag_items(self):
        return [self.V(f"v_mov_b32 v{V_FLAG}, s{S_FV}"),
                self.VM(f"buffer_store_dword v{V_FLAG}, off, {sr(S_WS,4)}, s{S_FOWN} sc1", "F"),
                self.S(f"s_add_u32 s{S_FV}, s{S_FV}, 1")]
    def poll_check(self, sc, name, tag, lo):
        sl, bk = f"SLOW_{name}", f"BACK_{name}"
        def f0():
            assert tag not in self.vq
            self.e(f"v_readfirstlane_b32 s{S_TC}, v{V_POLL}")
        c = sc.chain([self.S(f"s_and_b32 s{S_TD}, s{S_Q+1}, 3"), self.S(f"s_add_u32 s{S_TD}, s{S_TD}, s{S_NEED}"),
                      ("V", f0), self.S(f"s_sub_u32 s{S_TC}, s{S_TC}, s{S_TD}")], lo)
        def br():
            self.e(f"s_cbranch_scc1 {sl}"); self.label(bk)
        gbr = sc.branch(self.E(f"s_cmp_gt_u32 s{S_TC}, 7"), br, c[-1])
        self.ool[sl] = [f"{sl}:",
                        f"buffer_load_dword v{V_POLL}, off, {sr(S_WS,4)}, s{S_PA} sc1", "s_waitcnt vmcnt(0)",
                        f"v_readfirstlane_b32 s{S_TC}, v{V_POLL}", f"s_cmp_eq_u32 s{S_CNT}, 0", f"s_cbranch_scc1 {bk}",
                        f"s_sub_u32 s{S_CNT}, s{S_CNT}, 1",
                        f"s_sub_u32 s{S_TC}, s{S_TC}, s{S_TD}", f"s_cmp_gt_u32 s{S_TC}, 7", f"s_cbranch_scc0 {bk}",
                        "s_sleep 1", f"s_branch {sl}"]
        return gbr
    def stamp(self, which):
        if self.opt.diagrt:
            if which == 1:
                self.e(f"s_memtime s[{S_ST}:{S_ST+1}]"); self.e(f"s_memrealtime s[{S_ST+2}:{S_ST+3}]")
            return
        self.e(f"s_memtime s[{S_ST+2*which}:{S_ST+2*which+1}]")
    def stamp_items(self):
        def f():
            self.e(f"s_lshl_b64 exec, 1, s{S_SI}"); self.e(f"v_mov_b32 v{V_ST[0]}, s{S_ST}"); self.e(f"v_mov_b32 v{V_ST[1]}, s{S_ST+2}")
            self.e("s_mov_b64 exec, -1"); self.e(f"s_add_u32 s{S_SI}, s{S_SI}, 1")
        return [("G", f)]
    def epi_valu(self, p, mt, tb, at, ob):
        ops = []
        for h in range(2):
            pf, r = ACC(mt, 2 * p + h)
            if pf == "a":
                for i in range(4): ops.append(f"v_accvgpr_read_b32 v{at+i}, a{r+i}")
                r = at
            for i in range(4): ops.append(f"v_mul_f32 v{tb+4*h+i}, v{tb+4*h+i}, v{r+i}")
        for d in range(4): ops.append(f"v_cvt_pk_bf16_f32 v{ob+d}, v{tb+2*d}, v{tb+2*d+1}")
        return ops
    def bunpack(self, nt, d):
        dpp = f"row_newbcast:{nt} row_mask:0xf bank_mask:0xf"
        return [f"v_mov_b32_dpp v{d[1]}, v{V_BR} {dpp}", f"v_mov_b32_dpp v{d[3]}, v{V_BR+1} {dpp}",
                f"v_lshlrev_b32 v{d[0]}, 16, v{d[1]}", f"v_and_b32 v{d[1]}, s{S_MASK}, v{d[1]}",
                f"v_lshlrev_b32 v{d[2]}, 16, v{d[3]}", f"v_and_b32 v{d[3]}, s{S_MASK}, v{d[3]}"]
    def bias_sched(self, sc, nt, g, busy):
        a0 = V_T + 10
        f = [V_T + 16 + i for i in range(4)]
        g = sc.chain([self.V(x) for x in self.bunpack(nt, f)], g)[-1]
        ops = []
        for mt in range(8):
            pf, a = ACC(mt, nt)
            if pf == "v":
                ops += [f"v_add_f32 v{a+i}, v{a+i}, v{f[i]}" for i in range(4)]
            else:
                for i in (0, 2):
                    ops += [f"v_accvgpr_read_b32 v{a0}, a{a+i}", f"v_accvgpr_read_b32 v{a0+1}, a{a+i+1}",
                            f"v_add_f32 v{a0}, v{a0}, v{f[i]}", f"v_add_f32 v{a0+1}, v{a0+1}, v{f[i+1]}",
                            f"v_accvgpr_write_b32 a{a+i}, v{a0}", f"v_accvgpr_write_b32 a{a+i+1}, v{a0+1}"]
        b0, b1 = busy
        est = g + len(ops) // 2 + len(ops) // 3 + 4
        if est < b0 - 2: lo, hi = g, b0 - 2
        else: lo, hi = max(g, b1 + 6), sc.n - 1
        return sc.chain([self.V(x) for x in ops], lo, hi)[-1]
    def bias0_ops(self, nt):
        d = ACC(7, nt)[1]
        return self.bunpack(nt, [d, d + 1, d + 2, d + 3]) + [f"v_add_f32 v{d+i}, 1.0, v{d+i}" for i in range(4)]

    def prologue(self):
        e = self.e; o = self.opt
        e("s_cmp_lt_u32 s2, 256"); e("s_cbranch_scc1 L_go"); e("s_endpgm")
        self.label("L_go")
        for r, off in ((S_X0, 0), (S_W, 8), (S_B, 16), (S_OUT, 24), (S_WS, 40)):
            e(f"s_load_dwordx2 s[{r}:{r+1}], s[0:1], {off}")
        if o.diag:
            e(f"s_memrealtime s[{S_RT}:{S_RT+1}]"); e(f"s_memtime s[{S_D0}:{S_D0+1}]")
        nst = [0]
        def pst():
            if not o.diag2: return
            e(f"s_memtime s[{S_D0+2}:{S_D0+3}]"); e("s_waitcnt lgkmcnt(0)"); e(f"v_writelane_b32 v{V_ST[0]}, s{S_D0+2}, {52+nst[0]}"); nst[0] += 1
        T = 40
        lane, m, q, r4, c4, q1, tw, t0, t1, t2 = [f"v{T+i}" for i in range(10)]
        e(f"s_getpc_b64 s[{S_PC}:{S_PC+1}]")
        self.label("L_pc")
        e(f"v_lshrrev_b32 {t0}, 6, v0")
        e("s_lshr_b32 s3, s2, 3")
        e(f"v_readfirstlane_b32 s{S_WAVE}, {t0}")
        e("v_lshrrev_b32 v16, 4, v0")
        e("v_lshl_add_u32 v16, s3, 4, v16")
        e("v_lshlrev_b32 v16, 7, v16")
        e(f"v_min_u32 v31, L_codeend-L_pc-4, v16")
        self.vm(f"global_load_dword v{V_POLL}, v31, s[{S_PC}:{S_PC+1}]", "PF")
        e(f"s_and_b32 s{S_RB}, s2, 7"); e(f"s_lshr_b32 s{S_TC}, s2, 5"); e(f"s_lshl3_add_u32 s{S_RB}, s{S_RB}, s{S_TC}")
        e(f"v_bfe_u32 {t1}, v0, 3, 3"); e(f"v_and_b32 {t2}, 7, v0"); e(f"v_bfe_u32 {q}, v0, 4, 2")
        e(f"v_xor_b32 {t0}, {t2}, {q}"); e(f"v_lshlrev_b32 {t0}, 4, {t0}"); e(f"v_lshl_add_u32 {t0}, {t1}, 11, {t0}")
        e(f"s_lshl2_add_u32 s{S_PA}, s{S_RB}, s{S_WAVE}"); e(f"s_lshl_b32 s{S_PA}, s{S_PA}, 17")
        e(f"v_add_u32 v{V_XC[0]}, s{S_PA}, {t0}")
        e(f"v_xor_b32 v{V_XC[1]}, 64, v{V_XC[0]}"); e(f"v_add_u32 v{V_XC[1]}, {16384-1024}, v{V_XC[1]}")
        e(f"s_lshl_b32 s{S_X}, s{S_WAVE}, 13"); self.slot[S_X] = 0
        e(f"s_mov_b32 s{S_X0+2}, {16384*1024*2}"); e(f"s_mov_b32 s{S_X0+3}, 0x20000")
        e(f"s_and_b32 s{S_J}, s3, 3")
        for k in range(1, 4): e(f"s_mov_b32 s{S_XT+k}, {k*32768 - (k&1)*2048}")
        if o.xrot:
            for k, (rm, rs) in enumerate(zip([S_O2, S_O3, S_Q + 1, S_Q + 2], [S_WLM, S_KEY, S_TG, S_TH])):
                e(f"s_add_u32 s{rm}, s{S_J}, {k}"); e(f"s_and_b32 s{rm}, s{rm}, 3"); e(f"s_lshl_b32 s{rs}, s{rm}, 15"); e(f"s_lshl_b32 s{rm}, s{rm}, 11")
        e(f"v_bfe_u32 {r4}, v0, 2, 2")
        e(f"s_lshl_b32 s{S_CNT}, s{S_TC}, 15"); e(f"s_add_u32 s{S_CNT}, s{S_CNT}, s{S_X}")
        e(f"s_lshl_b32 s{S_BOFF}, s{S_J}, 9"); e(f"s_add_u32 s{S_CNT}, s{S_CNT}, s{S_BOFF}")
        e(f"v_lshlrev_b32 {tw}, 7, {r4}"); e(f"v_lshl_add_u32 {tw}, {q}, 11, {tw}")
        e(f"s_mov_b32 s{S_W+2}, {3*1024*1024*2}"); e(f"s_mov_b32 s{S_W+3}, 0x20000")
        xit = self.dma_items(("X", 0, 0), S_X, "X0")
        xit[0][1](); xit = xit[1:]
        if o.diag: e(f"v_mov_b32 v{V_ST[0]}, 0"); e(f"v_mov_b32 v{V_ST[1]}, 0")
        e("s_waitcnt lgkmcnt(0)")
        if o.diag: e(f"s_memtime s[{S_ST}:{S_ST+1}]")
        def run(items):
            for k, f in items:
                f()
                if k == "S": e("s_nop 0")
        def wtouch(): self.vm(f"buffer_load_dword v{V_POLL}, {tw}, {sr(S_W,4)}, s{S_CNT} offen", "PF")
        if o.touch == 1: wtouch()
        run(xit)
        if o.touch == 2: wtouch()
        e(f"s_mov_b32 s{S_B+2}, {3*1024*2}"); e(f"s_mov_b32 s{S_B+3}, 0x20000")
        self.vm(f"buffer_load_dword v{V_POLL}, {tw}, {sr(S_B,4)}, s{S_BOFF} offen", "PF")
        pst()
        e(f"s_lshl_b32 s{S_EPOFF}, s{S_RB}, 7"); e(f"s_add_u32 s{S_EPOFF}, s{S_EPOFF}, {hex(EP_OFF)}")
        if not o.diag2: e(f"s_load_dword s{S_EP}, s[{S_WS}:{S_WS+1}], s{S_EPOFF}")
        e(f"v_and_b32 {lane}, 63, v0"); e(f"v_and_b32 {m}, 15, v0"); e(f"v_and_b32 {c4}, 3, v0"); e(f"v_and_b32 {q1}, 1, {q}")
        for r, sl in ((S_X + 1, 2), (S_X + 2, 4), (S_WR, 1), (S_WR + 1, 3)):
            e(f"s_add_u32 s{r}, s{S_X}, {hex(sl*SLOT)}"); self.slot[r] = sl
        e(f"v_lshlrev_b32 v{V_L16}, 4, {lane}")
        e(f"s_lshr_b32 s{S_TA}, s{S_WAVE}, 1"); e(f"s_and_b32 s{S_TB}, s{S_WAVE}, 1")
        for k in range(1, 4): e(f"s_mov_b32 s{S_WT+k}, {(16*(k&1) + 4*(k>>1))*2048 - (k&1)*2048}")
        e(f"s_lshl_b32 s{S_WC64}, s{S_TB}, 6"); e(f"s_add_u32 s{S_PA}, s{S_BOFF}, s{S_WC64}")
        e(f"v_lshlrev_b32 {t0}, 3, {q}"); e(f"v_add_u32 v{V_B}, s{S_PA}, {t0}")
        e(f"v_bfe_u32 {t0}, {lane}, 1, 2"); e(f"v_lshl_add_u32 v{V_B}, {t0}, 7, v{V_B}"); e(f"v_and_b32 {t0}, 1, {lane}"); e(f"v_lshl_add_u32 v{V_B}, {t0}, 5, v{V_B}")
        e(f"s_lshl_b32 s{S_PA}, s{S_TA}, 8"); e(f"s_add_u32 s{S_PA}, s{S_PA}, s{S_BOFF}")
        e(f"s_lshl_b32 s{S_FV}, s{S_TB}, 16"); e(f"s_add_u32 s{S_PA}, s{S_PA}, s{S_FV}")
        e(f"v_lshlrev_b32 {t0}, 4, {c4}"); e(f"v_lshl_add_u32 {t0}, {q}, 6, {t0}"); e(f"v_lshl_add_u32 {t0}, {r4}, 11, {t0}")
        e(f"v_add_u32 v{V_WC[0]}, s{S_PA}, {t0}")
        e(f"v_xor_b32 v{V_WC[1]}, 32, v{V_WC[0]}"); e(f"v_add_u32 v{V_WC[1]}, {16384-1024}, v{V_WC[1]}")
        def w0():
            self.vm(f"buffer_load_dwordx2 {vr(V_BR,2)}, v{V_B}, {sr(S_B,4)}, 0 offen", ("B", 0))
            run(self.dma_items(("W", 0, 0), S_WR, "W"))
            pst()
        if o.wpos == 0: w0()
        e(f"s_mov_b32 s{S_OUT+2}, {16384*1024*2}"); e(f"s_mov_b32 s{S_OUT+3}, 0x20000")
        e(f"s_mov_b32 s{S_WS+2}, 0x10000000"); e(f"s_mov_b32 s{S_WS+3}, 0x20000")
        e(f"s_lshl_b32 s{S_FB}, s{S_RB}, 9"); e(f"s_add_u32 s{S_FB}, s{S_FB}, {hex(FL_OFF)}")
        e(f"v_lshrrev_b32 {t0}, 1, {m}"); e(f"v_xor_b32 {t0}, {q}, {t0}"); e(f"v_lshlrev_b32 {t0}, 4, {t0}"); e(f"v_lshl_add_u32 {t0}, {m}, 7, {t0}")
        e(f"s_lshl_b32 s{S_WR14}, s{S_TA}, 14")
        e(f"v_add_u32 v{V_XA[0]}, s{S_WR14}, {t0}"); e(f"v_xor_b32 v{V_XA[1]}, 64, v{V_XA[0]}")
        self.xa = 0
        e(f"v_lshlrev_b32 {t0}, 10, {q}"); e(f"v_lshl_add_u32 {t0}, {r4}, 6, {t0}"); e(f"v_lshl_add_u32 {t0}, {q1}, 5, {t0}"); e(f"v_lshl_add_u32 {t0}, {c4}, 3, {t0}")
        e(f"s_lshl_b32 s{S_PA}, s{S_TB}, 8"); e(f"s_add_u32 s{S_PA}, s{S_PA}, {SLOT}")
        e(f"v_add_u32 v{V_WA[0]}, s{S_PA}, {t0}")
        e(f"v_xor_b32 v{V_WA[1]}, 32, v{V_WA[0]}")
        self.wa = [1, 1]
        e(f"v_and_b32 {t1}, 1, {m}"); e(f"v_lshlrev_b32 {t1}, 4, {t1}"); e(f"v_mov_b32 {t2}, 0x3f80"); e(f"v_lshlrev_b32 {t1}, {t1}, {t2}")
        e(f"v_lshlrev_b32 {t2}, 3, {q}"); e(f"v_sub_u32 {t2}, {m}, {t2}"); e(f"v_ashrrev_i32 {t2}, 1, {t2}")
        misc = [f"s_mov_b32 s{S_M4}, 0x20000", f"s_mov_b32 s{S_M4+1}, 0x28000", f"s_mov_b32 s{S_M4+2}, 0x30000", f"s_mov_b32 s{S_MASK}, 0xffff0000",
                f"s_mov_b32 s{S_WL}, 0", f"s_mov_b32 s{S_Q}, 1", f"s_mov_b32 s{S_M7}, 0x38000",
                f"s_lshl_b32 s{S_FOWN}, s{S_J}, 7", f"s_add_u32 s{S_FOWN}, s{S_FOWN}, s{S_FB}", f"s_mul_i32 s{S_OADJ}, s{S_TB}, 7168",
                f"s_mov_b32 s{S_ADJ}, 8192", f"s_mov_b32 s{S_LAYER}, 0", f"s_mov_b32 s{S_CAPJ}, s{S_J}", f"s_mov_b32 s{S_LOOP}, 1",
                f"s_mov_b32 s{S_WCUR}, 0", f"s_mov_b32 s{S_LEND}, 15"]
        for h in range(2):
            for d in range(4):
                e(f"v_cmp_eq_u32 vcc, {d - 8*h}, {t2}"); e(misc.pop(0)); e(misc.pop(0))
                e(f"v_cndmask_b32 {t0}, 0, {t1}, vcc"); e(f"v_accvgpr_write_b32 a{SEL(h)+d}, {t0}")
        for d in range(3):
            e(f"s_cmp_ge_u32 {d}, s{S_J}"); e(f"s_cselect_b32 s{S_FQ+d}, {4*(d+1)}, {4*d}")
        e(f"s_mul_i32 s{S_PA}, s{S_TB}, {131072-16384}"); e(f"s_sub_u32 s{S_PA}, s{S_BOFF}, s{S_PA}")
        e(f"v_xor_b32 v{V_CPG}, s{S_WC64}, v{V_XC[0]}"); e(f"v_add_u32 v{V_CPG}, s{S_PA}, v{V_CPG}")
        e(f"s_mov_b32 s{S_XCUR}, {15*128}")
        if o.wpf:
            e(f"s_lshl2_add_u32 s{S_XB}, s{S_TC}, s{S_WAVE}"); e(f"s_lshl_b32 s{S_XB}, s{S_XB}, 12"); e(f"s_add_u32 s{S_XB}, s{S_XB}, s{S_BOFF}")
        e(f"s_lshl2_add_u32 s{S_PA}, s2, s{S_WAVE}"); e(f"s_lshl_b32 s{S_PA}, s{S_PA}, 12"); e(f"s_add_u32 s{S_PA}, s{S_PA}, 0x200000")
        e(f"v_min_u32 v{V_CPL}, 2, {q}"); e(f"v_lshlrev_b32 v{V_CPL}, 7, v{V_CPL}")
        e(f"s_mov_b32 s{S_BOFF}, 2048"); e(f"s_mov_b32 s{S_CNT}, 0x100000")
        pst()
        if o.wpos == 1: w0()
        if o.hops:
            e("s_mov_b64 exec, 0")
            for w in range(1, 4):
                e(f"s_cmp_eq_u32 s{S_WAVE}, {w}"); e(f"s_cbranch_scc1 HOP{w}")
            e("s_branch HOP0")
            self.label("HOPEND")
            e("s_mov_b64 exec, -1")
        pst()
        if o.wpos == 2: w0()
        if o.diag: e(f"s_memtime s[{S_ST+2}:{S_ST+3}]")
        if o.diag2: e(f"s_load_dword s{S_EP}, s[{S_WS}:{S_WS+1}], s{S_EPOFF}")
        self.wait(vtags=[("B", 0)])
        for nt in range(o.b0pre):
            for x in self.bias0_ops(nt): e(x)
        if o.diag:
            e("s_waitcnt lgkmcnt(0)")
            e(f"v_writelane_b32 v{V_ST[0]}, s{S_D0}, 63")
            e(f"v_writelane_b32 v{V_ST[0]}, s{S_ST}, 60"); e(f"v_writelane_b32 v{V_ST[1]}, s{S_ST+2}, 60")
            e(f"s_mov_b32 s{S_SI}, 0")

    def seg_open(self, name, vt, vforce, prev_nt, nts, X, W, half=None, reload=True, cinit=False, maxS=3, barrier=True, nextnt=None, entry=False, spread=False):
        o = self.opt
        dg = o.diag and not (o.diagc and name in ("G0", "G1"))
        if dg: self.stamps.append(name)
        if self.pending: self.mfma(self.pending)
        if dg: self.stamp(0)
        if barrier and entry:
            k = len(self.out)
            if o.diagc and o.diagrt: self.stamp(1)
            self.wait(vtags=vt, lall=True)
            if o.diagc and o.diagrt:
                self.stamp_items()[0][1](); self.stamps.append(name + "L")
            pre = self.out[:] + [f"s_branch LB_{name}"]
            assert self.entry.setdefault(name, pre) == pre
            self.out[k:] = [f"s_waitcnt vmcnt({vforce}) lgkmcnt(0)", f"LB_{name}:", "s_barrier"]
        elif barrier:
            self.wait(vtags=vt, lall=True, vforce=vforce)
            if name in self.entry: self.label(f"LB_{name}")
            self.e("s_barrier")
        else:
            self.wait(ltags=[("WF", prev_nt & 1, s, u) for s in range(2) for u in range(2)])
        if dg: self.stamp(1)
        base = ([] if prev_nt is None else blk(prev_nt)) + sum((blk(nt, cinit) for nt in nts), [])
        off = 0 if prev_nt is None else 16
        self.pending = base[-1] if nts else None
        mf = base[:-1] if nts else base
        sc = Sched(len(mf), maxS)
        sc.mf = mf; sc.off = off; sc.dg = dg
        su = [(s, u) for s in range(2) for u in range(2)]
        if prev_nt is None:
            rd = [self.rd_xf(base[i][0], base[i][2], X) for i in range(16)]
            self.rd_wf(nts[0], 0, 0, W, half)(); self.rd_wf(nts[0], 0, 1, W, half)(); rd[0]()
            self.rd_wf(nts[0], 1, 0, W, half)(); self.rd_wf(nts[0], 1, 1, W, half)()
            for i in range(1, o.e0pre): rd[i]()
            self.wait(ltags=[("XF", 0, 0), ("XF", 0, 1)])
            for i in range(o.e0pre, 16): sc.put(i - o.e0pre, "D", rd[i])
            for mt in range(1, 8): sc.put(2 * mt - 1, "S", lambda mt=mt: self.wait(ltags=[("XF", mt, 0), ("XF", mt, 1)]))
            sc.e0last = 16 - o.e0pre
        elif nts:
            xs = o.xsp if spread else 1.0
            if reload and xs > 1.0:
                rp = [max(i, int(i * xs + o.xso)) for i in range(16)]
                for i in range(16):
                    mt, _, s, _ = base[i]
                    sc.put(rp[i], "D", self.rd_xf(mt, s, X))
                holes = [g for g in range(0, 12) if g not in rp]
                holes = (holes + [1, 3, 5, 7])[:4]
                for k, (s, u) in enumerate(su): sc.put(sorted(holes)[k], "D", self.rd_wf(nts[0], s, u, W, half))
                sc.rp = rp
            else:
                if reload:
                    for i in range(16):
                        mt, _, s, _ = base[i]
                        sc.put(i, "D", self.rd_xf(mt, s, X))
                for k, (s, u) in enumerate(su): sc.put(2 * k, "D", self.rd_wf(nts[0], s, u, W, half))
            sc.put(15, "S", lambda: self.wait(ltags=[("XF", 1, 0), ("XF", 1, 1)] + [("WF", nts[0] & 1, s, u) for s, u in su]))
        if reload and nts and prev_nt is not None:
            if hasattr(sc, "rp"):
                for mt, upto in ((2, 3), (4, 4), (5, 5), (6, 6), (7, 7)):
                    sc.put(off + 2 * mt - 1, "S", lambda m=upto: self.wait(ltags=[("XF", m, 0), ("XF", m, 1)]))
            else:
                for mt in (2, 4, 6):
                    sc.put(off + 2 * mt - 1, "S", lambda mt=mt: self.wait(ltags=[("XF", mt + 1, 0), ("XF", mt + 1, 1)]))
        sc.blkwait = []
        seq = list(nts[1:]) + [nextnt]
        for b, nt in enumerate(seq):
            if b < len(seq) - 1:
                g = off + 16 * (b + 1) - 1
                sc.put(g, "S", lambda nt=nt: self.wait(ltags=[("WF", nt & 1, s, u) for s, u in su] + [("C",)]))
                sc.blkwait.append(g)
        if nts:
            for b, nt in enumerate(seq):
                if b == 0 and hasattr(sc, "rp"):
                    holes = [g for g in range(16, 27) if g not in sc.rp and g not in o.xkeep][:4]
                    for k, (s, u) in enumerate(su): sc.put(holes[k], "D", self.rd_wf(nt, s, u, W, half))
                    continue
                if b == 0 and prev_nt is None:
                    for k, (s, u) in enumerate(su): sc.place("D", self.rd_wf(nt, s, u, W, half), max(0, sc.e0last - 2) + k)
                    continue
                for k, (s, u) in enumerate(su): sc.place("D", self.rd_wf(nt, s, u, W, half), off + 16 * b + 2 * k)
        return sc
    def seg_emit(self, sc, gbase=None, check=None, stamp_at=50):
        if sc.dg: sc.chain(self.stamp_items(), stamp_at)
        for g, m in enumerate(sc.mf):
            if check: check(g, m)
            self.mfma(m)
            self.merge_gap(sc, g, None if gbase is None else gbase + g)
    def xa_items(self, new, old, nx):
        def f0():
            self.e(f"v_add_u32 v{V_XA[0]}, s{S_DX}, v{V_XA[0]}"); self.xa = nx["x"]
        return [self.SU(f"s_sub_u32 s{S_DX}, s{new}, s{old}", lambda: nx.update(x=self.slot[new])),
                ("V", f0), self.V(f"v_add_u32 v{V_XA[1]}, s{S_DX}, v{V_XA[1]}")]
    def wa_sched(self, sc, new, old, g_s, g_v):
        nx = {}
        def wa(h):
            def f():
                self.e(f"v_add_u32 v{V_WA[h]}, s{S_DW}, v{V_WA[h]}"); self.wa[h] = nx["w"]
            return f
        k, f = self.SU(f"s_sub_u32 s{S_DW}, s{new}, s{old}", lambda: nx.update(w=self.slot[new]))
        sc.place(k, f, g_s, g_v - 1)
        sc.chain([("V", wa(0)), ("V", wa(1))], g_v)

    def body(self, kind, layer, t):
        o = self.opt
        X = ("X", layer, t); W = ("W", layer, t)
        first = kind == "E0"
        vt = [X, W, ("P", layer, t + 2)]
        if kind == "S1": vt.append(("B", layer))
        vforce = {"G0": min(9 + (1 if o.xtouch else 0) + (1 if o.tpf & 2 else 0), 10 + (1 if o.xtouch else 0)), "G1": 8, "T14": 8}.get(kind)
        sc = self.seg_open(kind, vt, vforce, None if first else 7, list(range(7)), X, W, cinit=first,
                           maxS=1 if kind in ("T15", "H0") else 3, nextnt=7, entry=((kind == "G1" and t == 4 and o.entry) or (kind == "G0" and t == 1 and o.entry > 1)),
                           spread=kind in ("G0", "G1", "T14", "S1", "S2", "S3") or (kind == "H0" and o.h0sp))
        n, off = sc.n, sc.off
        if kind in ("G0", "G1"):
            sc.put(n - 1, "G", lambda: None)
            sc.put(n - 2, "S", self.E(f"s_cmp_lt_u32 s{S_LOOP}, " + ("14" if kind == "G0" else f"s{S_LEND}"))); sc.closedS.add(n - 2)
        self.gcap = 0
        if kind in ("E0", "G0", "T14", "T15"):
            gB = off + 94 if kind != "T15" else off + 1
            def br():
                self.e(f"s_cbranch_scc1 CAP_{kind}"); self.e("@CAP")
            if kind == "G0" and o.cap4:
                for p in range(4):
                    g = off + 81 + 2 * p
                    sc.put(g, "G", lambda p=p: (self.e(f"s_cbranch_scc1 CAP_G0{p}"), self.e(f"@CAP{p}")))
                    sc.put(g - 1, "S", self.E(f"s_cmp_eq_u32 s{S_TC}, {p}")); sc.closedS.add(g - 1)
                sc.chain([self.S(f"s_lshl_b32 s{S_TC}, s{S_CAPJ}, 2"), self.S(f"s_sub_u32 s{S_TC}, s{S_LOOP}, s{S_TC}")], off + 64, off + 70)
            else:
                sc.put(gB, "G", br)
                sc.put(gB - 1, "S", self.E(f"s_cmp_eq_u32 s{S_TC}, s{S_CAPJ}" if kind == "G0" else f"s_cmp_eq_u32 s{S_CAPJ}, {t >> 2}")); sc.closedS.add(gB - 1)
                if kind == "G0": sc.put(gB - 2, "S", self.E(f"s_lshr_b32 s{S_TC}, s{S_LOOP}, 2"))
            if not (kind == "G0" and o.cap4):
                for k in range(8): sc.put(gB + 1 + k, "D", self.E(f"@RD{k}"))
                sc.put(gB + 9, "G", self.E("@RET"))
            self.gcap = sc.place("V", self.E(f"v_xor_b32 v{V_CAP}, s{S_WC64}, v{V_XA[0]}"), 9, off if kind == "T15" else None)
        pace = 4 if first else (o.pace0 if kind == "G0" else o.pace)
        gw = o.gw if hasattr(sc, "rp") else off + 1
        lastG = gw
        if kind == "H0":
            def xb():
                assert not any(x and x[0] == "XF" for x in self.lq)
                if o.flag0 == 0: self.wait(vtags=[("S", layer, 0)])
                self.e("s_barrier")
            gb = sc.place("S", xb, off + max(o.xbpos, 14 if o.h0sp else 0))
            gw = gb + 1
        if kind == "G1":
            sc.put(0, "S", self.E(f"s_cmp_eq_u32 s{S_LOOP}, s{S_KEY}")); sc.closedS.add(0)
            sc.put(1, "S", self.E(f"s_cselect_b32 s{S_TG}, s{S_Q+1}, s{S_Q}")); sc.put(1, "S", self.E(f"s_cselect_b32 s{S_TH}, s{S_WLM}, s{S_WL}"))
            c = sc.chain(self.w_setup(S_TG, S_TH), 2)
        elif kind != "T15":
            c = sc.chain(self.w_setup(S_Q, S_WL), max(0, gw - 14))
        if first and o.prex and self.x1:
            gw = self.place_dma(sc, self.x1, 1, pace) + 4
        if kind != "T15":
            lastG = self.place_dma(sc, self.dma_items(("W", layer, t + 1), S_WR + 1, "W"), max(gw, c[-1] + 1), pace if kind != "H0" else o.paceh)
        gx = lastG + int(pace)
        if kind in ("S1", "S2", "S3", "G1"):
            if kind != "S1":
                gbr = self.poll_check(sc, kind, ("P", layer, t + 2), off + 8)
                assert gbr < lastG - 1
            c = sc.chain([self.S(f"s_lshr_b32 s{S_PA}, s{S_Q+2}, 2"), self.S(f"s_lshl_b32 s{S_PA}, s{S_PA}, 7"),
                          self.S(f"s_add_u32 s{S_PA}, s{S_PA}, s{S_FB}")], max(gbr + 1, o.pollpos) if (o.pollpos and kind == "G1") else lastG - 1)
            k, f = self.VM(f"buffer_load_dword v{V_POLL}, off, {sr(S_WS,4)}, s{S_PA} sc1", ("P", layer, t + 3))
            if o.pollpos and kind == "G1": gp = sc.place(k, f, c[-1] + 1)
            else:
                gp = sc.place(k, f, max(c[-1], lastG) + 2)
                gx = max(gx, gp + 2); lastG = gp
        if o.wpf and kind in ("E0", "S2"):
            sc.chain([self.V(f"v_and_b32 v{V_WT}, 0x180, v{V_L16}"), self.V(f"v_lshrrev_b32 v{V_FLAG}, 9, v{V_L16}"),
                      self.V(f"v_lshl_add_u32 v{V_WT}, v{V_FLAG}, 11, v{V_WT}")], 9, 40)
        if (o.wpf & 1 and kind == "G0") or (o.wpf & 2 and kind in ("S2", "S3", "G1")):
            TG = S_TE if kind == "G0" else S_TG
            it = [self.S(f"s_add_u32 s{TG}, s{S_Q}, {o.wpd}")] if kind == "G0" else []
            it += [self.S(f"s_lshl_b32 s{TG}, s{TG if kind == 'G0' else S_Q+2}, 17"), self.S(f"s_add_u32 s{TG}, s{TG}, s{S_WL}"), self.S(f"s_add_u32 s{TG}, s{TG}, s{S_XB}")]
            c = sc.chain(it, off + 26)
            k, f = self.VM(f"buffer_load_dword v{V_POLL if kind == 'G0' else V_CAP}, v{V_WT}, {sr(S_W,4)}, s{TG} offen", "PW")
            lastG = sc.place(k, f, max(c[-1], lastG) + 2); gx = max(gx, lastG + 2)
        xadv = [self.V(f"v_add_u32 v{V_XC[i]}, 128, v{V_XC[i]}") for i in range(2)]
        if first:
            if not o.prex:
                sc.chain(xadv, 4)
                lastG = self.place_dma(sc, self.dma_items(("X", 0, 1), S_X + 1, "X0"), gx, pace)
            else: pace = 6
            c = sc.chain(xadv, lastG + 1)
            lastG = self.place_dma(sc, self.dma_items(("X", 0, 2), S_X + 2, "X0"), max(lastG + pace, c[-1] + 1), pace)
        if kind == "G0":
            ww = [self.VM(f"buffer_load_dword v{V_POLL}, v{V_CPL}, {sr(S_W,4)}, s{S_PA} offen", "PW"), self.S(f"s_add_u32 s{S_PA}, s{S_PA}, {384 if o.wwarm else 0}")]
            if not o.xtouch: sc.chain(ww, lastG + 3)
            sc.chain(xadv, off + 20)
            lastG = self.place_dma(sc, self.dma_items(("X", layer, t + 2), S_X + 2, "X0"), gx, o.pacex0)
            if o.xtouch: lastG = sc.chain(ww, lastG + 3)[0]
        if kind in ("E0", "G0") and o.xtouch:
            sc.chain([self.VM(f"buffer_load_dword v{V_POLL}, v{V_XT}, {sr(S_X0,4)}, s{S_XTO} offen nt", "PW"),
                      self.S(f"s_add_u32 s{S_XTO}, s{S_XTO}, 128")], lastG + 3)
        if kind == "G0" and o.tpf & 2:
            sc.chain([self.VM(f"global_load_dword v{V_POLL}, v31, s[{S_PC}:{S_PC+1}]", "PW")], lastG + 6)
        if kind == "S1" and o.tpf & 1:
            sc.chain([self.S(f"s_lshr_b32 s{S_TE}, s2, 3"), self.S(f"s_lshl_b32 s{S_TE}, s{S_TE}, 9"), self.S(f"s_lshl_b32 s{S_TF}, s{S_WAVE}, 7"),
                      self.S(f"s_add_u32 s{S_TE}, s{S_TE}, s{S_TF}"), self.S(f"s_add_u32 s{S_TE}, s{S_TE}, L_TAIL-L_pc"),
                      self.S(f"s_min_u32 s{S_TE}, s{S_TE}, L_codeend-L_pc-4"), self.V(f"v_mov_b32 v{V_FLAG}, s{S_TE}"),
                      self.VM(f"global_load_dword v{V_FLAG}, v{V_FLAG}, s[{S_PC}:{S_PC+1}]", "PW")], off + 4, lastG - 1)
        if kind in ("S2", "S3", "G1"):
            c = sc.chain(self.x_setup(S_Q + 1), 8, off - 1)
            assert c[-1] < gx
            lastG = self.place_dma(sc, self.dma_items(("X", layer, t + 2), S_X + 2, "XE"), gx, o.pacex)
        if kind == "T14":
            it = [self.S(f"s_mov_b32 s{S_WT+k}, {k*16384 - (k&1)*2048}") for k in range(1, 4)]
            it += [self.S(f"s_add_u32 s{S_WL}, s{S_WL}, 0x200000"), self.S(f"s_lshl_b32 s{S_Q}, s{S_J}, 2"),
                   self.V(f"v_subrev_u32 v{V_WC[1]}, s{S_ADJ}, v{V_WC[1]}"), self.S(f"s_mov_b32 s{S_ADJ}, 0")]
            it += self.w_setup(S_Q, S_WL)
            c = sc.chain(it, lastG + 1)
            lastG = self.place_dma(sc, self.dma_items(("W", layer + 1, 0), S_X + 2, "W"), max(gx, c[-1] + 1), pace - 1)
        if kind == "T15" and o.wl2:
            t0, t1 = V_T + 16, V_T + 17
            it = [self.V(f"v_bfe_u32 v{t0}, v{V_L16}, 5, 2"), self.V(f"v_lshlrev_b32 v{t0}, 7, v{t0}"),
                  self.V(f"v_lshrrev_b32 v{t1}, 7, v{V_L16}"), self.V(f"v_lshl_add_u32 v{t1}, v{t1}, 11, v{t0}"),
                  self.V(f"v_lshrrev_b32 v{t0}, 9, v{V_L16}"), self.V(f"v_lshlrev_b32 v{t0}, 11, v{t0}"), self.V(f"v_and_b32 v{V_FLAG}, 0x180, v{V_L16}"),
                  self.V(f"v_add_u32 v{t0}, v{t0}, v{V_FLAG}")]
            sc.chain(it, 1, 26)
            sc.maxS = 2
            it = [self.S(f"s_lshr_b32 s{S_TE}, s2, 5"), self.S(f"s_lshl_b32 s{S_TE}, s{S_TE}, 2"), self.S(f"s_add_u32 s{S_TE}, s{S_TE}, s{S_WAVE}"),
                  self.S(f"s_lshl_b32 s{S_TF}, s{S_J}, 9"), self.S(f"s_add_u32 s{S_TF}, s{S_TF}, s{S_WL}"),
                  self.S(f"s_lshl_b32 s{S_TG}, s{S_TE}, 14"), self.S(f"s_add_u32 s{S_TG}, s{S_TG}, s{S_TF}"), self.S(f"s_lshl_b32 s{S_TH}, s{S_J}, 19"),
                  self.S(f"s_add_u32 s{S_TG}, s{S_TG}, s{S_TH}"),
                  self.S(f"s_lshl_b32 s{S_TE}, s{S_TE}, 12"), self.S(f"s_add_u32 s{S_TE}, s{S_TE}, s{S_TF}"),
                  self.VM(f"buffer_load_dword v{V_POLL}, v{t1}, {sr(S_W,4)}, s{S_TG} offen", "PW")]
            for d in range(o.wl2):
                it += [self.S(f"s_lshl_b32 s{S_TH}, s{S_FQ+d}, 17"), self.S(f"s_add_u32 s{S_TH}, s{S_TH}, s{S_TE}"),
                       self.VM(f"buffer_load_dword v{V_POLL}, v{t0}, {sr(S_W,4)}, s{S_TH} offen", "PW")]
            sc.chain(it, 2, 40)
            sc.maxS = 1
        if kind == "T15":
            sc.put(0, "S", self.E(f"s_cmp_eq_u32 s{S_LAYER}, 0")); sc.closedS.add(0)
            if o.e1out: sc.put(1, "S", self.E(f"s_cselect_b64 s[{S_X0}:{S_X0+1}], s[{S_OUT}:{S_OUT+1}], s[{S_WS}:{S_WS+1}]"))
            else:
                sc.put(1, "S", self.E(f"s_cselect_b32 s{S_TE}, 0x2000000, 0"))
                def f64():
                    self.e(f"s_add_u32 s{S_X0}, s{S_WS}, s{S_TE}"); self.e(f"s_addc_u32 s{S_X0+1}, s{S_WS+1}, 0")
                sc.put(17, "G", f64)
            sc.chain([self.S(f"s_lshl_b32 s{S_TD}, s{S_LAYER}, 2"), self.S(f"s_add_u32 s{S_NEED}, s{S_NEED}, s{S_TD}"),
                      self.S(f"s_mov_b32 s{S_FV}, s{S_NEED}"),
                      self.S(f"s_lshr_b32 s{S_TD}, s{S_WAVE}, 1"), self.S(f"s_mul_i32 s{S_TD}, s{S_TD}, s{S_LAYER}"), self.S(f"s_mul_i32 s{S_KEY}, s{S_TD}, 12"),
                      self.S(f"s_sub_u32 s{S_WLM}, s{S_WL}, 256"), self.S(f"s_sub_u32 s{S_LEND}, s{S_LEND}, 1"),
                      self.S(f"s_add_u32 s{S_LAYER}, s{S_LAYER}, 1")], 2, 60)
        if first:
            if o.finit == 0:
                sc.chain([self.V(f"v_lshrrev_b32 v{V_FLAG}, 1, v{V_L16}"), self.V(f"v_and_b32 v{V_FLAG}, 0x180, v{V_FLAG}"),
                          self.VM(f"buffer_load_dword v{V_POLL}, v{V_FLAG}, {sr(S_WS,4)}, s{S_FB} offen sc1", "PW")], 68)
                sc.chain([self.S(f"s_add_u32 s{S_NEED}, s{S_EP}, 1"), self.S(f"s_mov_b32 s{S_FV}, s{S_EP}")] + self.flag_items(), 98)
            else:
                sc.chain([self.S(f"s_add_u32 s{S_NEED}, s{S_EP}, 1"), self.V(f"v_mov_b32 v{V_FLAG}, s{S_EP}"), self.V(f"v_bfe_u32 v{V_T+16}, v{V_L16}, 2, 7"),
                          self.VM(f"buffer_store_dword v{V_FLAG}, v{V_T+16}, {sr(S_WS,4)}, s{S_FOWN} offen sc1", "F")], 70)
        if kind == "H0":
            def fb():
                self.wait(vtags=[("S", layer, 0)]); self.e("s_barrier")
            if o.flag0 > 0:
                g = sc.place("G", fb, off + o.flag0)
                sc.chain(self.flag_items(), g + 1)
            elif o.flag0 == 0: sc.chain(self.flag_items(), gb + 3)
        if kind == "S1" and o.flag0 < 0:
            assert ("S", layer, 0) not in self.vq
            sc.chain(self.flag_items(), 3)
        if kind == "S3":
            assert ("S", layer, 1) not in self.vq
            sc.chain(self.flag_items(), off + 3)
        if kind == "G1":
            assert ("S", layer, min(t - 2, 3)) not in self.vq
            if o.fdrop:
                def sel():
                    self.e(f"s_cmp_le_u32 s{S_LOOP}, 5"); self.e(f"s_cselect_b32 s{S_TF}, 0, 0x40000000")
                g1 = [g for g in range(11, 40) if len(sc.g[g]) <= 1 and sc.fits(g, "S")][0]
                sc.put(g1, "S", sel); sc.put(g1, "S", lambda: None)
                g1 = sc.place("V", self.E(f"v_mov_b32 v{V_T}, s{S_TF}"), g1 + 1)
                sc.chain([self.V(f"v_mov_b32 v{V_FLAG}, s{S_FV}"), self.VM(f"buffer_store_dword v{V_FLAG}, v{V_T}, {sr(S_WS,4)}, s{S_FOWN} offen sc1", "F"),
                          self.S(f"s_add_u32 s{S_FV}, s{S_FV}, 1")], max(g1, o.fpos - 1))
            else:
                sc.chain(self.flag_items() + [self.S(f"s_sub_u32 s{S_TF}, s{S_FV}, s{S_NEED}"), self.S(f"s_min_u32 s{S_TF}, s{S_TF}, 3"),
                                              self.S(f"s_add_u32 s{S_FV}, s{S_TF}, s{S_NEED}")], off + 3)
        CT = V_T + 12
        if kind in ("S1", "S2", "S3"):
            jobs = [mt for mt in range(8) if not self.is_direct(t, mt)]
            def chk(): assert self.lds_own[self.slot[S_X]] == ("X", layer, t)
            c = sc.chain([self.SU(f"s_sub_u32 s{S_E0}, s{S_X}, s{S_OADJ}", chk), self.V(f"v_add_u32 v{V_CPL}, s{S_E0}, v{V_L16}")], 8)
            gprev = c[-1]
            w0 = int(o.cpos[t - 1])
            assert w0 + len(jobs) <= 6
            for k, mt in enumerate(jobs):
                w = sc.blkwait[k + w0]
                sc.place("D", lambda mt=mt: self.lds(f"ds_read_b128 {vr(CT,4)}, v{V_CPL} offset:{mt*2048}", ("C",)), max(gprev + 1, w - 9), w - 1)
                def st(mt=mt):
                    assert ("C",) not in self.lq
                    so, im = mt_off(mt)
                    self.vm(f"buffer_store_dwordx4 {vr(CT,4)}, v{V_CPG}, {sr(S_X0,4)}, {so} offen offset:{im + t*128} sc1", ("S", layer, t))
                gprev = sc.place("G", st, w + 1)
        if kind == "G0" and o.cap4:
            g = off + 95
            for k in range(8): g = sc.place("D", self.E(f"@RD{k}"), g) + 1
            sc.place("G", self.E("@RET"), g)
        gcap = self.gcap
        gXA = max(gcap + 1, off + 2, sc.rp[-1] + 1 if hasattr(sc, "rp") else getattr(sc, "e0last", 0))
        nx = {}
        if kind == "T15":
            def f0():
                self.e(f"v_add_u32 v{V_XA[0]}, s{S_TA}, v{V_L16}"); self.xa = nx["x"]
            sc.chain([self.S(f"s_lshl_b32 s{S_TA}, s{S_WC64}, 7"),
                      self.SU(f"s_sub_u32 s{S_TA}, s{S_X+2}, s{S_TA}", lambda: nx.update(x=self.slot[S_X + 2])),
                      ("V", f0), self.V(f"v_add_u32 v{V_XA[1]}, 1024, v{V_XA[0]}"), self.S(f"s_mov_b32 s{S_CAPJ}, 77")], off + 11)
            wnext = S_X + 1
        else:
            sc.chain(self.xa_items(S_X + 1, S_X, nx), gXA)
            wnext = S_WR + 1
        self.wa_sched(sc, wnext, S_WR, gXA, off + 16 * 6 + 8)
        if kind == "T15":
            sc.chain([self.VM(f"buffer_load_dwordx2 {vr(V_BR,2)}, v{V_B}, {sr(S_B,4)}, s{S_BOFF} offen", ("B", layer + 1)),
                      self.S(f"s_add_u32 s{S_BOFF}, s{S_BOFF}, 2048")], off + 12, off + 34)
        if kind in ("S1", "S2", "S3", "T14"):
            g = 4 if kind == "S1" else 0
            for nt in {"S1": [5, 6, 0], "S2": [4, 1], "S3": [3, 2], "T14": [7]}[kind]:
                b0 = 0 if nt == 7 else off + 16 * nt
                g = self.bias_sched(sc, nt, g, (b0, b0 + 16))
        if first:
            g = 0
            for nt in range(o.b0pre, 7):
                g = sc.chain([self.V(x) for x in self.bias0_ops(nt)], g, 16 * nt - 2)[-1]
            ops = []
            for mt in range(2): ops += [f"v_accvgpr_write_b32 a{ACC(mt,6)[1]+i}, v{ACC(7,6)[1]+i}" for i in range(4)]
            for mt in range(8): ops += [f"v_accvgpr_write_b32 a{ACC(mt,7)[1]+i}, 1.0" for i in range(4)]
            sc.chain([self.V(x) for x in ops], g, 96 - 2)
        self.slot[S_TR] = None
        if kind == "T15":
            rot = [self.smov(S_O2, S_X), self.smov(S_O3, S_WR), self.smov(S_WR, S_X + 1), self.smov(S_X + 1, S_WR + 1),
                   self.smov(S_X, S_X + 2), self.smov(S_WR + 1, S_X + 2)]
        elif kind == "H0":
            rot = [self.smov(S_X, S_X + 1), self.smov(S_X + 1, S_O2), self.smov(S_X + 2, S_O3),
                   self.smov(S_TR, S_WR), self.smov(S_WR, S_WR + 1), self.smov(S_WR + 1, S_TR)]
        else:
            rot = [self.smov(S_TR, S_X), self.smov(S_X, S_X + 1), self.smov(S_X + 1, S_X + 2), self.smov(S_X + 2, S_TR),
                   self.smov(S_TR, S_WR), self.smov(S_WR, S_WR + 1), self.smov(S_WR + 1, S_TR)]
        q = []
        if kind in ("E0", "G0", "T15", "H0"): q = [self.S(f"s_add_u32 s{S_Q}, s{S_Q}, 1")]
        if kind == "H0": q += [self.S(f"s_add_u32 s{S_Q+1}, s{S_Q}, 1"), self.S(f"s_mov_b32 s{S_Q+2}, s{S_FQ}")]
        if kind in ("S1", "S2"):
            q = [self.S(f"s_mov_b32 s{S_Q}, s{S_Q+1}"), self.S(f"s_mov_b32 s{S_Q+1}, s{S_Q+2}"), self.S(f"s_mov_b32 s{S_Q+2}, s{S_FQ+t}")]
        if kind in ("S3", "G1"):
            q = [self.S(f"s_add_u32 s{S_TE}, s{S_Q}, 1"), self.S(f"s_mov_b32 s{S_Q}, s{S_Q+1}"), self.S(f"s_mov_b32 s{S_Q+1}, s{S_Q+2}"),
                 self.S(f"s_mov_b32 s{S_Q+2}, s{S_TE}")]
        if kind == "S3": q += [self.S(f"s_mov_b32 s{S_LOOP}, 4")]
        sc.chain(q, max(gx, off + 60))
        if kind == "G1": rot += [self.S(f"s_add_u32 s{S_LOOP}, s{S_LOOP}, 1")]
        if kind == "G0": sc.place("S", self.E(f"s_add_u32 s{S_LOOP}, s{S_LOOP}, 1"), off + 104, n - 3)
        sc.chain(rot, max(sc.last_su(), 108 if kind in ("T15", "H0") else 0))
        if kind == "T15": self.make_stream(layer + 1)
        def check(g, m):
            if kind == "H0" and g >= off: assert (m[1] >> 1) * 8 + m[0] in self.epi_done, ("deadline", m)
        self.xr = o.xr15 if kind == "T15" else o.xr0
        self.seg_emit(sc, {"T15": 0, "H0": 128}.get(kind), check, 86 if first else off + 50)
        if "@CAP" in self.out: self.make_cap(kind, t)
        if "@CAP0" in self.out: self.make_cap4()
        if kind == "T15": assert all(f in self.wr_done for f in range(8))
        if kind == "H0": assert not self.stream, "stream left"

    def make_cap(self, kind, t):
        i0 = self.out.index("@CAP"); i1 = self.out.index("@RET")
        reg = self.out[i0 + 1:i1]
        assert not any(x.endswith(":") or "branch" in x or "barrier" in x for x in reg)
        main = [x for x in reg if not x.startswith("@") and x != "s_nop 0"]
        self.out[i0:i1 + 1] = main + [f"CB_{kind}:"]
        def blkc(p):
            return [f"ds_read_b128 {ar(X0(p,int(x[3])),4)}, v{V_CAP} offset:{int(x[3])*2048}" if x.startswith("@RD") else x for x in reg] + [f"s_branch CB_{kind}"]
        cap = f"CAP_{kind}"
        if kind == "G0":
            b = [f"{cap}:", f"s_and_b32 s{S_TC}, s{S_LOOP}, 3"]
            for p in range(1, 4): b += [f"s_cmp_eq_u32 s{S_TC}, {p}", f"s_cbranch_scc1 {cap}{p}"]
            b += blkc(0)
            for p in range(1, 4): b += [f"{cap}{p}:"] + blkc(p)
            self.ool[cap] = b
        else:
            self.ool[cap] = [f"{cap}:"] + blkc(t & 3)
    def make_cap4(self):
        i1 = self.out.index("@RET")
        b = []
        for p in range(4):
            reg = [x for x in self.out[self.out.index(f"@CAP{p}") + 1:i1] if not x.startswith(("@CAP", "s_cbranch_scc1 CAP", f"s_cmp_eq_u32 s{S_TC}"))]
            assert not any(x.endswith(":") or "branch" in x or "barrier" in x for x in reg)
            b += [f"CAP_G0{p}:"] + [f"ds_read_b128 {ar(X0(p,int(x[3])),4)}, v{V_CAP} offset:{int(x[3])*2048}" if x.startswith("@RD") else x for x in reg] + ["s_branch CB_G0"]
        i0 = self.out.index("@CAP0")
        self.out[i0:i1 + 1] = [x for x in self.out[i0:i1] if not x.startswith("@") and x != "s_nop 0"] + ["CB_G0:"]
        self.ool["CAP_G0"] = b
    def is_direct(self, p, mt):
        n = int(self.opt.direct[p])
        return ((mt + 1) * n) // 8 != (mt * n) // 8
    def make_stream(self, nl):
        st = []
        self.epi_done = set(); self.wr_done = set()
        tbf = lambda f: V_T + 8 * (f % 2)
        U = lambda f, h: ("U", ("U", f // 8, f % 8, h, tbf(f)))
        self.stream = [U(f, h) + (30,) for f in range(2) for h in range(2)]
        self.credit = 0.0
        for f in range(32):
            p, mt = f // 8, f % 8
            tb = tbf(f)
            pos = 38 + 32 * p + 2 * mt
            sreg = {0: S_X + 2, 1: S_WR + 1, 2: S_O2, 3: S_O3}[p]
            ops = self.epi_valu(p, mt, tb, V_T + 16, tb)
            it = []
            for k, x in enumerate(ops):
                kd = "V" if (k < 4 or f == 31) else "A"
                if k == len(ops) - 5: it.append((kd, lambda x=x, f=f: (self.e(x), self.epi_done.add(f)), pos))
                else: it.append((kd, self.E(x), pos))
            if p >= 2: pos = max(pos, 129)
            if mt == 0:
                def f0(p=p, sreg=sreg):
                    self.lds_own[self.slot[sreg]] = ("X", nl, p)
                    self.e(f"s_sub_u32 s{S_E0}, s{sreg}, s{S_OADJ}")
                a = [("S", f0, pos), ("A", self.E(f"v_add_u32 v{V_CPL}, s{S_E0}, v{V_L16}"), pos)]
                it = it[:6] + a + it[6:] if p != 2 else it + a
            if self.is_direct(p, mt):
                so, im = mt_off(mt)
                it += [("R", lambda p=p, im=im, tb=tb, so=so: self.vm(f"buffer_store_dwordx4 {vr(tb,4)}, v{V_CPG}, {sr(S_X0,4)}, {so} offen offset:{im + p*128} sc1", ("S", nl, p)), pos)]
            if f + 2 < 32: it += [U(f + 2, 1) + (pos,)]
            it += [("X", lambda f=f, mt=mt, tb=tb: (self.lds(f"ds_write_b128 v{V_CPL}, {vr(tb,4)} offset:{mt*2048}", ("O",)), self.wr_done.add(f)), pos)]
            if f + 2 < 32: it += [U(f + 2, 0) + (pos,)]
            self.stream += it

    def merge_gap(self, sc, g, gpos):
        fixed = sc.g[g]
        self.gnow = gpos
        while True:
            cur = list(fixed)
            excl = any(k == "G" for k, _ in cur)
            hasR = False
            newgap = None
            top = -1
            if gpos is not None: self.credit = min(self.credit + self.xr, 2.0)
            def cnt(): return sum(k in "DV" for k, _ in cur), sum(getattr(f, "w", 1) for k, f in cur)
            def free():
                nvec, tot = cnt()
                if hasR: return nvec < 3
                return not excl and nvec < 2 and tot < 3
            def lookahead():
                i = 0
                while i < len(self.stream) and self.stream[i][0] in "RUX": i += 1
                while i < len(self.stream) and self.stream[i][0] == "V" and self.stream[i][2] <= gpos + 1 and free():
                    cur.append(("V", self.stream.pop(i)[1]))
            if gpos is not None and fixed is sc.g[g] and not (self.stream and getattr(self.stream[0][1], "pub", False)):
                while self.stream2 and self.stream2[0][2] <= gpos + 1:
                    k, fn, pos = self.stream2[0]
                    st = fn.ready(gpos)
                    if st == "skip": self.stream2.pop(0); continue
                    if st:
                        grp = [self.stream2.pop(0)]
                        if k == "S": grp.append(self.stream2.pop(0))
                        self.stream[0:0] = grp
                    break
            while gpos is not None and self.stream:
                k, fn, pos = self.stream[0]
                if pos > gpos + 1:
                    break
                if k == "U" and len(self.stream) > 1 and hasattr(self.stream[1][1], "ok") and not self.stream[1][1].ok():
                    lookahead(); break
                if k == "U" and self.opt.xd3 and not self.stream2 and len(self.stream) > 1 and self.stream[1][0] == "X" and fixed is sc.g[g] and g + 2 < sc.n:
                    hasD = lambda gg: any(kk == "D" for kk, _ in sc.g[gg])
                    more = sum(1 for x in self.stream[3:6] if x[0] == "V" and x[2] <= gpos + 1)
                    if hasD(g + 1) and not hasD(g + 2) and more >= 3:
                        lookahead(); break
                if k == "U":
                    lookahead()
                    newgap = fn; self.stream.pop(0); break
                if k == "X":
                    nxt = [kk for gg in (g + 1, g + 2) if gg < sc.n for kk, _ in sc.g[gg]]
                    follow_u = len(self.stream) > 1 and self.stream[1][0] == "U"
                    if any(kk != "S" for kk, _ in cur) or (not follow_u and "D" in nxt and fixed is sc.g[g]):
                        lookahead(); break
                    cur.append(("G", fn)); excl = True; self.stream.pop(0); continue
                if k == "R":
                    if excl or top > 0:
                        lookahead(); break
                    cur.append(("G", fn)); excl = True; hasR = True; top = 1; self.stream.pop(0); continue
                if k in "SZ":
                    w = 2 if k == "Z" else 1
                    if excl or top > 0 or g in sc.closedS or cnt()[1] + w > 3: break
                    fn.w = w
                    cur.append(("S", fn)); top = 0; self.stream.pop(0); continue
                if k == "D":
                    if top > 2 or not free(): break
                    cur.append(("D", fn)); top = 2; self.stream.pop(0); continue
                ok = free()
                if not ok and not excl and self.credit >= 1.0 and cnt()[0] < 3 and cnt()[1] < 4:
                    self.credit -= 1.0; ok = True
                if not ok: break
                cur.append(("V", fn)); top = 3; self.stream.pop(0)
            ks = [k for k, _ in cur]
            if ks.count("D") == 2 and "S" not in ks and "G" not in ks: cur.append(("S", self.E("s_nop 0")))
            for k, fn in sorted(cur, key=lambda x: RANK[x[0]]): fn()
            if newgap is None: return
            self.mfma(newgap)
            fixed = []

    def tail(self):
        e = self.e; o = self.opt
        L = 2
        VW, VR = V_POLL, V_CPL
        CT = V_T + 20; AT = V_T + 16
        tbf = lambda f: V_T + 8 * (f % 2)
        U = lambda f, h: ("U", ("U", f // 8, f % 8, h, tbf(f)))
        depth = lambda f: 4 if f < 8 else 8
        unit = lambda f: (f % depth(f)) * 4096
        area = {0: (S_WR, 0), 1: (S_X + 1, 0), 2: (S_X, 0), 3: (S_X + 1, 0)}
        def rdback(f, p, r, k):
            assert f in self.visible and self.ra == f // 8
            self.lds(f"ds_read_b64 {vr(r+2*k,2,p)}, v{VR} offset:{unit(f) + 256*k}", ("C", f))
        def store(f, dst):
            assert ("C", f) not in self.lq
            so, im = mt_off(f % 8)
            self.vm(f"buffer_store_dwordx4 {dst}, v{V_CPG}, {sr(S_OUT,4)}, {so} offen offset:{im + (f//8)*128} {o.outf}", "SO")
            self.stored.add(f)
        def wr_ok(f):
            prev = {0: f - 4, 1: -1, 2: -1, 3: f - 16}[f // 8]
            return (prev < 0 or prev in self.freed) and (f // 8) in self.area_free
        def wr(f):
            assert wr_ok(f) and self.wa_ == f // 8
            self.lds(f"ds_write_b128 v{VW}, {vr(tbf(f),4)} offset:{unit(f)}", ("Y", f))
            self.written.add(f); self.wpos = self.gnow; self.w_at[f] = self.gnow
        self.written = set(); self.visible = set(); self.freed = set(); self.rd_at = {}
        self.lds_half = {}; self.landed = set(); self.area_free = set(); self.area_next = set()
        self.wpos = 0; self.ra = 0; self.wa_ = 0; self.w_at = {}
        def at_barrier():
            self.visible |= {f for f in self.written if ("Y", f) not in self.lq}
            self.freed |= {f for f in self.rd_at if ("C", f) not in self.lq}
            self.landed |= {v for v in self.lds_half.values() if v not in self.vq}
            if not any(x and x[0] == "XF" for x in self.lq): self.area_free |= self.area_next
        def bar(vtags=(), every=False):
            self.wait(vtags=vtags, ltags=[("Y", x) for x in self.written if every or self.gnow >= self.w_at[x] + o.zdist]); e("s_barrier"); at_barrier()
        def switch(reg, p, attr):
            t = S_TC if attr == "ra" else S_TD
            def f():
                e(f"v_add_u32 v{reg}, s{t}, v{reg}"); setattr(self, attr, p)
            return [("S", self.E(f"s_sub_u32 s{t}, s{area[p][0]}, s{area[p-1][0]}")), ("A", f)]
        def half_dma(tile, H, tidreg, sreg, half):
            what = ("W", L, tile, H)
            it = [self.S(f"s_add_u32 s{S_TH}, s{S_WLM}, {H*256}")] + self.w_setup(tidreg, S_TH)
            d = [self.SU(f"s_add_u32 m0, s{sreg}, s{S_O2+half}", lambda: self.lds_half.__setitem__((self.slot[sreg], half), what))]
            for i in range(4):
                so = "0" if i < 2 else f"s{S_WT+1}"
                d.append(self.VM(f"buffer_load_dwordx4 v{V_WC[i&1]}, {sr(S_W,4)}, {so} offen" + (f" offset:{i*1024}" if i else "") + " lds", what))
            return it, d
        W13, W14, W15 = ("W", L, 13), ("W", L, 14), ("W", L, 15)
        X13, X14, X15 = ("X", L, 13), ("X", L, 14), ("X", L, 15)
        self.lds_half[(self.slot[S_WR], 0)] = W13 + (0,); self.lds_half[(self.slot[S_WR], 1)] = W14 + (0,)
        sc = self.seg_open("A13", [X13, W13, ("P", L, 15)], 8, 7, [0, 1, 2], X13, W13, half=0, nextnt=3); at_barrier()
        gbr = self.poll_check(sc, "A13", ("P", L, 15), 0)
        sc.chain(self.x_setup(S_Q + 1), 3, 15)
        c = sc.chain([self.S(f"s_lshl_b32 s{S_TA}, s{S_WAVE}, 15"), self.S(f"s_lshl_b32 s{S_TB}, s{S_WC64}, 10"), self.S(f"s_sub_u32 s{S_TA}, s{S_TA}, s{S_TB}"),
                      self.S(f"s_lshr_b32 s{S_TB}, s{S_WR14}, 6"), self.S(f"s_sub_u32 s{S_TA}, s{S_TA}, s{S_TB}"), self.S(f"s_add_u32 s{S_WLM}, s{S_WL}, s{S_TA}"),
                      self.S(f"s_lshl_b32 s{S_TA}, s{S_WAVE}, 12"), self.S(f"s_sub_u32 s{S_O2}, 0, s{S_TA}"), self.S(f"s_add_u32 s{S_O3}, s{S_O2}, 0x4000"),
                      self.S(f"s_sub_u32 s{S_Q+2}, s{S_Q+2}, 1")], 5)
        it, d = half_dma(15, 0, S_Q + 1, S_WR + 1, 0)
        c = sc.chain(it, c[-1])
        lastG = self.place_dma(sc, d, max(gbr + 1, c[-1] + 1), o.pacet)
        lastG = self.place_dma(sc, self.dma_items(X15, S_X + 2, "XE"), lastG + 3, o.pacet)
        nx = {}
        sc.chain(self.xa_items(S_X + 1, S_X, nx), 18)
        a, b, c_, d_ = [f"v{V_T+i}" for i in range(4)]
        adr = [f"v_lshrrev_b32 {a}, 9, v{V_L16}", f"v_lshlrev_b32 {a}, 6, {a}", f"v_add_u32 {a}, {a}, v{V_L16}", f"v_add_u32 {a}, s{S_KEY}, {a}",
               f"v_and_b32 {a}, 0xf0, {a}", f"v_and_b32 {b}, 0x300, v{V_L16}", f"v_add3_u32 v{VW}, {a}, {b}, s{S_E0}",
               f"v_and_b32 {c_}, 0x70, v{V_CPG}",
               f"v_lshrrev_b32 {a}, 3, v{V_L16}", f"v_and_b32 {a}, 0x70, {a}", f"v_add_u32 {a}, s{S_KEY}, {a}",
               f"v_and_b32 {b}, 64, {c_}", f"v_lshl_add_u32 {a}, {b}, 1, {a}", f"v_and_b32 {d_}, 16, {c_}", f"v_lshl_add_u32 {a}, {d_}, 2, {a}",
               f"v_and_b32 {a}, 0xf0, {a}", f"v_lshl_add_u32 {a}, {b}, 4, {a}", f"v_lshl_add_u32 {a}, {d_}, 5, {a}",
               f"v_bfe_u32 {b}, {c_}, 5, 1", f"v_lshl_add_u32 {a}, {b}, 3, {a}", f"v_add_u32 v{VR}, s{S_TF}, {a}"]
        sc.chain([self.S(f"s_lshl_b32 s{S_KEY}, s{S_WC64}, 1"), self.S(f"s_mul_i32 s{S_E0}, s{S_WAVE}, 7168"), self.SU(f"s_sub_u32 s{S_E0}, s{S_WR}, s{S_E0}"),
                  self.S(f"s_lshl_b32 s{S_TF}, s{S_WC64}, 4"), self.S(f"s_sub_u32 s{S_TF}, s{S_E0}, s{S_TF}")], 20, 36)
        self.stream = [self.V(x) + (40,) for x in adr]
        self.stream += [self.V(f"v_mov_b32_dpp v{V_XC[i]}, v{V_BR+i} row_newbcast:7 row_mask:0xf bank_mask:0xf") + (64,) for i in range(2)]
        self.credit = 0.0; self.xr = 0.0
        E0 = [134, 230, 326, 390]
        ear = lambda f: E0[f // 8] + 2 * (f % 8)
        self.stream += [U(f, h) + (126,) for f in range(2) for h in range(2)]
        nf = o.nft
        for f in range(nf):
            pos = ear(f)
            it = [("V" if k < 4 else "A", self.E(x)) for k, x in enumerate(self.epi_valu(f // 8, f % 8, tbf(f), None, tbf(f)))]
            if f % 8 == 0 and f: it = it[:6] + switch(VW, f // 8, "wa_") + it[6:]
            w0 = lambda f=f: wr(f)
            w0.ok = lambda f=f: wr_ok(f)
            it += [U(f + 2, 1), ("X", w0), U(f + 2, 0)]
            self.stream += [x + (pos,) for x in it]
        def pub(f, pos):
            def z():
                bar(); assert f in self.visible
            z.ready = lambda g: "skip" if f in self.visible else (f in self.written and g >= self.w_at[f] + o.zdist)
            def r0(): rdback(f, "v", CT, 0)
            def r1(): rdback(f, "v", CT, 1); self.rd_at[f] = self.gnow
            r0.ready = r1.ready = lambda g: g >= self.wpos + 2
            def wt(): self.wait(ltags=[("C", f)])
            wt.ready = lambda g: f in self.rd_at and g >= self.rd_at[f] + o.rdist
            def st(): store(f, vr(CT, 4))
            it = []
            if f % 8 == 0 and f:
                it = switch(VR, f // 8, "ra"); it[0][1].ready = lambda g: True
            it += [("Z", z), ("D", r0), ("D", r1), ("S", wt), ("R", st)]
            for k, x in it: x.pub = True
            return [x + (pos,) for x in it]
        self.stream2 = []
        for f in range(nf): self.stream2 += pub(f, E0[f // 8] + (o.spo + o.sp * (f % 8) if f < 16 else o.spo2 + o.sp2 * (f % 8)))
        self.seg_emit(sc, 0, stamp_at=58)
        self.area_next = {0}
        sc = self.seg_open("C14", [X14], None, 3, [0], X14, W14, half=1, nextnt=1); at_barrier()
        it, d = half_dma(15, 1, S_Q + 1, S_WR + 1, 1)
        c = sc.chain(it, 1)
        self.place_dma(sc, d, 17, 3)
        sc.chain(self.xa_items(S_X + 2, S_X + 1, nx), 16)
        self.wa_sched(sc, S_WR + 1, S_WR, 8, 24)
        self.seg_emit(sc, 64, stamp_at=28)
        sc = self.seg_open("F15", [X15, W15 + (0,)], None, 1, [0, 1, 2, 3, 4], X15, W15, half=lambda nt: nt >> 2, nextnt=5, maxS=1); at_barrier()
        it, d = half_dma(14, 1, S_Q, S_WR + 1, 0)
        c = sc.chain(it, 1)
        sc.g[63].append(("S", lambda: bar([W15 + (1,)])))
        self.place_dma(sc, d, 65, 4)
        sc.chain(self.xa_items(S_X + 1, S_X + 2, nx), 18)
        self.wa_sched(sc, S_WR, S_WR + 1, 20, 16 + 64 + 8)
        self.seg_emit(sc, 96, stamp_at=24)
        sc = self.seg_open("D14", [], None, 5, [2, 3, 4, 5, 6], X14, W14, half=lambda nt: 1 - (nt >> 2), nextnt=7, maxS=1, barrier=False)
        it, d = half_dma(13, 1, S_Q + 2, S_WR, 1)
        c = sc.chain(it, 1)
        def b3():
            self.area_next = {1, 3}; bar([W14 + (1,)])
        sc.g[31].append(("S", b3))
        self.place_dma(sc, d, 33, 4)
        sc.chain(self.xa_items(S_X, S_X + 1, nx), 18)
        self.wa_sched(sc, S_WR + 1, S_WR, 10, 24)
        self.wa_sched(sc, S_WR, S_WR + 1, 50, 16 + 64 + 8)
        self.seg_emit(sc, 192, stamp_at=26)
        sc = self.seg_open("B13", [W13 + (1,)], None, 7, [4, 5, 6], X13, W13, half=1, nextnt=7, maxS=1); at_barrier()
        def b4():
            self.area_next = {2}; bar()
        sc.g[31].append(("S", b4))
        sc.chain(self.xa_items(S_X + 2, S_X, nx), 18)
        self.wa_sched(sc, S_WR + 1, S_WR, 20, 16 + 32 + 8)
        self.seg_emit(sc, 288, stamp_at=24)
        sc = self.seg_open("E15", [], None, 7, [6], X15, W15, half=1, nextnt=7, maxS=1, barrier=False)
        self.seg_emit(sc, 352, stamp_at=24)
        sc = self.seg_open("FIN", [], None, 7, [], None, None, barrier=False, maxS=1)
        self.seg_emit(sc, 384, stamp_at=8)
        for k, fn, pos in self.stream:
            if k == "U": self.mfma(fn)
            else: fn()
        self.stream = []
        while self.stream2 and self.stream2[0][0] in "DSR" and not (self.stream2[0][0] == "S" and self.stream2[1][0] == "A"):
            self.stream2.pop(0)[1]()
        self.stream2 = []
        e("s_nop 7")
        todo = []
        dreg = lambda x: XF(x % 8, (x // 8) & 1)
        def publish():
            bar(every=True)
            for x in sorted(self.visible):
                if x not in self.rd_at:
                    if x // 8 != self.ra:
                        for k, fn in switch(VR, x // 8, "ra"): fn()
                    rdback(x, "a", dreg(x), 0); rdback(x, "a", dreg(x), 1); self.rd_at[x] = 0; todo.append(x)
        def drain(n):
            for _ in range(n):
                if todo:
                    x = todo.pop(0); self.wait(ltags=[("C", x)]); store(x, ar(dreg(x), 4))
        assert nf <= 24
        B7 = [V_WC[0], V_XC[0], V_WC[1], V_XC[1]]
        e(f"v_lshlrev_b32 v{B7[0]}, 16, v{B7[1]}"); e(f"v_and_b32 v{B7[1]}, s{S_MASK}, v{B7[1]}")
        e(f"v_lshlrev_b32 v{B7[2]}, 16, v{B7[3]}"); e(f"v_and_b32 v{B7[3]}, s{S_MASK}, v{B7[3]}")
        if o.fmode == 0 and self.written - set(self.rd_at): publish()
        for f in range(nf, 32):
            p, mt = f // 8, f % 8
            tb = tbf(f)
            if mt == 0:
                for k, fn in switch(VW, p, "wa_"): fn()
            for h in (1, 0):
                pf, r = ACC(mt, 2 * p + h)
                if pf == "a":
                    for i in range(4): e(f"v_accvgpr_read_b32 v{AT+i}, a{r+i}")
                    if h == 1:
                        for i in range(4): e(f"v_add_f32 v{AT+i}, v{AT+i}, v{B7[i]}")
                    r = AT
                for d2 in range(2): e(f"v_pk_mul_f32 {vr(tb+4*h+2*d2,2)}, {vr(tb+4*h+2*d2,2)}, {vr(r+2*d2,2)}")
            for d2 in range(4): e(f"v_cvt_pk_bf16_f32 v{tb+d2}, v{tb+2*d2}, v{tb+2*d2+1}")
            if o.fmode == 1:
                n0 = len(todo)
                if str(f - 24) in o.fpub and self.written - set(self.rd_at): publish()
                drain(min(n0, o.fdrain))
            if f + 2 < 32: self.mfma(U(f + 2, 1)[1])
            wr(f)
            if f + 2 < 32: self.mfma(U(f + 2, 0)[1])
            if o.fmode == 0:
                drain(o.fdrain)
                if (f - nf) % o.fgrp == o.fgrp - 1 or f == 31: publish()
        if o.fmode == 1:
            drain(32); publish()
        drain(32)
        assert self.stored == set(range(32))
        e(f"s_or_b32 s{S_TA}, s{S_J}, s{S_WAVE}"); e(f"s_cmp_lg_u32 s{S_TA}, 0"); e("s_cbranch_scc1 L_fin")
        e(f"s_add_u32 s{S_TA}, s{S_EP}, 16"); e(f"v_mov_b32 v{V_FLAG}, s{S_TA}")
        e(f"buffer_store_dword v{V_FLAG}, off, {sr(S_WS,4)}, s{S_EPOFF} sc1")
        self.label("L_fin")
        if o.diag:
            e(f"s_memtime s[{S_ST}:{S_ST+1}]"); e("s_waitcnt vmcnt(0)"); e(f"s_memtime s[{S_ST+2}:{S_ST+3}]")
            e(f"s_memrealtime s[{S_RT+2}:{S_RT+3}]"); e("s_waitcnt lgkmcnt(0)")
            e(f"v_writelane_b32 v{V_ST[0]}, s{S_ST}, 62"); e(f"v_writelane_b32 v{V_ST[1]}, s{S_ST+2}, 62")
            e(f"v_writelane_b32 v{V_ST[0]}, s{S_RT}, 61"); e(f"v_writelane_b32 v{V_ST[1]}, s{S_RT+2}, 61")
            e(f"s_lshl_b32 s{S_TA}, s2, 2"); e(f"s_add_u32 s{S_TA}, s{S_TA}, s{S_WAVE}"); e(f"s_lshl_b32 s{S_TA}, s{S_TA}, 9")
            e(f"s_add_u32 s{S_TA}, s{S_TA}, {hex(ST_OFF)}"); e("v_lshrrev_b32 v0, 2, v0")
            e(f"buffer_store_dword v{V_ST[0]}, v0, {sr(S_WS,4)}, s{S_TA} offen")
            e(f"buffer_store_dword v{V_ST[1]}, v0, {sr(S_WS,4)}, s{S_TA} offen offset:256")
            if o.echo:
                a, b = o.echo.split(",")
                if a == "pad":
                    e(f"s_add_u32 s{S_TB}, s{S_RT}, {b}")
                else:
                    reg = V_ST[0] if o.echoc else V_ST[1]
                    if a == "s": e(f"s_mov_b32 s{S_TA}, s{S_D0 if o.echoc else S_RT}")
                    else: e(f"v_readlane_b32 s{S_TA}, v{reg}, {a}")
                    if b == "e": e(f"s_mov_b32 s{S_TB}, s{S_ST+2 if o.echoc else S_RT+2}")
                    else: e(f"v_readlane_b32 s{S_TB}, v{reg}, {b}")
                    e("s_nop 4")
                    e(f"s_sub_u32 s{S_TB}, s{S_TB}, s{S_TA}")
                    if o.echoc: e(f"s_sub_u32 s{S_TB}, s{S_TB}, {o.echob}"); e(f"s_lshr_b32 s{S_TB}, s{S_TB}, {o.echos}")
                    e(f"s_min_u32 s{S_TB}, s{S_TB}, 20000")
                    e(f"s_add_u32 s{S_TB}, s{S_TB}, s{S_RT+2}")
                self.label("L_echo")
                e(f"s_memrealtime s[{S_ST}:{S_ST+1}]"); e("s_waitcnt lgkmcnt(0)")
                e(f"s_sub_u32 s{S_ST}, s{S_ST}, s{S_TB}"); e(f"s_cmp_lt_i32 s{S_ST}, 0"); e("s_cbranch_scc1 L_echo")
        e("s_endpgm")

    def sizes(self, lines):
        import subprocess, tempfile, os
        labels = set()
        for l in lines:
            m = re.search(r"(?:branch\w*|L_\w+-)\s*(\w+)", l)
        src = '.amdgcn_target "amdgcn-amd-amdhsa--gfx950"\n.text\n'
        body = []
        for l in lines:
            if l.endswith(":"): continue
            if "branch" in l: l = "s_nop 0"
            l = re.sub(r"L_\w+-L_pc(-4)?", "0x12345", l)
            body.append(l)
        with tempfile.TemporaryDirectory() as d:
            open(d + "/a.s", "w").write(src + "\n".join(body) + "\n")
            subprocess.run(["clang", "-x", "assembler", "-target", "amdgcn-amd-amdhsa", "-mcpu=gfx950", "-c", d + "/a.s", "-o", d + "/a.o"], check=True)
            dis = subprocess.run(["llvm-objdump", "-d", "--mcpu=gfx950", d + "/a.o"], capture_output=True, text=True).stdout
        sz = [4 * len(l.split(": ")[-1].split()) for l in dis.splitlines() if "//" in l]
        assert len(sz) == len(body), (len(sz), len(body))
        out = []; k = 0
        for l in lines:
            if l.endswith(":"): out.append(0)
            else: out.append(sz[k]); k += 1
        return out
    def add_hops(self, o, caps):
        sz = self.sizes(o)
        wt = []; w = 1
        for l in o:
            if l == "L_G0:": w = 13
            if l == "L_T14:": w = 2
            if l == "L_G1:": w = 19
            if l == "L_TAIL:": w = 1
            wt.append(w)
        def layout(X):
            out = ["@HOP"]; pos = X + 4; nextpage = 4096; cost = 0
            i = 0
            while i < len(o):
                if pos >= nextpage:
                    best = None; p = pos; j = i
                    while j < len(o) and p < nextpage + 56:
                        if j > 0 and o[j - 1].startswith("v_mfma"):
                            n = 0
                            while j + n < len(o) and not o[j + n].startswith("v_mfma"): n += 1
                            if best is None or n < best[0]: best = (n, j)
                        p += sz[j]; j += 1
                    tgt = best[1] if best else i
                    cost += wt[tgt] * (self.opt.hopw + 10 * min(best[0] if best else 1, 1))
                    while i < tgt:
                        out.append(o[i]); pos += sz[i]; i += 1
                    out.append("@HOP"); pos += 4
                    nextpage += 4096
                    continue
                if o[i] in ("L_G0:", "L_G1:") and self.opt.algn >= 0:
                    need = ((self.opt.algn - pos) % 64) // 4
                    k = len(out)
                    if out[-1].startswith("s_branch"):
                        out += ["s_nop 0"] * need; pos += 4 * need; need = 0
                    while need > 0:
                        while not (out[k - 1].startswith("v_mfma") and (k == len(out) or out[k].startswith("v_mfma"))):
                            k -= 1
                            if out[k] == "@HOP": cost += 1000
                        m = min(need, 3)
                        out[k:k] = ["s_nop 0"] * m; pos += 4 * m; need -= m; k -= 1
                out.append(o[i]); pos += sz[i]; i += 1
            return cost + 30 * out.count("@HOP"), X, out
        cost, self.skip, out = min((layout(X) for X in (range(0, 4096, 64) if self.opt.skip < 0 else [self.opt.skip])), key=lambda r: r[:2])
        self.hopcost = cost
        for b in caps:
            for l in b:
                out.append(l)
                if l.endswith(":") and l.startswith("CAP"): out.append("@HOP")
        n = out.count("@HOP"); k = 0; res = []
        for l in out:
            if l == "@HOP":
                res.append(f"HOP{k}:"); res.append(f"s_cbranch_execz " + (f"HOP{k+4}" if k + 4 < n else "HOPEND")); k += 1
            else: res.append(l)
        self.nhops = n
        return res

    def build(self):
        self.stored = set()
        self.prologue()
        main = self.out
        texts = {}
        def gen(kind, layer, t):
            self.out = []
            self.body(kind, layer, t)
            if kind in texts and texts[kind] != self.out:
                for a, b in zip(texts[kind], self.out):
                    if a != b: print("DIFF", kind, layer, t, a, "|", b); break
                raise RuntimeError(f"body {kind} differs at layer {layer} t {t}")
            texts[kind] = self.out
        for layer in range(3):
            for t in range(16 if layer < 2 else 13):
                if layer == 0: kind = "E0" if t == 0 else ("G0" if t < 14 else f"T{t}")
                else: kind = "H0" if t == 0 else (f"S{t}" if t < 4 else ("G1" if t < 14 else f"T{t}"))
                gen(kind, layer, t)
        self.out = []; self.tail(); texts["TAIL"] = self.out
        if self.opt.x:
            x = self.opt.x; g = []
            for l in texts["G1"]:
                if "d" in x and l.startswith("buffer_load_dwordx4"): l = "s_mov_b32 s70, 0x12345"
                if "p" in x and l.startswith("s_cbranch_scc1 SLOW"): l = "s_nop 0"
                if "p" in x and l.startswith("buffer_load_dword "): l = "s_mov_b32 s70, 0x12345"
                if "f" in x and l.startswith("buffer_store_dword "): l = "s_mov_b32 s70, 0x12345"
                if "b" in x and l == "s_barrier": l = "s_nop 0"
                if "l" in x and l.startswith("ds_read"): l = "s_mov_b32 s70, 0x12345"
                g.append(l)
            texts["G1"] = g
            if "p" in x: texts["TAIL"] = ["s_nop 0" if l.startswith("s_cbranch_scc1 SLOW") else l for l in texts["TAIL"]]
        o = texts["E0"][:]
        o += self.entry.get("G0", [])
        o += ["L_G0:"] + texts["G0"] + ["s_cbranch_scc1 L_G0"]
        o += ["L_T14:"] + texts["T14"] + texts["T15"] + texts["H0"] + texts["S1"] + texts["S2"] + texts["S3"]
        o += self.entry.get("G1", [])
        o += ["L_G1:"] + texts["G1"] + ["s_cbranch_scc1 L_G1"]
        o += [f"s_cmp_eq_u32 s{S_LAYER}, 1", "s_cbranch_scc1 L_T14"]
        o += ["L_TAIL:"] + texts["TAIL"]
        caps = [b for k, b in self.ool.items() if k.startswith("CAP")]
        slow = [b for k, b in self.ool.items() if not k.startswith("CAP")]
        if self.opt.hops:
            o = self.add_hops(o, caps)
            o = main + ["s_branch L_main"] + sum(slow, []) + [".p2align 12"] + ([f".fill {self.skip//4}, 4, 0xbf800000"] if self.skip else []) + ["L_main:"] + o
        else:
            o = main + o + sum(caps, []) + sum(slow, [])
        self.texts = texts
        hdr = open("standalone__dcn_v2_cross__recsys.s.ref").read().split("\n")
        top = [l for l in hdr if l.startswith(";") and "@launch" not in l]
        if self.opt.diag: top.append("; STAMPS " + ("RT " if self.opt.diagrt else "CY ") + " ".join(self.stamps))
        txt = "\n".join(top) + f"\n; @launch grid=(256,1,1) block=(256,1,1) lds={SLOT*5}\n"
        txt += f""".amdgcn_target "amdgcn-amd-amdhsa--gfx950"
.text
.globl {NAME}
.p2align 8
.type {NAME},@function
{NAME}:
"""
        txt += "\n".join(o) + "\nL_codeend:\n"
        txt += f""".section .rodata,"a"
.p2align 6
.amdhsa_kernel {NAME}
  .amdhsa_next_free_vgpr 512
  .amdhsa_next_free_sgpr 102
  .amdhsa_accum_offset 256
  .amdhsa_group_segment_fixed_size 0
  .amdhsa_kernarg_size 48
  .amdhsa_user_sgpr_count 2
  .amdhsa_user_sgpr_kernarg_segment_ptr 1
  .amdhsa_system_sgpr_workgroup_id_x 1
  .amdhsa_float_denorm_mode_32 3
.end_amdhsa_kernel
"""
        return txt

if __name__ == "__main__":
    ap = argparse.ArgumentParser()
    ap.add_argument("-o", default="k3.s")
    ap.add_argument("--diag", action="store_true")
    ap.add_argument("--diagrt", action="store_true")
    ap.add_argument("--diagc", action="store_true")
    ap.add_argument("--pace", type=float, default=7)
    ap.add_argument("--pacex", type=float, default=7.5)
    ap.add_argument("--paceh", type=float, default=8)
    ap.add_argument("--pacet", type=float, default=3.3)
    ap.add_argument("--xr15", type=float, default=0.04)
    ap.add_argument("--xr0", type=float, default=-1)
    ap.add_argument("--xrt", type=float, default=0.0)
    ap.add_argument("--flag0", type=int, default=0)
    ap.add_argument("--early", type=int, default=10)
    ap.add_argument("--direct", default="8444")
    ap.add_argument("--cpos", default="222")
    ap.add_argument("--asc", type=int, default=1)
    ap.add_argument("--xtouch", type=int, default=0)
    ap.add_argument("--tpf", type=int, default=0)
    ap.add_argument("--hops", type=int, default=1)
    ap.add_argument("--h0sp", type=int, default=1)
    ap.add_argument("--xd3", type=int, default=1)
    ap.add_argument("--e0pre", type=int, default=10)
    ap.add_argument("--cap4", type=int, default=1)
    ap.add_argument("--fpos", type=int, default=45)
    ap.add_argument("--echos", type=int, default=4)
    ap.add_argument("--echob", type=int, default=0)
    ap.add_argument("--skip", type=int, default=-1)
    ap.add_argument("--hopw", type=int, default=10)
    ap.add_argument("--fmode", type=int, default=0)
    ap.add_argument("--fpub", default="01234567")
    ap.add_argument("--xbpos", type=int, default=12)
    ap.add_argument("--snake", type=int, default=1)
    ap.add_argument("--wpos", type=int, default=1)
    ap.add_argument("--diag2", action="store_true")
    ap.add_argument("--pace0", type=float, default=7)
    ap.add_argument("--pacex0", type=float, default=7.5)
    ap.add_argument("--xrot", type=int, default=0)
    ap.add_argument("--b0pre", type=int, default=4)
    ap.add_argument("--xsp", type=float, default=1.2)
    ap.add_argument("--xso", type=float, default=3.0)
    ap.add_argument("--gw", type=int, default=14)
    ap.add_argument("--xkeep", type=lambda x: [int(y) for y in x.split(",")], default=[])
    ap.add_argument("--entry", type=int, default=1)
    ap.add_argument("--finit", type=int, default=1)
    ap.add_argument("--stx", type=int, default=0)
    ap.add_argument("--stpos", type=int, default=0)
    ap.add_argument("--fdrop", type=int, default=1)
    ap.add_argument("--pollpos", type=int, default=58)
    ap.add_argument("--wpf", type=int, default=0)
    ap.add_argument("--wpd", type=int, default=2)
    ap.add_argument("--algn", type=int, default=16)
    ap.add_argument("--tsplit", type=int, default=0)
    ap.add_argument("--touch", type=int, default=2)
    ap.add_argument("--prex", type=int, default=0)
    ap.add_argument("--zdist", type=int, default=5)
    ap.add_argument("--rdist", type=int, default=8)
    ap.add_argument("--wl2", type=int, default=0)
    ap.add_argument("--echo", default="")
    ap.add_argument("--echoc", type=int, default=0)
    ap.add_argument("--x0f", default="nt")
    ap.add_argument("--e1out", type=int, default=1)
    ap.add_argument("--wwarm", type=int, default=1)
    ap.add_argument("--w0warm", type=int, default=0)
    ap.add_argument("-x", default="")
    ap.add_argument("--wr128", type=int, default=0)
    ap.add_argument("--nft", type=int, default=24)
    ap.add_argument("--sp", type=float, default=10)
    ap.add_argument("--spo", type=float, default=22)
    ap.add_argument("--sp2", type=float, default=9)
    ap.add_argument("--spo2", type=float, default=16)
    ap.add_argument("--xrb", type=float, default=0.0)
    ap.add_argument("--fdrain", type=int, default=1)
    ap.add_argument("--fgrp", type=int, default=3)
    ap.add_argument("--outf", default="sc1")
    opt = ap.parse_args()
    if opt.diagrt: opt.diag = True
    SNAKE = bool(opt.snake)
    if opt.xr0 < 0:
        opt.xr0 = 0.0
        while True:
            try:
                g = G(opt); txt = g.build(); break
            except AssertionError as ex:
                if not (ex.args and (ex.args[0] == "stream left" or ex.args[0][0] == "deadline")): raise
                opt.xr0 += 0.01
                if opt.xr0 > 1: raise
    else:
        g = G(opt); txt = g.build()
    open(opt.o, "w").write(txt)
    print(f"xr0 {opt.xr0:.2f} skip {getattr(g,'skip',0)} hopcost {getattr(g,'hopcost',0)} nhops {getattr(g,'nhops',0)} fallback waits:", g.warn, {k: len(v) for k, v in g.texts.items()})
```

```python
import sys, re, argparse

NAME = "standalone__dcn_v2_cross__recsys_kernel"
SLOT = 32768
FL_OFF = 64 << 20
EP_OFF = FL_OFF + 65536
ST_OFF = 80 << 20

def vr(b, n=1, p="v"):
    return f"{p}{b}" if n == 1 else f"{p}[{b}:{b+n-1}]"
def ar(b, n=1): return vr(b, n, "a")
def sr(b, n=1): return vr(b, n, "s")

def XF(mt, s): return (mt * 2 + s) * 4
def WF(buf, s): return 64 + buf * 8 + s * 4
def X0(p, mt): return 80 + (p * 8 + mt) * 4
def SEL(h): return 208 + 4 * h
ACC_A0 = 216
ACC_V0 = 40
_acc = {}
def _init_acc():
    va, aa = ACC_V0, ACC_A0
    for nt in range(8):
        for mt in range(8):
            if nt == 7 or (nt == 6 and mt < 2):
                _acc[(mt, nt)] = ("a", aa); aa += 4
            else:
                _acc[(mt, nt)] = ("v", va); va += 4
    assert va == 256 and aa == 256
_init_acc()
def ACC(mt, nt): return _acc[(mt, nt)]

V_L16 = 0; V_XA = [1, 2]; V_WA = [3, 4]; V_WC = [5, 6]; V_XC = [7, 8]; V_CPG = 15; V_CPL = 9
V_POLL = 10; V_FLAG = 11; V_B = 12; V_ST = [13, 14]; V_T = 16; V_XT = 30; V_CAP = 36; V_WT = 37; V_BR = 38
S_DW = 4; S_TR = 5; S_E0 = 6; S_KEY = 7
S_W = 8; S_X0 = 12; S_WS = 16; S_OUT = 20; S_B = 24
S_WT = 28; S_XT = 32
S_X = 36
S_WR = 39
S_Q = 41
S_WCUR = 44; S_WL = 45; S_XB = 46; S_FB = 47; S_FOWN = 48; S_EP = 49; S_NEED = 50; S_FV = 51; S_WLM = 52
S_PA = 53; S_J = 54; S_WAVE = 55; S_RB = 56; S_LOOP = 57; S_LAYER = 58; S_ADJ = 59; S_OADJ = 60; S_WC64 = 61
S_M4 = 62; S_MASK = 65; S_EPOFF = 66; S_CNT = 67; S_CAPJ = 68; S_BOFF = 69
S_TA = 70; S_TB = 71; S_TC = 72; S_TD = 73; S_TE = 74; S_TF = 75; S_O2 = 76; S_O3 = 77; S_WR14 = 78; S_DX = 79
S_PC = 80; S_ST = 82; S_RT = 86; S_SI = 90; S_LEND = 91; S_D0 = 92
S_FQ = 96
S_TG = 99; S_TH = 100; S_M7 = 101; S_XCUR = 3; S_XTO = 28

RANK = {"S": 0, "G": 1, "D": 2, "V": 3}

class Sched:
    def __init__(self, n, maxS=3):
        self.n = n
        self.g = [[] for _ in range(n)]
        self.closedS = set()
        self.maxS = maxS
    def fits(self, g, kind):
        kinds = [k for k, _ in self.g[g]]
        if kind == "G": return len(kinds) == 0
        if "G" in kinds: return False
        nvec = sum(k in "DV" for k in kinds)
        if kind == "S":
            if g in self.closedS or kinds.count("S") >= self.maxS: return False
            return len(kinds) < 3
        return nvec < 2 and len(kinds) < 3
    def put(self, g, kind, fn): self.g[g].append((kind, fn))
    def place(self, kind, fn, lo, hi=None):
        hi = self.n - 1 if hi is None else hi
        for g in range(lo, hi + 1):
            if self.fits(g, kind):
                self.put(g, kind, fn); return g
        raise RuntimeError(f"cannot place {kind} in [{lo},{hi}]")
    def chain(self, items, lo, hi=None):
        out = []; g = lo; pk = None
        for kind, fn in items:
            if pk is not None and (RANK[kind] < RANK[pk] or kind == "G" or pk == "G"): g += 1
            g = self.place(kind, fn, g, hi)
            out.append(g); pk = kind
        return out
    def branch(self, cmpfn, brfn, lo):
        for g in range(lo, self.n - 1):
            if self.fits(g, "S") and self.fits(g + 1, "G"):
                self.put(g, "S", cmpfn); self.closedS.add(g); self.put(g + 1, "G", brfn); return g + 1
        raise RuntimeError("branch")
    def last_su(self):
        last = 0
        for g in range(self.n):
            if any(getattr(f, "su", False) for _, f in self.g[g]): last = g
        return last + 1

def mt_off(mt):
    if mt == 0: return "0", 0
    if mt < 4: return f"s{S_XT+mt}", (mt & 1) * 2048
    return f"s{[S_M4, S_M4+1, S_M4+2, S_M7][mt-4]}", 0

SNAKE = True
def blk(nt, cinit=False):
    r = []
    for mt in range(8):
        ss = (0, 1) if (mt % 2 == 0 and SNAKE) else (1, 0)
        r += [(mt, nt, ss[0], cinit), (mt, nt, ss[1], False)]
    return r

class G:
    def __init__(self, opt):
        self.opt = opt
        self.out = []
        self.vq = []; self.lq = []
        self.ool = {}
        self.slot = {}
        self.lds_own = {}
        self.xa = None; self.wa = None
        self.warn = 0
        self.stamps = []
        self.stream = []; self.stream2 = []; self.entry = {}
        self.pending = None
    def e(self, s): self.out.append(s)
    def E(self, s): return lambda: self.e(s)
    def S(self, s): return ("S", self.E(s))
    def V(self, s): return ("V", self.E(s))
    def SU(self, s, then=None):
        def f():
            self.e(s)
            if then: then()
        f.su = True
        return ("S", f)
    def label(self, n): self.out.append(n + ":")
    def vm(self, s, tag=None):
        self.e(s); self.vq.append(tag); assert len(self.vq) <= 62
    def VM(self, s, tag=None): return ("G", lambda: self.vm(s, tag))
    def lds(self, s, tag=None):
        self.e(s); self.lq.append(tag)
    def _need(self, q, tags, mx, force=None):
        idx = -1
        for i, t in enumerate(q):
            if t in tags: idx = i
        if idx < 0 and force is None: return None
        n = len(q) - 1 - idx
        if force is not None:
            assert n >= force or idx < 0, (n, force, q)
            n = force
        n = min(n, mx)
        if len(q) > n: del q[:len(q) - n]
        return n
    def wait(self, vtags=(), ltags=(), lall=False, vforce=None):
        parts = []
        n = self._need(self.vq, set(vtags), 62, vforce)
        if n is not None: parts.append(f"vmcnt({n})")
        if lall:
            parts.append("lgkmcnt(0)"); self.lq = []
        else:
            n = self._need(self.lq, set(ltags), 14)
            if n is not None: parts.append(f"lgkmcnt({n})")
        if parts: self.e("s_waitcnt " + " ".join(parts))
    def smov(self, d, s):
        def f():
            self.e(f"s_mov_b32 s{d}, s{s}"); self.slot[d] = self.slot[s]
        return ("S", f)

    def mfma(self, m):
        if m[0] == "U":
            _, p, mt, h, tb = m
            self.e(f"v_mfma_f32_16x16x32_bf16 {vr(tb+4*h,4)}, {ar(SEL(h),4)}, {ar(X0(p,mt),4)}, 0")
            return
        mt, nt, s, cinit = m
        buf = nt & 1
        tags = {("XF", mt, s), ("WF", buf, s, 0), ("WF", buf, s, 1)}
        if tags & set(self.lq):
            self.warn += 1
            self.wait(ltags=tags)
        p, r = ACC(mt, nt)
        c = vr(r, 4, p)
        if cinit and p == "v" and mt != 7: c = vr(ACC(7, nt)[1], 4)
        self.e(f"v_mfma_f32_16x16x32_bf16 {vr(r,4,p)}, {ar(WF(buf,s),4)}, {ar(XF(mt,s),4)}, {c}")
    def rd_xf(self, mt, s, want):
        def f():
            assert self.lds_own[self.xa] == want, (self.lds_own[self.xa], want)
            self.lds(f"ds_read_b128 {ar(XF(mt,s),4)}, v{V_XA[s]} offset:{mt*2048}", ("XF", mt, s))
        return f
    def rd_wf(self, nt, s, u, want, half=None):
        p, h = nt >> 1, nt & 1
        if callable(half): half = half(nt)
        off = (p >> 1 if half is None else half) * 16384 + (p & 1) * 512 + s * 8192 + u * 4096
        def f():
            if half is None: assert self.lds_own[self.wa[h]] == want, (self.lds_own[self.wa[h]], want)
            else:
                assert self.lds_half[(self.wa[h], half)] == want + (p >> 1,), (self.lds_half, self.wa[h], half, want, nt)
                assert want + (p >> 1,) in self.landed
            self.lds(f"ds_read_b64_tr_b16 {ar(WF(h,s)+2*u,2)}, v{V_WA[h]} offset:{off}", ("WF", h, s, u))
        return f
    def dma_items(self, what, sdst, form):
        items = []
        if form == "X0" and self.opt.xrot:
            RM = [S_O2, S_O3, S_Q + 1, S_Q + 2]; RS = [S_WLM, S_KEY, S_TG, S_TH]
            for k in range(4):
                items.append(self.SU(f"s_add_u32 m0, s{sdst}, s{RM[k]}", lambda: self.lds_own.__setitem__(self.slot[sdst], what)))
                for i in range(2):
                    items.append(self.VM(f"buffer_load_dwordx4 v{V_XC[i]}, {sr(S_X0,4)}, s{RS[k]} offen" + (" offset:1024" if i else "") + f" {self.opt.x0f} lds", what))
            return items
        for i in range(8):
            if i == 0: items.append(self.SU(f"s_mov_b32 m0, s{sdst}", lambda: self.lds_own.__setitem__(self.slot[sdst], what)))
            if i == 4:
                def chk(): assert self.lds_own[self.slot[sdst]] == what
                items.append(self.SU(f"s_add_u32 m0, s{sdst}, 0x1000", chk))
            off = f" offset:{(i&3)*1024}" if i & 3 else ""
            if form == "W":
                so = "0" if i < 2 else f"s{S_WT+(i>>1)}"
                s = f"buffer_load_dwordx4 v{V_WC[i&1]}, {sr(S_W,4)}, {so} offen{off} lds"
            elif form == "X0":
                so = "0" if i < 2 else f"s{S_XT+(i>>1)}"
                s = f"buffer_load_dwordx4 v{V_XC[i&1]}, {sr(S_X0,4)}, {so} offen{off} {self.opt.x0f} lds"
            else:
                so = "0" if i < 2 else f"s{S_XT+(i>>1)}"
                s = f"buffer_load_dwordx4 v{V_XC[i&1]}, {sr(S_X0,4)}, {so} offen{off} sc1 lds"
            items.append(self.VM(s, what))
        return items
    def place_dma(self, sc, items, lo, pace):
        g = lo; prev = -1; pend = None
        for kind, fn in items:
            if kind == "S": pend = fn; continue
            g0 = max(int(g), prev + 1)
            if pend is not None:
                gs = sc.place("S", pend, max(prev + 1, g0 - 2, 0)); g0 = max(g0, gs + 1); pend = None
            prev = sc.place("G", fn, g0)
            g += pace
        return prev
    def w_setup(self, tidreg, base):
        return [self.S(f"s_lshl_b32 s{S_TA}, s{tidreg}, 17"), self.S(f"s_add_u32 s{S_TA}, s{S_TA}, s{base}"),
                self.S(f"s_sub_u32 s{S_TB}, s{S_TA}, s{S_WCUR}"), self.S(f"s_mov_b32 s{S_WCUR}, s{S_TA}"),
                self.V(f"v_add_u32 v{V_WC[0]}, s{S_TB}, v{V_WC[0]}"), self.V(f"v_add_u32 v{V_WC[1]}, s{S_TB}, v{V_WC[1]}")]
    def x_setup(self, tidreg):
        return [self.S(f"s_lshl_b32 s{S_TE}, s{tidreg}, 7"), self.S(f"s_sub_u32 s{S_DX}, s{S_TE}, s{S_XCUR}"), self.S(f"s_mov_b32 s{S_XCUR}, s{S_TE}"),
                self.V(f"v_add_u32 v{V_XC[0]}, s{S_DX}, v{V_XC[0]}"), self.V(f"v_add_u32 v{V_XC[1]}, s{S_DX}, v{V_XC[1]}")]
    def flag_items(self):
        return [self.V(f"v_mov_b32 v{V_FLAG}, s{S_FV}"),
                self.VM(f"buffer_store_dword v{V_FLAG}, off, {sr(S_WS,4)}, s{S_FOWN} sc1", "F"),
                self.S(f"s_add_u32 s{S_FV}, s{S_FV}, 1")]
    def poll_check(self, sc, name, tag, lo):
        sl, bk = f"SLOW_{name}", f"BACK_{name}"
        def f0():
            assert tag not in self.vq
            self.e(f"v_readfirstlane_b32 s{S_TC}, v{V_POLL}")
        c = sc.chain([self.S(f"s_and_b32 s{S_TD}, s{S_Q+1}, 3"), self.S(f"s_add_u32 s{S_TD}, s{S_TD}, s{S_NEED}"),
                      ("V", f0), self.S(f"s_sub_u32 s{S_TC}, s{S_TC}, s{S_TD}")], lo)
        def br():
            self.e(f"s_cbranch_scc1 {sl}"); self.label(bk)
        gbr = sc.branch(self.E(f"s_cmp_gt_u32 s{S_TC}, 7"), br, c[-1])
        self.ool[sl] = [f"{sl}:",
                        f"buffer_load_dword v{V_POLL}, off, {sr(S_WS,4)}, s{S_PA} sc1", "s_waitcnt vmcnt(0)",
                        f"v_readfirstlane_b32 s{S_TC}, v{V_POLL}", f"s_cmp_eq_u32 s{S_CNT}, 0", f"s_cbranch_scc1 {bk}",
                        f"s_sub_u32 s{S_CNT}, s{S_CNT}, 1",
                        f"s_sub_u32 s{S_TC}, s{S_TC}, s{S_TD}", f"s_cmp_gt_u32 s{S_TC}, 7", f"s_cbranch_scc0 {bk}",
                        "s_sleep 1", f"s_branch {sl}"]
        return gbr
    def stamp(self, which):
        if self.opt.diagrt:
            if which == 1:
                self.e(f"s_memtime s[{S_ST}:{S_ST+1}]"); self.e(f"s_memrealtime s[{S_ST+2}:{S_ST+3}]")
            return
        self.e(f"s_memtime s[{S_ST+2*which}:{S_ST+2*which+1}]")
    def stamp_items(self):
        def f():
            self.e(f"s_lshl_b64 exec, 1, s{S_SI}"); self.e(f"v_mov_b32 v{V_ST[0]}, s{S_ST}"); self.e(f"v_mov_b32 v{V_ST[1]}, s{S_ST+2}")
            self.e("s_mov_b64 exec, -1"); self.e(f"s_add_u32 s{S_SI}, s{S_SI}, 1")
        return [("G", f)]
    def epi_valu(self, p, mt, tb, at, ob):
        ops = []
        for h in range(2):
            pf, r = ACC(mt, 2 * p + h)
            if pf == "a":
                for i in range(4): ops.append(f"v_accvgpr_read_b32 v{at+i}, a{r+i}")
                r = at
            for i in range(4): ops.append(f"v_mul_f32 v{tb+4*h+i}, v{tb+4*h+i}, v{r+i}")
        for d in range(4): ops.append(f"v_cvt_pk_bf16_f32 v{ob+d}, v{tb+2*d}, v{tb+2*d+1}")
        return ops
    def bunpack(self, nt, d):
        dpp = f"row_newbcast:{nt} row_mask:0xf bank_mask:0xf"
        return [f"v_mov_b32_dpp v{d[1]}, v{V_BR} {dpp}", f"v_mov_b32_dpp v{d[3]}, v{V_BR+1} {dpp}",
                f"v_lshlrev_b32 v{d[0]}, 16, v{d[1]}", f"v_and_b32 v{d[1]}, s{S_MASK}, v{d[1]}",
                f"v_lshlrev_b32 v{d[2]}, 16, v{d[3]}", f"v_and_b32 v{d[3]}, s{S_MASK}, v{d[3]}"]
    def bias_sched(self, sc, nt, g, busy, a0):
        f = [V_T + 16 + i for i in range(4)]
        g = sc.chain([self.V(x) for x in self.bunpack(nt, f)], g)[-1]
        ops = []
        for mt in range(8):
            pf, a = ACC(mt, nt)
            if pf == "v":
                ops += [f"v_add_f32 v{a+i}, v{a+i}, v{f[i]}" for i in range(4)]
            else:
                for i in (0, 2):
                    ops += [f"v_accvgpr_read_b32 v{a0}, a{a+i}", f"v_accvgpr_read_b32 v{a0+1}, a{a+i+1}",
                            f"v_add_f32 v{a0}, v{a0}, v{f[i]}", f"v_add_f32 v{a0+1}, v{a0+1}, v{f[i+1]}",
                            f"v_accvgpr_write_b32 a{a+i}, v{a0}", f"v_accvgpr_write_b32 a{a+i+1}, v{a0+1}"]
        b0, b1 = busy
        est = g + len(ops) // 2 + len(ops) // 3 + 4
        if est < b0 - 2: lo, hi = g, b0 - 2
        else: lo, hi = max(g, b1 + 6), sc.n - 1
        return sc.chain([self.V(x) for x in ops], lo, hi)[-1]
    def bias0_ops(self, nt):
        d = ACC(7, nt)[1]
        return self.bunpack(nt, [d, d + 1, d + 2, d + 3]) + [f"v_add_f32 v{d+i}, 1.0, v{d+i}" for i in range(4)]

    def prologue(self):
        e = self.e; o = self.opt
        e("s_cmp_lt_u32 s2, 256"); e("s_cbranch_scc1 L_go"); e("s_endpgm")
        self.label("L_go")
        for r, off in ((S_X0, 0), (S_W, 8), (S_B, 16), (S_OUT, 24), (S_WS, 40)):
            e(f"s_load_dwordx2 s[{r}:{r+1}], s[0:1], {off}")
        if o.diag:
            e(f"s_memrealtime s[{S_RT}:{S_RT+1}]"); e(f"s_memtime s[{S_D0}:{S_D0+1}]")
        nst = [0]
        def pst():
            if not o.diag2: return
            e(f"s_memtime s[{S_D0+2}:{S_D0+3}]"); e("s_waitcnt lgkmcnt(0)"); e(f"v_writelane_b32 v{V_ST[0]}, s{S_D0+2}, {52+nst[0]}"); nst[0] += 1
        T = 40
        lane, m, q, r4, c4, q1, tw, t0, t1, t2 = [f"v{T+i}" for i in range(10)]
        e(f"s_getpc_b64 s[{S_PC}:{S_PC+1}]")
        self.label("L_pc")
        e(f"v_lshrrev_b32 {t0}, 6, v0")
        e("s_lshr_b32 s3, s2, 3")
        e(f"v_readfirstlane_b32 s{S_WAVE}, {t0}")
        e("v_lshrrev_b32 v16, 4, v0")
        e("v_lshl_add_u32 v16, s3, 4, v16")
        e("v_lshlrev_b32 v16, 7, v16")
        e(f"v_min_u32 v31, L_codeend-L_pc-4, v16")
        self.vm(f"global_load_dword v{V_POLL}, v31, s[{S_PC}:{S_PC+1}]", "PF")
        e(f"s_and_b32 s{S_RB}, s2, 7"); e(f"s_lshr_b32 s{S_TC}, s2, 5"); e(f"s_lshl3_add_u32 s{S_RB}, s{S_RB}, s{S_TC}")
        e(f"v_bfe_u32 {t1}, v0, 3, 3"); e(f"v_and_b32 {t2}, 7, v0"); e(f"v_bfe_u32 {q}, v0, 4, 2")
        e(f"v_xor_b32 {t0}, {t2}, {q}"); e(f"v_lshlrev_b32 {t0}, 4, {t0}"); e(f"v_lshl_add_u32 {t0}, {t1}, 11, {t0}")
        e(f"s_lshl2_add_u32 s{S_PA}, s{S_RB}, s{S_WAVE}"); e(f"s_lshl_b32 s{S_PA}, s{S_PA}, 17")
        e(f"v_add_u32 v{V_XC[0]}, s{S_PA}, {t0}")
        e(f"v_xor_b32 v{V_XC[1]}, 64, v{V_XC[0]}"); e(f"v_add_u32 v{V_XC[1]}, {16384-1024}, v{V_XC[1]}")
        e(f"s_lshl_b32 s{S_X}, s{S_WAVE}, 13"); self.slot[S_X] = 0
        e(f"s_mov_b32 s{S_X0+2}, {16384*1024*2}"); e(f"s_mov_b32 s{S_X0+3}, 0x20000")
        e(f"s_and_b32 s{S_J}, s3, 3")
        for k in range(1, 4): e(f"s_mov_b32 s{S_XT+k}, {k*32768 - (k&1)*2048}")
        if o.xrot:
            for k, (rm, rs) in enumerate(zip([S_O2, S_O3, S_Q + 1, S_Q + 2], [S_WLM, S_KEY, S_TG, S_TH])):
                e(f"s_add_u32 s{rm}, s{S_J}, {k}"); e(f"s_and_b32 s{rm}, s{rm}, 3"); e(f"s_lshl_b32 s{rs}, s{rm}, 15"); e(f"s_lshl_b32 s{rm}, s{rm}, 11")
        e(f"v_bfe_u32 {r4}, v0, 2, 2")
        e(f"s_lshl_b32 s{S_CNT}, s{S_TC}, 15"); e(f"s_add_u32 s{S_CNT}, s{S_CNT}, s{S_X}")
        e(f"s_lshl_b32 s{S_BOFF}, s{S_J}, 9"); e(f"s_add_u32 s{S_CNT}, s{S_CNT}, s{S_BOFF}")
        e(f"v_lshlrev_b32 {tw}, 7, {r4}"); e(f"v_lshl_add_u32 {tw}, {q}, 11, {tw}")
        e(f"s_mov_b32 s{S_W+2}, {3*1024*1024*2}"); e(f"s_mov_b32 s{S_W+3}, 0x20000")
        xit = self.dma_items(("X", 0, 0), S_X, "X0")
        xit[0][1](); xit = xit[1:]
        if o.diag: e(f"v_mov_b32 v{V_ST[0]}, 0"); e(f"v_mov_b32 v{V_ST[1]}, 0")
        e("s_waitcnt lgkmcnt(0)")
        if o.diag: e(f"s_memtime s[{S_ST}:{S_ST+1}]")
        def run(items):
            for k, f in items:
                f()
                if k == "S": e("s_nop 0")
        def wtouch(): self.vm(f"buffer_load_dword v{V_POLL}, {tw}, {sr(S_W,4)}, s{S_CNT} offen", "PF")
        if o.touch == 1: wtouch()
        run(xit)
        if o.touch == 2: wtouch()
        e(f"s_mov_b32 s{S_B+2}, {3*1024*2}"); e(f"s_mov_b32 s{S_B+3}, 0x20000")
        self.vm(f"buffer_load_dword v{V_POLL}, {tw}, {sr(S_B,4)}, s{S_BOFF} offen", "PF")
        pst()
        e(f"s_lshl_b32 s{S_EPOFF}, s{S_RB}, 7"); e(f"s_add_u32 s{S_EPOFF}, s{S_EPOFF}, {hex(EP_OFF)}")
        if not o.diag2: e(f"s_load_dword s{S_EP}, s[{S_WS}:{S_WS+1}], s{S_EPOFF}")
        e(f"v_and_b32 {lane}, 63, v0"); e(f"v_and_b32 {m}, 15, v0"); e(f"v_and_b32 {c4}, 3, v0"); e(f"v_and_b32 {q1}, 1, {q}")
        for r, sl in ((S_X + 1, 2), (S_X + 2, 4), (S_WR, 1), (S_WR + 1, 3)):
            e(f"s_add_u32 s{r}, s{S_X}, {hex(sl*SLOT)}"); self.slot[r] = sl
        e(f"v_lshlrev_b32 v{V_L16}, 4, {lane}")
        e(f"s_lshr_b32 s{S_TA}, s{S_WAVE}, 1"); e(f"s_and_b32 s{S_TB}, s{S_WAVE}, 1")
        for k in range(1, 4): e(f"s_mov_b32 s{S_WT+k}, {(16*(k&1) + 4*(k>>1))*2048 - (k&1)*2048}")
        e(f"s_lshl_b32 s{S_WC64}, s{S_TB}, 6"); e(f"s_add_u32 s{S_PA}, s{S_BOFF}, s{S_WC64}")
        e(f"v_lshlrev_b32 {t0}, 3, {q}"); e(f"v_add_u32 v{V_B}, s{S_PA}, {t0}")
        e(f"v_bfe_u32 {t0}, {lane}, 1, 2"); e(f"v_lshl_add_u32 v{V_B}, {t0}, 7, v{V_B}"); e(f"v_and_b32 {t0}, 1, {lane}"); e(f"v_lshl_add_u32 v{V_B}, {t0}, 5, v{V_B}")
        e(f"s_lshl_b32 s{S_PA}, s{S_TA}, 8"); e(f"s_add_u32 s{S_PA}, s{S_PA}, s{S_BOFF}")
        e(f"s_lshl_b32 s{S_FV}, s{S_TB}, 16"); e(f"s_add_u32 s{S_PA}, s{S_PA}, s{S_FV}")
        e(f"v_lshlrev_b32 {t0}, 4, {c4}"); e(f"v_lshl_add_u32 {t0}, {q}, 6, {t0}"); e(f"v_lshl_add_u32 {t0}, {r4}, 11, {t0}")
        e(f"v_add_u32 v{V_WC[0]}, s{S_PA}, {t0}")
        e(f"v_xor_b32 v{V_WC[1]}, 32, v{V_WC[0]}"); e(f"v_add_u32 v{V_WC[1]}, {16384-1024}, v{V_WC[1]}")
        def w0():
            self.vm(f"buffer_load_dwordx2 {vr(V_BR,2)}, v{V_B}, {sr(S_B,4)}, 0 offen", ("B", 0))
            run(self.dma_items(("W", 0, 0), S_WR, "W"))
            pst()
        if o.wpos == 0: w0()
        e(f"s_mov_b32 s{S_OUT+2}, {16384*1024*2}"); e(f"s_mov_b32 s{S_OUT+3}, 0x20000")
        e(f"s_mov_b32 s{S_WS+2}, 0x10000000"); e(f"s_mov_b32 s{S_WS+3}, 0x20000")
        e(f"s_lshl_b32 s{S_FB}, s{S_RB}, 9"); e(f"s_add_u32 s{S_FB}, s{S_FB}, {hex(FL_OFF)}")
        e(f"v_lshrrev_b32 {t0}, 1, {m}"); e(f"v_xor_b32 {t0}, {q}, {t0}"); e(f"v_lshlrev_b32 {t0}, 4, {t0}"); e(f"v_lshl_add_u32 {t0}, {m}, 7, {t0}")
        e(f"s_lshl_b32 s{S_WR14}, s{S_TA}, 14")
        e(f"v_add_u32 v{V_XA[0]}, s{S_WR14}, {t0}"); e(f"v_xor_b32 v{V_XA[1]}, 64, v{V_XA[0]}")
        self.xa = 0
        e(f"v_lshlrev_b32 {t0}, 10, {q}"); e(f"v_lshl_add_u32 {t0}, {r4}, 6, {t0}"); e(f"v_lshl_add_u32 {t0}, {q1}, 5, {t0}"); e(f"v_lshl_add_u32 {t0}, {c4}, 3, {t0}")
        e(f"s_lshl_b32 s{S_PA}, s{S_TB}, 8"); e(f"s_add_u32 s{S_PA}, s{S_PA}, {SLOT}")
        e(f"v_add_u32 v{V_WA[0]}, s{S_PA}, {t0}")
        e(f"v_xor_b32 v{V_WA[1]}, 32, v{V_WA[0]}")
        self.wa = [1, 1]
        e(f"v_and_b32 {t1}, 1, {m}"); e(f"v_lshlrev_b32 {t1}, 4, {t1}"); e(f"v_mov_b32 {t2}, 0x3f80"); e(f"v_lshlrev_b32 {t1}, {t1}, {t2}")
        e(f"v_lshlrev_b32 {t2}, 3, {q}"); e(f"v_sub_u32 {t2}, {m}, {t2}"); e(f"v_ashrrev_i32 {t2}, 1, {t2}")
        misc = [f"s_mov_b32 s{S_M4}, 0x20000", f"s_mov_b32 s{S_M4+1}, 0x28000", f"s_mov_b32 s{S_M4+2}, 0x30000", f"s_mov_b32 s{S_MASK}, 0xffff0000",
                f"s_mov_b32 s{S_WL}, 0", f"s_mov_b32 s{S_Q}, 1", f"s_mov_b32 s{S_M7}, 0x38000",
                f"s_lshl_b32 s{S_FOWN}, s{S_J}, 7", f"s_add_u32 s{S_FOWN}, s{S_FOWN}, s{S_FB}", f"s_mul_i32 s{S_OADJ}, s{S_TB}, 7168",
                f"s_mov_b32 s{S_ADJ}, 8192", f"s_mov_b32 s{S_LAYER}, 0", f"s_mov_b32 s{S_CAPJ}, s{S_J}", f"s_mov_b32 s{S_LOOP}, 1",
                f"s_mov_b32 s{S_WCUR}, 0", f"s_mov_b32 s{S_LEND}, 15"]
        for h in range(2):
            for d in range(4):
                e(f"v_cmp_eq_u32 vcc, {d - 8*h}, {t2}"); e(misc.pop(0)); e(misc.pop(0))
                e(f"v_cndmask_b32 {t0}, 0, {t1}, vcc"); e(f"v_accvgpr_write_b32 a{SEL(h)+d}, {t0}")
        for d in range(3):
            e(f"s_cmp_ge_u32 {d}, s{S_J}"); e(f"s_cselect_b32 s{S_FQ+d}, {4*(d+1)}, {4*d}")
        e(f"s_mul_i32 s{S_PA}, s{S_TB}, {131072-16384}"); e(f"s_sub_u32 s{S_PA}, s{S_BOFF}, s{S_PA}")
        e(f"v_xor_b32 v{V_CPG}, s{S_WC64}, v{V_XC[0]}"); e(f"v_add_u32 v{V_CPG}, s{S_PA}, v{V_CPG}")
        e(f"s_mov_b32 s{S_XCUR}, {15*128}")
        if o.wpf:
            e(f"s_lshl2_add_u32 s{S_XB}, s{S_TC}, s{S_WAVE}"); e(f"s_lshl_b32 s{S_XB}, s{S_XB}, 12"); e(f"s_add_u32 s{S_XB}, s{S_XB}, s{S_BOFF}")
        e(f"s_lshl2_add_u32 s{S_PA}, s2, s{S_WAVE}"); e(f"s_lshl_b32 s{S_PA}, s{S_PA}, 12"); e(f"s_add_u32 s{S_PA}, s{S_PA}, 0x200000")
        e(f"v_min_u32 v{V_CPL}, 2, {q}"); e(f"v_lshlrev_b32 v{V_CPL}, 7, v{V_CPL}")
        e(f"s_mov_b32 s{S_BOFF}, 2048"); e(f"s_mov_b32 s{S_CNT}, 0x100000")
        pst()
        if o.wpos == 1: w0()
        if o.hops:
            e("s_mov_b64 exec, 0")
            for w in range(1, 4):
                e(f"s_cmp_eq_u32 s{S_WAVE}, {w}"); e(f"s_cbranch_scc1 HOP{w}")
            e("s_branch HOP0")
            self.label("HOPEND")
            e("s_mov_b64 exec, -1")
        pst()
        if o.wpos == 2: w0()
        if o.diag: e(f"s_memtime s[{S_ST+2}:{S_ST+3}]")
        if o.diag2: e(f"s_load_dword s{S_EP}, s[{S_WS}:{S_WS+1}], s{S_EPOFF}")
        self.wait(vtags=[("B", 0)])
        for nt in range(o.b0pre):
            for x in self.bias0_ops(nt): e(x)
        if o.diag:
            e("s_waitcnt lgkmcnt(0)")
            e(f"v_writelane_b32 v{V_ST[0]}, s{S_D0}, 63")
            e(f"v_writelane_b32 v{V_ST[0]}, s{S_ST}, 60"); e(f"v_writelane_b32 v{V_ST[1]}, s{S_ST+2}, 60")
            e(f"s_mov_b32 s{S_SI}, 0")

    def seg_open(self, name, vt, vforce, prev_nt, nts, X, W, half=None, reload=True, cinit=False, maxS=3, barrier=True, nextnt=None, entry=False, spread=False):
        o = self.opt
        dg = o.diag and not (o.diagc and name in ("G0", "G1"))
        if dg: self.stamps.append(name)
        if self.pending: self.mfma(self.pending)
        if dg: self.stamp(0)
        if barrier and entry:
            k = len(self.out)
            if o.diagc and o.diagrt: self.stamp(1)
            self.wait(vtags=vt, lall=True)
            if o.diagc and o.diagrt:
                self.stamp_items()[0][1](); self.stamps.append(name + "L")
            pre = self.out[:] + [f"s_branch LB_{name}"]
            assert self.entry.setdefault(name, pre) == pre
            self.out[k:] = [f"s_waitcnt vmcnt({vforce}) lgkmcnt(0)", f"LB_{name}:", "s_barrier"]
        elif barrier:
            self.wait(vtags=vt, lall=True, vforce=vforce)
            if name in self.entry: self.label(f"LB_{name}")
            self.e("s_barrier")
        else:
            self.wait(ltags=[("WF", prev_nt & 1, s, u) for s in range(2) for u in range(2)])
        if dg: self.stamp(1)
        base = ([] if prev_nt is None else blk(prev_nt)) + sum((blk(nt, cinit) for nt in nts), [])
        off = 0 if prev_nt is None else 16
        self.pending = base[-1] if nts else None
        mf = base[:-1] if nts else base
        sc = Sched(len(mf), maxS)
        sc.mf = mf; sc.off = off; sc.dg = dg
        su = [(s, u) for s in range(2) for u in range(2)]
        if prev_nt is None:
            rd = [self.rd_xf(base[i][0], base[i][2], X) for i in range(16)]
            self.rd_wf(nts[0], 0, 0, W, half)(); self.rd_wf(nts[0], 0, 1, W, half)(); rd[0]()
            self.rd_wf(nts[0], 1, 0, W, half)(); self.rd_wf(nts[0], 1, 1, W, half)()
            for i in range(1, o.e0pre): rd[i]()
            self.wait(ltags=[("XF", 0, 0), ("XF", 0, 1)])
            for i in range(o.e0pre, 16): sc.put(i - o.e0pre, "D", rd[i])
            for mt in range(1, 8): sc.put(2 * mt - 1, "S", lambda mt=mt: self.wait(ltags=[("XF", mt, 0), ("XF", mt, 1)]))
            sc.e0last = 16 - o.e0pre
        elif nts:
            xs = o.xsp if spread else 1.0
            if reload and xs > 1.0:
                rp = [max(i, int(i * xs + o.xso)) for i in range(16)]
                for i in range(16):
                    mt, _, s, _ = base[i]
                    sc.put(rp[i], "D", self.rd_xf(mt, s, X))
                holes = [g for g in range(0, 12) if g not in rp]
                holes = (holes + [1, 3, 5, 7])[:4]
                for k, (s, u) in enumerate(su): sc.put(sorted(holes)[k], "D", self.rd_wf(nts[0], s, u, W, half))
                sc.rp = rp
            else:
                if reload:
                    for i in range(16):
                        mt, _, s, _ = base[i]
                        sc.put(i, "D", self.rd_xf(mt, s, X))
                for k, (s, u) in enumerate(su): sc.put(2 * k, "D", self.rd_wf(nts[0], s, u, W, half))
            sc.put(15, "S", lambda: self.wait(ltags=[("XF", 1, 0), ("XF", 1, 1)] + [("WF", nts[0] & 1, s, u) for s, u in su]))
        if reload and nts and prev_nt is not None:
            if hasattr(sc, "rp"):
                for mt, upto in ((2, 3), (4, 4), (5, 5), (6, 6), (7, 7)):
                    sc.put(off + 2 * mt - 1, "S", lambda m=upto: self.wait(ltags=[("XF", m, 0), ("XF", m, 1)]))
            else:
                for mt in (2, 4, 6):
                    sc.put(off + 2 * mt - 1, "S", lambda mt=mt: self.wait(ltags=[("XF", mt + 1, 0), ("XF", mt + 1, 1)]))
        sc.blkwait = []
        seq = list(nts[1:]) + [nextnt]
        for b, nt in enumerate(seq):
            if b < len(seq) - 1:
                g = off + 16 * (b + 1) - 1
                sc.put(g, "S", lambda nt=nt: self.wait(ltags=[("WF", nt & 1, s, u) for s, u in su] + [("C", V_T + 4 * i) for i in range(4) if name[0] == "S"]))
                sc.blkwait.append(g)
        if nts:
            for b, nt in enumerate(seq):
                if b == 0 and hasattr(sc, "rp"):
                    holes = [g for g in range(16, 27) if g not in sc.rp and g not in o.xkeep][:4]
                    for k, (s, u) in enumerate(su): sc.put(holes[k], "D", self.rd_wf(nt, s, u, W, half))
                    continue
                if b == 0 and prev_nt is None:
                    for k, (s, u) in enumerate(su): sc.place("D", self.rd_wf(nt, s, u, W, half), max(0, sc.e0last - 2) + k)
                    continue
                for k, (s, u) in enumerate(su): sc.place("D", self.rd_wf(nt, s, u, W, half), off + 16 * b + 2 * k)
        return sc
    def seg_emit(self, sc, gbase=None, check=None, stamp_at=50):
        if sc.dg: sc.chain(self.stamp_items(), stamp_at)
        for g, m in enumerate(sc.mf):
            if check: check(g, m)
            self.mfma(m)
            self.merge_gap(sc, g, None if gbase is None else gbase + g)
    def xa_items(self, new, old, nx):
        def f0():
            self.e(f"v_add_u32 v{V_XA[0]}, s{S_DX}, v{V_XA[0]}"); self.xa = nx["x"]
        return [self.SU(f"s_sub_u32 s{S_DX}, s{new}, s{old}", lambda: nx.update(x=self.slot[new])),
                ("V", f0), self.V(f"v_add_u32 v{V_XA[1]}, s{S_DX}, v{V_XA[1]}")]
    def wa_sched(self, sc, new, old, g_s, g_v):
        nx = {}
        def wa(h):
            def f():
                self.e(f"v_add_u32 v{V_WA[h]}, s{S_DW}, v{V_WA[h]}"); self.wa[h] = nx["w"]
            return f
        k, f = self.SU(f"s_sub_u32 s{S_DW}, s{new}, s{old}", lambda: nx.update(w=self.slot[new]))
        sc.place(k, f, g_s, g_v - 1)
        sc.chain([("V", wa(0)), ("V", wa(1))], g_v)

    def body(self, kind, layer, t):
        o = self.opt
        X = ("X", layer, t); W = ("W", layer, t)
        first = kind == "E0"
        vt = [X, W, ("P", layer, t + 2)]
        if kind == "S1": vt.append(("B", layer))
        vforce = {"G0": min(9 + (1 if o.xtouch else 0) + (1 if o.tpf & 2 else 0), 10 + (1 if o.xtouch else 0)), "G1": 8, "T14": 8}.get(kind)
        sc = self.seg_open(kind, vt, vforce, None if first else 7, list(range(7)), X, W, cinit=first,
                           maxS=1 if kind in ("T15", "H0") else 3, nextnt=7, entry=((kind == "G1" and t == o.ns + 1 and o.entry) or (kind == "G0" and t == 1 and o.entry > 1)),
                           spread=kind in ("G0", "G1", "T14", "S1", "S2", "S3", "S4") or (kind == "H0" and o.h0sp))
        n, off = sc.n, sc.off
        if kind in ("G0", "G1"):
            sc.put(n - 1, "G", lambda: None)
            sc.put(n - 2, "S", self.E(f"s_cmp_lt_u32 s{S_LOOP}, " + ("14" if kind == "G0" else f"s{S_LEND}"))); sc.closedS.add(n - 2)
        self.gcap = 0
        if kind in ("E0", "G0", "T14", "T15"):
            gB = off + 94 if kind != "T15" else off + 1
            def br():
                self.e(f"s_cbranch_scc1 CAP_{kind}"); self.e("@CAP")
            if kind == "G0" and o.cap4:
                for p in range(4):
                    g = off + 81 + 2 * p
                    sc.put(g, "G", lambda p=p: (self.e(f"s_cbranch_scc1 CAP_G0{p}"), self.e(f"@CAP{p}")))
                    sc.put(g - 1, "S", self.E(f"s_cmp_eq_u32 s{S_TC}, {p}")); sc.closedS.add(g - 1)
                sc.chain([self.S(f"s_lshl_b32 s{S_TC}, s{S_CAPJ}, 2"), self.S(f"s_sub_u32 s{S_TC}, s{S_LOOP}, s{S_TC}")], off + 64, off + 70)
            else:
                sc.put(gB, "G", br)
                sc.put(gB - 1, "S", self.E(f"s_cmp_eq_u32 s{S_TC}, s{S_CAPJ}" if kind == "G0" else f"s_cmp_eq_u32 s{S_CAPJ}, {t >> 2}")); sc.closedS.add(gB - 1)
                if kind == "G0": sc.put(gB - 2, "S", self.E(f"s_lshr_b32 s{S_TC}, s{S_LOOP}, 2"))
            if not (kind == "G0" and o.cap4):
                for k in range(8): sc.put(gB + 1 + k, "D", self.E(f"@RD{k}"))
                sc.put(gB + 9, "G", self.E("@RET"))
            self.gcap = sc.place("V", self.E(f"v_xor_b32 v{V_CAP}, s{S_WC64}, v{V_XA[0]}"), 9, off if kind == "T15" else None)
        pace = 4 if first else (o.pace0 if kind == "G0" else o.pace)
        gw = o.gw if hasattr(sc, "rp") else off + 1
        lastG = gw
        if kind == "H0":
            def xb():
                assert not any(x and x[0] == "XF" for x in self.lq)
                if o.flag0 == 0: self.wait(vtags=[("S", layer, 0)])
                self.e("s_barrier")
            gb = sc.place("S", xb, off + max(o.xbpos, 14 if o.h0sp else 0))
            gw = gb + 1
        if kind == "G1":
            sc.put(0, "S", self.E(f"s_cmp_eq_u32 s{S_LOOP}, s{S_KEY}")); sc.closedS.add(0)
            sc.put(1, "S", self.E(f"s_cselect_b32 s{S_TG}, s{S_Q+1}, s{S_Q}")); sc.put(1, "S", self.E(f"s_cselect_b32 s{S_TH}, s{S_WLM}, s{S_WL}"))
            c = sc.chain(self.w_setup(S_TG, S_TH), 2)
        elif kind != "T15":
            c = sc.chain(self.w_setup(S_Q, S_WL), max(0, gw - 14))
        if first and o.prex and self.x1:
            gw = self.place_dma(sc, self.x1, 1, pace) + 4
        if kind != "T15":
            lastG = self.place_dma(sc, self.dma_items(("W", layer, t + 1), S_WR + 1, "W"), max(gw, c[-1] + 1), pace if kind != "H0" else o.paceh)
        gx = lastG + int(pace)
        if kind in ("S1", "S2", "S3", "S4", "G1"):
            if kind != "S1":
                gbr = self.poll_check(sc, kind, ("P", layer, t + 2), off + 8)
                assert gbr < lastG - 1
            c = sc.chain([self.S(f"s_lshr_b32 s{S_PA}, s{S_Q+2}, 2"), self.S(f"s_lshl_b32 s{S_PA}, s{S_PA}, 7"),
                          self.S(f"s_add_u32 s{S_PA}, s{S_PA}, s{S_FB}")], (o.pollpos if kind == "S1" else max(gbr + 1, o.pollpos)) if o.pollpos else lastG - 1)
            k, f = self.VM(f"buffer_load_dword v{V_POLL}, off, {sr(S_WS,4)}, s{S_PA} sc1", ("P", layer, t + 3))
            if o.pollpos: gp = sc.place(k, f, c[-1] + 1)
            else:
                gp = sc.place(k, f, max(c[-1], lastG) + 2)
                gx = max(gx, gp + 2); lastG = gp
        if o.wpf and kind in ("E0", "S2"):
            sc.chain([self.V(f"v_and_b32 v{V_WT}, 0x180, v{V_L16}"), self.V(f"v_lshrrev_b32 v{V_FLAG}, 9, v{V_L16}"),
                      self.V(f"v_lshl_add_u32 v{V_WT}, v{V_FLAG}, 11, v{V_WT}")], 9, 40)
        if (o.wpf & 1 and kind == "G0") or (o.wpf & 2 and kind in ("S2", "S3", "G1")):
            TG = S_TE if kind == "G0" else S_TG
            it = [self.S(f"s_add_u32 s{TG}, s{S_Q}, {o.wpd}")] if kind == "G0" else []
            it += [self.S(f"s_lshl_b32 s{TG}, s{TG if kind == 'G0' else S_Q+2}, 17"), self.S(f"s_add_u32 s{TG}, s{TG}, s{S_WL}"), self.S(f"s_add_u32 s{TG}, s{TG}, s{S_XB}")]
            c = sc.chain(it, off + 26)
            k, f = self.VM(f"buffer_load_dword v{V_POLL if kind == 'G0' else V_CAP}, v{V_WT}, {sr(S_W,4)}, s{TG} offen", "PW")
            lastG = sc.place(k, f, max(c[-1], lastG) + 2); gx = max(gx, lastG + 2)
        xadv = [self.V(f"v_add_u32 v{V_XC[i]}, 128, v{V_XC[i]}") for i in range(2)]
        if first:
            if not o.prex:
                sc.chain(xadv, 4)
                lastG = self.place_dma(sc, self.dma_items(("X", 0, 1), S_X + 1, "X0"), gx, pace)
            else: pace = 6
            c = sc.chain(xadv, lastG + 1)
            lastG = self.place_dma(sc, self.dma_items(("X", 0, 2), S_X + 2, "X0"), max(lastG + pace, c[-1] + 1), pace)
        if kind == "G0":
            ww = [self.VM(f"buffer_load_dword v{V_POLL}, v{V_CPL}, {sr(S_W,4)}, s{S_PA} offen", "PW"), self.S(f"s_add_u32 s{S_PA}, s{S_PA}, {384 if o.wwarm else 0}")]
            if not o.xtouch: sc.chain(ww, lastG + 3)
            sc.chain(xadv, off + 20)
            lastG = self.place_dma(sc, self.dma_items(("X", layer, t + 2), S_X + 2, "X0"), gx, o.pacex0)
            if o.xtouch: lastG = sc.chain(ww, lastG + 3)[0]
        if kind in ("E0", "G0") and o.xtouch:
            sc.chain([self.VM(f"buffer_load_dword v{V_POLL}, v{V_XT}, {sr(S_X0,4)}, s{S_XTO} offen nt", "PW"),
                      self.S(f"s_add_u32 s{S_XTO}, s{S_XTO}, 128")], lastG + 3)
        if kind == "G0" and o.tpf & 2:
            sc.chain([self.VM(f"global_load_dword v{V_POLL}, v31, s[{S_PC}:{S_PC+1}]", "PW")], lastG + 6)
        if kind == "S1" and o.tpf & 1:
            sc.chain([self.S(f"s_lshr_b32 s{S_TE}, s2, 3"), self.S(f"s_lshl_b32 s{S_TE}, s{S_TE}, 9"), self.S(f"s_lshl_b32 s{S_TF}, s{S_WAVE}, 7"),
                      self.S(f"s_add_u32 s{S_TE}, s{S_TE}, s{S_TF}"), self.S(f"s_add_u32 s{S_TE}, s{S_TE}, L_TAIL-L_pc"),
                      self.S(f"s_min_u32 s{S_TE}, s{S_TE}, L_codeend-L_pc-4"), self.V(f"v_mov_b32 v{V_FLAG}, s{S_TE}"),
                      self.VM(f"global_load_dword v{V_FLAG}, v{V_FLAG}, s[{S_PC}:{S_PC+1}]", "PW")], off + 4, lastG - 1)
        if kind in ("S2", "S3", "S4", "G1"):
            c = sc.chain(self.x_setup(S_Q + 1), 8, off - 1)
            assert c[-1] < gx
            lastG = self.place_dma(sc, self.dma_items(("X", layer, t + 2), S_X + 2, "XE"), gx, o.pacex)
        if kind == "T14":
            it = [self.S(f"s_mov_b32 s{S_WT+k}, {k*16384 - (k&1)*2048}") for k in range(1, 4)]
            it += [self.S(f"s_add_u32 s{S_WL}, s{S_WL}, 0x200000"), self.S(f"s_lshl_b32 s{S_Q}, s{S_J}, 2"),
                   self.V(f"v_subrev_u32 v{V_WC[1]}, s{S_ADJ}, v{V_WC[1]}"), self.S(f"s_mov_b32 s{S_ADJ}, 0")]
            it += self.w_setup(S_Q, S_WL)
            c = sc.chain(it, lastG + 1)
            lastG = self.place_dma(sc, self.dma_items(("W", layer + 1, 0), S_X + 2, "W"), max(gx, c[-1] + 1), pace - 1)
        if kind == "T15" and o.wl2:
            t0, t1 = V_T + 16, V_T + 17
            it = [self.V(f"v_bfe_u32 v{t0}, v{V_L16}, 5, 2"), self.V(f"v_lshlrev_b32 v{t0}, 7, v{t0}"),
                  self.V(f"v_lshrrev_b32 v{t1}, 7, v{V_L16}"), self.V(f"v_lshl_add_u32 v{t1}, v{t1}, 11, v{t0}"),
                  self.V(f"v_lshrrev_b32 v{t0}, 9, v{V_L16}"), self.V(f"v_lshlrev_b32 v{t0}, 11, v{t0}"), self.V(f"v_and_b32 v{V_FLAG}, 0x180, v{V_L16}"),
                  self.V(f"v_add_u32 v{t0}, v{t0}, v{V_FLAG}")]
            sc.chain(it, 1, 26)
            sc.maxS = 2
            it = [self.S(f"s_lshr_b32 s{S_TE}, s2, 5"), self.S(f"s_lshl_b32 s{S_TE}, s{S_TE}, 2"), self.S(f"s_add_u32 s{S_TE}, s{S_TE}, s{S_WAVE}"),
                  self.S(f"s_lshl_b32 s{S_TF}, s{S_J}, 9"), self.S(f"s_add_u32 s{S_TF}, s{S_TF}, s{S_WL}"),
                  self.S(f"s_lshl_b32 s{S_TG}, s{S_TE}, 14"), self.S(f"s_add_u32 s{S_TG}, s{S_TG}, s{S_TF}"), self.S(f"s_lshl_b32 s{S_TH}, s{S_J}, 19"),
                  self.S(f"s_add_u32 s{S_TG}, s{S_TG}, s{S_TH}"),
                  self.S(f"s_lshl_b32 s{S_TE}, s{S_TE}, 12"), self.S(f"s_add_u32 s{S_TE}, s{S_TE}, s{S_TF}"),
                  self.VM(f"buffer_load_dword v{V_POLL}, v{t1}, {sr(S_W,4)}, s{S_TG} offen", "PW")]
            for d in range(o.wl2):
                it += [self.S(f"s_lshl_b32 s{S_TH}, s{S_FQ+d}, 17"), self.S(f"s_add_u32 s{S_TH}, s{S_TH}, s{S_TE}"),
                       self.VM(f"buffer_load_dword v{V_POLL}, v{t0}, {sr(S_W,4)}, s{S_TH} offen", "PW")]
            sc.chain(it, 2, 40)
            sc.maxS = 1
        if kind == "T15":
            sc.put(0, "S", self.E(f"s_cmp_eq_u32 s{S_LAYER}, 0")); sc.closedS.add(0)
            if o.e1out: sc.put(1, "S", self.E(f"s_cselect_b64 s[{S_X0}:{S_X0+1}], s[{S_OUT}:{S_OUT+1}], s[{S_WS}:{S_WS+1}]"))
            else:
                sc.put(1, "S", self.E(f"s_cselect_b32 s{S_TE}, 0x2000000, 0"))
                def f64():
                    self.e(f"s_add_u32 s{S_X0}, s{S_WS}, s{S_TE}"); self.e(f"s_addc_u32 s{S_X0+1}, s{S_WS+1}, 0")
                sc.put(17, "G", f64)
            sc.chain([self.S(f"s_lshl_b32 s{S_TD}, s{S_LAYER}, 2"), self.S(f"s_add_u32 s{S_NEED}, s{S_NEED}, s{S_TD}"),
                      self.S(f"s_mov_b32 s{S_FV}, s{S_NEED}"),
                      self.S(f"s_lshr_b32 s{S_TD}, s{S_WAVE}, 1"), self.S(f"s_mul_i32 s{S_TD}, s{S_TD}, s{S_LAYER}"), self.S(f"s_mul_i32 s{S_KEY}, s{S_TD}, 12"),
                      self.S(f"s_sub_u32 s{S_WLM}, s{S_WL}, 256"), self.S(f"s_sub_u32 s{S_LEND}, s{S_LEND}, 1"),
                      self.S(f"s_add_u32 s{S_LAYER}, s{S_LAYER}, 1")], 2, 60)
        if first:
            if o.finit == 0:
                sc.chain([self.V(f"v_lshrrev_b32 v{V_FLAG}, 1, v{V_L16}"), self.V(f"v_and_b32 v{V_FLAG}, 0x180, v{V_FLAG}"),
                          self.VM(f"buffer_load_dword v{V_POLL}, v{V_FLAG}, {sr(S_WS,4)}, s{S_FB} offen sc1", "PW")], 68)
                sc.chain([self.S(f"s_add_u32 s{S_NEED}, s{S_EP}, 1"), self.S(f"s_mov_b32 s{S_FV}, s{S_EP}")] + self.flag_items(), 98)
            else:
                sc.chain([self.S(f"s_add_u32 s{S_NEED}, s{S_EP}, 1"), self.V(f"v_mov_b32 v{V_FLAG}, s{S_EP}"), self.V(f"v_bfe_u32 v{V_T+16}, v{V_L16}, 2, 7"),
                          self.VM(f"buffer_store_dword v{V_FLAG}, v{V_T+16}, {sr(S_WS,4)}, s{S_FOWN} offen sc1", "F")], 70)
        if kind == "H0":
            def fb():
                self.wait(vtags=[("S", layer, 0)]); self.e("s_barrier")
            if o.flag0 > 0:
                g = sc.place("G", fb, off + o.flag0)
                sc.chain(self.flag_items(), g + 1)
            elif o.flag0 == 0: sc.chain(self.flag_items(), gb + 3)
        if kind == "S1" and o.flag0 < 0:
            assert ("S", layer, 0) not in self.vq
            sc.chain(self.flag_items(), 3)
        if kind == "S3":
            assert ("S", layer, 1) not in self.vq and not any(x[0] == 1 for x in self.parked)
            sc.chain(self.flag_items(), off + 3)
        if kind == "G1":
            assert ("S", layer, min(t - o.ns + 1, 3)) not in self.vq
            if o.fdrop:
                def sel():
                    self.e(f"s_cmp_le_u32 s{S_LOOP}, {o.ns + 2}"); self.e(f"s_cselect_b32 s{S_TF}, 0, 0x40000000")
                g1 = [g for g in range(11, 40) if len(sc.g[g]) <= 1 and sc.fits(g, "S")][0]
                sc.put(g1, "S", sel); sc.put(g1, "S", lambda: None)
                g1 = sc.place("V", self.E(f"v_mov_b32 v{V_T}, s{S_TF}"), g1 + 1)
                sc.chain([self.V(f"v_mov_b32 v{V_FLAG}, s{S_FV}"), self.VM(f"buffer_store_dword v{V_FLAG}, v{V_T}, {sr(S_WS,4)}, s{S_FOWN} offen sc1", "F"),
                          self.S(f"s_add_u32 s{S_FV}, s{S_FV}, 1")], max(g1, o.fpos - 1))
            else:
                sc.chain(self.flag_items() + [self.S(f"s_sub_u32 s{S_TF}, s{S_FV}, s{S_NEED}"), self.S(f"s_min_u32 s{S_TF}, s{S_TF}, 3"),
                                              self.S(f"s_add_u32 s{S_FV}, s{S_TF}, s{S_NEED}")], off + 3)
        if kind in ("S1", "S2", "S3", "S4"):
            if t == 1: self.parked = []
            free = [(V_T + 4 * i, 0) for i in range(4) if V_T + 4 * i not in [x[2] for x in self.parked]]
            jobs = [mt for mt in range(8) if not self.is_direct(t, mt)] if t < 4 else []
            gset = 0
            if jobs:
                def chk(): assert self.lds_own[self.slot[S_X]] == ("X", layer, t)
                gset = sc.chain([self.SU(f"s_sub_u32 s{S_E0}, s{S_X}, s{S_OADJ}", chk), self.V(f"v_add_u32 v{V_CPL}, s{S_E0}, v{V_L16}")], 8)[-1]
            def rd(mt, q, lo, hi):
                sc.place("D", lambda: self.lds(f"ds_read_b128 {vr(q,4)}, v{V_CPL} offset:{mt*2048}", ("C", q)), lo, hi)
            cnt = int(o.cn[t - 1])
            for k in range(cnt):
                gp_ = int(o.c0 + (o.c1 - o.c0) * (k + 0.5) / cnt)
                w = max(x for x in sc.blkwait if x < gp_)
                if self.parked: tile, mt, q = self.parked.pop(0)
                else:
                    q, g0 = free.pop(0); tile, mt = t, jobs.pop(0)
                    rd(mt, q, max(g0, gset + 1, w - 9), w - 1)
                def st(tile=tile, mt=mt, q=q):
                    assert ("C", q) not in self.lq
                    so, im = mt_off(mt)
                    self.vm(f"buffer_store_dwordx4 {vr(q,4)}, v{V_CPG}, {sr(S_X0,4)}, {so} offen offset:{im + tile*128} sc1", ("S", layer, tile))
                cand = [x for x in range(gp_ - 3, min(gp_ + 5, n)) if x > w and sc.fits(x, "G")]
                isg = lambda x: 0 <= x < n and any(kk == "G" for kk, _ in sc.g[x])
                g = min(cand, key=lambda x: (sum(isg(x + d) * (4 - abs(d)) for d in (-3, -2, -1, 1, 2, 3)), abs(x - gp_)))
                sc.put(g, "G", st)
                free.append((q, g + 1)); glast = g
            for mt in jobs:
                q, g0 = free.pop(0)
                g1 = [x for x in range(max(g0, gset + 1, 40), n - 4) if ((x - off) % 16 < 8 or x > sc.blkwait[-1]) and sc.fits(x, "D")][0]
                rd(mt, q, g1, g1)
                self.parked.append((t, mt, q))
            if t == o.ns: assert not self.parked
        if kind == "G0" and o.cap4:
            g = off + 95
            for k in range(8): g = sc.place("D", self.E(f"@RD{k}"), g) + 1
            sc.place("G", self.E("@RET"), g)
        gcap = self.gcap
        gXA = max(gcap + 1, off + 2, sc.rp[-1] + 1 if hasattr(sc, "rp") else getattr(sc, "e0last", 0))
        nx = {}
        if kind == "T15":
            def f0():
                self.e(f"v_add_u32 v{V_XA[0]}, s{S_TA}, v{V_L16}"); self.xa = nx["x"]
            sc.chain([self.S(f"s_lshl_b32 s{S_TA}, s{S_WC64}, 7"),
                      self.SU(f"s_sub_u32 s{S_TA}, s{S_X+2}, s{S_TA}", lambda: nx.update(x=self.slot[S_X + 2])),
                      ("V", f0), self.V(f"v_add_u32 v{V_XA[1]}, 1024, v{V_XA[0]}"), self.S(f"s_mov_b32 s{S_CAPJ}, 77")], off + 11)
            wnext = S_X + 1
        else:
            sc.chain(self.xa_items(S_X + 1, S_X, nx), gXA)
            wnext = S_WR + 1
        self.wa_sched(sc, wnext, S_WR, gXA, off + 16 * 6 + 8)
        if kind == "T15":
            sc.chain([self.VM(f"buffer_load_dwordx2 {vr(V_BR,2)}, v{V_B}, {sr(S_B,4)}, s{S_BOFF} offen", ("B", layer + 1)),
                      self.S(f"s_add_u32 s{S_BOFF}, s{S_BOFF}, 2048")], off + 12, off + 34)
        if kind in ("S1", "S2", "S3", "T14"):
            g = 4 if kind == "S1" else 0
            for nt in {"S1": [5, 6, 0], "S2": [4, 1], "S3": [3, 2], "T14": [7]}[kind]:
                b0 = 0 if nt == 7 else off + 16 * nt
                g = self.bias_sched(sc, nt, g, (b0, b0 + 16), V_T + 10 if kind == "T14" else V_CAP)
        if first:
            g = 0
            for nt in range(o.b0pre, 7):
                g = sc.chain([self.V(x) for x in self.bias0_ops(nt)], g, 16 * nt - 2)[-1]
            ops = []
            for mt in range(2): ops += [f"v_accvgpr_write_b32 a{ACC(mt,6)[1]+i}, v{ACC(7,6)[1]+i}" for i in range(4)]
            for mt in range(8): ops += [f"v_accvgpr_write_b32 a{ACC(mt,7)[1]+i}, 1.0" for i in range(4)]
            sc.chain([self.V(x) for x in ops], g, 96 - 2)
        self.slot[S_TR] = None
        if kind == "T15":
            rot = [self.smov(S_O2, S_X), self.smov(S_O3, S_WR), self.smov(S_WR, S_X + 1), self.smov(S_X + 1, S_WR + 1),
                   self.smov(S_X, S_X + 2), self.smov(S_WR + 1, S_X + 2)]
        elif kind == "H0":
            rot = [self.smov(S_X, S_X + 1), self.smov(S_X + 1, S_O2), self.smov(S_X + 2, S_O3),
                   self.smov(S_TR, S_WR), self.smov(S_WR, S_WR + 1), self.smov(S_WR + 1, S_TR)]
        else:
            rot = [self.smov(S_TR, S_X), self.smov(S_X, S_X + 1), self.smov(S_X + 1, S_X + 2), self.smov(S_X + 2, S_TR),
                   self.smov(S_TR, S_WR), self.smov(S_WR, S_WR + 1), self.smov(S_WR + 1, S_TR)]
        q = []
        if kind in ("E0", "G0", "T15", "H0"): q = [self.S(f"s_add_u32 s{S_Q}, s{S_Q}, 1")]
        if kind == "H0": q += [self.S(f"s_add_u32 s{S_Q+1}, s{S_Q}, 1"), self.S(f"s_mov_b32 s{S_Q+2}, s{S_FQ}")]
        if kind in ("S1", "S2"):
            q = [self.S(f"s_mov_b32 s{S_Q}, s{S_Q+1}"), self.S(f"s_mov_b32 s{S_Q+1}, s{S_Q+2}"), self.S(f"s_mov_b32 s{S_Q+2}, s{S_FQ+t}")]
        if kind in ("S3", "S4", "G1"):
            q = [self.S(f"s_add_u32 s{S_TE}, s{S_Q}, 1"), self.S(f"s_mov_b32 s{S_Q}, s{S_Q+1}"), self.S(f"s_mov_b32 s{S_Q+1}, s{S_Q+2}"),
                 self.S(f"s_mov_b32 s{S_Q+2}, s{S_TE}")]
        if kind == "S3": q += [self.S(f"s_mov_b32 s{S_LOOP}, {o.ns + 1}")]
        sc.chain(q, max(gx, off + 60))
        if kind == "G1": rot += [self.S(f"s_add_u32 s{S_LOOP}, s{S_LOOP}, 1")]
        if kind == "G0": sc.place("S", self.E(f"s_add_u32 s{S_LOOP}, s{S_LOOP}, 1"), off + 104, n - 3)
        sc.chain(rot, max(sc.last_su(), 108 if kind in ("T15", "H0") else 0))
        if o.add and kind in ("G0", "G1"):
            if "n" in o.add:
                for k in range(4): sc.place("G", self.E("s_nop 10"), 40 + 16 * k)
            if "l" in o.add:
                g = 32
                for k in range(16): g = sc.place("D", self.E(f"ds_read_b128 v[{20+4*(k%2)}:{23+4*(k%2)}], v{V_XA[k&1]} offset:{(k//2)*2048}"), g) + 3
            if "v" in o.add:
                g = 30
                for k in range(64): g = sc.place("V", self.E(f"v_mul_f32 v{20+k%8}, v{200+(k*3)%54}, v{201+(k*3)%54}"), g)
            if "g" in o.add:
                for k in range(4): sc.place("G", lambda k=k: self.e(f"buffer_load_dwordx4 v[20:23], v{V_WC[0]}, {sr(S_W,4)}, s{S_M4+k%3} offen"), 31 + 8 * k)
        if kind == "T15": self.make_stream(layer + 1)
        def check(g, m):
            if kind == "H0" and g >= off: assert (m[1] >> 1) * 8 + m[0] in self.epi_done, ("deadline", m)
        self.xr = o.xr15 if kind == "T15" else o.xr0
        self.seg_emit(sc, {"T15": 0, "H0": 128}.get(kind), check, 86 if first else off + 50)
        if "@CAP" in self.out: self.make_cap(kind, t)
        if "@CAP0" in self.out: self.make_cap4()
        if kind == "T15": assert all(f in self.wr_done for f in range(8))
        if kind == "H0": assert not self.stream, "stream left"

    def make_cap(self, kind, t):
        i0 = self.out.index("@CAP"); i1 = self.out.index("@RET")
        reg = self.out[i0 + 1:i1]
        assert not any(x.endswith(":") or "branch" in x or "barrier" in x for x in reg)
        main = [x for x in reg if not x.startswith("@") and x != "s_nop 0"]
        self.out[i0:i1 + 1] = main + [f"CB_{kind}:"]
        def blkc(p):
            return [f"ds_read_b128 {ar(X0(p,int(x[3])),4)}, v{V_CAP} offset:{int(x[3])*2048}" if x.startswith("@RD") else x for x in reg] + [f"s_branch CB_{kind}"]
        cap = f"CAP_{kind}"
        if kind == "G0":
            b = [f"{cap}:", f"s_and_b32 s{S_TC}, s{S_LOOP}, 3"]
            for p in range(1, 4): b += [f"s_cmp_eq_u32 s{S_TC}, {p}", f"s_cbranch_scc1 {cap}{p}"]
            b += blkc(0)
            for p in range(1, 4): b += [f"{cap}{p}:"] + blkc(p)
            self.ool[cap] = b
        else:
            self.ool[cap] = [f"{cap}:"] + blkc(t & 3)
    def make_cap4(self):
        i1 = self.out.index("@RET")
        b = []
        for p in range(4):
            reg = [x for x in self.out[self.out.index(f"@CAP{p}") + 1:i1] if not x.startswith(("@CAP", "s_cbranch_scc1 CAP", f"s_cmp_eq_u32 s{S_TC}"))]
            assert not any(x.endswith(":") or "branch" in x or "barrier" in x for x in reg)
            b += [f"CAP_G0{p}:"] + [f"ds_read_b128 {ar(X0(p,int(x[3])),4)}, v{V_CAP} offset:{int(x[3])*2048}" if x.startswith("@RD") else x for x in reg] + ["s_branch CB_G0"]
        i0 = self.out.index("@CAP0")
        self.out[i0:i1 + 1] = [x for x in self.out[i0:i1] if not x.startswith("@") and x != "s_nop 0"] + ["CB_G0:"]
        self.ool["CAP_G0"] = b
    def is_direct(self, p, mt):
        n = int(self.opt.direct[p])
        return ((mt + 1) * n) // 8 != (mt * n) // 8
    def make_stream(self, nl):
        st = []
        self.epi_done = set(); self.wr_done = set()
        tbf = lambda f: V_T + 8 * (f % 2)
        U = lambda f, h: ("U", ("U", f // 8, f % 8, h, tbf(f)))
        self.stream = [U(f, h) + (30,) for f in range(2) for h in range(2)]
        self.credit = 0.0
        for f in range(32):
            p, mt = f // 8, f % 8
            tb = tbf(f)
            pos = 38 + 32 * p + 2 * mt
            sreg = {0: S_X + 2, 1: S_WR + 1, 2: S_O2, 3: S_O3}[p]
            ops = self.epi_valu(p, mt, tb, V_T + 16, tb)
            it = []
            for k, x in enumerate(ops):
                kd = "V" if (k < 4 or f == 31) else "A"
                if k == len(ops) - 5: it.append((kd, lambda x=x, f=f: (self.e(x), self.epi_done.add(f)), pos))
                else: it.append((kd, self.E(x), pos))
            if p >= 2: pos = max(pos, 129)
            if mt == 0:
                def f0(p=p, sreg=sreg):
                    self.lds_own[self.slot[sreg]] = ("X", nl, p)
                    self.e(f"s_sub_u32 s{S_E0}, s{sreg}, s{S_OADJ}")
                a = [("S", f0, pos), ("A", self.E(f"v_add_u32 v{V_CPL}, s{S_E0}, v{V_L16}"), pos)]
                it = it[:6] + a + it[6:] if p != 2 else it + a
            if self.is_direct(p, mt):
                so, im = mt_off(mt)
                it += [("R", lambda p=p, im=im, tb=tb, so=so: self.vm(f"buffer_store_dwordx4 {vr(tb,4)}, v{V_CPG}, {sr(S_X0,4)}, {so} offen offset:{im + p*128} sc1", ("S", nl, p)), pos)]
            if f + 2 < 32: it += [U(f + 2, 1) + (pos,)]
            it += [("X", lambda f=f, mt=mt, tb=tb: (self.lds(f"ds_write_b128 v{V_CPL}, {vr(tb,4)} offset:{mt*2048}", ("O",)), self.wr_done.add(f)), pos)]
            if f + 2 < 32: it += [U(f + 2, 0) + (pos,)]
            self.stream += it

    def merge_gap(self, sc, g, gpos):
        fixed = sc.g[g]
        self.gnow = gpos
        while True:
            cur = list(fixed)
            excl = any(k == "G" for k, _ in cur)
            hasR = False
            newgap = None
            top = -1
            if gpos is not None: self.credit = min(self.credit + self.xr, 2.0)
            def cnt(): return sum(k in "DV" for k, _ in cur), sum(getattr(f, "w", 1) for k, f in cur)
            def free():
                nvec, tot = cnt()
                if hasR: return nvec < 3
                return not excl and nvec < 2 and tot < 3
            def lookahead():
                i = 0
                while i < len(self.stream) and self.stream[i][0] in "RUX": i += 1
                while i < len(self.stream) and self.stream[i][0] == "V" and self.stream[i][2] <= gpos + 1 and free():
                    cur.append(("V", self.stream.pop(i)[1]))
            if gpos is not None and fixed is sc.g[g] and not (self.stream and getattr(self.stream[0][1], "pub", False)):
                while self.stream2 and self.stream2[0][2] <= gpos + 1:
                    k, fn, pos = self.stream2[0]
                    st = fn.ready(gpos)
                    if st == "skip": self.stream2.pop(0); continue
                    if st:
                        grp = [self.stream2.pop(0)]
                        if k == "S": grp.append(self.stream2.pop(0))
                        self.stream[0:0] = grp
                    break
            while gpos is not None and self.stream:
                k, fn, pos = self.stream[0]
                if pos > gpos + 1:
                    break
                if k == "U" and len(self.stream) > 1 and hasattr(self.stream[1][1], "ok") and not self.stream[1][1].ok():
                    lookahead(); break
                if k == "U" and self.opt.xd3 and not self.stream2 and len(self.stream) > 1 and self.stream[1][0] == "X" and fixed is sc.g[g] and g + 2 < sc.n:
                    hasD = lambda gg: any(kk == "D" for kk, _ in sc.g[gg])
                    more = sum(1 for x in self.stream[3:6] if x[0] == "V" and x[2] <= gpos + 1)
                    if hasD(g + 1) and not hasD(g + 2) and more >= 3:
                        lookahead(); break
                if k == "U":
                    lookahead()
                    newgap = fn; self.stream.pop(0); break
                if k == "X":
                    nxt = [kk for gg in (g + 1, g + 2) if gg < sc.n for kk, _ in sc.g[gg]]
                    follow_u = len(self.stream) > 1 and self.stream[1][0] == "U"
                    if any(kk != "S" for kk, _ in cur) or (not follow_u and "D" in nxt and fixed is sc.g[g]):
                        lookahead(); break
                    cur.append(("G", fn)); excl = True; self.stream.pop(0); continue
                if k == "R":
                    if excl or top > 0:
                        lookahead(); break
                    cur.append(("G", fn)); excl = True; hasR = True; top = 1; self.stream.pop(0); continue
                if k in "SZ":
                    w = 2 if k == "Z" else 1
                    if excl or top > 0 or g in sc.closedS or cnt()[1] + w > 3: break
                    fn.w = w
                    cur.append(("S", fn)); top = 0; self.stream.pop(0); continue
                if k == "D":
                    if top > 2 or not free(): break
                    cur.append(("D", fn)); top = 2; self.stream.pop(0); continue
                ok = free()
                if not ok and not excl and self.credit >= 1.0 and cnt()[0] < 3 and cnt()[1] < 4:
                    self.credit -= 1.0; ok = True
                if not ok: break
                cur.append(("V", fn)); top = 3; self.stream.pop(0)
            ks = [k for k, _ in cur]
            if ks.count("D") == 2 and "S" not in ks and "G" not in ks: cur.append(("S", self.E("s_nop 0")))
            for k, fn in sorted(cur, key=lambda x: RANK[x[0]]): fn()
            if newgap is None: return
            self.mfma(newgap)
            fixed = []

    def tail(self):
        e = self.e; o = self.opt
        L = 2
        VW, VR = V_POLL, V_CPL
        CT = V_T + 20; AT = V_T + 16
        tbf = lambda f: V_T + 8 * (f % 2)
        U = lambda f, h: ("U", ("U", f // 8, f % 8, h, tbf(f)))
        depth = lambda f: 4 if f < 8 else 8
        unit = lambda f: (f % depth(f)) * 4096
        area = {0: (S_WR, 0), 1: (S_X + 1, 0), 2: (S_X, 0), 3: (S_X + 1, 0)}
        def rdback(f, p, r, k):
            assert f in self.visible and self.ra == f // 8
            self.lds(f"ds_read_b64 {vr(r+2*k,2,p)}, v{VR} offset:{unit(f) + 256*k}", ("C", f))
        def store(f, dst):
            assert ("C", f) not in self.lq
            so, im = mt_off(f % 8)
            self.vm(f"buffer_store_dwordx4 {dst}, v{V_CPG}, {sr(S_OUT,4)}, {so} offen offset:{im + (f//8)*128} {o.outf}", "SO")
            self.stored.add(f)
        def wr_ok(f):
            prev = {0: f - 4, 1: -1, 2: -1, 3: f - 16}[f // 8]
            return (prev < 0 or prev in self.freed) and (f // 8) in self.area_free
        def wr(f):
            assert wr_ok(f) and self.wa_ == f // 8
            self.lds(f"ds_write_b128 v{VW}, {vr(tbf(f),4)} offset:{unit(f)}", ("Y", f))
            self.written.add(f); self.wpos = self.gnow; self.w_at[f] = self.gnow
        self.written = set(); self.visible = set(); self.freed = set(); self.rd_at = {}
        self.lds_half = {}; self.landed = set(); self.area_free = set(); self.area_next = set()
        self.wpos = 0; self.ra = 0; self.wa_ = 0; self.w_at = {}
        def at_barrier():
            self.visible |= {f for f in self.written if ("Y", f) not in self.lq}
            self.freed |= {f for f in self.rd_at if ("C", f) not in self.lq}
            self.landed |= {v for v in self.lds_half.values() if v not in self.vq}
            if not any(x and x[0] == "XF" for x in self.lq): self.area_free |= self.area_next
        def bar(vtags=(), every=False):
            self.wait(vtags=vtags, ltags=[("Y", x) for x in self.written if every or self.gnow >= self.w_at[x] + o.zdist]); e("s_barrier"); at_barrier()
        def switch(reg, p, attr):
            t = S_TC if attr == "ra" else S_TD
            def f():
                e(f"v_add_u32 v{reg}, s{t}, v{reg}"); setattr(self, attr, p)
            return [("S", self.E(f"s_sub_u32 s{t}, s{area[p][0]}, s{area[p-1][0]}")), ("A", f)]
        def half_dma(tile, H, tidreg, sreg, half):
            what = ("W", L, tile, H)
            it = [self.S(f"s_add_u32 s{S_TH}, s{S_WLM}, {H*256}")] + self.w_setup(tidreg, S_TH)
            d = [self.SU(f"s_add_u32 m0, s{sreg}, s{S_O2+half}", lambda: self.lds_half.__setitem__((self.slot[sreg], half), what))]
            for i in range(4):
                so = "0" if i < 2 else f"s{S_WT+1}"
                d.append(self.VM(f"buffer_load_dwordx4 v{V_WC[i&1]}, {sr(S_W,4)}, {so} offen" + (f" offset:{i*1024}" if i else "") + " lds", what))
            return it, d
        W13, W14, W15 = ("W", L, 13), ("W", L, 14), ("W", L, 15)
        X13, X14, X15 = ("X", L, 13), ("X", L, 14), ("X", L, 15)
        self.lds_half[(self.slot[S_WR], 0)] = W13 + (0,); self.lds_half[(self.slot[S_WR], 1)] = W14 + (0,)
        sc = self.seg_open("A13", [X13, W13, ("P", L, 15)], 8, 7, [0, 1, 2], X13, W13, half=0, nextnt=3); at_barrier()
        gbr = self.poll_check(sc, "A13", ("P", L, 15), 0)
        sc.chain(self.x_setup(S_Q + 1), 3, 15)
        c = sc.chain([self.S(f"s_lshl_b32 s{S_TA}, s{S_WAVE}, 15"), self.S(f"s_lshl_b32 s{S_TB}, s{S_WC64}, 10"), self.S(f"s_sub_u32 s{S_TA}, s{S_TA}, s{S_TB}"),
                      self.S(f"s_lshr_b32 s{S_TB}, s{S_WR14}, 6"), self.S(f"s_sub_u32 s{S_TA}, s{S_TA}, s{S_TB}"), self.S(f"s_add_u32 s{S_WLM}, s{S_WL}, s{S_TA}"),
                      self.S(f"s_lshl_b32 s{S_TA}, s{S_WAVE}, 12"), self.S(f"s_sub_u32 s{S_O2}, 0, s{S_TA}"), self.S(f"s_add_u32 s{S_O3}, s{S_O2}, 0x4000"),
                      self.S(f"s_sub_u32 s{S_Q+2}, s{S_Q+2}, 1")], 5)
        it, d = half_dma(15, 0, S_Q + 1, S_WR + 1, 0)
        c = sc.chain(it, c[-1])
        lastG = self.place_dma(sc, d, max(gbr + 1, c[-1] + 1), o.pacet)
        lastG = self.place_dma(sc, self.dma_items(X15, S_X + 2, "XE"), lastG + 3, o.pacet)
        nx = {}
        sc.chain(self.xa_items(S_X + 1, S_X, nx), 18)
        a, b, c_, d_ = [f"v{V_T+i}" for i in range(4)]
        adr = [f"v_lshrrev_b32 {a}, 9, v{V_L16}", f"v_lshlrev_b32 {a}, 6, {a}", f"v_add_u32 {a}, {a}, v{V_L16}", f"v_add_u32 {a}, s{S_KEY}, {a}",
               f"v_and_b32 {a}, 0xf0, {a}", f"v_and_b32 {b}, 0x300, v{V_L16}", f"v_add3_u32 v{VW}, {a}, {b}, s{S_E0}",
               f"v_and_b32 {c_}, 0x70, v{V_CPG}",
               f"v_lshrrev_b32 {a}, 3, v{V_L16}", f"v_and_b32 {a}, 0x70, {a}", f"v_add_u32 {a}, s{S_KEY}, {a}",
               f"v_and_b32 {b}, 64, {c_}", f"v_lshl_add_u32 {a}, {b}, 1, {a}", f"v_and_b32 {d_}, 16, {c_}", f"v_lshl_add_u32 {a}, {d_}, 2, {a}",
               f"v_and_b32 {a}, 0xf0, {a}", f"v_lshl_add_u32 {a}, {b}, 4, {a}", f"v_lshl_add_u32 {a}, {d_}, 5, {a}",
               f"v_bfe_u32 {b}, {c_}, 5, 1", f"v_lshl_add_u32 {a}, {b}, 3, {a}", f"v_add_u32 v{VR}, s{S_TF}, {a}"]
        sc.chain([self.S(f"s_lshl_b32 s{S_KEY}, s{S_WC64}, 1"), self.S(f"s_mul_i32 s{S_E0}, s{S_WAVE}, 7168"), self.SU(f"s_sub_u32 s{S_E0}, s{S_WR}, s{S_E0}"),
                  self.S(f"s_lshl_b32 s{S_TF}, s{S_WC64}, 4"), self.S(f"s_sub_u32 s{S_TF}, s{S_E0}, s{S_TF}")], 20, 36)
        self.stream = [self.V(x) + (40,) for x in adr]
        self.stream += [self.V(f"v_mov_b32_dpp v{V_XC[i]}, v{V_BR+i} row_newbcast:7 row_mask:0xf bank_mask:0xf") + (64,) for i in range(2)]
        self.credit = 0.0; self.xr = 0.0
        E0 = [134, 230, 326, 390]
        ear = lambda f: E0[f // 8] + 2 * (f % 8)
        self.stream += [U(f, h) + (126,) for f in range(2) for h in range(2)]
        nf = o.nft
        for f in range(nf):
            pos = ear(f)
            it = [("V" if k < 4 else "A", self.E(x)) for k, x in enumerate(self.epi_valu(f // 8, f % 8, tbf(f), None, tbf(f)))]
            if f % 8 == 0 and f: it = it[:6] + switch(VW, f // 8, "wa_") + it[6:]
            w0 = lambda f=f: wr(f)
            w0.ok = lambda f=f: wr_ok(f)
            it += [U(f + 2, 1), ("X", w0), U(f + 2, 0)]
            self.stream += [x + (pos,) for x in it]
        def pub(f, pos):
            def z():
                bar(); assert f in self.visible
            z.ready = lambda g: "skip" if f in self.visible else (f in self.written and g >= self.w_at[f] + o.zdist)
            def r0(): rdback(f, "v", CT, 0)
            def r1(): rdback(f, "v", CT, 1); self.rd_at[f] = self.gnow
            r0.ready = r1.ready = lambda g: g >= self.wpos + 2
            def wt(): self.wait(ltags=[("C", f)])
            wt.ready = lambda g: f in self.rd_at and g >= self.rd_at[f] + o.rdist
            def st(): store(f, vr(CT, 4))
            it = []
            if f % 8 == 0 and f:
                it = switch(VR, f // 8, "ra"); it[0][1].ready = lambda g: True
            it += [("Z", z), ("D", r0), ("D", r1), ("S", wt), ("R", st)]
            for k, x in it: x.pub = True
            return [x + (pos,) for x in it]
        self.stream2 = []
        for f in range(nf): self.stream2 += pub(f, E0[f // 8] + (o.spo + o.sp * (f % 8) if f < 16 else o.spo2 + o.sp2 * (f % 8)))
        self.seg_emit(sc, 0, stamp_at=58)
        self.area_next = {0}
        sc = self.seg_open("C14", [X14], None, 3, [0], X14, W14, half=1, nextnt=1); at_barrier()
        it, d = half_dma(15, 1, S_Q + 1, S_WR + 1, 1)
        c = sc.chain(it, 1)
        self.place_dma(sc, d, 17, 3)
        sc.chain(self.xa_items(S_X + 2, S_X + 1, nx), 16)
        self.wa_sched(sc, S_WR + 1, S_WR, 8, 24)
        self.seg_emit(sc, 64, stamp_at=28)
        sc = self.seg_open("F15", [X15, W15 + (0,)], None, 1, [0, 1, 2, 3, 4], X15, W15, half=lambda nt: nt >> 2, nextnt=5, maxS=1); at_barrier()
        it, d = half_dma(14, 1, S_Q, S_WR + 1, 0)
        c = sc.chain(it, 1)
        sc.g[63].append(("S", lambda: bar([W15 + (1,)])))
        self.place_dma(sc, d, 65, 4)
        sc.chain(self.xa_items(S_X + 1, S_X + 2, nx), 18)
        self.wa_sched(sc, S_WR, S_WR + 1, 20, 16 + 64 + 8)
        self.seg_emit(sc, 96, stamp_at=24)
        sc = self.seg_open("D14", [], None, 5, [2, 3, 4, 5, 6], X14, W14, half=lambda nt: 1 - (nt >> 2), nextnt=7, maxS=1, barrier=False)
        it, d = half_dma(13, 1, S_Q + 2, S_WR, 1)
        c = sc.chain(it, 1)
        def b3():
            self.area_next = {1, 3}; bar([W14 + (1,)])
        sc.g[31].append(("S", b3))
        self.place_dma(sc, d, 33, 4)
        sc.chain(self.xa_items(S_X, S_X + 1, nx), 18)
        self.wa_sched(sc, S_WR + 1, S_WR, 10, 24)
        self.wa_sched(sc, S_WR, S_WR + 1, 50, 16 + 64 + 8)
        self.seg_emit(sc, 192, stamp_at=26)
        sc = self.seg_open("B13", [W13 + (1,)], None, 7, [4, 5, 6], X13, W13, half=1, nextnt=7, maxS=1); at_barrier()
        def b4():
            self.area_next = {2}; bar()
        sc.g[31].append(("S", b4))
        sc.chain(self.xa_items(S_X + 2, S_X, nx), 18)
        self.wa_sched(sc, S_WR + 1, S_WR, 20, 16 + 32 + 8)
        self.seg_emit(sc, 288, stamp_at=24)
        sc = self.seg_open("E15", [], None, 7, [6], X15, W15, half=1, nextnt=7, maxS=1, barrier=False)
        self.seg_emit(sc, 352, stamp_at=24)
        sc = self.seg_open("FIN", [], None, 7, [], None, None, barrier=False, maxS=1)
        self.seg_emit(sc, 384, stamp_at=8)
        for k, fn, pos in self.stream:
            if k == "U": self.mfma(fn)
            else: fn()
        self.stream = []
        while self.stream2 and self.stream2[0][0] in "DSR" and not (self.stream2[0][0] == "S" and self.stream2[1][0] == "A"):
            self.stream2.pop(0)[1]()
        self.stream2 = []
        e("s_nop 7")
        todo = []
        dreg = lambda x: XF(x % 8, (x // 8) & 1)
        def publish():
            bar(every=True)
            for x in sorted(self.visible):
                if x not in self.rd_at:
                    if x // 8 != self.ra:
                        for k, fn in switch(VR, x // 8, "ra"): fn()
                    rdback(x, "a", dreg(x), 0); rdback(x, "a", dreg(x), 1); self.rd_at[x] = 0; todo.append(x)
        def drain(n):
            for _ in range(n):
                if todo:
                    x = todo.pop(0); self.wait(ltags=[("C", x)]); store(x, ar(dreg(x), 4))
        assert nf <= 24
        B7 = [V_WC[0], V_XC[0], V_WC[1], V_XC[1]]
        e(f"v_lshlrev_b32 v{B7[0]}, 16, v{B7[1]}"); e(f"v_and_b32 v{B7[1]}, s{S_MASK}, v{B7[1]}")
        e(f"v_lshlrev_b32 v{B7[2]}, 16, v{B7[3]}"); e(f"v_and_b32 v{B7[3]}, s{S_MASK}, v{B7[3]}")
        if o.fmode == 0 and self.written - set(self.rd_at): publish()
        for f in range(nf, 32):
            p, mt = f // 8, f % 8
            tb = tbf(f)
            if mt == 0:
                for k, fn in switch(VW, p, "wa_"): fn()
            for h in (1, 0):
                pf, r = ACC(mt, 2 * p + h)
                if pf == "a":
                    for i in range(4): e(f"v_accvgpr_read_b32 v{AT+i}, a{r+i}")
                    if h == 1:
                        for i in range(4): e(f"v_add_f32 v{AT+i}, v{AT+i}, v{B7[i]}")
                    r = AT
                for d2 in range(2): e(f"v_pk_mul_f32 {vr(tb+4*h+2*d2,2)}, {vr(tb+4*h+2*d2,2)}, {vr(r+2*d2,2)}")
            for d2 in range(4): e(f"v_cvt_pk_bf16_f32 v{tb+d2}, v{tb+2*d2}, v{tb+2*d2+1}")
            if o.fmode == 1:
                n0 = len(todo)
                if str(f - 24) in o.fpub and self.written - set(self.rd_at): publish()
                drain(min(n0, o.fdrain))
            if f + 2 < 32: self.mfma(U(f + 2, 1)[1])
            wr(f)
            if f + 2 < 32: self.mfma(U(f + 2, 0)[1])
            if o.fmode == 0:
                drain(o.fdrain)
                if (f - nf) % o.fgrp == o.fgrp - 1 or f == 31: publish()
        if o.fmode == 1:
            drain(32); publish()
        drain(32)
        assert self.stored == set(range(32))
        e(f"s_or_b32 s{S_TA}, s{S_J}, s{S_WAVE}"); e(f"s_cmp_lg_u32 s{S_TA}, 0"); e("s_cbranch_scc1 L_fin")
        e(f"s_add_u32 s{S_TA}, s{S_EP}, 16"); e(f"v_mov_b32 v{V_FLAG}, s{S_TA}")
        e(f"buffer_store_dword v{V_FLAG}, off, {sr(S_WS,4)}, s{S_EPOFF} sc1")
        self.label("L_fin")
        if o.diag:
            e(f"s_memtime s[{S_ST}:{S_ST+1}]"); e("s_waitcnt vmcnt(0)"); e(f"s_memtime s[{S_ST+2}:{S_ST+3}]")
            e(f"s_memrealtime s[{S_RT+2}:{S_RT+3}]"); e("s_waitcnt lgkmcnt(0)")
            e(f"v_writelane_b32 v{V_ST[0]}, s{S_ST}, 62"); e(f"v_writelane_b32 v{V_ST[1]}, s{S_ST+2}, 62")
            e(f"v_writelane_b32 v{V_ST[0]}, s{S_RT}, 61"); e(f"v_writelane_b32 v{V_ST[1]}, s{S_RT+2}, 61")
            e(f"s_lshl_b32 s{S_TA}, s2, 2"); e(f"s_add_u32 s{S_TA}, s{S_TA}, s{S_WAVE}"); e(f"s_lshl_b32 s{S_TA}, s{S_TA}, 9")
            e(f"s_add_u32 s{S_TA}, s{S_TA}, {hex(ST_OFF)}"); e("v_lshrrev_b32 v0, 2, v0")
            e(f"buffer_store_dword v{V_ST[0]}, v0, {sr(S_WS,4)}, s{S_TA} offen")
            e(f"buffer_store_dword v{V_ST[1]}, v0, {sr(S_WS,4)}, s{S_TA} offen offset:256")
            if o.echo:
                a, b = o.echo.split(",")
                if a == "pad":
                    e(f"s_add_u32 s{S_TB}, s{S_RT}, {b}")
                else:
                    reg = V_ST[0] if o.echoc else V_ST[1]
                    if a == "s": e(f"s_mov_b32 s{S_TA}, s{S_D0 if o.echoc else S_RT}")
                    else: e(f"v_readlane_b32 s{S_TA}, v{reg}, {a}")
                    if b == "e": e(f"s_mov_b32 s{S_TB}, s{S_ST+2 if o.echoc else S_RT+2}")
                    else: e(f"v_readlane_b32 s{S_TB}, v{reg}, {b}")
                    e("s_nop 4")
                    e(f"s_sub_u32 s{S_TB}, s{S_TB}, s{S_TA}")
                    if o.echoc: e(f"s_sub_u32 s{S_TB}, s{S_TB}, {o.echob}"); e(f"s_lshr_b32 s{S_TB}, s{S_TB}, {o.echos}")
                    e(f"s_min_u32 s{S_TB}, s{S_TB}, 20000")
                    e(f"s_add_u32 s{S_TB}, s{S_TB}, s{S_RT+2}")
                self.label("L_echo")
                e(f"s_memrealtime s[{S_ST}:{S_ST+1}]"); e("s_waitcnt lgkmcnt(0)")
                e(f"s_sub_u32 s{S_ST}, s{S_ST}, s{S_TB}"); e(f"s_cmp_lt_i32 s{S_ST}, 0"); e("s_cbranch_scc1 L_echo")
        e("s_endpgm")

    def sizes(self, lines):
        import subprocess, tempfile, os
        labels = set()
        for l in lines:
            m = re.search(r"(?:branch\w*|L_\w+-)\s*(\w+)", l)
        src = '.amdgcn_target "amdgcn-amd-amdhsa--gfx950"\n.text\n'
        body = []
        for l in lines:
            if l.endswith(":"): continue
            if "branch" in l: l = "s_nop 0"
            l = re.sub(r"L_\w+-L_pc(-4)?", "0x12345", l)
            body.append(l)
        with tempfile.TemporaryDirectory() as d:
            open(d + "/a.s", "w").write(src + "\n".join(body) + "\n")
            subprocess.run(["clang", "-x", "assembler", "-target", "amdgcn-amd-amdhsa", "-mcpu=gfx950", "-c", d + "/a.s", "-o", d + "/a.o"], check=True)
            dis = subprocess.run(["llvm-objdump", "-d", "--mcpu=gfx950", d + "/a.o"], capture_output=True, text=True).stdout
        sz = [4 * len(l.split(": ")[-1].split()) for l in dis.splitlines() if "//" in l]
        assert len(sz) == len(body), (len(sz), len(body))
        out = []; k = 0
        for l in lines:
            if l.endswith(":"): out.append(0)
            else: out.append(sz[k]); k += 1
        return out
    def add_hops(self, o, caps):
        sz = self.sizes(o)
        wt = []; w = 1
        for l in o:
            if l == "L_G0:": w = 13
            if l == "L_T14:": w = 2
            if l == "L_G1:": w = 18
            if l == "L_TAIL:": w = 1
            wt.append(w)
        def layout(X):
            out = ["@HOP"]; pos = X + 4; nextpage = 4096; cost = 0
            i = 0
            while i < len(o):
                if pos >= nextpage:
                    best = None; p = pos; j = i
                    while j < len(o) and p < nextpage + 56:
                        if j > 0 and o[j - 1].startswith("v_mfma"):
                            n = 0
                            while j + n < len(o) and not o[j + n].startswith("v_mfma"): n += 1
                            if best is None or n < best[0]: best = (n, j)
                        p += sz[j]; j += 1
                    tgt = best[1] if best else i
                    cost += wt[tgt] * (self.opt.hopw + 10 * min(best[0] if best else 1, 1))
                    while i < tgt:
                        out.append(o[i]); pos += sz[i]; i += 1
                    out.append("@HOP"); pos += 4
                    nextpage += 4096
                    continue
                if o[i] in ("L_G0:", "L_G1:") and self.opt.algn >= 0:
                    need = ((self.opt.algn - pos) % 64) // 4
                    k = len(out)
                    if out[-1].startswith("s_branch"):
                        out += ["s_nop 0"] * need; pos += 4 * need; need = 0
                    while need > 0:
                        while not (out[k - 1].startswith("v_mfma") and (k == len(out) or out[k].startswith("v_mfma"))):
                            k -= 1
                            if out[k] == "@HOP": cost += 1000
                        m = min(need, 3)
                        out[k:k] = ["s_nop 0"] * m; pos += 4 * m; need -= m; k -= 1
                out.append(o[i]); pos += sz[i]; i += 1
            return cost + 30 * out.count("@HOP"), X, out
        cost, self.skip, out = min((layout(X) for X in (range(0, 4096, 64) if self.opt.skip < 0 else [self.opt.skip])), key=lambda r: r[:2])
        self.hopcost = cost
        for b in caps:
            for l in b:
                out.append(l)
                if l.endswith(":") and l.startswith("CAP"): out.append("@HOP")
        n = out.count("@HOP"); k = 0; res = []
        for l in out:
            if l == "@HOP":
                res.append(f"HOP{k}:"); res.append(f"s_cbranch_execz " + (f"HOP{k+4}" if k + 4 < n else "HOPEND")); k += 1
            else: res.append(l)
        self.nhops = n
        return res

    def build(self):
        self.stored = set()
        self.prologue()
        main = self.out
        texts = {}
        def gen(kind, layer, t):
            self.out = []
            self.body(kind, layer, t)
            if kind in texts and texts[kind] != self.out:
                for a, b in zip(texts[kind], self.out):
                    if a != b: print("DIFF", kind, layer, t, a, "|", b); break
                raise RuntimeError(f"body {kind} differs at layer {layer} t {t}")
            texts[kind] = self.out
        for layer in range(3):
            for t in range(16 if layer < 2 else 13):
                if layer == 0: kind = "E0" if t == 0 else ("G0" if t < 14 else f"T{t}")
                else: kind = "H0" if t == 0 else (f"S{t}" if t <= self.opt.ns else ("G1" if t < 14 else f"T{t}"))
                gen(kind, layer, t)
        self.out = []; self.tail(); texts["TAIL"] = self.out
        if self.opt.x:
            x = self.opt.x; g = []
            for l in texts["G1"]:
                if "d" in x and l.startswith("buffer_load_dwordx4"): l = "s_mov_b32 s70, 0x12345"
                if "p" in x and l.startswith("s_cbranch_scc1 SLOW"): l = "s_nop 0"
                if "p" in x and l.startswith("buffer_load_dword "): l = "s_mov_b32 s70, 0x12345"
                if "f" in x and l.startswith("buffer_store_dword "): l = "s_mov_b32 s70, 0x12345"
                if "b" in x and l == "s_barrier": l = "s_nop 0"
                if "l" in x and l.startswith("ds_read"): l = "s_mov_b32 s70, 0x12345"
                g.append(l)
            texts["G1"] = g
            if "p" in x: texts["TAIL"] = ["s_nop 0" if l.startswith("s_cbranch_scc1 SLOW") else l for l in texts["TAIL"]]
        o = texts["E0"][:]
        o += self.entry.get("G0", [])
        o += ["L_G0:"] + texts["G0"] + ["s_cbranch_scc1 L_G0"]
        o += ["L_T14:"] + texts["T14"] + texts["T15"] + texts["H0"] + texts["S1"] + texts["S2"] + texts["S3"] + texts.get("S4", [])
        o += self.entry.get("G1", [])
        o += ["L_G1:"] + texts["G1"] + ["s_cbranch_scc1 L_G1"]
        o += [f"s_cmp_eq_u32 s{S_LAYER}, 1", "s_cbranch_scc1 L_T14"]
        o += ["L_TAIL:"] + texts["TAIL"]
        caps = [b for k, b in self.ool.items() if k.startswith("CAP")]
        slow = [b for k, b in self.ool.items() if not k.startswith("CAP")]
        if self.opt.hops:
            o = self.add_hops(o, caps)
            o = main + ["s_branch L_main"] + sum(slow, []) + [".p2align 12"] + ([f".fill {self.skip//4}, 4, 0xbf800000"] if self.skip else []) + ["L_main:"] + o
        else:
            o = main + o + sum(caps, []) + sum(slow, [])
        self.texts = texts
        hdr = open("standalone__dcn_v2_cross__recsys.s.ref").read().split("\n")
        top = [l for l in hdr if l.startswith(";") and "@launch" not in l]
        if self.opt.diag: top.append("; STAMPS " + ("RT " if self.opt.diagrt else "CY ") + " ".join(self.stamps))
        txt = "\n".join(top) + f"\n; @launch grid=(256,1,1) block=(256,1,1) lds={SLOT*5}\n"
        txt += f""".amdgcn_target "amdgcn-amd-amdhsa--gfx950"
.text
.globl {NAME}
.p2align 8
.type {NAME},@function
{NAME}:
"""
        txt += "\n".join(o) + "\nL_codeend:\n"
        txt += f""".section .rodata,"a"
.p2align 6
.amdhsa_kernel {NAME}
  .amdhsa_next_free_vgpr 512
  .amdhsa_next_free_sgpr 102
  .amdhsa_accum_offset 256
  .amdhsa_group_segment_fixed_size 0
  .amdhsa_kernarg_size 48
  .amdhsa_user_sgpr_count 2
  .amdhsa_user_sgpr_kernarg_segment_ptr 1
  .amdhsa_system_sgpr_workgroup_id_x 1
  .amdhsa_float_denorm_mode_32 3
.end_amdhsa_kernel
"""
        return txt

if __name__ == "__main__":
    ap = argparse.ArgumentParser()
    ap.add_argument("-o", default="k3.s")
    ap.add_argument("--diag", action="store_true")
    ap.add_argument("--diagrt", action="store_true")
    ap.add_argument("--diagc", action="store_true")
    ap.add_argument("--pace", type=float, default=7)
    ap.add_argument("--pacex", type=float, default=7.5)
    ap.add_argument("--paceh", type=float, default=8)
    ap.add_argument("--pacet", type=float, default=3.3)
    ap.add_argument("--xr15", type=float, default=0.04)
    ap.add_argument("--xr0", type=float, default=-1)
    ap.add_argument("--xrt", type=float, default=0.0)
    ap.add_argument("--flag0", type=int, default=0)
    ap.add_argument("--early", type=int, default=10)
    ap.add_argument("--direct", default="8343")
    ap.add_argument("--ns", type=int, default=3)
    ap.add_argument("--cn", default="545")
    ap.add_argument("--c0", type=int, default=66)
    ap.add_argument("--c1", type=int, default=124)
    ap.add_argument("--asc", type=int, default=1)
    ap.add_argument("--xtouch", type=int, default=0)
    ap.add_argument("--tpf", type=int, default=0)
    ap.add_argument("--hops", type=int, default=1)
    ap.add_argument("--add", default="")
    ap.add_argument("--h0sp", type=int, default=1)
    ap.add_argument("--xd3", type=int, default=1)
    ap.add_argument("--e0pre", type=int, default=10)
    ap.add_argument("--cap4", type=int, default=1)
    ap.add_argument("--fpos", type=int, default=45)
    ap.add_argument("--echos", type=int, default=4)
    ap.add_argument("--echob", type=int, default=0)
    ap.add_argument("--skip", type=int, default=-1)
    ap.add_argument("--hopw", type=int, default=10)
    ap.add_argument("--fmode", type=int, default=0)
    ap.add_argument("--fpub", default="01234567")
    ap.add_argument("--xbpos", type=int, default=12)
    ap.add_argument("--snake", type=int, default=1)
    ap.add_argument("--wpos", type=int, default=1)
    ap.add_argument("--diag2", action="store_true")
    ap.add_argument("--pace0", type=float, default=7)
    ap.add_argument("--pacex0", type=float, default=7.5)
    ap.add_argument("--xrot", type=int, default=0)
    ap.add_argument("--b0pre", type=int, default=4)
    ap.add_argument("--xsp", type=float, default=1.2)
    ap.add_argument("--xso", type=float, default=3.0)
    ap.add_argument("--gw", type=int, default=14)
    ap.add_argument("--xkeep", type=lambda x: [int(y) for y in x.split(",")], default=[])
    ap.add_argument("--entry", type=int, default=1)
    ap.add_argument("--finit", type=int, default=1)
    ap.add_argument("--stx", type=int, default=0)
    ap.add_argument("--stpos", type=int, default=0)
    ap.add_argument("--fdrop", type=int, default=1)
    ap.add_argument("--pollpos", type=int, default=58)
    ap.add_argument("--wpf", type=int, default=0)
    ap.add_argument("--wpd", type=int, default=2)
    ap.add_argument("--algn", type=int, default=16)
    ap.add_argument("--tsplit", type=int, default=0)
    ap.add_argument("--touch", type=int, default=2)
    ap.add_argument("--prex", type=int, default=0)
    ap.add_argument("--zdist", type=int, default=5)
    ap.add_argument("--rdist", type=int, default=8)
    ap.add_argument("--wl2", type=int, default=0)
    ap.add_argument("--echo", default="")
    ap.add_argument("--echoc", type=int, default=0)
    ap.add_argument("--x0f", default="nt")
    ap.add_argument("--e1out", type=int, default=1)
    ap.add_argument("--wwarm", type=int, default=1)
    ap.add_argument("--w0warm", type=int, default=0)
    ap.add_argument("-x", default="")
    ap.add_argument("--wr128", type=int, default=0)
    ap.add_argument("--nft", type=int, default=24)
    ap.add_argument("--sp", type=float, default=10)
    ap.add_argument("--spo", type=float, default=22)
    ap.add_argument("--sp2", type=float, default=9)
    ap.add_argument("--spo2", type=float, default=16)
    ap.add_argument("--xrb", type=float, default=0.0)
    ap.add_argument("--fdrain", type=int, default=1)
    ap.add_argument("--fgrp", type=int, default=3)
    ap.add_argument("--outf", default="sc1")
    opt = ap.parse_args()
    if opt.diagrt: opt.diag = True
    SNAKE = bool(opt.snake)
    if opt.xr0 < 0:
        opt.xr0 = 0.0
        while True:
            try:
                g = G(opt); txt = g.build(); break
            except AssertionError as ex:
                if not (ex.args and (ex.args[0] == "stream left" or ex.args[0][0] == "deadline")): raise
                opt.xr0 += 0.01
                if opt.xr0 > 1: raise
    else:
        g = G(opt); txt = g.build()
    open(opt.o, "w").write(txt)
    print(f"xr0 {opt.xr0:.2f} skip {getattr(g,'skip',0)} hopcost {getattr(g,'hopcost',0)} nhops {getattr(g,'nhops',0)} fallback waits:", g.warn, {k: len(v) for k, v in g.texts.items()})
```

```python
import sys, re, argparse

NAME = "standalone__dcn_v2_cross__recsys_kernel"
SLOT = 32768
FL_OFF = 64 << 20
EP_OFF = FL_OFF + 65536
ST_OFF = 80 << 20

def vr(b, n=1, p="v"):
    return f"{p}{b}" if n == 1 else f"{p}[{b}:{b+n-1}]"
def ar(b, n=1): return vr(b, n, "a")
def sr(b, n=1): return vr(b, n, "s")

def XF(mt, s): return (mt * 2 + s) * 4
def WF(buf, s): return 64 + buf * 8 + s * 4
def X0(p, mt): return 80 + (p * 8 + mt) * 4
def SEL(h): return 208 + 4 * h
ACC_A0 = 216
ACC_V0 = 40
_acc = {}
def _init_acc():
    va, aa = ACC_V0, ACC_A0
    for nt in range(8):
        for mt in range(8):
            if nt == 7 or (nt == 6 and mt < 2):
                _acc[(mt, nt)] = ("a", aa); aa += 4
            else:
                _acc[(mt, nt)] = ("v", va); va += 4
    assert va == 256 and aa == 256
_init_acc()
def ACC(mt, nt): return _acc[(mt, nt)]

V_L16 = 0; V_XA = [1, 2]; V_WA = [3, 4]; V_WC = [5, 6]; V_XC = [7, 8]; V_CPG = 15; V_CPL = 9
V_POLL = 10; V_FLAG = 11; V_B = 12; V_ST = [13, 14]; V_T = 16; V_XT = 30; V_CAP = 36; V_WT = 37; V_BR = 38
S_DW = 4; S_TR = 5; S_E0 = 6; S_KEY = 7
S_W = 8; S_X0 = 12; S_WS = 16; S_OUT = 20; S_B = 24
S_WT = 28; S_XT = 32
S_X = 36
S_WR = 39
S_Q = 41
S_WCUR = 44; S_WL = 45; S_XB = 46; S_FB = 47; S_FOWN = 48; S_EP = 49; S_NEED = 50; S_FV = 51; S_WLM = 52
S_PA = 53; S_J = 54; S_WAVE = 55; S_RB = 56; S_LOOP = 57; S_LAYER = 58; S_ADJ = 59; S_OADJ = 60; S_WC64 = 61
S_M4 = 62; S_MASK = 65; S_EPOFF = 66; S_CNT = 67; S_CAPJ = 68; S_BOFF = 69
S_TA = 70; S_TB = 71; S_TC = 72; S_TD = 73; S_TE = 74; S_TF = 75; S_O2 = 76; S_O3 = 77; S_WR14 = 78; S_DX = 79
S_PC = 80; S_ST = 82; S_RT = 86; S_SI = 90; S_LEND = 91; S_D0 = 92
S_FQ = 96
S_TG = 99; S_TH = 100; S_M7 = 101; S_XCUR = 3; S_XTO = 28

RANK = {"S": 0, "G": 1, "D": 2, "V": 3}

class Sched:
    def __init__(self, n, maxS=3):
        self.n = n
        self.g = [[] for _ in range(n)]
        self.closedS = set()
        self.maxS = maxS
    def fits(self, g, kind):
        kinds = [k for k, _ in self.g[g]]
        if kind == "G": return len(kinds) == 0
        if "G" in kinds: return False
        nvec = sum(k in "DV" for k in kinds)
        if kind == "S":
            if g in self.closedS or kinds.count("S") >= self.maxS: return False
            return len(kinds) < 3
        return nvec < 2 and len(kinds) < 3
    def put(self, g, kind, fn): self.g[g].append((kind, fn))
    def place(self, kind, fn, lo, hi=None):
        hi = self.n - 1 if hi is None else hi
        for g in range(lo, hi + 1):
            if self.fits(g, kind):
                self.put(g, kind, fn); return g
        raise RuntimeError(f"cannot place {kind} in [{lo},{hi}]")
    def chain(self, items, lo, hi=None):
        out = []; g = lo; pk = None
        for kind, fn in items:
            if pk is not None and (RANK[kind] < RANK[pk] or kind == "G" or pk == "G"): g += 1
            g = self.place(kind, fn, g, hi)
            out.append(g); pk = kind
        return out
    def branch(self, cmpfn, brfn, lo):
        for g in range(lo, self.n - 1):
            if self.fits(g, "S") and self.fits(g + 1, "G"):
                self.put(g, "S", cmpfn); self.closedS.add(g); self.put(g + 1, "G", brfn); return g + 1
        raise RuntimeError("branch")
    def last_su(self):
        last = 0
        for g in range(self.n):
            if any(getattr(f, "su", False) for _, f in self.g[g]): last = g
        return last + 1

def mt_off(mt):
    if mt == 0: return "0", 0
    if mt < 4: return f"s{S_XT+mt}", (mt & 1) * 2048
    return f"s{[S_M4, S_M4+1, S_M4+2, S_M7][mt-4]}", 0

SNAKE = True
def blk(nt, cinit=False):
    r = []
    for mt in range(8):
        ss = (0, 1) if (mt % 2 == 0 and SNAKE) else (1, 0)
        r += [(mt, nt, ss[0], cinit), (mt, nt, ss[1], False)]
    return r

class G:
    def __init__(self, opt):
        self.opt = opt
        self.out = []
        self.vq = []; self.lq = []
        self.ool = {}
        self.slot = {}
        self.lds_own = {}
        self.xa = None; self.wa = None
        self.warn = 0
        self.stamps = []
        self.stream = []; self.stream2 = []; self.entry = {}
        self.pending = None
    def e(self, s): self.out.append(s)
    def E(self, s): return lambda: self.e(s)
    def S(self, s): return ("S", self.E(s))
    def V(self, s): return ("V", self.E(s))
    def SU(self, s, then=None):
        def f():
            self.e(s)
            if then: then()
        f.su = True
        return ("S", f)
    def label(self, n): self.out.append(n + ":")
    def vm(self, s, tag=None):
        self.e(s); self.vq.append(tag); assert len(self.vq) <= 62
    def VM(self, s, tag=None): return ("G", lambda: self.vm(s, tag))
    def lds(self, s, tag=None):
        self.e(s); self.lq.append(tag)
    def _need(self, q, tags, mx, force=None):
        idx = -1
        for i, t in enumerate(q):
            if t in tags: idx = i
        if idx < 0 and force is None: return None
        n = len(q) - 1 - idx
        if force is not None:
            assert n >= force or idx < 0, (n, force, q)
            n = force
        n = min(n, mx)
        if len(q) > n: del q[:len(q) - n]
        return n
    def wait(self, vtags=(), ltags=(), lall=False, vforce=None):
        parts = []
        n = self._need(self.vq, set(vtags), 62, vforce)
        if n is not None: parts.append(f"vmcnt({n})")
        if lall:
            parts.append("lgkmcnt(0)"); self.lq = []
        else:
            n = self._need(self.lq, set(ltags), 14)
            if n is not None: parts.append(f"lgkmcnt({n})")
        if parts: self.e("s_waitcnt " + " ".join(parts))
    def smov(self, d, s):
        def f():
            self.e(f"s_mov_b32 s{d}, s{s}"); self.slot[d] = self.slot[s]
        return ("S", f)

    def mfma(self, m):
        if m[0] == "U":
            _, p, mt, h, tb = m
            self.e(f"v_mfma_f32_16x16x32_bf16 {vr(tb+4*h,4)}, {ar(SEL(h),4)}, {ar(X0(p,mt),4)}, 0")
            return
        mt, nt, s, cinit = m
        buf = nt & 1
        tags = {("XF", mt, s), ("WF", buf, s, 0), ("WF", buf, s, 1)}
        if tags & set(self.lq):
            self.warn += 1
            self.wait(ltags=tags)
        p, r = ACC(mt, nt)
        c = vr(r, 4, p)
        if cinit and p == "v" and mt != 7: c = vr(ACC(7, nt)[1], 4)
        self.e(f"v_mfma_f32_16x16x32_bf16 {vr(r,4,p)}, {ar(WF(buf,s),4)}, {ar(XF(mt,s),4)}, {c}")
    def rd_xf(self, mt, s, want):
        def f():
            assert self.lds_own[self.xa] == want, (self.lds_own[self.xa], want)
            self.lds(f"ds_read_b128 {ar(XF(mt,s),4)}, v{V_XA[s]} offset:{mt*2048}", ("XF", mt, s))
        return f
    def rd_wf(self, nt, s, u, want, half=None):
        p, h = nt >> 1, nt & 1
        if callable(half): half = half(nt)
        off = (p >> 1 if half is None else half) * 16384 + (p & 1) * 512 + s * 8192 + u * 4096
        def f():
            if half is None: assert self.lds_own[self.wa[h]] == want, (self.lds_own[self.wa[h]], want)
            else:
                assert self.lds_half[(self.wa[h], half)] == want + (p >> 1,), (self.lds_half, self.wa[h], half, want, nt)
                assert want + (p >> 1,) in self.landed
            self.lds(f"ds_read_b64_tr_b16 {ar(WF(h,s)+2*u,2)}, v{V_WA[h]} offset:{off}", ("WF", h, s, u))
        return f
    def dma_items(self, what, sdst, form):
        items = []
        if form == "X0" and self.opt.xrot:
            RM = [S_O2, S_O3, S_Q + 1, S_Q + 2]; RS = [S_WLM, S_KEY, S_TG, S_TH]
            for k in range(4):
                items.append(self.SU(f"s_add_u32 m0, s{sdst}, s{RM[k]}", lambda: self.lds_own.__setitem__(self.slot[sdst], what)))
                for i in range(2):
                    items.append(self.VM(f"buffer_load_dwordx4 v{V_XC[i]}, {sr(S_X0,4)}, s{RS[k]} offen" + (" offset:1024" if i else "") + f" {self.opt.x0f} lds", what))
            return items
        for i in range(8):
            if i == 0: items.append(self.SU(f"s_mov_b32 m0, s{sdst}", lambda: self.lds_own.__setitem__(self.slot[sdst], what)))
            if i == 4:
                def chk(): assert self.lds_own[self.slot[sdst]] == what
                items.append(self.SU(f"s_add_u32 m0, s{sdst}, 0x1000", chk))
            off = f" offset:{(i&3)*1024}" if i & 3 else ""
            if form == "W":
                so = "0" if i < 2 else f"s{S_WT+(i>>1)}"
                s = f"buffer_load_dwordx4 v{V_WC[i&1]}, {sr(S_W,4)}, {so} offen{off} lds"
            elif form == "X0":
                so = "0" if i < 2 else f"s{S_XT+(i>>1)}"
                s = f"buffer_load_dwordx4 v{V_XC[i&1]}, {sr(S_X0,4)}, {so} offen{off} {self.opt.x0f} lds"
            else:
                so = "0" if i < 2 else f"s{S_XT+(i>>1)}"
                s = f"buffer_load_dwordx4 v{V_XC[i&1]}, {sr(S_X0,4)}, {so} offen{off} sc1 lds"
            items.append(self.VM(s, what))
        return items
    def place_dma(self, sc, items, lo, pace):
        g = lo; prev = -1; pend = None
        for kind, fn in items:
            if kind == "S": pend = fn; continue
            g0 = max(int(g), prev + 1)
            if pend is not None:
                gs = sc.place("S", pend, max(prev + 1, g0 - 2, 0)); g0 = max(g0, gs + 1); pend = None
            prev = sc.place("G", fn, g0)
            g += pace
        return prev
    def w_setup(self, tidreg, base):
        return [self.S(f"s_lshl_b32 s{S_TA}, s{tidreg}, 17"), self.S(f"s_add_u32 s{S_TA}, s{S_TA}, s{base}"),
                self.S(f"s_sub_u32 s{S_TB}, s{S_TA}, s{S_WCUR}"), self.S(f"s_mov_b32 s{S_WCUR}, s{S_TA}"),
                self.V(f"v_add_u32 v{V_WC[0]}, s{S_TB}, v{V_WC[0]}"), self.V(f"v_add_u32 v{V_WC[1]}, s{S_TB}, v{V_WC[1]}")]
    def x_setup(self, tidreg):
        return [self.S(f"s_lshl_b32 s{S_TE}, s{tidreg}, 7"), self.S(f"s_sub_u32 s{S_DX}, s{S_TE}, s{S_XCUR}"), self.S(f"s_mov_b32 s{S_XCUR}, s{S_TE}"),
                self.V(f"v_add_u32 v{V_XC[0]}, s{S_DX}, v{V_XC[0]}"), self.V(f"v_add_u32 v{V_XC[1]}, s{S_DX}, v{V_XC[1]}")]
    def flag_items(self):
        return [self.V(f"v_mov_b32 v{V_FLAG}, s{S_FV}"),
                self.VM(f"buffer_store_dword v{V_FLAG}, off, {sr(S_WS,4)}, s{S_FOWN} sc1", "F"),
                self.S(f"s_add_u32 s{S_FV}, s{S_FV}, 1")]
    def poll_check(self, sc, name, tag, lo):
        sl, bk = f"SLOW_{name}", f"BACK_{name}"
        def f0():
            assert tag not in self.vq
            self.e(f"v_readfirstlane_b32 s{S_TC}, v{V_POLL}")
        c = sc.chain([self.S(f"s_and_b32 s{S_TD}, s{S_Q+1}, 3"), self.S(f"s_add_u32 s{S_TD}, s{S_TD}, s{S_NEED}"),
                      ("V", f0), self.S(f"s_sub_u32 s{S_TC}, s{S_TC}, s{S_TD}")], lo)
        def br():
            self.e(f"s_cbranch_scc1 {sl}"); self.label(bk)
        gbr = sc.branch(self.E(f"s_cmp_gt_u32 s{S_TC}, 7"), br, c[-1])
        self.ool[sl] = [f"{sl}:",
                        f"buffer_load_dword v{V_POLL}, off, {sr(S_WS,4)}, s{S_PA} sc1", "s_waitcnt vmcnt(0)",
                        f"v_readfirstlane_b32 s{S_TC}, v{V_POLL}", f"s_cmp_eq_u32 s{S_CNT}, 0", f"s_cbranch_scc1 {bk}",
                        f"s_sub_u32 s{S_CNT}, s{S_CNT}, 1",
                        f"s_sub_u32 s{S_TC}, s{S_TC}, s{S_TD}", f"s_cmp_gt_u32 s{S_TC}, 7", f"s_cbranch_scc0 {bk}",
                        "s_sleep 1", f"s_branch {sl}"]
        return gbr
    def stamp(self, which):
        if self.opt.diagrt:
            if which == 1:
                self.e(f"s_memtime s[{S_ST}:{S_ST+1}]"); self.e(f"s_memrealtime s[{S_ST+2}:{S_ST+3}]")
            return
        self.e(f"s_memtime s[{S_ST+2*which}:{S_ST+2*which+1}]")
    def stamp_items(self):
        def f():
            self.e(f"s_lshl_b64 exec, 1, s{S_SI}"); self.e(f"v_mov_b32 v{V_ST[0]}, s{S_ST}"); self.e(f"v_mov_b32 v{V_ST[1]}, s{S_ST+2}")
            self.e("s_mov_b64 exec, -1"); self.e(f"s_add_u32 s{S_SI}, s{S_SI}, 1")
        return [("G", f)]
    def epi_valu(self, p, mt, tb, at, ob):
        ops = []
        for h in range(2):
            pf, r = ACC(mt, 2 * p + h)
            if pf == "a":
                for i in range(4): ops.append(f"v_accvgpr_read_b32 v{at+i}, a{r+i}")
                r = at
            for i in range(4): ops.append(f"v_mul_f32 v{tb+4*h+i}, v{tb+4*h+i}, v{r+i}")
        for d in range(4): ops.append(f"v_cvt_pk_bf16_f32 v{ob+d}, v{tb+2*d}, v{tb+2*d+1}")
        return ops
    def bunpack(self, nt, d):
        dpp = f"row_newbcast:{nt} row_mask:0xf bank_mask:0xf"
        return [f"v_mov_b32_dpp v{d[1]}, v{V_BR} {dpp}", f"v_mov_b32_dpp v{d[3]}, v{V_BR+1} {dpp}",
                f"v_lshlrev_b32 v{d[0]}, 16, v{d[1]}", f"v_and_b32 v{d[1]}, s{S_MASK}, v{d[1]}",
                f"v_lshlrev_b32 v{d[2]}, 16, v{d[3]}", f"v_and_b32 v{d[3]}, s{S_MASK}, v{d[3]}"]
    def bias_sched(self, sc, nt, g, busy, a0):
        f = [V_T + 16 + i for i in range(4)]
        g = sc.chain([self.V(x) for x in self.bunpack(nt, f)], g)[-1]
        ops = []
        for mt in range(8):
            pf, a = ACC(mt, nt)
            if pf == "v":
                ops += [f"v_add_f32 v{a+i}, v{a+i}, v{f[i]}" for i in range(4)]
            else:
                for i in (0, 2):
                    ops += [f"v_accvgpr_read_b32 v{a0}, a{a+i}", f"v_accvgpr_read_b32 v{a0+1}, a{a+i+1}",
                            f"v_add_f32 v{a0}, v{a0}, v{f[i]}", f"v_add_f32 v{a0+1}, v{a0+1}, v{f[i+1]}",
                            f"v_accvgpr_write_b32 a{a+i}, v{a0}", f"v_accvgpr_write_b32 a{a+i+1}, v{a0+1}"]
        b0, b1 = busy
        est = g + len(ops) // 2 + len(ops) // 3 + 4
        if est < b0 - 2: lo, hi = g, b0 - 2
        else: lo, hi = max(g, b1 + 6), sc.n - 1
        return sc.chain([self.V(x) for x in ops], lo, hi)[-1]
    def bias0_ops(self, nt):
        d = ACC(7, nt)[1]
        return self.bunpack(nt, [d, d + 1, d + 2, d + 3]) + [f"v_add_f32 v{d+i}, 1.0, v{d+i}" for i in range(4)]

    def prologue(self):
        e = self.e; o = self.opt
        e("s_cmp_lt_u32 s2, 256"); e("s_cbranch_scc1 L_go"); e("s_endpgm")
        self.label("L_go")
        for r, off in ((S_X0, 0), (S_W, 8), (S_B, 16), (S_OUT, 24), (S_WS, 40)):
            e(f"s_load_dwordx2 s[{r}:{r+1}], s[0:1], {off}")
        if o.diag:
            e(f"s_memrealtime s[{S_RT}:{S_RT+1}]"); e(f"s_memtime s[{S_D0}:{S_D0+1}]")
        nst = [0]
        def pst():
            if not o.diag2: return
            e(f"s_memtime s[{S_D0+2}:{S_D0+3}]"); e("s_waitcnt lgkmcnt(0)"); e(f"v_writelane_b32 v{V_ST[0]}, s{S_D0+2}, {52+nst[0]}"); nst[0] += 1
        T = 40
        lane, m, q, r4, c4, q1, tw, t0, t1, t2 = [f"v{T+i}" for i in range(10)]
        e(f"s_getpc_b64 s[{S_PC}:{S_PC+1}]")
        self.label("L_pc")
        e(f"v_lshrrev_b32 {t0}, 6, v0")
        e("s_lshr_b32 s3, s2, 3")
        e(f"v_readfirstlane_b32 s{S_WAVE}, {t0}")
        e("v_lshrrev_b32 v16, 4, v0")
        e("v_lshl_add_u32 v16, s3, 4, v16")
        e("v_lshlrev_b32 v16, 7, v16")
        e(f"v_min_u32 v31, L_codeend-L_pc-4, v16")
        self.vm(f"global_load_dword v{V_POLL}, v31, s[{S_PC}:{S_PC+1}]", "PF")
        e(f"s_and_b32 s{S_RB}, s2, 7"); e(f"s_lshr_b32 s{S_TC}, s2, 5"); e(f"s_lshl3_add_u32 s{S_RB}, s{S_RB}, s{S_TC}")
        e(f"v_bfe_u32 {t1}, v0, 3, 3"); e(f"v_and_b32 {t2}, 7, v0"); e(f"v_bfe_u32 {q}, v0, 4, 2")
        e(f"v_xor_b32 {t0}, {t2}, {q}"); e(f"v_lshlrev_b32 {t0}, 4, {t0}"); e(f"v_lshl_add_u32 {t0}, {t1}, 11, {t0}")
        e(f"s_lshl2_add_u32 s{S_PA}, s{S_RB}, s{S_WAVE}"); e(f"s_lshl_b32 s{S_PA}, s{S_PA}, 17")
        e(f"v_add_u32 v{V_XC[0]}, s{S_PA}, {t0}")
        e(f"v_xor_b32 v{V_XC[1]}, 64, v{V_XC[0]}"); e(f"v_add_u32 v{V_XC[1]}, {16384-1024}, v{V_XC[1]}")
        e(f"s_lshl_b32 s{S_X}, s{S_WAVE}, 13"); self.slot[S_X] = 0
        e(f"s_mov_b32 s{S_X0+2}, {16384*1024*2}"); e(f"s_mov_b32 s{S_X0+3}, 0x20000")
        e(f"s_and_b32 s{S_J}, s3, 3")
        for k in range(1, 4): e(f"s_mov_b32 s{S_XT+k}, {k*32768 - (k&1)*2048}")
        if o.xrot:
            for k, (rm, rs) in enumerate(zip([S_O2, S_O3, S_Q + 1, S_Q + 2], [S_WLM, S_KEY, S_TG, S_TH])):
                e(f"s_add_u32 s{rm}, s{S_J}, {k}"); e(f"s_and_b32 s{rm}, s{rm}, 3"); e(f"s_lshl_b32 s{rs}, s{rm}, 15"); e(f"s_lshl_b32 s{rm}, s{rm}, 11")
        e(f"v_bfe_u32 {r4}, v0, 2, 2")
        e(f"s_lshl_b32 s{S_CNT}, s{S_TC}, 15"); e(f"s_add_u32 s{S_CNT}, s{S_CNT}, s{S_X}")
        e(f"s_lshl_b32 s{S_BOFF}, s{S_J}, 9"); e(f"s_add_u32 s{S_CNT}, s{S_CNT}, s{S_BOFF}")
        e(f"v_lshlrev_b32 {tw}, 7, {r4}"); e(f"v_lshl_add_u32 {tw}, {q}, 11, {tw}")
        e(f"s_mov_b32 s{S_W+2}, {3*1024*1024*2}"); e(f"s_mov_b32 s{S_W+3}, 0x20000")
        xit = self.dma_items(("X", 0, 0), S_X, "X0")
        xit[0][1](); xit = xit[1:]
        if o.diag: e(f"v_mov_b32 v{V_ST[0]}, 0"); e(f"v_mov_b32 v{V_ST[1]}, 0")
        e("s_waitcnt lgkmcnt(0)")
        if o.diag: e(f"s_memtime s[{S_ST}:{S_ST+1}]")
        def run(items):
            for k, f in items:
                f()
                if k == "S": e("s_nop 0")
        def wtouch(): self.vm(f"buffer_load_dword v{V_POLL}, {tw}, {sr(S_W,4)}, s{S_CNT} offen", "PF")
        if o.touch == 1: wtouch()
        run(xit)
        if o.touch == 2: wtouch()
        e(f"s_mov_b32 s{S_B+2}, {3*1024*2}"); e(f"s_mov_b32 s{S_B+3}, 0x20000")
        self.vm(f"buffer_load_dword v{V_POLL}, {tw}, {sr(S_B,4)}, s{S_BOFF} offen", "PF")
        pst()
        e(f"s_lshl_b32 s{S_EPOFF}, s{S_RB}, 7"); e(f"s_add_u32 s{S_EPOFF}, s{S_EPOFF}, {hex(EP_OFF)}")
        if not o.diag2: e(f"s_load_dword s{S_EP}, s[{S_WS}:{S_WS+1}], s{S_EPOFF}")
        e(f"v_and_b32 {lane}, 63, v0"); e(f"v_and_b32 {m}, 15, v0"); e(f"v_and_b32 {c4}, 3, v0"); e(f"v_and_b32 {q1}, 1, {q}")
        for r, sl in ((S_X + 1, 2), (S_X + 2, 4), (S_WR, 1), (S_WR + 1, 3)):
            e(f"s_add_u32 s{r}, s{S_X}, {hex(sl*SLOT)}"); self.slot[r] = sl
        e(f"v_lshlrev_b32 v{V_L16}, 4, {lane}")
        e(f"s_lshr_b32 s{S_TA}, s{S_WAVE}, 1"); e(f"s_and_b32 s{S_TB}, s{S_WAVE}, 1")
        for k in range(1, 4): e(f"s_mov_b32 s{S_WT+k}, {(16*(k&1) + 4*(k>>1))*2048 - (k&1)*2048}")
        e(f"s_lshl_b32 s{S_WC64}, s{S_TB}, 6"); e(f"s_add_u32 s{S_PA}, s{S_BOFF}, s{S_WC64}")
        e(f"v_lshlrev_b32 {t0}, 3, {q}"); e(f"v_add_u32 v{V_B}, s{S_PA}, {t0}")
        e(f"v_bfe_u32 {t0}, {lane}, 1, 2"); e(f"v_lshl_add_u32 v{V_B}, {t0}, 7, v{V_B}"); e(f"v_and_b32 {t0}, 1, {lane}"); e(f"v_lshl_add_u32 v{V_B}, {t0}, 5, v{V_B}")
        e(f"s_lshl_b32 s{S_PA}, s{S_TA}, 8"); e(f"s_add_u32 s{S_PA}, s{S_PA}, s{S_BOFF}")
        e(f"s_lshl_b32 s{S_FV}, s{S_TB}, 16"); e(f"s_add_u32 s{S_PA}, s{S_PA}, s{S_FV}")
        e(f"v_lshlrev_b32 {t0}, 4, {c4}"); e(f"v_lshl_add_u32 {t0}, {q}, 6, {t0}"); e(f"v_lshl_add_u32 {t0}, {r4}, 11, {t0}")
        e(f"v_add_u32 v{V_WC[0]}, s{S_PA}, {t0}")
        e(f"v_xor_b32 v{V_WC[1]}, 32, v{V_WC[0]}"); e(f"v_add_u32 v{V_WC[1]}, {16384-1024}, v{V_WC[1]}")
        def w0():
            self.vm(f"buffer_load_dwordx2 {vr(V_BR,2)}, v{V_B}, {sr(S_B,4)}, 0 offen", ("B", 0))
            run(self.dma_items(("W", 0, 0), S_WR, "W"))
            pst()
        if o.wpos == 0: w0()
        e(f"s_mov_b32 s{S_OUT+2}, {16384*1024*2}"); e(f"s_mov_b32 s{S_OUT+3}, 0x20000")
        e(f"s_mov_b32 s{S_WS+2}, 0x10000000"); e(f"s_mov_b32 s{S_WS+3}, 0x20000")
        e(f"s_lshl_b32 s{S_FB}, s{S_RB}, 9"); e(f"s_add_u32 s{S_FB}, s{S_FB}, {hex(FL_OFF)}")
        e(f"v_lshrrev_b32 {t0}, 1, {m}"); e(f"v_xor_b32 {t0}, {q}, {t0}"); e(f"v_lshlrev_b32 {t0}, 4, {t0}"); e(f"v_lshl_add_u32 {t0}, {m}, 7, {t0}")
        e(f"s_lshl_b32 s{S_WR14}, s{S_TA}, 14")
        e(f"v_add_u32 v{V_XA[0]}, s{S_WR14}, {t0}"); e(f"v_xor_b32 v{V_XA[1]}, 64, v{V_XA[0]}")
        self.xa = 0
        e(f"v_lshlrev_b32 {t0}, 10, {q}"); e(f"v_lshl_add_u32 {t0}, {r4}, 6, {t0}"); e(f"v_lshl_add_u32 {t0}, {q1}, 5, {t0}"); e(f"v_lshl_add_u32 {t0}, {c4}, 3, {t0}")
        e(f"s_lshl_b32 s{S_PA}, s{S_TB}, 8"); e(f"s_add_u32 s{S_PA}, s{S_PA}, {SLOT}")
        e(f"v_add_u32 v{V_WA[0]}, s{S_PA}, {t0}")
        e(f"v_xor_b32 v{V_WA[1]}, 32, v{V_WA[0]}")
        self.wa = [1, 1]
        e(f"v_and_b32 {t1}, 1, {m}"); e(f"v_lshlrev_b32 {t1}, 4, {t1}"); e(f"v_mov_b32 {t2}, 0x3f80"); e(f"v_lshlrev_b32 {t1}, {t1}, {t2}")
        e(f"v_lshlrev_b32 {t2}, 3, {q}"); e(f"v_sub_u32 {t2}, {m}, {t2}"); e(f"v_ashrrev_i32 {t2}, 1, {t2}")
        misc = [f"s_mov_b32 s{S_M4}, 0x20000", f"s_mov_b32 s{S_M4+1}, 0x28000", f"s_mov_b32 s{S_M4+2}, 0x30000", f"s_mov_b32 s{S_MASK}, 0xffff0000",
                f"s_mov_b32 s{S_WL}, 0", f"s_mov_b32 s{S_Q}, 1", f"s_mov_b32 s{S_M7}, 0x38000",
                f"s_lshl_b32 s{S_FOWN}, s{S_J}, 7", f"s_add_u32 s{S_FOWN}, s{S_FOWN}, s{S_FB}", f"s_mul_i32 s{S_OADJ}, s{S_TB}, 7168",
                f"s_mov_b32 s{S_ADJ}, 8192", f"s_mov_b32 s{S_LAYER}, 0", f"s_mov_b32 s{S_CAPJ}, s{S_J}", f"s_mov_b32 s{S_LOOP}, 1",
                f"s_mov_b32 s{S_WCUR}, 0", f"s_mov_b32 s{S_LEND}, 15"]
        for h in range(2):
            for d in range(4):
                e(f"v_cmp_eq_u32 vcc, {d - 8*h}, {t2}"); e(misc.pop(0)); e(misc.pop(0))
                e(f"v_cndmask_b32 {t0}, 0, {t1}, vcc"); e(f"v_accvgpr_write_b32 a{SEL(h)+d}, {t0}")
        for d in range(3):
            e(f"s_cmp_ge_u32 {d}, s{S_J}"); e(f"s_cselect_b32 s{S_FQ+d}, {4*(d+1)}, {4*d}")
        e(f"s_mul_i32 s{S_PA}, s{S_TB}, {131072-16384}"); e(f"s_sub_u32 s{S_PA}, s{S_BOFF}, s{S_PA}")
        e(f"v_xor_b32 v{V_CPG}, s{S_WC64}, v{V_XC[0]}"); e(f"v_add_u32 v{V_CPG}, s{S_PA}, v{V_CPG}")
        e(f"s_mov_b32 s{S_XCUR}, {15*128}")
        if o.wpf:
            e(f"s_lshl2_add_u32 s{S_XB}, s{S_TC}, s{S_WAVE}"); e(f"s_lshl_b32 s{S_XB}, s{S_XB}, 12"); e(f"s_add_u32 s{S_XB}, s{S_XB}, s{S_BOFF}")
        e(f"s_lshl2_add_u32 s{S_PA}, s2, s{S_WAVE}"); e(f"s_lshl_b32 s{S_PA}, s{S_PA}, 12"); e(f"s_add_u32 s{S_PA}, s{S_PA}, 0x200000")
        e(f"v_min_u32 v{V_CPL}, 2, {q}"); e(f"v_lshlrev_b32 v{V_CPL}, 7, v{V_CPL}")
        e(f"s_mov_b32 s{S_BOFF}, 2048"); e(f"s_mov_b32 s{S_CNT}, 0x100000")
        pst()
        if o.wpos == 1: w0()
        if o.hops:
            e("s_mov_b64 exec, 0")
            for w in range(1, 4):
                e(f"s_cmp_eq_u32 s{S_WAVE}, {w}"); e(f"s_cbranch_scc1 HOP{w}")
            e("s_branch HOP0")
            self.label("HOPEND")
            e("s_mov_b64 exec, -1")
        pst()
        if o.wpos == 2: w0()
        if o.diag: e(f"s_memtime s[{S_ST+2}:{S_ST+3}]")
        if o.diag2: e(f"s_load_dword s{S_EP}, s[{S_WS}:{S_WS+1}], s{S_EPOFF}")
        self.wait(vtags=[("B", 0)])
        for nt in range(o.b0pre):
            for x in self.bias0_ops(nt): e(x)
        if o.diag:
            e("s_waitcnt lgkmcnt(0)")
            e(f"v_writelane_b32 v{V_ST[0]}, s{S_D0}, 63")
            e(f"v_writelane_b32 v{V_ST[0]}, s{S_ST}, 60"); e(f"v_writelane_b32 v{V_ST[1]}, s{S_ST+2}, 60")
            e(f"s_mov_b32 s{S_SI}, 0")

    def seg_open(self, name, vt, vforce, prev_nt, nts, X, W, half=None, reload=True, cinit=False, maxS=3, barrier=True, nextnt=None, entry=False, spread=False):
        o = self.opt
        dg = o.diag and not (o.diagc and name in ("G0", "G1"))
        if dg: self.stamps.append(name)
        if self.pending: self.mfma(self.pending)
        if dg: self.stamp(0)
        if barrier and entry:
            k = len(self.out)
            if o.diagc and o.diagrt: self.stamp(1)
            self.wait(vtags=vt, lall=True)
            if o.diagc and o.diagrt:
                self.stamp_items()[0][1](); self.stamps.append(name + "L")
            pre = self.out[:] + [f"s_branch LB_{name}"]
            assert self.entry.setdefault(name, pre) == pre
            self.out[k:] = [f"s_waitcnt vmcnt({vforce}) lgkmcnt(0)", f"LB_{name}:", "s_barrier"]
        elif barrier:
            self.wait(vtags=vt, lall=True, vforce=vforce)
            if name in self.entry: self.label(f"LB_{name}")
            self.e("s_barrier")
        else:
            self.wait(ltags=[("WF", prev_nt & 1, s, u) for s in range(2) for u in range(2)])
        if dg: self.stamp(1)
        base = ([] if prev_nt is None else blk(prev_nt)) + sum((blk(nt, cinit) for nt in nts), [])
        off = 0 if prev_nt is None else 16
        self.pending = base[-1] if nts else None
        mf = base[:-1] if nts else base
        sc = Sched(len(mf), maxS)
        sc.mf = mf; sc.off = off; sc.dg = dg
        su = [(s, u) for s in range(2) for u in range(2)]
        if prev_nt is None:
            rd = [self.rd_xf(base[i][0], base[i][2], X) for i in range(16)]
            self.rd_wf(nts[0], 0, 0, W, half)(); self.rd_wf(nts[0], 0, 1, W, half)(); rd[0]()
            self.rd_wf(nts[0], 1, 0, W, half)(); self.rd_wf(nts[0], 1, 1, W, half)()
            for i in range(1, o.e0pre): rd[i]()
            self.wait(ltags=[("XF", 0, 0), ("XF", 0, 1)])
            for i in range(o.e0pre, 16): sc.put(i - o.e0pre, "D", rd[i])
            for mt in range(1, 8): sc.put(2 * mt - 1, "S", lambda mt=mt: self.wait(ltags=[("XF", mt, 0), ("XF", mt, 1)]))
            sc.e0last = 16 - o.e0pre
        elif nts:
            xs = o.xsp if spread else 1.0
            if reload and xs > 1.0:
                rp = [max(i, int(i * xs + o.xso)) for i in range(16)]
                for i in range(16):
                    mt, _, s, _ = base[i]
                    sc.put(rp[i], "D", self.rd_xf(mt, s, X))
                holes = [g for g in range(0, 12) if g not in rp]
                holes = (holes + [1, 3, 5, 7])[:4]
                for k, (s, u) in enumerate(su): sc.put(sorted(holes)[k], "D", self.rd_wf(nts[0], s, u, W, half))
                sc.rp = rp
            else:
                if reload:
                    for i in range(16):
                        mt, _, s, _ = base[i]
                        sc.put(i, "D", self.rd_xf(mt, s, X))
                for k, (s, u) in enumerate(su): sc.put(2 * k, "D", self.rd_wf(nts[0], s, u, W, half))
            sc.put(15, "S", lambda: self.wait(ltags=[("XF", 1, 0), ("XF", 1, 1)] + [("WF", nts[0] & 1, s, u) for s, u in su]))
        if reload and nts and prev_nt is not None:
            if hasattr(sc, "rp"):
                for mt, upto in ((2, 3), (4, 4), (5, 5), (6, 6), (7, 7)):
                    sc.put(off + 2 * mt - 1, "S", lambda m=upto: self.wait(ltags=[("XF", m, 0), ("XF", m, 1)]))
            else:
                for mt in (2, 4, 6):
                    sc.put(off + 2 * mt - 1, "S", lambda mt=mt: self.wait(ltags=[("XF", mt + 1, 0), ("XF", mt + 1, 1)]))
        sc.blkwait = []
        seq = list(nts[1:]) + [nextnt]
        for b, nt in enumerate(seq):
            if b < len(seq) - 1:
                g = off + 16 * (b + 1) - 1
                sc.put(g, "S", lambda nt=nt: self.wait(ltags=[("WF", nt & 1, s, u) for s, u in su] + [("C", V_T + 4 * i) for i in range(4) if name[0] == "S"]))
                sc.blkwait.append(g)
        if nts:
            for b, nt in enumerate(seq):
                if b == 0 and hasattr(sc, "rp"):
                    holes = [g for g in range(16, 27) if g not in sc.rp and g not in o.xkeep][:4]
                    for k, (s, u) in enumerate(su): sc.put(holes[k], "D", self.rd_wf(nt, s, u, W, half))
                    continue
                if b == 0 and prev_nt is None:
                    for k, (s, u) in enumerate(su): sc.place("D", self.rd_wf(nt, s, u, W, half), max(0, sc.e0last - 2) + k)
                    continue
                for k, (s, u) in enumerate(su): sc.place("D", self.rd_wf(nt, s, u, W, half), off + 16 * b + 2 * k)
        return sc
    def seg_emit(self, sc, gbase=None, check=None, stamp_at=50):
        if sc.dg: sc.chain(self.stamp_items(), stamp_at)
        for g, m in enumerate(sc.mf):
            if check: check(g, m)
            self.mfma(m)
            self.merge_gap(sc, g, None if gbase is None else gbase + g)
    def xa_items(self, new, old, nx):
        def f0():
            self.e(f"v_add_u32 v{V_XA[0]}, s{S_DX}, v{V_XA[0]}"); self.xa = nx["x"]
        return [self.SU(f"s_sub_u32 s{S_DX}, s{new}, s{old}", lambda: nx.update(x=self.slot[new])),
                ("V", f0), self.V(f"v_add_u32 v{V_XA[1]}, s{S_DX}, v{V_XA[1]}")]
    def wa_sched(self, sc, new, old, g_s, g_v):
        nx = {}
        def wa(h):
            def f():
                self.e(f"v_add_u32 v{V_WA[h]}, s{S_DW}, v{V_WA[h]}"); self.wa[h] = nx["w"]
            return f
        k, f = self.SU(f"s_sub_u32 s{S_DW}, s{new}, s{old}", lambda: nx.update(w=self.slot[new]))
        sc.place(k, f, g_s, g_v - 1)
        sc.chain([("V", wa(0)), ("V", wa(1))], g_v)

    def body(self, kind, layer, t):
        o = self.opt
        X = ("X", layer, t); W = ("W", layer, t)
        first = kind == "E0"
        vt = [X, W, ("P", layer, t + 2)]
        if kind == "S1": vt.append(("B", layer))
        vforce = {"G0": min(9 + (1 if o.xtouch else 0) + (1 if o.tpf & 2 else 0), 10 + (1 if o.xtouch else 0)), "G1": 8, "T14": 8}.get(kind)
        sc = self.seg_open(kind, vt, vforce, None if first else 7, list(range(7)), X, W, cinit=first,
                           maxS=1 if kind in ("T15", "H0") else 3, nextnt=7, entry=((kind == "G1" and t == o.ns + 1 and o.entry) or (kind == "G0" and t == 1 and o.entry > 1)),
                           spread=kind in ("G0", "G1", "T14", "S1", "S2", "S3", "S4", "S5") or (kind == "H0" and o.h0sp))
        n, off = sc.n, sc.off
        if kind in ("G0", "G1"):
            sc.put(n - 1, "G", lambda: None)
            sc.put(n - 2, "S", self.E(f"s_cmp_lt_u32 s{S_LOOP}, " + ("14" if kind == "G0" else f"s{S_LEND}"))); sc.closedS.add(n - 2)
        self.gcap = 0
        if kind in ("E0", "G0", "T14", "T15"):
            gB = off + 94 if kind != "T15" else off + 1
            def br():
                self.e(f"s_cbranch_scc1 CAP_{kind}"); self.e("@CAP")
            if kind == "G0" and o.cap4:
                for p in range(4):
                    g = off + 81 + 2 * p
                    sc.put(g, "G", lambda p=p: (self.e(f"s_cbranch_scc1 CAP_G0{p}"), self.e(f"@CAP{p}")))
                    sc.put(g - 1, "S", self.E(f"s_cmp_eq_u32 s{S_TC}, {p}")); sc.closedS.add(g - 1)
                sc.chain([self.S(f"s_lshl_b32 s{S_TC}, s{S_CAPJ}, 2"), self.S(f"s_sub_u32 s{S_TC}, s{S_LOOP}, s{S_TC}")], off + 64, off + 70)
            else:
                sc.put(gB, "G", br)
                sc.put(gB - 1, "S", self.E(f"s_cmp_eq_u32 s{S_TC}, s{S_CAPJ}" if kind == "G0" else f"s_cmp_eq_u32 s{S_CAPJ}, {t >> 2}")); sc.closedS.add(gB - 1)
                if kind == "G0": sc.put(gB - 2, "S", self.E(f"s_lshr_b32 s{S_TC}, s{S_LOOP}, 2"))
            if not (kind == "G0" and o.cap4):
                for k in range(8): sc.put(gB + 1 + k, "D", self.E(f"@RD{k}"))
                sc.put(gB + 9, "G", self.E("@RET"))
            self.gcap = sc.place("V", self.E(f"v_xor_b32 v{V_CAP}, s{S_WC64}, v{V_XA[0]}"), 9, off if kind == "T15" else None)
        pace = 4 if first else (o.pace0 if kind == "G0" else o.pace)
        gw = o.gw if hasattr(sc, "rp") else off + 1
        lastG = gw
        if kind == "H0":
            def xb():
                assert not any(x and x[0] == "XF" for x in self.lq)
                if o.flag0 == 0: self.wait(vtags=[("S", layer, 0)])
                self.e("s_barrier")
            gb = sc.place("S", xb, off + max(o.xbpos, 14 if o.h0sp else 0))
            gw = gb + 1
        if kind == "G1":
            sc.put(0, "S", self.E(f"s_cmp_eq_u32 s{S_LOOP}, s{S_KEY}")); sc.closedS.add(0)
            sc.put(1, "S", self.E(f"s_cselect_b32 s{S_TG}, s{S_Q+1}, s{S_Q}")); sc.put(1, "S", self.E(f"s_cselect_b32 s{S_TH}, s{S_WLM}, s{S_WL}"))
            c = sc.chain(self.w_setup(S_TG, S_TH), 2)
        elif kind != "T15":
            c = sc.chain(self.w_setup(S_Q, S_WL), max(0, gw - 14))
        if first and o.prex and self.x1:
            gw = self.place_dma(sc, self.x1, 1, pace) + 4
        if kind != "T15":
            lastG = self.place_dma(sc, self.dma_items(("W", layer, t + 1), S_WR + 1, "W"), max(gw, c[-1] + 1), pace if kind != "H0" else o.paceh)
        gx = lastG + int(pace)
        if kind in ("S1", "S2", "S3", "S4", "S5", "G1"):
            if kind != "S1":
                gbr = self.poll_check(sc, kind, ("P", layer, t + 2), off + 8)
                assert gbr < lastG - 1
            c = sc.chain([self.S(f"s_lshr_b32 s{S_PA}, s{S_Q+2}, 2"), self.S(f"s_lshl_b32 s{S_PA}, s{S_PA}, 7"),
                          self.S(f"s_add_u32 s{S_PA}, s{S_PA}, s{S_FB}")], (o.pollpos if kind == "S1" else max(gbr + 1, o.pollpos)) if o.pollpos else lastG - 1)
            k, f = self.VM(f"buffer_load_dword v{V_POLL}, off, {sr(S_WS,4)}, s{S_PA} sc1", ("P", layer, t + 3))
            if o.pollpos: gp = sc.place(k, f, c[-1] + 1)
            else:
                gp = sc.place(k, f, max(c[-1], lastG) + 2)
                gx = max(gx, gp + 2); lastG = gp
        if o.wpf and kind in ("E0", "S2"):
            sc.chain([self.V(f"v_and_b32 v{V_WT}, 0x180, v{V_L16}"), self.V(f"v_lshrrev_b32 v{V_FLAG}, 9, v{V_L16}"),
                      self.V(f"v_lshl_add_u32 v{V_WT}, v{V_FLAG}, 11, v{V_WT}")], 9, 40)
        if (o.wpf & 1 and kind == "G0") or (o.wpf & 2 and kind in ("S2", "S3", "G1")):
            TG = S_TE if kind == "G0" else S_TG
            it = [self.S(f"s_add_u32 s{TG}, s{S_Q}, {o.wpd}")] if kind == "G0" else []
            it += [self.S(f"s_lshl_b32 s{TG}, s{TG if kind == 'G0' else S_Q+2}, 17"), self.S(f"s_add_u32 s{TG}, s{TG}, s{S_WL}"), self.S(f"s_add_u32 s{TG}, s{TG}, s{S_XB}")]
            c = sc.chain(it, off + 26)
            k, f = self.VM(f"buffer_load_dword v{V_POLL if kind == 'G0' else V_CAP}, v{V_WT}, {sr(S_W,4)}, s{TG} offen", "PW")
            lastG = sc.place(k, f, max(c[-1], lastG) + 2); gx = max(gx, lastG + 2)
        xadv = [self.V(f"v_add_u32 v{V_XC[i]}, 128, v{V_XC[i]}") for i in range(2)]
        if first:
            if not o.prex:
                sc.chain(xadv, 4)
                lastG = self.place_dma(sc, self.dma_items(("X", 0, 1), S_X + 1, "X0"), gx, pace)
            else: pace = 6
            c = sc.chain(xadv, lastG + 1)
            lastG = self.place_dma(sc, self.dma_items(("X", 0, 2), S_X + 2, "X0"), max(lastG + pace, c[-1] + 1), pace)
        if kind == "G0":
            ww = [self.VM(f"buffer_load_dword v{V_POLL}, v{V_CPL}, {sr(S_W,4)}, s{S_PA} offen", "PW"), self.S(f"s_add_u32 s{S_PA}, s{S_PA}, {384 if o.wwarm else 0}")]
            if not o.xtouch: sc.chain(ww, lastG + 3)
            sc.chain(xadv, off + 20)
            lastG = self.place_dma(sc, self.dma_items(("X", layer, t + 2), S_X + 2, "X0"), gx, o.pacex0)
            if o.xtouch: lastG = sc.chain(ww, lastG + 3)[0]
        if kind in ("E0", "G0") and o.xtouch:
            sc.chain([self.VM(f"buffer_load_dword v{V_POLL}, v{V_XT}, {sr(S_X0,4)}, s{S_XTO} offen nt", "PW"),
                      self.S(f"s_add_u32 s{S_XTO}, s{S_XTO}, 128")], lastG + 3)
        if kind == "G0" and o.tpf & 2:
            sc.chain([self.VM(f"global_load_dword v{V_POLL}, v31, s[{S_PC}:{S_PC+1}]", "PW")], lastG + 6)
        if kind == "S1" and o.tpf & 1:
            sc.chain([self.S(f"s_lshr_b32 s{S_TE}, s2, 3"), self.S(f"s_lshl_b32 s{S_TE}, s{S_TE}, 9"), self.S(f"s_lshl_b32 s{S_TF}, s{S_WAVE}, 7"),
                      self.S(f"s_add_u32 s{S_TE}, s{S_TE}, s{S_TF}"), self.S(f"s_add_u32 s{S_TE}, s{S_TE}, L_TAIL-L_pc"),
                      self.S(f"s_min_u32 s{S_TE}, s{S_TE}, L_codeend-L_pc-4"), self.V(f"v_mov_b32 v{V_FLAG}, s{S_TE}"),
                      self.VM(f"global_load_dword v{V_FLAG}, v{V_FLAG}, s[{S_PC}:{S_PC+1}]", "PW")], off + 4, lastG - 1)
        if kind in ("S2", "S3", "S4", "S5", "G1"):
            c = sc.chain(self.x_setup(S_Q + 1), 8, off - 1)
            assert c[-1] < gx
            lastG = self.place_dma(sc, self.dma_items(("X", layer, t + 2), S_X + 2, "XE"), gx, o.pacex)
        if kind == "T14":
            it = [self.S(f"s_mov_b32 s{S_WT+k}, {k*16384 - (k&1)*2048}") for k in range(1, 4)]
            it += [self.S(f"s_add_u32 s{S_WL}, s{S_WL}, 0x200000"), self.S(f"s_lshl_b32 s{S_Q}, s{S_J}, 2"),
                   self.V(f"v_subrev_u32 v{V_WC[1]}, s{S_ADJ}, v{V_WC[1]}"), self.S(f"s_mov_b32 s{S_ADJ}, 0")]
            it += self.w_setup(S_Q, S_WL)
            c = sc.chain(it, lastG + 1)
            lastG = self.place_dma(sc, self.dma_items(("W", layer + 1, 0), S_X + 2, "W"), max(gx, c[-1] + 1), pace - 1)
        if kind == "T15" and o.wl2:
            t0, t1 = V_T + 16, V_T + 17
            it = [self.V(f"v_bfe_u32 v{t0}, v{V_L16}, 5, 2"), self.V(f"v_lshlrev_b32 v{t0}, 7, v{t0}"),
                  self.V(f"v_lshrrev_b32 v{t1}, 7, v{V_L16}"), self.V(f"v_lshl_add_u32 v{t1}, v{t1}, 11, v{t0}"),
                  self.V(f"v_lshrrev_b32 v{t0}, 9, v{V_L16}"), self.V(f"v_lshlrev_b32 v{t0}, 11, v{t0}"), self.V(f"v_and_b32 v{V_FLAG}, 0x180, v{V_L16}"),
                  self.V(f"v_add_u32 v{t0}, v{t0}, v{V_FLAG}")]
            sc.chain(it, 1, 26)
            sc.maxS = 2
            it = [self.S(f"s_lshr_b32 s{S_TE}, s2, 5"), self.S(f"s_lshl_b32 s{S_TE}, s{S_TE}, 2"), self.S(f"s_add_u32 s{S_TE}, s{S_TE}, s{S_WAVE}"),
                  self.S(f"s_lshl_b32 s{S_TF}, s{S_J}, 9"), self.S(f"s_add_u32 s{S_TF}, s{S_TF}, s{S_WL}"),
                  self.S(f"s_lshl_b32 s{S_TG}, s{S_TE}, 14"), self.S(f"s_add_u32 s{S_TG}, s{S_TG}, s{S_TF}"), self.S(f"s_lshl_b32 s{S_TH}, s{S_J}, 19"),
                  self.S(f"s_add_u32 s{S_TG}, s{S_TG}, s{S_TH}"),
                  self.S(f"s_lshl_b32 s{S_TE}, s{S_TE}, 12"), self.S(f"s_add_u32 s{S_TE}, s{S_TE}, s{S_TF}"),
                  self.VM(f"buffer_load_dword v{V_POLL}, v{t1}, {sr(S_W,4)}, s{S_TG} offen", "PW")]
            for d in range(o.wl2):
                it += [self.S(f"s_lshl_b32 s{S_TH}, s{S_FQ+d}, 17"), self.S(f"s_add_u32 s{S_TH}, s{S_TH}, s{S_TE}"),
                       self.VM(f"buffer_load_dword v{V_POLL}, v{t0}, {sr(S_W,4)}, s{S_TH} offen", "PW")]
            sc.chain(it, 2, 40)
            sc.maxS = 1
        if kind == "T15":
            sc.put(0, "S", self.E(f"s_cmp_eq_u32 s{S_LAYER}, 0")); sc.closedS.add(0)
            if o.e1out: sc.put(1, "S", self.E(f"s_cselect_b64 s[{S_X0}:{S_X0+1}], s[{S_OUT}:{S_OUT+1}], s[{S_WS}:{S_WS+1}]"))
            else:
                sc.put(1, "S", self.E(f"s_cselect_b32 s{S_TE}, 0x2000000, 0"))
                def f64():
                    self.e(f"s_add_u32 s{S_X0}, s{S_WS}, s{S_TE}"); self.e(f"s_addc_u32 s{S_X0+1}, s{S_WS+1}, 0")
                sc.put(17, "G", f64)
            sc.chain([self.S(f"s_lshl_b32 s{S_TD}, s{S_LAYER}, 2"), self.S(f"s_add_u32 s{S_NEED}, s{S_NEED}, s{S_TD}"),
                      self.S(f"s_mov_b32 s{S_FV}, s{S_NEED}"),
                      self.S(f"s_lshr_b32 s{S_TD}, s{S_WAVE}, 1"), self.S(f"s_mul_i32 s{S_TD}, s{S_TD}, s{S_LAYER}"), self.S(f"s_mul_i32 s{S_KEY}, s{S_TD}, 12"),
                      self.S(f"s_sub_u32 s{S_WLM}, s{S_WL}, 256"), self.S(f"s_sub_u32 s{S_LEND}, s{S_LEND}, 1"),
                      self.S(f"s_add_u32 s{S_LAYER}, s{S_LAYER}, 1")], 2, 60)
        if first:
            if o.finit == 0:
                sc.chain([self.V(f"v_lshrrev_b32 v{V_FLAG}, 1, v{V_L16}"), self.V(f"v_and_b32 v{V_FLAG}, 0x180, v{V_FLAG}"),
                          self.VM(f"buffer_load_dword v{V_POLL}, v{V_FLAG}, {sr(S_WS,4)}, s{S_FB} offen sc1", "PW")], 68)
                sc.chain([self.S(f"s_add_u32 s{S_NEED}, s{S_EP}, 1"), self.S(f"s_mov_b32 s{S_FV}, s{S_EP}")] + self.flag_items(), 98)
            else:
                sc.chain([self.S(f"s_add_u32 s{S_NEED}, s{S_EP}, 1"), self.V(f"v_mov_b32 v{V_FLAG}, s{S_EP}"), self.V(f"v_bfe_u32 v{V_T+16}, v{V_L16}, 2, 7"),
                          self.VM(f"buffer_store_dword v{V_FLAG}, v{V_T+16}, {sr(S_WS,4)}, s{S_FOWN} offen sc1", "F")], 70)
        if kind == "H0":
            def fb():
                self.wait(vtags=[("S", layer, 0)]); self.e("s_barrier")
            if o.flag0 > 0:
                g = sc.place("G", fb, off + o.flag0)
                sc.chain(self.flag_items(), g + 1)
            elif o.flag0 == 0: sc.chain(self.flag_items(), gb + 3)
        if kind == "S1" and o.flag0 < 0:
            assert ("S", layer, 0) not in self.vq
            sc.chain(self.flag_items(), 3)
        if kind == "S3":
            assert ("S", layer, 1) not in self.vq and not any(x[0] == 1 for x in self.parked)
            sc.chain(self.flag_items(), off + 3)
        if kind == "G1":
            assert ("S", layer, min(t - o.ns + 1, 3)) not in self.vq
            if o.fdrop:
                def sel():
                    self.e(f"s_cmp_le_u32 s{S_LOOP}, {o.ns + 2}"); self.e(f"s_cselect_b32 s{S_TF}, 0, 0x40000000")
                g1 = [g for g in range(11, 40) if len(sc.g[g]) <= 1 and sc.fits(g, "S")][0]
                sc.put(g1, "S", sel); sc.put(g1, "S", lambda: None)
                g1 = sc.place("V", self.E(f"v_mov_b32 v{V_T}, s{S_TF}"), g1 + 1)
                sc.chain([self.V(f"v_mov_b32 v{V_FLAG}, s{S_FV}"), self.VM(f"buffer_store_dword v{V_FLAG}, v{V_T}, {sr(S_WS,4)}, s{S_FOWN} offen sc1", "F"),
                          self.S(f"s_add_u32 s{S_FV}, s{S_FV}, 1")], max(g1, o.fpos - 1))
            else:
                sc.chain(self.flag_items() + [self.S(f"s_sub_u32 s{S_TF}, s{S_FV}, s{S_NEED}"), self.S(f"s_min_u32 s{S_TF}, s{S_TF}, 3"),
                                              self.S(f"s_add_u32 s{S_FV}, s{S_TF}, s{S_NEED}")], off + 3)
        if kind in ("S1", "S2", "S3", "S4", "S5"):
            if t == 1: self.parked = []
            free = [(V_T + 4 * i, 0) for i in range(4) if V_T + 4 * i not in [x[2] for x in self.parked]]
            jobs = [mt for mt in range(8) if not self.is_direct(t, mt)] if t < 4 else []
            gset = 0
            if jobs:
                def chk(): assert self.lds_own[self.slot[S_X]] == ("X", layer, t)
                gset = sc.chain([self.SU(f"s_sub_u32 s{S_E0}, s{S_X}, s{S_OADJ}", chk), self.V(f"v_add_u32 v{V_CPL}, s{S_E0}, v{V_L16}")], 8)[-1]
            def rd(mt, q, lo, hi):
                sc.place("D", lambda: self.lds(f"ds_read_b128 {vr(q,4)}, v{V_CPL} offset:{mt*2048}", ("C", q)), lo, hi)
            cnt = int(o.cn[t - 1])
            for k in range(cnt):
                gp_ = int(o.c0 + (o.c1 - o.c0) * (k + 0.5) / cnt)
                w = max(x for x in sc.blkwait if x < gp_)
                if self.parked: tile, mt, q = self.parked.pop(0)
                else:
                    q, g0 = free.pop(0); tile, mt = t, jobs.pop(0)
                    rd(mt, q, max(g0, gset + 1, w - 9), w - 1)
                def st(tile=tile, mt=mt, q=q):
                    assert ("C", q) not in self.lq
                    so, im = mt_off(mt)
                    self.vm(f"buffer_store_dwordx4 {vr(q,4)}, v{V_CPG}, {sr(S_X0,4)}, {so} offen offset:{im + tile*128} sc1", ("S", layer, tile))
                cand = [x for x in range(gp_ - 3, min(gp_ + 5, n)) if x > w and sc.fits(x, "G")]
                isg = lambda x: 0 <= x < n and any(kk == "G" for kk, _ in sc.g[x])
                g = min(cand, key=lambda x: (sum(isg(x + d) * (4 - abs(d)) for d in (-3, -2, -1, 1, 2, 3)), abs(x - gp_)))
                sc.put(g, "G", st)
                free.append((q, g + 1)); glast = g
            for mt in jobs:
                q, g0 = free.pop(0)
                g1 = [x for x in range(max(g0, gset + 1, 40), n - 4) if ((x - off) % 16 < 8 or x > sc.blkwait[-1]) and sc.fits(x, "D")][0]
                rd(mt, q, g1, g1)
                self.parked.append((t, mt, q))
            if t == o.ns: assert not self.parked
        if kind == "G0" and o.cap4:
            g = off + 95
            for k in range(8): g = sc.place("D", self.E(f"@RD{k}"), g) + 1
            sc.place("G", self.E("@RET"), g)
        gcap = self.gcap
        gXA = max(gcap + 1, off + 2, sc.rp[-1] + 1 if hasattr(sc, "rp") else getattr(sc, "e0last", 0))
        nx = {}
        if kind == "T15":
            def f0():
                self.e(f"v_add_u32 v{V_XA[0]}, s{S_TA}, v{V_L16}"); self.xa = nx["x"]
            sc.chain([self.S(f"s_lshl_b32 s{S_TA}, s{S_WC64}, 7"),
                      self.SU(f"s_sub_u32 s{S_TA}, s{S_X+2}, s{S_TA}", lambda: nx.update(x=self.slot[S_X + 2])),
                      ("V", f0), self.V(f"v_add_u32 v{V_XA[1]}, 1024, v{V_XA[0]}"), self.S(f"s_mov_b32 s{S_CAPJ}, 77")], off + 11)
            wnext = S_X + 1
        else:
            sc.chain(self.xa_items(S_X + 1, S_X, nx), gXA)
            wnext = S_WR + 1
        self.wa_sched(sc, wnext, S_WR, gXA, off + 16 * 6 + 8)
        if kind == "T15":
            sc.chain([self.VM(f"buffer_load_dwordx2 {vr(V_BR,2)}, v{V_B}, {sr(S_B,4)}, s{S_BOFF} offen", ("B", layer + 1)),
                      self.S(f"s_add_u32 s{S_BOFF}, s{S_BOFF}, 2048")], off + 12, off + 34)
        if kind in ("S1", "S2", "S3", "T14"):
            g = 4 if kind == "S1" else 0
            for nt in {"S1": [5, 6, 0], "S2": [4, 1], "S3": [3, 2], "T14": [7]}[kind]:
                b0 = 0 if nt == 7 else off + 16 * nt
                g = self.bias_sched(sc, nt, g, (b0, b0 + 16), V_T + 10 if kind == "T14" else V_CAP)
        if first:
            g = 0
            for nt in range(o.b0pre, 7):
                g = sc.chain([self.V(x) for x in self.bias0_ops(nt)], g, 16 * nt - 2)[-1]
            ops = []
            for mt in range(2): ops += [f"v_accvgpr_write_b32 a{ACC(mt,6)[1]+i}, v{ACC(7,6)[1]+i}" for i in range(4)]
            for mt in range(8): ops += [f"v_accvgpr_write_b32 a{ACC(mt,7)[1]+i}, 1.0" for i in range(4)]
            sc.chain([self.V(x) for x in ops], g, 96 - 2)
        self.slot[S_TR] = None
        if kind == "T15":
            rot = [self.smov(S_O2, S_X), self.smov(S_O3, S_WR), self.smov(S_WR, S_X + 1), self.smov(S_X + 1, S_WR + 1),
                   self.smov(S_X, S_X + 2), self.smov(S_WR + 1, S_X + 2)]
        elif kind == "H0":
            rot = [self.smov(S_X, S_X + 1), self.smov(S_X + 1, S_O2), self.smov(S_X + 2, S_O3),
                   self.smov(S_TR, S_WR), self.smov(S_WR, S_WR + 1), self.smov(S_WR + 1, S_TR)]
        else:
            rot = [self.smov(S_TR, S_X), self.smov(S_X, S_X + 1), self.smov(S_X + 1, S_X + 2), self.smov(S_X + 2, S_TR),
                   self.smov(S_TR, S_WR), self.smov(S_WR, S_WR + 1), self.smov(S_WR + 1, S_TR)]
        q = []
        if kind in ("E0", "G0", "T15", "H0"): q = [self.S(f"s_add_u32 s{S_Q}, s{S_Q}, 1")]
        if kind == "H0": q += [self.S(f"s_add_u32 s{S_Q+1}, s{S_Q}, 1"), self.S(f"s_mov_b32 s{S_Q+2}, s{S_FQ}")]
        if kind in ("S1", "S2"):
            q = [self.S(f"s_mov_b32 s{S_Q}, s{S_Q+1}"), self.S(f"s_mov_b32 s{S_Q+1}, s{S_Q+2}"), self.S(f"s_mov_b32 s{S_Q+2}, s{S_FQ+t}")]
        if kind in ("S3", "S4", "S5", "G1"):
            q = [self.S(f"s_add_u32 s{S_TE}, s{S_Q}, 1"), self.S(f"s_mov_b32 s{S_Q}, s{S_Q+1}"), self.S(f"s_mov_b32 s{S_Q+1}, s{S_Q+2}"),
                 self.S(f"s_mov_b32 s{S_Q+2}, s{S_TE}")]
        if kind == "S3": q += [self.S(f"s_mov_b32 s{S_LOOP}, {o.ns + 1}")]
        sc.chain(q, max(gx, off + 60))
        if kind == "G1": rot += [self.S(f"s_add_u32 s{S_LOOP}, s{S_LOOP}, 1")]
        if kind == "G0": sc.place("S", self.E(f"s_add_u32 s{S_LOOP}, s{S_LOOP}, 1"), off + 104, n - 3)
        sc.chain(rot, max(sc.last_su(), 108 if kind in ("T15", "H0") else 0))
        if o.add and kind in ("G0", "G1"):
            if "n" in o.add:
                for k in range(4): sc.place("G", self.E("s_nop 10"), 40 + 16 * k)
            if "l" in o.add:
                g = 32
                for k in range(16): g = sc.place("D", self.E(f"ds_read_b128 v[{20+4*(k%2)}:{23+4*(k%2)}], v{V_XA[k&1]} offset:{(k//2)*2048}"), g) + 3
            if "v" in o.add:
                g = 30
                for k in range(64): g = sc.place("V", self.E(f"v_mul_f32 v{20+k%8}, v{200+(k*3)%54}, v{201+(k*3)%54}"), g)
            if "g" in o.add:
                for k in range(4): sc.place("G", lambda k=k: self.e(f"buffer_load_dwordx4 v[20:23], v{V_WC[0]}, {sr(S_W,4)}, s{S_M4+k%3} offen"), 31 + 8 * k)
        if kind == "T15": self.make_stream(layer + 1)
        def check(g, m):
            if kind == "H0" and g >= off: assert (m[1] >> 1) * 8 + m[0] in self.epi_done, ("deadline", m)
        self.xr = o.xr15 if kind == "T15" else o.xr0
        self.seg_emit(sc, {"T15": 0, "H0": 128}.get(kind), check, 86 if first else off + 50)
        if "@CAP" in self.out: self.make_cap(kind, t)
        if "@CAP0" in self.out: self.make_cap4()
        if kind == "T15": assert all(f in self.wr_done for f in range(8))
        if kind == "H0": assert not self.stream, "stream left"

    def make_cap(self, kind, t):
        i0 = self.out.index("@CAP"); i1 = self.out.index("@RET")
        reg = self.out[i0 + 1:i1]
        assert not any(x.endswith(":") or "branch" in x or "barrier" in x for x in reg)
        main = [x for x in reg if not x.startswith("@") and x != "s_nop 0"]
        self.out[i0:i1 + 1] = main + [f"CB_{kind}:"]
        def blkc(p):
            return [f"ds_read_b128 {ar(X0(p,int(x[3])),4)}, v{V_CAP} offset:{int(x[3])*2048}" if x.startswith("@RD") else x for x in reg] + [f"s_branch CB_{kind}"]
        cap = f"CAP_{kind}"
        if kind == "G0":
            b = [f"{cap}:", f"s_and_b32 s{S_TC}, s{S_LOOP}, 3"]
            for p in range(1, 4): b += [f"s_cmp_eq_u32 s{S_TC}, {p}", f"s_cbranch_scc1 {cap}{p}"]
            b += blkc(0)
            for p in range(1, 4): b += [f"{cap}{p}:"] + blkc(p)
            self.ool[cap] = b
        else:
            self.ool[cap] = [f"{cap}:"] + blkc(t & 3)
    def make_cap4(self):
        i1 = self.out.index("@RET")
        b = []
        for p in range(4):
            reg = [x for x in self.out[self.out.index(f"@CAP{p}") + 1:i1] if not x.startswith(("@CAP", "s_cbranch_scc1 CAP", f"s_cmp_eq_u32 s{S_TC}"))]
            assert not any(x.endswith(":") or "branch" in x or "barrier" in x for x in reg)
            b += [f"CAP_G0{p}:"] + [f"ds_read_b128 {ar(X0(p,int(x[3])),4)}, v{V_CAP} offset:{int(x[3])*2048}" if x.startswith("@RD") else x for x in reg] + ["s_branch CB_G0"]
        i0 = self.out.index("@CAP0")
        self.out[i0:i1 + 1] = [x for x in self.out[i0:i1] if not x.startswith("@") and x != "s_nop 0"] + ["CB_G0:"]
        self.ool["CAP_G0"] = b
    def is_direct(self, p, mt):
        n = int(self.opt.direct[p])
        return ((mt + 1) * n) // 8 != (mt * n) // 8
    def make_stream(self, nl):
        st = []
        self.epi_done = set(); self.wr_done = set()
        tbf = lambda f: V_T + 8 * (f % 2)
        U = lambda f, h: ("U", ("U", f // 8, f % 8, h, tbf(f)))
        self.stream = [U(f, h) + (30,) for f in range(2) for h in range(2)]
        self.credit = 0.0
        for f in range(32):
            p, mt = f // 8, f % 8
            tb = tbf(f)
            pos = 38 + 32 * p + 2 * mt
            sreg = {0: S_X + 2, 1: S_WR + 1, 2: S_O2, 3: S_O3}[p]
            ops = self.epi_valu(p, mt, tb, V_T + 16, tb)
            it = []
            for k, x in enumerate(ops):
                kd = "V" if (k < 4 or f == 31) else "A"
                if k == len(ops) - 5: it.append((kd, lambda x=x, f=f: (self.e(x), self.epi_done.add(f)), pos))
                else: it.append((kd, self.E(x), pos))
            if p >= 2: pos = max(pos, 129)
            if mt == 0:
                def f0(p=p, sreg=sreg):
                    self.lds_own[self.slot[sreg]] = ("X", nl, p)
                    self.e(f"s_sub_u32 s{S_E0}, s{sreg}, s{S_OADJ}")
                a = [("S", f0, pos), ("A", self.E(f"v_add_u32 v{V_CPL}, s{S_E0}, v{V_L16}"), pos)]
                it = it[:6] + a + it[6:] if p != 2 else it + a
            if self.is_direct(p, mt):
                so, im = mt_off(mt)
                it += [("R", lambda p=p, im=im, tb=tb, so=so: self.vm(f"buffer_store_dwordx4 {vr(tb,4)}, v{V_CPG}, {sr(S_X0,4)}, {so} offen offset:{im + p*128} sc1", ("S", nl, p)), pos)]
            if f + 2 < 32: it += [U(f + 2, 1) + (pos,)]
            it += [("X", lambda f=f, mt=mt, tb=tb: (self.lds(f"ds_write_b128 v{V_CPL}, {vr(tb,4)} offset:{mt*2048}", ("O",)), self.wr_done.add(f)), pos)]
            if f + 2 < 32: it += [U(f + 2, 0) + (pos,)]
            self.stream += it

    def merge_gap(self, sc, g, gpos):
        fixed = sc.g[g]
        self.gnow = gpos
        while True:
            cur = list(fixed)
            excl = any(k == "G" for k, _ in cur)
            hasR = False
            newgap = None
            top = -1
            if gpos is not None: self.credit = min(self.credit + self.xr, 2.0)
            def cnt(): return sum(k in "DV" for k, _ in cur), sum(getattr(f, "w", 1) for k, f in cur)
            def free():
                nvec, tot = cnt()
                if hasR: return nvec < 3
                return not excl and nvec < 2 and tot < 3
            def lookahead():
                i = 0
                while i < len(self.stream) and self.stream[i][0] in "RUX": i += 1
                while i < len(self.stream) and self.stream[i][0] == "V" and self.stream[i][2] <= gpos + 1 and free():
                    cur.append(("V", self.stream.pop(i)[1]))
            if gpos is not None and fixed is sc.g[g] and not (self.stream and getattr(self.stream[0][1], "pub", False)):
                while self.stream2 and self.stream2[0][2] <= gpos + 1:
                    k, fn, pos = self.stream2[0]
                    st = fn.ready(gpos)
                    if st == "skip": self.stream2.pop(0); continue
                    if st:
                        grp = [self.stream2.pop(0)]
                        if k == "S": grp.append(self.stream2.pop(0))
                        self.stream[0:0] = grp
                    break
            while gpos is not None and self.stream:
                k, fn, pos = self.stream[0]
                if pos > gpos + 1:
                    break
                if k == "U" and len(self.stream) > 1 and hasattr(self.stream[1][1], "ok") and not self.stream[1][1].ok():
                    lookahead(); break
                if k == "U" and self.opt.xd3 and not self.stream2 and len(self.stream) > 1 and self.stream[1][0] == "X" and fixed is sc.g[g] and g + 2 < sc.n:
                    hasD = lambda gg: any(kk == "D" for kk, _ in sc.g[gg])
                    more = sum(1 for x in self.stream[3:6] if x[0] == "V" and x[2] <= gpos + 1)
                    if hasD(g + 1) and not hasD(g + 2) and more >= 3:
                        lookahead(); break
                if k == "U":
                    lookahead()
                    newgap = fn; self.stream.pop(0); break
                if k == "X":
                    nxt = [kk for gg in (g + 1, g + 2) if gg < sc.n for kk, _ in sc.g[gg]]
                    follow_u = len(self.stream) > 1 and self.stream[1][0] == "U"
                    if any(kk != "S" for kk, _ in cur) or (not follow_u and "D" in nxt and fixed is sc.g[g]):
                        lookahead(); break
                    cur.append(("G", fn)); excl = True; self.stream.pop(0); continue
                if k == "R":
                    if excl or top > 0:
                        lookahead(); break
                    cur.append(("G", fn)); excl = True; hasR = True; top = 1; self.stream.pop(0); continue
                if k in "SZ":
                    w = 2 if k == "Z" else 1
                    if excl or top > 0 or g in sc.closedS or cnt()[1] + w > 3: break
                    fn.w = w
                    cur.append(("S", fn)); top = 0; self.stream.pop(0); continue
                if k == "D":
                    if top > 2 or not free(): break
                    cur.append(("D", fn)); top = 2; self.stream.pop(0); continue
                ok = free()
                if not ok and not excl and self.credit >= 1.0 and cnt()[0] < 3 and cnt()[1] < 4:
                    self.credit -= 1.0; ok = True
                if not ok: break
                cur.append(("V", fn)); top = 3; self.stream.pop(0)
            ks = [k for k, _ in cur]
            if ks.count("D") == 2 and "S" not in ks and "G" not in ks: cur.append(("S", self.E("s_nop 0")))
            for k, fn in sorted(cur, key=lambda x: RANK[x[0]]): fn()
            if newgap is None: return
            self.mfma(newgap)
            fixed = []

    def tail(self):
        e = self.e; o = self.opt
        L = 2
        VW, VR = V_POLL, V_CPL
        CT = V_T + 20; AT = V_T + 16
        tbf = lambda f: V_T + 8 * (f % 2)
        U = lambda f, h: ("U", ("U", f // 8, f % 8, h, tbf(f)))
        depth = lambda f: 4 if f < 8 else 8
        unit = lambda f: (f % depth(f)) * 4096
        area = {0: (S_WR, 0), 1: (S_X + 1, 0), 2: (S_X, 0), 3: (S_X + 1, 0)}
        def rdback(f, p, r, k):
            assert f in self.visible and self.ra == f // 8
            self.lds(f"ds_read_b64 {vr(r+2*k,2,p)}, v{VR} offset:{unit(f) + 256*k}", ("C", f))
        def store(f, dst):
            assert ("C", f) not in self.lq
            so, im = mt_off(f % 8)
            self.vm(f"buffer_store_dwordx4 {dst}, v{V_CPG}, {sr(S_OUT,4)}, {so} offen offset:{im + (f//8)*128} {o.outf}", "SO")
            self.stored.add(f)
        def wr_ok(f):
            prev = {0: f - 4, 1: -1, 2: -1, 3: f - 16}[f // 8]
            return (prev < 0 or prev in self.freed) and (f // 8) in self.area_free
        def wr(f):
            assert wr_ok(f) and self.wa_ == f // 8
            self.lds(f"ds_write_b128 v{VW}, {vr(tbf(f),4)} offset:{unit(f)}", ("Y", f))
            self.written.add(f); self.wpos = self.gnow; self.w_at[f] = self.gnow
        self.written = set(); self.visible = set(); self.freed = set(); self.rd_at = {}
        self.lds_half = {}; self.landed = set(); self.area_free = set(); self.area_next = set()
        self.wpos = 0; self.ra = 0; self.wa_ = 0; self.w_at = {}
        def at_barrier():
            self.visible |= {f for f in self.written if ("Y", f) not in self.lq}
            self.freed |= {f for f in self.rd_at if ("C", f) not in self.lq}
            self.landed |= {v for v in self.lds_half.values() if v not in self.vq}
            if not any(x and x[0] == "XF" for x in self.lq): self.area_free |= self.area_next
        def bar(vtags=(), every=False):
            self.wait(vtags=vtags, ltags=[("Y", x) for x in self.written if every or self.gnow >= self.w_at[x] + o.zdist]); e("s_barrier"); at_barrier()
        def switch(reg, p, attr):
            t = S_TC if attr == "ra" else S_TD
            def f():
                e(f"v_add_u32 v{reg}, s{t}, v{reg}"); setattr(self, attr, p)
            return [("S", self.E(f"s_sub_u32 s{t}, s{area[p][0]}, s{area[p-1][0]}")), ("A", f)]
        def half_dma(tile, H, tidreg, sreg, half):
            what = ("W", L, tile, H)
            it = [self.S(f"s_add_u32 s{S_TH}, s{S_WLM}, {H*256}")] + self.w_setup(tidreg, S_TH)
            d = [self.SU(f"s_add_u32 m0, s{sreg}, s{S_O2+half}", lambda: self.lds_half.__setitem__((self.slot[sreg], half), what))]
            for i in range(4):
                so = "0" if i < 2 else f"s{S_WT+1}"
                d.append(self.VM(f"buffer_load_dwordx4 v{V_WC[i&1]}, {sr(S_W,4)}, {so} offen" + (f" offset:{i*1024}" if i else "") + " lds", what))
            return it, d
        W13, W14, W15 = ("W", L, 13), ("W", L, 14), ("W", L, 15)
        X13, X14, X15 = ("X", L, 13), ("X", L, 14), ("X", L, 15)
        self.lds_half[(self.slot[S_WR], 0)] = W13 + (0,); self.lds_half[(self.slot[S_WR], 1)] = W14 + (0,)
        sc = self.seg_open("A13", [X13, W13, ("P", L, 15)], 8, 7, [0, 1, 2], X13, W13, half=0, nextnt=3); at_barrier()
        gbr = self.poll_check(sc, "A13", ("P", L, 15), 0)
        sc.chain(self.x_setup(S_Q + 1), 3, 15)
        c = sc.chain([self.S(f"s_lshl_b32 s{S_TA}, s{S_WAVE}, 15"), self.S(f"s_lshl_b32 s{S_TB}, s{S_WC64}, 10"), self.S(f"s_sub_u32 s{S_TA}, s{S_TA}, s{S_TB}"),
                      self.S(f"s_lshr_b32 s{S_TB}, s{S_WR14}, 6"), self.S(f"s_sub_u32 s{S_TA}, s{S_TA}, s{S_TB}"), self.S(f"s_add_u32 s{S_WLM}, s{S_WL}, s{S_TA}"),
                      self.S(f"s_lshl_b32 s{S_TA}, s{S_WAVE}, 12"), self.S(f"s_sub_u32 s{S_O2}, 0, s{S_TA}"), self.S(f"s_add_u32 s{S_O3}, s{S_O2}, 0x4000"),
                      self.S(f"s_sub_u32 s{S_Q+2}, s{S_Q+2}, 1")], 5)
        it, d = half_dma(15, 0, S_Q + 1, S_WR + 1, 0)
        c = sc.chain(it, c[-1])
        lastG = self.place_dma(sc, d, max(gbr + 1, c[-1] + 1), o.pacet)
        lastG = self.place_dma(sc, self.dma_items(X15, S_X + 2, "XE"), lastG + 3, o.pacet)
        nx = {}
        sc.chain(self.xa_items(S_X + 1, S_X, nx), 18)
        a, b, c_, d_ = [f"v{V_T+i}" for i in range(4)]
        adr = [f"v_lshrrev_b32 {a}, 9, v{V_L16}", f"v_lshlrev_b32 {a}, 6, {a}", f"v_add_u32 {a}, {a}, v{V_L16}", f"v_add_u32 {a}, s{S_KEY}, {a}",
               f"v_and_b32 {a}, 0xf0, {a}", f"v_and_b32 {b}, 0x300, v{V_L16}", f"v_add3_u32 v{VW}, {a}, {b}, s{S_E0}",
               f"v_and_b32 {c_}, 0x70, v{V_CPG}",
               f"v_lshrrev_b32 {a}, 3, v{V_L16}", f"v_and_b32 {a}, 0x70, {a}", f"v_add_u32 {a}, s{S_KEY}, {a}",
               f"v_and_b32 {b}, 64, {c_}", f"v_lshl_add_u32 {a}, {b}, 1, {a}", f"v_and_b32 {d_}, 16, {c_}", f"v_lshl_add_u32 {a}, {d_}, 2, {a}",
               f"v_and_b32 {a}, 0xf0, {a}", f"v_lshl_add_u32 {a}, {b}, 4, {a}", f"v_lshl_add_u32 {a}, {d_}, 5, {a}",
               f"v_bfe_u32 {b}, {c_}, 5, 1", f"v_lshl_add_u32 {a}, {b}, 3, {a}", f"v_add_u32 v{VR}, s{S_TF}, {a}"]
        sc.chain([self.S(f"s_lshl_b32 s{S_KEY}, s{S_WC64}, 1"), self.S(f"s_mul_i32 s{S_E0}, s{S_WAVE}, 7168"), self.SU(f"s_sub_u32 s{S_E0}, s{S_WR}, s{S_E0}"),
                  self.S(f"s_lshl_b32 s{S_TF}, s{S_WC64}, 4"), self.S(f"s_sub_u32 s{S_TF}, s{S_E0}, s{S_TF}")], 20, 36)
        self.stream = [self.V(x) + (40,) for x in adr]
        self.stream += [self.V(f"v_mov_b32_dpp v{V_XC[i]}, v{V_BR+i} row_newbcast:7 row_mask:0xf bank_mask:0xf") + (64,) for i in range(2)]
        self.credit = 0.0; self.xr = 0.0
        E0 = [134, 230, 326, 390]
        ear = lambda f: E0[f // 8] + 2 * (f % 8)
        self.stream += [U(f, h) + (126,) for f in range(2) for h in range(2)]
        nf = o.nft
        for f in range(nf):
            pos = ear(f)
            it = [("V" if k < 4 else "A", self.E(x)) for k, x in enumerate(self.epi_valu(f // 8, f % 8, tbf(f), None, tbf(f)))]
            if f % 8 == 0 and f: it = it[:6] + switch(VW, f // 8, "wa_") + it[6:]
            w0 = lambda f=f: wr(f)
            w0.ok = lambda f=f: wr_ok(f)
            it += [U(f + 2, 1), ("X", w0), U(f + 2, 0)]
            self.stream += [x + (pos,) for x in it]
        def pub(f, pos):
            def z():
                bar(); assert f in self.visible
            z.ready = lambda g: "skip" if f in self.visible else (f in self.written and g >= self.w_at[f] + o.zdist)
            def r0(): rdback(f, "v", CT, 0)
            def r1(): rdback(f, "v", CT, 1); self.rd_at[f] = self.gnow
            r0.ready = r1.ready = lambda g: g >= self.wpos + 2
            def wt(): self.wait(ltags=[("C", f)])
            wt.ready = lambda g: f in self.rd_at and g >= self.rd_at[f] + o.rdist
            def st(): store(f, vr(CT, 4))
            it = []
            if f % 8 == 0 and f:
                it = switch(VR, f // 8, "ra"); it[0][1].ready = lambda g: True
            it += [("Z", z), ("D", r0), ("D", r1), ("S", wt), ("R", st)]
            for k, x in it: x.pub = True
            return [x + (pos,) for x in it]
        self.stream2 = []
        for f in range(nf): self.stream2 += pub(f, E0[f // 8] + (o.spo + o.sp * (f % 8) if f < 16 else o.spo2 + o.sp2 * (f % 8)))
        self.seg_emit(sc, 0, stamp_at=58)
        self.area_next = {0}
        sc = self.seg_open("C14", [X14], None, 3, [0], X14, W14, half=1, nextnt=1); at_barrier()
        it, d = half_dma(15, 1, S_Q + 1, S_WR + 1, 1)
        c = sc.chain(it, 1)
        self.place_dma(sc, d, 17, 3)
        sc.chain(self.xa_items(S_X + 2, S_X + 1, nx), 16)
        self.wa_sched(sc, S_WR + 1, S_WR, 8, 24)
        self.seg_emit(sc, 64, stamp_at=28)
        sc = self.seg_open("F15", [X15, W15 + (0,)], None, 1, [0, 1, 2, 3, 4], X15, W15, half=lambda nt: nt >> 2, nextnt=5, maxS=1); at_barrier()
        it, d = half_dma(14, 1, S_Q, S_WR + 1, 0)
        c = sc.chain(it, 1)
        sc.g[63].append(("S", lambda: bar([W15 + (1,)])))
        self.place_dma(sc, d, 65, 4)
        sc.chain(self.xa_items(S_X + 1, S_X + 2, nx), 18)
        self.wa_sched(sc, S_WR, S_WR + 1, 20, 16 + 64 + 8)
        self.seg_emit(sc, 96, stamp_at=24)
        sc = self.seg_open("D14", [], None, 5, [2, 3, 4, 5, 6], X14, W14, half=lambda nt: 1 - (nt >> 2), nextnt=7, maxS=1, barrier=False)
        it, d = half_dma(13, 1, S_Q + 2, S_WR, 1)
        c = sc.chain(it, 1)
        def b3():
            self.area_next = {1, 3}; bar([W14 + (1,)])
        sc.g[31].append(("S", b3))
        self.place_dma(sc, d, 33, 4)
        sc.chain(self.xa_items(S_X, S_X + 1, nx), 18)
        self.wa_sched(sc, S_WR + 1, S_WR, 10, 24)
        self.wa_sched(sc, S_WR, S_WR + 1, 50, 16 + 64 + 8)
        self.seg_emit(sc, 192, stamp_at=26)
        sc = self.seg_open("B13", [W13 + (1,)], None, 7, [4, 5, 6], X13, W13, half=1, nextnt=7, maxS=1); at_barrier()
        def b4():
            self.area_next = {2}; bar()
        sc.g[31].append(("S", b4))
        sc.chain(self.xa_items(S_X + 2, S_X, nx), 18)
        self.wa_sched(sc, S_WR + 1, S_WR, 20, 16 + 32 + 8)
        self.seg_emit(sc, 288, stamp_at=24)
        sc = self.seg_open("E15", [], None, 7, [6], X15, W15, half=1, nextnt=7, maxS=1, barrier=False)
        self.seg_emit(sc, 352, stamp_at=24)
        sc = self.seg_open("FIN", [], None, 7, [], None, None, barrier=False, maxS=1)
        self.seg_emit(sc, 384, stamp_at=8)
        for k, fn, pos in self.stream:
            if k == "U": self.mfma(fn)
            else: fn()
        self.stream = []
        while self.stream2 and self.stream2[0][0] in "DSR" and not (self.stream2[0][0] == "S" and self.stream2[1][0] == "A"):
            self.stream2.pop(0)[1]()
        self.stream2 = []
        e("s_nop 7")
        todo = []
        dreg = lambda x: XF(x % 8, (x // 8) & 1)
        def publish():
            bar(every=True)
            for x in sorted(self.visible):
                if x not in self.rd_at:
                    if x // 8 != self.ra:
                        for k, fn in switch(VR, x // 8, "ra"): fn()
                    rdback(x, "a", dreg(x), 0); rdback(x, "a", dreg(x), 1); self.rd_at[x] = 0; todo.append(x)
        def drain(n):
            for _ in range(n):
                if todo:
                    x = todo.pop(0); self.wait(ltags=[("C", x)]); store(x, ar(dreg(x), 4))
        assert nf <= 24
        B7 = [V_WC[0], V_XC[0], V_WC[1], V_XC[1]]
        e(f"v_lshlrev_b32 v{B7[0]}, 16, v{B7[1]}"); e(f"v_and_b32 v{B7[1]}, s{S_MASK}, v{B7[1]}")
        e(f"v_lshlrev_b32 v{B7[2]}, 16, v{B7[3]}"); e(f"v_and_b32 v{B7[3]}, s{S_MASK}, v{B7[3]}")
        if o.fmode == 0 and self.written - set(self.rd_at): publish()
        for f in range(nf, 32):
            p, mt = f // 8, f % 8
            tb = tbf(f)
            if mt == 0:
                for k, fn in switch(VW, p, "wa_"): fn()
            for h in (1, 0):
                pf, r = ACC(mt, 2 * p + h)
                if pf == "a":
                    for i in range(4): e(f"v_accvgpr_read_b32 v{AT+i}, a{r+i}")
                    if h == 1:
                        for i in range(4): e(f"v_add_f32 v{AT+i}, v{AT+i}, v{B7[i]}")
                    r = AT
                for d2 in range(2): e(f"v_pk_mul_f32 {vr(tb+4*h+2*d2,2)}, {vr(tb+4*h+2*d2,2)}, {vr(r+2*d2,2)}")
            for d2 in range(4): e(f"v_cvt_pk_bf16_f32 v{tb+d2}, v{tb+2*d2}, v{tb+2*d2+1}")
            if o.fmode == 1:
                n0 = len(todo)
                if str(f - 24) in o.fpub and self.written - set(self.rd_at): publish()
                drain(min(n0, o.fdrain))
            if f + 2 < 32: self.mfma(U(f + 2, 1)[1])
            wr(f)
            if f + 2 < 32: self.mfma(U(f + 2, 0)[1])
            if o.fmode == 0:
                drain(o.fdrain)
                if (f - nf) % o.fgrp == o.fgrp - 1 or f == 31: publish()
        if o.fmode == 1:
            drain(32); publish()
        drain(32)
        assert self.stored == set(range(32))
        e(f"s_or_b32 s{S_TA}, s{S_J}, s{S_WAVE}"); e(f"s_cmp_lg_u32 s{S_TA}, 0"); e("s_cbranch_scc1 L_fin")
        e(f"s_add_u32 s{S_TA}, s{S_EP}, 16"); e(f"v_mov_b32 v{V_FLAG}, s{S_TA}")
        e(f"buffer_store_dword v{V_FLAG}, off, {sr(S_WS,4)}, s{S_EPOFF} sc1")
        self.label("L_fin")
        if o.diag:
            e(f"s_memtime s[{S_ST}:{S_ST+1}]"); e("s_waitcnt vmcnt(0)"); e(f"s_memtime s[{S_ST+2}:{S_ST+3}]")
            e(f"s_memrealtime s[{S_RT+2}:{S_RT+3}]"); e("s_waitcnt lgkmcnt(0)")
            e(f"v_writelane_b32 v{V_ST[0]}, s{S_ST}, 62"); e(f"v_writelane_b32 v{V_ST[1]}, s{S_ST+2}, 62")
            e(f"v_writelane_b32 v{V_ST[0]}, s{S_RT}, 61"); e(f"v_writelane_b32 v{V_ST[1]}, s{S_RT+2}, 61")
            e(f"s_lshl_b32 s{S_TA}, s2, 2"); e(f"s_add_u32 s{S_TA}, s{S_TA}, s{S_WAVE}"); e(f"s_lshl_b32 s{S_TA}, s{S_TA}, 9")
            e(f"s_add_u32 s{S_TA}, s{S_TA}, {hex(ST_OFF)}"); e("v_lshrrev_b32 v0, 2, v0")
            e(f"buffer_store_dword v{V_ST[0]}, v0, {sr(S_WS,4)}, s{S_TA} offen")
            e(f"buffer_store_dword v{V_ST[1]}, v0, {sr(S_WS,4)}, s{S_TA} offen offset:256")
            if o.echo:
                a, b = o.echo.split(",")
                if a == "pad":
                    e(f"s_add_u32 s{S_TB}, s{S_RT}, {b}")
                else:
                    reg = V_ST[0] if o.echoc else V_ST[1]
                    if a == "s": e(f"s_mov_b32 s{S_TA}, s{S_D0 if o.echoc else S_RT}")
                    else: e(f"v_readlane_b32 s{S_TA}, v{reg}, {a}")
                    if b == "e": e(f"s_mov_b32 s{S_TB}, s{S_ST+2 if o.echoc else S_RT+2}")
                    else: e(f"v_readlane_b32 s{S_TB}, v{reg}, {b}")
                    e("s_nop 4")
                    e(f"s_sub_u32 s{S_TB}, s{S_TB}, s{S_TA}")
                    if o.echoc: e(f"s_sub_u32 s{S_TB}, s{S_TB}, {o.echob}"); e(f"s_lshr_b32 s{S_TB}, s{S_TB}, {o.echos}")
                    e(f"s_min_u32 s{S_TB}, s{S_TB}, 20000")
                    e(f"s_add_u32 s{S_TB}, s{S_TB}, s{S_RT+2}")
                self.label("L_echo")
                e(f"s_memrealtime s[{S_ST}:{S_ST+1}]"); e("s_waitcnt lgkmcnt(0)")
                e(f"s_sub_u32 s{S_ST}, s{S_ST}, s{S_TB}"); e(f"s_cmp_lt_i32 s{S_ST}, 0"); e("s_cbranch_scc1 L_echo")
        e("s_endpgm")

    def sizes(self, lines):
        import subprocess, tempfile, os
        labels = set()
        for l in lines:
            m = re.search(r"(?:branch\w*|L_\w+-)\s*(\w+)", l)
        src = '.amdgcn_target "amdgcn-amd-amdhsa--gfx950"\n.text\n'
        body = []
        for l in lines:
            if l.endswith(":"): continue
            if "branch" in l: l = "s_nop 0"
            l = re.sub(r"L_\w+-L_pc(-4)?", "0x12345", l)
            body.append(l)
        with tempfile.TemporaryDirectory() as d:
            open(d + "/a.s", "w").write(src + "\n".join(body) + "\n")
            subprocess.run(["clang", "-x", "assembler", "-target", "amdgcn-amd-amdhsa", "-mcpu=gfx950", "-c", d + "/a.s", "-o", d + "/a.o"], check=True)
            dis = subprocess.run(["llvm-objdump", "-d", "--mcpu=gfx950", d + "/a.o"], capture_output=True, text=True).stdout
        sz = [4 * len(l.split(": ")[-1].split()) for l in dis.splitlines() if "//" in l]
        assert len(sz) == len(body), (len(sz), len(body))
        out = []; k = 0
        for l in lines:
            if l.endswith(":"): out.append(0)
            else: out.append(sz[k]); k += 1
        return out
    def add_hops(self, o, caps):
        sz = self.sizes(o)
        wt = []; w = 1
        for l in o:
            if l == "L_G0:": w = 13
            if l == "L_T14:": w = 2
            if l == "L_G1:": w = 18
            if l == "L_TAIL:": w = 1
            wt.append(w)
        def layout(X):
            out = ["@HOP"]; pos = X + 4; nextpage = 4096; cost = 0
            i = 0
            while i < len(o):
                if pos >= nextpage:
                    best = None; p = pos; j = i
                    while j < len(o) and p < nextpage + 56:
                        if j > 0 and o[j - 1].startswith("v_mfma"):
                            n = 0
                            while j + n < len(o) and not o[j + n].startswith("v_mfma"): n += 1
                            if best is None or n < best[0]: best = (n, j)
                        p += sz[j]; j += 1
                    tgt = best[1] if best else i
                    cost += wt[tgt] * (self.opt.hopw + 10 * min(best[0] if best else 1, 1))
                    while i < tgt:
                        out.append(o[i]); pos += sz[i]; i += 1
                    out.append("@HOP"); pos += 4
                    nextpage += 4096
                    continue
                if o[i] in ("L_G0:", "L_G1:") and self.opt.algn >= 0:
                    need = ((self.opt.algn - pos) % 64) // 4
                    k = len(out)
                    if out[-1].startswith("s_branch"):
                        out += ["s_nop 0"] * need; pos += 4 * need; need = 0
                    while need > 0:
                        while not (out[k - 1].startswith("v_mfma") and (k == len(out) or out[k].startswith("v_mfma"))):
                            k -= 1
                            if out[k] == "@HOP": cost += 1000
                        m = min(need, 3)
                        out[k:k] = ["s_nop 0"] * m; pos += 4 * m; need -= m; k -= 1
                out.append(o[i]); pos += sz[i]; i += 1
            return cost + 30 * out.count("@HOP"), X, out
        cost, self.skip, out = min((layout(X) for X in (range(0, 4096, 64) if self.opt.skip < 0 else [self.opt.skip])), key=lambda r: r[:2])
        self.hopcost = cost
        for b in caps:
            for l in b:
                out.append(l)
                if l.endswith(":") and l.startswith("CAP"): out.append("@HOP")
        n = out.count("@HOP"); k = 0; res = []
        for l in out:
            if l == "@HOP":
                res.append(f"HOP{k}:"); res.append(f"s_cbranch_execz " + (f"HOP{k+4}" if k + 4 < n else "HOPEND")); k += 1
            else: res.append(l)
        self.nhops = n
        return res

    def build(self):
        self.stored = set()
        self.prologue()
        main = self.out
        texts = {}
        def gen(kind, layer, t):
            self.out = []
            self.body(kind, layer, t)
            if kind in texts and texts[kind] != self.out:
                for a, b in zip(texts[kind], self.out):
                    if a != b: print("DIFF", kind, layer, t, a, "|", b); break
                raise RuntimeError(f"body {kind} differs at layer {layer} t {t}")
            texts[kind] = self.out
        for layer in range(3):
            for t in range(16 if layer < 2 else 13):
                if layer == 0: kind = "E0" if t == 0 else ("G0" if t < 14 else f"T{t}")
                else: kind = "H0" if t == 0 else (f"S{t}" if t <= self.opt.ns else ("G1" if t < 14 else f"T{t}"))
                gen(kind, layer, t)
        self.out = []; self.tail(); texts["TAIL"] = self.out
        if self.opt.x:
            x = self.opt.x; g = []
            for l in texts["G1"]:
                if "d" in x and l.startswith("buffer_load_dwordx4"): l = "s_mov_b32 s70, 0x12345"
                if "p" in x and l.startswith("s_cbranch_scc1 SLOW"): l = "s_nop 0"
                if "p" in x and l.startswith("buffer_load_dword "): l = "s_mov_b32 s70, 0x12345"
                if "f" in x and l.startswith("buffer_store_dword "): l = "s_mov_b32 s70, 0x12345"
                if "b" in x and l == "s_barrier": l = "s_nop 0"
                if "l" in x and l.startswith("ds_read"): l = "s_mov_b32 s70, 0x12345"
                g.append(l)
            texts["G1"] = g
            if "p" in x: texts["TAIL"] = ["s_nop 0" if l.startswith("s_cbranch_scc1 SLOW") else l for l in texts["TAIL"]]
        o = texts["E0"][:]
        o += self.entry.get("G0", [])
        o += ["L_G0:"] + texts["G0"] + ["s_cbranch_scc1 L_G0"]
        o += ["L_T14:"] + texts["T14"] + texts["T15"] + texts["H0"] + texts["S1"] + texts["S2"] + texts["S3"] + texts.get("S4", []) + texts.get("S5", [])
        o += self.entry.get("G1", [])
        o += ["L_G1:"] + texts["G1"] + ["s_cbranch_scc1 L_G1"]
        o += [f"s_cmp_eq_u32 s{S_LAYER}, 1", "s_cbranch_scc1 L_T14"]
        o += ["L_TAIL:"] + texts["TAIL"]
        caps = [b for k, b in self.ool.items() if k.startswith("CAP")]
        slow = [b for k, b in self.ool.items() if not k.startswith("CAP")]
        if self.opt.hops:
            o = self.add_hops(o, caps)
            o = main + ["s_branch L_main"] + sum(slow, []) + [".p2align 12"] + ([f".fill {self.skip//4}, 4, 0xbf800000"] if self.skip else []) + ["L_main:"] + o
        else:
            o = main + o + sum(caps, []) + sum(slow, [])
        self.texts = texts
        hdr = open("standalone__dcn_v2_cross__recsys.s.ref").read().split("\n")
        top = [l for l in hdr if l.startswith(";") and "@launch" not in l]
        if self.opt.diag: top.append("; STAMPS " + ("RT " if self.opt.diagrt else "CY ") + " ".join(self.stamps))
        txt = "\n".join(top) + f"\n; @launch grid=(256,1,1) block=(256,1,1) lds={SLOT*5}\n"
        txt += f""".amdgcn_target "amdgcn-amd-amdhsa--gfx950"
.text
.globl {NAME}
.p2align 8
.type {NAME},@function
{NAME}:
"""
        txt += "\n".join(o) + "\nL_codeend:\n"
        txt += f""".section .rodata,"a"
.p2align 6
.amdhsa_kernel {NAME}
  .amdhsa_next_free_vgpr 512
  .amdhsa_next_free_sgpr 102
  .amdhsa_accum_offset 256
  .amdhsa_group_segment_fixed_size 0
  .amdhsa_kernarg_size 48
  .amdhsa_user_sgpr_count 2
  .amdhsa_user_sgpr_kernarg_segment_ptr 1
  .amdhsa_system_sgpr_workgroup_id_x 1
  .amdhsa_float_denorm_mode_32 3
.end_amdhsa_kernel
"""
        return txt

if __name__ == "__main__":
    ap = argparse.ArgumentParser()
    ap.add_argument("-o", default="k3.s")
    ap.add_argument("--diag", action="store_true")
    ap.add_argument("--diagrt", action="store_true")
    ap.add_argument("--diagc", action="store_true")
    ap.add_argument("--pace", type=float, default=7)
    ap.add_argument("--pacex", type=float, default=7.5)
    ap.add_argument("--paceh", type=float, default=8)
    ap.add_argument("--pacet", type=float, default=3.3)
    ap.add_argument("--xr15", type=float, default=0.04)
    ap.add_argument("--xr0", type=float, default=-1)
    ap.add_argument("--xrt", type=float, default=0.0)
    ap.add_argument("--flag0", type=int, default=0)
    ap.add_argument("--early", type=int, default=10)
    ap.add_argument("--direct", default="8343")
    ap.add_argument("--ns", type=int, default=3)
    ap.add_argument("--cn", default="545")
    ap.add_argument("--c0", type=int, default=66)
    ap.add_argument("--c1", type=int, default=124)
    ap.add_argument("--asc", type=int, default=1)
    ap.add_argument("--xtouch", type=int, default=0)
    ap.add_argument("--tpf", type=int, default=0)
    ap.add_argument("--hops", type=int, default=1)
    ap.add_argument("--add", default="")
    ap.add_argument("--h0sp", type=int, default=1)
    ap.add_argument("--xd3", type=int, default=1)
    ap.add_argument("--e0pre", type=int, default=10)
    ap.add_argument("--cap4", type=int, default=1)
    ap.add_argument("--fpos", type=int, default=45)
    ap.add_argument("--echos", type=int, default=4)
    ap.add_argument("--echob", type=int, default=0)
    ap.add_argument("--skip", type=int, default=-1)
    ap.add_argument("--hopw", type=int, default=10)
    ap.add_argument("--fmode", type=int, default=0)
    ap.add_argument("--fpub", default="01234567")
    ap.add_argument("--xbpos", type=int, default=12)
    ap.add_argument("--snake", type=int, default=1)
    ap.add_argument("--wpos", type=int, default=1)
    ap.add_argument("--diag2", action="store_true")
    ap.add_argument("--pace0", type=float, default=7)
    ap.add_argument("--pacex0", type=float, default=7.5)
    ap.add_argument("--xrot", type=int, default=0)
    ap.add_argument("--b0pre", type=int, default=4)
    ap.add_argument("--xsp", type=float, default=1.2)
    ap.add_argument("--xso", type=float, default=3.0)
    ap.add_argument("--gw", type=int, default=14)
    ap.add_argument("--xkeep", type=lambda x: [int(y) for y in x.split(",")], default=[])
    ap.add_argument("--entry", type=int, default=1)
    ap.add_argument("--finit", type=int, default=1)
    ap.add_argument("--stx", type=int, default=0)
    ap.add_argument("--stpos", type=int, default=0)
    ap.add_argument("--fdrop", type=int, default=1)
    ap.add_argument("--pollpos", type=int, default=58)
    ap.add_argument("--wpf", type=int, default=0)
    ap.add_argument("--wpd", type=int, default=2)
    ap.add_argument("--algn", type=int, default=16)
    ap.add_argument("--tsplit", type=int, default=0)
    ap.add_argument("--touch", type=int, default=2)
    ap.add_argument("--prex", type=int, default=0)
    ap.add_argument("--zdist", type=int, default=5)
    ap.add_argument("--rdist", type=int, default=8)
    ap.add_argument("--wl2", type=int, default=0)
    ap.add_argument("--echo", default="")
    ap.add_argument("--echoc", type=int, default=0)
    ap.add_argument("--x0f", default="nt")
    ap.add_argument("--e1out", type=int, default=1)
    ap.add_argument("--wwarm", type=int, default=1)
    ap.add_argument("--w0warm", type=int, default=0)
    ap.add_argument("-x", default="")
    ap.add_argument("--wr128", type=int, default=0)
    ap.add_argument("--nft", type=int, default=24)
    ap.add_argument("--sp", type=float, default=10)
    ap.add_argument("--spo", type=float, default=22)
    ap.add_argument("--sp2", type=float, default=9)
    ap.add_argument("--spo2", type=float, default=16)
    ap.add_argument("--xrb", type=float, default=0.0)
    ap.add_argument("--fdrain", type=int, default=1)
    ap.add_argument("--fgrp", type=int, default=3)
    ap.add_argument("--outf", default="sc1")
    opt = ap.parse_args()
    if opt.diagrt: opt.diag = True
    SNAKE = bool(opt.snake)
    if opt.xr0 < 0:
        opt.xr0 = 0.0
        while True:
            try:
                g = G(opt); txt = g.build(); break
            except AssertionError as ex:
                if not (ex.args and (ex.args[0] == "stream left" or ex.args[0][0] == "deadline")): raise
                opt.xr0 += 0.01
                if opt.xr0 > 1: raise
    else:
        g = G(opt); txt = g.build()
    open(opt.o, "w").write(txt)
    print(f"xr0 {opt.xr0:.2f} skip {getattr(g,'skip',0)} hopcost {getattr(g,'hopcost',0)} nhops {getattr(g,'nhops',0)} fallback waits:", g.warn, {k: len(v) for k, v in g.texts.items()})
```

```python
import sys, re, argparse

NAME = "standalone__dcn_v2_cross__recsys_kernel"
SLOT = 32768
FL_OFF = 64 << 20
EP_OFF = FL_OFF + 65536
ST_OFF = 80 << 20

def vr(b, n=1, p="v"):
    return f"{p}{b}" if n == 1 else f"{p}[{b}:{b+n-1}]"
def ar(b, n=1): return vr(b, n, "a")
def sr(b, n=1): return vr(b, n, "s")

def XF(mt, s): return (mt * 2 + s) * 4
def WF(buf, s): return 64 + buf * 8 + s * 4
def X0(p, mt): return 80 + (p * 8 + mt) * 4
def SEL(h): return 208 + 4 * h
ACC_A0 = 216
ACC_V0 = 40
_acc = {}
def _init_acc():
    va, aa = ACC_V0, ACC_A0
    for nt in range(8):
        for mt in range(8):
            if nt == 7 or (nt == 6 and mt < 2):
                _acc[(mt, nt)] = ("a", aa); aa += 4
            else:
                _acc[(mt, nt)] = ("v", va); va += 4
    assert va == 256 and aa == 256
_init_acc()
def ACC(mt, nt): return _acc[(mt, nt)]

V_L16 = 0; V_XA = [1, 2]; V_WA = [3, 4]; V_WC = [5, 6]; V_XC = [7, 8]; V_CPG = 15; V_CPL = 9
V_POLL = 10; V_FLAG = 11; V_B = 12; V_ST = [13, 14]; V_T = 16; V_XT = 30; V_CAP = 36; V_WT = 37; V_BR = 38
S_DW = 4; S_TR = 5; S_E0 = 6; S_KEY = 7
S_W = 8; S_X0 = 12; S_WS = 16; S_OUT = 20; S_B = 24
S_WT = 28; S_XT = 32
S_X = 36
S_WR = 39
S_Q = 41
S_WCUR = 44; S_WL = 45; S_XB = 46; S_FB = 47; S_FOWN = 48; S_EP = 49; S_NEED = 50; S_FV = 51; S_WLM = 52
S_PA = 53; S_J = 54; S_WAVE = 55; S_RB = 56; S_LOOP = 57; S_LAYER = 58; S_ADJ = 59; S_OADJ = 60; S_WC64 = 61
S_M4 = 62; S_MASK = 65; S_EPOFF = 66; S_CNT = 67; S_CAPJ = 68; S_BOFF = 69
S_TA = 70; S_TB = 71; S_TC = 72; S_TD = 73; S_TE = 74; S_TF = 75; S_O2 = 76; S_O3 = 77; S_WR14 = 78; S_DX = 79
S_PC = 80; S_ST = 82; S_RT = 86; S_SI = 90; S_LEND = 91; S_D0 = 92
S_FQ = 96
S_TG = 99; S_TH = 100; S_M7 = 101; S_XCUR = 3; S_XTO = 28

RANK = {"S": 0, "G": 1, "D": 2, "V": 3}

class Sched:
    def __init__(self, n, maxS=3):
        self.n = n
        self.g = [[] for _ in range(n)]
        self.closedS = set()
        self.maxS = maxS
    def fits(self, g, kind):
        kinds = [k for k, _ in self.g[g]]
        if kind == "G": return len(kinds) == 0
        if "G" in kinds: return False
        nvec = sum(k in "DV" for k in kinds)
        if kind == "S":
            if g in self.closedS or kinds.count("S") >= self.maxS: return False
            return len(kinds) < 3
        return nvec < 2 and len(kinds) < 3
    def put(self, g, kind, fn): self.g[g].append((kind, fn))
    def place(self, kind, fn, lo, hi=None):
        hi = self.n - 1 if hi is None else hi
        for g in range(lo, hi + 1):
            if self.fits(g, kind):
                self.put(g, kind, fn); return g
        raise RuntimeError(f"cannot place {kind} in [{lo},{hi}]")
    def chain(self, items, lo, hi=None):
        out = []; g = lo; pk = None
        for kind, fn in items:
            if pk is not None and (RANK[kind] < RANK[pk] or kind == "G" or pk == "G"): g += 1
            g = self.place(kind, fn, g, hi)
            out.append(g); pk = kind
        return out
    def branch(self, cmpfn, brfn, lo):
        for g in range(lo, self.n - 1):
            if self.fits(g, "S") and self.fits(g + 1, "G"):
                self.put(g, "S", cmpfn); self.closedS.add(g); self.put(g + 1, "G", brfn); return g + 1
        raise RuntimeError("branch")
    def last_su(self):
        last = 0
        for g in range(self.n):
            if any(getattr(f, "su", False) for _, f in self.g[g]): last = g
        return last + 1

def mt_off(mt):
    if mt == 0: return "0", 0
    if mt < 4: return f"s{S_XT+mt}", (mt & 1) * 2048
    return f"s{[S_M4, S_M4+1, S_M4+2, S_M7][mt-4]}", 0

SNAKE = True
def blk(nt, cinit=False):
    r = []
    for mt in range(8):
        ss = (0, 1) if (mt % 2 == 0 and SNAKE) else (1, 0)
        r += [(mt, nt, ss[0], cinit), (mt, nt, ss[1], False)]
    return r

class G:
    def __init__(self, opt):
        self.opt = opt
        self.out = []
        self.vq = []; self.lq = []
        self.ool = {}
        self.slot = {}
        self.lds_own = {}
        self.xa = None; self.wa = None
        self.warn = 0
        self.stamps = []
        self.stream = []; self.stream2 = []; self.entry = {}
        self.pending = None
    def e(self, s): self.out.append(s)
    def E(self, s): return lambda: self.e(s)
    def S(self, s): return ("S", self.E(s))
    def V(self, s): return ("V", self.E(s))
    def SU(self, s, then=None):
        def f():
            self.e(s)
            if then: then()
        f.su = True
        return ("S", f)
    def label(self, n): self.out.append(n + ":")
    def vm(self, s, tag=None):
        self.e(s); self.vq.append(tag); assert len(self.vq) <= 62
    def VM(self, s, tag=None): return ("G", lambda: self.vm(s, tag))
    def lds(self, s, tag=None):
        self.e(s); self.lq.append(tag)
    def _need(self, q, tags, mx, force=None):
        idx = -1
        for i, t in enumerate(q):
            if t in tags: idx = i
        if idx < 0 and force is None: return None
        n = len(q) - 1 - idx
        if force is not None:
            assert n >= force or idx < 0, (n, force, q)
            n = force
        n = min(n, mx)
        if len(q) > n: del q[:len(q) - n]
        return n
    def wait(self, vtags=(), ltags=(), lall=False, vforce=None):
        parts = []
        n = self._need(self.vq, set(vtags), 62, vforce)
        if n is not None: parts.append(f"vmcnt({n})")
        if lall:
            parts.append("lgkmcnt(0)"); self.lq = []
        else:
            n = self._need(self.lq, set(ltags), 14)
            if n is not None: parts.append(f"lgkmcnt({n})")
        if parts: self.e("s_waitcnt " + " ".join(parts))
    def smov(self, d, s):
        def f():
            self.e(f"s_mov_b32 s{d}, s{s}"); self.slot[d] = self.slot[s]
        return ("S", f)

    def mfma(self, m):
        if m[0] == "U":
            _, p, mt, h, tb = m
            self.e(f"v_mfma_f32_16x16x32_bf16 {vr(tb+4*h,4)}, {ar(SEL(h),4)}, {ar(X0(p,mt),4)}, 0")
            return
        mt, nt, s, cinit = m
        buf = nt & 1
        tags = {("XF", mt, s), ("WF", buf, s, 0), ("WF", buf, s, 1)}
        if tags & set(self.lq):
            self.warn += 1
            self.wait(ltags=tags)
        p, r = ACC(mt, nt)
        c = vr(r, 4, p)
        if cinit and p == "v" and mt != 7: c = vr(ACC(7, nt)[1], 4)
        self.e(f"v_mfma_f32_16x16x32_bf16 {vr(r,4,p)}, {ar(WF(buf,s),4)}, {ar(XF(mt,s),4)}, {c}")
    def rd_xf(self, mt, s, want):
        def f():
            assert self.lds_own[self.xa] == want, (self.lds_own[self.xa], want)
            self.lds(f"ds_read_b128 {ar(XF(mt,s),4)}, v{V_XA[s]} offset:{mt*2048}", ("XF", mt, s))
        return f
    def rd_wf(self, nt, s, u, want, half=None):
        p, h = nt >> 1, nt & 1
        if callable(half): half = half(nt)
        off = (p >> 1 if half is None else half) * 16384 + (p & 1) * 512 + s * 8192 + u * 4096
        def f():
            if half is None: assert self.lds_own[self.wa[h]] == want, (self.lds_own[self.wa[h]], want)
            else:
                assert self.lds_half[(self.wa[h], half)] == want + (p >> 1,), (self.lds_half, self.wa[h], half, want, nt)
                assert want + (p >> 1,) in self.landed
            self.lds(f"ds_read_b64_tr_b16 {ar(WF(h,s)+2*u,2)}, v{V_WA[h]} offset:{off}", ("WF", h, s, u))
        return f
    def dma_items(self, what, sdst, form):
        items = []
        if form == "X0" and self.opt.xrot:
            RM = [S_O2, S_O3, S_Q + 1, S_Q + 2]; RS = [S_WLM, S_KEY, S_TG, S_TH]
            for k in range(4):
                items.append(self.SU(f"s_add_u32 m0, s{sdst}, s{RM[k]}", lambda: self.lds_own.__setitem__(self.slot[sdst], what)))
                for i in range(2):
                    items.append(self.VM(f"buffer_load_dwordx4 v{V_XC[i]}, {sr(S_X0,4)}, s{RS[k]} offen" + (" offset:1024" if i else "") + f" {self.opt.x0f} lds", what))
            return items
        for i in range(8):
            if i == 0: items.append(self.SU(f"s_mov_b32 m0, s{sdst}", lambda: self.lds_own.__setitem__(self.slot[sdst], what)))
            if i == 4:
                def chk(): assert self.lds_own[self.slot[sdst]] == what
                items.append(self.SU(f"s_add_u32 m0, s{sdst}, 0x1000", chk))
            off = f" offset:{(i&3)*1024}" if i & 3 else ""
            if form == "W":
                so = "0" if i < 2 else f"s{S_WT+(i>>1)}"
                s = f"buffer_load_dwordx4 v{V_WC[i&1]}, {sr(S_W,4)}, {so} offen{off} lds"
            elif form == "X0":
                so = "0" if i < 2 else f"s{S_XT+(i>>1)}"
                s = f"buffer_load_dwordx4 v{V_XC[i&1]}, {sr(S_X0,4)}, {so} offen{off} {self.opt.x0f} lds"
            else:
                so = "0" if i < 2 else f"s{S_XT+(i>>1)}"
                s = f"buffer_load_dwordx4 v{V_XC[i&1]}, {sr(S_X0,4)}, {so} offen{off} sc1 lds"
            items.append(self.VM(s, what))
        return items
    def place_dma(self, sc, items, lo, pace):
        g = lo; prev = -1; pend = None
        for kind, fn in items:
            if kind == "S": pend = fn; continue
            g0 = max(int(g), prev + 1)
            if pend is not None:
                gs = sc.place("S", pend, max(prev + 1, g0 - 2, 0)); g0 = max(g0, gs + 1); pend = None
            prev = sc.place("G", fn, g0)
            g += pace
        return prev
    def w_setup(self, tidreg, base):
        return [self.S(f"s_lshl_b32 s{S_TA}, s{tidreg}, 17"), self.S(f"s_add_u32 s{S_TA}, s{S_TA}, s{base}"),
                self.S(f"s_sub_u32 s{S_TB}, s{S_TA}, s{S_WCUR}"), self.S(f"s_mov_b32 s{S_WCUR}, s{S_TA}"),
                self.V(f"v_add_u32 v{V_WC[0]}, s{S_TB}, v{V_WC[0]}"), self.V(f"v_add_u32 v{V_WC[1]}, s{S_TB}, v{V_WC[1]}")]
    def x_setup(self, tidreg):
        return [self.S(f"s_lshl_b32 s{S_TE}, s{tidreg}, 7"), self.S(f"s_sub_u32 s{S_DX}, s{S_TE}, s{S_XCUR}"), self.S(f"s_mov_b32 s{S_XCUR}, s{S_TE}"),
                self.V(f"v_add_u32 v{V_XC[0]}, s{S_DX}, v{V_XC[0]}"), self.V(f"v_add_u32 v{V_XC[1]}, s{S_DX}, v{V_XC[1]}")]
    def flag_items(self):
        return [self.V(f"v_mov_b32 v{V_FLAG}, s{S_FV}"),
                self.VM(f"buffer_store_dword v{V_FLAG}, off, {sr(S_WS,4)}, s{S_FOWN} sc1", "F"),
                self.S(f"s_add_u32 s{S_FV}, s{S_FV}, 1")]
    def poll_check(self, sc, name, tag, lo):
        sl, bk = f"SLOW_{name}", f"BACK_{name}"
        def f0():
            assert tag not in self.vq
            self.e(f"v_readfirstlane_b32 s{S_TC}, v{V_POLL}")
        c = sc.chain([self.S(f"s_and_b32 s{S_TD}, s{S_Q+1}, 3"), self.S(f"s_add_u32 s{S_TD}, s{S_TD}, s{S_NEED}"),
                      ("V", f0), self.S(f"s_sub_u32 s{S_TC}, s{S_TC}, s{S_TD}")], lo)
        def br():
            self.e(f"s_cbranch_scc1 {sl}"); self.label(bk)
        gbr = sc.branch(self.E(f"s_cmp_gt_u32 s{S_TC}, 7"), br, c[-1])
        self.ool[sl] = [f"{sl}:",
                        f"buffer_load_dword v{V_POLL}, off, {sr(S_WS,4)}, s{S_PA} sc1", "s_waitcnt vmcnt(0)",
                        f"v_readfirstlane_b32 s{S_TC}, v{V_POLL}", f"s_cmp_eq_u32 s{S_CNT}, 0", f"s_cbranch_scc1 {bk}",
                        f"s_sub_u32 s{S_CNT}, s{S_CNT}, 1",
                        f"s_sub_u32 s{S_TC}, s{S_TC}, s{S_TD}", f"s_cmp_gt_u32 s{S_TC}, 7", f"s_cbranch_scc0 {bk}",
                        "s_sleep 1", f"s_branch {sl}"]
        return gbr
    def stamp(self, which):
        if self.opt.diagrt:
            if which == 1:
                self.e(f"s_memtime s[{S_ST}:{S_ST+1}]"); self.e(f"s_memrealtime s[{S_ST+2}:{S_ST+3}]")
            return
        self.e(f"s_memtime s[{S_ST+2*which}:{S_ST+2*which+1}]")
    def stamp_items(self):
        def f():
            self.e(f"s_lshl_b64 exec, 1, s{S_SI}"); self.e(f"v_mov_b32 v{V_ST[0]}, s{S_ST}"); self.e(f"v_mov_b32 v{V_ST[1]}, s{S_ST+2}")
            self.e("s_mov_b64 exec, -1"); self.e(f"s_add_u32 s{S_SI}, s{S_SI}, 1")
        return [("G", f)]
    def epi_valu(self, p, mt, tb, at, ob):
        ops = []
        for h in range(2):
            pf, r = ACC(mt, 2 * p + h)
            if pf == "a":
                for i in range(4): ops.append(f"v_accvgpr_read_b32 v{at+i}, a{r+i}")
                r = at
            for i in range(4): ops.append(f"v_mul_f32 v{tb+4*h+i}, v{tb+4*h+i}, v{r+i}")
        for d in range(4): ops.append(f"v_cvt_pk_bf16_f32 v{ob+d}, v{tb+2*d}, v{tb+2*d+1}")
        return ops
    def bunpack(self, nt, d):
        dpp = f"row_newbcast:{nt} row_mask:0xf bank_mask:0xf"
        return [f"v_mov_b32_dpp v{d[1]}, v{V_BR} {dpp}", f"v_mov_b32_dpp v{d[3]}, v{V_BR+1} {dpp}",
                f"v_lshlrev_b32 v{d[0]}, 16, v{d[1]}", f"v_and_b32 v{d[1]}, s{S_MASK}, v{d[1]}",
                f"v_lshlrev_b32 v{d[2]}, 16, v{d[3]}", f"v_and_b32 v{d[3]}, s{S_MASK}, v{d[3]}"]
    def bias_sched(self, sc, nt, g, busy, a0):
        f = [V_T + 16 + i for i in range(4)]
        g = sc.chain([self.V(x) for x in self.bunpack(nt, f)], g)[-1]
        ops = []
        for mt in range(8):
            pf, a = ACC(mt, nt)
            if pf == "v":
                ops += [f"v_add_f32 v{a+i}, v{a+i}, v{f[i]}" for i in range(4)]
            else:
                for i in (0, 2):
                    ops += [f"v_accvgpr_read_b32 v{a0}, a{a+i}", f"v_accvgpr_read_b32 v{a0+1}, a{a+i+1}",
                            f"v_add_f32 v{a0}, v{a0}, v{f[i]}", f"v_add_f32 v{a0+1}, v{a0+1}, v{f[i+1]}",
                            f"v_accvgpr_write_b32 a{a+i}, v{a0}", f"v_accvgpr_write_b32 a{a+i+1}, v{a0+1}"]
        b0, b1 = busy
        est = g + len(ops) // 2 + len(ops) // 3 + 4
        if est < b0 - 2: lo, hi = g, b0 - 2
        else: lo, hi = max(g, b1 + 6), sc.n - 1
        return sc.chain([self.V(x) for x in ops], lo, hi)[-1]
    def bias0_ops(self, nt):
        d = ACC(7, nt)[1]
        return self.bunpack(nt, [d, d + 1, d + 2, d + 3]) + [f"v_add_f32 v{d+i}, 1.0, v{d+i}" for i in range(4)]

    def prologue(self):
        e = self.e; o = self.opt
        e("s_cmp_lt_u32 s2, 256"); e("s_cbranch_scc1 L_go"); e("s_endpgm")
        self.label("L_go")
        for r, off in ((S_X0, 0), (S_W, 8), (S_B, 16), (S_OUT, 24), (S_WS, 40)):
            e(f"s_load_dwordx2 s[{r}:{r+1}], s[0:1], {off}")
        if o.diag:
            e(f"s_memrealtime s[{S_RT}:{S_RT+1}]"); e(f"s_memtime s[{S_D0}:{S_D0+1}]")
        nst = [0]
        def pst():
            if not o.diag2: return
            e(f"s_memtime s[{S_D0+2}:{S_D0+3}]"); e("s_waitcnt lgkmcnt(0)"); e(f"v_writelane_b32 v{V_ST[0]}, s{S_D0+2}, {52+nst[0]}"); nst[0] += 1
        T = 40
        lane, m, q, r4, c4, q1, tw, t0, t1, t2 = [f"v{T+i}" for i in range(10)]
        e(f"s_getpc_b64 s[{S_PC}:{S_PC+1}]")
        self.label("L_pc")
        e(f"v_lshrrev_b32 {t0}, 6, v0")
        e("s_lshr_b32 s3, s2, 3")
        e(f"v_readfirstlane_b32 s{S_WAVE}, {t0}")
        e("v_lshrrev_b32 v16, 4, v0")
        e("v_lshl_add_u32 v16, s3, 4, v16")
        e("v_lshlrev_b32 v16, 7, v16")
        e(f"v_min_u32 v31, L_codeend-L_pc-4, v16")
        self.vm(f"global_load_dword v{V_POLL}, v31, s[{S_PC}:{S_PC+1}]", "PF")
        e(f"s_and_b32 s{S_RB}, s2, 7"); e(f"s_lshr_b32 s{S_TC}, s2, 5"); e(f"s_lshl3_add_u32 s{S_RB}, s{S_RB}, s{S_TC}")
        e(f"v_bfe_u32 {t1}, v0, 3, 3"); e(f"v_and_b32 {t2}, 7, v0"); e(f"v_bfe_u32 {q}, v0, 4, 2")
        e(f"v_xor_b32 {t0}, {t2}, {q}"); e(f"v_lshlrev_b32 {t0}, 4, {t0}"); e(f"v_lshl_add_u32 {t0}, {t1}, 11, {t0}")
        e(f"s_lshl2_add_u32 s{S_PA}, s{S_RB}, s{S_WAVE}"); e(f"s_lshl_b32 s{S_PA}, s{S_PA}, 17")
        if o.qrot:
            if o.qrot == 1: e(f"s_and_b32 s{S_TD}, s{S_TC}, 3")
            else: e(f"s_and_b32 s{S_TD}, s2, 3")
            e(f"s_lshl_b32 s{S_TE}, s{S_TD}, 9"); e(f"s_add_u32 s{S_PA}, s{S_PA}, s{S_TE}")
        e(f"v_add_u32 v{V_XC[0]}, s{S_PA}, {t0}")
        e(f"v_xor_b32 v{V_XC[1]}, 64, v{V_XC[0]}"); e(f"v_add_u32 v{V_XC[1]}, {16384-1024}, v{V_XC[1]}")
        e(f"s_lshl_b32 s{S_X}, s{S_WAVE}, 13"); self.slot[S_X] = 0
        e(f"s_mov_b32 s{S_X0+2}, {16384*1024*2}"); e(f"s_mov_b32 s{S_X0+3}, 0x20000")
        e(f"s_and_b32 s{S_J}, s3, 3")
        for k in range(1, 4): e(f"s_mov_b32 s{S_XT+k}, {k*32768 - (k&1)*2048}")
        if o.xrot:
            for k, (rm, rs) in enumerate(zip([S_O2, S_O3, S_Q + 1, S_Q + 2], [S_WLM, S_KEY, S_TG, S_TH])):
                e(f"s_add_u32 s{rm}, s{S_J}, {k}"); e(f"s_and_b32 s{rm}, s{rm}, 3"); e(f"s_lshl_b32 s{rs}, s{rm}, 15"); e(f"s_lshl_b32 s{rm}, s{rm}, 11")
        e(f"v_bfe_u32 {r4}, v0, 2, 2")
        e(f"s_lshl_b32 s{S_CNT}, s{S_TC}, 15"); e(f"s_add_u32 s{S_CNT}, s{S_CNT}, s{S_X}")
        e(f"s_lshl_b32 s{S_BOFF}, s{S_J}, 9"); e(f"s_add_u32 s{S_CNT}, s{S_CNT}, s{S_BOFF}")
        if o.qrot: e(f"s_lshl_b32 s{S_WCUR}, s{S_TD}, 19"); e(f"s_add_u32 s{S_CNT}, s{S_CNT}, s{S_WCUR}")
        e(f"v_lshlrev_b32 {tw}, 7, {r4}"); e(f"v_lshl_add_u32 {tw}, {q}, 11, {tw}")
        e(f"s_mov_b32 s{S_W+2}, {3*1024*1024*2}"); e(f"s_mov_b32 s{S_W+3}, 0x20000")
        xit = self.dma_items(("X", 0, 0), S_X, "X0")
        xit[0][1](); xit = xit[1:]
        if o.diag: e(f"v_mov_b32 v{V_ST[0]}, 0"); e(f"v_mov_b32 v{V_ST[1]}, 0")
        e("s_waitcnt lgkmcnt(0)")
        if o.diag: e(f"s_memtime s[{S_ST}:{S_ST+1}]")
        def run(items):
            for k, f in items:
                f()
                if k == "S": e("s_nop 0")
        def wtouch(): self.vm(f"buffer_load_dword v{V_POLL}, {tw}, {sr(S_W,4)}, s{S_CNT} offen", "PF")
        if o.touch == 1: wtouch()
        run(xit)
        if o.touch == 2: wtouch()
        e(f"s_mov_b32 s{S_B+2}, {3*1024*2}"); e(f"s_mov_b32 s{S_B+3}, 0x20000")
        self.vm(f"buffer_load_dword v{V_POLL}, {tw}, {sr(S_B,4)}, s{S_BOFF} offen", "PF")
        pst()
        e(f"s_lshl_b32 s{S_EPOFF}, s{S_RB}, 7"); e(f"s_add_u32 s{S_EPOFF}, s{S_EPOFF}, {hex(EP_OFF)}")
        if not o.diag2: e(f"s_load_dword s{S_EP}, s[{S_WS}:{S_WS+1}], s{S_EPOFF}")
        e(f"v_and_b32 {lane}, 63, v0"); e(f"v_and_b32 {m}, 15, v0"); e(f"v_and_b32 {c4}, 3, v0"); e(f"v_and_b32 {q1}, 1, {q}")
        for r, sl in ((S_X + 1, 2), (S_X + 2, 4), (S_WR, 1), (S_WR + 1, 3)):
            e(f"s_add_u32 s{r}, s{S_X}, {hex(sl*SLOT)}"); self.slot[r] = sl
        e(f"v_lshlrev_b32 v{V_L16}, 4, {lane}")
        e(f"s_lshr_b32 s{S_TA}, s{S_WAVE}, 1"); e(f"s_and_b32 s{S_TB}, s{S_WAVE}, 1")
        for k in range(1, 4): e(f"s_mov_b32 s{S_WT+k}, {(16*(k&1) + 4*(k>>1))*2048 - (k&1)*2048}")
        e(f"s_lshl_b32 s{S_WC64}, s{S_TB}, 6"); e(f"s_add_u32 s{S_PA}, s{S_BOFF}, s{S_WC64}")
        e(f"v_lshlrev_b32 {t0}, 3, {q}"); e(f"v_add_u32 v{V_B}, s{S_PA}, {t0}")
        e(f"v_bfe_u32 {t0}, {lane}, 1, 2"); e(f"v_lshl_add_u32 v{V_B}, {t0}, 7, v{V_B}"); e(f"v_and_b32 {t0}, 1, {lane}"); e(f"v_lshl_add_u32 v{V_B}, {t0}, 5, v{V_B}")
        e(f"s_lshl_b32 s{S_PA}, s{S_TA}, 8"); e(f"s_add_u32 s{S_PA}, s{S_PA}, s{S_BOFF}")
        e(f"s_lshl_b32 s{S_FV}, s{S_TB}, 16"); e(f"s_add_u32 s{S_PA}, s{S_PA}, s{S_FV}")
        if o.qrot: e(f"s_add_u32 s{S_PA}, s{S_PA}, s{S_WCUR}")
        e(f"v_lshlrev_b32 {t0}, 4, {c4}"); e(f"v_lshl_add_u32 {t0}, {q}, 6, {t0}"); e(f"v_lshl_add_u32 {t0}, {r4}, 11, {t0}")
        e(f"v_add_u32 v{V_WC[0]}, s{S_PA}, {t0}")
        e(f"v_xor_b32 v{V_WC[1]}, 32, v{V_WC[0]}"); e(f"v_add_u32 v{V_WC[1]}, {16384-1024}, v{V_WC[1]}")
        def w0():
            self.vm(f"buffer_load_dwordx2 {vr(V_BR,2)}, v{V_B}, {sr(S_B,4)}, 0 offen", ("B", 0))
            run(self.dma_items(("W", 0, 0), S_WR, "W"))
            pst()
        if o.wpos == 0: w0()
        e(f"s_mov_b32 s{S_OUT+2}, {16384*1024*2}"); e(f"s_mov_b32 s{S_OUT+3}, 0x20000")
        e(f"s_mov_b32 s{S_WS+2}, 0x10000000"); e(f"s_mov_b32 s{S_WS+3}, 0x20000")
        e(f"s_lshl_b32 s{S_FB}, s{S_RB}, 9"); e(f"s_add_u32 s{S_FB}, s{S_FB}, {hex(FL_OFF)}")
        e(f"v_lshrrev_b32 {t0}, 1, {m}"); e(f"v_xor_b32 {t0}, {q}, {t0}"); e(f"v_lshlrev_b32 {t0}, 4, {t0}"); e(f"v_lshl_add_u32 {t0}, {m}, 7, {t0}")
        e(f"s_lshl_b32 s{S_WR14}, s{S_TA}, 14")
        e(f"v_add_u32 v{V_XA[0]}, s{S_WR14}, {t0}"); e(f"v_xor_b32 v{V_XA[1]}, 64, v{V_XA[0]}")
        self.xa = 0
        e(f"v_lshlrev_b32 {t0}, 10, {q}"); e(f"v_lshl_add_u32 {t0}, {r4}, 6, {t0}"); e(f"v_lshl_add_u32 {t0}, {q1}, 5, {t0}"); e(f"v_lshl_add_u32 {t0}, {c4}, 3, {t0}")
        e(f"s_lshl_b32 s{S_PA}, s{S_TB}, 8"); e(f"s_add_u32 s{S_PA}, s{S_PA}, {SLOT}")
        e(f"v_add_u32 v{V_WA[0]}, s{S_PA}, {t0}")
        e(f"v_xor_b32 v{V_WA[1]}, 32, v{V_WA[0]}")
        self.wa = [1, 1]
        e(f"v_and_b32 {t1}, 1, {m}"); e(f"v_lshlrev_b32 {t1}, 4, {t1}"); e(f"v_mov_b32 {t2}, 0x3f80"); e(f"v_lshlrev_b32 {t1}, {t1}, {t2}")
        e(f"v_lshlrev_b32 {t2}, 3, {q}"); e(f"v_sub_u32 {t2}, {m}, {t2}"); e(f"v_ashrrev_i32 {t2}, 1, {t2}")
        misc = [f"s_mov_b32 s{S_M4}, 0x20000", f"s_mov_b32 s{S_M4+1}, 0x28000", f"s_mov_b32 s{S_M4+2}, 0x30000", f"s_mov_b32 s{S_MASK}, 0xffff0000",
                f"s_mov_b32 s{S_WL}, 0", f"s_mov_b32 s{S_Q}, 1", f"s_mov_b32 s{S_M7}, 0x38000",
                f"s_lshl_b32 s{S_FOWN}, s{S_J}, 7", f"s_add_u32 s{S_FOWN}, s{S_FOWN}, s{S_FB}", f"s_mul_i32 s{S_OADJ}, s{S_TB}, 7168",
                f"s_mov_b32 s{S_ADJ}, 8192", f"s_mov_b32 s{S_LAYER}, 0", f"s_mov_b32 s{S_CAPJ}, s{S_J}", f"s_mov_b32 s{S_LOOP}, 1",
                "s_nop 0" if o.qrot else f"s_mov_b32 s{S_WCUR}, 0", f"s_mov_b32 s{S_LEND}, 15"]
        for h in range(2):
            for d in range(4):
                e(f"v_cmp_eq_u32 vcc, {d - 8*h}, {t2}"); e(misc.pop(0)); e(misc.pop(0))
                e(f"v_cndmask_b32 {t0}, 0, {t1}, vcc"); e(f"v_accvgpr_write_b32 a{SEL(h)+d}, {t0}")
        for d in range(3):
            e(f"s_cmp_ge_u32 {d}, s{S_J}"); e(f"s_cselect_b32 s{S_FQ+d}, {4*(d+1)}, {4*d}")
        e(f"s_mul_i32 s{S_PA}, s{S_TB}, {131072-16384}"); e(f"s_sub_u32 s{S_PA}, s{S_BOFF}, s{S_PA}")
        e(f"v_xor_b32 v{V_CPG}, s{S_WC64}, v{V_XC[0]}"); e(f"v_add_u32 v{V_CPG}, s{S_PA}, v{V_CPG}")
        if o.qrot:
            e(f"v_subrev_u32 v{V_CPG}, s{S_TE}, v{V_CPG}")
            e(f"s_mov_b32 s{S_XCUR}, s{S_TE}")
            e(f"s_lshl2_add_u32 s{S_Q}, s{S_TD}, 1"); e(f"s_sub_u32 s{S_CAPJ}, s{S_J}, s{S_TD}"); e(f"s_and_b32 s{S_CAPJ}, s{S_CAPJ}, 3")
        else: e(f"s_mov_b32 s{S_XCUR}, {15*128}")
        if o.wpf:
            e(f"s_lshl2_add_u32 s{S_XB}, s{S_TC}, s{S_WAVE}"); e(f"s_lshl_b32 s{S_XB}, s{S_XB}, 12"); e(f"s_add_u32 s{S_XB}, s{S_XB}, s{S_BOFF}")
        e(f"s_lshl2_add_u32 s{S_PA}, s2, s{S_WAVE}"); e(f"s_lshl_b32 s{S_PA}, s{S_PA}, 12"); e(f"s_add_u32 s{S_PA}, s{S_PA}, 0x200000")
        e(f"v_min_u32 v{V_CPL}, 2, {q}"); e(f"v_lshlrev_b32 v{V_CPL}, 7, v{V_CPL}")
        e(f"s_mov_b32 s{S_BOFF}, 2048"); e(f"s_mov_b32 s{S_CNT}, 0x100000")
        pst()
        if o.wpos == 1: w0()
        if o.hops:
            e("s_mov_b64 exec, 0")
            for w in range(1, 4):
                e(f"s_cmp_eq_u32 s{S_WAVE}, {w}"); e(f"s_cbranch_scc1 HOP{w}")
            e("s_branch HOP0")
            self.label("HOPEND")
            e("s_mov_b64 exec, -1")
        pst()
        if o.wpos == 2: w0()
        if o.diag: e(f"s_memtime s[{S_ST+2}:{S_ST+3}]")
        if o.diag2: e(f"s_load_dword s{S_EP}, s[{S_WS}:{S_WS+1}], s{S_EPOFF}")
        self.wait(vtags=[("B", 0)])
        for nt in range(o.b0pre):
            for x in self.bias0_ops(nt): e(x)
        if o.diag:
            e("s_waitcnt lgkmcnt(0)")
            e(f"v_writelane_b32 v{V_ST[0]}, s{S_D0}, 63")
            e(f"v_writelane_b32 v{V_ST[0]}, s{S_ST}, 60"); e(f"v_writelane_b32 v{V_ST[1]}, s{S_ST+2}, 60")
            e(f"s_mov_b32 s{S_SI}, 0")

    def seg_open(self, name, vt, vforce, prev_nt, nts, X, W, half=None, reload=True, cinit=False, maxS=3, barrier=True, nextnt=None, entry=False, spread=False):
        o = self.opt
        dg = o.diag and not (o.diagc and name in ("G0", "G1"))
        if dg: self.stamps.append(name)
        if self.pending: self.mfma(self.pending)
        if dg: self.stamp(0)
        if barrier and entry:
            k = len(self.out)
            if o.diagc and o.diagrt: self.stamp(1)
            self.wait(vtags=vt, lall=True)
            if o.diagc and o.diagrt:
                self.stamp_items()[0][1](); self.stamps.append(name + "L")
            pre = self.out[:] + [f"s_branch LB_{name}"]
            assert self.entry.setdefault(name, pre) == pre
            self.out[k:] = [f"s_waitcnt vmcnt({vforce}) lgkmcnt(0)", f"LB_{name}:", "s_barrier"]
        elif barrier:
            self.wait(vtags=vt, lall=True, vforce=vforce)
            if name in self.entry: self.label(f"LB_{name}")
            self.e("s_barrier")
        else:
            self.wait(ltags=[("WF", prev_nt & 1, s, u) for s in range(2) for u in range(2)])
        if dg: self.stamp(1)
        base = ([] if prev_nt is None else blk(prev_nt)) + sum((blk(nt, cinit) for nt in nts), [])
        off = 0 if prev_nt is None else 16
        self.pending = base[-1] if nts else None
        mf = base[:-1] if nts else base
        sc = Sched(len(mf), maxS)
        sc.mf = mf; sc.off = off; sc.dg = dg
        su = [(s, u) for s in range(2) for u in range(2)]
        if prev_nt is None:
            rd = [self.rd_xf(base[i][0], base[i][2], X) for i in range(16)]
            self.rd_wf(nts[0], 0, 0, W, half)(); self.rd_wf(nts[0], 0, 1, W, half)(); rd[0]()
            self.rd_wf(nts[0], 1, 0, W, half)(); self.rd_wf(nts[0], 1, 1, W, half)()
            for i in range(1, o.e0pre): rd[i]()
            self.wait(ltags=[("XF", 0, 0), ("XF", 0, 1)])
            for i in range(o.e0pre, 16): sc.put(i - o.e0pre, "D", rd[i])
            for mt in range(1, 8): sc.put(2 * mt - 1, "S", lambda mt=mt: self.wait(ltags=[("XF", mt, 0), ("XF", mt, 1)]))
            sc.e0last = 16 - o.e0pre
        elif nts:
            xs = o.xsp if spread else 1.0
            if reload and xs > 1.0:
                rp = [max(i, int(i * xs + o.xso)) for i in range(16)]
                for i in range(16):
                    mt, _, s, _ = base[i]
                    sc.put(rp[i], "D", self.rd_xf(mt, s, X))
                holes = [g for g in range(0, 12) if g not in rp]
                holes = (holes + [1, 3, 5, 7])[:4]
                for k, (s, u) in enumerate(su): sc.put(sorted(holes)[k], "D", self.rd_wf(nts[0], s, u, W, half))
                sc.rp = rp
            else:
                if reload:
                    for i in range(16):
                        mt, _, s, _ = base[i]
                        sc.put(i, "D", self.rd_xf(mt, s, X))
                for k, (s, u) in enumerate(su): sc.put(2 * k, "D", self.rd_wf(nts[0], s, u, W, half))
            sc.put(15, "S", lambda: self.wait(ltags=[("XF", 1, 0), ("XF", 1, 1)] + [("WF", nts[0] & 1, s, u) for s, u in su]))
        if reload and nts and prev_nt is not None:
            if hasattr(sc, "rp"):
                for mt, upto in ((2, 3), (4, 4), (5, 5), (6, 6), (7, 7)):
                    sc.put(off + 2 * mt - 1, "S", lambda m=upto: self.wait(ltags=[("XF", m, 0), ("XF", m, 1)]))
            else:
                for mt in (2, 4, 6):
                    sc.put(off + 2 * mt - 1, "S", lambda mt=mt: self.wait(ltags=[("XF", mt + 1, 0), ("XF", mt + 1, 1)]))
        sc.blkwait = []
        seq = list(nts[1:]) + [nextnt]
        for b, nt in enumerate(seq):
            if b < len(seq) - 1:
                g = off + 16 * (b + 1) - 1
                sc.put(g, "S", lambda nt=nt: self.wait(ltags=[("WF", nt & 1, s, u) for s, u in su] + [("C", V_T + 4 * i) for i in range(4) if name[0] == "S"]))
                sc.blkwait.append(g)
        if nts:
            for b, nt in enumerate(seq):
                if b == 0 and hasattr(sc, "rp"):
                    holes = [g for g in range(16, 27) if g not in sc.rp and g not in o.xkeep][:4]
                    for k, (s, u) in enumerate(su): sc.put(holes[k], "D", self.rd_wf(nt, s, u, W, half))
                    continue
                if b == 0 and prev_nt is None:
                    for k, (s, u) in enumerate(su): sc.place("D", self.rd_wf(nt, s, u, W, half), max(0, sc.e0last - 2) + k)
                    continue
                for k, (s, u) in enumerate(su): sc.place("D", self.rd_wf(nt, s, u, W, half), off + 16 * b + 2 * k)
        return sc
    def seg_emit(self, sc, gbase=None, check=None, stamp_at=50):
        if sc.dg: sc.chain(self.stamp_items(), stamp_at)
        for g, m in enumerate(sc.mf):
            if check: check(g, m)
            self.mfma(m)
            self.merge_gap(sc, g, None if gbase is None else gbase + g)
    def xa_items(self, new, old, nx):
        def f0():
            self.e(f"v_add_u32 v{V_XA[0]}, s{S_DX}, v{V_XA[0]}"); self.xa = nx["x"]
        return [self.SU(f"s_sub_u32 s{S_DX}, s{new}, s{old}", lambda: nx.update(x=self.slot[new])),
                ("V", f0), self.V(f"v_add_u32 v{V_XA[1]}, s{S_DX}, v{V_XA[1]}")]
    def wa_sched(self, sc, new, old, g_s, g_v):
        nx = {}
        def wa(h):
            def f():
                self.e(f"v_add_u32 v{V_WA[h]}, s{S_DW}, v{V_WA[h]}"); self.wa[h] = nx["w"]
            return f
        k, f = self.SU(f"s_sub_u32 s{S_DW}, s{new}, s{old}", lambda: nx.update(w=self.slot[new]))
        sc.place(k, f, g_s, g_v - 1)
        sc.chain([("V", wa(0)), ("V", wa(1))], g_v)

    def body(self, kind, layer, t):
        o = self.opt
        X = ("X", layer, t); W = ("W", layer, t)
        first = kind == "E0"
        vt = [X, W, ("P", layer, t + 2)]
        if kind == "S1": vt.append(("B", layer))
        vforce = {"G0": min(9 + (1 if o.xtouch else 0) + (1 if o.tpf & 2 else 0), 10 + (1 if o.xtouch else 0)), "G1": 8, "T14": 8}.get(kind)
        sc = self.seg_open(kind, vt, vforce, None if first else 7, list(range(7)), X, W, cinit=first,
                           maxS=1 if kind in ("T15", "H0") else 3, nextnt=7, entry=((kind == "G1" and t == o.ns + 1 and o.entry) or (kind == "G0" and t == 1 and o.entry > 1)),
                           spread=kind in ("G0", "G1", "T14", "S1", "S2", "S3", "S4", "S5") or (kind == "H0" and o.h0sp))
        n, off = sc.n, sc.off
        if kind in ("G0", "G1"):
            sc.put(n - 1, "G", lambda: None)
            sc.put(n - 2, "S", self.E(f"s_cmp_lt_u32 s{S_LOOP}, " + ("14" if kind == "G0" else f"s{S_LEND}"))); sc.closedS.add(n - 2)
        self.gcap = 0
        if kind in ("E0", "G0", "T14", "T15"):
            gB = off + 94 if kind != "T15" else off + 1
            def br():
                self.e(f"s_cbranch_scc1 CAP_{kind}"); self.e("@CAP")
            if kind == "G0" and o.cap4:
                for p in range(4):
                    g = off + 81 + 2 * p
                    sc.put(g, "G", lambda p=p: (self.e(f"s_cbranch_scc1 CAP_G0{p}"), self.e(f"@CAP{p}")))
                    sc.put(g - 1, "S", self.E(f"s_cmp_eq_u32 s{S_TC}, {p}")); sc.closedS.add(g - 1)
                sc.chain([self.S(f"s_lshl_b32 s{S_TC}, s{S_CAPJ}, 2"), self.S(f"s_sub_u32 s{S_TC}, s{S_LOOP}, s{S_TC}")], off + 64, off + 70)
            else:
                sc.put(gB, "G", br)
                sc.put(gB - 1, "S", self.E(f"s_cmp_eq_u32 s{S_TC}, s{S_CAPJ}" if kind == "G0" else f"s_cmp_eq_u32 s{S_CAPJ}, {t >> 2}")); sc.closedS.add(gB - 1)
                if kind == "G0": sc.put(gB - 2, "S", self.E(f"s_lshr_b32 s{S_TC}, s{S_LOOP}, 2"))
            if not (kind == "G0" and o.cap4):
                for k in range(8): sc.put(gB + 1 + k, "D", self.E(f"@RD{k}"))
                sc.put(gB + 9, "G", self.E("@RET"))
            self.gcap = sc.place("V", self.E(f"v_xor_b32 v{V_CAP}, s{S_WC64}, v{V_XA[0]}"), 9, off if kind == "T15" else None)
        pace = 4 if first else (o.pace0 if kind == "G0" else o.pace)
        gw = o.gw if hasattr(sc, "rp") else off + 1
        lastG = gw
        if kind == "H0":
            def xb():
                assert not any(x and x[0] == "XF" for x in self.lq)
                if o.flag0 == 0: self.wait(vtags=[("S", layer, 0)])
                self.e("s_barrier")
            gb = sc.place("S", xb, off + max(o.xbpos, 14 if o.h0sp else 0))
            gw = gb + 1
        if kind == "G1":
            sc.put(0, "S", self.E(f"s_cmp_eq_u32 s{S_LOOP}, s{S_KEY}")); sc.closedS.add(0)
            sc.put(1, "S", self.E(f"s_cselect_b32 s{S_TG}, s{S_Q+1}, s{S_Q}")); sc.put(1, "S", self.E(f"s_cselect_b32 s{S_TH}, s{S_WLM}, s{S_WL}"))
            c = sc.chain(self.w_setup(S_TG, S_TH), 2)
        elif kind != "T15":
            c = sc.chain(self.w_setup(S_Q, S_WL), max(0, gw - 14))
        if first and o.prex and self.x1:
            gw = self.place_dma(sc, self.x1, 1, pace) + 4
        if kind != "T15":
            lastG = self.place_dma(sc, self.dma_items(("W", layer, t + 1), S_WR + 1, "W"), max(gw, c[-1] + 1), pace if kind != "H0" else o.paceh)
        gx = lastG + int(pace)
        if kind in ("S1", "S2", "S3", "S4", "S5", "G1"):
            if kind != "S1":
                gbr = self.poll_check(sc, kind, ("P", layer, t + 2), off + 8)
                assert gbr < lastG - 1
            c = sc.chain([self.S(f"s_lshr_b32 s{S_PA}, s{S_Q+2}, 2"), self.S(f"s_lshl_b32 s{S_PA}, s{S_PA}, 7"),
                          self.S(f"s_add_u32 s{S_PA}, s{S_PA}, s{S_FB}")], (o.pollpos if kind == "S1" else max(gbr + 1, o.pollpos)) if o.pollpos else lastG - 1)
            k, f = self.VM(f"buffer_load_dword v{V_POLL}, off, {sr(S_WS,4)}, s{S_PA} sc1", ("P", layer, t + 3))
            if o.pollpos: gp = sc.place(k, f, c[-1] + 1)
            else:
                gp = sc.place(k, f, max(c[-1], lastG) + 2)
                gx = max(gx, gp + 2); lastG = gp
        if o.wpf and kind in ("E0", "S2"):
            sc.chain([self.V(f"v_and_b32 v{V_WT}, 0x180, v{V_L16}"), self.V(f"v_lshrrev_b32 v{V_FLAG}, 9, v{V_L16}"),
                      self.V(f"v_lshl_add_u32 v{V_WT}, v{V_FLAG}, 11, v{V_WT}")], 9, 40)
        if (o.wpf & 1 and kind == "G0") or (o.wpf & 2 and kind in ("S2", "S3", "G1")):
            TG = S_TE if kind == "G0" else S_TG
            it = [self.S(f"s_add_u32 s{TG}, s{S_Q}, {o.wpd}")] if kind == "G0" else []
            it += [self.S(f"s_lshl_b32 s{TG}, s{TG if kind == 'G0' else S_Q+2}, 17"), self.S(f"s_add_u32 s{TG}, s{TG}, s{S_WL}"), self.S(f"s_add_u32 s{TG}, s{TG}, s{S_XB}")]
            c = sc.chain(it, off + 26)
            k, f = self.VM(f"buffer_load_dword v{V_POLL if kind == 'G0' else V_CAP}, v{V_WT}, {sr(S_W,4)}, s{TG} offen", "PW")
            lastG = sc.place(k, f, max(c[-1], lastG) + 2); gx = max(gx, lastG + 2)
        xadv = [self.V(f"v_add_u32 v{V_XC[i]}, 128, v{V_XC[i]}") for i in range(2)]
        if o.qrot:
            xadv = [self.S(f"s_add_u32 s{S_TE}, s{S_XCUR}, 128"), self.S(f"s_and_b32 s{S_TE}, s{S_TE}, 0x7ff"), self.S(f"s_sub_u32 s{S_TF}, s{S_TE}, s{S_XCUR}"),
                    self.S(f"s_mov_b32 s{S_XCUR}, s{S_TE}")] + [self.V(f"v_add_u32 v{V_XC[i]}, s{S_TF}, v{V_XC[i]}") for i in range(2)]
        if first:
            if not o.prex:
                sc.chain(xadv, 4)
                lastG = self.place_dma(sc, self.dma_items(("X", 0, 1), S_X + 1, "X0"), gx, pace)
            else: pace = 6
            c = sc.chain(xadv, lastG + 1)
            lastG = self.place_dma(sc, self.dma_items(("X", 0, 2), S_X + 2, "X0"), max(lastG + pace, c[-1] + 1), pace)
        if kind == "G0":
            ww = [self.VM(f"buffer_load_dword v{V_POLL}, v{V_CPL}, {sr(S_W,4)}, s{S_PA} offen", "PW"), self.S(f"s_add_u32 s{S_PA}, s{S_PA}, {384 if o.wwarm else 0}")]
            if not o.xtouch: sc.chain(ww, lastG + 3)
            sc.chain(xadv, off + 20)
            lastG = self.place_dma(sc, self.dma_items(("X", layer, t + 2), S_X + 2, "X0"), gx, o.pacex0)
            if o.xtouch: lastG = sc.chain(ww, lastG + 3)[0]
        if kind in ("E0", "G0") and o.xtouch:
            sc.chain([self.VM(f"buffer_load_dword v{V_POLL}, v{V_XT}, {sr(S_X0,4)}, s{S_XTO} offen nt", "PW"),
                      self.S(f"s_add_u32 s{S_XTO}, s{S_XTO}, 128")], lastG + 3)
        if kind == "G0" and o.tpf & 2:
            sc.chain([self.VM(f"global_load_dword v{V_POLL}, v31, s[{S_PC}:{S_PC+1}]", "PW")], lastG + 6)
        if kind == "S1" and o.tpf & 1:
            sc.chain([self.S(f"s_lshr_b32 s{S_TE}, s2, 3"), self.S(f"s_lshl_b32 s{S_TE}, s{S_TE}, 9"), self.S(f"s_lshl_b32 s{S_TF}, s{S_WAVE}, 7"),
                      self.S(f"s_add_u32 s{S_TE}, s{S_TE}, s{S_TF}"), self.S(f"s_add_u32 s{S_TE}, s{S_TE}, L_TAIL-L_pc"),
                      self.S(f"s_min_u32 s{S_TE}, s{S_TE}, L_codeend-L_pc-4"), self.V(f"v_mov_b32 v{V_FLAG}, s{S_TE}"),
                      self.VM(f"global_load_dword v{V_FLAG}, v{V_FLAG}, s[{S_PC}:{S_PC+1}]", "PW")], off + 4, lastG - 1)
        if kind in ("S2", "S3", "S4", "S5", "G1"):
            c = sc.chain(self.x_setup(S_Q + 1), 8, off - 1)
            assert c[-1] < gx
            lastG = self.place_dma(sc, self.dma_items(("X", layer, t + 2), S_X + 2, "XE"), gx, o.pacex)
        if kind == "T14":
            it = [self.S(f"s_mov_b32 s{S_WT+k}, {k*16384 - (k&1)*2048}") for k in range(1, 4)]
            it += [self.S(f"s_add_u32 s{S_WL}, s{S_WL}, 0x200000"), self.S(f"s_lshl_b32 s{S_Q}, s{S_J}, 2"),
                   self.V(f"v_subrev_u32 v{V_WC[1]}, s{S_ADJ}, v{V_WC[1]}"), self.S(f"s_mov_b32 s{S_ADJ}, 0")]
            it += self.w_setup(S_Q, S_WL)
            c = sc.chain(it, lastG + 1)
            lastG = self.place_dma(sc, self.dma_items(("W", layer + 1, 0), S_X + 2, "W"), max(gx, c[-1] + 1), pace - 1)
        if kind == "T15" and o.wl2:
            t0, t1 = V_T + 16, V_T + 17
            it = [self.V(f"v_bfe_u32 v{t0}, v{V_L16}, 5, 2"), self.V(f"v_lshlrev_b32 v{t0}, 7, v{t0}"),
                  self.V(f"v_lshrrev_b32 v{t1}, 7, v{V_L16}"), self.V(f"v_lshl_add_u32 v{t1}, v{t1}, 11, v{t0}"),
                  self.V(f"v_lshrrev_b32 v{t0}, 9, v{V_L16}"), self.V(f"v_lshlrev_b32 v{t0}, 11, v{t0}"), self.V(f"v_and_b32 v{V_FLAG}, 0x180, v{V_L16}"),
                  self.V(f"v_add_u32 v{t0}, v{t0}, v{V_FLAG}")]
            sc.chain(it, 1, 26)
            sc.maxS = 2
            it = [self.S(f"s_lshr_b32 s{S_TE}, s2, 5"), self.S(f"s_lshl_b32 s{S_TE}, s{S_TE}, 2"), self.S(f"s_add_u32 s{S_TE}, s{S_TE}, s{S_WAVE}"),
                  self.S(f"s_lshl_b32 s{S_TF}, s{S_J}, 9"), self.S(f"s_add_u32 s{S_TF}, s{S_TF}, s{S_WL}"),
                  self.S(f"s_lshl_b32 s{S_TG}, s{S_TE}, 14"), self.S(f"s_add_u32 s{S_TG}, s{S_TG}, s{S_TF}"), self.S(f"s_lshl_b32 s{S_TH}, s{S_J}, 19"),
                  self.S(f"s_add_u32 s{S_TG}, s{S_TG}, s{S_TH}"),
                  self.S(f"s_lshl_b32 s{S_TE}, s{S_TE}, 12"), self.S(f"s_add_u32 s{S_TE}, s{S_TE}, s{S_TF}"),
                  self.VM(f"buffer_load_dword v{V_POLL}, v{t1}, {sr(S_W,4)}, s{S_TG} offen", "PW")]
            for d in range(o.wl2):
                it += [self.S(f"s_lshl_b32 s{S_TH}, s{S_FQ+d}, 17"), self.S(f"s_add_u32 s{S_TH}, s{S_TH}, s{S_TE}"),
                       self.VM(f"buffer_load_dword v{V_POLL}, v{t0}, {sr(S_W,4)}, s{S_TH} offen", "PW")]
            sc.chain(it, 2, 40)
            sc.maxS = 1
        if kind == "T15":
            sc.put(0, "S", self.E(f"s_cmp_eq_u32 s{S_LAYER}, 0")); sc.closedS.add(0)
            if o.e1out: sc.put(1, "S", self.E(f"s_cselect_b64 s[{S_X0}:{S_X0+1}], s[{S_OUT}:{S_OUT+1}], s[{S_WS}:{S_WS+1}]"))
            else:
                sc.put(1, "S", self.E(f"s_cselect_b32 s{S_TE}, 0x2000000, 0"))
                def f64():
                    self.e(f"s_add_u32 s{S_X0}, s{S_WS}, s{S_TE}"); self.e(f"s_addc_u32 s{S_X0+1}, s{S_WS+1}, 0")
                sc.put(17, "G", f64)
            sc.chain([self.S(f"s_lshl_b32 s{S_TD}, s{S_LAYER}, 2"), self.S(f"s_add_u32 s{S_NEED}, s{S_NEED}, s{S_TD}"),
                      self.S(f"s_mov_b32 s{S_FV}, s{S_NEED}"),
                      self.S(f"s_lshr_b32 s{S_TD}, s{S_WAVE}, 1"), self.S(f"s_mul_i32 s{S_TD}, s{S_TD}, s{S_LAYER}"), self.S(f"s_mul_i32 s{S_KEY}, s{S_TD}, 12"),
                      self.S(f"s_sub_u32 s{S_WLM}, s{S_WL}, 256"), self.S(f"s_sub_u32 s{S_LEND}, s{S_LEND}, 1"),
                      self.S(f"s_add_u32 s{S_LAYER}, s{S_LAYER}, 1")], 2, 60)
        if first:
            if o.finit == 0:
                sc.chain([self.V(f"v_lshrrev_b32 v{V_FLAG}, 1, v{V_L16}"), self.V(f"v_and_b32 v{V_FLAG}, 0x180, v{V_FLAG}"),
                          self.VM(f"buffer_load_dword v{V_POLL}, v{V_FLAG}, {sr(S_WS,4)}, s{S_FB} offen sc1", "PW")], 68)
                sc.chain([self.S(f"s_add_u32 s{S_NEED}, s{S_EP}, 1"), self.S(f"s_mov_b32 s{S_FV}, s{S_EP}")] + self.flag_items(), 98)
            else:
                sc.chain([self.S(f"s_add_u32 s{S_NEED}, s{S_EP}, 1"), self.V(f"v_mov_b32 v{V_FLAG}, s{S_EP}"), self.V(f"v_bfe_u32 v{V_T+16}, v{V_L16}, 2, 7"),
                          self.VM(f"buffer_store_dword v{V_FLAG}, v{V_T+16}, {sr(S_WS,4)}, s{S_FOWN} offen sc1", "F")], 70)
        if kind == "H0":
            def fb():
                self.wait(vtags=[("S", layer, 0)]); self.e("s_barrier")
            if o.flag0 > 0:
                g = sc.place("G", fb, off + o.flag0)
                sc.chain(self.flag_items(), g + 1)
            elif o.flag0 == 0: sc.chain(self.flag_items(), gb + 3)
        if kind == "S1" and o.flag0 < 0:
            assert ("S", layer, 0) not in self.vq
            sc.chain(self.flag_items(), 3)
        if kind == "S3":
            assert ("S", layer, 1) not in self.vq and not any(x[0] == 1 for x in self.parked)
            sc.chain(self.flag_items(), off + 3)
        if kind == "G1":
            assert ("S", layer, min(t - o.ns + 1, 3)) not in self.vq
            if o.fdrop:
                def sel():
                    self.e(f"s_cmp_le_u32 s{S_LOOP}, {o.ns + 2}"); self.e(f"s_cselect_b32 s{S_TF}, 0, 0x40000000")
                g1 = [g for g in range(11, 40) if len(sc.g[g]) <= 1 and sc.fits(g, "S")][0]
                sc.put(g1, "S", sel); sc.put(g1, "S", lambda: None)
                g1 = sc.place("V", self.E(f"v_mov_b32 v{V_T}, s{S_TF}"), g1 + 1)
                sc.chain([self.V(f"v_mov_b32 v{V_FLAG}, s{S_FV}"), self.VM(f"buffer_store_dword v{V_FLAG}, v{V_T}, {sr(S_WS,4)}, s{S_FOWN} offen sc1", "F"),
                          self.S(f"s_add_u32 s{S_FV}, s{S_FV}, 1")], max(g1, o.fpos - 1))
            else:
                sc.chain(self.flag_items() + [self.S(f"s_sub_u32 s{S_TF}, s{S_FV}, s{S_NEED}"), self.S(f"s_min_u32 s{S_TF}, s{S_TF}, 3"),
                                              self.S(f"s_add_u32 s{S_FV}, s{S_TF}, s{S_NEED}")], off + 3)
        if kind in ("S1", "S2", "S3", "S4", "S5"):
            if t == 1: self.parked = []
            free = [(V_T + 4 * i, 0) for i in range(4) if V_T + 4 * i not in [x[2] for x in self.parked]]
            jobs = [mt for mt in range(8) if not self.is_direct(t, mt)] if t < 4 else []
            gset = 0
            if jobs:
                def chk(): assert self.lds_own[self.slot[S_X]] == ("X", layer, t)
                gset = sc.chain([self.SU(f"s_sub_u32 s{S_E0}, s{S_X}, s{S_OADJ}", chk), self.V(f"v_add_u32 v{V_CPL}, s{S_E0}, v{V_L16}")], 8)[-1]
            def rd(mt, q, lo, hi):
                sc.place("D", lambda: self.lds(f"ds_read_b128 {vr(q,4)}, v{V_CPL} offset:{mt*2048}", ("C", q)), lo, hi)
            cnt = int(o.cn[t - 1])
            for k in range(cnt):
                gp_ = int(o.c0 + (o.c1 - o.c0) * (k + 0.5) / cnt)
                w = max(x for x in sc.blkwait if x < gp_)
                if self.parked: tile, mt, q = self.parked.pop(0)
                else:
                    q, g0 = free.pop(0); tile, mt = t, jobs.pop(0)
                    rd(mt, q, max(g0, gset + 1, w - 9), w - 1)
                def st(tile=tile, mt=mt, q=q):
                    assert ("C", q) not in self.lq
                    so, im = mt_off(mt)
                    self.vm(f"buffer_store_dwordx4 {vr(q,4)}, v{V_CPG}, {sr(S_X0,4)}, {so} offen offset:{im + tile*128} sc1", ("S", layer, tile))
                cand = [x for x in range(gp_ - 3, min(gp_ + 5, n)) if x > w and sc.fits(x, "G")]
                isg = lambda x: 0 <= x < n and any(kk == "G" for kk, _ in sc.g[x])
                g = min(cand, key=lambda x: (sum(isg(x + d) * (4 - abs(d)) for d in (-3, -2, -1, 1, 2, 3)), abs(x - gp_)))
                sc.put(g, "G", st)
                free.append((q, g + 1)); glast = g
            for mt in jobs:
                q, g0 = free.pop(0)
                g1 = [x for x in range(max(g0, gset + 1, 40), n - 4) if ((x - off) % 16 < 8 or x > sc.blkwait[-1]) and sc.fits(x, "D")][0]
                rd(mt, q, g1, g1)
                self.parked.append((t, mt, q))
            if t == o.ns: assert not self.parked
        if kind == "G0" and o.cap4:
            g = off + 95
            for k in range(8): g = sc.place("D", self.E(f"@RD{k}"), g) + 1
            sc.place("G", self.E("@RET"), g)
        gcap = self.gcap
        gXA = max(gcap + 1, off + 2, sc.rp[-1] + 1 if hasattr(sc, "rp") else getattr(sc, "e0last", 0))
        nx = {}
        if kind == "T15":
            def f0():
                self.e(f"v_add_u32 v{V_XA[0]}, s{S_TA}, v{V_L16}"); self.xa = nx["x"]
            sc.chain([self.S(f"s_lshl_b32 s{S_TA}, s{S_WC64}, 7"),
                      self.SU(f"s_sub_u32 s{S_TA}, s{S_X+2}, s{S_TA}", lambda: nx.update(x=self.slot[S_X + 2])),
                      ("V", f0), self.V(f"v_add_u32 v{V_XA[1]}, 1024, v{V_XA[0]}"), self.S(f"s_mov_b32 s{S_CAPJ}, 77")], off + 11)
            wnext = S_X + 1
        else:
            sc.chain(self.xa_items(S_X + 1, S_X, nx), gXA)
            wnext = S_WR + 1
        self.wa_sched(sc, wnext, S_WR, gXA, off + 16 * 6 + 8)
        if kind == "T15":
            sc.chain([self.VM(f"buffer_load_dwordx2 {vr(V_BR,2)}, v{V_B}, {sr(S_B,4)}, s{S_BOFF} offen", ("B", layer + 1)),
                      self.S(f"s_add_u32 s{S_BOFF}, s{S_BOFF}, 2048")], off + 12, off + 34)
        if kind in ("S1", "S2", "S3", "T14"):
            g = 4 if kind == "S1" else 0
            for nt in {"S1": [5, 6, 0], "S2": [4, 1], "S3": [3, 2], "T14": [7]}[kind]:
                b0 = 0 if nt == 7 else off + 16 * nt
                g = self.bias_sched(sc, nt, g, (b0, b0 + 16), V_T + 10 if kind == "T14" else V_CAP)
        if first:
            g = 0
            for nt in range(o.b0pre, 7):
                g = sc.chain([self.V(x) for x in self.bias0_ops(nt)], g, 16 * nt - 2)[-1]
            ops = []
            for mt in range(2): ops += [f"v_accvgpr_write_b32 a{ACC(mt,6)[1]+i}, v{ACC(7,6)[1]+i}" for i in range(4)]
            for mt in range(8): ops += [f"v_accvgpr_write_b32 a{ACC(mt,7)[1]+i}, 1.0" for i in range(4)]
            sc.chain([self.V(x) for x in ops], g, 96 - 2)
        self.slot[S_TR] = None
        if kind == "T15":
            rot = [self.smov(S_O2, S_X), self.smov(S_O3, S_WR), self.smov(S_WR, S_X + 1), self.smov(S_X + 1, S_WR + 1),
                   self.smov(S_X, S_X + 2), self.smov(S_WR + 1, S_X + 2)]
        elif kind == "H0":
            rot = [self.smov(S_X, S_X + 1), self.smov(S_X + 1, S_O2), self.smov(S_X + 2, S_O3),
                   self.smov(S_TR, S_WR), self.smov(S_WR, S_WR + 1), self.smov(S_WR + 1, S_TR)]
        else:
            rot = [self.smov(S_TR, S_X), self.smov(S_X, S_X + 1), self.smov(S_X + 1, S_X + 2), self.smov(S_X + 2, S_TR),
                   self.smov(S_TR, S_WR), self.smov(S_WR, S_WR + 1), self.smov(S_WR + 1, S_TR)]
        q = []
        if kind in ("E0", "G0", "T15", "H0"): q = [self.S(f"s_add_u32 s{S_Q}, s{S_Q}, 1")]
        if kind == "G0" and o.qrot: q += [self.S(f"s_and_b32 s{S_Q}, s{S_Q}, 15")]
        if kind == "H0": q += [self.S(f"s_add_u32 s{S_Q+1}, s{S_Q}, 1"), self.S(f"s_mov_b32 s{S_Q+2}, s{S_FQ}")]
        if kind in ("S1", "S2"):
            q = [self.S(f"s_mov_b32 s{S_Q}, s{S_Q+1}"), self.S(f"s_mov_b32 s{S_Q+1}, s{S_Q+2}"), self.S(f"s_mov_b32 s{S_Q+2}, s{S_FQ+t}")]
        if kind in ("S3", "S4", "S5", "G1"):
            q = [self.S(f"s_add_u32 s{S_TE}, s{S_Q}, 1"), self.S(f"s_mov_b32 s{S_Q}, s{S_Q+1}"), self.S(f"s_mov_b32 s{S_Q+1}, s{S_Q+2}"),
                 self.S(f"s_mov_b32 s{S_Q+2}, s{S_TE}")]
        if kind == "S3": q += [self.S(f"s_mov_b32 s{S_LOOP}, {o.ns + 1}")]
        sc.chain(q, max(gx, off + 60))
        if kind == "G1": rot += [self.S(f"s_add_u32 s{S_LOOP}, s{S_LOOP}, 1")]
        if kind == "G0": sc.place("S", self.E(f"s_add_u32 s{S_LOOP}, s{S_LOOP}, 1"), off + 104, n - 3)
        sc.chain(rot, max(sc.last_su(), 108 if kind in ("T15", "H0") else 0))
        if o.add and kind in ("G0", "G1"):
            if "n" in o.add:
                for k in range(4): sc.place("G", self.E("s_nop 10"), 40 + 16 * k)
            if "l" in o.add:
                g = 32
                for k in range(16): g = sc.place("D", self.E(f"ds_read_b128 v[{20+4*(k%2)}:{23+4*(k%2)}], v{V_XA[k&1]} offset:{(k//2)*2048}"), g) + 3
            if "v" in o.add:
                g = 30
                for k in range(64): g = sc.place("V", self.E(f"v_mul_f32 v{20+k%8}, v{200+(k*3)%54}, v{201+(k*3)%54}"), g)
            if "g" in o.add:
                for k in range(4): sc.place("G", lambda k=k: self.e(f"buffer_load_dwordx4 v[20:23], v{V_WC[0]}, {sr(S_W,4)}, s{S_M4+k%3} offen"), 31 + 8 * k)
        if kind == "T15": self.make_stream(layer + 1)
        def check(g, m):
            if kind == "H0" and g >= off: assert (m[1] >> 1) * 8 + m[0] in self.epi_done, ("deadline", m)
        self.xr = o.xr15 if kind == "T15" else o.xr0
        self.seg_emit(sc, {"T15": 0, "H0": 128}.get(kind), check, 86 if first else off + 50)
        if "@CAP" in self.out: self.make_cap(kind, t)
        if "@CAP0" in self.out: self.make_cap4()
        if kind == "T15": assert all(f in self.wr_done for f in range(8))
        if kind == "H0": assert not self.stream, "stream left"

    def make_cap(self, kind, t):
        i0 = self.out.index("@CAP"); i1 = self.out.index("@RET")
        reg = self.out[i0 + 1:i1]
        assert not any(x.endswith(":") or "branch" in x or "barrier" in x for x in reg)
        main = [x for x in reg if not x.startswith("@") and x != "s_nop 0"]
        self.out[i0:i1 + 1] = main + [f"CB_{kind}:"]
        def blkc(p):
            return [f"ds_read_b128 {ar(X0(p,int(x[3])),4)}, v{V_CAP} offset:{int(x[3])*2048}" if x.startswith("@RD") else x for x in reg] + [f"s_branch CB_{kind}"]
        cap = f"CAP_{kind}"
        if kind == "G0":
            b = [f"{cap}:", f"s_and_b32 s{S_TC}, s{S_LOOP}, 3"]
            for p in range(1, 4): b += [f"s_cmp_eq_u32 s{S_TC}, {p}", f"s_cbranch_scc1 {cap}{p}"]
            b += blkc(0)
            for p in range(1, 4): b += [f"{cap}{p}:"] + blkc(p)
            self.ool[cap] = b
        else:
            self.ool[cap] = [f"{cap}:"] + blkc(t & 3)
    def make_cap4(self):
        i1 = self.out.index("@RET")
        b = []
        for p in range(4):
            reg = [x for x in self.out[self.out.index(f"@CAP{p}") + 1:i1] if not x.startswith(("@CAP", "s_cbranch_scc1 CAP", f"s_cmp_eq_u32 s{S_TC}"))]
            assert not any(x.endswith(":") or "branch" in x or "barrier" in x for x in reg)
            b += [f"CAP_G0{p}:"] + [f"ds_read_b128 {ar(X0(p,int(x[3])),4)}, v{V_CAP} offset:{int(x[3])*2048}" if x.startswith("@RD") else x for x in reg] + ["s_branch CB_G0"]
        i0 = self.out.index("@CAP0")
        self.out[i0:i1 + 1] = [x for x in self.out[i0:i1] if not x.startswith("@") and x != "s_nop 0"] + ["CB_G0:"]
        self.ool["CAP_G0"] = b
    def is_direct(self, p, mt):
        n = int(self.opt.direct[p])
        return ((mt + 1) * n) // 8 != (mt * n) // 8
    def make_stream(self, nl):
        st = []
        self.epi_done = set(); self.wr_done = set()
        tbf = lambda f: V_T + 8 * (f % 2)
        U = lambda f, h: ("U", ("U", f // 8, f % 8, h, tbf(f)))
        self.stream = [U(f, h) + (30,) for f in range(2) for h in range(2)]
        self.credit = 0.0
        for f in range(32):
            p, mt = f // 8, f % 8
            tb = tbf(f)
            pos = 38 + 32 * p + 2 * mt
            sreg = {0: S_X + 2, 1: S_WR + 1, 2: S_O2, 3: S_O3}[p]
            ops = self.epi_valu(p, mt, tb, V_T + 16, tb)
            it = []
            for k, x in enumerate(ops):
                kd = "V" if (k < 4 or f == 31) else "A"
                if k == len(ops) - 5: it.append((kd, lambda x=x, f=f: (self.e(x), self.epi_done.add(f)), pos))
                else: it.append((kd, self.E(x), pos))
            if p >= 2: pos = max(pos, 129)
            if mt == 0:
                def f0(p=p, sreg=sreg):
                    self.lds_own[self.slot[sreg]] = ("X", nl, p)
                    self.e(f"s_sub_u32 s{S_E0}, s{sreg}, s{S_OADJ}")
                a = [("S", f0, pos), ("A", self.E(f"v_add_u32 v{V_CPL}, s{S_E0}, v{V_L16}"), pos)]
                it = it[:6] + a + it[6:] if p != 2 else it + a
            if self.is_direct(p, mt):
                so, im = mt_off(mt)
                it += [("R", lambda p=p, im=im, tb=tb, so=so: self.vm(f"buffer_store_dwordx4 {vr(tb,4)}, v{V_CPG}, {sr(S_X0,4)}, {so} offen offset:{im + p*128} sc1", ("S", nl, p)), pos)]
            if f + 2 < 32: it += [U(f + 2, 1) + (pos,)]
            it += [("X", lambda f=f, mt=mt, tb=tb: (self.lds(f"ds_write_b128 v{V_CPL}, {vr(tb,4)} offset:{mt*2048}", ("O",)), self.wr_done.add(f)), pos)]
            if f + 2 < 32: it += [U(f + 2, 0) + (pos,)]
            self.stream += it

    def merge_gap(self, sc, g, gpos):
        fixed = sc.g[g]
        self.gnow = gpos
        while True:
            cur = list(fixed)
            excl = any(k == "G" for k, _ in cur)
            hasR = False
            newgap = None
            top = -1
            if gpos is not None: self.credit = min(self.credit + self.xr, 2.0)
            def cnt(): return sum(k in "DV" for k, _ in cur), sum(getattr(f, "w", 1) for k, f in cur)
            def free():
                nvec, tot = cnt()
                if hasR: return nvec < 3
                return not excl and nvec < 2 and tot < 3
            def lookahead():
                i = 0
                while i < len(self.stream) and self.stream[i][0] in "RUX": i += 1
                while i < len(self.stream) and self.stream[i][0] == "V" and self.stream[i][2] <= gpos + 1 and free():
                    cur.append(("V", self.stream.pop(i)[1]))
            if gpos is not None and fixed is sc.g[g] and not (self.stream and getattr(self.stream[0][1], "pub", False)):
                while self.stream2 and self.stream2[0][2] <= gpos + 1:
                    k, fn, pos = self.stream2[0]
                    st = fn.ready(gpos)
                    if st == "skip": self.stream2.pop(0); continue
                    if st:
                        grp = [self.stream2.pop(0)]
                        if k == "S": grp.append(self.stream2.pop(0))
                        self.stream[0:0] = grp
                    break
            while gpos is not None and self.stream:
                k, fn, pos = self.stream[0]
                if pos > gpos + 1:
                    break
                if k == "U" and len(self.stream) > 1 and hasattr(self.stream[1][1], "ok") and not self.stream[1][1].ok():
                    lookahead(); break
                if k == "U" and self.opt.xd3 and not self.stream2 and len(self.stream) > 1 and self.stream[1][0] == "X" and fixed is sc.g[g] and g + 2 < sc.n:
                    hasD = lambda gg: any(kk == "D" for kk, _ in sc.g[gg])
                    more = sum(1 for x in self.stream[3:6] if x[0] == "V" and x[2] <= gpos + 1)
                    if hasD(g + 1) and not hasD(g + 2) and more >= 3:
                        lookahead(); break
                if k == "U":
                    lookahead()
                    newgap = fn; self.stream.pop(0); break
                if k == "X":
                    nxt = [kk for gg in (g + 1, g + 2) if gg < sc.n for kk, _ in sc.g[gg]]
                    follow_u = len(self.stream) > 1 and self.stream[1][0] == "U"
                    if any(kk != "S" for kk, _ in cur) or (not follow_u and "D" in nxt and fixed is sc.g[g]):
                        lookahead(); break
                    cur.append(("G", fn)); excl = True; self.stream.pop(0); continue
                if k == "R":
                    if excl or top > 0:
                        lookahead(); break
                    cur.append(("G", fn)); excl = True; hasR = True; top = 1; self.stream.pop(0); continue
                if k in "SZ":
                    w = 2 if k == "Z" else 1
                    if excl or top > 0 or g in sc.closedS or cnt()[1] + w > 3: break
                    fn.w = w
                    cur.append(("S", fn)); top = 0; self.stream.pop(0); continue
                if k == "D":
                    if top > 2 or not free(): break
                    cur.append(("D", fn)); top = 2; self.stream.pop(0); continue
                ok = free()
                if not ok and not excl and self.credit >= 1.0 and cnt()[0] < 3 and cnt()[1] < 4:
                    self.credit -= 1.0; ok = True
                if not ok: break
                cur.append(("V", fn)); top = 3; self.stream.pop(0)
            ks = [k for k, _ in cur]
            if ks.count("D") == 2 and "S" not in ks and "G" not in ks: cur.append(("S", self.E("s_nop 0")))
            for k, fn in sorted(cur, key=lambda x: RANK[x[0]]): fn()
            if newgap is None: return
            self.mfma(newgap)
            fixed = []

    def tail(self):
        e = self.e; o = self.opt
        L = 2
        VW, VR = V_POLL, V_CPL
        CT = V_T + 20; AT = V_T + 16
        tbf = lambda f: V_T + 8 * (f % 2)
        U = lambda f, h: ("U", ("U", f // 8, f % 8, h, tbf(f)))
        depth = lambda f: 4 if f < 8 else 8
        unit = lambda f: (f % depth(f)) * 4096
        area = {0: (S_WR, 0), 1: (S_X + 1, 0), 2: (S_X, 0), 3: (S_X + 1, 0)}
        def rdback(f, p, r, k):
            assert f in self.visible and self.ra == f // 8
            self.lds(f"ds_read_b64 {vr(r+2*k,2,p)}, v{VR} offset:{unit(f) + 256*k}", ("C", f))
        def store(f, dst):
            assert ("C", f) not in self.lq
            so, im = mt_off(f % 8)
            self.vm(f"buffer_store_dwordx4 {dst}, v{V_CPG}, {sr(S_OUT,4)}, {so} offen offset:{im + (f//8)*128} {o.outf}", "SO")
            self.stored.add(f)
        def wr_ok(f):
            prev = {0: f - 4, 1: -1, 2: -1, 3: f - 16}[f // 8]
            return (prev < 0 or prev in self.freed) and (f // 8) in self.area_free
        def wr(f):
            assert wr_ok(f) and self.wa_ == f // 8
            self.lds(f"ds_write_b128 v{VW}, {vr(tbf(f),4)} offset:{unit(f)}", ("Y", f))
            self.written.add(f); self.wpos = self.gnow; self.w_at[f] = self.gnow
        self.written = set(); self.visible = set(); self.freed = set(); self.rd_at = {}
        self.lds_half = {}; self.landed = set(); self.area_free = set(); self.area_next = set()
        self.wpos = 0; self.ra = 0; self.wa_ = 0; self.w_at = {}
        def at_barrier():
            self.visible |= {f for f in self.written if ("Y", f) not in self.lq}
            self.freed |= {f for f in self.rd_at if ("C", f) not in self.lq}
            self.landed |= {v for v in self.lds_half.values() if v not in self.vq}
            if not any(x and x[0] == "XF" for x in self.lq): self.area_free |= self.area_next
        def bar(vtags=(), every=False):
            self.wait(vtags=vtags, ltags=[("Y", x) for x in self.written if every or self.gnow >= self.w_at[x] + o.zdist]); e("s_barrier"); at_barrier()
        def switch(reg, p, attr):
            t = S_TC if attr == "ra" else S_TD
            def f():
                e(f"v_add_u32 v{reg}, s{t}, v{reg}"); setattr(self, attr, p)
            return [("S", self.E(f"s_sub_u32 s{t}, s{area[p][0]}, s{area[p-1][0]}")), ("A", f)]
        def half_dma(tile, H, tidreg, sreg, half):
            what = ("W", L, tile, H)
            it = [self.S(f"s_add_u32 s{S_TH}, s{S_WLM}, {H*256}")] + self.w_setup(tidreg, S_TH)
            d = [self.SU(f"s_add_u32 m0, s{sreg}, s{S_O2+half}", lambda: self.lds_half.__setitem__((self.slot[sreg], half), what))]
            for i in range(4):
                so = "0" if i < 2 else f"s{S_WT+1}"
                d.append(self.VM(f"buffer_load_dwordx4 v{V_WC[i&1]}, {sr(S_W,4)}, {so} offen" + (f" offset:{i*1024}" if i else "") + " lds", what))
            return it, d
        W13, W14, W15 = ("W", L, 13), ("W", L, 14), ("W", L, 15)
        X13, X14, X15 = ("X", L, 13), ("X", L, 14), ("X", L, 15)
        self.lds_half[(self.slot[S_WR], 0)] = W13 + (0,); self.lds_half[(self.slot[S_WR], 1)] = W14 + (0,)
        sc = self.seg_open("A13", [X13, W13, ("P", L, 15)], 8, 7, [0, 1, 2], X13, W13, half=0, nextnt=3); at_barrier()
        gbr = self.poll_check(sc, "A13", ("P", L, 15), 0)
        sc.chain(self.x_setup(S_Q + 1), 3, 15)
        c = sc.chain([self.S(f"s_lshl_b32 s{S_TA}, s{S_WAVE}, 15"), self.S(f"s_lshl_b32 s{S_TB}, s{S_WC64}, 10"), self.S(f"s_sub_u32 s{S_TA}, s{S_TA}, s{S_TB}"),
                      self.S(f"s_lshr_b32 s{S_TB}, s{S_WR14}, 6"), self.S(f"s_sub_u32 s{S_TA}, s{S_TA}, s{S_TB}"), self.S(f"s_add_u32 s{S_WLM}, s{S_WL}, s{S_TA}"),
                      self.S(f"s_lshl_b32 s{S_TA}, s{S_WAVE}, 12"), self.S(f"s_sub_u32 s{S_O2}, 0, s{S_TA}"), self.S(f"s_add_u32 s{S_O3}, s{S_O2}, 0x4000"),
                      self.S(f"s_sub_u32 s{S_Q+2}, s{S_Q+2}, 1")], 5)
        it, d = half_dma(15, 0, S_Q + 1, S_WR + 1, 0)
        c = sc.chain(it, c[-1])
        lastG = self.place_dma(sc, d, max(gbr + 1, c[-1] + 1), o.pacet)
        lastG = self.place_dma(sc, self.dma_items(X15, S_X + 2, "XE"), lastG + 3, o.pacet)
        nx = {}
        sc.chain(self.xa_items(S_X + 1, S_X, nx), 18)
        a, b, c_, d_ = [f"v{V_T+i}" for i in range(4)]
        adr = [f"v_lshrrev_b32 {a}, 9, v{V_L16}", f"v_lshlrev_b32 {a}, 6, {a}", f"v_add_u32 {a}, {a}, v{V_L16}", f"v_add_u32 {a}, s{S_KEY}, {a}",
               f"v_and_b32 {a}, 0xf0, {a}", f"v_and_b32 {b}, 0x300, v{V_L16}", f"v_add3_u32 v{VW}, {a}, {b}, s{S_E0}",
               f"v_and_b32 {c_}, 0x70, v{V_CPG}",
               f"v_lshrrev_b32 {a}, 3, v{V_L16}", f"v_and_b32 {a}, 0x70, {a}", f"v_add_u32 {a}, s{S_KEY}, {a}",
               f"v_and_b32 {b}, 64, {c_}", f"v_lshl_add_u32 {a}, {b}, 1, {a}", f"v_and_b32 {d_}, 16, {c_}", f"v_lshl_add_u32 {a}, {d_}, 2, {a}",
               f"v_and_b32 {a}, 0xf0, {a}", f"v_lshl_add_u32 {a}, {b}, 4, {a}", f"v_lshl_add_u32 {a}, {d_}, 5, {a}",
               f"v_bfe_u32 {b}, {c_}, 5, 1", f"v_lshl_add_u32 {a}, {b}, 3, {a}", f"v_add_u32 v{VR}, s{S_TF}, {a}"]
        sc.chain([self.S(f"s_lshl_b32 s{S_KEY}, s{S_WC64}, 1"), self.S(f"s_mul_i32 s{S_E0}, s{S_WAVE}, 7168"), self.SU(f"s_sub_u32 s{S_E0}, s{S_WR}, s{S_E0}"),
                  self.S(f"s_lshl_b32 s{S_TF}, s{S_WC64}, 4"), self.S(f"s_sub_u32 s{S_TF}, s{S_E0}, s{S_TF}")], 20, 36)
        self.stream = [self.V(x) + (40,) for x in adr]
        self.stream += [self.V(f"v_mov_b32_dpp v{V_XC[i]}, v{V_BR+i} row_newbcast:7 row_mask:0xf bank_mask:0xf") + (64,) for i in range(2)]
        self.credit = 0.0; self.xr = 0.0
        E0 = [134, 230, 326, 390]
        ear = lambda f: E0[f // 8] + 2 * (f % 8)
        self.stream += [U(f, h) + (126,) for f in range(2) for h in range(2)]
        nf = o.nft
        for f in range(nf):
            pos = ear(f)
            it = [("V" if k < 4 else "A", self.E(x)) for k, x in enumerate(self.epi_valu(f // 8, f % 8, tbf(f), None, tbf(f)))]
            if f % 8 == 0 and f: it = it[:6] + switch(VW, f // 8, "wa_") + it[6:]
            w0 = lambda f=f: wr(f)
            w0.ok = lambda f=f: wr_ok(f)
            it += [U(f + 2, 1), ("X", w0), U(f + 2, 0)]
            self.stream += [x + (pos,) for x in it]
        def pub(f, pos):
            def z():
                bar(); assert f in self.visible
            z.ready = lambda g: "skip" if f in self.visible else (f in self.written and g >= self.w_at[f] + o.zdist)
            def r0(): rdback(f, "v", CT, 0)
            def r1(): rdback(f, "v", CT, 1); self.rd_at[f] = self.gnow
            r0.ready = r1.ready = lambda g: g >= self.wpos + 2
            def wt(): self.wait(ltags=[("C", f)])
            wt.ready = lambda g: f in self.rd_at and g >= self.rd_at[f] + o.rdist
            def st(): store(f, vr(CT, 4))
            it = []
            if f % 8 == 0 and f:
                it = switch(VR, f // 8, "ra"); it[0][1].ready = lambda g: True
            it += [("Z", z), ("D", r0), ("D", r1), ("S", wt), ("R", st)]
            for k, x in it: x.pub = True
            return [x + (pos,) for x in it]
        self.stream2 = []
        for f in range(nf): self.stream2 += pub(f, E0[f // 8] + (o.spo + o.sp * (f % 8) if f < 16 else o.spo2 + o.sp2 * (f % 8)))
        self.seg_emit(sc, 0, stamp_at=58)
        self.area_next = {0}
        sc = self.seg_open("C14", [X14], None, 3, [0], X14, W14, half=1, nextnt=1); at_barrier()
        it, d = half_dma(15, 1, S_Q + 1, S_WR + 1, 1)
        c = sc.chain(it, 1)
        self.place_dma(sc, d, 17, 3)
        sc.chain(self.xa_items(S_X + 2, S_X + 1, nx), 16)
        self.wa_sched(sc, S_WR + 1, S_WR, 8, 24)
        self.seg_emit(sc, 64, stamp_at=28)
        sc = self.seg_open("F15", [X15, W15 + (0,)], None, 1, [0, 1, 2, 3, 4], X15, W15, half=lambda nt: nt >> 2, nextnt=5, maxS=1); at_barrier()
        it, d = half_dma(14, 1, S_Q, S_WR + 1, 0)
        c = sc.chain(it, 1)
        sc.g[63].append(("S", lambda: bar([W15 + (1,)])))
        self.place_dma(sc, d, 65, 4)
        sc.chain(self.xa_items(S_X + 1, S_X + 2, nx), 18)
        self.wa_sched(sc, S_WR, S_WR + 1, 20, 16 + 64 + 8)
        self.seg_emit(sc, 96, stamp_at=24)
        sc = self.seg_open("D14", [], None, 5, [2, 3, 4, 5, 6], X14, W14, half=lambda nt: 1 - (nt >> 2), nextnt=7, maxS=1, barrier=False)
        it, d = half_dma(13, 1, S_Q + 2, S_WR, 1)
        c = sc.chain(it, 1)
        def b3():
            self.area_next = {1, 3}; bar([W14 + (1,)])
        sc.g[31].append(("S", b3))
        self.place_dma(sc, d, 33, 4)
        sc.chain(self.xa_items(S_X, S_X + 1, nx), 18)
        self.wa_sched(sc, S_WR + 1, S_WR, 10, 24)
        self.wa_sched(sc, S_WR, S_WR + 1, 50, 16 + 64 + 8)
        self.seg_emit(sc, 192, stamp_at=26)
        sc = self.seg_open("B13", [W13 + (1,)], None, 7, [4, 5, 6], X13, W13, half=1, nextnt=7, maxS=1); at_barrier()
        def b4():
            self.area_next = {2}; bar()
        sc.g[31].append(("S", b4))
        sc.chain(self.xa_items(S_X + 2, S_X, nx), 18)
        self.wa_sched(sc, S_WR + 1, S_WR, 20, 16 + 32 + 8)
        self.seg_emit(sc, 288, stamp_at=24)
        sc = self.seg_open("E15", [], None, 7, [6], X15, W15, half=1, nextnt=7, maxS=1, barrier=False)
        self.seg_emit(sc, 352, stamp_at=24)
        sc = self.seg_open("FIN", [], None, 7, [], None, None, barrier=False, maxS=1)
        self.seg_emit(sc, 384, stamp_at=8)
        for k, fn, pos in self.stream:
            if k == "U": self.mfma(fn)
            else: fn()
        self.stream = []
        while self.stream2 and self.stream2[0][0] in "DSR" and not (self.stream2[0][0] == "S" and self.stream2[1][0] == "A"):
            self.stream2.pop(0)[1]()
        self.stream2 = []
        e("s_nop 7")
        todo = []
        dreg = lambda x: XF(x % 8, (x // 8) & 1)
        def publish():
            bar(every=True)
            for x in sorted(self.visible):
                if x not in self.rd_at:
                    if x // 8 != self.ra:
                        for k, fn in switch(VR, x // 8, "ra"): fn()
                    rdback(x, "a", dreg(x), 0); rdback(x, "a", dreg(x), 1); self.rd_at[x] = 0; todo.append(x)
        def drain(n):
            for _ in range(n):
                if todo:
                    x = todo.pop(0); self.wait(ltags=[("C", x)]); store(x, ar(dreg(x), 4))
        assert nf <= 24
        B7 = [V_WC[0], V_XC[0], V_WC[1], V_XC[1]]
        e(f"v_lshlrev_b32 v{B7[0]}, 16, v{B7[1]}"); e(f"v_and_b32 v{B7[1]}, s{S_MASK}, v{B7[1]}")
        e(f"v_lshlrev_b32 v{B7[2]}, 16, v{B7[3]}"); e(f"v_and_b32 v{B7[3]}, s{S_MASK}, v{B7[3]}")
        if o.fmode == 0 and self.written - set(self.rd_at): publish()
        for f in range(nf, 32):
            p, mt = f // 8, f % 8
            tb = tbf(f)
            if mt == 0:
                for k, fn in switch(VW, p, "wa_"): fn()
            for h in (1, 0):
                pf, r = ACC(mt, 2 * p + h)
                if pf == "a":
                    for i in range(4): e(f"v_accvgpr_read_b32 v{AT+i}, a{r+i}")
                    if h == 1:
                        for i in range(4): e(f"v_add_f32 v{AT+i}, v{AT+i}, v{B7[i]}")
                    r = AT
                for d2 in range(2): e(f"v_pk_mul_f32 {vr(tb+4*h+2*d2,2)}, {vr(tb+4*h+2*d2,2)}, {vr(r+2*d2,2)}")
            for d2 in range(4): e(f"v_cvt_pk_bf16_f32 v{tb+d2}, v{tb+2*d2}, v{tb+2*d2+1}")
            if o.fmode == 1:
                n0 = len(todo)
                if str(f - 24) in o.fpub and self.written - set(self.rd_at): publish()
                drain(min(n0, o.fdrain))
            if f + 2 < 32: self.mfma(U(f + 2, 1)[1])
            wr(f)
            if f + 2 < 32: self.mfma(U(f + 2, 0)[1])
            if o.fmode == 0:
                drain(o.fdrain)
                if (f - nf) % o.fgrp == o.fgrp - 1 or f == 31: publish()
        if o.fmode == 1:
            drain(32); publish()
        drain(32)
        assert self.stored == set(range(32))
        e(f"s_or_b32 s{S_TA}, s{S_J}, s{S_WAVE}"); e(f"s_cmp_lg_u32 s{S_TA}, 0"); e("s_cbranch_scc1 L_fin")
        e(f"s_add_u32 s{S_TA}, s{S_EP}, 16"); e(f"v_mov_b32 v{V_FLAG}, s{S_TA}")
        e(f"buffer_store_dword v{V_FLAG}, off, {sr(S_WS,4)}, s{S_EPOFF} sc1")
        self.label("L_fin")
        if o.diag:
            e(f"s_memtime s[{S_ST}:{S_ST+1}]"); e("s_waitcnt vmcnt(0)"); e(f"s_memtime s[{S_ST+2}:{S_ST+3}]")
            e(f"s_memrealtime s[{S_RT+2}:{S_RT+3}]"); e("s_waitcnt lgkmcnt(0)")
            e(f"v_writelane_b32 v{V_ST[0]}, s{S_ST}, 62"); e(f"v_writelane_b32 v{V_ST[1]}, s{S_ST+2}, 62")
            e(f"v_writelane_b32 v{V_ST[0]}, s{S_RT}, 61"); e(f"v_writelane_b32 v{V_ST[1]}, s{S_RT+2}, 61")
            e(f"s_lshl_b32 s{S_TA}, s2, 2"); e(f"s_add_u32 s{S_TA}, s{S_TA}, s{S_WAVE}"); e(f"s_lshl_b32 s{S_TA}, s{S_TA}, 9")
            e(f"s_add_u32 s{S_TA}, s{S_TA}, {hex(ST_OFF)}"); e("v_lshrrev_b32 v0, 2, v0")
            e(f"buffer_store_dword v{V_ST[0]}, v0, {sr(S_WS,4)}, s{S_TA} offen")
            e(f"buffer_store_dword v{V_ST[1]}, v0, {sr(S_WS,4)}, s{S_TA} offen offset:256")
            if o.echo:
                a, b = o.echo.split(",")
                if a == "pad":
                    e(f"s_add_u32 s{S_TB}, s{S_RT}, {b}")
                else:
                    reg = V_ST[0] if o.echoc else V_ST[1]
                    if a == "s": e(f"s_mov_b32 s{S_TA}, s{S_D0 if o.echoc else S_RT}")
                    else: e(f"v_readlane_b32 s{S_TA}, v{reg}, {a}")
                    if b == "e": e(f"s_mov_b32 s{S_TB}, s{S_ST+2 if o.echoc else S_RT+2}")
                    else: e(f"v_readlane_b32 s{S_TB}, v{reg}, {b}")
                    e("s_nop 4")
                    e(f"s_sub_u32 s{S_TB}, s{S_TB}, s{S_TA}")
                    if o.echoc: e(f"s_sub_u32 s{S_TB}, s{S_TB}, {o.echob}"); e(f"s_lshr_b32 s{S_TB}, s{S_TB}, {o.echos}")
                    e(f"s_min_u32 s{S_TB}, s{S_TB}, 20000")
                    e(f"s_add_u32 s{S_TB}, s{S_TB}, s{S_RT+2}")
                self.label("L_echo")
                e(f"s_memrealtime s[{S_ST}:{S_ST+1}]"); e("s_waitcnt lgkmcnt(0)")
                e(f"s_sub_u32 s{S_ST}, s{S_ST}, s{S_TB}"); e(f"s_cmp_lt_i32 s{S_ST}, 0"); e("s_cbranch_scc1 L_echo")
        e("s_endpgm")

    def sizes(self, lines):
        import subprocess, tempfile, os
        labels = set()
        for l in lines:
            m = re.search(r"(?:branch\w*|L_\w+-)\s*(\w+)", l)
        src = '.amdgcn_target "amdgcn-amd-amdhsa--gfx950"\n.text\n'
        body = []
        for l in lines:
            if l.endswith(":"): continue
            if "branch" in l: l = "s_nop 0"
            l = re.sub(r"L_\w+-L_pc(-4)?", "0x12345", l)
            body.append(l)
        with tempfile.TemporaryDirectory() as d:
            open(d + "/a.s", "w").write(src + "\n".join(body) + "\n")
            subprocess.run(["clang", "-x", "assembler", "-target", "amdgcn-amd-amdhsa", "-mcpu=gfx950", "-c", d + "/a.s", "-o", d + "/a.o"], check=True)
            dis = subprocess.run(["llvm-objdump", "-d", "--mcpu=gfx950", d + "/a.o"], capture_output=True, text=True).stdout
        sz = [4 * len(l.split(": ")[-1].split()) for l in dis.splitlines() if "//" in l]
        assert len(sz) == len(body), (len(sz), len(body))
        out = []; k = 0
        for l in lines:
            if l.endswith(":"): out.append(0)
            else: out.append(sz[k]); k += 1
        return out
    def add_hops(self, o, caps):
        sz = self.sizes(o)
        wt = []; w = 1
        for l in o:
            if l == "L_G0:": w = 13
            if l == "L_T14:": w = 2
            if l == "L_G1:": w = 18
            if l == "L_TAIL:": w = 1
            wt.append(w)
        def layout(X):
            out = ["@HOP"]; pos = X + 4; nextpage = 4096; cost = 0
            i = 0
            while i < len(o):
                if pos >= nextpage:
                    best = None; p = pos; j = i
                    while j < len(o) and p < nextpage + 56:
                        if j > 0 and o[j - 1].startswith("v_mfma"):
                            n = 0
                            while j + n < len(o) and not o[j + n].startswith("v_mfma"): n += 1
                            if best is None or n < best[0]: best = (n, j)
                        p += sz[j]; j += 1
                    tgt = best[1] if best else i
                    cost += wt[tgt] * (self.opt.hopw + 10 * min(best[0] if best else 1, 1))
                    while i < tgt:
                        out.append(o[i]); pos += sz[i]; i += 1
                    out.append("@HOP"); pos += 4
                    nextpage += 4096
                    continue
                if o[i] in ("L_G0:", "L_G1:") and self.opt.algn >= 0:
                    need = ((self.opt.algn - pos) % 64) // 4
                    k = len(out)
                    if out[-1].startswith("s_branch"):
                        out += ["s_nop 0"] * need; pos += 4 * need; need = 0
                    while need > 0:
                        while not (out[k - 1].startswith("v_mfma") and (k == len(out) or out[k].startswith("v_mfma"))):
                            k -= 1
                            if out[k] == "@HOP": cost += 1000
                        m = min(need, 3)
                        out[k:k] = ["s_nop 0"] * m; pos += 4 * m; need -= m; k -= 1
                out.append(o[i]); pos += sz[i]; i += 1
            return cost + 30 * out.count("@HOP"), X, out
        cost, self.skip, out = min((layout(X) for X in (range(0, 4096, 64) if self.opt.skip < 0 else [self.opt.skip])), key=lambda r: r[:2])
        self.hopcost = cost
        for b in caps:
            for l in b:
                out.append(l)
                if l.endswith(":") and l.startswith("CAP"): out.append("@HOP")
        n = out.count("@HOP"); k = 0; res = []
        for l in out:
            if l == "@HOP":
                res.append(f"HOP{k}:"); res.append(f"s_cbranch_execz " + (f"HOP{k+4}" if k + 4 < n else "HOPEND")); k += 1
            else: res.append(l)
        self.nhops = n
        return res

    def build(self):
        self.stored = set()
        self.prologue()
        main = self.out
        texts = {}
        def gen(kind, layer, t):
            self.out = []
            self.body(kind, layer, t)
            if kind in texts and texts[kind] != self.out:
                for a, b in zip(texts[kind], self.out):
                    if a != b: print("DIFF", kind, layer, t, a, "|", b); break
                raise RuntimeError(f"body {kind} differs at layer {layer} t {t}")
            texts[kind] = self.out
        for layer in range(3):
            for t in range(16 if layer < 2 else 13):
                if layer == 0: kind = "E0" if t == 0 else ("G0" if t < 14 else f"T{t}")
                else: kind = "H0" if t == 0 else (f"S{t}" if t <= self.opt.ns else ("G1" if t < 14 else f"T{t}"))
                gen(kind, layer, t)
        self.out = []; self.tail(); texts["TAIL"] = self.out
        if self.opt.x:
            x = self.opt.x; g = []
            for l in texts["G1"]:
                if "d" in x and l.startswith("buffer_load_dwordx4"): l = "s_mov_b32 s70, 0x12345"
                if "p" in x and l.startswith("s_cbranch_scc1 SLOW"): l = "s_nop 0"
                if "p" in x and l.startswith("buffer_load_dword "): l = "s_mov_b32 s70, 0x12345"
                if "f" in x and l.startswith("buffer_store_dword "): l = "s_mov_b32 s70, 0x12345"
                if "b" in x and l == "s_barrier": l = "s_nop 0"
                if "l" in x and l.startswith("ds_read"): l = "s_mov_b32 s70, 0x12345"
                g.append(l)
            texts["G1"] = g
            if "p" in x: texts["TAIL"] = ["s_nop 0" if l.startswith("s_cbranch_scc1 SLOW") else l for l in texts["TAIL"]]
        o = texts["E0"][:]
        o += self.entry.get("G0", [])
        o += ["L_G0:"] + texts["G0"] + ["s_cbranch_scc1 L_G0"]
        o += ["L_T14:"] + texts["T14"] + texts["T15"] + texts["H0"] + texts["S1"] + texts["S2"] + texts["S3"] + texts.get("S4", []) + texts.get("S5", [])
        o += self.entry.get("G1", [])
        o += ["L_G1:"] + texts["G1"] + ["s_cbranch_scc1 L_G1"]
        o += [f"s_cmp_eq_u32 s{S_LAYER}, 1", "s_cbranch_scc1 L_T14"]
        o += ["L_TAIL:"] + texts["TAIL"]
        caps = [b for k, b in self.ool.items() if k.startswith("CAP")]
        slow = [b for k, b in self.ool.items() if not k.startswith("CAP")]
        if self.opt.hops:
            o = self.add_hops(o, caps)
            o = main + ["s_branch L_main"] + sum(slow, []) + [".p2align 12"] + ([f".fill {self.skip//4}, 4, 0xbf800000"] if self.skip else []) + ["L_main:"] + o
        else:
            o = main + o + sum(caps, []) + sum(slow, [])
        self.texts = texts
        hdr = open("standalone__dcn_v2_cross__recsys.s.ref").read().split("\n")
        top = [l for l in hdr if l.startswith(";") and "@launch" not in l]
        if self.opt.diag: top.append("; STAMPS " + ("RT " if self.opt.diagrt else "CY ") + " ".join(self.stamps))
        txt = "\n".join(top) + f"\n; @launch grid=(256,1,1) block=(256,1,1) lds={SLOT*5}\n"
        txt += f""".amdgcn_target "amdgcn-amd-amdhsa--gfx950"
.text
.globl {NAME}
.p2align 8
.type {NAME},@function
{NAME}:
"""
        txt += "\n".join(o) + "\nL_codeend:\n"
        txt += f""".section .rodata,"a"
.p2align 6
.amdhsa_kernel {NAME}
  .amdhsa_next_free_vgpr 512
  .amdhsa_next_free_sgpr 102
  .amdhsa_accum_offset 256
  .amdhsa_group_segment_fixed_size 0
  .amdhsa_kernarg_size 48
  .amdhsa_user_sgpr_count 2
  .amdhsa_user_sgpr_kernarg_segment_ptr 1
  .amdhsa_system_sgpr_workgroup_id_x 1
  .amdhsa_float_denorm_mode_32 3
.end_amdhsa_kernel
"""
        return txt

if __name__ == "__main__":
    ap = argparse.ArgumentParser()
    ap.add_argument("-o", default="k3.s")
    ap.add_argument("--diag", action="store_true")
    ap.add_argument("--diagrt", action="store_true")
    ap.add_argument("--diagc", action="store_true")
    ap.add_argument("--pace", type=float, default=7)
    ap.add_argument("--pacex", type=float, default=7.5)
    ap.add_argument("--paceh", type=float, default=5)
    ap.add_argument("--pacet", type=float, default=3.3)
    ap.add_argument("--xr15", type=float, default=0.04)
    ap.add_argument("--xr0", type=float, default=-1)
    ap.add_argument("--xrt", type=float, default=0.0)
    ap.add_argument("--flag0", type=int, default=60)
    ap.add_argument("--early", type=int, default=10)
    ap.add_argument("--direct", default="8343")
    ap.add_argument("--ns", type=int, default=4)
    ap.add_argument("--cn", default="5234")
    ap.add_argument("--c0", type=int, default=66)
    ap.add_argument("--c1", type=int, default=120)
    ap.add_argument("--asc", type=int, default=1)
    ap.add_argument("--xtouch", type=int, default=0)
    ap.add_argument("--tpf", type=int, default=0)
    ap.add_argument("--hops", type=int, default=1)
    ap.add_argument("--qrot", type=int, default=2)
    ap.add_argument("--add", default="")
    ap.add_argument("--h0sp", type=int, default=1)
    ap.add_argument("--xd3", type=int, default=1)
    ap.add_argument("--e0pre", type=int, default=10)
    ap.add_argument("--cap4", type=int, default=1)
    ap.add_argument("--fpos", type=int, default=45)
    ap.add_argument("--echos", type=int, default=4)
    ap.add_argument("--echob", type=int, default=0)
    ap.add_argument("--skip", type=int, default=-1)
    ap.add_argument("--hopw", type=int, default=10)
    ap.add_argument("--fmode", type=int, default=0)
    ap.add_argument("--fpub", default="01234567")
    ap.add_argument("--xbpos", type=int, default=12)
    ap.add_argument("--snake", type=int, default=1)
    ap.add_argument("--wpos", type=int, default=1)
    ap.add_argument("--diag2", action="store_true")
    ap.add_argument("--pace0", type=float, default=7)
    ap.add_argument("--pacex0", type=float, default=7.5)
    ap.add_argument("--xrot", type=int, default=0)
    ap.add_argument("--b0pre", type=int, default=4)
    ap.add_argument("--xsp", type=float, default=1.2)
    ap.add_argument("--xso", type=float, default=3.0)
    ap.add_argument("--gw", type=int, default=14)
    ap.add_argument("--xkeep", type=lambda x: [int(y) for y in x.split(",")], default=[])
    ap.add_argument("--entry", type=int, default=1)
    ap.add_argument("--finit", type=int, default=1)
    ap.add_argument("--stx", type=int, default=0)
    ap.add_argument("--stpos", type=int, default=0)
    ap.add_argument("--fdrop", type=int, default=1)
    ap.add_argument("--pollpos", type=int, default=58)
    ap.add_argument("--wpf", type=int, default=0)
    ap.add_argument("--wpd", type=int, default=2)
    ap.add_argument("--algn", type=int, default=16)
    ap.add_argument("--tsplit", type=int, default=0)
    ap.add_argument("--touch", type=int, default=2)
    ap.add_argument("--prex", type=int, default=0)
    ap.add_argument("--zdist", type=int, default=5)
    ap.add_argument("--rdist", type=int, default=8)
    ap.add_argument("--wl2", type=int, default=0)
    ap.add_argument("--echo", default="")
    ap.add_argument("--echoc", type=int, default=0)
    ap.add_argument("--x0f", default="nt")
    ap.add_argument("--e1out", type=int, default=1)
    ap.add_argument("--wwarm", type=int, default=1)
    ap.add_argument("--w0warm", type=int, default=0)
    ap.add_argument("-x", default="")
    ap.add_argument("--wr128", type=int, default=0)
    ap.add_argument("--nft", type=int, default=24)
    ap.add_argument("--sp", type=float, default=10)
    ap.add_argument("--spo", type=float, default=22)
    ap.add_argument("--sp2", type=float, default=9)
    ap.add_argument("--spo2", type=float, default=16)
    ap.add_argument("--xrb", type=float, default=0.0)
    ap.add_argument("--fdrain", type=int, default=1)
    ap.add_argument("--fgrp", type=int, default=3)
    ap.add_argument("--outf", default="sc1")
    opt = ap.parse_args()
    if opt.diagrt: opt.diag = True
    SNAKE = bool(opt.snake)
    if opt.xr0 < 0:
        opt.xr0 = 0.0
        while True:
            try:
                g = G(opt); txt = g.build(); break
            except AssertionError as ex:
                if not (ex.args and (ex.args[0] == "stream left" or ex.args[0][0] == "deadline")): raise
                opt.xr0 += 0.01
                if opt.xr0 > 1: raise
    else:
        g = G(opt); txt = g.build()
    open(opt.o, "w").write(txt)
    print(f"xr0 {opt.xr0:.2f} skip {getattr(g,'skip',0)} hopcost {getattr(g,'hopcost',0)} nhops {getattr(g,'nhops',0)} fallback waits:", g.warn, {k: len(v) for k, v in g.texts.items()})
```
